```python
import torch

def _softmax(x, axis=-1):
    return torch.softmax(x, dim=axis)
def _gelu(x):
    return torch.nn.functional.gelu(x, approximate="tanh")
def _silu(x):
    return torch.nn.functional.silu(x)
def _sigmoid(x):
    return torch.sigmoid(x)
def _layernorm(x, axis=-1, eps=1e-5):
    m = x.mean(dim=axis, keepdim=True)
    v = x.var(dim=axis, keepdim=True, unbiased=False)
    return (x - m) / torch.sqrt(v + eps)
def _scatter_add(tgt, idx, src, axis=0):
    return tgt.clone().index_add_(axis, idx, src)
def _segment_sum(src, seg, n):
    out = torch.zeros((n,) + src.shape[1:], dtype=src.dtype)
    return out.index_add_(0, seg, src)
def _pad(x, pw):
    flat = tuple(v for pair in reversed(pw) for v in pair)
    return torch.nn.functional.pad(x, flat)

kernel_name = 'gated_mix__spectral_fnet__grouped_kv_mqa__prompt'

def setup_inputs():

    _w = (lambda a: (lambda t: t.to(torch.bfloat16) if t.is_floating_point() else t)(torch.as_tensor(a)))
    def _A_setup():
        B, S, D = 1, 2048, 576
        ns = torch.arange(S)[:, None] * torch.arange(S)[None, :]
        nd = torch.arange(D)[:, None] * torch.arange(D)[None, :]
        Ws_re = torch.cos(-2.0 * torch.pi * ns / S).to(float)
        Ws_im = torch.sin(-2.0 * torch.pi * ns / S).to(float)
        Wd_re = torch.cos(-2.0 * torch.pi * nd / D).to(float)
        Wd_im = torch.sin(-2.0 * torch.pi * nd / D).to(float)
        return {
            "x": _w((lambda *s: torch.randn(*s, dtype=torch.bfloat16) * 0.05)(B, S, D)),
            "dft_seq_re": _w(Ws_re),
            "dft_seq_im": _w(Ws_im),
            "dft_hid_re": _w(Wd_re),
            "dft_hid_im": _w(Wd_im),
        }
    _A_in = _A_setup()

    def _B_setup():
        B, S, D, H = 1, 2048, 576, 32
        Dh = D // H
        return {
            "x": _w((lambda *s: torch.randn(*s, dtype=torch.bfloat16) * 0.05)(B, S, D)),
            "wq": _w((lambda *s: torch.randn(*s, dtype=torch.bfloat16) * 3.2)(D, H * Dh)),
            "wk": _w((lambda *s: torch.randn(*s, dtype=torch.bfloat16) * 3.2)(D, Dh)),
            "wv": _w((lambda *s: torch.randn(*s, dtype=torch.bfloat16) * 0.4)(D, Dh)),
            "wo": _w((lambda *s: torch.randn(*s, dtype=torch.bfloat16) * 0.4)(H * Dh, D)),
        }
    _B_in = _B_setup()

    return {
        "A_x": _A_in["x"],
        "A_dft_seq_re": _A_in["dft_seq_re"],
        "A_dft_seq_im": _A_in["dft_seq_im"],
        "A_dft_hid_re": _A_in["dft_hid_re"],
        "A_dft_hid_im": _A_in["dft_hid_im"],
        "B_x": _B_in["x"],
        "B_wq": _B_in["wq"],
        "B_wk": _B_in["wk"],
        "B_wv": _B_in["wv"],
        "B_wo": _B_in["wo"],
        "gate_w": _w((lambda *s: torch.randn(*s, dtype=torch.bfloat16) * 0.05)(576) * 16.0),
    }

def reference(A_x, A_dft_seq_re, A_dft_seq_im, A_dft_hid_re, A_dft_hid_im, B_x, B_wq, B_wk, B_wv, B_wo, gate_w):
    def _A_ref(x, dft_seq_re, dft_seq_im, dft_hid_re, dft_hid_im):
        a = torch.einsum("bsd,ed->bse", x, dft_hid_re)
        b = torch.einsum("bsd,ed->bse", x, dft_hid_im)
        y = torch.einsum("ts,bse->bte", dft_seq_re, a) - torch.einsum("ts,bse->bte", dft_seq_im, b)
        return y

    def _B_ref(x, wq, wk, wv, wo):
        B, S, D = x.shape
        H = 32
        Dh = D // H
        q = (lambda x, *d: x.permute(*d))((x @ wq).reshape(B, S, H, Dh), 0, 2, 1, 3)
        k = x @ wk
        v = x @ wv
        scores = torch.einsum("bhqd,bkd->bhqk", q, k) * (Dh ** -0.5)
        p = _softmax(scores, axis=-1)
        o = torch.einsum("bhqk,bkd->bhqd", p, v)
        return (lambda x, *d: x.permute(*d))(o, 0, 2, 1, 3).reshape(B, S, H * Dh) @ wo

    x = A_x
    g = _sigmoid((x * gate_w).sum(-1, keepdims=True))
    a = _A_ref(x, A_dft_seq_re, A_dft_seq_im, A_dft_hid_re, A_dft_hid_im)
    b = _B_ref(x, B_wq, B_wk, B_wv, B_wo)
    return g * a + (1 - g) * b
```

```python
import re

class Asm:
    def __init__(self):
        self.lines = []
        self.vm = []
    def __call__(self, s):
        for l in s.split("\n"):
            l = l.strip()
            if l:
                self.lines.append(l)
    def label(self, n):
        self.lines.append(n + ":")
    def vm_reset(self):
        self.vm = []
    def vmem(self, s, tag):
        self(s)
        self.vm.append(tag)
    def vm_note(self, tag, n=1):
        self.vm += [tag] * n
    def vm_wait(self, tag):
        idx = max(i for i, t in enumerate(self.vm) if t == tag)
        n = len(self.vm) - 1 - idx
        assert n <= 63
        self(f"s_waitcnt vmcnt({n})")
        self.vm = self.vm[idx + 1:]
    def text(self):
        out = []
        for l in self.lines:
            out.append(l if (l.endswith(":") or l.startswith(".")) else "    " + l)
        return "\n".join(out)

TRANS = ("v_exp_", "v_log_", "v_rcp_", "v_rsq_", "v_sqrt_", "v_sin_", "v_cos_")
def regs(op):
    op = op.strip()
    op = re.sub(r"^-?\|?|\|$", "", op)
    op = re.sub(r"^abs\((.*)\)$", r"\1", op)
    m = re.fullmatch(r"([vsa])\[(\d+):(\d+)\]", op)
    if m: return {(m.group(1), i) for i in range(int(m.group(2)), int(m.group(3)) + 1)}
    m = re.fullmatch(r"([vsa])(\d+)", op)
    if m: return {(m.group(1), int(m.group(2)))}
    if op in ("vcc", "vcc_lo", "vcc_hi"): return {("vcc", 0)}
    if op == "m0": return {("m0", 0)}
    if op in ("exec", "exec_lo", "exec_hi"): return {("exec", 0)}
    return set()

def parse(l):
    l = l.split(";")[0].strip()
    sp = l.split(None, 1)
    name = sp[0]
    rest = sp[1] if len(sp) > 1 else ""
    ops = [o.strip() for o in rest.split(",")] if rest else []
    mods = ""
    if ops:
        last = ops[-1].split(None, 1)
        ops[-1] = last[0]
        mods = last[1] if len(last) > 1 else ""
    d = dict(name=name, ops=ops, mods=mods, w=set(), r=set(), cls="other", text=l)
    R = [regs(o) for o in ops]
    allr = lambda xs: set().union(*xs) if xs else set()
    if name.startswith(("v_mfma", "v_smfmac")):
        d["cls"] = "mfma"; d["w"] = R[0]; d["A"] = R[1]; d["B"] = R[2]; d["C"] = R[3]; d["r"] = R[1] | R[2] | R[3]
        d["passes"] = 8 if "32x32" in name else 4
        if name.startswith("v_smfmac"):
            d["B"] = R[2] | R[3]; d["C"] = R[0]; d["r"] |= R[0]
    elif name.startswith("v_"):
        d["cls"] = "valu"
        d["trans"] = name.startswith(TRANS)
        d["dpp"] = "dpp" in name or "row_" in mods or "quad_perm" in mods
        if name.startswith("v_permlane") and "swap" in name:
            d["w"] = R[0] | R[1]; d["r"] = R[0] | R[1]; d["perm"] = True
        elif name.startswith(("v_add_co", "v_sub_co", "v_addc_co", "v_subb_co")):
            d["w"] = R[0] | R[1]; d["r"] = allr(R[2:])
        else:
            d["w"] = R[0]; d["r"] = allr(R[1:])
            if name.startswith(("v_fmac", "v_dot2c", "v_writelane")) or d["dpp"] or "UNUSED_PRESERVE" in mods: d["r"] |= R[0]
            if name.startswith("v_cndmask") and len(ops) == 3: d["r"] |= {("vcc", 0)}
        d["rl"] = name.startswith(("v_readlane", "v_readfirstlane"))
    elif name.startswith(("buffer_", "global_")):
        d["cls"] = "vmem"
        lds = " lds" in (" " + mods)
        d["lds"] = lds
        if ("load" in name) and not lds:
            d["w"] = R[0]; d["r"] = allr(R[1:])
        else:
            d["r"] = allr(R)
        if "store" in name and ("x4" in name or "x3" in name):
            d["wide"] = R[0] if name.startswith("buffer_") else R[1]
    elif name.startswith("ds_"):
        d["cls"] = "ds"
        if "read" in name or "bpermute" in name or "swizzle" in name or "rtn" in name:
            d["w"] = R[0]; d["r"] = allr(R[1:])
        else:
            d["r"] = allr(R)
    elif name.startswith("s_"):
        d["cls"] = "salu"
        if name.startswith(("s_cmp", "s_cbranch", "s_branch", "s_waitcnt", "s_nop", "s_barrier", "s_setprio", "s_sleep", "s_endpgm", "s_bitcmp")):
            d["r"] = allr(R)
        else:
            d["w"] = R[0] if R else set(); d["r"] = allr(R[1:])
            if "saveexec" in name: d["w"] |= {("exec", 0)}
    return d

def check(lines):
    ins = []
    for l in lines:
        if l.endswith(":") or l.startswith("."):
            continue
        ins.append(parse(l))
    probs = []
    for i, c in enumerate(ins):
        dist = 0
        for j in range(i - 1, max(-1, i - 24), -1):
            p = ins[j]
            if p["name"] in ("s_branch", "s_endpgm", "s_setpc_b64"): break
            need = 0; why = ""
            def req(n, w):
                nonlocal need, why
                if n > need: need, why = n, w
            vw = {x for x in p["w"] if x[0] in "va"}
            sw = {x for x in p["w"] if x[0] in ("s", "vcc")}
            if p["cls"] == "valu":
                if c["cls"] == "mfma" and vw & c["r"]: req(2, "valu->mfma")
                if c["cls"] == "valu":
                    if p["trans"] and not c["trans"] and vw & c["r"]: req(1, "trans->valu")
                    if c.get("perm") and vw & c["r"]: req(2, "valu->permlane")
                    if c["dpp"] and vw & c["r"]: req(2, "valu->dpp")
                    if c["rl"] and vw & c["r"]: req(1, "valu->readlane")
                    if sw & c["r"]: req(4 if c["name"].startswith(("v_readlane","v_writelane")) else 2, "valu sgpr->valu")
                    if ("sdwa" in p["name"] or "op_sel" in p["mods"]) and not p["name"].startswith("v_pk") and vw & (c["r"] | c["w"]): req(1, "sdwa/opsel")
                if c["cls"] == "vmem" and sw & c["r"]: req(5, "valu sgpr->vmem")
            if p["cls"] == "mfma":
                P = p["passes"]; big = {4: 8, 8: 12}[P]
                if c["cls"] == "mfma":
                    if p["w"] & (c["A"] | c["B"]): req(big, "mfma->mfma AB")
                    if p["w"] & c["C"] and not (p["w"] == c["C"] and P == c["passes"]): req({4: 6, 8: 10}[P], "mfma->mfma C partial")
                    if p["w"] & c["w"] and not (p["w"] & c["C"]): req({4: 6, 8: 10}[P], "mfma WAW")
                elif c["cls"] == "valu":
                    if p["w"] & (c["r"] | c["w"]): req(big, "mfma->valu")
                    if p["C"] & c["w"]: req({4: 3, 8: 7}[P], "mfma C WAR")
                elif c["cls"] in ("vmem", "ds"):
                    if p["w"] & (c["r"] | c["w"]): req(big, "mfma->mem")
            if p["cls"] == "salu" and ("m0", 0) in p["w"] and c["cls"] == "vmem" and c["lds"]: req(1, "m0->ldsdma")
            if p["cls"] == "vmem" and p.get("wide") and c["cls"] in ("valu",) and p["wide"] & c["w"]: req(2, "store WAR")
            if need > dist:
                probs.append(f"hazard {why}: need {need} have {dist}:\n    {p['text']}\n    {c['text']}")
            dist += (int(p["ops"][0]) + 1) if p["name"] == "s_nop" else 1
            if dist >= 20: break
    return probs[:6]
```

```python
import math, struct, sys
from asmlib import Asm, check

NAME = "gated_mix__spectral_fnet__grouped_kv_mqa__prompt"
QN, XF, OF, GT, DF, KV, KM, GG, FL = 0x0, 0x240000, 0x480000, 0x6C0000, 0xB80000, 0xC10000, 0xC40000, 0xC40400, 0xC43000
WS_SIZE = 0xC50000
GP = 1216
TILE = 2400
CQ = math.log2(math.e) / math.sqrt(18.0)
def f2u(x): return struct.unpack("<I", struct.pack("<f", x))[0]
def bf16(x):
    u = f2u(x); return ((u + 0x7FFF + ((u >> 16) & 1)) >> 16) & 0xFFFF

def srd(a, d, ptr, size):
    a(f"s_mov_b32 s{d}, s{ptr}\ns_mov_b32 s{d+1}, s{ptr+1}\ns_mov_b32 s{d+2}, {size}\ns_mov_b32 s{d+3}, 0x20000")

def code_prefetch(a, vtmp, vdst, end_label, here):
    a(f"s_getpc_b64 s[4:5]")
    a.label(here)
    a(f"v_lshlrev_b32 v{vtmp}, 7, v0")
    a(f"v_min_u32 v{vtmp}, {end_label}-{here}-4, v{vtmp}")
    a.vmem(f"global_load_dword v{vdst}, v{vtmp}, s[4:5]", "pf")

def fnet_tail(a, H, T1, T2, R, tmp, vL, sWS, sS2, sGrp, sT, special, sc=""):
    Hb = tmp
    for k in range(8): a(f"v_cvt_pk_bf16_f32 v{Hb+k}, v{H+2*k}, v{H+2*k+1}")
    vA, vB = tmp + 8, tmp + 9
    a(f"v_and_b32 v{vA}, 31, v{vL}")
    a(f"v_mul_u32_u24 v{vA}, {128*GP}, v{vA}")
    a(f"v_mfma_f32_32x32x16_bf16 v[{T1}:{T1+15}], v[{Hb}:{Hb+3}], v[{R}:{R+3}], 0")
    a(f"v_mfma_f32_32x32x16_bf16 v[{T2}:{T2+15}], v[{Hb}:{Hb+3}], v[{R+8}:{R+11}], 0")
    a(f"v_mfma_f32_32x32x16_bf16 v[{T1}:{T1+15}], v[{Hb+4}:{Hb+7}], v[{R+4}:{R+7}], v[{T1}:{T1+15}]")
    a(f"v_mfma_f32_32x32x16_bf16 v[{T2}:{T2+15}], v[{Hb+4}:{Hb+7}], v[{R+12}:{R+15}], v[{T2}:{T2+15}]")
    a(f"v_lshrrev_b32 v{vB}, 5, v{vL}")
    a(f"v_lshlrev_b32 v{vB}, 4, v{vB}")
    a(f"v_sub_u32 v{tmp+10}, v{vA}, v{vB}")
    a(f"v_add_u32 v{vA}, v{vA}, v{vB}")
    a(f"v_add_u32 v{vB}, 16, v{tmp+10}")
    a(f"s_mul_i32 s{sT}, s{sS2}, {GP}")
    a(f"s_add_u32 s{sT}, s{sT}, {GT}")
    a(f"s_lshl_b32 s{sT+1}, s{sGrp}, 5")
    a(f"s_sub_u32 s{sT+2}, s{sT}, s{sT+1}")
    a(f"s_add_u32 s{sT+2}, s{sT+2}, {2*(576-7)-16}")
    a(f"s_add_u32 s{sT+1}, s{sT}, s{sT+1}")
    a(f"s_add_u32 s{sT+3}, s{sT+1}, {64*GP}")
    a(f"s_add_u32 s{sT+4}, s{sT+2}, {64*GP}")
    a("s_nop 1")
    if special:
        lab = special
        a(f"s_cmp_lg_u32 s{sGrp}, 0")
        a(f"s_cbranch_scc1 {lab}")
        a(f"s_mov_b32 exec_hi, 0")
        a(f"v_cvt_pk_bf16_f32 v{tmp+11}, v{T1+8}, v{T2+8}")
        a(f"v_mov_b32 v{T1+8}, 0")
        a(f"v_mov_b32 v{T2+8}, 0")
        a(f"s_add_u32 s{sT+5}, s{sT}, {64*GP}")
        a.vmem(f"buffer_store_short v{tmp+11}, v{vA}, s[{sWS}:{sWS+3}], s{sT} offen offset:576 {sc}", "st")
        a.vmem(f"buffer_store_short_d16_hi v{tmp+11}, v{vA}, s[{sWS}:{sWS+3}], s{sT+5} offen offset:576 {sc}", "st")
        a(f"s_mov_b64 exec, -1")
        a.label(lab)
    D = H
    def outp(op, x, y, order, vaddr, soff, dst):
        for r in range(8): a(f"{op} v{D+r}, v{x+r}, v{y+r}")
        for k in range(4):
            i0, i1 = (2*k, 2*k+1) if order > 0 else (7-2*k, 6-2*k)
            a(f"v_cvt_pk_bf16_f32 v{dst+k}, v{D+i0}, v{D+i1}")
        a.vmem(f"buffer_store_dwordx4 v[{dst}:{dst+3}], v{vaddr}, s[{sWS}:{sWS+3}], s{soff} offen {sc}", "st")
    outp("v_add_f32", T1, T2+8, +1, vA, sT+1, D+8)
    outp("v_sub_f32", T2, T1+8, +1, vA, sT+3, D+12)
    outp("v_sub_f32", T1, T2+8, -1, vB, sT+2, Hb)
    outp("v_add_f32", T2, T1+8, -1, vB, sT+4, Hb+4)

def rf_table():
    w = []
    for fn in (math.cos, math.sin):
        for u in range(2):
            for l in range(64):
                t1, h = l & 31, l >> 5
                v = []
                for j in range(8):
                    r = 8*u + j
                    s1 = (r & 3) + 8*(r >> 2) + 4*h
                    v.append(bf16(fn(2*math.pi*((t1*s1) % 32)/32)))
                w += [v[0] | v[1] << 16, v[2] | v[3] << 16, v[4] | v[5] << 16, v[6] | v[7] << 16]
    return w

def load_rf(a, R, vL, vt, here):
    a(f"s_getpc_b64 s[4:5]")
    a.label(here)
    a(f"s_add_u32 s4, s4, rf_table-{here}")
    a(f"s_addc_u32 s5, s5, 0")
    a(f"v_lshlrev_b32 v{vt}, 4, v{vL}")
    for k in range(4):
        a.vmem(f"global_load_dwordx4 v[{R+4*k}:{R+4*k+3}], v{vt}, s[4:5] offset:{1024*k}", "rf")

K1_LDS = 155648
def gen_k1():
    a = Asm()
    sX, sW, sW2, sWS = 44, 48, 52, 56
    sWave, sT1, sRole, sM, sA, sB, sC, sD, sE, sF = 60, 61, 62, 63, 64, 65, 66, 67, 68, 69
    vL, vXs, vWs, vR0, vR1, vTr, vt0, vt1, vt2, vt3 = 1, 2, 3, 4, 5, 6, 7, 8, 9, 10
    vB0, vB1 = 11, 12
    ACC, FR = 16, 32
    a("s_cmp_ge_u32 s2, 256\ns_cbranch_scc1 k1_end")
    a("s_load_dwordx16 s[16:31], s[0:1], 0\ns_load_dwordx8 s[32:39], s[0:1], 64\ns_load_dwordx2 s[40:41], s[0:1], 104")
    code_prefetch(a, vt0, 13, "k1_code_end", "k1_pf")
    a(f"""v_lshrrev_b32 v{vt0}, 6, v0
    v_and_b32 v{vL}, 63, v0
    v_readfirstlane_b32 s{sWave}, v{vt0}
    s_bfe_u32 s{sA}, s2, 0x20003
    s_and_b32 s{sT1}, s2, 7
    s_lshl_b32 s{sA}, s{sA}, 3
    s_add_u32 s{sT1}, s{sT1}, s{sA}
    s_lshr_b32 s{sRole}, s2, 5""")
    a(f"""v_lshrrev_b32 v{vt0}, 4, v{vL}
    v_xor_b32 v{vt0}, v{vt0}, v{vL}
    v_and_b32 v{vt0}, 3, v{vt0}
    v_lshlrev_b32 v{vt0}, 4, v{vt0}
    v_lshrrev_b32 v{vt1}, 2, v{vL}
    s_mov_b32 s{sA}, 73728
    v_mad_u32_u24 v{vXs}, v{vt1}, s{sA}, v{vt0}""")
    a(f"""v_lshrrev_b32 v{vt2}, 5, v{vL}
    v_xor_b32 v{vt3}, v{vt2}, v{vt1}
    v_and_b32 v{vt3}, 3, v{vt3}
    v_lshlrev_b32 v{vR0}, 4, v{vt3}
    v_and_b32 v{vt3}, 15, v{vL}
    v_lshl_add_u32 v{vR0}, v{vt3}, 6, v{vR0}
    v_bfe_u32 v{vt3}, v{vL}, 4, 1
    v_mul_u32_u24 v{vR1}, 3072, v{vt3}
    v_add_u32 v{vR0}, v{vR0}, v{vR1}""")
    a(f"""v_and_b32 v{vTr}, 3, v{vt1}
    v_lshl_add_u32 v{vTr}, v{vt2}, 3, v{vTr}
    v_lshlrev_b32 v{vTr}, 6, v{vTr}
    v_lshl_add_u32 v{vTr}, v{vt3}, 5, v{vTr}
    v_and_b32 v{vWs}, 3, v{vL}""")
    for r in range(16): a(f"v_mov_b32 v{ACC+r}, 0")
    a(f"s_cmp_ge_u32 s{sRole}, 6\ns_cbranch_scc1 k1_kv")

    def chunk_loop(rdA, rdB, nper, mfma, adjust, extra=None, dma5=None, tag="c"):
        for ch in range(6):
            if tag: a.vm_wait(f"c{ch}")
            a("s_barrier")
            if ch == 1 and dma5: dma5()
            if ch in (2, 4): adjust(61440)
            if ch == 5: adjust(-122880)
            off = (ch % 5 % 2) * 30720
            ahead = 15 // nper
            issued = 0
            for k in range(6):
                while issued < 6 and issued < k + ahead and (issued - k + 1) * nper <= 15:
                    rdA(issued, FR + 8*issued, off); rdB(issued, FR + 8*issued + 4, off); issued += 1
                a(f"s_waitcnt lgkmcnt({(issued - k - 1) * nper})")
                mfma(FR + 8*k, FR + 8*k + 4)
                if extra: extra(ch, k, FR + 8*k, FR + 8*k + 4)
    def rd_x(v0, v1, slot=0):
        return lambda k, reg, off: a(f"ds_read_b128 v[{reg}:{reg+3}], v{v1 if k & 1 else v0} offset:{off + (slot + (k >> 1)) * 1024}")
    def rd_tr(v, slot=0):
        def f(k, reg, off):
            a(f"ds_read_b64_tr_b16 v[{reg}:{reg+1}], v{v} offset:{off + (slot + k) * 1024}")
            a(f"ds_read_b64_tr_b16 v[{reg+2}:{reg+3}], v{v} offset:{off + (slot + k) * 1024 + 256}")
        return f
    def adj(*vs):
        def f(d):
            for v in vs: a(f"v_add_u32 v{v}, {d & 0xffffffff}, v{v}")
        return f
    mf = lambda A, B: a(f"v_mfma_f32_32x32x16_bf16 v[{ACC}:{ACC+15}], v[{A}:{A+3}], v[{B}:{B+3}], v[{ACC}:{ACC+15}]")

    vm0 = list(a.vm)
    a(f"""v_lshl_add_u32 v{vTr}, v{vWs}, 3, v{vTr}
    v_lshlrev_b32 v{vWs}, 4, v{vWs}
    s_movk_i32 s{sA}, 1152
    v_mad_u32_u24 v{vWs}, v{vt1}, s{sA}, v{vWs}""")
    def xoff(dst, slot):
        a(f"""s_mul_i32 s{sE}, s{slot}, 86
        s_lshr_b32 s{sE}, s{sE}, 8
        s_mul_i32 s{sF}, s{sE}, 3
        s_sub_u32 s{slot}, s{slot}, s{sF}
        s_lshl_b32 s{slot}, s{slot}, 6
        s_lshr_b32 s{sF}, s{sE}, 1
        s_mul_i32 s{sF}, s{sF}, 36864
        s_add_u32 s{slot}, s{slot}, s{sF}
        s_and_b32 s{sE}, s{sE}, 1
        s_mul_i32 s{sE}, s{sE}, 1179648
        s_add_u32 s{slot}, s{slot}, s{sE}
        s_add_u32 s{dst}, s{slot}, s{sD}""")
    a(f"s_mul_i32 s{sD}, s{sT1}, 1152\ns_lshl_b32 s{sA}, s{sWave}, 1\ns_add_u32 s{sB}, s{sA}, 1")
    xoff(sA, sA); xoff(sB, sB)
    a(f"""s_and_b32 s{sC}, s{sWave}, 1
    s_mul_i32 s{sC}, s{sC}, {48*1152}
    s_lshr_b32 s{sE}, s{sWave}, 1
    s_mul_i32 s{sF}, s{sRole}, 3
    s_add_u32 s{sE}, s{sE}, s{sF}
    s_lshl_b32 s{sE}, s{sE}, 6
    s_add_u32 s{sC}, s{sC}, s{sE}
    s_lshl_b32 s{sM}, s{sWave}, 11
    s_lshl_b32 s{sD}, s{sWave}, 10
    s_add_u32 s{sD}, s{sD}, 12288
    s_waitcnt lgkmcnt(0)""")
    srd(a, sX, 16, 2048*1152); srd(a, sW, 28, 576*1152)
    def dma_q():
        a(f"""s_mov_b32 m0, s{sM}
        s_nop 0
        buffer_load_dwordx4 v{vXs}, s[{sX}:{sX+3}], s{sA} offen lds
        s_add_u32 m0, m0, 1024
        s_add_u32 s{sA}, s{sA}, 192
        buffer_load_dwordx4 v{vXs}, s[{sX}:{sX+3}], s{sB} offen lds
        s_add_u32 m0, s{sM}, s{sD}
        s_add_u32 s{sB}, s{sB}, 192
        buffer_load_dwordx4 v{vWs}, s[{sW}:{sW+3}], s{sC} offen lds
        s_add_u32 m0, m0, 1024
        s_add_u32 s{sE}, s{sC}, 18432
        buffer_load_dwordx4 v{vWs}, s[{sW}:{sW+3}], s{sE} offen lds
        s_add_u32 m0, m0, 1024
        s_add_u32 s{sE}, s{sE}, 18432
        buffer_load_dwordx4 v{vWs}, s[{sW}:{sW+3}], s{sE} offen lds
        s_add_u32 s{sC}, s{sC}, 110592""")
    a.label("k1_q_dma")
    dma_q()
    a(f"s_add_u32 s{sM}, s{sM}, 30720\ns_cmp_lt_u32 s{sM}, 153600\ns_cbranch_scc1 k1_q_dma")
    for ch in range(5): a.vm_note(f"c{ch}", 5)
    a(f"s_sub_u32 s{sM}, s{sM}, 153600")
    sPhi, sGrp, sKs = 70, 71, 72
    vDF = 80
    srd(a, sWS, 40, WS_SIZE)
    a(f"""s_lshl_b32 s{sPhi}, s{sRole}, 5
    s_add_u32 s{sPhi}, s{sPhi}, s{sT1}
    s_mul_i32 s{sPhi}, s{sPhi}, 3
    s_lshr_b32 s{sE}, s{sWave}, 1
    s_add_u32 s{sPhi}, s{sPhi}, s{sE}
    s_mul_i32 s{sGrp}, s{sPhi}, 1821
    s_lshr_b32 s{sGrp}, s{sGrp}, 16
    s_mul_i32 s{sKs}, s{sGrp}, 36
    s_sub_u32 s{sKs}, s{sPhi}, s{sKs}
    s_bitcmp1_b32 s{sWave}, 0
    s_cselect_b32 s{sW2}, s24, s22
    s_cselect_b32 s{sW2+1}, s25, s23
    s_cselect_b64 s[74:75], -1, 0
    s_mov_b32 s{sW2+2}, {576*1152}
    s_mov_b32 s{sW2+3}, 0x20000
    v_and_b32 v{vt0}, 3, v{vL}
    v_bfe_u32 v{vt1}, v{vL}, 2, 1
    v_lshl_add_u32 v{vt0}, v{vt1}, 3, v{vt0}
    v_bfe_u32 v{vt1}, v{vL}, 3, 1
    v_lshl_add_u32 v{vt0}, v{vt1}, 2, v{vt0}
    s_lshl_b32 s{sE}, s{sGrp}, 4
    v_add_u32 v{vt0}, s{sE}, v{vt0}
    s_cmp_eq_u32 s{sGrp}, 0
    s_cselect_b32 s76, 0x10000, 0
    s_mov_b32 s77, s76
    v_mov_b32 v{vt1}, 288
    v_cndmask_b32 v{vt0}, v{vt0}, v{vt1}, s[76:77]
    v_mul_u32_u24 v{vt0}, 1152, v{vt0}
    v_lshl_add_u32 v{vt0}, v{vt2}, 4, v{vt0}
    s_or_b32 s76, s76, 0xffff
    s_mov_b32 s77, s76
    s_xor_b64 s[76:77], s[76:77], s[74:75]
    s_lshl_b32 s{sKs}, s{sKs}, 5
    s_mov_b64 exec, s[76:77]""")
    a.vmem(f"buffer_load_dwordx4 v[{vDF}:{vDF+3}], v{vt0}, s[{sW2}:{sW2+3}], s{sKs} offen", "df")
    a("s_mov_b64 exec, -1")
    a(f"""s_cmp_ge_u32 s{sWave}, 3
    s_cselect_b32 s{sE}, 3, 0
    s_cselect_b32 s{sF}, 6144, 0
    s_cselect_b32 s73, 32, 0
    s_sub_u32 s{sE}, s{sWave}, s{sE}
    v_add_u32 v{vR0}, s{sF}, v{vR0}
    v_xor_b32 v{vR1}, 32, v{vR0}
    s_mul_i32 s{sF}, s{sE}, 6144
    s_add_u32 s{sF}, s{sF}, 12288
    v_add_u32 v{vTr}, s{sF}, v{vTr}
    s_mul_i32 s{sF}, s{sRole}, 3
    s_add_u32 s78, s{sF}, s{sE}
    s_add_u32 s73, s73, s{sT1}""")
    def d5():
        dma_q(); a.vm_note("c5", 5)
    chunk_loop(rd_tr(vTr), rd_x(vR0, vR1), 3, mf, adj(vR0, vR1, vTr), dma5=d5)
    a(f"""s_lshl_b32 s{sPhi}, s{sPhi}, 10
    s_add_u32 s{sPhi}, s{sPhi}, {DF}
    v_lshlrev_b32 v{vt0}, 4, v{vL}
    s_mov_b64 exec, s[76:77]
    buffer_store_dwordx4 v[{vDF}:{vDF+3}], v{vt0}, s[{sWS}:{sWS+3}], s{sPhi} offen
    s_mov_b64 exec, -1
    v_and_b32 v{vt0}, 31, v{vL}
    v_lshlrev_b32 v{vt0}, 2, v{vt0}
    v_lshl_add_u32 v{vt0}, v{vt2}, 8, v{vt0}
    s_mul_i32 s73, s73, 36864
    s_lshl_b32 s78, s78, 11
    s_add_u32 s73, s73, s78
    s_mov_b32 s{sE}, {f2u(CQ)}
    s_nop 0""")
    for r in range(16): a(f"v_mul_f32 v{ACC+r}, s{sE}, v{ACC+r}")
    for k in range(8):
        a(f"v_cvt_pk_bf16_f32 v{FR+k}, v{ACC+2*k}, v{ACC+2*k+1}")
        a(f"buffer_store_dword v{FR+k}, v{vt0}, s[{sWS}:{sWS+3}], s73 offen offset:{(4*(k>>1)+(k&1))*128}")
    a("s_endpgm")

    a.label("k1_kv")
    sRb = 73
    a(f"""s_sub_u32 s{sRb}, s{sRole}, 6
    s_lshl_b32 s{sRb}, s{sRb}, 5
    s_add_u32 s{sRb}, s{sRb}, s{sT1}
    v_xor_b32 v{vR1}, 32, v{vR0}
    s_cmp_eq_u32 s{sWave}, 5
    s_cbranch_scc1 k1_end
    s_cmp_ge_u32 s{sWave}, 3
    s_cbranch_scc1 k1_job
    s_cmp_eq_u32 s{sWave}, 2
    s_cbranch_scc1 k1_gate""")
    def dma6(vsrc, srdA, srdB, step_in, step_ch, lab):
        def body():
            a(f"s_mov_b32 m0, s{sM}")
            a(f"s_mov_b32 s{sE}, s{sA}")
            for i in range(6):
                r = srdA if i < 3 else srdB
                a(f"buffer_load_dwordx4 v{vsrc}, s[{r}:{r+3}], s{sE} offen lds")
                if i < 5:
                    a("s_add_u32 m0, m0, 1024")
                    a(f"s_mov_b32 s{sE}, s{sB}" if i == 2 else f"s_add_u32 s{sE}, s{sE}, {step_in}")
            a(f"s_add_u32 s{sA}, s{sA}, {step_ch}\ns_add_u32 s{sB}, s{sB}, {step_ch}")
        a.label(lab)
        body()
        a(f"s_add_u32 s{sM}, s{sM}, 30720\ns_cmp_lt_u32 s{sM}, 153600\ns_cbranch_scc1 {lab}")
        for ch in range(5): a.vm_note(f"c{ch}", 6)
        a(f"s_sub_u32 s{sM}, s{sM}, 153600")
        def d5():
            body(); a.vm_note("c5", 6)
        return d5
    a.vm = list(vm0)
    a(f"""v_mul_u32_u24 v{vt0}, 36, v{vt1}
    v_lshl_add_u32 v{vt0}, v{vWs}, 4, v{vt0}
    v_and_b32 v{vt1}, 1, v{vL}
    v_bfe_u32 v{vB0}, v{vL}, 1, 1
    v_lshl_or_b32 v{vt1}, v{vt1}, 1, v{vB0}
    v_cmp_eq_u32 vcc, 0, v{vt3}
    s_mul_i32 s{sM}, s{sWave}, 6144
    s_add_u32 s{sM}, s{sM}, 6144
    v_cndmask_b32 v{vt1}, v{vWs}, v{vt1}, vcc
    v_lshl_add_u32 v{vTr}, v{vt1}, 3, v{vTr}
    v_mov_b32 v{vWs}, v{vt0}
    v_add_u32 v{vTr}, s{sM}, v{vTr}
    s_mov_b32 s{sA}, 0
    s_mov_b32 s{sB}, {48*36}
    s_cmp_eq_u32 s{sWave}, 0
    s_waitcnt lgkmcnt(0)
    s_cselect_b32 s{sW}, s30, s32
    s_cselect_b32 s{sW+1}, s31, s33
    s_mov_b32 s{sW+2}, {576*36}
    s_mov_b32 s{sW+3}, 0x20000""")
    d5 = dma6(vWs, sW, sW, 16*36, 96*36, "k1_kv_dma")
    srd(a, sWS, 40, WS_SIZE)
    a(f"s_mul_i32 s{sF}, s{sRb}, {TILE}\ns_add_u32 s{sF}, s{sF}, {KV}")
    a(f"s_cmp_eq_u32 s{sWave}, 1\ns_cbranch_scc1 k1_v")
    vmk = list(a.vm)
    chunk_loop(rd_tr(vTr), rd_x(vR0, vR1), 3, mf, adj(vR0, vR1, vTr), dma5=d5)
    a(f"""v_lshlrev_b32 v{vt0}, 4, v{vL}
    v_lshlrev_b32 v{vt1}, 2, v{vL}
    s_nop 9""")
    for k in range(5): a(f"v_cvt_pk_bf16_f32 v{FR+k}, v{ACC+2*k}, v{ACC+2*k+1}")
    a(f"buffer_store_dwordx4 v[{FR}:{FR+3}], v{vt0}, s[{sWS}:{sWS+3}], s{sF} offen")
    a(f"v_mul_f32 v{vt3}, v{ACC}, v{ACC}")
    for r in range(1, 8): a(f"v_fmac_f32 v{vt3}, v{ACC+r}, v{ACC+r}")
    a(f"""s_mov_b32 exec_hi, 0
    buffer_store_dword v{FR+4}, v{vt1}, s[{sWS}:{sWS+3}], s{sF} offen offset:1024
    v_fmac_f32 v{vt3}, v{ACC+8}, v{ACC+8}
    v_fmac_f32 v{vt3}, v{ACC+9}, v{ACC+9}
    s_mov_b64 exec, -1
    v_mov_b32 v{vt0}, v{vt3}
    s_nop 1
    v_permlane32_swap_b32 v{vt0}, v{vt3}
    v_add_f32 v{vt3}, v{vt0}, v{vt3}""")
    wave_max(a, vt3, sE)
    a(f"""v_mov_b32 v{vt3}, s{sE}
    v_mov_b32 v{vt0}, 0
    s_lshl_b32 s{sF}, s{sRb}, 2
    s_add_u32 s{sF}, s{sF}, {KM}
    s_mov_b64 exec, 1
    buffer_store_dword v{vt3}, v{vt0}, s[{sWS}:{sWS+3}], s{sF} offen
    s_endpgm""")
    a.label("k1_v")
    a.vm = list(vmk)
    chunk_loop(rd_x(vR0, vR1), rd_tr(vTr), 3, mf, adj(vR0, vR1, vTr), dma5=d5)
    a(f"""v_and_b32 v{vt0}, 31, v{vL}
    v_mul_u32_u24 v{vt1}, 19, v{vt2}
    v_add_u32 v{vt1}, v{vt1}, v{vt0}
    v_cmp_eq_u32 vcc, 19, v{vL}
    v_mov_b32 v{vt3}, 38
    v_cmp_eq_u32 s[74:75], 18, v{vt0}
    v_cndmask_b32 v{vt1}, v{vt1}, v{vt3}, vcc
    v_lshlrev_b32 v{vt1}, 4, v{vt1}
    v_mov_b32 v{vt3}, 0x3f803f80
    s_nop 2""")
    for k in range(8): a(f"v_cvt_pk_bf16_f32 v{FR+k}, v{ACC+2*k}, v{ACC+2*k+1}")
    for k in range(8):
        a(f"v_cndmask_b32 v{FR+k}, v{FR+k}, v{vt3}, s[74:75]")
        a(f"v_cndmask_b32 v{FR+k}, v{FR+k}, 0, vcc")
    a(f"""s_mov_b32 exec_lo, 0xfffff
    s_mov_b32 exec_hi, 0x7ffff
    buffer_store_dwordx4 v[{FR}:{FR+3}], v{vt1}, s[{sWS}:{sWS+3}], s{sF} offen offset:1152
    buffer_store_dwordx4 v[{FR+4}:{FR+7}], v{vt1}, s[{sWS}:{sWS+3}], s{sF} offen offset:{1152+624}
    s_endpgm""")
    a.label("k1_gate")
    a.vm = list(vm0)
    a(f"""s_mul_i32 s{sA}, s{sRb}, 1152
    s_add_u32 s{sB}, s{sA}, 1179648
    s_mov_b32 s{sM}, 0
    v_lshlrev_b32 v{vt0}, 4, v{vL}
    v_lshlrev_b32 v{vB0}, 4, v{vt2}
    v_add_u32 v{vB0}, 153600, v{vB0}
    s_waitcnt lgkmcnt(0)""")
    srd(a, sX, 16, 2048*1152); srd(a, sW2, 36, 1152)
    a(f"s_mov_b32 m0, 153600\ns_nop 0")
    a.vmem(f"buffer_load_dwordx4 v{vt0}, s[{sW2}:{sW2+3}], 0 offen lds", "g")
    a.vmem(f"buffer_load_dwordx4 v{vt0}, s[{sW2}:{sW2+3}], 0 offen offset:1024 lds", "g")
    d5 = dma6(vXs, sX, sX, 64, 192, "k1_x_dma")
    srd(a, sWS, 40, WS_SIZE)
    a(f"s_mul_i32 s{sF}, s{sRb}, 36864\ns_add_u32 s{sF}, s{sF}, {XF}")
    chn = [0]
    def rd_gate(k, reg, off):
        a(f"ds_read_b128 v[{reg}:{reg+3}], v{vB0} offset:{32*chn[0]}"); chn[0] += 1
    def xf_store(ch, k, A, B):
        a.vmem(f"buffer_store_dwordx4 v[{B}:{B+3}], v{vt0}, s[{sWS}:{sWS+3}], s{sF} offen offset:{(k&3)*1024}", "xf")
        if k in (3, 5): a(f"s_add_u32 s{sF}, s{sF}, {4096 if k == 3 else 2048}")
    chunk_loop(rd_gate, rd_x(vR0, vR1), 2, mf, adj(vR0, vR1), extra=xf_store, dma5=d5)
    a(f"""s_lshl_b32 s{sF}, s{sRb}, 7
    s_add_u32 s{sF}, s{sF}, {GG}
    v_lshlrev_b32 v{vt1}, 2, v{vL}
    s_nop 7
    v_mul_f32 v{vt3}, {f2u(-math.log2(math.e))}, v{ACC}
    v_exp_f32 v{vt3}, v{vt3}
    s_nop 0
    v_add_f32 v{vt3}, 1.0, v{vt3}
    v_rcp_f32 v{vt3}, v{vt3}
    s_mov_b32 exec_hi, 0
    buffer_store_dword v{vt3}, v{vt1}, s[{sWS}:{sWS+3}], s{sF} offen
    s_endpgm""")
    a.label("k1_job")
    a.vm = list(vm0)
    sGrp = 71
    a(f"""v_and_b32 v{vB0}, 3, v{vt1}
    v_bfe_u32 v{vB1}, v{vt1}, 2, 1
    v_lshl_add_u32 v{vB0}, v{vB1}, 3, v{vB0}
    v_bfe_u32 v{vB1}, v{vt1}, 3, 1
    v_lshl_add_u32 v{vB0}, v{vB1}, 2, v{vB0}
    s_movk_i32 s{sA}, 1152
    v_mad_u32_u24 v{vWs}, v{vB0}, s{sA}, v{vt0}
    s_add_u32 s{sGrp}, s{sWave}, 13
    s_mul_i32 s{sA}, s{sGrp}, {16*1152}
    s_mov_b32 s{sB}, s{sA}
    s_mul_i32 s{sM}, s{sWave}, 6144
    v_add_u32 v{vB0}, s{sM}, v{vR0}
    v_add_u32 v{vB1}, s{sM}, v{vR1}
    s_waitcnt lgkmcnt(0)""")
    srd(a, sW, 22, 576*1152); srd(a, sW2, 24, 576*1152)
    d5 = dma6(vWs, sW, sW2, 64, 192, "k1_d_dma")
    srd(a, sWS, 40, WS_SIZE)
    R = 80
    load_rf(a, R, vL, vt0, "k1_rf")
    chunk_loop(rd_x(vR0, vR1), rd_x(vB0, vB1), 2, mf, adj(vR0, vR1, vB0, vB1), dma5=d5)
    a("s_nop 11")
    fnet_tail(a, ACC, FR, FR+16, R, FR+32, vL, sWS, sRb, sGrp, 76, None)
    a.label("k1_end")
    a("s_endpgm")
    a.label("k1_code_end")
    return a


K2_LDS = 163840
FLG = 159744
OFFS = 96.0
PRIO = {0: 2, 32: 1, 60: 0}
def gen_k2(fused=False):
    a = Asm()
    sWS = 8
    sWave, sT1, sJ, sA, sB, sC, sD, sE = 20, 21, 22, 23, 24, 25, 26, 27
    sHi = 28
    vL, vt0, vt1, vt2, vt3 = 1, 2, 3, 14, 15
    a("s_cmp_ge_u32 s2, 256\ns_cbranch_scc1 k2_end")
    a("s_load_dwordx2 s[16:17], s[0:1], 104")
    code_prefetch(a, vt0, 111, "k2_code_end", "k2_pf")
    a(f"""v_lshrrev_b32 v{vt0}, 6, v0
    v_and_b32 v{vL}, 63, v0
    v_readfirstlane_b32 s{sWave}, v{vt0}
    s_bfe_u32 s{sA}, s2, 0x20003
    s_and_b32 s{sT1}, s2, 7
    s_lshl_b32 s{sA}, s{sA}, 3
    s_add_u32 s{sT1}, s{sT1}, s{sA}
    s_lshr_b32 s{sJ}, s2, 5
    s_cmp_ge_u32 s{sWave}, 8
    s_cbranch_scc1 k2_helper""")
    vm0 = list(a.vm)
    Q1, Q2, vG, aK, ak, aV = 4, 8, 10, 11, 12, 13
    O, S, P, K1, K2, V = 16, [32, 48], [64, 72], [80, 84], [88, 90], [92, 100]
    aF = 108
    sRb, sHead = 30, 31
    a(f"""s_lshr_b32 s{sA}, s{sWave}, 2
    s_lshl_b32 s{sA}, s{sA}, 5
    s_add_u32 s{sRb}, s{sT1}, s{sA}
    s_and_b32 s{sA}, s{sWave}, 3
    s_lshl_b32 s{sHead}, s{sJ}, 2
    s_add_u32 s{sHead}, s{sHead}, s{sA}
    s_mul_i32 s{sA}, s{sRb}, 36864
    s_mul_i32 s{sB}, s{sHead}, 1152
    s_add_u32 s{sA}, s{sA}, s{sB}
    s_lshl_b32 s{sB}, s{sRb}, 7
    s_add_u32 s{sB}, s{sB}, {GG}
    s_mov_b32 s{sC}, {KM}
    v_and_b32 v{vt2}, 31, v{vL}
    v_lshrrev_b32 v{vt3}, 5, v{vL}
    v_lshlrev_b32 v{ak}, 2, v{vt2}
    v_lshl_add_u32 v{vt0}, v{vt3}, 9, v{ak}
    v_lshlrev_b32 v{aF}, 2, v{vL}
    s_waitcnt lgkmcnt(0)""")
    srd(a, sWS, 16, WS_SIZE)
    for k in range(4): a.vmem(f"buffer_load_dword v{Q1+k}, v{vt0}, s[{sWS}:{sWS+3}], s{sA} offen offset:{128*k}", "q")
    a.vmem(f"buffer_load_dword v{Q2}, v{ak}, s[{sWS}:{sWS+3}], s{sA} offen offset:1024", "q")
    a.vmem(f"buffer_load_dword v{K2[0]+1}, v{aF}, s[{sWS}:{sWS+3}], s{sC} offen", "q")
    a.vmem(f"buffer_load_dword v{vG}, v{ak}, s[{sWS}:{sWS+3}], s{sB} offen", "g")
    a(f"""v_add_u32 v{vt0}, {FLG}, v{aF}
    v_mov_b32 v{O}, 0
    ds_write_b32 v{vt0}, v{O}
    v_and_b32 v{aF}, 12, v{aF}
    v_add_u32 v{aF}, {FLG}, v{aF}
    v_lshlrev_b32 v{aK}, 4, v{vL}
    v_add_u32 v{ak}, 1024, v{ak}
    v_cmp_eq_u32 vcc, 28, v{vt2}
    v_mul_u32_u24 v{vt0}, 19, v{vt3}
    s_mov_b32 s{sHi}, 0
    v_cndmask_b32 v{aV}, v{vt2}, 18, vcc
    v_cmp_gt_u32 vcc, 19, v{aV}
    v_add_u32 v{aV}, v{aV}, v{vt0}
    s_mov_b32 s{sHi+1}, -1
    v_cndmask_b32 v{aV}, 38, v{aV}, vcc
    v_lshlrev_b32 v{aV}, 4, v{aV}
    v_add_u32 v{aV}, 1152, v{aV}""")
    for r in range(1, 16): a(f"v_mov_b32 v{O+r}, 0")
    a.vm_wait("q")
    a(f"""v_cndmask_b32 v{Q2}, v{Q2}, 0, s[{sHi}:{sHi+1}]
    v_dot2_f32_bf16 v{vt0}, v{Q1}, v{Q1}, 0
    v_dot2_f32_bf16 v{vt1}, v{Q1+1}, v{Q1+1}, 0
    v_dot2_f32_bf16 v{vt2}, v{Q1+2}, v{Q1+2}, 0
    v_dot2_f32_bf16 v{vt3}, v{Q1+3}, v{Q1+3}, 0
    v_dot2_f32_bf16 v{S[1]}, v{Q2}, v{Q2}, 0""")
    wave_max(a, K2[0]+1, sA)
    a(f"""v_add_f32 v{vt0}, v{vt0}, v{vt1}
    v_add_f32 v{vt2}, v{vt2}, v{vt3}
    v_sqrt_f32 v{vt3}, s{sA}
    v_add_f32 v{vt0}, v{vt0}, v{S[1]}
    v_add_f32 v{vt0}, v{vt0}, v{vt2}
    v_mov_b32 v{vt1}, v{vt0}
    v_mul_f32 v{vt3}, {f2u(-1.0079)}, v{vt3}
    v_mov_b32 v{vt2}, {f2u(OFFS)}
    v_permlane32_swap_b32 v{vt0}, v{vt1}
    v_cvt_pk_bf16_f32 v{K2[0]+1}, v{vt3}, v{vt2}
    v_add_f32 v{vt0}, v{vt0}, v{vt1}
    v_sqrt_f32 v{vt0}, v{vt0}
    v_mov_b32 v{K2[1]+1}, v{K2[0]+1}
    v_mul_f32 v{vt0}, {f2u(1.0079)}, v{vt0}
    v_cvt_pk_bf16_f32 v{Q2+1}, v{vt0}, 1.0
    v_cndmask_b32 v{Q2+1}, v{Q2+1}, 0, s[{sHi}:{sHi+1}]
    s_waitcnt lgkmcnt(0)
    s_barrier
    s_setprio {PRIO[0]}""")
    seg = [0]
    def off(j, extra=0):
        o = (j - seg[0]) * TILE + extra
        assert 0 <= o < 65536
        return o
    rdK = lambda j: f"ds_read_b128 v[{K1[j&1]}:{K1[j&1]+3}], v{aK} offset:{off(j)}"
    rdk = lambda j: f"ds_read_b32 v{K2[j&1]}, v{ak} offset:{off(j)}"
    rdV = lambda j, u: f"ds_read_b128 v[{V[j&1]+4*u}:{V[j&1]+4*u+3}], v{aV} offset:{off(j, 624*u)}"
    def M1(j): return f"v_mfma_f32_32x32x16_bf16 v[{S[j&1]}:{S[j&1]+15}], v[{K1[j&1]}:{K1[j&1]+3}], v[{Q1}:{Q1+3}], 0"
    def M2(j): return f"v_mfma_f32_32x32x8_bf16 v[{S[j&1]}:{S[j&1]+15}], v[{K2[j&1]}:{K2[j&1]+1}], v[{Q2}:{Q2+1}], v[{S[j&1]}:{S[j&1]+15}]"
    def M3(j, u): return f"v_mfma_f32_32x32x16_bf16 v[{O}:{O+15}], v[{V[j&1]+4*u}:{V[j&1]+4*u+3}], v[{P[j&1]+4*u}:{P[j&1]+4*u+3}], v[{O}:{O+15}]"
    a(rdK(0)); a(rdk(0)); a(rdK(1)); a(rdk(1))
    a("s_waitcnt lgkmcnt(2)")
    a(M1(0)); a(M2(0))
    a("s_waitcnt lgkmcnt(0)\ns_nop 8")
    FCHK = {3: 1, 9: 2, 23: 3}
    for j in range(64):
        if j in PRIO and j: a(f"s_setprio {PRIO[j]}")
        if j in FCHK:
            a.label(f"k2_w{j}")
            a(f"ds_read_b32 v{vt0}, v{aF}\ns_waitcnt lgkmcnt(0)\nv_cmp_gt_u32 vcc, {FCHK[j]}, v{vt0}\ns_cbranch_vccnz k2_w{j}")
        if j in (24, 48):
            for v in (aK, ak, aV): a(f"v_add_u32 v{v}, {24*TILE}, v{v}")
            seg[0] += 24
        s, p = S[j & 1], P[j & 1]
        e = lambda i: f"v_exp_f32 v{s+i}, v{s+i}"
        c = lambda i: f"v_cvt_pk_bf16_f32 v{p+i}, v{s+2*i}, v{s+2*i+1}"
        nx, pv, ld = j + 1 < 64, j > 0, j + 2 < 64
        L = []
        if nx: L.append(M1(j+1))
        if ld: L.append(rdK(j+2))
        L += [e(0), e(1), e(2), e(3), c(0)]
        if nx: L.append(M2(j+1))
        if ld: L.append(rdk(j+2))
        L += [e(4), e(5), c(1), e(6), e(7), c(2)]
        if pv: L.append(M3(j-1, 0))
        L += [rdV(j, 0), rdV(j, 1)]
        L += [e(8), e(9), c(3), e(10), e(11), c(4)]
        if pv: L.append(M3(j-1, 1))
        L += [e(12), e(13), c(5), e(14), e(15), c(6), c(7), "s_waitcnt lgkmcnt(0)"]
        for x in L: a(x)
    a("s_nop 0"); a(M3(63, 0)); a(M3(63, 1))
    sO = 32
    a(f"""s_lshl_b32 s{sA}, s{sT1}, 2
    s_lshr_b32 s{sB}, s{sWave}, 2
    s_lshl_b32 s{sB}, s{sB}, 1
    s_add_u32 s{sA}, s{sA}, s{sB}
    s_mul_i32 s{sA}, s{sA}, 18432
    s_add_u32 s{sA}, s{sA}, {OF}
    s_lshr_b32 s{sB}, s{sHead}, 1
    s_lshl_b32 s{sB}, s{sB}, 10
    s_and_b32 s{sC}, s{sHead}, 1
    s_lshl_b32 s{sC}, s{sC}, 9
    s_add_u32 s{sB}, s{sB}, s{sC}
    s_add_u32 s{sO}, s{sA}, s{sB}
    s_lshr_b32 s{sB}, s{sHead}, 2
    s_lshl_b32 s{sB}, s{sB}, 8
    s_and_b32 s{sC}, s{sHead}, 3
    s_lshl_b32 s{sC}, s{sC}, 2
    s_add_u32 s{sB}, s{sB}, s{sC}
    s_add_u32 s{sB}, s{sB}, 16384
    s_add_u32 s{sO+1}, s{sA}, s{sB}""")
    a.vm_wait("g")
    vl = S[0]
    a(f"v_cndmask_b32 v{vl}, v{O+10}, v{O+12}, s[{sHi}:{sHi+1}]")
    a(f"v_add_f32 v{vt0}, |v{O}|, |v{O+1}|")
    for r in range(2, 10): a(f"v_add_f32 v{vt0}, |v{O+r}|, v{vt0}")
    a(f"""v_add_f32 v{vt0}, v{vl}, v{vt0}
    v_cmp_le_f32 vcc, {f2u(2.0**-80)}, v{vl}
    v_mov_b32 v{vt1}, 0x7f800000
    v_cmp_lt_f32 s[{sA+1}:{sA+2}], v{vt0}, v{vt1}
    s_nop 1
    s_and_b64 vcc, vcc, s[{sA+1}:{sA+2}]
    s_cmp_eq_u64 vcc, exec
    s_cbranch_scc0 k2_fallback""")
    a.label("k2_norm")
    a(f"""v_rcp_f32 v{vl}, v{vl}
    v_sub_f32 v{vG}, 1.0, v{vG}
    v_and_b32 v{vt0}, 15, v{vL}
    v_lshlrev_b32 v{vt0}, 4, v{vt0}
    v_mul_f32 v{vl}, v{vl}, v{vG}
    v_bfe_u32 v{vt1}, v{vL}, 4, 1
    v_mul_u32_u24 v{vt1}, 18432, v{vt1}
    v_add_u32 v{vt0}, v{vt0}, v{vt1}
    v_lshrrev_b32 v{vt1}, 5, v{vL}
    v_lshl_add_u32 v{vt1}, v{vt1}, 8, v{vt0}""")
    for r in range(10): a(f"v_mul_f32 v{O+r}, v{O+r}, v{vl}")
    for k in range(5): a(f"v_cvt_pk_bf16_f32 v{P[0]+k}, v{O+2*k}, v{O+2*k+1}")
    a(f"""buffer_store_dwordx4 v[{P[0]}:{P[0]+3}], v{vt1}, s[{sWS}:{sWS+3}], s{sO} offen
    s_mov_b32 exec_hi, 0
    buffer_store_dword v{P[0]+4}, v{vt0}, s[{sWS}:{sWS+3}], s{sO+1} offen
    s_endpgm""")
    a.label("k2_fallback")
    s0 = S[0]
    a(f"""v_lshlrev_b32 v{aK}, 4, v{vL}
    v_subrev_u32 v{ak}, {48*TILE}, v{ak}
    v_subrev_u32 v{aV}, {48*TILE}, v{aV}
    v_mov_b32 v{K2[0]+1}, 0
    v_mov_b32 v{vt0}, 0xff800000
    s_mov_b32 s{sA}, {KV}""")
    a.label("k2_fb1")
    a(f"""buffer_load_dwordx4 v[{K1[0]}:{K1[0]+3}], v{aK}, s[{sWS}:{sWS+3}], s{sA} offen
    buffer_load_dword v{K2[0]}, v{ak}, s[{sWS}:{sWS+3}], s{sA} offen
    s_waitcnt vmcnt(0)""")
    a(M1(0)); a(M2(0)); a("s_nop 11")
    for r in range(0, 16, 2): a(f"v_max3_f32 v{vt0}, v{s0+r}, v{s0+r+1}, v{vt0}")
    a(f"""s_add_u32 s{sA}, s{sA}, {TILE}
    s_cmp_lt_u32 s{sA}, {KV+64*TILE}
    s_cbranch_scc1 k2_fb1
    v_mov_b32 v{vt1}, v{vt0}
    s_nop 1
    v_permlane32_swap_b32 v{vt0}, v{vt1}
    v_max_f32 v{vt0}, v{vt0}, v{vt1}
    v_cvt_pk_bf16_f32 v{vt1}, v{vt0}, v{vt0}
    v_and_b32 v{vt1}, 0xffff0000, v{vt1}
    v_sub_f32 v{vt0}, v{vt0}, v{vt1}
    v_cvt_pk_bf16_f32 v{Q2+1}, v{vt1}, v{vt0}
    v_cndmask_b32 v{Q2+1}, v{Q2+1}, 0, s[{sHi}:{sHi+1}]
    v_mov_b32 v{K2[0]+1}, 0xbf80bf80
    s_mov_b32 s{sA}, {KV}""")
    for r in range(16): a(f"v_mov_b32 v{O+r}, 0")
    a.label("k2_fb2")
    a(f"""buffer_load_dwordx4 v[{K1[0]}:{K1[0]+3}], v{aK}, s[{sWS}:{sWS+3}], s{sA} offen
    buffer_load_dword v{K2[0]}, v{ak}, s[{sWS}:{sWS+3}], s{sA} offen
    buffer_load_dwordx4 v[{V[0]}:{V[0]+3}], v{aV}, s[{sWS}:{sWS+3}], s{sA} offen
    buffer_load_dwordx4 v[{V[0]+4}:{V[0]+7}], v{aV}, s[{sWS}:{sWS+3}], s{sA} offen offset:624
    s_waitcnt vmcnt(0)""")
    a(M1(0)); a(M2(0)); a("s_nop 11")
    for r in range(16): a(f"v_exp_f32 v{s0+r}, v{s0+r}")
    a("s_nop 0")
    for k in range(8): a(f"v_cvt_pk_bf16_f32 v{P[0]+k}, v{s0+2*k}, v{s0+2*k+1}")
    a("s_nop 1"); a(M3(0, 0)); a(M3(0, 1))
    a(f"""s_add_u32 s{sA}, s{sA}, {TILE}
    s_cmp_lt_u32 s{sA}, {KV+64*TILE}
    s_cbranch_scc1 k2_fb2
    s_nop 11
    v_cndmask_b32 v{vl}, v{O+10}, v{O+12}, s[{sHi}:{sHi+1}]
    s_branch k2_norm""")

    a.label("k2_helper")
    a.vm = list(vm0)
    sV, sS2, sGrp = 30, 31, 32
    a(f"""s_setprio 3
    s_sub_u32 s{sV}, s{sWave}, 8
    v_lshlrev_b32 v{vt0}, 4, v{vL}
    s_mul_i32 s{sA}, s{sV}, 3072
    s_mov_b32 m0, s{sA}
    s_add_u32 s{sA}, s{sA}, {KV}
    s_lshl_b32 s{sB}, s{sV}, 12
    s_add_u32 s{sB}, s{sB}, 12288
    s_waitcnt lgkmcnt(0)""")
    srd(a, sWS, 16, WS_SIZE)
    for k in range(3): a.vmem(f"buffer_load_dwordx4 v{vt0}, s[{sWS}:{sWS+3}], s{sA} offen offset:{1024*k} lds", "c0")
    a.label("k2_dma")
    a(f"s_mov_b32 m0, s{sB}\ns_add_u32 s{sA}, s{sB}, {KV}")
    for k in range(4): a(f"buffer_load_dwordx4 v{vt0}, s[{sWS}:{sWS+3}], s{sA} offen offset:{1024*k} lds")
    a(f"s_add_u32 s{sB}, s{sB}, 16384\ns_cmp_lt_u32 s{sB}, {FLG}\ns_cbranch_scc1 k2_dma")
    a.vm_note("c1", 4); a.vm_note("c2", 8); a.vm_note("c3", 24)
    a(f"s_lshl_b32 s{sA}, s{sV}, 2\ns_add_u32 s{sA}, s{sA}, {FLG}\nv_mov_b32 v{vt1}, s{sA}")
    a.vm_wait("c0")
    a("s_barrier")
    for k in (1, 2, 3):
        a(f"v_mov_b32 v{vt2}, {k}")
        a.vm_wait(f"c{k}")
        a(f"ds_write_b32 v{vt1}, v{vt2}")
    H, R, RING = 16, 32, 48
    load_rf(a, R, vL, vt0, "k2_rf")
    a(f"""s_lshr_b32 s{sS2}, s2, 2
    s_and_b32 s{sGrp}, s2, 3
    s_lshl_b32 s{sGrp}, s{sGrp}, 2
    s_add_u32 s{sGrp}, s{sGrp}, s{sV}
    s_mul_i32 s{sA}, s{sS2}, 36864
    s_add_u32 s{sA}, s{sA}, {XF}
    s_mul_i32 s{sB}, s{sGrp}, 36864
    s_add_u32 s{sB}, s{sB}, {DF}""")
    ND = 8
    def ld(ks):
        r = RING + 8 * (ks % ND)
        a.vmem(f"buffer_load_dwordx4 v[{r}:{r+3}], v{vt0}, s[{sWS}:{sWS+3}], s{sA} offen offset:{(ks&3)*1024}", f"j{ks}")
        a.vmem(f"buffer_load_dwordx4 v[{r+4}:{r+7}], v{vt0}, s[{sWS}:{sWS+3}], s{sB} offen offset:{(ks&3)*1024}", f"j{ks}")
        if ks & 3 == 3: a(f"s_add_u32 s{sA}, s{sA}, 4096\ns_add_u32 s{sB}, s{sB}, 4096")
    for ks in range(ND): ld(ks)
    for ks in range(36):
        r = RING + 8 * (ks % ND)
        a.vm_wait(f"j{ks}")
        a(f"v_mfma_f32_32x32x16_bf16 v[{H}:{H+15}], v[{r}:{r+3}], v[{r+4}:{r+7}], " + ("0" if ks == 0 else f"v[{H}:{H+15}]"))
        if ks + ND < 36: ld(ks + ND)
    a("s_nop 11")
    fnet_tail(a, H, RING, RING+16, R, RING+32, vL, sWS, sS2, sGrp, 34, "k2_nony")
    a.label("k2_end")
    a("s_endpgm")
    a.label("k2_code_end")
    return a

K3_LDS = 112640 + 4*2304
def gen_k3():
    a = Asm()
    sWS, sWo, sRe, sIm, sOut = 8, 12, 40, 44, 48
    sV, sT1, sJ, sA, sB, sC, sD, sE, sRb = 52, 53, 54, 55, 56, 57, 58, 59, 60
    vL, vt0, vt1, vt2, vt3, vGs, vWm, vWx, vG, vTr = 1, 2, 3, 4, 5, 6, 7, 8, 9, 10
    ACC, W2, OB, AR = 12, 32, 48, 120
    a("s_cmp_ge_u32 s2, 256\ns_cbranch_scc1 k3_end")
    a("s_load_dwordx4 s[16:19], s[0:1], 8\ns_load_dwordx2 s[20:21], s[0:1], 72\ns_load_dwordx2 s[22:23], s[0:1], 88\ns_load_dwordx2 s[24:25], s[0:1], 104")
    code_prefetch(a, vt0, 11, "k3_code_end", "k3_pf")
    a(f"""v_lshrrev_b32 v{vt0}, 6, v0
    v_and_b32 v{vL}, 63, v0
    v_readfirstlane_b32 s{sV}, v{vt0}
    s_bfe_u32 s{sA}, s2, 0x20003
    s_and_b32 s{sT1}, s2, 7
    s_lshl_b32 s{sA}, s{sA}, 3
    s_add_u32 s{sT1}, s{sT1}, s{sA}
    s_lshr_b32 s{sJ}, s2, 5""")
    a(f"""v_and_b32 v{vt0}, 24, v{vL}
    v_lshrrev_b32 v{vt1}, 5, v{vL}
    v_lshl_add_u32 v{vt0}, v{vt1}, 2, v{vt0}
    v_bfe_u32 v{vt1}, v{vL}, 1, 2
    v_add_u32 v{vt0}, v{vt0}, v{vt1}
    v_and_b32 v{vt1}, 1, v{vL}
    v_lshlrev_b32 v{vt1}, 4, v{vt1}
    s_movk_i32 s{sA}, {GP}
    v_mad_u32_u24 v{vGs}, v{vt0}, s{sA}, v{vt1}
    v_lshrrev_b32 v{vt2}, 4, v{vt0}
    v_lshl_add_u32 v{vt2}, v{vt2}, 1, v{vt0}
    s_movk_i32 s{sA}, 1152
    v_mad_u32_u24 v{vWm}, v{vt2}, s{sA}, v{vt1}
    v_lshrrev_b32 v{vt2}, 1, v{vt0}
    v_lshl_add_u32 v{vt2}, v{vt2}, 4, v{vt0}
    v_add_u32 v{vt2}, 16, v{vt2}
    v_mad_u32_u24 v{vWx}, v{vt2}, s{sA}, v{vt1}
    s_lshr_b32 s{sRb}, s{sV}, 1
    s_lshl_b32 s{sRb}, s{sRb}, 5
    s_add_u32 s{sRb}, s{sRb}, s{sT1}
    s_mul_i32 s{sE}, s{sJ}, 144
    s_waitcnt lgkmcnt(0)""")
    srd(a, sWS, 24, WS_SIZE); srd(a, sWo, 20, 576*1152)
    def dma5(v, r, soff):
        for mu in range(5):
            a(f"s_mov_b32 m0, s{sD}\ns_nop 0" if mu == 0 else "s_add_u32 m0, m0, 992\ns_nop 0")
            a.vmem(f"buffer_load_dwordx4 v{v}, s[{r}:{r+3}], s{soff} offen offset:{32*mu} lds", "a")
    a(f"""s_mul_i32 s{sA}, s{sT1}, {128*GP}
    s_mul_i32 s{sB}, s{sV}, {32*GP}
    s_add_u32 s{sA}, s{sA}, s{sB}
    s_add_u32 s{sA}, s{sA}, {GT}
    s_add_u32 s{sA}, s{sA}, s{sE}
    s_mul_i32 s{sD}, s{sV}, 5120""")
    dma5(vGs, sWS, sA)
    srd(a, sRe, 16, 2048*4096); srd(a, sIm, 18, 2048*4096)
    a(f"""v_and_b32 v{vt0}, 15, v{vL}
    s_and_b32 s{sA}, s{sV}, 1
    s_lshl_b32 s{sA}, s{sA}, 4
    v_add_u32 v{vt0}, s{sA}, v{vt0}
    v_lshlrev_b32 v{vt1}, 18, v{vt0}
    v_lshrrev_b32 v{vt2}, 4, v{vL}
    v_lshl_add_u32 v{vt1}, v{vt2}, 4, v{vt1}
    s_lshl_b32 s{sA}, s{sRb}, 12
    v_lshlrev_b32 v{vt0}, 2, v{vt0}
    s_lshl_b32 s{sB}, s{sRb}, 7
    s_add_u32 s{sB}, s{sB}, {GG}""")
    for k in range(4):
        r = sRe if k < 2 else sIm
        a.vmem(f"buffer_load_dwordx4 v[{W2+4*k}:{W2+4*k+3}], v{vt1}, s[{r}:{r+3}], s{sA} offen offset:{64*(k&1)}", "a")
    a.vmem(f"buffer_load_dword v{vG}, v{vt0}, s[{sWS}:{sWS+3}], s{sB} offen", "a")
    a(f"s_mul_i32 s{sA}, s{sV}, {36*1152}\ns_add_u32 s{sA}, s{sA}, s{sE}")
    for i in range(4):
        a(f"s_add_u32 s{sD}, s{sD}, 20480")
        dma5(vWm, sWo, sA)
        a(f"s_add_u32 s{sA}, s{sA}, {4*36*1152}")
    a(f"s_cmp_ge_u32 s{sV}, 2\ns_cbranch_scc1 k3_nox")
    a(f"s_mul_i32 s{sA}, s{sV}, {288*1152}\ns_add_u32 s{sA}, s{sA}, s{sE}\ns_add_u32 s{sD}, s{sD}, 20480")
    dma5(vWx, sWo, sA)
    a.label("k3_nox")
    a(f"""s_lshl_b32 s{sA}, s{sT1}, 2
    s_add_u32 s{sA}, s{sA}, s{sV}
    s_mul_i32 s{sA}, s{sA}, 18432
    s_add_u32 s{sA}, s{sA}, {OF}
    v_lshlrev_b32 v{vt0}, 4, v{vL}
    v_lshlrev_b32 v{vTr}, 3, v{vL}""")
    for ks in range(18):
        a(f"buffer_load_dwordx4 v[{OB+4*ks}:{OB+4*ks+3}], v{vt0}, s[{sWS}:{sWS+3}], s{sA} offen offset:{(ks&3)*1024}")
        if ks & 3 == 3: a(f"s_add_u32 s{sA}, s{sA}, 4096")
    srd(a, sOut, 22, 2048*1152)
    a("s_waitcnt vmcnt(0)\ns_barrier")
    NR = 7
    base = [0]
    def rd(f):
        if f - base[0] >= 64:
            a(f"v_add_u32 v{vTr}, 65536, v{vTr}"); base[0] += 64
        r = AR + 4 * (f % 8)
        a(f"ds_read_b64_tr_b16 v[{r}:{r+1}], v{vTr} offset:{(f-base[0])*1024}")
        a(f"ds_read_b64_tr_b16 v[{r+2}:{r+3}], v{vTr} offset:{(f-base[0])*1024+512}")
    for f in range(NR): rd(f)
    for f in range(110):
        ks, mu = divmod(f, 5)
        if f == 20:
            a("s_nop 3")
            for r in range(20): a(f"v_mul_f32 v{ACC+r}, v{ACC+r}, v{vG}")
        n = min(110, f + NR) - f - 1
        a(f"s_waitcnt lgkmcnt({2*n})")
        r = AR + 4 * (f % 8)
        B = W2 + 4*ks if ks < 4 else OB + 4*(ks-4)
        ac = ACC + 4*mu
        a(f"v_mfma_f32_16x16x32_bf16 v[{ac}:{ac+3}], v[{r}:{r+3}], v[{B}:{B+3}], " + ("0" if ks == 0 else f"v[{ac}:{ac+3}]"))
        if f + NR < 110: rd(f + NR)
    a(f"""s_mul_i32 s{sA}, s{sV}, 2304
    s_add_u32 s{sA}, s{sA}, 112640
    v_and_b32 v{vt1}, 15, v{vL}
    v_mul_u32_u24 v{vt1}, 144, v{vt1}
    v_lshrrev_b32 v{vt2}, 4, v{vL}
    v_lshl_add_u32 v{vt1}, v{vt2}, 3, v{vt1}
    v_add_u32 v{vt1}, s{sA}, v{vt1}
    v_add_u32 v{vt0}, s{sA}, v{vt0}""")
    for mu in range(5):
        ac = ACC + 4*mu
        a(f"v_cvt_pk_bf16_f32 v{W2+2*mu}, v{ac}, v{ac+1}\nv_cvt_pk_bf16_f32 v{W2+2*mu+1}, v{ac+2}, v{ac+3}")
        if mu == 4: a("s_mov_b32 exec_hi, 0")
        a(f"ds_write_b64 v{vt1}, v[{W2+2*mu}:{W2+2*mu+1}] offset:{32*mu}")
    a(f"""s_mov_b32 exec_hi, -1
    s_and_b32 s{sA}, s{sV}, 1
    s_mul_i32 s{sA}, s{sA}, {16*73728}
    s_mul_i32 s{sB}, s{sRb}, 1152
    s_add_u32 s{sA}, s{sA}, s{sB}
    s_add_u32 s{sA}, s{sA}, s{sE}
    s_mov_b32 s{sB}, {73728-144}
    s_waitcnt lgkmcnt(0)""")
    for it in range(3):
        a(f"ds_read_b128 v[{OB+4*it}:{OB+4*it+3}], v{vt0} offset:{1024*it}")
    for it in range(3):
        a(f"""v_add_u32 v{vt1}, {64*it}, v{vL}
        v_mul_u32_u24 v{vt2}, 7282, v{vt1}
        v_lshrrev_b32 v{vt2}, 16, v{vt2}
        v_lshlrev_b32 v{vt1}, 4, v{vt1}
        v_mad_u32_u24 v{vGs+it}, v{vt2}, s{sB}, v{vt1}""")
    for it in range(3):
        a(f"s_waitcnt lgkmcnt({2-it})")
        if it == 2: a("s_mov_b64 exec, 0xffff")
        a(f"buffer_store_dwordx4 v[{OB+4*it}:{OB+4*it+3}], v{vGs+it}, s[{sOut}:{sOut+3}], s{sA} offen")
    a.label("k3_end")
    a("s_endpgm")
    a.label("k3_code_end")
    return a

def wave_max(a, v, s):
    for d in ("row_shr:1", "row_shr:2", "row_shr:4", "row_shr:8"):
        a("s_nop 1")
        a(f"v_max_f32_dpp v{v}, v{v}, v{v} {d} row_mask:0xf bank_mask:0xf")
    a("s_nop 1")
    a(f"v_max_f32_dpp v{v}, v{v}, v{v} row_bcast:15 row_mask:0xa bank_mask:0xf")
    a("s_nop 1")
    a(f"v_max_f32_dpp v{v}, v{v}, v{v} row_bcast:31 row_mask:0xc bank_mask:0xf")
    a("s_nop 0")
    a(f"v_readlane_b32 s{s}, v{v}, 63")
    a("s_nop 1")

def kd(name, vgpr, sgpr=96):
    return f""".p2align 6
.amdhsa_kernel {name}
  .amdhsa_next_free_vgpr {vgpr}
  .amdhsa_next_free_sgpr {sgpr}
  .amdhsa_accum_offset {(vgpr+3)//4*4}
  .amdhsa_group_segment_fixed_size 0
  .amdhsa_kernarg_size 112
  .amdhsa_user_sgpr_count 2
  .amdhsa_user_sgpr_kernarg_segment_ptr 1
  .amdhsa_system_sgpr_workgroup_id_x 1
.end_amdhsa_kernel
"""

def build(kernels):
    out = []
    for lab, a, g, b, lds, v in kernels:
        out.append(f"; @launch kernel={lab} grid=({g},1,1) block=({b},1,1) lds={lds}")
    out.append('.amdgcn_target "amdgcn-amd-amdhsa--gfx950"\n.text')
    for lab, a, g, b, lds, v in kernels:
        for p in check(a.lines): print(f"[{lab}] {p}", file=sys.stderr)
        out.append(f".globl {lab}\n.p2align 8\n.type {lab},@function\n{lab}:")
        out.append(a.text())
    out.append(".p2align 8\n.type rf_table,@object\nrf_table:")
    w = rf_table()
    for i in range(0, len(w), 8): out.append(".long " + ",".join(f"0x{x:08x}" for x in w[i:i+8]))
    out.append(".size rf_table, 4096")
    out.append('.section .rodata,"a"')
    for lab, a, g, b, lds, v in kernels: out.append(kd(lab, v))
    return "\n".join(out) + "\n"

if __name__ == "__main__":
    ks = [("k1_kernel", gen_k1(), 256, 384, K1_LDS, 96), ("k2_kernel", gen_k2(), 256, 768, K2_LDS, 112), ("k3_kernel", gen_k3(), 256, 256, K3_LDS, 152)]
    open(sys.argv[1] if len(sys.argv) > 1 else "out.s", "w").write(build(ks))
```

```python
import math, struct, sys
from asmlib import Asm, check

NAME = "gated_mix__spectral_fnet__grouped_kv_mqa__prompt"
QN, XF, OF, GT, DF, KV, KM, GG, FL = 0x0, 0x240000, 0x480000, 0x6C0000, 0xB80000, 0xC10000, 0xC40000, 0xC40400, 0xC43000
WS_SIZE = 0xD50000
GP = 1216
TILE = 2400
CQ = math.log2(math.e) / math.sqrt(18.0)
def f2u(x): return struct.unpack("<I", struct.pack("<f", x))[0]
def bf16(x):
    u = f2u(x); return ((u + 0x7FFF + ((u >> 16) & 1)) >> 16) & 0xFFFF

def srd(a, d, ptr, size):
    a(f"s_mov_b32 s{d}, s{ptr}\ns_mov_b32 s{d+1}, s{ptr+1}\ns_mov_b32 s{d+2}, {size}\ns_mov_b32 s{d+3}, 0x20000")

STAMP = False
ST = 0xC44000
def stamp(a, slot):
    if not STAMP: return
    a(f"s_memrealtime s[{82+2*slot}:{83+2*slot}]")
    if slot == 0: a("s_memtime s[98:99]")
def stamp_end(a, k, sWS, sWave, slot=7):
    if not STAMP: return
    a("s_waitcnt vmcnt(0)")
    stamp(a, slot)
    a(f"""s_memtime s[100:101]
    s_waitcnt lgkmcnt(0)
    s_sub_u32 s100, s100, s98
    s_mov_b64 exec, 1
    s_lshl_b32 s3, s2, 4
    s_add_u32 s3, s3, s{sWave}
    s_lshl_b32 s3, s3, 6
    s_add_u32 s3, s3, {ST + k*0x40000}
    v_mov_b32 v0, 0""")
    for q in range(8): a(f"v_mov_b32 v{4+q}, s{82+2*q}")
    a(f"""v_mov_b32 v12, s100
    buffer_store_dwordx4 v[4:7], v0, s[{sWS}:{sWS+3}], s3 offen
    buffer_store_dwordx4 v[8:11], v0, s[{sWS}:{sWS+3}], s3 offen offset:16
    buffer_store_dword v12, v0, s[{sWS}:{sWS+3}], s3 offen offset:32""")

def code_prefetch(a, vtmp, vdst, end_label, here):
    a(f"s_getpc_b64 s[4:5]")
    a.label(here)
    a(f"v_lshlrev_b32 v{vtmp}, 7, v0")
    a(f"v_min_u32 v{vtmp}, {end_label}-{here}-4, v{vtmp}")
    a.vmem(f"global_load_dword v{vdst}, v{vtmp}, s[4:5]", "pf")

def fnet_tail(a, H, T1, T2, R, tmp, vL, sWS, sS2, sGrp, sT, special, sc=""):
    Hb = tmp
    for k in range(8): a(f"v_cvt_pk_bf16_f32 v{Hb+k}, v{H+2*k}, v{H+2*k+1}")
    vA, vB = tmp + 8, tmp + 9
    a(f"v_and_b32 v{vA}, 31, v{vL}")
    a(f"v_mul_u32_u24 v{vA}, {128*GP}, v{vA}")
    a(f"v_mfma_f32_32x32x16_bf16 v[{T1}:{T1+15}], v[{Hb}:{Hb+3}], v[{R}:{R+3}], 0")
    a(f"v_mfma_f32_32x32x16_bf16 v[{T2}:{T2+15}], v[{Hb}:{Hb+3}], v[{R+8}:{R+11}], 0")
    a(f"v_mfma_f32_32x32x16_bf16 v[{T1}:{T1+15}], v[{Hb+4}:{Hb+7}], v[{R+4}:{R+7}], v[{T1}:{T1+15}]")
    a(f"v_mfma_f32_32x32x16_bf16 v[{T2}:{T2+15}], v[{Hb+4}:{Hb+7}], v[{R+12}:{R+15}], v[{T2}:{T2+15}]")
    a(f"v_lshrrev_b32 v{vB}, 5, v{vL}")
    a(f"v_lshlrev_b32 v{vB}, 4, v{vB}")
    a(f"v_sub_u32 v{tmp+10}, v{vA}, v{vB}")
    a(f"v_add_u32 v{vA}, v{vA}, v{vB}")
    a(f"v_add_u32 v{vB}, 16, v{tmp+10}")
    a(f"s_mul_i32 s{sT}, s{sS2}, {GP}")
    a(f"s_add_u32 s{sT}, s{sT}, {GT}")
    a(f"s_lshl_b32 s{sT+1}, s{sGrp}, 5")
    a(f"s_sub_u32 s{sT+2}, s{sT}, s{sT+1}")
    a(f"s_add_u32 s{sT+2}, s{sT+2}, {2*(576-7)-16}")
    a(f"s_add_u32 s{sT+1}, s{sT}, s{sT+1}")
    a(f"s_add_u32 s{sT+3}, s{sT+1}, {64*GP}")
    a(f"s_add_u32 s{sT+4}, s{sT+2}, {64*GP}")
    a("s_nop 1")
    if special:
        lab = special
        a(f"s_cmp_lg_u32 s{sGrp}, 0")
        a(f"s_cbranch_scc1 {lab}")
        a(f"s_mov_b32 exec_hi, 0")
        a(f"v_cvt_pk_bf16_f32 v{tmp+11}, v{T1+8}, v{T2+8}")
        a(f"v_mov_b32 v{T1+8}, 0")
        a(f"v_mov_b32 v{T2+8}, 0")
        a(f"s_add_u32 s{sT+5}, s{sT}, {64*GP}")
        a.vmem(f"buffer_store_short v{tmp+11}, v{vA}, s[{sWS}:{sWS+3}], s{sT} offen offset:576 {sc}", "st")
        a.vmem(f"buffer_store_short_d16_hi v{tmp+11}, v{vA}, s[{sWS}:{sWS+3}], s{sT+5} offen offset:576 {sc}", "st")
        a(f"s_mov_b64 exec, -1")
        a.label(lab)
    D = H
    def outp(op, x, y, order, vaddr, soff, dst):
        for r in range(8): a(f"{op} v{D+r}, v{x+r}, v{y+r}")
        for k in range(4):
            i0, i1 = (2*k, 2*k+1) if order > 0 else (7-2*k, 6-2*k)
            a(f"v_cvt_pk_bf16_f32 v{dst+k}, v{D+i0}, v{D+i1}")
        a.vmem(f"buffer_store_dwordx4 v[{dst}:{dst+3}], v{vaddr}, s[{sWS}:{sWS+3}], s{soff} offen {sc}", "st")
    outp("v_add_f32", T1, T2+8, +1, vA, sT+1, D+8)
    outp("v_sub_f32", T2, T1+8, +1, vA, sT+3, D+12)
    outp("v_sub_f32", T1, T2+8, -1, vB, sT+2, Hb)
    outp("v_add_f32", T2, T1+8, -1, vB, sT+4, Hb+4)

def rf_table():
    w = []
    for fn in (math.cos, math.sin):
        for u in range(2):
            for l in range(64):
                t1, h = l & 31, l >> 5
                v = []
                for j in range(8):
                    r = 8*u + j
                    s1 = (r & 3) + 8*(r >> 2) + 4*h
                    v.append(bf16(fn(2*math.pi*((t1*s1) % 32)/32)))
                w += [v[0] | v[1] << 16, v[2] | v[3] << 16, v[4] | v[5] << 16, v[6] | v[7] << 16]
    return w

def load_rf(a, R, vL, vt, here):
    a(f"s_getpc_b64 s[4:5]")
    a.label(here)
    a(f"s_add_u32 s4, s4, rf_table-{here}")
    a(f"s_addc_u32 s5, s5, 0")
    a(f"v_lshlrev_b32 v{vt}, 4, v{vL}")
    for k in range(4):
        a.vmem(f"global_load_dwordx4 v[{R+4*k}:{R+4*k+3}], v{vt}, s[4:5] offset:{1024*k}", "rf")

K1_LDS = 155648
def gen_k1():
    a = Asm()
    sX, sW, sW2, sWS = 44, 48, 52, 56
    sWave, sT1, sRole, sM, sA, sB, sC, sD, sE, sF = 60, 61, 62, 63, 64, 65, 66, 67, 68, 69
    vL, vXs, vWs, vR0, vR1, vTr, vt0, vt1, vt2, vt3 = 1, 2, 3, 4, 5, 6, 7, 8, 9, 10
    vB0, vB1 = 11, 12
    ACC, FR = 16, 32
    a("s_cmp_ge_u32 s2, 256\ns_cbranch_scc1 k1_end")
    stamp(a, 0)
    a("s_load_dwordx16 s[16:31], s[0:1], 0\ns_load_dwordx8 s[32:39], s[0:1], 64\ns_load_dwordx2 s[40:41], s[0:1], 104")
    code_prefetch(a, vt0, 13, "k1_code_end", "k1_pf")
    a(f"""v_lshrrev_b32 v{vt0}, 6, v0
    v_and_b32 v{vL}, 63, v0
    v_readfirstlane_b32 s{sWave}, v{vt0}
    s_bfe_u32 s{sA}, s2, 0x20003
    s_and_b32 s{sT1}, s2, 7
    s_lshl_b32 s{sA}, s{sA}, 3
    s_add_u32 s{sT1}, s{sT1}, s{sA}
    s_lshr_b32 s{sRole}, s2, 5""")
    a(f"""v_lshrrev_b32 v{vt0}, 4, v{vL}
    v_xor_b32 v{vt0}, v{vt0}, v{vL}
    v_and_b32 v{vt0}, 3, v{vt0}
    v_lshlrev_b32 v{vt0}, 4, v{vt0}
    v_lshrrev_b32 v{vt1}, 2, v{vL}
    s_mov_b32 s{sA}, 73728
    v_mad_u32_u24 v{vXs}, v{vt1}, s{sA}, v{vt0}""")
    a(f"""v_lshrrev_b32 v{vt2}, 5, v{vL}
    v_xor_b32 v{vt3}, v{vt2}, v{vt1}
    v_and_b32 v{vt3}, 3, v{vt3}
    v_lshlrev_b32 v{vR0}, 4, v{vt3}
    v_and_b32 v{vt3}, 15, v{vL}
    v_lshl_add_u32 v{vR0}, v{vt3}, 6, v{vR0}
    v_bfe_u32 v{vt3}, v{vL}, 4, 1
    v_mul_u32_u24 v{vR1}, 3072, v{vt3}
    v_add_u32 v{vR0}, v{vR0}, v{vR1}""")
    a(f"""v_and_b32 v{vTr}, 3, v{vt1}
    v_lshl_add_u32 v{vTr}, v{vt2}, 3, v{vTr}
    v_lshlrev_b32 v{vTr}, 6, v{vTr}
    v_lshl_add_u32 v{vTr}, v{vt3}, 5, v{vTr}
    v_and_b32 v{vWs}, 3, v{vL}""")
    for r in range(16): a(f"v_mov_b32 v{ACC+r}, 0")
    a(f"s_cmp_ge_u32 s{sRole}, 6\ns_cbranch_scc1 k1_kv")

    def chunk_loop(rdA, rdB, nper, mfma, adjust, extra=None, dma5=None, tag="c"):
        for ch in range(6):
            if ch == 0: stamp(a, 1)
            if tag: a.vm_wait(f"c{ch}")
            a("s_barrier")
            if ch == 0: stamp(a, 2)
            if ch == 5: stamp(a, 3)
            if ch == 1 and dma5: dma5()
            if ch in (2, 4): adjust(61440)
            if ch == 5: adjust(-122880)
            off = (ch % 5 % 2) * 30720
            ahead = 15 // nper
            issued = 0
            for k in range(6):
                while issued < 6 and issued < k + ahead and (issued - k + 1) * nper <= 15:
                    rdA(issued, FR + 8*issued, off); rdB(issued, FR + 8*issued + 4, off); issued += 1
                a(f"s_waitcnt lgkmcnt({(issued - k - 1) * nper})")
                mfma(FR + 8*k, FR + 8*k + 4)
                if extra: extra(ch, k, FR + 8*k, FR + 8*k + 4)
    def rd_x(v0, v1, slot=0):
        return lambda k, reg, off: a(f"ds_read_b128 v[{reg}:{reg+3}], v{v1 if k & 1 else v0} offset:{off + (slot + (k >> 1)) * 1024}")
    def rd_tr(v, slot=0):
        def f(k, reg, off):
            a(f"ds_read_b64_tr_b16 v[{reg}:{reg+1}], v{v} offset:{off + (slot + k) * 1024}")
            a(f"ds_read_b64_tr_b16 v[{reg+2}:{reg+3}], v{v} offset:{off + (slot + k) * 1024 + 256}")
        return f
    def adj(*vs):
        def f(d):
            for v in vs: a(f"v_add_u32 v{v}, {d & 0xffffffff}, v{v}")
        return f
    mf = lambda A, B: a(f"v_mfma_f32_32x32x16_bf16 v[{ACC}:{ACC+15}], v[{A}:{A+3}], v[{B}:{B+3}], v[{ACC}:{ACC+15}]")

    vm0 = list(a.vm)
    a(f"""v_lshl_add_u32 v{vTr}, v{vWs}, 3, v{vTr}
    v_lshlrev_b32 v{vWs}, 4, v{vWs}
    s_movk_i32 s{sA}, 1152
    v_mad_u32_u24 v{vWs}, v{vt1}, s{sA}, v{vWs}""")
    def xoff(dst, slot):
        a(f"""s_mul_i32 s{sE}, s{slot}, 86
        s_lshr_b32 s{sE}, s{sE}, 8
        s_mul_i32 s{sF}, s{sE}, 3
        s_sub_u32 s{slot}, s{slot}, s{sF}
        s_lshl_b32 s{slot}, s{slot}, 6
        s_lshr_b32 s{sF}, s{sE}, 1
        s_mul_i32 s{sF}, s{sF}, 36864
        s_add_u32 s{slot}, s{slot}, s{sF}
        s_and_b32 s{sE}, s{sE}, 1
        s_mul_i32 s{sE}, s{sE}, 1179648
        s_add_u32 s{slot}, s{slot}, s{sE}
        s_add_u32 s{dst}, s{slot}, s{sD}""")
    a(f"s_mul_i32 s{sD}, s{sT1}, 1152\ns_lshl_b32 s{sA}, s{sWave}, 1\ns_add_u32 s{sB}, s{sA}, 1")
    xoff(sA, sA); xoff(sB, sB)
    a(f"""s_and_b32 s{sC}, s{sWave}, 1
    s_mul_i32 s{sC}, s{sC}, {48*1152}
    s_lshr_b32 s{sE}, s{sWave}, 1
    s_mul_i32 s{sF}, s{sRole}, 3
    s_add_u32 s{sE}, s{sE}, s{sF}
    s_lshl_b32 s{sE}, s{sE}, 6
    s_add_u32 s{sC}, s{sC}, s{sE}
    s_lshl_b32 s{sM}, s{sWave}, 11
    s_lshl_b32 s{sD}, s{sWave}, 10
    s_add_u32 s{sD}, s{sD}, 12288
    s_waitcnt lgkmcnt(0)""")
    srd(a, sX, 16, 2048*1152); srd(a, sW, 28, 576*1152)
    def dma_q():
        a(f"""s_mov_b32 m0, s{sM}
        s_nop 0
        buffer_load_dwordx4 v{vXs}, s[{sX}:{sX+3}], s{sA} offen lds
        s_add_u32 m0, m0, 1024
        s_add_u32 s{sA}, s{sA}, 192
        buffer_load_dwordx4 v{vXs}, s[{sX}:{sX+3}], s{sB} offen lds
        s_add_u32 m0, s{sM}, s{sD}
        s_add_u32 s{sB}, s{sB}, 192
        buffer_load_dwordx4 v{vWs}, s[{sW}:{sW+3}], s{sC} offen lds
        s_add_u32 m0, m0, 1024
        s_add_u32 s{sE}, s{sC}, 18432
        buffer_load_dwordx4 v{vWs}, s[{sW}:{sW+3}], s{sE} offen lds
        s_add_u32 m0, m0, 1024
        s_add_u32 s{sE}, s{sE}, 18432
        buffer_load_dwordx4 v{vWs}, s[{sW}:{sW+3}], s{sE} offen lds
        s_add_u32 s{sC}, s{sC}, 110592""")
    a.label("k1_q_dma")
    dma_q()
    a(f"s_add_u32 s{sM}, s{sM}, 30720\ns_cmp_lt_u32 s{sM}, 153600\ns_cbranch_scc1 k1_q_dma")
    for ch in range(5): a.vm_note(f"c{ch}", 5)
    a(f"s_sub_u32 s{sM}, s{sM}, 153600")
    sPhi, sGrp, sKs = 70, 71, 72
    vDF = 80
    srd(a, sWS, 40, WS_SIZE)
    a(f"""s_lshl_b32 s{sPhi}, s{sRole}, 5
    s_add_u32 s{sPhi}, s{sPhi}, s{sT1}
    s_mul_i32 s{sPhi}, s{sPhi}, 3
    s_lshr_b32 s{sE}, s{sWave}, 1
    s_add_u32 s{sPhi}, s{sPhi}, s{sE}
    s_mul_i32 s{sGrp}, s{sPhi}, 1821
    s_lshr_b32 s{sGrp}, s{sGrp}, 16
    s_mul_i32 s{sKs}, s{sGrp}, 36
    s_sub_u32 s{sKs}, s{sPhi}, s{sKs}
    s_bitcmp1_b32 s{sWave}, 0
    s_cselect_b32 s{sW2}, s24, s22
    s_cselect_b32 s{sW2+1}, s25, s23
    s_cselect_b64 s[74:75], -1, 0
    s_mov_b32 s{sW2+2}, {576*1152}
    s_mov_b32 s{sW2+3}, 0x20000
    v_and_b32 v{vt0}, 3, v{vL}
    v_bfe_u32 v{vt1}, v{vL}, 2, 1
    v_lshl_add_u32 v{vt0}, v{vt1}, 3, v{vt0}
    v_bfe_u32 v{vt1}, v{vL}, 3, 1
    v_lshl_add_u32 v{vt0}, v{vt1}, 2, v{vt0}
    s_lshl_b32 s{sE}, s{sGrp}, 4
    v_add_u32 v{vt0}, s{sE}, v{vt0}
    s_cmp_eq_u32 s{sGrp}, 0
    s_cselect_b32 s76, 0x10000, 0
    s_mov_b32 s77, s76
    v_mov_b32 v{vt1}, 288
    v_cndmask_b32 v{vt0}, v{vt0}, v{vt1}, s[76:77]
    v_mul_u32_u24 v{vt0}, 1152, v{vt0}
    v_lshl_add_u32 v{vt0}, v{vt2}, 4, v{vt0}
    s_or_b32 s76, s76, 0xffff
    s_mov_b32 s77, s76
    s_xor_b64 s[76:77], s[76:77], s[74:75]
    s_lshl_b32 s{sKs}, s{sKs}, 5
    s_mov_b64 exec, s[76:77]""")
    a.vmem(f"buffer_load_dwordx4 v[{vDF}:{vDF+3}], v{vt0}, s[{sW2}:{sW2+3}], s{sKs} offen", "df")
    a("s_mov_b64 exec, -1")
    a(f"""s_cmp_ge_u32 s{sWave}, 3
    s_cselect_b32 s{sE}, 3, 0
    s_cselect_b32 s{sF}, 6144, 0
    s_cselect_b32 s73, 32, 0
    s_sub_u32 s{sE}, s{sWave}, s{sE}
    v_add_u32 v{vR0}, s{sF}, v{vR0}
    v_xor_b32 v{vR1}, 32, v{vR0}
    s_mul_i32 s{sF}, s{sE}, 6144
    s_add_u32 s{sF}, s{sF}, 12288
    v_add_u32 v{vTr}, s{sF}, v{vTr}
    s_mul_i32 s{sF}, s{sRole}, 3
    s_add_u32 s78, s{sF}, s{sE}
    s_add_u32 s73, s73, s{sT1}""")
    def d5():
        dma_q(); a.vm_note("c5", 5)
    chunk_loop(rd_tr(vTr), rd_x(vR0, vR1), 3, mf, adj(vR0, vR1, vTr), dma5=d5)
    a(f"""s_lshl_b32 s{sPhi}, s{sPhi}, 10
    s_add_u32 s{sPhi}, s{sPhi}, {DF}
    v_lshlrev_b32 v{vt0}, 4, v{vL}
    s_mov_b64 exec, s[76:77]
    buffer_store_dwordx4 v[{vDF}:{vDF+3}], v{vt0}, s[{sWS}:{sWS+3}], s{sPhi} offen
    s_mov_b64 exec, -1
    v_and_b32 v{vt0}, 31, v{vL}
    v_lshlrev_b32 v{vt0}, 2, v{vt0}
    v_lshl_add_u32 v{vt0}, v{vt2}, 8, v{vt0}
    s_mul_i32 s73, s73, 36864
    s_lshl_b32 s78, s78, 11
    s_add_u32 s73, s73, s78
    s_mov_b32 s{sE}, {f2u(CQ)}
    s_nop 0""")
    for r in range(16): a(f"v_mul_f32 v{ACC+r}, s{sE}, v{ACC+r}")
    for k in range(8):
        a(f"v_cvt_pk_bf16_f32 v{FR+k}, v{ACC+2*k}, v{ACC+2*k+1}")
        a(f"buffer_store_dword v{FR+k}, v{vt0}, s[{sWS}:{sWS+3}], s73 offen offset:{(4*(k>>1)+(k&1))*128}")
    stamp(a, 4)
    stamp_end(a, 0, sWS, sWave)
    a("s_endpgm")

    a.label("k1_kv")
    sRb = 73
    a(f"""s_sub_u32 s{sRb}, s{sRole}, 6
    s_lshl_b32 s{sRb}, s{sRb}, 5
    s_add_u32 s{sRb}, s{sRb}, s{sT1}
    v_xor_b32 v{vR1}, 32, v{vR0}
    s_cmp_eq_u32 s{sWave}, 5
    s_cbranch_scc1 k1_end
    s_cmp_ge_u32 s{sWave}, 3
    s_cbranch_scc1 k1_job
    s_cmp_eq_u32 s{sWave}, 2
    s_cbranch_scc1 k1_gate""")
    def dma6(vsrc, srdA, srdB, step_in, step_ch, lab):
        def body():
            a(f"s_mov_b32 m0, s{sM}")
            a(f"s_mov_b32 s{sE}, s{sA}")
            for i in range(6):
                r = srdA if i < 3 else srdB
                a(f"buffer_load_dwordx4 v{vsrc}, s[{r}:{r+3}], s{sE} offen lds")
                if i < 5:
                    a("s_add_u32 m0, m0, 1024")
                    a(f"s_mov_b32 s{sE}, s{sB}" if i == 2 else f"s_add_u32 s{sE}, s{sE}, {step_in}")
            a(f"s_add_u32 s{sA}, s{sA}, {step_ch}\ns_add_u32 s{sB}, s{sB}, {step_ch}")
        a.label(lab)
        body()
        a(f"s_add_u32 s{sM}, s{sM}, 30720\ns_cmp_lt_u32 s{sM}, 153600\ns_cbranch_scc1 {lab}")
        for ch in range(5): a.vm_note(f"c{ch}", 6)
        a(f"s_sub_u32 s{sM}, s{sM}, 153600")
        def d5():
            body(); a.vm_note("c5", 6)
        return d5
    a.vm = list(vm0)
    a(f"""v_mul_u32_u24 v{vt0}, 36, v{vt1}
    v_lshl_add_u32 v{vt0}, v{vWs}, 4, v{vt0}
    v_and_b32 v{vt1}, 1, v{vL}
    v_bfe_u32 v{vB0}, v{vL}, 1, 1
    v_lshl_or_b32 v{vt1}, v{vt1}, 1, v{vB0}
    v_cmp_eq_u32 vcc, 0, v{vt3}
    s_mul_i32 s{sM}, s{sWave}, 6144
    s_add_u32 s{sM}, s{sM}, 6144
    v_cndmask_b32 v{vt1}, v{vWs}, v{vt1}, vcc
    v_lshl_add_u32 v{vTr}, v{vt1}, 3, v{vTr}
    v_mov_b32 v{vWs}, v{vt0}
    v_add_u32 v{vTr}, s{sM}, v{vTr}
    s_mov_b32 s{sA}, 0
    s_mov_b32 s{sB}, {48*36}
    s_cmp_eq_u32 s{sWave}, 0
    s_waitcnt lgkmcnt(0)
    s_cselect_b32 s{sW}, s30, s32
    s_cselect_b32 s{sW+1}, s31, s33
    s_mov_b32 s{sW+2}, {576*36}
    s_mov_b32 s{sW+3}, 0x20000""")
    d5 = dma6(vWs, sW, sW, 16*36, 96*36, "k1_kv_dma")
    srd(a, sWS, 40, WS_SIZE)
    a(f"s_mul_i32 s{sF}, s{sRb}, {TILE}\ns_add_u32 s{sF}, s{sF}, {KV}")
    a(f"s_cmp_eq_u32 s{sWave}, 1\ns_cbranch_scc1 k1_v")
    vmk = list(a.vm)
    chunk_loop(rd_tr(vTr), rd_x(vR0, vR1), 3, mf, adj(vR0, vR1, vTr), dma5=d5)
    a(f"""v_lshlrev_b32 v{vt0}, 4, v{vL}
    v_lshlrev_b32 v{vt1}, 2, v{vL}
    s_nop 9""")
    for k in range(5): a(f"v_cvt_pk_bf16_f32 v{FR+k}, v{ACC+2*k}, v{ACC+2*k+1}")
    a(f"buffer_store_dwordx4 v[{FR}:{FR+3}], v{vt0}, s[{sWS}:{sWS+3}], s{sF} offen")
    a(f"v_mul_f32 v{vt3}, v{ACC}, v{ACC}")
    for r in range(1, 8): a(f"v_fmac_f32 v{vt3}, v{ACC+r}, v{ACC+r}")
    a(f"""s_mov_b32 exec_hi, 0
    buffer_store_dword v{FR+4}, v{vt1}, s[{sWS}:{sWS+3}], s{sF} offen offset:1024
    v_fmac_f32 v{vt3}, v{ACC+8}, v{ACC+8}
    v_fmac_f32 v{vt3}, v{ACC+9}, v{ACC+9}
    s_mov_b64 exec, -1
    v_mov_b32 v{vt0}, v{vt3}
    s_nop 1
    v_permlane32_swap_b32 v{vt0}, v{vt3}
    v_add_f32 v{vt3}, v{vt0}, v{vt3}""")
    wave_max(a, vt3, sE)
    a(f"""v_mov_b32 v{vt3}, s{sE}
    v_mov_b32 v{vt0}, 0
    s_lshl_b32 s{sF}, s{sRb}, 2
    s_add_u32 s{sF}, s{sF}, {KM}
    s_mov_b64 exec, 1
    buffer_store_dword v{vt3}, v{vt0}, s[{sWS}:{sWS+3}], s{sF} offen""")
    stamp_end(a, 0, sWS, sWave)
    a("s_endpgm")
    a.label("k1_v")
    a.vm = list(vmk)
    chunk_loop(rd_x(vR0, vR1), rd_tr(vTr), 3, mf, adj(vR0, vR1, vTr), dma5=d5)
    a(f"""v_and_b32 v{vt0}, 31, v{vL}
    v_mul_u32_u24 v{vt1}, 19, v{vt2}
    v_add_u32 v{vt1}, v{vt1}, v{vt0}
    v_cmp_eq_u32 vcc, 19, v{vL}
    v_mov_b32 v{vt3}, 38
    v_cmp_eq_u32 s[74:75], 18, v{vt0}
    v_cndmask_b32 v{vt1}, v{vt1}, v{vt3}, vcc
    v_lshlrev_b32 v{vt1}, 4, v{vt1}
    v_mov_b32 v{vt3}, 0x3f803f80
    s_nop 2""")
    for k in range(8): a(f"v_cvt_pk_bf16_f32 v{FR+k}, v{ACC+2*k}, v{ACC+2*k+1}")
    for k in range(8):
        a(f"v_cndmask_b32 v{FR+k}, v{FR+k}, v{vt3}, s[74:75]")
        a(f"v_cndmask_b32 v{FR+k}, v{FR+k}, 0, vcc")
    a(f"""s_mov_b32 exec_lo, 0xfffff
    s_mov_b32 exec_hi, 0x7ffff
    buffer_store_dwordx4 v[{FR}:{FR+3}], v{vt1}, s[{sWS}:{sWS+3}], s{sF} offen offset:1152
    buffer_store_dwordx4 v[{FR+4}:{FR+7}], v{vt1}, s[{sWS}:{sWS+3}], s{sF} offen offset:{1152+624}""")
    stamp_end(a, 0, sWS, sWave)
    a("s_endpgm")
    a.label("k1_gate")
    a.vm = list(vm0)
    a(f"""s_mul_i32 s{sA}, s{sRb}, 1152
    s_add_u32 s{sB}, s{sA}, 1179648
    s_mov_b32 s{sM}, 0
    v_lshlrev_b32 v{vt0}, 4, v{vL}
    v_lshlrev_b32 v{vB0}, 4, v{vt2}
    v_add_u32 v{vB0}, 153600, v{vB0}
    s_waitcnt lgkmcnt(0)""")
    srd(a, sX, 16, 2048*1152); srd(a, sW2, 36, 1152)
    a(f"s_mov_b32 m0, 153600\ns_nop 0")
    a.vmem(f"buffer_load_dwordx4 v{vt0}, s[{sW2}:{sW2+3}], 0 offen lds", "g")
    a.vmem(f"buffer_load_dwordx4 v{vt0}, s[{sW2}:{sW2+3}], 0 offen offset:1024 lds", "g")
    d5 = dma6(vXs, sX, sX, 64, 192, "k1_x_dma")
    srd(a, sWS, 40, WS_SIZE)
    a(f"s_mul_i32 s{sF}, s{sRb}, 36864\ns_add_u32 s{sF}, s{sF}, {XF}")
    chn = [0]
    def rd_gate(k, reg, off):
        a(f"ds_read_b128 v[{reg}:{reg+3}], v{vB0} offset:{32*chn[0]}"); chn[0] += 1
    def xf_store(ch, k, A, B):
        a.vmem(f"buffer_store_dwordx4 v[{B}:{B+3}], v{vt0}, s[{sWS}:{sWS+3}], s{sF} offen offset:{(k&3)*1024}", "xf")
        if k in (3, 5): a(f"s_add_u32 s{sF}, s{sF}, {4096 if k == 3 else 2048}")
    chunk_loop(rd_gate, rd_x(vR0, vR1), 2, mf, adj(vR0, vR1), extra=xf_store, dma5=d5)
    a(f"""s_lshl_b32 s{sF}, s{sRb}, 7
    s_add_u32 s{sF}, s{sF}, {GG}
    v_lshlrev_b32 v{vt1}, 2, v{vL}
    s_nop 7
    v_mul_f32 v{vt3}, {f2u(-math.log2(math.e))}, v{ACC}
    v_exp_f32 v{vt3}, v{vt3}
    s_nop 0
    v_add_f32 v{vt3}, 1.0, v{vt3}
    v_rcp_f32 v{vt3}, v{vt3}
    s_mov_b32 exec_hi, 0
    buffer_store_dword v{vt3}, v{vt1}, s[{sWS}:{sWS+3}], s{sF} offen""")
    stamp_end(a, 0, sWS, sWave)
    a("s_endpgm")
    a.label("k1_job")
    a.vm = list(vm0)
    sGrp = 71
    a(f"""v_and_b32 v{vB0}, 3, v{vt1}
    v_bfe_u32 v{vB1}, v{vt1}, 2, 1
    v_lshl_add_u32 v{vB0}, v{vB1}, 3, v{vB0}
    v_bfe_u32 v{vB1}, v{vt1}, 3, 1
    v_lshl_add_u32 v{vB0}, v{vB1}, 2, v{vB0}
    s_movk_i32 s{sA}, 1152
    v_mad_u32_u24 v{vWs}, v{vB0}, s{sA}, v{vt0}
    s_add_u32 s{sGrp}, s{sWave}, 13
    s_mul_i32 s{sA}, s{sGrp}, {16*1152}
    s_mov_b32 s{sB}, s{sA}
    s_mul_i32 s{sM}, s{sWave}, 6144
    v_add_u32 v{vB0}, s{sM}, v{vR0}
    v_add_u32 v{vB1}, s{sM}, v{vR1}
    s_waitcnt lgkmcnt(0)""")
    srd(a, sW, 22, 576*1152); srd(a, sW2, 24, 576*1152)
    d5 = dma6(vWs, sW, sW2, 64, 192, "k1_d_dma")
    srd(a, sWS, 40, WS_SIZE)
    R = 80
    load_rf(a, R, vL, vt0, "k1_rf")
    chunk_loop(rd_x(vR0, vR1), rd_x(vB0, vB1), 2, mf, adj(vR0, vR1, vB0, vB1), dma5=d5)
    a("s_nop 11")
    fnet_tail(a, ACC, FR, FR+16, R, FR+32, vL, sWS, sRb, sGrp, 76, None)
    stamp_end(a, 0, sWS, sWave)
    a.label("k1_end")
    a("s_endpgm")
    a.label("k1_code_end")
    return a


K2_LDS = 163840
FLG = 159744
OFFS = 96.0
PRIO = {0: 2, 32: 1, 60: 0}
EXP = set()
def gen_k2(fused=False):
    a = Asm()
    sWS = 8
    sWave, sT1, sJ, sA, sB, sC, sD, sE = 20, 21, 22, 23, 24, 25, 26, 27
    sHi = 28
    vL, vt0, vt1, vt2, vt3 = 1, 2, 3, 14, 15
    a("s_cmp_ge_u32 s2, 256\ns_cbranch_scc1 k2_end")
    stamp(a, 0)
    a("s_load_dwordx2 s[16:17], s[0:1], 104")
    code_prefetch(a, vt0, 111, "k2_code_end", "k2_pf")
    a(f"""v_lshrrev_b32 v{vt0}, 6, v0
    v_and_b32 v{vL}, 63, v0
    v_readfirstlane_b32 s{sWave}, v{vt0}
    s_bfe_u32 s{sA}, s2, 0x20003
    s_and_b32 s{sT1}, s2, 7
    s_lshl_b32 s{sA}, s{sA}, 3
    s_add_u32 s{sT1}, s{sT1}, s{sA}
    s_lshr_b32 s{sJ}, s2, 5
    s_cmp_ge_u32 s{sWave}, 8
    s_cbranch_scc1 k2_helper""")
    vm0 = list(a.vm)
    Q1, Q2, vG, aK, ak, aV = 4, 8, 10, 11, 12, 13
    O, S, P, K1, K2, V = 16, [32, 48], [64, 72], [80, 84], [88, 90], [92, 100]
    aF = 108
    sRb, sHead = 30, 31
    a(f"""s_lshr_b32 s{sA}, s{sWave}, 2
    s_lshl_b32 s{sA}, s{sA}, 5
    s_add_u32 s{sRb}, s{sT1}, s{sA}
    s_and_b32 s{sA}, s{sWave}, 3
    s_lshl_b32 s{sHead}, s{sJ}, 2
    s_add_u32 s{sHead}, s{sHead}, s{sA}
    s_mul_i32 s{sA}, s{sRb}, 36864
    s_mul_i32 s{sB}, s{sHead}, 1152
    s_add_u32 s{sA}, s{sA}, s{sB}
    s_lshl_b32 s{sB}, s{sRb}, 7
    s_add_u32 s{sB}, s{sB}, {GG}
    s_mov_b32 s{sC}, {KM}
    v_and_b32 v{vt2}, 31, v{vL}
    v_lshrrev_b32 v{vt3}, 5, v{vL}
    v_lshlrev_b32 v{ak}, 2, v{vt2}
    v_lshl_add_u32 v{vt0}, v{vt3}, 9, v{ak}
    v_lshlrev_b32 v{aF}, 2, v{vL}
    s_waitcnt lgkmcnt(0)""")
    srd(a, sWS, 16, WS_SIZE)
    for k in range(4): a.vmem(f"buffer_load_dword v{Q1+k}, v{vt0}, s[{sWS}:{sWS+3}], s{sA} offen offset:{128*k}", "q")
    a.vmem(f"buffer_load_dword v{Q2}, v{ak}, s[{sWS}:{sWS+3}], s{sA} offen offset:1024", "q")
    a.vmem(f"buffer_load_dword v{K2[0]+1}, v{aF}, s[{sWS}:{sWS+3}], s{sC} offen", "q")
    a.vmem(f"buffer_load_dword v{vG}, v{ak}, s[{sWS}:{sWS+3}], s{sB} offen", "g")
    a(f"""v_add_u32 v{vt0}, {FLG}, v{aF}
    v_mov_b32 v{O}, 0
    ds_write_b32 v{vt0}, v{O}
    v_and_b32 v{aF}, 12, v{aF}
    v_add_u32 v{aF}, {FLG}, v{aF}
    v_lshlrev_b32 v{aK}, 4, v{vL}
    v_add_u32 v{ak}, 1024, v{ak}
    v_cmp_eq_u32 vcc, 28, v{vt2}
    v_mul_u32_u24 v{vt0}, 19, v{vt3}
    s_mov_b32 s{sHi}, 0
    v_cndmask_b32 v{aV}, v{vt2}, 18, vcc
    v_cmp_gt_u32 vcc, 19, v{aV}
    v_add_u32 v{aV}, v{aV}, v{vt0}
    s_mov_b32 s{sHi+1}, -1
    v_cndmask_b32 v{aV}, 38, v{aV}, vcc
    v_lshlrev_b32 v{aV}, 4, v{aV}
    v_add_u32 v{aV}, 1152, v{aV}""")
    for r in range(1, 16): a(f"v_mov_b32 v{O+r}, 0")
    stamp(a, 1)
    a.vm_wait("q")
    stamp(a, 2)
    a(f"""v_cndmask_b32 v{Q2}, v{Q2}, 0, s[{sHi}:{sHi+1}]
    v_dot2_f32_bf16 v{vt0}, v{Q1}, v{Q1}, 0
    v_dot2_f32_bf16 v{vt1}, v{Q1+1}, v{Q1+1}, 0
    v_dot2_f32_bf16 v{vt2}, v{Q1+2}, v{Q1+2}, 0
    v_dot2_f32_bf16 v{vt3}, v{Q1+3}, v{Q1+3}, 0
    v_dot2_f32_bf16 v{S[1]}, v{Q2}, v{Q2}, 0""")
    wave_max(a, K2[0]+1, sA)
    a(f"""v_add_f32 v{vt0}, v{vt0}, v{vt1}
    v_add_f32 v{vt2}, v{vt2}, v{vt3}
    v_sqrt_f32 v{vt3}, s{sA}
    v_add_f32 v{vt0}, v{vt0}, v{S[1]}
    v_add_f32 v{vt0}, v{vt0}, v{vt2}
    v_mov_b32 v{vt1}, v{vt0}
    v_mul_f32 v{vt3}, {f2u(-1.0079)}, v{vt3}
    v_mov_b32 v{vt2}, {f2u(OFFS)}
    v_permlane32_swap_b32 v{vt0}, v{vt1}
    v_cvt_pk_bf16_f32 v{K2[0]+1}, v{vt3}, v{vt2}
    v_add_f32 v{vt0}, v{vt0}, v{vt1}
    v_sqrt_f32 v{vt0}, v{vt0}
    v_mov_b32 v{K2[1]+1}, v{K2[0]+1}
    v_mul_f32 v{vt0}, {f2u(1.0079)}, v{vt0}
    v_cvt_pk_bf16_f32 v{Q2+1}, v{vt0}, 1.0
    v_cndmask_b32 v{Q2+1}, v{Q2+1}, 0, s[{sHi}:{sHi+1}]
    s_waitcnt lgkmcnt(0)
    s_barrier
    s_setprio {PRIO[0]}""")
    stamp(a, 3)
    seg = [0]
    def off(j, extra=0):
        o = (j - seg[0]) * TILE + extra
        assert 0 <= o < 65536
        return o
    rdK = lambda j: f"ds_read_b128 v[{K1[j&1]}:{K1[j&1]+3}], v{aK} offset:{off(j)}"
    rdk = lambda j: f"ds_read_b32 v{K2[j&1]}, v{ak} offset:{off(j)}"
    rdV = lambda j, u: f"ds_read_b128 v[{V[j&1]+4*u}:{V[j&1]+4*u+3}], v{aV} offset:{off(j, 624*u)}"
    def M1(j): return f"v_mfma_f32_32x32x16_bf16 v[{S[j&1]}:{S[j&1]+15}], v[{K1[j&1]}:{K1[j&1]+3}], v[{Q1}:{Q1+3}], 0"
    def M2(j): return f"v_mfma_f32_32x32x8_bf16 v[{S[j&1]}:{S[j&1]+15}], v[{K2[j&1]}:{K2[j&1]+1}], v[{Q2}:{Q2+1}], v[{S[j&1]}:{S[j&1]+15}]"
    def M3(j, u): return f"v_mfma_f32_32x32x16_bf16 v[{O}:{O+15}], v[{V[j&1]+4*u}:{V[j&1]+4*u+3}], v[{P[j&1]+4*u}:{P[j&1]+4*u+3}], v[{O}:{O+15}]"
    a(rdK(0)); a(rdk(0)); a(rdK(1)); a(rdk(1))
    a("s_waitcnt lgkmcnt(2)")
    a(M1(0)); a(M2(0))
    a("s_waitcnt lgkmcnt(0)\ns_nop 8")
    FCHK = {3: 1, 9: 2, 23: 3}
    for j in range(64):
        if j in PRIO and j: a(f"s_setprio {PRIO[j]}")
        if j == 32: stamp(a, 4)
        if j in FCHK:
            a.label(f"k2_w{j}")
            a(f"ds_read_b32 v{vt0}, v{aF}\ns_waitcnt lgkmcnt(0)\nv_cmp_gt_u32 vcc, {FCHK[j]}, v{vt0}\ns_cbranch_vccnz k2_w{j}")
        if j in (24, 48):
            for v in (aK, ak, aV): a(f"v_add_u32 v{v}, {24*TILE}, v{v}")
            seg[0] += 24
        s, p = S[j & 1], P[j & 1]
        e = lambda i: f"v_exp_f32 v{s+i}, v{s+i}"
        c = lambda i: f"v_cvt_pk_bf16_f32 v{p+i}, v{s+2*i}, v{s+2*i+1}"
        nx, pv, ld = j + 1 < 64, j > 0, j + 2 < 64
        L = []
        if nx: L.append(M1(j+1))
        if ld: L.append(rdK(j+2))
        L += [e(0), e(1), e(2), e(3), c(0)]
        if nx: L.append(M2(j+1))
        if ld: L.append(rdk(j+2))
        L += [e(4), e(5), c(1), e(6), e(7), c(2)]
        if pv: L.append(M3(j-1, 0))
        L += [rdV(j, 0), rdV(j, 1)]
        L += [e(8), e(9), c(3), e(10), e(11), c(4)]
        if pv: L.append(M3(j-1, 1))
        L += [e(12), e(13), c(5), e(14), e(15), c(6), c(7), "s_waitcnt lgkmcnt(0)"]
        if 'nopv' in EXP: L = [x for x in L if not (x.startswith('v_mfma') and f'v[{O}:{O+15}]' in x)]
        if 'noqk2' in EXP: L = [x for x in L if '32x32x8' not in x]
        if 'noqk' in EXP: L = [x for x in L if not (x.startswith('v_mfma') and f'v[{O}:{O+15}]' not in x)]
        if 'noexp' in EXP: L = [x.replace('v_exp_f32', 'v_mov_b32') for x in L]
        if 'nocvt' in EXP: L = [x for x in L if 'v_cvt' not in x]
        if 'nolds' in EXP: L = [x for x in L if 'ds_read' not in x]
        for x in L: a(x)
    a("s_nop 0"); a(M3(63, 0)); a(M3(63, 1))
    stamp(a, 5)
    sO = 32
    a(f"""s_lshl_b32 s{sA}, s{sT1}, 2
    s_lshr_b32 s{sB}, s{sWave}, 2
    s_lshl_b32 s{sB}, s{sB}, 1
    s_add_u32 s{sA}, s{sA}, s{sB}
    s_mul_i32 s{sA}, s{sA}, 18432
    s_add_u32 s{sA}, s{sA}, {OF}
    s_lshr_b32 s{sB}, s{sHead}, 1
    s_lshl_b32 s{sB}, s{sB}, 10
    s_and_b32 s{sC}, s{sHead}, 1
    s_lshl_b32 s{sC}, s{sC}, 9
    s_add_u32 s{sB}, s{sB}, s{sC}
    s_add_u32 s{sO}, s{sA}, s{sB}
    s_lshr_b32 s{sB}, s{sHead}, 2
    s_lshl_b32 s{sB}, s{sB}, 8
    s_and_b32 s{sC}, s{sHead}, 3
    s_lshl_b32 s{sC}, s{sC}, 2
    s_add_u32 s{sB}, s{sB}, s{sC}
    s_add_u32 s{sB}, s{sB}, 16384
    s_add_u32 s{sO+1}, s{sA}, s{sB}""")
    a.vm_wait("g")
    vl = S[0]
    a(f"v_cndmask_b32 v{vl}, v{O+10}, v{O+12}, s[{sHi}:{sHi+1}]")
    a(f"v_add_f32 v{vt0}, |v{O}|, |v{O+1}|")
    for r in range(2, 10): a(f"v_add_f32 v{vt0}, |v{O+r}|, v{vt0}")
    a(f"""v_add_f32 v{vt0}, v{vl}, v{vt0}
    v_cmp_le_f32 vcc, {f2u(2.0**-80)}, v{vl}
    v_mov_b32 v{vt1}, 0x7f800000
    v_cmp_lt_f32 s[{sA+1}:{sA+2}], v{vt0}, v{vt1}
    s_nop 1
    s_and_b64 vcc, vcc, s[{sA+1}:{sA+2}]
    s_cmp_eq_u64 vcc, exec""")
    if not EXP: a("s_cbranch_scc0 k2_fallback")
    a.label("k2_norm")
    a(f"""v_rcp_f32 v{vl}, v{vl}
    v_sub_f32 v{vG}, 1.0, v{vG}
    v_and_b32 v{vt0}, 15, v{vL}
    v_lshlrev_b32 v{vt0}, 4, v{vt0}
    v_mul_f32 v{vl}, v{vl}, v{vG}
    v_bfe_u32 v{vt1}, v{vL}, 4, 1
    v_mul_u32_u24 v{vt1}, 18432, v{vt1}
    v_add_u32 v{vt0}, v{vt0}, v{vt1}
    v_lshrrev_b32 v{vt1}, 5, v{vL}
    v_lshl_add_u32 v{vt1}, v{vt1}, 8, v{vt0}""")
    for r in range(10): a(f"v_mul_f32 v{O+r}, v{O+r}, v{vl}")
    for k in range(5): a(f"v_cvt_pk_bf16_f32 v{P[0]+k}, v{O+2*k}, v{O+2*k+1}")
    a(f"""buffer_store_dwordx4 v[{P[0]}:{P[0]+3}], v{vt1}, s[{sWS}:{sWS+3}], s{sO} offen
    s_mov_b32 exec_hi, 0
    buffer_store_dword v{P[0]+4}, v{vt0}, s[{sWS}:{sWS+3}], s{sO+1} offen""")
    stamp_end(a, 1, sWS, sWave)
    a("s_endpgm")
    a.label("k2_fallback")
    s0 = S[0]
    a(f"""v_lshlrev_b32 v{aK}, 4, v{vL}
    v_subrev_u32 v{ak}, {48*TILE}, v{ak}
    v_subrev_u32 v{aV}, {48*TILE}, v{aV}
    v_mov_b32 v{K2[0]+1}, 0
    v_mov_b32 v{vt0}, 0xff800000
    s_mov_b32 s{sA}, {KV}""")
    a.label("k2_fb1")
    a(f"""buffer_load_dwordx4 v[{K1[0]}:{K1[0]+3}], v{aK}, s[{sWS}:{sWS+3}], s{sA} offen
    buffer_load_dword v{K2[0]}, v{ak}, s[{sWS}:{sWS+3}], s{sA} offen
    s_waitcnt vmcnt(0)""")
    a(M1(0)); a(M2(0)); a("s_nop 11")
    for r in range(0, 16, 2): a(f"v_max3_f32 v{vt0}, v{s0+r}, v{s0+r+1}, v{vt0}")
    a(f"""s_add_u32 s{sA}, s{sA}, {TILE}
    s_cmp_lt_u32 s{sA}, {KV+64*TILE}
    s_cbranch_scc1 k2_fb1
    v_mov_b32 v{vt1}, v{vt0}
    s_nop 1
    v_permlane32_swap_b32 v{vt0}, v{vt1}
    v_max_f32 v{vt0}, v{vt0}, v{vt1}
    v_cvt_pk_bf16_f32 v{vt1}, v{vt0}, v{vt0}
    v_and_b32 v{vt1}, 0xffff0000, v{vt1}
    v_sub_f32 v{vt0}, v{vt0}, v{vt1}
    v_cvt_pk_bf16_f32 v{Q2+1}, v{vt1}, v{vt0}
    v_cndmask_b32 v{Q2+1}, v{Q2+1}, 0, s[{sHi}:{sHi+1}]
    v_mov_b32 v{K2[0]+1}, 0xbf80bf80
    s_mov_b32 s{sA}, {KV}""")
    for r in range(16): a(f"v_mov_b32 v{O+r}, 0")
    a.label("k2_fb2")
    a(f"""buffer_load_dwordx4 v[{K1[0]}:{K1[0]+3}], v{aK}, s[{sWS}:{sWS+3}], s{sA} offen
    buffer_load_dword v{K2[0]}, v{ak}, s[{sWS}:{sWS+3}], s{sA} offen
    buffer_load_dwordx4 v[{V[0]}:{V[0]+3}], v{aV}, s[{sWS}:{sWS+3}], s{sA} offen
    buffer_load_dwordx4 v[{V[0]+4}:{V[0]+7}], v{aV}, s[{sWS}:{sWS+3}], s{sA} offen offset:624
    s_waitcnt vmcnt(0)""")
    a(M1(0)); a(M2(0)); a("s_nop 11")
    for r in range(16): a(f"v_exp_f32 v{s0+r}, v{s0+r}")
    a("s_nop 0")
    for k in range(8): a(f"v_cvt_pk_bf16_f32 v{P[0]+k}, v{s0+2*k}, v{s0+2*k+1}")
    a("s_nop 1"); a(M3(0, 0)); a(M3(0, 1))
    a(f"""s_add_u32 s{sA}, s{sA}, {TILE}
    s_cmp_lt_u32 s{sA}, {KV+64*TILE}
    s_cbranch_scc1 k2_fb2
    s_nop 11
    v_cndmask_b32 v{vl}, v{O+10}, v{O+12}, s[{sHi}:{sHi+1}]
    s_branch k2_norm""")

    a.label("k2_helper")
    a.vm = list(vm0)
    sV, sS2, sGrp = 30, 31, 32
    a(f"""s_setprio 3
    s_sub_u32 s{sV}, s{sWave}, 8
    v_lshlrev_b32 v{vt0}, 4, v{vL}
    s_mul_i32 s{sA}, s{sV}, 3072
    s_mov_b32 m0, s{sA}
    s_add_u32 s{sA}, s{sA}, {KV}
    s_lshl_b32 s{sB}, s{sV}, 12
    s_add_u32 s{sB}, s{sB}, 12288
    s_waitcnt lgkmcnt(0)""")
    srd(a, sWS, 16, WS_SIZE)
    for k in range(3): a.vmem(f"buffer_load_dwordx4 v{vt0}, s[{sWS}:{sWS+3}], s{sA} offen offset:{1024*k} lds", "c0")
    a.label("k2_dma")
    a(f"s_mov_b32 m0, s{sB}\ns_add_u32 s{sA}, s{sB}, {KV}")
    for k in range(4): a(f"buffer_load_dwordx4 v{vt0}, s[{sWS}:{sWS+3}], s{sA} offen offset:{1024*k} lds")
    a(f"s_add_u32 s{sB}, s{sB}, 16384\ns_cmp_lt_u32 s{sB}, {FLG}\ns_cbranch_scc1 k2_dma")
    a.vm_note("c1", 4); a.vm_note("c2", 8); a.vm_note("c3", 24)
    a(f"s_lshl_b32 s{sA}, s{sV}, 2\ns_add_u32 s{sA}, s{sA}, {FLG}\nv_mov_b32 v{vt1}, s{sA}")
    stamp(a, 1)
    a.vm_wait("c0")
    stamp(a, 2)
    a("s_barrier")
    for k in (1, 2, 3):
        a(f"v_mov_b32 v{vt2}, {k}")
        a.vm_wait(f"c{k}")
        a(f"ds_write_b32 v{vt1}, v{vt2}")
    stamp(a, 3)
    if 'nojob' in EXP: a("s_branch k2_jobend")
    H, R, RING = 16, 32, 48
    load_rf(a, R, vL, vt0, "k2_rf")
    a(f"""s_lshr_b32 s{sS2}, s2, 2
    s_and_b32 s{sGrp}, s2, 3
    s_lshl_b32 s{sGrp}, s{sGrp}, 2
    s_add_u32 s{sGrp}, s{sGrp}, s{sV}
    s_mul_i32 s{sA}, s{sS2}, 36864
    s_add_u32 s{sA}, s{sA}, {XF}
    s_mul_i32 s{sB}, s{sGrp}, 36864
    s_add_u32 s{sB}, s{sB}, {DF}""")
    ND = 8
    def ld(ks):
        r = RING + 8 * (ks % ND)
        a.vmem(f"buffer_load_dwordx4 v[{r}:{r+3}], v{vt0}, s[{sWS}:{sWS+3}], s{sA} offen offset:{(ks&3)*1024}", f"j{ks}")
        a.vmem(f"buffer_load_dwordx4 v[{r+4}:{r+7}], v{vt0}, s[{sWS}:{sWS+3}], s{sB} offen offset:{(ks&3)*1024}", f"j{ks}")
        if ks & 3 == 3: a(f"s_add_u32 s{sA}, s{sA}, 4096\ns_add_u32 s{sB}, s{sB}, 4096")
    for ks in range(ND): ld(ks)
    for ks in range(36):
        r = RING + 8 * (ks % ND)
        a.vm_wait(f"j{ks}")
        a(f"v_mfma_f32_32x32x16_bf16 v[{H}:{H+15}], v[{r}:{r+3}], v[{r+4}:{r+7}], " + ("0" if ks == 0 else f"v[{H}:{H+15}]"))
        if ks + ND < 36: ld(ks + ND)
    a("s_nop 11")
    fnet_tail(a, H, RING, RING+16, R, RING+32, vL, sWS, sS2, sGrp, 34, "k2_nony")
    a.label("k2_jobend")
    stamp(a, 4)
    stamp_end(a, 1, sWS, sWave)
    a.label("k2_end")
    a("s_endpgm")
    a.label("k2_code_end")
    return a

K3_LDS = 112640 + 4*2304
def gen_k3():
    a = Asm()
    sWS, sWo, sRe, sIm, sOut = 8, 12, 40, 44, 48
    sV, sT1, sJ, sA, sB, sC, sD, sE, sRb = 52, 53, 54, 55, 56, 57, 58, 59, 60
    vL, vt0, vt1, vt2, vt3, vGs, vWm, vWx, vG, vTr = 1, 2, 3, 4, 5, 6, 7, 8, 9, 10
    ACC, W2, OB, AR = 12, 32, 48, 120
    a("s_cmp_ge_u32 s2, 256\ns_cbranch_scc1 k3_end")
    stamp(a, 0)
    a("s_load_dwordx4 s[16:19], s[0:1], 8\ns_load_dwordx2 s[20:21], s[0:1], 72\ns_load_dwordx2 s[22:23], s[0:1], 88\ns_load_dwordx2 s[24:25], s[0:1], 104")
    code_prefetch(a, vt0, 11, "k3_code_end", "k3_pf")
    a(f"""v_lshrrev_b32 v{vt0}, 6, v0
    v_and_b32 v{vL}, 63, v0
    v_readfirstlane_b32 s{sV}, v{vt0}
    s_bfe_u32 s{sA}, s2, 0x20003
    s_and_b32 s{sT1}, s2, 7
    s_lshl_b32 s{sA}, s{sA}, 3
    s_add_u32 s{sT1}, s{sT1}, s{sA}
    s_lshr_b32 s{sJ}, s2, 5""")
    a(f"""v_and_b32 v{vt0}, 24, v{vL}
    v_lshrrev_b32 v{vt1}, 5, v{vL}
    v_lshl_add_u32 v{vt0}, v{vt1}, 2, v{vt0}
    v_bfe_u32 v{vt1}, v{vL}, 1, 2
    v_add_u32 v{vt0}, v{vt0}, v{vt1}
    v_and_b32 v{vt1}, 1, v{vL}
    v_lshlrev_b32 v{vt1}, 4, v{vt1}
    s_movk_i32 s{sA}, {GP}
    v_mad_u32_u24 v{vGs}, v{vt0}, s{sA}, v{vt1}
    v_lshrrev_b32 v{vt2}, 4, v{vt0}
    v_lshl_add_u32 v{vt2}, v{vt2}, 1, v{vt0}
    s_movk_i32 s{sA}, 1152
    v_mad_u32_u24 v{vWm}, v{vt2}, s{sA}, v{vt1}
    v_lshrrev_b32 v{vt2}, 1, v{vt0}
    v_lshl_add_u32 v{vt2}, v{vt2}, 4, v{vt0}
    v_add_u32 v{vt2}, 16, v{vt2}
    v_mad_u32_u24 v{vWx}, v{vt2}, s{sA}, v{vt1}
    s_lshr_b32 s{sRb}, s{sV}, 1
    s_lshl_b32 s{sRb}, s{sRb}, 5
    s_add_u32 s{sRb}, s{sRb}, s{sT1}
    s_mul_i32 s{sE}, s{sJ}, 144
    s_waitcnt lgkmcnt(0)""")
    srd(a, sWS, 24, WS_SIZE); srd(a, sWo, 20, 576*1152)
    def dma5(v, r, soff):
        for mu in range(5):
            a(f"s_mov_b32 m0, s{sD}\ns_nop 0" if mu == 0 else "s_add_u32 m0, m0, 992\ns_nop 0")
            a.vmem(f"buffer_load_dwordx4 v{v}, s[{r}:{r+3}], s{soff} offen offset:{32*mu} lds", "a")
    a(f"""s_mul_i32 s{sA}, s{sT1}, {128*GP}
    s_mul_i32 s{sB}, s{sV}, {32*GP}
    s_add_u32 s{sA}, s{sA}, s{sB}
    s_add_u32 s{sA}, s{sA}, {GT}
    s_add_u32 s{sA}, s{sA}, s{sE}
    s_mul_i32 s{sD}, s{sV}, 5120""")
    dma5(vGs, sWS, sA)
    srd(a, sRe, 16, 2048*4096); srd(a, sIm, 18, 2048*4096)
    a(f"""v_and_b32 v{vt0}, 15, v{vL}
    s_and_b32 s{sA}, s{sV}, 1
    s_lshl_b32 s{sA}, s{sA}, 4
    v_add_u32 v{vt0}, s{sA}, v{vt0}
    v_lshlrev_b32 v{vt1}, 18, v{vt0}
    v_lshrrev_b32 v{vt2}, 4, v{vL}
    v_lshl_add_u32 v{vt1}, v{vt2}, 4, v{vt1}
    s_lshl_b32 s{sA}, s{sRb}, 12
    v_lshlrev_b32 v{vt0}, 2, v{vt0}
    s_lshl_b32 s{sB}, s{sRb}, 7
    s_add_u32 s{sB}, s{sB}, {GG}""")
    for k in range(4):
        r = sRe if k < 2 else sIm
        a.vmem(f"buffer_load_dwordx4 v[{W2+4*k}:{W2+4*k+3}], v{vt1}, s[{r}:{r+3}], s{sA} offen offset:{64*(k&1)}", "a")
    a.vmem(f"buffer_load_dword v{vG}, v{vt0}, s[{sWS}:{sWS+3}], s{sB} offen", "a")
    a(f"s_mul_i32 s{sA}, s{sV}, {36*1152}\ns_add_u32 s{sA}, s{sA}, s{sE}")
    for i in range(4):
        a(f"s_add_u32 s{sD}, s{sD}, 20480")
        dma5(vWm, sWo, sA)
        a(f"s_add_u32 s{sA}, s{sA}, {4*36*1152}")
    a(f"s_cmp_ge_u32 s{sV}, 2\ns_cbranch_scc1 k3_nox")
    a(f"s_mul_i32 s{sA}, s{sV}, {288*1152}\ns_add_u32 s{sA}, s{sA}, s{sE}\ns_add_u32 s{sD}, s{sD}, 20480")
    dma5(vWx, sWo, sA)
    a.label("k3_nox")
    a(f"""s_lshl_b32 s{sA}, s{sT1}, 2
    s_add_u32 s{sA}, s{sA}, s{sV}
    s_mul_i32 s{sA}, s{sA}, 18432
    s_add_u32 s{sA}, s{sA}, {OF}
    v_lshlrev_b32 v{vt0}, 4, v{vL}
    v_lshlrev_b32 v{vTr}, 3, v{vL}""")
    for ks in range(18):
        a(f"buffer_load_dwordx4 v[{OB+4*ks}:{OB+4*ks+3}], v{vt0}, s[{sWS}:{sWS+3}], s{sA} offen offset:{(ks&3)*1024}")
        if ks & 3 == 3: a(f"s_add_u32 s{sA}, s{sA}, 4096")
    srd(a, sOut, 22, 2048*1152)
    stamp(a, 1)
    a("s_waitcnt vmcnt(0)\ns_barrier")
    stamp(a, 2)
    NR = 7
    base = [0]
    def rd(f):
        if f - base[0] >= 64:
            a(f"v_add_u32 v{vTr}, 65536, v{vTr}"); base[0] += 64
        r = AR + 4 * (f % 8)
        a(f"ds_read_b64_tr_b16 v[{r}:{r+1}], v{vTr} offset:{(f-base[0])*1024}")
        a(f"ds_read_b64_tr_b16 v[{r+2}:{r+3}], v{vTr} offset:{(f-base[0])*1024+512}")
    for f in range(NR): rd(f)
    for f in range(110):
        ks, mu = divmod(f, 5)
        if f == 20:
            a("s_nop 3")
            for r in range(20): a(f"v_mul_f32 v{ACC+r}, v{ACC+r}, v{vG}")
        n = min(110, f + NR) - f - 1
        a(f"s_waitcnt lgkmcnt({2*n})")
        r = AR + 4 * (f % 8)
        B = W2 + 4*ks if ks < 4 else OB + 4*(ks-4)
        ac = ACC + 4*mu
        a(f"v_mfma_f32_16x16x32_bf16 v[{ac}:{ac+3}], v[{r}:{r+3}], v[{B}:{B+3}], " + ("0" if ks == 0 else f"v[{ac}:{ac+3}]"))
        if f + NR < 110: rd(f + NR)
    stamp(a, 3)
    a(f"""s_mul_i32 s{sA}, s{sV}, 2304
    s_add_u32 s{sA}, s{sA}, 112640
    v_and_b32 v{vt1}, 15, v{vL}
    v_mul_u32_u24 v{vt1}, 144, v{vt1}
    v_lshrrev_b32 v{vt2}, 4, v{vL}
    v_lshl_add_u32 v{vt1}, v{vt2}, 3, v{vt1}
    v_add_u32 v{vt1}, s{sA}, v{vt1}
    v_add_u32 v{vt0}, s{sA}, v{vt0}""")
    for mu in range(5):
        ac = ACC + 4*mu
        a(f"v_cvt_pk_bf16_f32 v{W2+2*mu}, v{ac}, v{ac+1}\nv_cvt_pk_bf16_f32 v{W2+2*mu+1}, v{ac+2}, v{ac+3}")
        if mu == 4: a("s_mov_b32 exec_hi, 0")
        a(f"ds_write_b64 v{vt1}, v[{W2+2*mu}:{W2+2*mu+1}] offset:{32*mu}")
    a(f"""s_mov_b32 exec_hi, -1
    s_and_b32 s{sA}, s{sV}, 1
    s_mul_i32 s{sA}, s{sA}, {16*73728}
    s_mul_i32 s{sB}, s{sRb}, 1152
    s_add_u32 s{sA}, s{sA}, s{sB}
    s_add_u32 s{sA}, s{sA}, s{sE}
    s_mov_b32 s{sB}, {73728-144}
    s_waitcnt lgkmcnt(0)""")
    for it in range(3):
        a(f"ds_read_b128 v[{OB+4*it}:{OB+4*it+3}], v{vt0} offset:{1024*it}")
    for it in range(3):
        a(f"""v_add_u32 v{vt1}, {64*it}, v{vL}
        v_mul_u32_u24 v{vt2}, 7282, v{vt1}
        v_lshrrev_b32 v{vt2}, 16, v{vt2}
        v_lshlrev_b32 v{vt1}, 4, v{vt1}
        v_mad_u32_u24 v{vGs+it}, v{vt2}, s{sB}, v{vt1}""")
    for it in range(3):
        a(f"s_waitcnt lgkmcnt({2-it})")
        if it == 2: a("s_mov_b64 exec, 0xffff")
        a(f"buffer_store_dwordx4 v[{OB+4*it}:{OB+4*it+3}], v{vGs+it}, s[{sOut}:{sOut+3}], s{sA} offen")
    stamp_end(a, 2, sWS, sV)
    a.label("k3_end")
    a("s_endpgm")
    a.label("k3_code_end")
    return a

def wave_max(a, v, s):
    for d in ("row_shr:1", "row_shr:2", "row_shr:4", "row_shr:8"):
        a("s_nop 1")
        a(f"v_max_f32_dpp v{v}, v{v}, v{v} {d} row_mask:0xf bank_mask:0xf")
    a("s_nop 1")
    a(f"v_max_f32_dpp v{v}, v{v}, v{v} row_bcast:15 row_mask:0xa bank_mask:0xf")
    a("s_nop 1")
    a(f"v_max_f32_dpp v{v}, v{v}, v{v} row_bcast:31 row_mask:0xc bank_mask:0xf")
    a("s_nop 0")
    a(f"v_readlane_b32 s{s}, v{v}, 63")
    a("s_nop 1")

def kd(name, vgpr, sgpr=102):
    return f""".p2align 6
.amdhsa_kernel {name}
  .amdhsa_next_free_vgpr {vgpr}
  .amdhsa_next_free_sgpr {sgpr}
  .amdhsa_accum_offset {(vgpr+3)//4*4}
  .amdhsa_group_segment_fixed_size 0
  .amdhsa_kernarg_size 112
  .amdhsa_user_sgpr_count 2
  .amdhsa_user_sgpr_kernarg_segment_ptr 1
  .amdhsa_system_sgpr_workgroup_id_x 1
.end_amdhsa_kernel
"""

def build(kernels):
    out = []
    for lab, a, g, b, lds, v in kernels:
        out.append(f"; @launch kernel={lab} grid=({g},1,1) block=({b},1,1) lds={lds}")
    out.append('.amdgcn_target "amdgcn-amd-amdhsa--gfx950"\n.text')
    for lab, a, g, b, lds, v in kernels:
        for p in check(a.lines): print(f"[{lab}] {p}", file=sys.stderr)
        out.append(f".globl {lab}\n.p2align 8\n.type {lab},@function\n{lab}:")
        out.append(a.text())
    out.append(".p2align 8\n.type rf_table,@object\nrf_table:")
    w = rf_table()
    for i in range(0, len(w), 8): out.append(".long " + ",".join(f"0x{x:08x}" for x in w[i:i+8]))
    out.append(".size rf_table, 4096")
    out.append('.section .rodata,"a"')
    for lab, a, g, b, lds, v in kernels: out.append(kd(lab, v))
    return "\n".join(out) + "\n"

def default_list():
    return [("k1_kernel", gen_k1(), 256, 384, K1_LDS, 96), ("k2_kernel", gen_k2(), 256, 768, K2_LDS, 112), ("k3_kernel", gen_k3(), 256, 256, K3_LDS, 152)]

if __name__ == "__main__":
    if len(sys.argv) > 2 and sys.argv[2] == "stamp": STAMP = True
    EXP.update(sys.argv[3:])
    ks = default_list()
    open(sys.argv[1] if len(sys.argv) > 1 else "out.s", "w").write(build(ks))
```

```python
import math, sys
import gen as G0
from gen import Asm, check, srd, f2u, bf16, CQ, GP, TILE, wave_max, load_rf, rf_table, kd
EP = 0x0
FL1, FL2, FL3 = 0x10000, 0x20000, 0x30000
KMG = 0x40000
KVG = 0x50000
OF = 0x100000
GT = 0x340000
XF = 0x800000
ST = 0x1200000
WS_SIZE = 0x1300000
G0.GT = GT; G0.ST = ST
OFFS, LMIN = 80.0, 2.0**-100
LX, LD, LW, LGATE, FLG = 0, 73728, 110592, 156672, 159744
F_KV, F_PRG, F_DUTY, F_S1, F_CNT2, F_CNT3, F_TA, F_S2, F_G = FLG, FLG+16, FLG+48, FLG+52, FLG+56, FLG+60, FLG+64, FLG+80, FLG+256
J1 = 20
def ltile(j): return LW + TILE*j if j < J1 else TILE*(j - J1)
PRIO = {0: 2, 32: 1, 60: 0}
SPIN = 400000
EXP = set()
stamp = lambda a, s: G0.stamp(a, s)

sWS, sRA, sRB, sRC, sRD = 8, 12, 40, 44, 48
sNon, sWave, sT1, sJ = 54, 56, 57, 58
sA, sB, sC, sD, sE, sF, sG, sH = 59, 60, 61, 62, 63, 64, 65, 66
sHi = 68
vL = 1

def lds_wait(a, lab, vaddr, vt, val):
    a.label(lab)
    a(f"ds_read_b32 v{vt}, v{vaddr}\ns_waitcnt lgkmcnt(0)\nv_cmp_gt_u32 vcc, {val}, v{vt}\ns_cbranch_vccnz {lab}")

def tag_wait(a, lab, vaddr, soff, n, vt, step=1024, sleep=2):
    a(f"s_mov_b32 s{sH}, 0")
    a.label(lab)
    for i in range(n): a(f"buffer_load_dwordx2 v[{vt+2*i}:{vt+2*i+1}], v{vaddr}, s[{sWS}:{sWS+3}], s{soff} offen offset:{i*step} sc1")
    a(f"s_add_u32 s{sH}, s{sH}, 1\ns_waitcnt vmcnt(0) lgkmcnt(0)")
    for i in range(n):
        a(f"v_cmp_ne_u64 {'vcc' if i == 0 else 's[6:7]'}, s[{sNon}:{sNon+1}], v[{vt+2*i}:{vt+2*i+1}]")
        if i: a("s_nop 0\ns_or_b64 vcc, vcc, s[6:7]")
    a(f"s_cbranch_vccz {lab}_ok\ns_cmp_ge_u32 s{sH}, {SPIN}\ns_cbranch_scc1 {lab}_ok\ns_sleep {sleep}\ns_branch {lab}")
    a.label(lab + "_ok")
    a.vm = []

def tag_signal(a, area, nrep, v0, v1):
    a(f"""s_lshl_b32 s{sG}, s{sT1}, 7
    s_lshl_b32 s{sH}, s{sJ}, 3
    s_add_u32 s{sG}, s{sG}, s{sH}
    s_add_u32 s{sG}, s{sG}, {area}
    v_lshlrev_b32 v{v0}, 12, v{vL}
    v_mov_b32 v{v1}, s{sNon}
    v_mov_b32 v{v1+1}, s{sNon+1}
    s_mov_b64 exec, {(1 << nrep) - 1}
    buffer_store_dwordx2 v[{v1}:{v1+1}], v{v0}, s[{sWS}:{sWS+3}], s{sG} offen sc1
    s_mov_b64 exec, -1""")

def last_wave_signals(a, lab, cnt, total, area, nrep, v0, v1):
    a(f"""s_waitcnt vmcnt(0)
    v_mov_b32 v{v0}, {cnt}
    v_mov_b32 v{v1}, 1
    s_mov_b64 exec, 1
    ds_add_rtn_u32 v{v1}, v{v0}, v{v1}
    s_waitcnt lgkmcnt(0)
    v_readfirstlane_b32 s{sG}, v{v1}
    s_mov_b64 exec, -1
    s_cmp_lg_u32 s{sG}, {total-1}
    s_cbranch_scc1 {lab}""")
    tag_signal(a, area, nrep, v0, v1)
    a.label(lab)
    a.vm = []

def xsrc(a, dst, t0, t1):
    a(f"""v_lshrrev_b32 v{t0}, 4, v{vL}
    v_xor_b32 v{t0}, v{t0}, v{vL}
    v_and_b32 v{t0}, 3, v{t0}
    v_lshlrev_b32 v{t0}, 4, v{t0}
    v_lshrrev_b32 v{t1}, 2, v{vL}
    s_mov_b32 s3, 73728
    v_mad_u32_u24 v{dst}, v{t1}, s3, v{t0}""")
def xread(a, r0, r1, t0, t1):
    a(f"""v_lshrrev_b32 v{t0}, 5, v{vL}
    v_lshrrev_b32 v{t1}, 2, v{vL}
    v_xor_b32 v{t0}, v{t0}, v{t1}
    v_and_b32 v{t0}, 3, v{t0}
    v_and_b32 v{t1}, 31, v{vL}
    v_lshlrev_b32 v{t1}, 6, v{t1}
    v_lshl_add_u32 v{r0}, v{t0}, 4, v{t1}""")
def wsrc(a, dst, sph, t0, t1):
    a(f"""s_lshl_b32 s3, s{sph}, 6
    v_add_u32 v{t0}, s3, v{vL}
    v_mul_u32_u24 v{t1}, 7282, v{t0}
    v_lshrrev_b32 v{t1}, 16, v{t1}
    v_lshlrev_b32 v{t0}, 4, v{t0}
    s_movk_i32 s3, {1152-144}
    v_mad_u32_u24 v{dst}, v{t1}, s3, v{t0}""")
def w_loads(a, vsrc, sph, chunks):
    for c in chunks:
        base = LW + 9216*c if c < 5 else LD + 9216*(c-5)
        a(f"s_lshl_b32 s3, s{sph}, 10\ns_add_u32 m0, s3, {base}")
        a(f"s_add_u32 s3, s{sA}, {c*73728}")
        a.vmem(f"buffer_load_dwordx4 v{vsrc}, s[{sRA}:{sRA+3}], s3 offen lds", "w1" if c < 5 else "w2")

def gen():
    a = Asm()
    a("s_cmp_ge_u32 s2, 256\ns_cbranch_scc1 f_end")
    stamp(a, 0)
    a("s_load_dwordx2 s[52:53], s[0:1], 104\ns_load_dwordx16 s[16:31], s[0:1], 0\ns_load_dwordx8 s[32:39], s[0:1], 64")
    G0.code_prefetch(a, 2, 127, "rf_end", "f_pf")
    a(f"""v_lshrrev_b32 v2, 6, v0
    v_and_b32 v{vL}, 63, v0
    v_readfirstlane_b32 s{sWave}, v2
    s_bfe_u32 s3, s2, 0x20003
    s_and_b32 s{sT1}, s2, 7
    s_lshl_b32 s3, s3, 3
    s_add_u32 s{sT1}, s{sT1}, s3
    s_lshr_b32 s{sJ}, s2, 5
    s_mov_b32 s{sHi}, 0
    s_mov_b32 s{sHi+1}, -1
    s_cmp_ge_u32 s{sWave}, 4
    s_cbranch_scc1 f_att
    s_setprio 3
    s_cmp_eq_u32 s{sWave}, 3
    s_cbranch_scc1 f_misc
    s_cmp_lg_u32 s{sWave}, 0
    s_cbranch_scc1 f_gate""")
    vm0 = list(a.vm)
    def common_srd():
        a("s_waitcnt lgkmcnt(0)")
        a(f"s_load_dwordx2 s[{sNon}:{sNon+1}], s[52:53], {EP}")
        srd(a, sWS, 52, WS_SIZE)
    def nonce():
        a(f"s_add_u32 s{sNon}, s{sNon}, 1")

    vXs, vDs, vR0, vR1, vD0, vD1, t0, t1, t2, t3 = 2, 3, 4, 5, 6, 7, 8, 9, 10, 11
    ACC, FR, R = 16, 32, 80
    sRb, sM, sXo, sDa, sDb, sDs, sGrp = 70, 71, 72, 73, 74, 75, 76
    xsrc(a, vXs, t0, t1)
    xread(a, vR0, vR1, t2, t3)
    a(f"""s_and_b32 s{sA}, s{sJ}, 1
    s_lshl_b32 s{sRb}, s{sA}, 5
    s_add_u32 s{sRb}, s{sRb}, s{sT1}
    s_mul_i32 s{sM}, s{sA}, 36864
    s_mul_i32 s{sXo}, s{sRb}, 1152
    s_cmp_ge_u32 s{sJ}, 4
    s_cbranch_scc1 f_dF""")
    a(f"""v_and_b32 v{t2}, 3, v{vL}
    v_mul_u32_u24 v{vDs}, 36, v{t1}
    v_lshl_add_u32 v{vDs}, v{t2}, 4, v{vDs}
    v_and_b32 v{t0}, 1, v{vL}
    v_bfe_u32 v{t3}, v{vL}, 1, 1
    v_lshl_or_b32 v{t0}, v{t0}, 1, v{t3}
    v_bfe_u32 v{t3}, v{vL}, 4, 1
    v_cmp_eq_u32 vcc, 0, v{t3}
    v_and_b32 v{vD0}, 3, v{t1}
    v_lshrrev_b32 v{vD1}, 5, v{vL}
    v_cndmask_b32 v{t0}, v{t2}, v{t0}, vcc
    v_lshl_add_u32 v{vD0}, v{vD1}, 3, v{vD0}
    v_lshlrev_b32 v{vD0}, 6, v{vD0}
    v_lshl_add_u32 v{vD0}, v{t3}, 5, v{vD0}
    v_lshl_add_u32 v{vD0}, v{t0}, 3, v{vD0}
    v_add_u32 v{vD0}, {LD}, v{vD0}
    s_mov_b32 s{sDa}, 0
    s_movk_i32 s{sDb}, 576
    s_movk_i32 s{sDs}, 1152""")
    common_srd()
    a(f"""s_cmp_lt_u32 s{sJ}, 2
    s_cselect_b32 s{sRB}, s30, s32
    s_cselect_b32 s{sRB+1}, s31, s33
    s_mov_b32 s{sRB+2}, {576*36}
    s_mov_b32 s{sRB+3}, 0x20000
    s_mov_b64 s[{sRC}:{sRC+1}], s[{sRB}:{sRB+1}]
    s_mov_b32 s{sRC+2}, {576*36}
    s_mov_b32 s{sRC+3}, 0x20000
    s_branch f_dI""")
    a.label("f_dF")
    a(f"""v_and_b32 v{t2}, 3, v{t1}
    v_bfe_u32 v{t3}, v{t1}, 2, 1
    v_lshl_add_u32 v{t2}, v{t3}, 3, v{t2}
    v_bfe_u32 v{t3}, v{t1}, 3, 1
    v_lshl_add_u32 v{t2}, v{t3}, 2, v{t2}
    s_movk_i32 s3, 1152
    v_mad_u32_u24 v{vDs}, v{t2}, s3, v{t0}
    v_add_u32 v{vD0}, {LD}, v{vR0}
    v_xor_b32 v{vD1}, 32, v{vD0}
    s_bfe_u32 s{sGrp}, s{sJ}, 0x10001
    s_add_u32 s{sGrp}, s{sGrp}, 16
    s_mul_i32 s{sDa}, s{sGrp}, {16*1152}
    s_mov_b32 s{sDb}, s{sDa}
    s_movk_i32 s{sDs}, 64""")
    common_srd()
    srd(a, sRB, 22, 576*1152); srd(a, sRC, 24, 576*1152)
    a.label("f_dI")
    srd(a, sRA, 16, 2048*1152)
    a(f"v_add_u32 v{vR0}, s{sM}, v{vR0}\nv_xor_b32 v{vR1}, 32, v{vR0}\ns_mov_b32 s{sB}, {LD}")
    def duty_issue():
        a(f"""s_mov_b32 m0, s{sM}
        s_add_u32 s3, s{sXo}, 1179648
        buffer_load_dwordx4 v{vXs}, s[{sRA}:{sRA+3}], s{sXo} offen lds
        s_add_u32 m0, s{sM}, 1024
        s_add_u32 s{sXo}, s{sXo}, 64
        buffer_load_dwordx4 v{vXs}, s[{sRA}:{sRA+3}], s3 offen lds
        s_mov_b32 m0, s{sB}
        s_add_u32 s{sM}, s{sM}, 2048
        buffer_load_dwordx4 v{vDs}, s[{sRB}:{sRB+3}], s{sDa} offen lds
        s_add_u32 m0, s{sB}, 1024
        s_add_u32 s{sDa}, s{sDa}, s{sDs}
        buffer_load_dwordx4 v{vDs}, s[{sRC}:{sRC+3}], s{sDb} offen lds
        s_add_u32 s{sDb}, s{sDb}, s{sDs}
        s_add_u32 s{sB}, s{sB}, 2048""")
    NPRE = 15
    a.label("f_dL")
    duty_issue()
    a(f"s_cmp_lt_u32 s{sB}, {LD + NPRE*2048}\ns_cbranch_scc1 f_dL")
    for s in range(NPRE): a.vm_note(f"d{s}", 4)
    stamp(a, 1)
    a("s_barrier")
    a(f"s_cmp_ge_u32 s{sJ}, 4\ns_cbranch_scc1 f_cF\ns_cmp_ge_u32 s{sJ}, 2\ns_cbranch_scc1 f_cV")
    vmd = list(a.vm)
    def duty_chain(kind):
        a.vm = list(vmd)
        def reads(s):
            b = FR + 16*(s & 1)
            for p in range(2):
                a(f"ds_read_b128 v[{b+8*p}:{b+8*p+3}], v{vR1 if p else vR0} offset:{2048*s}")
                if kind == "F": a(f"ds_read_b128 v[{b+8*p+4}:{b+8*p+7}], v{vD1 if p else vD0} offset:{2048*s}")
                else:
                    a(f"ds_read_b64_tr_b16 v[{b+8*p+4}:{b+8*p+5}], v{vD0} offset:{2048*s+1024*p}")
                    a(f"ds_read_b64_tr_b16 v[{b+8*p+6}:{b+8*p+7}], v{vD0} offset:{2048*s+1024*p+256}")
        n = 2 if kind == "F" else 3
        a.vm_wait("d0"); reads(0)
        for s in range(18):
            if s + NPRE < 18:
                duty_issue(); a.vm_note(f"d{s+NPRE}", 4)
                if kind == "F" and s == 2: load_rf(a, R, vL, t0, "f_rf0")
            if s + 1 < 18: a.vm_wait(f"d{s+1}"); reads(s + 1)
            b = FR + 16*(s & 1)
            for p in range(2):
                a(f"s_waitcnt lgkmcnt({(2*n if s + 1 < 18 else 0) + (n if p == 0 else 0)})")
                X, D = b + 8*p, b + 8*p + 4
                A, B = (D, X) if kind == "K" else (X, D)
                a(f"v_mfma_f32_32x32x16_bf16 v[{ACC}:{ACC+15}], v[{A}:{A+3}], v[{B}:{B+3}], " + ("0" if s + p == 0 else f"v[{ACC}:{ACC+15}]"))
        a(f"v_mov_b32 v{t0}, {F_DUTY}\nv_mov_b32 v{t1}, 1\nds_write_b32 v{t0}, v{t1}")
        nonce()
        stamp(a, 2)
    def kv_off():
        a(f"""s_and_b32 s{sA}, s{sJ}, 1
        s_lshl_b32 s{sB}, s{sT1}, 1
        s_add_u32 s{sA}, s{sA}, s{sB}
        s_mul_i32 s{sF}, s{sA}, {TILE}
        s_add_u32 s{sF}, s{sF}, {KVG}
        s_add_u32 s{sE}, s{sF}, {64*TILE}""")
    duty_chain("K")
    kv_off()
    a(f"v_lshlrev_b32 v{t0}, 4, v{vL}\nv_lshlrev_b32 v{t1}, 2, v{vL}\ns_nop 0")
    for k in range(5): a(f"v_cvt_pk_bf16_f32 v{FR+k}, v{ACC+2*k}, v{ACC+2*k+1}")
    for s in (sF, sE): a(f"buffer_store_dwordx4 v[{FR}:{FR+3}], v{t0}, s[{sWS}:{sWS+3}], s{s} offen sc1")
    a(f"v_mul_f32 v{t3}, v{ACC}, v{ACC}")
    for r in range(1, 8): a(f"v_fmac_f32 v{t3}, v{ACC+r}, v{ACC+r}")
    a("s_mov_b32 exec_hi, 0")
    for s in (sF, sE): a(f"buffer_store_dword v{FR+4}, v{t1}, s[{sWS}:{sWS+3}], s{s} offen offset:1024 sc1")
    a(f"""v_fmac_f32 v{t3}, v{ACC+8}, v{ACC+8}
    v_fmac_f32 v{t3}, v{ACC+9}, v{ACC+9}
    s_mov_b64 exec, -1
    v_mov_b32 v{t0}, v{t3}
    s_nop 1
    v_permlane32_swap_b32 v{t0}, v{t3}
    v_add_f32 v{t3}, v{t0}, v{t3}""")
    wave_max(a, t3, sB)
    a(f"""v_mov_b32 v{t3}, s{sB}
    v_lshlrev_b32 v{t0}, 8, v{vL}
    s_lshl_b32 s{sA}, s{sA}, 2
    s_add_u32 s{sA}, s{sA}, {KMG}
    s_mov_b64 exec, 3
    buffer_store_dword v{t3}, v{t0}, s[{sWS}:{sWS+3}], s{sA} offen sc1
    s_mov_b64 exec, -1
    s_branch f_dP""")
    a.label("f_cV")
    duty_chain("V")
    kv_off()
    a(f"""v_and_b32 v{t0}, 31, v{vL}
    v_lshrrev_b32 v{t2}, 5, v{vL}
    v_mul_u32_u24 v{t1}, 19, v{t2}
    v_add_u32 v{t1}, v{t1}, v{t0}
    v_cmp_eq_u32 vcc, 19, v{vL}
    v_mov_b32 v{t3}, 38
    v_cmp_eq_u32 s[6:7], 18, v{t0}
    v_cndmask_b32 v{t1}, v{t1}, v{t3}, vcc
    v_lshlrev_b32 v{t1}, 4, v{t1}
    v_mov_b32 v{t3}, 0x3f803f80""")
    for k in range(8): a(f"v_cvt_pk_bf16_f32 v{FR+k}, v{ACC+2*k}, v{ACC+2*k+1}")
    for k in range(8):
        a(f"v_cndmask_b32 v{FR+k}, v{FR+k}, v{t3}, s[6:7]")
        a(f"v_cndmask_b32 v{FR+k}, v{FR+k}, 0, vcc")
    a("s_mov_b32 exec_lo, 0xfffff\ns_mov_b32 exec_hi, 0x7ffff")
    for s in (sF, sE):
        a(f"buffer_store_dwordx4 v[{FR}:{FR+3}], v{t1}, s[{sWS}:{sWS+3}], s{s} offen offset:1152 sc1")
        a(f"buffer_store_dwordx4 v[{FR+4}:{FR+7}], v{t1}, s[{sWS}:{sWS+3}], s{s} offen offset:{1152+624} sc1")
    a("s_mov_b64 exec, -1")
    a.label("f_dP")
    a("s_barrier")
    a("s_waitcnt vmcnt(0)")
    tag_signal(a, FL1, 8, t0, t2)
    stamp(a, 3)
    a("s_branch f_hc")
    a.label("f_cF")
    duty_chain("F")
    a.vm_wait("rf")
    a("s_nop 6")
    G0.fnet_tail(a, ACC, FR, FR+16, R, FR+32, vL, sWS, sRb, sGrp, 76+1, None, sc="sc1")
    a("s_barrier")
    a.label("f_hc")
    a("s_barrier")
    sV = 70
    def kv_first(vt):
        a(f"""s_mul_i32 s{sA}, s{sT1}, {2*TILE}
        s_lshl_b32 s{sB}, s{sWave}, 12
        s_add_u32 m0, s{sB}, {LW}
        s_add_u32 s{sA}, s{sA}, s{sB}
        s_add_u32 s{sA}, s{sA}, {KVG}
        v_lshlrev_b32 v{vt}, 4, v{vL}""")
        for k in range(4): a.vmem(f"buffer_load_dwordx4 v{vt}, s[{sWS}:{sWS+3}], s{sA} offen offset:{1024*k} sc1 lds", "kv0")
    kv_first(t0)
    a("s_waitcnt vmcnt(0)\ns_branch f_hd")

    a.label("f_gate")
    a.vm = list(vm0)
    vGa, vAc, vSt = 6, 12, 7
    xsrc(a, vXs, t0, t1)
    xread(a, vR0, vR1, t2, t3)
    a(f"""s_sub_u32 s{sC}, s{sWave}, 1
    s_and_b32 s{sD}, s{sJ}, 1
    s_xor_b32 s{sA}, s{sD}, 1
    s_mul_i32 s{sB}, s{sA}, 36864
    s_lshl_b32 s3, s{sC}, 10
    s_add_u32 s{sB}, s{sB}, s3
    s_lshl_b32 s{sA}, s{sA}, 5
    s_add_u32 s{sA}, s{sA}, s{sT1}
    s_mul_i32 s{sA}, s{sA}, 1152
    s_mul_i32 s3, s{sC}, 1179648
    s_add_u32 s{sA}, s{sA}, s3
    s_mul_i32 s3, s{sC}, 36864
    v_add_u32 v{vR0}, s3, v{vR0}
    v_xor_b32 v{vR1}, 32, v{vR0}
    v_lshrrev_b32 v{vGa}, 5, v{vL}
    v_lshlrev_b32 v{vGa}, 4, v{vGa}
    v_add_u32 v{vGa}, {LGATE}, v{vGa}
    v_lshlrev_b32 v{vSt}, 4, v{vL}""")
    common_srd()
    srd(a, sRA, 16, 2048*1152)
    a("s_barrier")
    a(f"s_mov_b32 m0, s{sB}\ns_nop 0")
    for s in range(18):
        a.vmem(f"buffer_load_dwordx4 v{vXs}, s[{sRA}:{sRA+3}], s{sA} offen offset:{64*s} lds", "x")
        if s < 17: a("s_add_u32 m0, m0, 1984\ns_nop 0")
    a(f"""s_cmp_eq_u32 s{sC}, s{sD}
    s_mov_b64 s[{sRB}:{sRB+1}], s[52:53]
    s_cselect_b32 s{sRB+2}, {WS_SIZE}, 0
    s_mov_b32 s{sRB+3}, 0x20000
    s_mul_i32 s{sF}, s2, 36864
    s_add_u32 s{sF}, s{sF}, {XF}""")
    for r in range(4): a(f"v_mov_b32 v{vAc+r}, 0")
    a.vm_wait("x")
    a("s_waitcnt lgkmcnt(0)")
    nonce()
    a("s_barrier")
    def grd(ks):
        b = FR + 8*(ks % 4)
        a(f"ds_read_b128 v[{b}:{b+3}], v{vR1 if ks & 1 else vR0} offset:{2048*(ks>>1)}")
        a(f"ds_read_b128 v[{b+4}:{b+7}], v{vGa} offset:{32*ks}")
    for ks in range(3): grd(ks)
    for ks in range(36):
        if ks == 18:
            a("s_barrier")
            kv_first(t0)
        if ks + 3 < 36: grd(ks + 3)
        a(f"s_waitcnt lgkmcnt({2*min(3, 35-ks)})")
        b = FR + 8*(ks % 4)
        a.vmem(f"buffer_store_dwordx4 v[{b}:{b+3}], v{vSt}, s[{sRB}:{sRB+3}], s{sF} offen offset:{(ks&3)*1024}", "xf")
        for r in range(4): a(f"v_dot2_f32_bf16 v{vAc+r}, v{b+r}, v{b+4+r}, v{vAc+r}")
        if ks & 3 == 3: a(f"s_add_u32 s{sF}, s{sF}, 4096")
    a(f"""s_lshl_b32 s3, s{sC}, 7
    s_add_u32 s3, s3, {F_G}
    v_lshlrev_b32 v{t1}, 2, v{vL}
    v_add_f32 v{vAc}, v{vAc}, v{vAc+1}
    v_add_f32 v{vAc+2}, v{vAc+2}, v{vAc+3}
    v_add_f32 v{vAc}, v{vAc}, v{vAc+2}
    v_mov_b32 v{vAc+1}, v{vAc}
    v_add_u32 v{t1}, s3, v{t1}
    s_nop 0
    v_permlane32_swap_b32 v{vAc}, v{vAc+1}
    v_add_f32 v{vAc}, v{vAc}, v{vAc+1}
    v_mul_f32 v{vAc}, {f2u(-math.log2(math.e))}, v{vAc}
    v_exp_f32 v{vAc}, v{vAc}
    s_nop 0
    v_add_f32 v{vAc}, 1.0, v{vAc}
    v_rcp_f32 v{vAc}, v{vAc}
    s_mov_b32 exec_hi, 0
    ds_write_b32 v{t1}, v{vAc}
    s_mov_b32 exec_hi, -1""")
    a.vm_wait("kv0")
    a("s_waitcnt lgkmcnt(0)\ns_branch f_hd")

    a.label("f_misc")
    a.vm = list(vm0)
    a(f"""v_lshlrev_b32 v{t0}, 2, v{vL}
    v_add_u32 v{t0}, {FLG}, v{t0}
    v_mov_b32 v{t1}, 0
    ds_write_b32 v{t0}, v{t1}
    s_mov_b32 s{sC}, 8
    s_mul_i32 s{sA}, s{sJ}, 144""")
    wsrc(a, vXs, sC, t2, t3)
    a(f"v_lshlrev_b32 v{t0}, 4, v{vL}\nv_mov_b32 v{vR0}, {F_DUTY}")
    common_srd()
    srd(a, sRA, 28, 576*1152); srd(a, sRB, 36, 1152)
    a("s_barrier")
    a(f"s_mov_b32 m0, {LGATE}\ns_nop 0")
    a.vmem(f"buffer_load_dwordx4 v{t0}, s[{sRB}:{sRB+3}], 0 offen lds", "w1")
    a.vmem(f"buffer_load_dwordx4 v{t0}, s[{sRB}:{sRB+3}], 0 offen offset:1024 lds", "w1")
    w_loads(a, vXs, sC, range(5))
    a(f"""v_bfe_u32 v{t1}, v{vL}, 2, 2
    v_add_u32 v{t1}, s{sT1}, v{t1}
    v_and_b32 v{t1}, 31, v{t1}
    v_lshlrev_b32 v{t1}, 7, v{t1}
    v_and_b32 v{t2}, 3, v{vL}
    v_lshl_add_u32 v{t1}, v{t2}, 3, v{t1}
    s_and_b32 s{sD}, s{sT1}, 7
    s_lshl_b32 s{sD}, s{sD}, 12
    s_add_u32 s{sD}, s{sD}, {FL1}""")
    lds_wait(a, "f_m1", vR0, t2, 1)
    nonce()
    w_loads(a, vXs, sC, range(5, 9))
    a.vm_wait("w1")
    a("s_barrier")
    stamp(a, 1)
    tag_wait(a, "f_m2", t1, sD, 1, FR)
    stamp(a, 2)
    a("s_barrier")
    kv_first(t0)
    vF = 4
    a(f"""v_lshrrev_b32 v{t1}, 2, v{vL}
    v_lshlrev_b32 v{t1}, 7, v{t1}
    v_and_b32 v{t2}, 3, v{vL}
    v_lshl_add_u32 v{t1}, v{t2}, 3, v{t1}
    buffer_load_dwordx2 v[{FR}:{FR+1}], v{t1}, s[{sWS}:{sWS+3}], s{sD} offen sc1
    buffer_load_dwordx2 v[{FR+2}:{FR+3}], v{t1}, s[{sWS}:{sWS+3}], s{sD} offen offset:2048 sc1
    v_mov_b32 v{vF}, {F_S1}
    v_mov_b32 v{t2}, 1
    s_waitcnt vmcnt(0)
    v_cmp_ne_u64 vcc, s[{sNon}:{sNon+1}], v[{FR}:{FR+1}]
    v_cmp_ne_u64 s[6:7], s[{sNon}:{sNon+1}], v[{FR+2}:{FR+3}]
    s_nop 0
    s_or_b64 vcc, vcc, s[6:7]
    s_cbranch_vccnz f_m4
    ds_write_b32 v{vF}, v{t2}
    s_waitcnt lgkmcnt(0)
    s_branch f_hd""")
    a.label("f_m4")
    a("s_barrier")
    tag_wait(a, "f_m3", t1, sD, 2, FR, step=2048)
    a(f"ds_write_b32 v{vF}, v{t2}\ns_branch f_h1")
    a.label("f_hd")
    a.vm = []
    a("s_barrier")
    a.label("f_h1")
    stamp(a, 4)
    a(f"v_mov_b32 v{vF}, {F_S1}")
    lds_wait(a, "f_h2", vF, t1, 1)
    a(f"""s_mul_i32 s{sA}, s{sT1}, {2*TILE}
    s_add_u32 s{sA}, s{sA}, {KVG}
    s_lshl_b32 s{sB}, s{sWave}, 12
    s_add_u32 s{sA}, s{sA}, s{sB}
    s_lshl_b32 s3, s{sWave}, 2
    s_add_u32 s3, s3, {F_KV}
    v_mov_b32 v{vF}, s3""")
    def grp(src, dst, tag):
        a(f"s_add_u32 m0, s{sB}, {dst}\ns_add_u32 s3, s{sA}, {src}")
        for k in range(4): a.vmem(f"buffer_load_dwordx4 v{t0}, s[{sWS}:{sWS+3}], s3 offen offset:{1024*k} sc1 lds", tag)
    def kvflag(tag, val):
        a(f"v_mov_b32 v{t1}, {val}")
        a.vm_wait(tag)
        a(f"ds_write_b32 v{vF}, v{t1}")
    P2 = J1*TILE
    grp(16384, LW + 16384, "c1"); grp(32768, LW + 32768, "c2"); grp(P2, 0, "p0")
    kvflag("c1", 1)
    grp(P2 + 16384, 16384, "p1"); grp(P2 + 32768, 32768, "p2")
    kvflag("p0", 2)
    for i in (3, 4, 5): grp(P2 + 16384*i, 16384*i, f"p{i}")
    a(f"s_cmp_ge_u32 s{sWave}, 2\ns_cbranch_scc1 f_h3")
    grp(P2 + 16384*6, 16384*6, "p6")
    a.label("f_h3")
    a(f"v_mov_b32 v{t1}, 3\ns_waitcnt vmcnt(0)\nds_write_b32 v{vF}, v{t1}")
    a.vm = []
    H, R, RING = 16, 32, 48
    sS2, sGrp = 70, 71
    vP = 12
    load_rf(a, R, vL, t0, "f_rf1")
    a(f"""s_and_b32 s{sS2}, s{sJ}, 1
    s_lshl_b32 s{sS2}, s{sS2}, 5
    s_add_u32 s{sS2}, s{sS2}, s{sT1}
    s_lshr_b32 s{sGrp}, s{sJ}, 1
    s_lshl_b32 s{sGrp}, s{sGrp}, 2
    s_add_u32 s{sGrp}, s{sGrp}, s{sWave}
    s_mul_i32 s{sA}, s2, 36864
    s_add_u32 s{sA}, s{sA}, {XF}
    v_and_b32 v{t1}, 3, v{vL}
    v_bfe_u32 v{t2}, v{vL}, 2, 1
    v_lshl_add_u32 v{t1}, v{t2}, 3, v{t1}
    v_bfe_u32 v{t2}, v{vL}, 3, 1
    v_lshl_add_u32 v{t1}, v{t2}, 2, v{t1}
    s_lshl_b32 s3, s{sGrp}, 4
    v_add_u32 v{t1}, s3, v{t1}
    s_cmp_eq_u32 s{sGrp}, 0
    s_cselect_b32 s6, 0x10000, 0
    s_mov_b32 s7, s6
    v_mov_b32 v{t2}, 288
    v_cndmask_b32 v{t1}, v{t1}, v{t2}, s[6:7]
    v_mul_u32_u24 v{t1}, 1152, v{t1}
    v_lshrrev_b32 v{t2}, 5, v{vL}
    v_lshl_add_u32 v{t1}, v{t2}, 4, v{t1}
    s_or_b32 s6, s6, 0xffff
    s_mov_b32 s7, s6
    v_mov_b32 v{vP}, s24
    v_mov_b32 v{vP+1}, s25
    v_mov_b32 v{t2}, s22
    v_mov_b32 v{t3}, s23
    v_cndmask_b32 v{vP}, v{vP}, v{t2}, s[6:7]
    v_cndmask_b32 v{vP+1}, v{vP+1}, v{t3}, s[6:7]
    v_add_co_u32 v{vP}, vcc, v{vP}, v{t1}
    v_and_b32 v{vF}, 3, v{vL}
    v_lshlrev_b32 v{vF}, 2, v{vF}
    v_addc_co_u32 v{vP+1}, vcc, 0, v{vP+1}, vcc
    v_add_u32 v{vF}, {F_KV}, v{vF}""")
    ND = 8
    def ldD(ks):
        r = RING + 8 * (ks % ND)
        a.vmem(f"global_load_dwordx4 v[{r+4}:{r+7}], v[{vP}:{vP+1}], off offset:{32*ks}", f"j{ks}")
    def ldX(ks):
        r = RING + 8 * (ks % ND)
        a.vmem(f"buffer_load_dwordx4 v[{r}:{r+3}], v{t0}, s[{sWS}:{sWS+3}], s{sA} offen offset:{(ks&3)*1024}", f"j{ks}")
        if ks & 3 == 3: a(f"s_add_u32 s{sA}, s{sA}, 4096")
    lds_wait(a, "f_h4", vF, t1, 3)
    stamp(a, 5)
    if 'nojob' not in EXP:
        for ks in range(ND): ldD(ks); ldX(ks)
        for ks in range(36):
            r = RING + 8 * (ks % ND)
            a.vm_wait(f"j{ks}")
            a(f"v_mfma_f32_32x32x16_bf16 v[{H}:{H+15}], v[{r}:{r+3}], v[{r+4}:{r+7}], " + ("0" if ks == 0 else f"v[{H}:{H+15}]"))
            if ks + ND < 36: ldD(ks + ND); ldX(ks + ND)
        a("s_nop 11")
        G0.fnet_tail(a, H, RING, RING+16, R, RING+32, vL, sWS, sS2, sGrp, 72, "f_nony", sc="sc1")
    last_wave_signals(a, "f_h5", F_CNT2, 4, FL2, 8, t1, t2)
    stamp(a, 6)
    vGs, vWm, vWx, vG, vTr, vPr = 6, 7, 12, 13, 14, 15
    ACC, W2, OB, AR = 16, 36, 52, 124
    sRb, sCol = 70, 71
    a(f"""v_and_b32 v{t0}, 24, v{vL}
    v_lshrrev_b32 v{t1}, 5, v{vL}
    v_lshl_add_u32 v{t0}, v{t1}, 2, v{t0}
    v_bfe_u32 v{t1}, v{vL}, 1, 2
    v_add_u32 v{t0}, v{t0}, v{t1}
    v_and_b32 v{t1}, 1, v{vL}
    v_lshlrev_b32 v{t1}, 4, v{t1}
    s_movk_i32 s3, {GP}
    v_mad_u32_u24 v{vGs}, v{t0}, s3, v{t1}
    v_lshrrev_b32 v{t2}, 4, v{t0}
    v_lshl_add_u32 v{t2}, v{t2}, 1, v{t0}
    s_movk_i32 s3, 1152
    v_mad_u32_u24 v{vWm}, v{t2}, s3, v{t1}
    v_lshrrev_b32 v{t2}, 1, v{t0}
    v_lshl_add_u32 v{t2}, v{t2}, 4, v{t0}
    v_add_u32 v{t2}, 16, v{t2}
    v_mad_u32_u24 v{vWx}, v{t2}, s3, v{t1}
    s_lshr_b32 s{sRb}, s{sWave}, 1
    s_lshl_b32 s{sRb}, s{sRb}, 5
    s_add_u32 s{sRb}, s{sRb}, s{sT1}
    s_mul_i32 s{sCol}, s{sJ}, 144
    v_and_b32 v{vPr}, 7, v{vL}
    v_lshlrev_b32 v{vPr}, 2, v{vPr}
    v_add_u32 v{vPr}, {F_PRG}, v{vPr}""")
    srd(a, sRA, 34, 576*1152); srd(a, sRB, 18, 2048*4096); srd(a, sRC, 20, 2048*4096); srd(a, sRD, 38, 2048*1152)
    a(f"""v_and_b32 v{t0}, 15, v{vL}
    s_and_b32 s{sA}, s{sWave}, 1
    s_lshl_b32 s{sA}, s{sA}, 4
    v_add_u32 v{t0}, s{sA}, v{t0}
    v_lshlrev_b32 v{t1}, 18, v{t0}
    v_lshrrev_b32 v{t2}, 4, v{vL}
    v_lshl_add_u32 v{t1}, v{t2}, 4, v{t1}
    s_lshl_b32 s{sA}, s{sRb}, 12
    s_lshr_b32 s{sB}, s{sWave}, 1
    s_lshl_b32 s{sB}, s{sB}, 7
    s_add_u32 s{sB}, s{sB}, {F_G}
    v_lshlrev_b32 v{t0}, 2, v{t0}
    v_add_u32 v{t0}, s{sB}, v{t0}
    ds_read_b32 v{vG}, v{t0}""")
    for k in range(4):
        r = sRB if k < 2 else sRC
        a(f"buffer_load_dwordx4 v[{W2+4*k}:{W2+4*k+3}], v{t1}, s[{r}:{r+3}], s{sA} offen offset:{64*(k&1)}")
    def dma5(v, r, soff, sc=""):
        for mu in range(5):
            a(f"s_mov_b32 m0, s{sD}\ns_nop 0" if mu == 0 else "s_add_u32 m0, m0, 992\ns_nop 0")
            a(f"buffer_load_dwordx4 v{v}, s[{r}:{r+3}], s{soff} offen offset:{32*mu} {sc} lds")
    KS = 36*1152
    a(f"s_mul_i32 s{sA}, s{sWave}, {KS}\ns_add_u32 s{sA}, s{sA}, s{sCol}\ns_mul_i32 s{sC}, s{sWave}, 5120")
    lds_wait(a, "f_t1", vPr, t0, 1)
    a(f"s_add_u32 s{sD}, s{sC}, {LW}"); dma5(vWm, sRA, sA)
    a(f"s_add_u32 s{sD}, s{sD}, 20480\ns_add_u32 s{sB}, s{sA}, {4*KS}"); dma5(vWm, sRA, sB)
    a(f"s_cmp_lg_u32 s{sWave}, 0\ns_cbranch_scc1 f_t2")
    a(f"s_add_u32 s{sD}, s{sD}, 20480\ns_add_u32 s{sB}, s{sA}, {8*KS}"); dma5(vWm, sRA, sB)
    a.label("f_t2")
    lds_wait(a, "f_t3", vPr, t0, 2)
    a(f"s_mov_b32 s{sD}, s{sC}\ns_add_u32 s{sB}, s{sA}, {9*KS}"); dma5(vWm, sRA, sB)
    a(f"s_cmp_lg_u32 s{sWave}, 0\ns_cbranch_scc1 f_t4")
    a(f"s_mov_b32 s{sD}, 20480\ns_add_u32 s{sB}, s{sA}, {13*KS}"); dma5(vWm, sRA, sB)
    a.label("f_t4")
    a(f"v_mov_b32 v{vF}, {F_S2}\ns_cmp_lg_u32 s{sWave}, 3\ns_cbranch_scc1 f_t5")
    a(f"""v_lshrrev_b32 v{t1}, 3, v{vL}
    v_lshlrev_b32 v{t1}, 7, v{t1}
    v_and_b32 v{t2}, 7, v{vL}
    v_lshl_add_u32 v{t1}, v{t2}, 3, v{t1}
    s_and_b32 s{sD}, s{sT1}, 7
    s_lshl_b32 s{sD}, s{sD}, 12
    s_add_u32 s{sD}, s{sD}, {FL2}""")
    tag_wait(a, "f_t6", t1, sD, 4, OB, sleep=8)
    a(f"""v_mov_b32 v{t1}, 1
    ds_write_b32 v{vF}, v{t1}
    s_cmp_lg_u32 s2, 0
    s_cbranch_scc1 f_t5
    v_mov_b32 v{t0}, {EP}
    v_mov_b32 v{t2}, s{sNon}
    v_mov_b32 v{t3}, s{sNon+1}
    s_mov_b64 exec, 1
    buffer_store_dwordx2 v[{t2}:{t3}], v{t0}, s[{sWS}:{sWS+3}], 0 offen
    s_mov_b64 exec, -1""")
    a.label("f_t5")
    a(f"""s_cmp_lt_u32 s{sWave}, 2
    s_cselect_b64 s[6:7], -1, 0
    s_mov_b32 s{sB}, {288*1152}
    s_mov_b32 s3, {(-2*288*1152) & 0xffffffff}
    s_cmov_b32 s{sB}, {KS}
    s_cmov_b32 s3, {14*KS}
    s_mul_i32 s{sB}, s{sB}, s{sWave}
    s_add_u32 s{sB}, s{sB}, s3
    s_add_u32 s{sB}, s{sB}, s{sCol}
    v_cndmask_b32 v{vWx}, v{vWx}, v{vWm}, s[6:7]
    s_mul_i32 s{sA}, s{sT1}, {128*GP}
    s_mul_i32 s3, s{sWave}, {32*GP}
    s_add_u32 s{sA}, s{sA}, s3
    s_add_u32 s{sA}, s{sA}, {GT}
    s_add_u32 s{sA}, s{sA}, s{sCol}""")
    lds_wait(a, "f_t7", vPr, t0, 3)
    a(f"s_add_u32 s{sD}, s{sC}, {25*1024}"); dma5(vWx, sRA, sB)
    lds_wait(a, "f_t8", vF, t0, 1)
    a(f"s_add_u32 s{sD}, s{sC}, {45*1024}"); dma5(vGs, sWS, sA, "sc1")
    a(f"""s_lshl_b32 s3, s{sWave}, 2
    s_add_u32 s3, s3, {F_TA}
    v_mov_b32 v{t0}, s3
    v_mov_b32 v{t1}, 1
    v_and_b32 v{vF}, 3, v{vL}
    v_lshlrev_b32 v{vF}, 2, v{vF}
    v_add_u32 v{vF}, {F_TA}, v{vF}
    v_lshlrev_b32 v{vTr}, 3, v{vL}
    v_add_u32 v{vPr}, {LW}, v{vTr}
    v_add_u32 v{vGs}, {45*1024}, v{vTr}
    s_waitcnt vmcnt(0)
    ds_write_b32 v{t0}, v{t1}""")
    lds_wait(a, "f_t9", vF, t1, 1)
    NR = 7
    def rd(f):
        ks, mu = divmod(f, 5)
        if ks < 4: v, o = vGs, f * 1024
        elif ks < 13: v, o = vPr, (f - 20) * 1024
        else: v, o = vTr, (f - 65) * 1024
        r = AR + 4 * (f % 8)
        a(f"ds_read_b64_tr_b16 v[{r}:{r+1}], v{v} offset:{o}")
        a(f"ds_read_b64_tr_b16 v[{r+2}:{r+3}], v{v} offset:{o+512}")
    for f in range(NR): rd(f)
    for f in range(110):
        ks, mu = divmod(f, 5)
        if f == 20:
            a("s_nop 3")
            for r in range(20): a(f"v_mul_f32 v{ACC+r}, v{ACC+r}, v{vG}")
            a(f"""v_and_b32 v{t1}, 7, v{vL}
            v_lshlrev_b32 v{t1}, 3, v{t1}
            s_lshl_b32 s{sD}, s{sWave}, 12
            s_lshl_b32 s3, s{sT1}, 7
            s_add_u32 s{sD}, s{sD}, s3
            s_add_u32 s{sD}, s{sD}, {FL3}
            s_lshl_b32 s{sA}, s{sT1}, 2
            s_add_u32 s{sA}, s{sA}, s{sWave}
            s_mul_i32 s{sA}, s{sA}, 18432
            s_add_u32 s{sA}, s{sA}, {OF}
            v_lshlrev_b32 v{t0}, 4, v{vL}""")
            stamp(a, 1)
            tag_wait(a, "f_t10", t1, sD, 1, W2, sleep=1)
            stamp(a, 2)
            for k in range(18):
                a.vmem(f"buffer_load_dwordx4 v[{OB+4*k}:{OB+4*k+3}], v{t0}, s[{sWS}:{sWS+3}], s{sA} offen offset:{(k&3)*1024} sc1", f"o{k}")
                if k & 3 == 3: a(f"s_add_u32 s{sA}, s{sA}, 4096")
        if ks >= 4 and mu == 0: a.vm_wait(f"o{ks-4}")
        n = min(110, f + NR) - f - 1
        a(f"s_waitcnt lgkmcnt({2*n})")
        r = AR + 4 * (f % 8)
        B = W2 + 4*ks if ks < 4 else OB + 4*(ks-4)
        ac = ACC + 4*mu
        a(f"v_mfma_f32_16x16x32_bf16 v[{ac}:{ac+3}], v[{r}:{r+3}], v[{B}:{B+3}], " + ("0" if ks == 0 else f"v[{ac}:{ac+3}]"))
        if f + NR < 110: rd(f + NR)
    stamp(a, 3)
    a(f"""s_mul_i32 s{sA}, s{sWave}, 2304
    s_add_u32 s{sA}, s{sA}, {65*1024}
    v_and_b32 v{t1}, 15, v{vL}
    v_mul_u32_u24 v{t1}, 144, v{t1}
    v_lshrrev_b32 v{t2}, 4, v{vL}
    v_lshl_add_u32 v{t1}, v{t2}, 3, v{t1}
    v_add_u32 v{t1}, s{sA}, v{t1}
    v_add_u32 v{t0}, s{sA}, v{t0}""")
    for mu in range(5):
        ac = ACC + 4*mu
        a(f"v_cvt_pk_bf16_f32 v{W2+2*mu}, v{ac}, v{ac+1}\nv_cvt_pk_bf16_f32 v{W2+2*mu+1}, v{ac+2}, v{ac+3}")
        if mu == 4: a("s_mov_b32 exec_hi, 0")
        a(f"ds_write_b64 v{t1}, v[{W2+2*mu}:{W2+2*mu+1}] offset:{32*mu}")
    a(f"""s_mov_b32 exec_hi, -1
    s_and_b32 s{sA}, s{sWave}, 1
    s_mul_i32 s{sA}, s{sA}, {16*73728}
    s_mul_i32 s{sB}, s{sRb}, 1152
    s_add_u32 s{sA}, s{sA}, s{sB}
    s_add_u32 s{sA}, s{sA}, s{sCol}
    s_mov_b32 s{sB}, {73728-144}
    s_waitcnt lgkmcnt(0)""")
    for it in range(3): a(f"ds_read_b128 v[{OB+4*it}:{OB+4*it+3}], v{t0} offset:{1024*it}")
    for it in range(3):
        a(f"""v_add_u32 v{t1}, {64*it}, v{vL}
        v_mul_u32_u24 v{t2}, 7282, v{t1}
        v_lshrrev_b32 v{t2}, 16, v{t2}
        v_lshlrev_b32 v{t1}, 4, v{t1}
        v_mad_u32_u24 v{12+it}, v{t2}, s{sB}, v{t1}""")
    for it in range(3):
        a(f"s_waitcnt lgkmcnt({2-it})")
        if it == 2: a("s_mov_b64 exec, 0xffff")
        a(f"buffer_store_dwordx4 v[{OB+4*it}:{OB+4*it+3}], v{12+it}, s[{sRD}:{sRD+3}], s{sA} offen")
    G0.stamp_end(a, 0, sWS, sWave)
    a("s_endpgm")

    a.label("f_att")
    a.vm = list(vm0)
    Q1, Q2, vG, aK, ak, aV = 4, 8, 10, 11, 12, 13
    vt0, vt1, vt2, vt3 = 2, 3, 14, 15
    O, S, P, K1, K2, V = 16, [32, 48], [64, 72], [80, 84], [88, 90], [92, 100]
    aF, aP = 108, 109
    vW, vR0, vR1, vA0, vA1 = 110, 111, 112, 113, 114
    sW8, sRho, sHd = 70, 71, 72
    a(f"s_sub_u32 s{sW8}, s{sWave}, 4\ns_mul_i32 s{sA}, s{sJ}, 144")
    wsrc(a, vW, sW8, vt0, vt1)
    common_srd()
    srd(a, sRA, 28, 576*1152)
    a("s_barrier")
    w_loads(a, vW, sW8, range(5))
    xread(a, vR0, vR1, vt0, vt1)
    a(f"""s_lshr_b32 s{sRho}, s{sW8}, 2
    s_and_b32 s{sHd}, s{sW8}, 3
    s_mul_i32 s3, s{sRho}, 36864
    v_add_u32 v{vR0}, s3, v{vR0}
    v_xor_b32 v{vR1}, 32, v{vR0}
    s_bitcmp1_b32 s{sHd}, 0
    s_mov_b32 s{sB}, 0x34343120
    s_mov_b32 s{sC}, {LW}
    s_cmov_b32 s{sB}, 0x44423120
    s_cmov_b32 s{sC}, {LW-4}
    s_mul_i32 s3, s{sHd}, 36
    s_add_u32 s{sC}, s{sC}, s3
    v_bfe_u32 v{vt0}, v{vL}, 4, 1
    v_and_b32 v{vt1}, 3, v{vL}
    v_lshl_add_u32 v{vt0}, v{vt0}, 2, v{vt1}
    v_lshlrev_b32 v{vt0}, 2, v{vt0}
    v_lshrrev_b32 v{vt0}, v{vt0}, s{sB}
    v_and_b32 v{vt0}, 15, v{vt0}
    v_bfe_u32 v{vt1}, v{vL}, 2, 2
    v_lshrrev_b32 v{vt3}, 5, v{vL}
    v_lshl_add_u32 v{vt1}, v{vt3}, 3, v{vt1}
    v_mul_u32_u24 v{vt1}, 144, v{vt1}
    v_lshl_add_u32 v{vA0}, v{vt0}, 3, v{vt1}
    v_add_u32 v{vA0}, s{sC}, v{vA0}
    v_subrev_u32 v{vA1}, {LW-LD}, v{vA0}
    v_mov_b32 v{aF}, {F_DUTY}""")
    lds_wait(a, "f_a1", aF, vt0, 1)
    nonce()
    w_loads(a, vW, sW8, range(5, 9))
    a(f"""v_and_b32 v{vt2}, 31, v{vL}
    v_lshlrev_b32 v{ak}, 2, v{vt2}
    v_and_b32 v{aF}, 3, v{vL}
    v_lshlrev_b32 v{aF}, 2, v{aF}
    v_add_u32 v{aF}, {F_KV}, v{aF}
    s_lshl_b32 s3, s{sW8}, 2
    s_add_u32 s3, s3, {F_PRG}
    v_mov_b32 v{aP}, s3
    v_lshlrev_b32 v{aK}, 4, v{vL}
    v_add_u32 v{aK}, {LW}, v{aK}
    v_add_u32 v{ak}, {LW+1024}, v{ak}
    v_cmp_eq_u32 vcc, 28, v{vt2}
    v_mul_u32_u24 v{vt0}, 19, v{vt3}
    s_nop 0
    v_cndmask_b32 v{aV}, v{vt2}, 18, vcc
    v_cmp_gt_u32 vcc, 19, v{aV}
    v_add_u32 v{aV}, v{aV}, v{vt0}
    s_nop 0
    v_cndmask_b32 v{aV}, 38, v{aV}, vcc
    v_lshlrev_b32 v{aV}, 4, v{aV}
    v_add_u32 v{aV}, {LW+1152}, v{aV}""")
    a.vm_wait("w1")
    a("s_barrier")
    stamp(a, 1)
    QA, QR = S[0], 64
    def qrd(ks):
        b = QR + 8*(ks % 5); c = ks >> 2
        v, o = (vA0, 9216*c) if c < 5 else (vA1, 9216*(c-5))
        o += 2304*(ks & 3)
        a(f"ds_read_b64_tr_b16 v[{b}:{b+1}], v{v} offset:{o}")
        a(f"ds_read_b64_tr_b16 v[{b+2}:{b+3}], v{v} offset:{o+576}")
        a(f"ds_read_b128 v[{b+4}:{b+7}], v{vR1 if ks & 1 else vR0} offset:{2048*(ks>>1)}")
    def qpart(k0, k1):
        for ks in range(k0, min(k0 + 4, k1)): qrd(ks)
        for ks in range(k0, k1):
            if ks + 4 < k1: qrd(ks + 4)
            a(f"s_waitcnt lgkmcnt({3*min(4, k1-1-ks)})")
            b = QR + 8*(ks % 5)
            a(f"v_mfma_f32_32x32x16_bf16 v[{QA}:{QA+15}], v[{b}:{b+3}], v[{b+4}:{b+7}], " + ("0" if ks == 0 else f"v[{QA}:{QA+15}]"))
    qpart(0, 20)
    a.vm_wait("w2")
    a("s_barrier")
    stamp(a, 2)
    a(f"""s_lshl_b32 s3, s{sT1}, 3
    s_add_u32 s3, s3, {KMG}
    v_and_b32 v{vt0}, 7, v{vL}
    v_lshlrev_b32 v{vt0}, 2, v{vt0}""")
    a.vmem(f"buffer_load_dword v{vW}, v{vt0}, s[{sWS}:{sWS+3}], s3 offen sc1", "km")
    qpart(20, 36)
    for r in range(16): a(f"v_mov_b32 v{O+r}, 0")
    a(f"s_mov_b32 s{sB}, {f2u(CQ)}\ns_bitcmp1_b32 s{sHd}, 0\ns_cbranch_scc1 f_qodd")
    T = S[1]
    def qmove(r0, rx):
        for r in range(8): a(f"v_mul_f32 v{T+r}, s{sB}, v{QA+r0+r}")
        for r in range(2): a(f"v_mul_f32 v{T+8+r}, s{sB}, v{QA+rx+r}")
    qmove(0, 8)
    a("s_branch f_qdone")
    a.label("f_qodd")
    qmove(2, 14)
    a.label("f_qdone")
    for r in range(2): a(f"v_cndmask_b32 v{T+8+r}, v{T+8+r}, 0, s[{sHi}:{sHi+1}]")
    a(f"v_mul_f32 v{vt0}, v{T}, v{T}")
    for r in range(1, 10): a(f"v_fmac_f32 v{vt0}, v{T+r}, v{T+r}")
    for k in range(5): a(f"v_cvt_pk_bf16_f32 v{Q1+k}, v{T+2*k}, v{T+2*k+1}")
    a(f"v_mov_b32 v{vt1}, v{vt0}")
    a.vm_wait("km")
    wave_max(a, vW, sA)
    a(f"""v_permlane32_swap_b32 v{vt0}, v{vt1}
    v_sqrt_f32 v{vt3}, s{sA}
    v_add_f32 v{vt0}, v{vt0}, v{vt1}
    v_sqrt_f32 v{vt0}, v{vt0}
    v_mov_b32 v{vt2}, {f2u(OFFS)}
    v_cvt_pk_bf16_f32 v{K2[0]+1}, -v{vt3}, v{vt2}
    v_cvt_pk_bf16_f32 v{Q2+1}, v{vt0}, 1.0
    v_mov_b32 v{K2[1]+1}, v{K2[0]+1}
    v_cndmask_b32 v{Q2+1}, v{Q2+1}, 0, s[{sHi}:{sHi+1}]
    s_barrier
    s_setprio {PRIO[0]}""")
    stamp(a, 3)
    base = {aK: LW, ak: LW, aV: LW}
    def off(v, j, extra=0):
        o = ltile(j) + extra - base[v]
        if not 0 <= o < 65536:
            nb = ltile(j)
            a(f"v_add_u32 v{v}, {(nb - base[v]) & 0xffffffff}, v{v}")
            base[v] = nb; o = extra
        return o
    rdK = lambda j: f"ds_read_b128 v[{K1[j&1]}:{K1[j&1]+3}], v{aK} offset:{off(aK, j)}"
    rdk = lambda j: f"ds_read_b32 v{K2[j&1]}, v{ak} offset:{off(ak, j)}"
    rdV = lambda j, u: f"ds_read_b128 v[{V[j&1]+4*u}:{V[j&1]+4*u+3}], v{aV} offset:{off(aV, j, 624) - 624*(1-u)}"
    def M1(j): return f"v_mfma_f32_32x32x16_bf16 v[{S[j&1]}:{S[j&1]+15}], v[{K1[j&1]}:{K1[j&1]+3}], v[{Q1}:{Q1+3}], 0"
    def M2(j): return f"v_mfma_f32_32x32x8_bf16 v[{S[j&1]}:{S[j&1]+15}], v[{K2[j&1]}:{K2[j&1]+1}], v[{Q2}:{Q2+1}], v[{S[j&1]}:{S[j&1]+15}]"
    def M3(j, u): return f"v_mfma_f32_32x32x16_bf16 v[{O}:{O+15}], v[{V[j&1]+4*u}:{V[j&1]+4*u+3}], v[{P[j&1]+4*u}:{P[j&1]+4*u+3}], v[{O}:{O+15}]"
    a(rdK(0)); a(rdk(0)); a(rdK(1)); a(rdk(1))
    a("s_waitcnt lgkmcnt(2)")
    a(M1(0)); a(M2(0))
    a("s_waitcnt lgkmcnt(0)\ns_nop 8")
    FCHK = {4: 1, 11: 2, 24: 3}
    PRG = {20: 1, 32: 2, 48: 3}
    for j in range(64):
        if j in PRIO and j: a(f"s_setprio {PRIO[j]}")
        if j == 32: stamp(a, 4)
        if j in PRG: a(f"v_mov_b32 v{vt1}, {PRG[j]}\nds_write_b32 v{aP}, v{vt1}")
        if j in FCHK: lds_wait(a, f"f_w{j}", aF, vt0, FCHK[j])
        s, p = S[j & 1], P[j & 1]
        e = lambda i: f"v_exp_f32 v{s+i}, v{s+i}"
        c = lambda i: f"v_cvt_pk_bf16_f32 v{p+i}, v{s+2*i}, v{s+2*i+1}"
        nx, pv, ld = j + 1 < 64, j > 0, j + 2 < 64
        L = []
        if ld: lk, lk2 = rdK(j+2), rdk(j+2)
        lv0, lv1 = rdV(j, 0), rdV(j, 1)
        if nx: L.append(M1(j+1))
        if ld: L.append(lk)
        L += [e(0), e(1), e(2), e(3), c(0)]
        if nx: L.append(M2(j+1))
        if ld: L.append(lk2)
        L += [e(4), e(5), c(1), e(6), e(7), c(2)]
        if pv: L.append(M3(j-1, 0))
        L += [lv0, lv1]
        L += [e(8), e(9), c(3), e(10), e(11), c(4)]
        if pv: L.append(M3(j-1, 1))
        L += [e(12), e(13), c(5), e(14), e(15), c(6), c(7), "s_waitcnt lgkmcnt(0)"]
        for x in L: a(x)
    a("s_nop 0"); a(M3(63, 0)); a(M3(63, 1))
    stamp(a, 5)
    sO, sHead = 74, 73
    a(f"""s_lshl_b32 s3, s{sRho}, 7
    s_add_u32 s3, s3, {F_G}
    v_and_b32 v{vt0}, 31, v{vL}
    v_lshlrev_b32 v{vt0}, 2, v{vt0}
    v_add_u32 v{vt0}, s3, v{vt0}
    ds_read_b32 v{vG}, v{vt0}
    s_lshl_b32 s{sHead}, s{sJ}, 2
    s_add_u32 s{sHead}, s{sHead}, s{sHd}
    s_lshl_b32 s{sA}, s{sT1}, 2
    s_lshl_b32 s{sB}, s{sRho}, 1
    s_add_u32 s{sA}, s{sA}, s{sB}
    s_mul_i32 s{sA}, s{sA}, 18432
    s_add_u32 s{sA}, s{sA}, {OF}
    s_lshr_b32 s{sB}, s{sHead}, 1
    s_lshl_b32 s{sB}, s{sB}, 10
    s_and_b32 s{sC}, s{sHead}, 1
    s_lshl_b32 s{sC}, s{sC}, 9
    s_add_u32 s{sB}, s{sB}, s{sC}
    s_add_u32 s{sO}, s{sA}, s{sB}
    s_lshr_b32 s{sB}, s{sHead}, 2
    s_lshl_b32 s{sB}, s{sB}, 8
    s_lshl_b32 s{sC}, s{sHd}, 2
    s_add_u32 s{sB}, s{sB}, s{sC}
    s_add_u32 s{sB}, s{sB}, 16384
    s_add_u32 s{sO+1}, s{sA}, s{sB}""")
    vl = S[0]
    a(f"v_cndmask_b32 v{vl}, v{O+10}, v{O+12}, s[{sHi}:{sHi+1}]")
    a(f"v_add_f32 v{vt0}, |v{O}|, |v{O+1}|")
    for r in range(2, 10): a(f"v_add_f32 v{vt0}, |v{O+r}|, v{vt0}")
    a(f"""v_add_f32 v{vt0}, v{vl}, v{vt0}
    v_cmp_le_f32 vcc, {f2u(LMIN)}, v{vl}
    v_mov_b32 v{vt1}, 0x7f800000
    v_cmp_lt_f32 s[6:7], v{vt0}, v{vt1}
    s_waitcnt lgkmcnt(0)
    s_and_b64 vcc, vcc, s[6:7]
    s_cmp_eq_u64 vcc, exec
    s_cbranch_scc0 f_fallback""")
    a.label("f_norm")
    a(f"""v_rcp_f32 v{vl}, v{vl}
    v_sub_f32 v{vG}, 1.0, v{vG}
    v_and_b32 v{vt0}, 15, v{vL}
    v_lshlrev_b32 v{vt0}, 4, v{vt0}
    v_mul_f32 v{vl}, v{vl}, v{vG}
    v_bfe_u32 v{vt1}, v{vL}, 4, 1
    v_mul_u32_u24 v{vt1}, 18432, v{vt1}
    v_add_u32 v{vt0}, v{vt0}, v{vt1}
    v_lshrrev_b32 v{vt1}, 5, v{vL}
    v_lshl_add_u32 v{vt1}, v{vt1}, 8, v{vt0}""")
    for r in range(10): a(f"v_mul_f32 v{O+r}, v{O+r}, v{vl}")
    for k in range(5): a(f"v_cvt_pk_bf16_f32 v{P[0]+k}, v{O+2*k}, v{O+2*k+1}")
    a(f"""buffer_store_dwordx4 v[{P[0]}:{P[0]+3}], v{vt1}, s[{sWS}:{sWS+3}], s{sO} offen sc1
    s_mov_b32 exec_hi, 0
    buffer_store_dword v{P[0]+4}, v{vt0}, s[{sWS}:{sWS+3}], s{sO+1} offen sc1
    s_mov_b32 exec_hi, -1""")
    last_wave_signals(a, "f_a9", F_CNT3, 8, FL3, 4, vt0, vt2)
    G0.stamp_end(a, 0, sWS, sWave)
    a("s_endpgm")
    a.label("f_fallback")
    s0 = S[0]
    a(f"""v_subrev_u32 v{aK}, {base[aK]}, v{aK}
    v_subrev_u32 v{ak}, {base[ak]}, v{ak}
    v_subrev_u32 v{aV}, {base[aV]}, v{aV}
    v_mov_b32 v{K2[0]+1}, 0
    v_mov_b32 v{vt0}, 0xff800000
    s_mov_b32 s{sA}, {KVG}""")
    a.label("f_fb1")
    a(f"""buffer_load_dwordx4 v[{K1[0]}:{K1[0]+3}], v{aK}, s[{sWS}:{sWS+3}], s{sA} offen sc1
    buffer_load_dword v{K2[0]}, v{ak}, s[{sWS}:{sWS+3}], s{sA} offen sc1
    s_waitcnt vmcnt(0)""")
    a(M1(0)); a(M2(0)); a("s_nop 11")
    for r in range(0, 16, 2): a(f"v_max3_f32 v{vt0}, v{s0+r}, v{s0+r+1}, v{vt0}")
    a(f"""s_add_u32 s{sA}, s{sA}, {TILE}
    s_cmp_lt_u32 s{sA}, {KVG+64*TILE}
    s_cbranch_scc1 f_fb1
    v_mov_b32 v{vt1}, v{vt0}
    s_nop 1
    v_permlane32_swap_b32 v{vt0}, v{vt1}
    v_max_f32 v{vt0}, v{vt0}, v{vt1}
    v_cvt_pk_bf16_f32 v{vt1}, v{vt0}, v{vt0}
    v_and_b32 v{vt1}, 0xffff0000, v{vt1}
    v_sub_f32 v{vt0}, v{vt0}, v{vt1}
    v_cvt_pk_bf16_f32 v{Q2+1}, v{vt1}, v{vt0}
    v_cndmask_b32 v{Q2+1}, v{Q2+1}, 0, s[{sHi}:{sHi+1}]
    v_mov_b32 v{K2[0]+1}, 0xbf80bf80
    s_mov_b32 s{sA}, {KVG}""")
    for r in range(16): a(f"v_mov_b32 v{O+r}, 0")
    a.label("f_fb2")
    a(f"""buffer_load_dwordx4 v[{K1[0]}:{K1[0]+3}], v{aK}, s[{sWS}:{sWS+3}], s{sA} offen sc1
    buffer_load_dword v{K2[0]}, v{ak}, s[{sWS}:{sWS+3}], s{sA} offen sc1
    buffer_load_dwordx4 v[{V[0]}:{V[0]+3}], v{aV}, s[{sWS}:{sWS+3}], s{sA} offen sc1
    buffer_load_dwordx4 v[{V[0]+4}:{V[0]+7}], v{aV}, s[{sWS}:{sWS+3}], s{sA} offen offset:624 sc1
    s_waitcnt vmcnt(0)""")
    a(M1(0)); a(M2(0)); a("s_nop 11")
    for r in range(16): a(f"v_exp_f32 v{s0+r}, v{s0+r}")
    a("s_nop 0")
    for k in range(8): a(f"v_cvt_pk_bf16_f32 v{P[0]+k}, v{s0+2*k}, v{s0+2*k+1}")
    a("s_nop 1"); a(M3(0, 0)); a(M3(0, 1))
    a(f"""s_add_u32 s{sA}, s{sA}, {TILE}
    s_cmp_lt_u32 s{sA}, {KVG+64*TILE}
    s_cbranch_scc1 f_fb2
    s_nop 11
    v_cndmask_b32 v{vl}, v{O+10}, v{O+12}, s[{sHi}:{sHi+1}]
    s_branch f_norm""")
    a.label("f_end")
    a("s_endpgm")
    return a

HEAD = """; Fused FNet + multi-query attention + gate.  One launch, 256 workgroups of 12 waves, one per CU.
"""
def build(a, vgpr=160):
    lab = G0.NAME + "_kernel"
    for p in check(a.lines): print(p, file=sys.stderr)
    out = [HEAD + f"; @launch grid=(256,1,1) block=(768,1,1) lds=163840", '.amdgcn_target "amdgcn-amd-amdhsa--gfx950"\n.text',
           f".globl {lab}\n.p2align 8\n.type {lab},@function\n{lab}:", a.text(), ".p2align 8\n.type rf_table,@object\nrf_table:"]
    w = rf_table()
    for i in range(0, len(w), 8): out.append(".long " + ",".join(f"0x{x:08x}" for x in w[i:i+8]))
    out += [".size rf_table, 4096", "rf_end:", '.section .rodata,"a"', kd(lab, vgpr)]
    return "\n".join(out) + "\n"

if __name__ == "__main__":
    if len(sys.argv) > 2 and sys.argv[2] == "stamp": G0.STAMP = True
    EXP.update(sys.argv[3:])
    open(sys.argv[1], "w").write(build(gen()))
```

```python
import math, struct, sys
from asmlib import Asm, check

NAME = "gated_mix__spectral_fnet__grouped_kv_mqa__prompt"
QN, XF, OF, GT, DF, KV, KM, GG, FL = 0x0, 0x240000, 0x480000, 0x6C0000, 0xB80000, 0xC10000, 0xC40000, 0xC40400, 0xC43000
WS_SIZE = 0xD50000
GP = 1216
TILE = 2400
CQ = math.log2(math.e) / math.sqrt(18.0)
def f2u(x): return struct.unpack("<I", struct.pack("<f", x))[0]
def bf16(x):
    u = f2u(x); return ((u + 0x7FFF + ((u >> 16) & 1)) >> 16) & 0xFFFF

def srd(a, d, ptr, size):
    a(f"s_mov_b32 s{d}, s{ptr}\ns_mov_b32 s{d+1}, s{ptr+1}\ns_mov_b32 s{d+2}, {size}\ns_mov_b32 s{d+3}, 0x20000")

STAMP = False
ST = 0xC44000
def stamp(a, slot):
    if not STAMP: return
    a(f"s_memrealtime s[{82+2*slot}:{83+2*slot}]")
    if slot == 0: a("s_memtime s[98:99]")
def stamp_end(a, k, sWS, sWave, slot=7):
    if not STAMP: return
    a("s_waitcnt vmcnt(0)")
    stamp(a, slot)
    a(f"""s_memtime s[100:101]
    s_waitcnt lgkmcnt(0)
    s_sub_u32 s100, s100, s98
    s_mov_b64 exec, 1
    s_lshl_b32 s3, s2, 4
    s_add_u32 s3, s3, s{sWave}
    s_lshl_b32 s3, s3, 6
    s_add_u32 s3, s3, {ST + k*0x40000}
    v_mov_b32 v0, 0""")
    for q in range(8): a(f"v_mov_b32 v{4+q}, s{82+2*q}")
    a(f"""s_getreg_b32 s101, hwreg(HW_REG_XCC_ID)
    v_mov_b32 v13, s101
    v_mov_b32 v12, s100
    buffer_store_dwordx4 v[4:7], v0, s[{sWS}:{sWS+3}], s3 offen
    buffer_store_dwordx4 v[8:11], v0, s[{sWS}:{sWS+3}], s3 offen offset:16
    buffer_store_dwordx2 v[12:13], v0, s[{sWS}:{sWS+3}], s3 offen offset:32""")

def code_prefetch(a, vtmp, vdst, end_label, here):
    a(f"s_getpc_b64 s[4:5]")
    a.label(here)
    a(f"v_lshlrev_b32 v{vtmp}, 7, v0")
    a(f"v_min_u32 v{vtmp}, {end_label}-{here}-4, v{vtmp}")
    a.vmem(f"global_load_dword v{vdst}, v{vtmp}, s[4:5]", "pf")

def fnet_tail(a, H, T1, T2, R, tmp, vL, sWS, sS2, sGrp, sT, special, sc=""):
    Hb = tmp
    for k in range(8): a(f"v_cvt_pk_bf16_f32 v{Hb+k}, v{H+2*k}, v{H+2*k+1}")
    vA, vB = tmp + 8, tmp + 9
    a(f"v_and_b32 v{vA}, 31, v{vL}")
    a(f"v_mul_u32_u24 v{vA}, {128*GP}, v{vA}")
    a(f"v_mfma_f32_32x32x16_bf16 v[{T1}:{T1+15}], v[{Hb}:{Hb+3}], v[{R}:{R+3}], 0")
    a(f"v_mfma_f32_32x32x16_bf16 v[{T2}:{T2+15}], v[{Hb}:{Hb+3}], v[{R+8}:{R+11}], 0")
    a(f"v_mfma_f32_32x32x16_bf16 v[{T1}:{T1+15}], v[{Hb+4}:{Hb+7}], v[{R+4}:{R+7}], v[{T1}:{T1+15}]")
    a(f"v_mfma_f32_32x32x16_bf16 v[{T2}:{T2+15}], v[{Hb+4}:{Hb+7}], v[{R+12}:{R+15}], v[{T2}:{T2+15}]")
    a(f"v_lshrrev_b32 v{vB}, 5, v{vL}")
    a(f"v_lshlrev_b32 v{vB}, 4, v{vB}")
    a(f"v_sub_u32 v{tmp+10}, v{vA}, v{vB}")
    a(f"v_add_u32 v{vA}, v{vA}, v{vB}")
    a(f"v_add_u32 v{vB}, 16, v{tmp+10}")
    a(f"s_mul_i32 s{sT}, s{sS2}, {GP}")
    a(f"s_add_u32 s{sT}, s{sT}, {GT}")
    a(f"s_lshl_b32 s{sT+1}, s{sGrp}, 5")
    a(f"s_sub_u32 s{sT+2}, s{sT}, s{sT+1}")
    a(f"s_add_u32 s{sT+2}, s{sT+2}, {2*(576-7)-16}")
    a(f"s_add_u32 s{sT+1}, s{sT}, s{sT+1}")
    a(f"s_add_u32 s{sT+3}, s{sT+1}, {64*GP}")
    a(f"s_add_u32 s{sT+4}, s{sT+2}, {64*GP}")
    a("s_nop 1")
    if special:
        lab = special
        a(f"s_cmp_lg_u32 s{sGrp}, 0")
        a(f"s_cbranch_scc1 {lab}")
        a(f"s_mov_b32 exec_hi, 0")
        a(f"v_cvt_pk_bf16_f32 v{tmp+11}, v{T1+8}, v{T2+8}")
        a(f"v_mov_b32 v{T1+8}, 0")
        a(f"v_mov_b32 v{T2+8}, 0")
        a(f"s_add_u32 s{sT+5}, s{sT}, {64*GP}")
        a.vmem(f"buffer_store_short v{tmp+11}, v{vA}, s[{sWS}:{sWS+3}], s{sT} offen offset:576 {sc}", "st")
        a.vmem(f"buffer_store_short_d16_hi v{tmp+11}, v{vA}, s[{sWS}:{sWS+3}], s{sT+5} offen offset:576 {sc}", "st")
        a(f"s_mov_b64 exec, -1")
        a.label(lab)
    D = H
    def outp(op, x, y, order, vaddr, soff, dst):
        for r in range(8): a(f"{op} v{D+r}, v{x+r}, v{y+r}")
        for k in range(4):
            i0, i1 = (2*k, 2*k+1) if order > 0 else (7-2*k, 6-2*k)
            a(f"v_cvt_pk_bf16_f32 v{dst+k}, v{D+i0}, v{D+i1}")
        a.vmem(f"buffer_store_dwordx4 v[{dst}:{dst+3}], v{vaddr}, s[{sWS}:{sWS+3}], s{soff} offen {sc}", "st")
    outp("v_add_f32", T1, T2+8, +1, vA, sT+1, D+8)
    outp("v_sub_f32", T2, T1+8, +1, vA, sT+3, D+12)
    outp("v_sub_f32", T1, T2+8, -1, vB, sT+2, Hb)
    outp("v_add_f32", T2, T1+8, -1, vB, sT+4, Hb+4)

def rf_table():
    w = []
    for fn in (math.cos, math.sin):
        for u in range(2):
            for l in range(64):
                t1, h = l & 31, l >> 5
                v = []
                for j in range(8):
                    r = 8*u + j
                    s1 = (r & 3) + 8*(r >> 2) + 4*h
                    v.append(bf16(fn(2*math.pi*((t1*s1) % 32)/32)))
                w += [v[0] | v[1] << 16, v[2] | v[3] << 16, v[4] | v[5] << 16, v[6] | v[7] << 16]
    return w

def load_rf(a, R, vL, vt, here):
    a(f"s_getpc_b64 s[4:5]")
    a.label(here)
    a(f"s_add_u32 s4, s4, rf_table-{here}")
    a(f"s_addc_u32 s5, s5, 0")
    a(f"v_lshlrev_b32 v{vt}, 4, v{vL}")
    for k in range(4):
        a.vmem(f"global_load_dwordx4 v[{R+4*k}:{R+4*k+3}], v{vt}, s[4:5] offset:{1024*k}", "rf")

K1_LDS = 155648
def gen_k1():
    a = Asm()
    sX, sW, sW2, sWS = 44, 48, 52, 56
    sWave, sT1, sRole, sM, sA, sB, sC, sD, sE, sF = 60, 61, 62, 63, 64, 65, 66, 67, 68, 69
    vL, vXs, vWs, vR0, vR1, vTr, vt0, vt1, vt2, vt3 = 1, 2, 3, 4, 5, 6, 7, 8, 9, 10
    vB0, vB1 = 11, 12
    ACC, FR = 16, 32
    a("s_cmp_ge_u32 s2, 256\ns_cbranch_scc1 k1_end")
    stamp(a, 0)
    a("s_load_dwordx16 s[16:31], s[0:1], 0\ns_load_dwordx8 s[32:39], s[0:1], 64\ns_load_dwordx2 s[40:41], s[0:1], 104")
    code_prefetch(a, vt0, 13, "k1_code_end", "k1_pf")
    a(f"""v_lshrrev_b32 v{vt0}, 6, v0
    v_and_b32 v{vL}, 63, v0
    v_readfirstlane_b32 s{sWave}, v{vt0}
    s_bfe_u32 s{sA}, s2, 0x20003
    s_and_b32 s{sT1}, s2, 7
    s_lshl_b32 s{sA}, s{sA}, 3
    s_add_u32 s{sT1}, s{sT1}, s{sA}
    s_lshr_b32 s{sRole}, s2, 5""")
    a(f"""v_lshrrev_b32 v{vt0}, 4, v{vL}
    v_xor_b32 v{vt0}, v{vt0}, v{vL}
    v_and_b32 v{vt0}, 3, v{vt0}
    v_lshlrev_b32 v{vt0}, 4, v{vt0}
    v_lshrrev_b32 v{vt1}, 2, v{vL}
    s_mov_b32 s{sA}, 73728
    v_mad_u32_u24 v{vXs}, v{vt1}, s{sA}, v{vt0}""")
    a(f"""v_lshrrev_b32 v{vt2}, 5, v{vL}
    v_xor_b32 v{vt3}, v{vt2}, v{vt1}
    v_and_b32 v{vt3}, 3, v{vt3}
    v_lshlrev_b32 v{vR0}, 4, v{vt3}
    v_and_b32 v{vt3}, 15, v{vL}
    v_lshl_add_u32 v{vR0}, v{vt3}, 6, v{vR0}
    v_bfe_u32 v{vt3}, v{vL}, 4, 1
    v_mul_u32_u24 v{vR1}, 3072, v{vt3}
    v_add_u32 v{vR0}, v{vR0}, v{vR1}""")
    a(f"""v_and_b32 v{vTr}, 3, v{vt1}
    v_lshl_add_u32 v{vTr}, v{vt2}, 3, v{vTr}
    v_lshlrev_b32 v{vTr}, 6, v{vTr}
    v_lshl_add_u32 v{vTr}, v{vt3}, 5, v{vTr}
    v_and_b32 v{vWs}, 3, v{vL}""")
    for r in range(16): a(f"v_mov_b32 v{ACC+r}, 0")
    a(f"s_cmp_ge_u32 s{sRole}, 6\ns_cbranch_scc1 k1_kv")

    def chunk_loop(rdA, rdB, nper, mfma, adjust, extra=None, dma5=None, tag="c"):
        for ch in range(6):
            if ch == 0: stamp(a, 1)
            if tag: a.vm_wait(f"c{ch}")
            a("s_barrier")
            if ch == 0: stamp(a, 2)
            if ch == 5: stamp(a, 3)
            if ch == 1 and dma5: dma5()
            if ch in (2, 4): adjust(61440)
            if ch == 5: adjust(-122880)
            off = (ch % 5 % 2) * 30720
            ahead = 15 // nper
            issued = 0
            for k in range(6):
                while issued < 6 and issued < k + ahead and (issued - k + 1) * nper <= 15:
                    rdA(issued, FR + 8*issued, off); rdB(issued, FR + 8*issued + 4, off); issued += 1
                a(f"s_waitcnt lgkmcnt({(issued - k - 1) * nper})")
                mfma(FR + 8*k, FR + 8*k + 4)
                if extra: extra(ch, k, FR + 8*k, FR + 8*k + 4)
    def rd_x(v0, v1, slot=0):
        return lambda k, reg, off: a(f"ds_read_b128 v[{reg}:{reg+3}], v{v1 if k & 1 else v0} offset:{off + (slot + (k >> 1)) * 1024}")
    def rd_tr(v, slot=0):
        def f(k, reg, off):
            a(f"ds_read_b64_tr_b16 v[{reg}:{reg+1}], v{v} offset:{off + (slot + k) * 1024}")
            a(f"ds_read_b64_tr_b16 v[{reg+2}:{reg+3}], v{v} offset:{off + (slot + k) * 1024 + 256}")
        return f
    def adj(*vs):
        def f(d):
            for v in vs: a(f"v_add_u32 v{v}, {d & 0xffffffff}, v{v}")
        return f
    mf = lambda A, B: a(f"v_mfma_f32_32x32x16_bf16 v[{ACC}:{ACC+15}], v[{A}:{A+3}], v[{B}:{B+3}], v[{ACC}:{ACC+15}]")

    vm0 = list(a.vm)
    a(f"""v_lshl_add_u32 v{vTr}, v{vWs}, 3, v{vTr}
    v_lshlrev_b32 v{vWs}, 4, v{vWs}
    s_movk_i32 s{sA}, 1152
    v_mad_u32_u24 v{vWs}, v{vt1}, s{sA}, v{vWs}""")
    def xoff(dst, slot):
        a(f"""s_mul_i32 s{sE}, s{slot}, 86
        s_lshr_b32 s{sE}, s{sE}, 8
        s_mul_i32 s{sF}, s{sE}, 3
        s_sub_u32 s{slot}, s{slot}, s{sF}
        s_lshl_b32 s{slot}, s{slot}, 6
        s_lshr_b32 s{sF}, s{sE}, 1
        s_mul_i32 s{sF}, s{sF}, 36864
        s_add_u32 s{slot}, s{slot}, s{sF}
        s_and_b32 s{sE}, s{sE}, 1
        s_mul_i32 s{sE}, s{sE}, 1179648
        s_add_u32 s{slot}, s{slot}, s{sE}
        s_add_u32 s{dst}, s{slot}, s{sD}""")
    a(f"s_mul_i32 s{sD}, s{sT1}, 1152\ns_lshl_b32 s{sA}, s{sWave}, 1\ns_add_u32 s{sB}, s{sA}, 1")
    xoff(sA, sA); xoff(sB, sB)
    a(f"""s_and_b32 s{sC}, s{sWave}, 1
    s_mul_i32 s{sC}, s{sC}, {48*1152}
    s_lshr_b32 s{sE}, s{sWave}, 1
    s_mul_i32 s{sF}, s{sRole}, 3
    s_add_u32 s{sE}, s{sE}, s{sF}
    s_lshl_b32 s{sE}, s{sE}, 6
    s_add_u32 s{sC}, s{sC}, s{sE}
    s_lshl_b32 s{sM}, s{sWave}, 11
    s_lshl_b32 s{sD}, s{sWave}, 10
    s_add_u32 s{sD}, s{sD}, 12288
    s_waitcnt lgkmcnt(0)""")
    srd(a, sX, 16, 2048*1152); srd(a, sW, 28, 576*1152)
    def dma_q():
        a(f"""s_mov_b32 m0, s{sM}
        s_nop 0
        buffer_load_dwordx4 v{vXs}, s[{sX}:{sX+3}], s{sA} offen lds
        s_add_u32 m0, m0, 1024
        s_add_u32 s{sA}, s{sA}, 192
        buffer_load_dwordx4 v{vXs}, s[{sX}:{sX+3}], s{sB} offen lds
        s_add_u32 m0, s{sM}, s{sD}
        s_add_u32 s{sB}, s{sB}, 192
        buffer_load_dwordx4 v{vWs}, s[{sW}:{sW+3}], s{sC} offen lds
        s_add_u32 m0, m0, 1024
        s_add_u32 s{sE}, s{sC}, 18432
        buffer_load_dwordx4 v{vWs}, s[{sW}:{sW+3}], s{sE} offen lds
        s_add_u32 m0, m0, 1024
        s_add_u32 s{sE}, s{sE}, 18432
        buffer_load_dwordx4 v{vWs}, s[{sW}:{sW+3}], s{sE} offen lds
        s_add_u32 s{sC}, s{sC}, 110592""")
    a.label("k1_q_dma")
    dma_q()
    a(f"s_add_u32 s{sM}, s{sM}, 30720\ns_cmp_lt_u32 s{sM}, 153600\ns_cbranch_scc1 k1_q_dma")
    for ch in range(5): a.vm_note(f"c{ch}", 5)
    a(f"s_sub_u32 s{sM}, s{sM}, 153600")
    sPhi, sGrp, sKs = 70, 71, 72
    vDF = 80
    srd(a, sWS, 40, WS_SIZE)
    a(f"""s_lshl_b32 s{sPhi}, s{sRole}, 5
    s_add_u32 s{sPhi}, s{sPhi}, s{sT1}
    s_mul_i32 s{sPhi}, s{sPhi}, 3
    s_lshr_b32 s{sE}, s{sWave}, 1
    s_add_u32 s{sPhi}, s{sPhi}, s{sE}
    s_mul_i32 s{sGrp}, s{sPhi}, 1821
    s_lshr_b32 s{sGrp}, s{sGrp}, 16
    s_mul_i32 s{sKs}, s{sGrp}, 36
    s_sub_u32 s{sKs}, s{sPhi}, s{sKs}
    s_bitcmp1_b32 s{sWave}, 0
    s_cselect_b32 s{sW2}, s24, s22
    s_cselect_b32 s{sW2+1}, s25, s23
    s_cselect_b64 s[74:75], -1, 0
    s_mov_b32 s{sW2+2}, {576*1152}
    s_mov_b32 s{sW2+3}, 0x20000
    v_and_b32 v{vt0}, 3, v{vL}
    v_bfe_u32 v{vt1}, v{vL}, 2, 1
    v_lshl_add_u32 v{vt0}, v{vt1}, 3, v{vt0}
    v_bfe_u32 v{vt1}, v{vL}, 3, 1
    v_lshl_add_u32 v{vt0}, v{vt1}, 2, v{vt0}
    s_lshl_b32 s{sE}, s{sGrp}, 4
    v_add_u32 v{vt0}, s{sE}, v{vt0}
    s_cmp_eq_u32 s{sGrp}, 0
    s_cselect_b32 s76, 0x10000, 0
    s_mov_b32 s77, s76
    v_mov_b32 v{vt1}, 288
    v_cndmask_b32 v{vt0}, v{vt0}, v{vt1}, s[76:77]
    v_mul_u32_u24 v{vt0}, 1152, v{vt0}
    v_lshl_add_u32 v{vt0}, v{vt2}, 4, v{vt0}
    s_or_b32 s76, s76, 0xffff
    s_mov_b32 s77, s76
    s_xor_b64 s[76:77], s[76:77], s[74:75]
    s_lshl_b32 s{sKs}, s{sKs}, 5
    s_mov_b64 exec, s[76:77]""")
    a.vmem(f"buffer_load_dwordx4 v[{vDF}:{vDF+3}], v{vt0}, s[{sW2}:{sW2+3}], s{sKs} offen", "df")
    a("s_mov_b64 exec, -1")
    a(f"""s_cmp_ge_u32 s{sWave}, 3
    s_cselect_b32 s{sE}, 3, 0
    s_cselect_b32 s{sF}, 6144, 0
    s_cselect_b32 s73, 32, 0
    s_sub_u32 s{sE}, s{sWave}, s{sE}
    v_add_u32 v{vR0}, s{sF}, v{vR0}
    v_xor_b32 v{vR1}, 32, v{vR0}
    s_mul_i32 s{sF}, s{sE}, 6144
    s_add_u32 s{sF}, s{sF}, 12288
    v_add_u32 v{vTr}, s{sF}, v{vTr}
    s_mul_i32 s{sF}, s{sRole}, 3
    s_add_u32 s78, s{sF}, s{sE}
    s_add_u32 s73, s73, s{sT1}""")
    def d5():
        dma_q(); a.vm_note("c5", 5)
    chunk_loop(rd_tr(vTr), rd_x(vR0, vR1), 3, mf, adj(vR0, vR1, vTr), dma5=d5)
    a(f"""s_lshl_b32 s{sPhi}, s{sPhi}, 10
    s_add_u32 s{sPhi}, s{sPhi}, {DF}
    v_lshlrev_b32 v{vt0}, 4, v{vL}
    s_mov_b64 exec, s[76:77]
    buffer_store_dwordx4 v[{vDF}:{vDF+3}], v{vt0}, s[{sWS}:{sWS+3}], s{sPhi} offen
    s_mov_b64 exec, -1
    v_and_b32 v{vt0}, 31, v{vL}
    v_lshlrev_b32 v{vt0}, 2, v{vt0}
    v_lshl_add_u32 v{vt0}, v{vt2}, 8, v{vt0}
    s_mul_i32 s73, s73, 36864
    s_lshl_b32 s78, s78, 11
    s_add_u32 s73, s73, s78
    s_mov_b32 s{sE}, {f2u(CQ)}
    s_nop 0""")
    for r in range(16): a(f"v_mul_f32 v{ACC+r}, s{sE}, v{ACC+r}")
    for k in range(8):
        a(f"v_cvt_pk_bf16_f32 v{FR+k}, v{ACC+2*k}, v{ACC+2*k+1}")
        a(f"buffer_store_dword v{FR+k}, v{vt0}, s[{sWS}:{sWS+3}], s73 offen offset:{(4*(k>>1)+(k&1))*128}")
    stamp(a, 4)
    stamp_end(a, 0, sWS, sWave)
    a("s_endpgm")

    a.label("k1_kv")
    sRb = 73
    a(f"""s_sub_u32 s{sRb}, s{sRole}, 6
    s_lshl_b32 s{sRb}, s{sRb}, 5
    s_add_u32 s{sRb}, s{sRb}, s{sT1}
    v_xor_b32 v{vR1}, 32, v{vR0}
    s_cmp_eq_u32 s{sWave}, 5
    s_cbranch_scc1 k1_end
    s_cmp_ge_u32 s{sWave}, 3
    s_cbranch_scc1 k1_job
    s_cmp_eq_u32 s{sWave}, 2
    s_cbranch_scc1 k1_gate""")
    def dma6(vsrc, srdA, srdB, step_in, step_ch, lab):
        def body():
            a(f"s_mov_b32 m0, s{sM}")
            a(f"s_mov_b32 s{sE}, s{sA}")
            for i in range(6):
                r = srdA if i < 3 else srdB
                a(f"buffer_load_dwordx4 v{vsrc}, s[{r}:{r+3}], s{sE} offen lds")
                if i < 5:
                    a("s_add_u32 m0, m0, 1024")
                    a(f"s_mov_b32 s{sE}, s{sB}" if i == 2 else f"s_add_u32 s{sE}, s{sE}, {step_in}")
            a(f"s_add_u32 s{sA}, s{sA}, {step_ch}\ns_add_u32 s{sB}, s{sB}, {step_ch}")
        a.label(lab)
        body()
        a(f"s_add_u32 s{sM}, s{sM}, 30720\ns_cmp_lt_u32 s{sM}, 153600\ns_cbranch_scc1 {lab}")
        for ch in range(5): a.vm_note(f"c{ch}", 6)
        a(f"s_sub_u32 s{sM}, s{sM}, 153600")
        def d5():
            body(); a.vm_note("c5", 6)
        return d5
    a.vm = list(vm0)
    a(f"""v_mul_u32_u24 v{vt0}, 36, v{vt1}
    v_lshl_add_u32 v{vt0}, v{vWs}, 4, v{vt0}
    v_and_b32 v{vt1}, 1, v{vL}
    v_bfe_u32 v{vB0}, v{vL}, 1, 1
    v_lshl_or_b32 v{vt1}, v{vt1}, 1, v{vB0}
    v_cmp_eq_u32 vcc, 0, v{vt3}
    s_mul_i32 s{sM}, s{sWave}, 6144
    s_add_u32 s{sM}, s{sM}, 6144
    v_cndmask_b32 v{vt1}, v{vWs}, v{vt1}, vcc
    v_lshl_add_u32 v{vTr}, v{vt1}, 3, v{vTr}
    v_mov_b32 v{vWs}, v{vt0}
    v_add_u32 v{vTr}, s{sM}, v{vTr}
    s_mov_b32 s{sA}, 0
    s_mov_b32 s{sB}, {48*36}
    s_cmp_eq_u32 s{sWave}, 0
    s_waitcnt lgkmcnt(0)
    s_cselect_b32 s{sW}, s30, s32
    s_cselect_b32 s{sW+1}, s31, s33
    s_mov_b32 s{sW+2}, {576*36}
    s_mov_b32 s{sW+3}, 0x20000""")
    d5 = dma6(vWs, sW, sW, 16*36, 96*36, "k1_kv_dma")
    srd(a, sWS, 40, WS_SIZE)
    a(f"s_mul_i32 s{sF}, s{sRb}, {TILE}\ns_add_u32 s{sF}, s{sF}, {KV}")
    a(f"s_cmp_eq_u32 s{sWave}, 1\ns_cbranch_scc1 k1_v")
    vmk = list(a.vm)
    chunk_loop(rd_tr(vTr), rd_x(vR0, vR1), 3, mf, adj(vR0, vR1, vTr), dma5=d5)
    a(f"""v_lshlrev_b32 v{vt0}, 4, v{vL}
    v_lshlrev_b32 v{vt1}, 2, v{vL}
    s_nop 9""")
    for k in range(5): a(f"v_cvt_pk_bf16_f32 v{FR+k}, v{ACC+2*k}, v{ACC+2*k+1}")
    a(f"buffer_store_dwordx4 v[{FR}:{FR+3}], v{vt0}, s[{sWS}:{sWS+3}], s{sF} offen")
    a(f"v_mul_f32 v{vt3}, v{ACC}, v{ACC}")
    for r in range(1, 8): a(f"v_fmac_f32 v{vt3}, v{ACC+r}, v{ACC+r}")
    a(f"""s_mov_b32 exec_hi, 0
    buffer_store_dword v{FR+4}, v{vt1}, s[{sWS}:{sWS+3}], s{sF} offen offset:1024
    v_fmac_f32 v{vt3}, v{ACC+8}, v{ACC+8}
    v_fmac_f32 v{vt3}, v{ACC+9}, v{ACC+9}
    s_mov_b64 exec, -1
    v_mov_b32 v{vt0}, v{vt3}
    s_nop 1
    v_permlane32_swap_b32 v{vt0}, v{vt3}
    v_add_f32 v{vt3}, v{vt0}, v{vt3}""")
    wave_max(a, vt3, sE)
    a(f"""v_mov_b32 v{vt3}, s{sE}
    v_mov_b32 v{vt0}, 0
    s_lshl_b32 s{sF}, s{sRb}, 2
    s_add_u32 s{sF}, s{sF}, {KM}
    s_mov_b64 exec, 1
    buffer_store_dword v{vt3}, v{vt0}, s[{sWS}:{sWS+3}], s{sF} offen""")
    stamp_end(a, 0, sWS, sWave)
    a("s_endpgm")
    a.label("k1_v")
    a.vm = list(vmk)
    chunk_loop(rd_x(vR0, vR1), rd_tr(vTr), 3, mf, adj(vR0, vR1, vTr), dma5=d5)
    a(f"""v_and_b32 v{vt0}, 31, v{vL}
    v_mul_u32_u24 v{vt1}, 19, v{vt2}
    v_add_u32 v{vt1}, v{vt1}, v{vt0}
    v_cmp_eq_u32 vcc, 19, v{vL}
    v_mov_b32 v{vt3}, 38
    v_cmp_eq_u32 s[74:75], 18, v{vt0}
    v_cndmask_b32 v{vt1}, v{vt1}, v{vt3}, vcc
    v_lshlrev_b32 v{vt1}, 4, v{vt1}
    v_mov_b32 v{vt3}, 0x3f803f80
    s_nop 2""")
    for k in range(8): a(f"v_cvt_pk_bf16_f32 v{FR+k}, v{ACC+2*k}, v{ACC+2*k+1}")
    for k in range(8):
        a(f"v_cndmask_b32 v{FR+k}, v{FR+k}, v{vt3}, s[74:75]")
        a(f"v_cndmask_b32 v{FR+k}, v{FR+k}, 0, vcc")
    a(f"""s_mov_b32 exec_lo, 0xfffff
    s_mov_b32 exec_hi, 0x7ffff
    buffer_store_dwordx4 v[{FR}:{FR+3}], v{vt1}, s[{sWS}:{sWS+3}], s{sF} offen offset:1152
    buffer_store_dwordx4 v[{FR+4}:{FR+7}], v{vt1}, s[{sWS}:{sWS+3}], s{sF} offen offset:{1152+624}""")
    stamp_end(a, 0, sWS, sWave)
    a("s_endpgm")
    a.label("k1_gate")
    a.vm = list(vm0)
    a(f"""s_mul_i32 s{sA}, s{sRb}, 1152
    s_add_u32 s{sB}, s{sA}, 1179648
    s_mov_b32 s{sM}, 0
    v_lshlrev_b32 v{vt0}, 4, v{vL}
    v_lshlrev_b32 v{vB0}, 4, v{vt2}
    v_add_u32 v{vB0}, 153600, v{vB0}
    s_waitcnt lgkmcnt(0)""")
    srd(a, sX, 16, 2048*1152); srd(a, sW2, 36, 1152)
    a(f"s_mov_b32 m0, 153600\ns_nop 0")
    a.vmem(f"buffer_load_dwordx4 v{vt0}, s[{sW2}:{sW2+3}], 0 offen lds", "g")
    a.vmem(f"buffer_load_dwordx4 v{vt0}, s[{sW2}:{sW2+3}], 0 offen offset:1024 lds", "g")
    d5 = dma6(vXs, sX, sX, 64, 192, "k1_x_dma")
    srd(a, sWS, 40, WS_SIZE)
    a(f"s_mul_i32 s{sF}, s{sRb}, 36864\ns_add_u32 s{sF}, s{sF}, {XF}")
    chn = [0]
    def rd_gate(k, reg, off):
        a(f"ds_read_b128 v[{reg}:{reg+3}], v{vB0} offset:{32*chn[0]}"); chn[0] += 1
    def xf_store(ch, k, A, B):
        a.vmem(f"buffer_store_dwordx4 v[{B}:{B+3}], v{vt0}, s[{sWS}:{sWS+3}], s{sF} offen offset:{(k&3)*1024}", "xf")
        if k in (3, 5): a(f"s_add_u32 s{sF}, s{sF}, {4096 if k == 3 else 2048}")
    chunk_loop(rd_gate, rd_x(vR0, vR1), 2, mf, adj(vR0, vR1), extra=xf_store, dma5=d5)
    a(f"""s_lshl_b32 s{sF}, s{sRb}, 7
    s_add_u32 s{sF}, s{sF}, {GG}
    v_lshlrev_b32 v{vt1}, 2, v{vL}
    s_nop 7
    v_mul_f32 v{vt3}, {f2u(-math.log2(math.e))}, v{ACC}
    v_exp_f32 v{vt3}, v{vt3}
    s_nop 0
    v_add_f32 v{vt3}, 1.0, v{vt3}
    v_rcp_f32 v{vt3}, v{vt3}
    s_mov_b32 exec_hi, 0
    buffer_store_dword v{vt3}, v{vt1}, s[{sWS}:{sWS+3}], s{sF} offen""")
    stamp_end(a, 0, sWS, sWave)
    a("s_endpgm")
    a.label("k1_job")
    a.vm = list(vm0)
    sGrp = 71
    a(f"""v_and_b32 v{vB0}, 3, v{vt1}
    v_bfe_u32 v{vB1}, v{vt1}, 2, 1
    v_lshl_add_u32 v{vB0}, v{vB1}, 3, v{vB0}
    v_bfe_u32 v{vB1}, v{vt1}, 3, 1
    v_lshl_add_u32 v{vB0}, v{vB1}, 2, v{vB0}
    s_movk_i32 s{sA}, 1152
    v_mad_u32_u24 v{vWs}, v{vB0}, s{sA}, v{vt0}
    s_add_u32 s{sGrp}, s{sWave}, 13
    s_mul_i32 s{sA}, s{sGrp}, {16*1152}
    s_mov_b32 s{sB}, s{sA}
    s_mul_i32 s{sM}, s{sWave}, 6144
    v_add_u32 v{vB0}, s{sM}, v{vR0}
    v_add_u32 v{vB1}, s{sM}, v{vR1}
    s_waitcnt lgkmcnt(0)""")
    srd(a, sW, 22, 576*1152); srd(a, sW2, 24, 576*1152)
    d5 = dma6(vWs, sW, sW2, 64, 192, "k1_d_dma")
    srd(a, sWS, 40, WS_SIZE)
    R = 80
    load_rf(a, R, vL, vt0, "k1_rf")
    chunk_loop(rd_x(vR0, vR1), rd_x(vB0, vB1), 2, mf, adj(vR0, vR1, vB0, vB1), dma5=d5)
    a("s_nop 11")
    fnet_tail(a, ACC, FR, FR+16, R, FR+32, vL, sWS, sRb, sGrp, 76, None)
    stamp_end(a, 0, sWS, sWave)
    a.label("k1_end")
    a("s_endpgm")
    a.label("k1_code_end")
    return a


K2_LDS = 163840
FLG = 159744
OFFS = 96.0
PRIO = {0: 2, 32: 1, 60: 0}
EXP = set()
def gen_k2(fused=False):
    a = Asm()
    sWS = 8
    sWave, sT1, sJ, sA, sB, sC, sD, sE = 20, 21, 22, 23, 24, 25, 26, 27
    sHi = 28
    vL, vt0, vt1, vt2, vt3 = 1, 2, 3, 14, 15
    a("s_cmp_ge_u32 s2, 256\ns_cbranch_scc1 k2_end")
    stamp(a, 0)
    a("s_load_dwordx2 s[16:17], s[0:1], 104")
    code_prefetch(a, vt0, 111, "k2_code_end", "k2_pf")
    a(f"""v_lshrrev_b32 v{vt0}, 6, v0
    v_and_b32 v{vL}, 63, v0
    v_readfirstlane_b32 s{sWave}, v{vt0}
    s_bfe_u32 s{sA}, s2, 0x20003
    s_and_b32 s{sT1}, s2, 7
    s_lshl_b32 s{sA}, s{sA}, 3
    s_add_u32 s{sT1}, s{sT1}, s{sA}
    s_lshr_b32 s{sJ}, s2, 5
    s_cmp_ge_u32 s{sWave}, 8
    s_cbranch_scc1 k2_helper""")
    vm0 = list(a.vm)
    Q1, Q2, vG, aK, ak, aV = 4, 8, 10, 11, 12, 13
    O, S, P, K1, K2, V = 16, [32, 48], [64, 72], [80, 84], [88, 90], [92, 100]
    aF = 108
    sRb, sHead = 30, 31
    a(f"""s_lshr_b32 s{sA}, s{sWave}, 2
    s_lshl_b32 s{sA}, s{sA}, 5
    s_add_u32 s{sRb}, s{sT1}, s{sA}
    s_and_b32 s{sA}, s{sWave}, 3
    s_lshl_b32 s{sHead}, s{sJ}, 2
    s_add_u32 s{sHead}, s{sHead}, s{sA}
    s_mul_i32 s{sA}, s{sRb}, 36864
    s_mul_i32 s{sB}, s{sHead}, 1152
    s_add_u32 s{sA}, s{sA}, s{sB}
    s_lshl_b32 s{sB}, s{sRb}, 7
    s_add_u32 s{sB}, s{sB}, {GG}
    s_mov_b32 s{sC}, {KM}
    v_and_b32 v{vt2}, 31, v{vL}
    v_lshrrev_b32 v{vt3}, 5, v{vL}
    v_lshlrev_b32 v{ak}, 2, v{vt2}
    v_lshl_add_u32 v{vt0}, v{vt3}, 9, v{ak}
    v_lshlrev_b32 v{aF}, 2, v{vL}
    s_waitcnt lgkmcnt(0)""")
    srd(a, sWS, 16, WS_SIZE)
    for k in range(4): a.vmem(f"buffer_load_dword v{Q1+k}, v{vt0}, s[{sWS}:{sWS+3}], s{sA} offen offset:{128*k}", "q")
    a.vmem(f"buffer_load_dword v{Q2}, v{ak}, s[{sWS}:{sWS+3}], s{sA} offen offset:1024", "q")
    a.vmem(f"buffer_load_dword v{K2[0]+1}, v{aF}, s[{sWS}:{sWS+3}], s{sC} offen", "q")
    a.vmem(f"buffer_load_dword v{vG}, v{ak}, s[{sWS}:{sWS+3}], s{sB} offen", "g")
    a(f"""v_add_u32 v{vt0}, {FLG}, v{aF}
    v_mov_b32 v{O}, 0
    ds_write_b32 v{vt0}, v{O}
    v_and_b32 v{aF}, 12, v{aF}
    v_add_u32 v{aF}, {FLG}, v{aF}
    v_lshlrev_b32 v{aK}, 4, v{vL}
    v_add_u32 v{ak}, 1024, v{ak}
    v_cmp_eq_u32 vcc, 28, v{vt2}
    v_mul_u32_u24 v{vt0}, 19, v{vt3}
    s_mov_b32 s{sHi}, 0
    v_cndmask_b32 v{aV}, v{vt2}, 18, vcc
    v_cmp_gt_u32 vcc, 19, v{aV}
    v_add_u32 v{aV}, v{aV}, v{vt0}
    s_mov_b32 s{sHi+1}, -1
    v_cndmask_b32 v{aV}, 38, v{aV}, vcc
    v_lshlrev_b32 v{aV}, 4, v{aV}
    v_add_u32 v{aV}, 1152, v{aV}""")
    for r in range(1, 16): a(f"v_mov_b32 v{O+r}, 0")
    stamp(a, 1)
    a.vm_wait("q")
    stamp(a, 2)
    a(f"""v_cndmask_b32 v{Q2}, v{Q2}, 0, s[{sHi}:{sHi+1}]
    v_dot2_f32_bf16 v{vt0}, v{Q1}, v{Q1}, 0
    v_dot2_f32_bf16 v{vt1}, v{Q1+1}, v{Q1+1}, 0
    v_dot2_f32_bf16 v{vt2}, v{Q1+2}, v{Q1+2}, 0
    v_dot2_f32_bf16 v{vt3}, v{Q1+3}, v{Q1+3}, 0
    v_dot2_f32_bf16 v{S[1]}, v{Q2}, v{Q2}, 0""")
    wave_max(a, K2[0]+1, sA)
    a(f"""v_add_f32 v{vt0}, v{vt0}, v{vt1}
    v_add_f32 v{vt2}, v{vt2}, v{vt3}
    v_sqrt_f32 v{vt3}, s{sA}
    v_add_f32 v{vt0}, v{vt0}, v{S[1]}
    v_add_f32 v{vt0}, v{vt0}, v{vt2}
    v_mov_b32 v{vt1}, v{vt0}
    v_mul_f32 v{vt3}, {f2u(-1.0079)}, v{vt3}
    v_mov_b32 v{vt2}, {f2u(OFFS)}
    v_permlane32_swap_b32 v{vt0}, v{vt1}
    v_cvt_pk_bf16_f32 v{K2[0]+1}, v{vt3}, v{vt2}
    v_add_f32 v{vt0}, v{vt0}, v{vt1}
    v_sqrt_f32 v{vt0}, v{vt0}
    v_mov_b32 v{K2[1]+1}, v{K2[0]+1}
    v_mul_f32 v{vt0}, {f2u(1.0079)}, v{vt0}
    v_cvt_pk_bf16_f32 v{Q2+1}, v{vt0}, 1.0
    v_cndmask_b32 v{Q2+1}, v{Q2+1}, 0, s[{sHi}:{sHi+1}]
    s_waitcnt lgkmcnt(0)
    s_barrier
    s_setprio {PRIO[0]}""")
    stamp(a, 3)
    seg = [0]
    def off(j, extra=0):
        o = (j - seg[0]) * TILE + extra
        assert 0 <= o < 65536
        return o
    rdK = lambda j: f"ds_read_b128 v[{K1[j&1]}:{K1[j&1]+3}], v{aK} offset:{off(j)}"
    rdk = lambda j: f"ds_read_b32 v{K2[j&1]}, v{ak} offset:{off(j)}"
    rdV = lambda j, u: f"ds_read_b128 v[{V[j&1]+4*u}:{V[j&1]+4*u+3}], v{aV} offset:{off(j, 624*u)}"
    def M1(j): return f"v_mfma_f32_32x32x16_bf16 v[{S[j&1]}:{S[j&1]+15}], v[{K1[j&1]}:{K1[j&1]+3}], v[{Q1}:{Q1+3}], 0"
    def M2(j): return f"v_mfma_f32_32x32x8_bf16 v[{S[j&1]}:{S[j&1]+15}], v[{K2[j&1]}:{K2[j&1]+1}], v[{Q2}:{Q2+1}], v[{S[j&1]}:{S[j&1]+15}]"
    def M3(j, u): return f"v_mfma_f32_32x32x16_bf16 v[{O}:{O+15}], v[{V[j&1]+4*u}:{V[j&1]+4*u+3}], v[{P[j&1]+4*u}:{P[j&1]+4*u+3}], v[{O}:{O+15}]"
    a(rdK(0)); a(rdk(0)); a(rdK(1)); a(rdk(1))
    a("s_waitcnt lgkmcnt(2)")
    a(M1(0)); a(M2(0))
    a("s_waitcnt lgkmcnt(0)\ns_nop 8")
    FCHK = {3: 1, 9: 2, 23: 3}
    for j in range(64):
        if j in PRIO and j: a(f"s_setprio {PRIO[j]}")
        if j == 32: stamp(a, 4)
        if j in FCHK:
            a.label(f"k2_w{j}")
            a(f"ds_read_b32 v{vt0}, v{aF}\ns_waitcnt lgkmcnt(0)\nv_cmp_gt_u32 vcc, {FCHK[j]}, v{vt0}\ns_cbranch_vccnz k2_w{j}")
        if j in (24, 48):
            for v in (aK, ak, aV): a(f"v_add_u32 v{v}, {24*TILE}, v{v}")
            seg[0] += 24
        s, p = S[j & 1], P[j & 1]
        e = lambda i: f"v_exp_f32 v{s+i}, v{s+i}"
        c = lambda i: f"v_cvt_pk_bf16_f32 v{p+i}, v{s+2*i}, v{s+2*i+1}"
        nx, pv, ld = j + 1 < 64, j > 0, j + 2 < 64
        L = []
        if nx: L.append(M1(j+1))
        if ld: L.append(rdK(j+2))
        L += [e(0), e(1), e(2), e(3), c(0)]
        if nx: L.append(M2(j+1))
        if ld: L.append(rdk(j+2))
        L += [e(4), e(5), c(1), e(6), e(7), c(2)]
        if pv: L.append(M3(j-1, 0))
        L += [rdV(j, 0), rdV(j, 1)]
        L += [e(8), e(9), c(3), e(10), e(11), c(4)]
        if pv: L.append(M3(j-1, 1))
        L += [e(12), e(13), c(5), e(14), e(15), c(6), c(7), "s_waitcnt lgkmcnt(0)"]
        if 'nopv' in EXP: L = [x for x in L if not (x.startswith('v_mfma') and f'v[{O}:{O+15}]' in x)]
        if 'noqk2' in EXP: L = [x for x in L if '32x32x8' not in x]
        if 'noqk' in EXP: L = [x for x in L if not (x.startswith('v_mfma') and f'v[{O}:{O+15}]' not in x)]
        if 'noexp' in EXP: L = [x.replace('v_exp_f32', 'v_mov_b32') for x in L]
        if 'nocvt' in EXP: L = [x for x in L if 'v_cvt' not in x]
        if 'nolds' in EXP: L = [x for x in L if 'ds_read' not in x]
        for x in L: a(x)
    a("s_nop 0"); a(M3(63, 0)); a(M3(63, 1))
    stamp(a, 5)
    sO = 32
    a(f"""s_lshl_b32 s{sA}, s{sT1}, 2
    s_lshr_b32 s{sB}, s{sWave}, 2
    s_lshl_b32 s{sB}, s{sB}, 1
    s_add_u32 s{sA}, s{sA}, s{sB}
    s_mul_i32 s{sA}, s{sA}, 18432
    s_add_u32 s{sA}, s{sA}, {OF}
    s_lshr_b32 s{sB}, s{sHead}, 1
    s_lshl_b32 s{sB}, s{sB}, 10
    s_and_b32 s{sC}, s{sHead}, 1
    s_lshl_b32 s{sC}, s{sC}, 9
    s_add_u32 s{sB}, s{sB}, s{sC}
    s_add_u32 s{sO}, s{sA}, s{sB}
    s_lshr_b32 s{sB}, s{sHead}, 2
    s_lshl_b32 s{sB}, s{sB}, 8
    s_and_b32 s{sC}, s{sHead}, 3
    s_lshl_b32 s{sC}, s{sC}, 2
    s_add_u32 s{sB}, s{sB}, s{sC}
    s_add_u32 s{sB}, s{sB}, 16384
    s_add_u32 s{sO+1}, s{sA}, s{sB}""")
    a.vm_wait("g")
    vl = S[0]
    a(f"v_cndmask_b32 v{vl}, v{O+10}, v{O+12}, s[{sHi}:{sHi+1}]")
    a(f"v_add_f32 v{vt0}, |v{O}|, |v{O+1}|")
    for r in range(2, 10): a(f"v_add_f32 v{vt0}, |v{O+r}|, v{vt0}")
    a(f"""v_add_f32 v{vt0}, v{vl}, v{vt0}
    v_cmp_le_f32 vcc, {f2u(2.0**-80)}, v{vl}
    v_mov_b32 v{vt1}, 0x7f800000
    v_cmp_lt_f32 s[{sA+1}:{sA+2}], v{vt0}, v{vt1}
    s_nop 1
    s_and_b64 vcc, vcc, s[{sA+1}:{sA+2}]
    s_cmp_eq_u64 vcc, exec""")
    if not EXP: a("s_cbranch_scc0 k2_fallback")
    a.label("k2_norm")
    a(f"""v_rcp_f32 v{vl}, v{vl}
    v_sub_f32 v{vG}, 1.0, v{vG}
    v_and_b32 v{vt0}, 15, v{vL}
    v_lshlrev_b32 v{vt0}, 4, v{vt0}
    v_mul_f32 v{vl}, v{vl}, v{vG}
    v_bfe_u32 v{vt1}, v{vL}, 4, 1
    v_mul_u32_u24 v{vt1}, 18432, v{vt1}
    v_add_u32 v{vt0}, v{vt0}, v{vt1}
    v_lshrrev_b32 v{vt1}, 5, v{vL}
    v_lshl_add_u32 v{vt1}, v{vt1}, 8, v{vt0}""")
    for r in range(10): a(f"v_mul_f32 v{O+r}, v{O+r}, v{vl}")
    for k in range(5): a(f"v_cvt_pk_bf16_f32 v{P[0]+k}, v{O+2*k}, v{O+2*k+1}")
    a(f"""buffer_store_dwordx4 v[{P[0]}:{P[0]+3}], v{vt1}, s[{sWS}:{sWS+3}], s{sO} offen
    s_mov_b32 exec_hi, 0
    buffer_store_dword v{P[0]+4}, v{vt0}, s[{sWS}:{sWS+3}], s{sO+1} offen""")
    stamp_end(a, 1, sWS, sWave)
    a("s_endpgm")
    a.label("k2_fallback")
    s0 = S[0]
    a(f"""v_lshlrev_b32 v{aK}, 4, v{vL}
    v_subrev_u32 v{ak}, {48*TILE}, v{ak}
    v_subrev_u32 v{aV}, {48*TILE}, v{aV}
    v_mov_b32 v{K2[0]+1}, 0
    v_mov_b32 v{vt0}, 0xff800000
    s_mov_b32 s{sA}, {KV}""")
    a.label("k2_fb1")
    a(f"""buffer_load_dwordx4 v[{K1[0]}:{K1[0]+3}], v{aK}, s[{sWS}:{sWS+3}], s{sA} offen
    buffer_load_dword v{K2[0]}, v{ak}, s[{sWS}:{sWS+3}], s{sA} offen
    s_waitcnt vmcnt(0)""")
    a(M1(0)); a(M2(0)); a("s_nop 11")
    for r in range(0, 16, 2): a(f"v_max3_f32 v{vt0}, v{s0+r}, v{s0+r+1}, v{vt0}")
    a(f"""s_add_u32 s{sA}, s{sA}, {TILE}
    s_cmp_lt_u32 s{sA}, {KV+64*TILE}
    s_cbranch_scc1 k2_fb1
    v_mov_b32 v{vt1}, v{vt0}
    s_nop 1
    v_permlane32_swap_b32 v{vt0}, v{vt1}
    v_max_f32 v{vt0}, v{vt0}, v{vt1}
    v_cvt_pk_bf16_f32 v{vt1}, v{vt0}, v{vt0}
    v_and_b32 v{vt1}, 0xffff0000, v{vt1}
    v_sub_f32 v{vt0}, v{vt0}, v{vt1}
    v_cvt_pk_bf16_f32 v{Q2+1}, v{vt1}, v{vt0}
    v_cndmask_b32 v{Q2+1}, v{Q2+1}, 0, s[{sHi}:{sHi+1}]
    v_mov_b32 v{K2[0]+1}, 0xbf80bf80
    s_mov_b32 s{sA}, {KV}""")
    for r in range(16): a(f"v_mov_b32 v{O+r}, 0")
    a.label("k2_fb2")
    a(f"""buffer_load_dwordx4 v[{K1[0]}:{K1[0]+3}], v{aK}, s[{sWS}:{sWS+3}], s{sA} offen
    buffer_load_dword v{K2[0]}, v{ak}, s[{sWS}:{sWS+3}], s{sA} offen
    buffer_load_dwordx4 v[{V[0]}:{V[0]+3}], v{aV}, s[{sWS}:{sWS+3}], s{sA} offen
    buffer_load_dwordx4 v[{V[0]+4}:{V[0]+7}], v{aV}, s[{sWS}:{sWS+3}], s{sA} offen offset:624
    s_waitcnt vmcnt(0)""")
    a(M1(0)); a(M2(0)); a("s_nop 11")
    for r in range(16): a(f"v_exp_f32 v{s0+r}, v{s0+r}")
    a("s_nop 0")
    for k in range(8): a(f"v_cvt_pk_bf16_f32 v{P[0]+k}, v{s0+2*k}, v{s0+2*k+1}")
    a("s_nop 1"); a(M3(0, 0)); a(M3(0, 1))
    a(f"""s_add_u32 s{sA}, s{sA}, {TILE}
    s_cmp_lt_u32 s{sA}, {KV+64*TILE}
    s_cbranch_scc1 k2_fb2
    s_nop 11
    v_cndmask_b32 v{vl}, v{O+10}, v{O+12}, s[{sHi}:{sHi+1}]
    s_branch k2_norm""")

    a.label("k2_helper")
    a.vm = list(vm0)
    sV, sS2, sGrp = 30, 31, 32
    a(f"""s_setprio 3
    s_sub_u32 s{sV}, s{sWave}, 8
    v_lshlrev_b32 v{vt0}, 4, v{vL}
    s_mul_i32 s{sA}, s{sV}, 3072
    s_mov_b32 m0, s{sA}
    s_add_u32 s{sA}, s{sA}, {KV}
    s_lshl_b32 s{sB}, s{sV}, 12
    s_add_u32 s{sB}, s{sB}, 12288
    s_waitcnt lgkmcnt(0)""")
    srd(a, sWS, 16, WS_SIZE)
    for k in range(3): a.vmem(f"buffer_load_dwordx4 v{vt0}, s[{sWS}:{sWS+3}], s{sA} offen offset:{1024*k} lds", "c0")
    a.label("k2_dma")
    a(f"s_mov_b32 m0, s{sB}\ns_add_u32 s{sA}, s{sB}, {KV}")
    for k in range(4): a(f"buffer_load_dwordx4 v{vt0}, s[{sWS}:{sWS+3}], s{sA} offen offset:{1024*k} lds")
    a(f"s_add_u32 s{sB}, s{sB}, 16384\ns_cmp_lt_u32 s{sB}, {FLG}\ns_cbranch_scc1 k2_dma")
    a.vm_note("c1", 4); a.vm_note("c2", 8); a.vm_note("c3", 24)
    a(f"s_lshl_b32 s{sA}, s{sV}, 2\ns_add_u32 s{sA}, s{sA}, {FLG}\nv_mov_b32 v{vt1}, s{sA}")
    stamp(a, 1)
    a.vm_wait("c0")
    stamp(a, 2)
    a("s_barrier")
    for k in (1, 2, 3):
        a(f"v_mov_b32 v{vt2}, {k}")
        a.vm_wait(f"c{k}")
        a(f"ds_write_b32 v{vt1}, v{vt2}")
    stamp(a, 3)
    if 'nojob' in EXP: a("s_branch k2_jobend")
    H, R, RING = 16, 32, 48
    load_rf(a, R, vL, vt0, "k2_rf")
    a(f"""s_lshr_b32 s{sS2}, s2, 2
    s_and_b32 s{sGrp}, s2, 3
    s_lshl_b32 s{sGrp}, s{sGrp}, 2
    s_add_u32 s{sGrp}, s{sGrp}, s{sV}
    s_mul_i32 s{sA}, s{sS2}, 36864
    s_add_u32 s{sA}, s{sA}, {XF}
    s_mul_i32 s{sB}, s{sGrp}, 36864
    s_add_u32 s{sB}, s{sB}, {DF}""")
    ND = 8
    def ld(ks):
        r = RING + 8 * (ks % ND)
        a.vmem(f"buffer_load_dwordx4 v[{r}:{r+3}], v{vt0}, s[{sWS}:{sWS+3}], s{sA} offen offset:{(ks&3)*1024}", f"j{ks}")
        a.vmem(f"buffer_load_dwordx4 v[{r+4}:{r+7}], v{vt0}, s[{sWS}:{sWS+3}], s{sB} offen offset:{(ks&3)*1024}", f"j{ks}")
        if ks & 3 == 3: a(f"s_add_u32 s{sA}, s{sA}, 4096\ns_add_u32 s{sB}, s{sB}, 4096")
    for ks in range(ND): ld(ks)
    for ks in range(36):
        r = RING + 8 * (ks % ND)
        a.vm_wait(f"j{ks}")
        a(f"v_mfma_f32_32x32x16_bf16 v[{H}:{H+15}], v[{r}:{r+3}], v[{r+4}:{r+7}], " + ("0" if ks == 0 else f"v[{H}:{H+15}]"))
        if ks + ND < 36: ld(ks + ND)
    a("s_nop 11")
    fnet_tail(a, H, RING, RING+16, R, RING+32, vL, sWS, sS2, sGrp, 34, "k2_nony")
    a.label("k2_jobend")
    stamp(a, 4)
    stamp_end(a, 1, sWS, sWave)
    a.label("k2_end")
    a("s_endpgm")
    a.label("k2_code_end")
    return a

K3_LDS = 112640 + 4*2304
def gen_k3():
    a = Asm()
    sWS, sWo, sRe, sIm, sOut = 8, 12, 40, 44, 48
    sV, sT1, sJ, sA, sB, sC, sD, sE, sRb = 52, 53, 54, 55, 56, 57, 58, 59, 60
    vL, vt0, vt1, vt2, vt3, vGs, vWm, vWx, vG, vTr = 1, 2, 3, 4, 5, 6, 7, 8, 9, 10
    ACC, W2, OB, AR = 12, 32, 48, 120
    a("s_cmp_ge_u32 s2, 256\ns_cbranch_scc1 k3_end")
    stamp(a, 0)
    a("s_load_dwordx4 s[16:19], s[0:1], 8\ns_load_dwordx2 s[20:21], s[0:1], 72\ns_load_dwordx2 s[22:23], s[0:1], 88\ns_load_dwordx2 s[24:25], s[0:1], 104")
    code_prefetch(a, vt0, 11, "k3_code_end", "k3_pf")
    a(f"""v_lshrrev_b32 v{vt0}, 6, v0
    v_and_b32 v{vL}, 63, v0
    v_readfirstlane_b32 s{sV}, v{vt0}
    s_bfe_u32 s{sA}, s2, 0x20003
    s_and_b32 s{sT1}, s2, 7
    s_lshl_b32 s{sA}, s{sA}, 3
    s_add_u32 s{sT1}, s{sT1}, s{sA}
    s_lshr_b32 s{sJ}, s2, 5""")
    a(f"""v_and_b32 v{vt0}, 24, v{vL}
    v_lshrrev_b32 v{vt1}, 5, v{vL}
    v_lshl_add_u32 v{vt0}, v{vt1}, 2, v{vt0}
    v_bfe_u32 v{vt1}, v{vL}, 1, 2
    v_add_u32 v{vt0}, v{vt0}, v{vt1}
    v_and_b32 v{vt1}, 1, v{vL}
    v_lshlrev_b32 v{vt1}, 4, v{vt1}
    s_movk_i32 s{sA}, {GP}
    v_mad_u32_u24 v{vGs}, v{vt0}, s{sA}, v{vt1}
    v_lshrrev_b32 v{vt2}, 4, v{vt0}
    v_lshl_add_u32 v{vt2}, v{vt2}, 1, v{vt0}
    s_movk_i32 s{sA}, 1152
    v_mad_u32_u24 v{vWm}, v{vt2}, s{sA}, v{vt1}
    v_lshrrev_b32 v{vt2}, 1, v{vt0}
    v_lshl_add_u32 v{vt2}, v{vt2}, 4, v{vt0}
    v_add_u32 v{vt2}, 16, v{vt2}
    v_mad_u32_u24 v{vWx}, v{vt2}, s{sA}, v{vt1}
    s_lshr_b32 s{sRb}, s{sV}, 1
    s_lshl_b32 s{sRb}, s{sRb}, 5
    s_add_u32 s{sRb}, s{sRb}, s{sT1}
    s_mul_i32 s{sE}, s{sJ}, 144
    s_waitcnt lgkmcnt(0)""")
    srd(a, sWS, 24, WS_SIZE); srd(a, sWo, 20, 576*1152)
    def dma5(v, r, soff):
        for mu in range(5):
            a(f"s_mov_b32 m0, s{sD}\ns_nop 0" if mu == 0 else "s_add_u32 m0, m0, 992\ns_nop 0")
            a.vmem(f"buffer_load_dwordx4 v{v}, s[{r}:{r+3}], s{soff} offen offset:{32*mu} lds", "a")
    a(f"""s_mul_i32 s{sA}, s{sT1}, {128*GP}
    s_mul_i32 s{sB}, s{sV}, {32*GP}
    s_add_u32 s{sA}, s{sA}, s{sB}
    s_add_u32 s{sA}, s{sA}, {GT}
    s_add_u32 s{sA}, s{sA}, s{sE}
    s_mul_i32 s{sD}, s{sV}, 5120""")
    dma5(vGs, sWS, sA)
    srd(a, sRe, 16, 2048*4096); srd(a, sIm, 18, 2048*4096)
    a(f"""v_and_b32 v{vt0}, 15, v{vL}
    s_and_b32 s{sA}, s{sV}, 1
    s_lshl_b32 s{sA}, s{sA}, 4
    v_add_u32 v{vt0}, s{sA}, v{vt0}
    v_lshlrev_b32 v{vt1}, 18, v{vt0}
    v_lshrrev_b32 v{vt2}, 4, v{vL}
    v_lshl_add_u32 v{vt1}, v{vt2}, 4, v{vt1}
    s_lshl_b32 s{sA}, s{sRb}, 12
    v_lshlrev_b32 v{vt0}, 2, v{vt0}
    s_lshl_b32 s{sB}, s{sRb}, 7
    s_add_u32 s{sB}, s{sB}, {GG}""")
    for k in range(4):
        r = sRe if k < 2 else sIm
        a.vmem(f"buffer_load_dwordx4 v[{W2+4*k}:{W2+4*k+3}], v{vt1}, s[{r}:{r+3}], s{sA} offen offset:{64*(k&1)}", "a")
    a.vmem(f"buffer_load_dword v{vG}, v{vt0}, s[{sWS}:{sWS+3}], s{sB} offen", "a")
    a(f"s_mul_i32 s{sA}, s{sV}, {36*1152}\ns_add_u32 s{sA}, s{sA}, s{sE}")
    for i in range(4):
        a(f"s_add_u32 s{sD}, s{sD}, 20480")
        dma5(vWm, sWo, sA)
        a(f"s_add_u32 s{sA}, s{sA}, {4*36*1152}")
    a(f"s_cmp_ge_u32 s{sV}, 2\ns_cbranch_scc1 k3_nox")
    a(f"s_mul_i32 s{sA}, s{sV}, {288*1152}\ns_add_u32 s{sA}, s{sA}, s{sE}\ns_add_u32 s{sD}, s{sD}, 20480")
    dma5(vWx, sWo, sA)
    a.label("k3_nox")
    a(f"""s_lshl_b32 s{sA}, s{sT1}, 2
    s_add_u32 s{sA}, s{sA}, s{sV}
    s_mul_i32 s{sA}, s{sA}, 18432
    s_add_u32 s{sA}, s{sA}, {OF}
    v_lshlrev_b32 v{vt0}, 4, v{vL}
    v_lshlrev_b32 v{vTr}, 3, v{vL}""")
    for ks in range(18):
        a(f"buffer_load_dwordx4 v[{OB+4*ks}:{OB+4*ks+3}], v{vt0}, s[{sWS}:{sWS+3}], s{sA} offen offset:{(ks&3)*1024}")
        if ks & 3 == 3: a(f"s_add_u32 s{sA}, s{sA}, 4096")
    srd(a, sOut, 22, 2048*1152)
    stamp(a, 1)
    a("s_waitcnt vmcnt(0)\ns_barrier")
    stamp(a, 2)
    NR = 7
    base = [0]
    def rd(f):
        if f - base[0] >= 64:
            a(f"v_add_u32 v{vTr}, 65536, v{vTr}"); base[0] += 64
        r = AR + 4 * (f % 8)
        a(f"ds_read_b64_tr_b16 v[{r}:{r+1}], v{vTr} offset:{(f-base[0])*1024}")
        a(f"ds_read_b64_tr_b16 v[{r+2}:{r+3}], v{vTr} offset:{(f-base[0])*1024+512}")
    for f in range(NR): rd(f)
    for f in range(110):
        ks, mu = divmod(f, 5)
        if f == 20:
            a("s_nop 3")
            for r in range(20): a(f"v_mul_f32 v{ACC+r}, v{ACC+r}, v{vG}")
        n = min(110, f + NR) - f - 1
        a(f"s_waitcnt lgkmcnt({2*n})")
        r = AR + 4 * (f % 8)
        B = W2 + 4*ks if ks < 4 else OB + 4*(ks-4)
        ac = ACC + 4*mu
        a(f"v_mfma_f32_16x16x32_bf16 v[{ac}:{ac+3}], v[{r}:{r+3}], v[{B}:{B+3}], " + ("0" if ks == 0 else f"v[{ac}:{ac+3}]"))
        if f + NR < 110: rd(f + NR)
    stamp(a, 3)
    a(f"""s_mul_i32 s{sA}, s{sV}, 2304
    s_add_u32 s{sA}, s{sA}, 112640
    v_and_b32 v{vt1}, 15, v{vL}
    v_mul_u32_u24 v{vt1}, 144, v{vt1}
    v_lshrrev_b32 v{vt2}, 4, v{vL}
    v_lshl_add_u32 v{vt1}, v{vt2}, 3, v{vt1}
    v_add_u32 v{vt1}, s{sA}, v{vt1}
    v_add_u32 v{vt0}, s{sA}, v{vt0}""")
    for mu in range(5):
        ac = ACC + 4*mu
        a(f"v_cvt_pk_bf16_f32 v{W2+2*mu}, v{ac}, v{ac+1}\nv_cvt_pk_bf16_f32 v{W2+2*mu+1}, v{ac+2}, v{ac+3}")
        if mu == 4: a("s_mov_b32 exec_hi, 0")
        a(f"ds_write_b64 v{vt1}, v[{W2+2*mu}:{W2+2*mu+1}] offset:{32*mu}")
    a(f"""s_mov_b32 exec_hi, -1
    s_and_b32 s{sA}, s{sV}, 1
    s_mul_i32 s{sA}, s{sA}, {16*73728}
    s_mul_i32 s{sB}, s{sRb}, 1152
    s_add_u32 s{sA}, s{sA}, s{sB}
    s_add_u32 s{sA}, s{sA}, s{sE}
    s_mov_b32 s{sB}, {73728-144}
    s_waitcnt lgkmcnt(0)""")
    for it in range(3):
        a(f"ds_read_b128 v[{OB+4*it}:{OB+4*it+3}], v{vt0} offset:{1024*it}")
    for it in range(3):
        a(f"""v_add_u32 v{vt1}, {64*it}, v{vL}
        v_mul_u32_u24 v{vt2}, 7282, v{vt1}
        v_lshrrev_b32 v{vt2}, 16, v{vt2}
        v_lshlrev_b32 v{vt1}, 4, v{vt1}
        v_mad_u32_u24 v{vGs+it}, v{vt2}, s{sB}, v{vt1}""")
    for it in range(3):
        a(f"s_waitcnt lgkmcnt({2-it})")
        if it == 2: a("s_mov_b64 exec, 0xffff")
        a(f"buffer_store_dwordx4 v[{OB+4*it}:{OB+4*it+3}], v{vGs+it}, s[{sOut}:{sOut+3}], s{sA} offen")
    stamp_end(a, 2, sWS, sV)
    a.label("k3_end")
    a("s_endpgm")
    a.label("k3_code_end")
    return a

def wave_max(a, v, s):
    for d in ("row_shr:1", "row_shr:2", "row_shr:4", "row_shr:8"):
        a("s_nop 1")
        a(f"v_max_f32_dpp v{v}, v{v}, v{v} {d} row_mask:0xf bank_mask:0xf")
    a("s_nop 1")
    a(f"v_max_f32_dpp v{v}, v{v}, v{v} row_bcast:15 row_mask:0xa bank_mask:0xf")
    a("s_nop 1")
    a(f"v_max_f32_dpp v{v}, v{v}, v{v} row_bcast:31 row_mask:0xc bank_mask:0xf")
    a("s_nop 0")
    a(f"v_readlane_b32 s{s}, v{v}, 63")
    a("s_nop 1")

def kd(name, vgpr, sgpr=102):
    return f""".p2align 6
.amdhsa_kernel {name}
  .amdhsa_next_free_vgpr {vgpr}
  .amdhsa_next_free_sgpr {sgpr}
  .amdhsa_accum_offset {(vgpr+3)//4*4}
  .amdhsa_group_segment_fixed_size 0
  .amdhsa_kernarg_size 112
  .amdhsa_user_sgpr_count 2
  .amdhsa_user_sgpr_kernarg_segment_ptr 1
  .amdhsa_system_sgpr_workgroup_id_x 1
.end_amdhsa_kernel
"""

def build(kernels):
    out = []
    for lab, a, g, b, lds, v in kernels:
        out.append(f"; @launch kernel={lab} grid=({g},1,1) block=({b},1,1) lds={lds}")
    out.append('.amdgcn_target "amdgcn-amd-amdhsa--gfx950"\n.text')
    for lab, a, g, b, lds, v in kernels:
        for p in check(a.lines): print(f"[{lab}] {p}", file=sys.stderr)
        out.append(f".globl {lab}\n.p2align 8\n.type {lab},@function\n{lab}:")
        out.append(a.text())
    out.append(".p2align 8\n.type rf_table,@object\nrf_table:")
    w = rf_table()
    for i in range(0, len(w), 8): out.append(".long " + ",".join(f"0x{x:08x}" for x in w[i:i+8]))
    out.append(".size rf_table, 4096")
    out.append('.section .rodata,"a"')
    for lab, a, g, b, lds, v in kernels: out.append(kd(lab, v))
    return "\n".join(out) + "\n"

def default_list():
    return [("k1_kernel", gen_k1(), 256, 384, K1_LDS, 96), ("k2_kernel", gen_k2(), 256, 768, K2_LDS, 112), ("k3_kernel", gen_k3(), 256, 256, K3_LDS, 152)]

if __name__ == "__main__":
    if len(sys.argv) > 2 and sys.argv[2] == "stamp": STAMP = True
    EXP.update(sys.argv[3:])
    ks = default_list()
    open(sys.argv[1] if len(sys.argv) > 1 else "out.s", "w").write(build(ks))
```

```python
import math, sys
import gen as G0
from gen import Asm, check, srd, f2u, bf16, CQ, GP, TILE, wave_max, load_rf, rf_table, kd
EP = 0x0
FL0, FL1, FL2, FL3 = 0x8000, 0x10000, 0x20000, 0x30000
KMG = 0x40000
GG = 0x41000
KVG = 0x50000
OF = 0x100000
GT = 0x340000
XF = 0x800000
DF = 0x1100000
ST = 0x1200000
WS_SIZE = 0x1300000
G0.GT = GT; G0.ST = ST
OFFS, LMIN = 80.0, 2.0**-100
LX, LD, LW, LGATE, FLG = 0, 73728, 110592, 156672, 159744
F_KV, F_PRG, F_S1F, F_S1, F_CNT2, F_CNT3, F_TA, F_S2, F_S0, F_DUTY, F_LD, F_G = FLG, FLG+16, FLG+48, FLG+52, FLG+56, FLG+60, FLG+64, FLG+80, FLG+84, FLG+88, FLG+96, FLG+256
J1 = 20
def ltile(j): return LW + TILE*j if j < J1 else TILE*(j - J1)
PRIO = {0: 2, 32: 1, 60: 0}
SPIN = 400000
EXP = set()
def stamp(a, s, g="A"):
    if s == 0 or g in EXP or (g == "A" and not EXP & {"P", "H"}): G0.stamp(a, s)

sWS, sRA, sRB, sRC, sRD = 8, 12, 40, 44, 48
sNon, sWave, sT1, sJ = 54, 56, 57, 58
sA, sB, sC, sD, sE, sF, sG, sH = 59, 60, 61, 62, 63, 64, 65, 66
sHi = 68
sRot = 67
vL = 1

_n = [0]
def stamp12(a, slot):
    if not G0.STAMP or EXP & {'P', 'H'}: return
    _n[0] += 1
    a(f"s_sub_u32 s3, s{sWave}, 1\ns_cmp_ge_u32 s3, 2\ns_cbranch_scc1 f_st{_n[0]}")
    stamp(a, slot)
    a.label(f"f_st{_n[0]}")

def lds_wait(a, lab, vaddr, vt, val):
    a.label(lab)
    a(f"ds_read_b32 v{vt}, v{vaddr}\ns_waitcnt lgkmcnt(0)\nv_cmp_gt_u32 vcc, {val}, v{vt}\ns_cbranch_vccnz {lab}")

def tag_wait(a, lab, vaddr, soff, n, vt, step=1024, sleep=2):
    a(f"s_mov_b32 s{sH}, 0")
    a.label(lab)
    for i in range(n): a(f"buffer_load_dwordx2 v[{vt+2*i}:{vt+2*i+1}], v{vaddr}, s[{sWS}:{sWS+3}], s{soff} offen offset:{i*step} sc1")
    a(f"s_add_u32 s{sH}, s{sH}, 1\ns_waitcnt vmcnt(0) lgkmcnt(0)")
    for i in range(n):
        a(f"v_cmp_ne_u64 {'vcc' if i == 0 else 's[6:7]'}, s[{sNon}:{sNon+1}], v[{vt+2*i}:{vt+2*i+1}]")
        if i: a("s_nop 0\ns_or_b64 vcc, vcc, s[6:7]")
    a(f"s_cbranch_vccz {lab}_ok\ns_cmp_ge_u32 s{sH}, {SPIN}\ns_cbranch_scc1 {lab}_ok\ns_sleep {sleep}\ns_branch {lab}")
    a.label(lab + "_ok")
    a.vm = []

def tag_signal(a, area, nrep, v0, v1):
    a(f"""s_lshl_b32 s{sG}, s{sT1}, 7
    s_lshl_b32 s{sH}, s{sJ}, 3
    s_add_u32 s{sG}, s{sG}, s{sH}
    s_add_u32 s{sG}, s{sG}, {area}
    v_lshlrev_b32 v{v0}, 12, v{vL}
    v_mov_b32 v{v1}, s{sNon}
    v_mov_b32 v{v1+1}, s{sNon+1}
    s_mov_b64 exec, {(1 << nrep) - 1}
    buffer_store_dwordx2 v[{v1}:{v1+1}], v{v0}, s[{sWS}:{sWS+3}], s{sG} offen sc1
    s_mov_b64 exec, -1""")

def last_wave_signals(a, lab, cnt, total, area, nrep, v0, v1):
    a(f"""s_waitcnt vmcnt(0)
    v_mov_b32 v{v0}, {cnt}
    v_mov_b32 v{v1}, 1
    s_mov_b64 exec, 1
    ds_add_rtn_u32 v{v1}, v{v0}, v{v1}
    s_waitcnt lgkmcnt(0)
    v_readfirstlane_b32 s{sG}, v{v1}
    s_mov_b64 exec, -1
    s_cmp_lg_u32 s{sG}, {total-1}
    s_cbranch_scc1 {lab}""")
    tag_signal(a, area, nrep, v0, v1)
    a.label(lab)
    a.vm = []

def xsrc(a, dst, t0, t1):
    a(f"""v_lshrrev_b32 v{t0}, 4, v{vL}
    v_xor_b32 v{t0}, v{t0}, v{vL}
    v_and_b32 v{t0}, 3, v{t0}
    v_lshlrev_b32 v{t0}, 4, v{t0}
    v_lshrrev_b32 v{t1}, 2, v{vL}
    s_mov_b32 s3, 73728
    v_mad_u32_u24 v{dst}, v{t1}, s3, v{t0}""")
def xread(a, r0, r1, t0, t1):
    a(f"""v_lshrrev_b32 v{t0}, 5, v{vL}
    v_lshrrev_b32 v{t1}, 2, v{vL}
    v_xor_b32 v{t0}, v{t0}, v{t1}
    v_and_b32 v{t0}, 3, v{t0}
    v_and_b32 v{t1}, 31, v{vL}
    v_lshlrev_b32 v{t1}, 6, v{t1}
    v_lshl_add_u32 v{r0}, v{t0}, 4, v{t1}""")
def dense_pos(a, sph, pos, c16, t):
    a(f"""s_lshl_b32 s3, s{sph}, 6
    v_add_u32 v{c16}, s3, v{vL}
    v_mul_u32_u24 v{pos}, 7282, v{c16}
    v_lshrrev_b32 v{pos}, 16, v{pos}
    v_mul_u32_u24 v{t}, 9, v{pos}
    v_sub_u32 v{c16}, v{c16}, v{t}
    v_lshlrev_b32 v{c16}, 4, v{c16}""")

def dft_ptr(a, vP, sg, t1, t2, t3):
    a(f"""v_and_b32 v{t1}, 3, v{vL}
    v_bfe_u32 v{t2}, v{vL}, 2, 1
    v_lshl_add_u32 v{t1}, v{t2}, 3, v{t1}
    v_bfe_u32 v{t2}, v{vL}, 3, 1
    v_lshl_add_u32 v{t1}, v{t2}, 2, v{t1}
    s_lshl_b32 s3, s{sg}, 4
    v_add_u32 v{t1}, s3, v{t1}
    s_cmp_eq_u32 s{sg}, 0
    s_cselect_b32 s6, 0x10000, 0
    s_mov_b32 s7, s6
    v_mov_b32 v{t2}, 288
    v_cndmask_b32 v{t1}, v{t1}, v{t2}, s[6:7]
    v_mul_u32_u24 v{t1}, 1152, v{t1}
    v_lshrrev_b32 v{t2}, 5, v{vL}
    v_lshl_add_u32 v{t1}, v{t2}, 4, v{t1}
    s_or_b32 s6, s6, 0xffff
    s_mov_b32 s7, s6
    v_mov_b32 v{vP}, s24
    v_mov_b32 v{vP+1}, s25
    v_mov_b32 v{t2}, s22
    v_mov_b32 v{t3}, s23
    v_cndmask_b32 v{vP}, v{vP}, v{t2}, s[6:7]
    v_cndmask_b32 v{vP+1}, v{vP+1}, v{t3}, s[6:7]
    v_add_co_u32 v{vP}, vcc, v{vP}, v{t1}
    s_nop 1
    v_addc_co_u32 v{vP+1}, vcc, 0, v{vP+1}, vcc""")

def gen():
    a = Asm()
    a.label("f_code")
    a("s_cmp_ge_u32 s2, 256\ns_cbranch_scc1 f_end")
    stamp(a, 0)
    a("s_load_dwordx2 s[52:53], s[0:1], 104\ns_load_dwordx16 s[16:31], s[0:1], 0\ns_load_dwordx8 s[32:39], s[0:1], 64")
    a(f"""v_lshrrev_b32 v2, 6, v0
    v_and_b32 v{vL}, 63, v0
    v_readfirstlane_b32 s{sWave}, v2
    s_bfe_u32 s3, s2, 0x20003
    s_lshr_b32 s{sRot}, s2, 6
    s_add_u32 s{sRot}, s{sRot}, s3
    s_and_b32 s{sRot}, s{sRot}, 3
    s_lshl_b32 s{sRot}, s{sRot}, 1
    s_and_b32 s{sT1}, s2, 7
    s_lshl_b32 s3, s3, 3
    s_add_u32 s{sT1}, s{sT1}, s3
    s_lshr_b32 s{sJ}, s2, 5
    s_mov_b32 s{sHi}, 0
    s_mov_b32 s{sHi+1}, -1
    s_cmp_ge_u32 s{sWave}, 4
    s_cbranch_scc1 f_att
    s_setprio 3
    s_cmp_eq_u32 s{sWave}, 0
    s_cbranch_scc1 f_duty""")
    def common_srd():
        a("s_waitcnt lgkmcnt(0)")
        a(f"s_load_dwordx2 s[{sNon}:{sNon+1}], s[52:53], {EP}")
        srd(a, sWS, 52, WS_SIZE)
    def nonce():
        a(f"s_add_u32 s{sNon}, s{sNon}, 1")
    t0, t1, t2, t3 = 8, 9, 10, 11
    vF = 4
    vXs, vDs, vW = 2, 3, 12
    sG_, sXo, sDa, sDb, sDs, sM, sXp = 70, 71, 72, 73, 74, 75, 76
    a("s_barrier")
    xsrc(a, vXs, t0, t1)
    a(f"""s_sub_u32 s{sG_}, s{sWave}, 1
    s_and_b32 s{sA}, s{sJ}, 1
    s_mul_i32 s{sM}, s{sA}, 36864
    s_lshl_b32 s{sA}, s{sA}, 5
    s_add_u32 s{sA}, s{sA}, s{sT1}
    s_mul_i32 s{sXo}, s{sA}, 1152
    s_cmp_ge_u32 s{sJ}, 4
    s_cbranch_scc1 f_lF
    v_and_b32 v{t2}, 3, v{vL}
    v_mul_u32_u24 v{vDs}, 36, v{t1}
    v_lshl_add_u32 v{vDs}, v{t2}, 4, v{vDs}
    s_mov_b32 s{sDa}, 0
    s_movk_i32 s{sDb}, 576
    s_movk_i32 s{sDs}, 1152
    s_cmp_lt_u32 s{sJ}, 2
    s_waitcnt lgkmcnt(0)
    s_cselect_b32 s{sRB}, s30, s32
    s_cselect_b32 s{sRB+1}, s31, s33
    s_mov_b32 s{sRB+2}, {576*36}
    s_mov_b32 s{sRB+3}, 0x20000
    s_mov_b64 s[{sRC}:{sRC+1}], s[{sRB}:{sRB+1}]
    s_mov_b32 s{sRC+2}, {576*36}
    s_mov_b32 s{sRC+3}, 0x20000
    s_branch f_lI""")
    a.label("f_lF")
    a(f"""v_and_b32 v{t2}, 3, v{t1}
    v_bfe_u32 v{t3}, v{t1}, 2, 1
    v_lshl_add_u32 v{t2}, v{t3}, 3, v{t2}
    v_bfe_u32 v{t3}, v{t1}, 3, 1
    v_lshl_add_u32 v{t2}, v{t3}, 2, v{t2}
    s_movk_i32 s3, 1152
    v_mad_u32_u24 v{vDs}, v{t2}, s3, v{t0}
    s_bfe_u32 s3, s{sJ}, 0x10001
    s_add_u32 s3, s3, 16
    s_mul_i32 s{sDa}, s3, {16*1152}
    s_mov_b32 s{sDb}, s{sDa}
    s_movk_i32 s{sDs}, 64
    s_waitcnt lgkmcnt(0)""")
    srd(a, sRB, 22, 576*1152); srd(a, sRC, 24, 576*1152)
    a.label("f_lI")
    srd(a, sRA, 16, 2048*1152)
    stamp(a, 1, "P")
    a(f"s_mov_b32 s{sB}, s{sG_}")
    a.label("f_lL")
    a(f"""s_lshl_b32 s{sC}, s{sRot}, 1
    s_add_u32 s{sC}, s{sC}, s{sB}
    s_cmp_ge_u32 s{sC}, 18
    s_cselect_b32 s3, 18, 0
    s_sub_u32 s{sC}, s{sC}, s3
    s_lshl_b32 s{sD}, s{sB}, 11
    s_add_u32 m0, s{sD}, s{sM}
    s_lshl_b32 s3, s{sC}, 6
    s_add_u32 s3, s3, s{sXo}
    buffer_load_dwordx4 v{vXs}, s[{sRA}:{sRA+3}], s3 offen lds
    s_add_u32 m0, m0, 1024
    s_add_u32 s3, s3, 1179648
    buffer_load_dwordx4 v{vXs}, s[{sRA}:{sRA+3}], s3 offen lds
    s_add_u32 m0, s{sD}, {LD}
    s_mul_i32 s{sC}, s{sC}, s{sDs}
    s_add_u32 s3, s{sC}, s{sDa}
    buffer_load_dwordx4 v{vDs}, s[{sRB}:{sRB+3}], s3 offen lds
    s_add_u32 m0, m0, 1024
    s_add_u32 s3, s{sC}, s{sDb}
    buffer_load_dwordx4 v{vDs}, s[{sRC}:{sRC+3}], s3 offen lds
    s_add_u32 s{sB}, s{sB}, 3
    s_cmp_lt_u32 s{sB}, 18
    s_cbranch_scc1 f_lL""")
    for st in range(3): a.vm_note(f"d{st}", 8)
    stamp(a, 2, "P")
    a(f"s_load_dwordx2 s[{sNon}:{sNon+1}], s[52:53], {EP}")
    srd(a, sWS, 52, WS_SIZE); srd(a, sRB, 28, 576*1152)
    for i in range(3):
        a(f"s_mul_i32 s{sC}, s{sG_}, 3\ns_add_u32 s{sC}, s{sC}, {i}")
        dense_pos(a, sC, t1, t0, t2)
        a(f"""v_and_b32 v{t2}, 3, v{t1}
        v_bfe_u32 v{t3}, v{t1}, 2, 2
        v_and_b32 v{t1}, 48, v{t1}
        v_lshl_add_u32 v{t1}, v{t2}, 2, v{t1}
        v_add_u32 v{t1}, v{t1}, v{t3}
        s_movk_i32 s3, 1152
        v_mad_u32_u24 v{vW+i}, v{t1}, s3, v{t0}""")
    a(f"""s_lshl_b32 s3, s{sG_}, 2
    s_add_u32 s3, s3, {F_LD}
    v_mov_b32 v{vF}, s3
    v_mov_b32 v5, {F_DUTY}
    s_mul_i32 s{sE}, s{sJ}, 144
    s_mul_i32 s{sF}, s{sG_}, 3072
    s_and_b32 s{sA}, s{sJ}, 1
    s_xor_b32 s{sA}, s{sA}, 1
    s_mul_i32 s{sM}, s{sA}, 36864
    s_lshl_b32 s3, s{sG_}, 10
    s_add_u32 s{sM}, s{sM}, s3
    s_lshl_b32 s{sA}, s{sA}, 5
    s_add_u32 s{sA}, s{sA}, s{sT1}
    s_mul_i32 s{sXp}, s{sA}, 1152
    s_mul_i32 s3, s{sG_}, 1179648
    s_add_u32 s{sXp}, s{sXp}, s3""")
    def ldflag(tag, val):
        a(f"v_mov_b32 v{t1}, {val}")
        a.vm_wait(tag)
        a(f"ds_write_b32 v{vF}, v{t1}")
    def chunk(c, withx):
        base = LW + 9216*c if c < 5 else LD + 9216*(c-5)
        a(f"""s_add_u32 s{sC}, s{sRot}, {c}
        s_cmp_ge_u32 s{sC}, 9
        s_cselect_b32 s3, 9, 0
        s_sub_u32 s{sC}, s{sC}, s3""")
        if withx:
            a(f"s_add_u32 m0, s{sM}, {4096*c}\ns_lshl_b32 s3, s{sC}, 7\ns_add_u32 s3, s3, s{sXp}")
            a.vmem(f"buffer_load_dwordx4 v{vXs}, s[{sRA}:{sRA+3}], s3 offen lds", f"c{c}")
            a("s_add_u32 m0, m0, 1984\ns_nop 0")
            a.vmem(f"buffer_load_dwordx4 v{vXs}, s[{sRA}:{sRA+3}], s3 offen offset:64 lds", f"c{c}")
        a(f"s_add_u32 m0, s{sF}, {base}\ns_mul_i32 s3, s{sC}, 73728\ns_add_u32 s3, s3, s{sE}")
        for i in range(3):
            if i: a("s_add_u32 m0, m0, 1024\ns_nop 0")
            a.vmem(f"buffer_load_dwordx4 v{vW+i}, s[{sRB}:{sRB+3}], s3 offen lds", f"c{c}")
    def chunks(withx, lab):
        ldflag("d0", 1); ldflag("d1", 2)
        chunk(0, withx)
        ldflag("d2", 3)
        chunk(1, withx)
        for c in range(2, 9):
            if c == 5: lds_wait(a, lab, 5, t1, 1)
            chunk(c, withx)
            ldflag(f"c{c-2}", 4 + c - 2)
        stamp(a, 3, "P")
        ldflag("c7", 11); ldflag("c8", 12)
        stamp(a, 4, "P")
    vml = list(a.vm)
    a(f"s_cmp_eq_u32 s{sWave}, 3\ns_cbranch_scc1 f_l3")
    chunks(True, "f_l1w")
    a("s_waitcnt lgkmcnt(0)")
    nonce()
    a("s_branch f_kv0")
    a.label("f_l3")
    a.vm = list(vml)
    srd(a, sRC, 36, 1152)
    for i in range(2):
        a(f"""s_lshl_b32 s3, s{sRot}, 7
        s_add_u32 s3, s3, {1024*i}
        v_lshlrev_b32 v{t1}, 4, v{vL}
        v_add_u32 v{t1}, s3, v{t1}
        v_subrev_u32 v{t2}, 1152, v{t1}
        v_min_u32 v{t1}, v{t1}, v{t2}
        s_mov_b32 m0, {LGATE + 1024*i}
        s_nop 0""")
        a.vmem(f"buffer_load_dwordx4 v{t1}, s[{sRC}:{sRC+3}], 0 offen lds", "c0")
    chunks(False, "f_l3w")
    FR = 32
    a(f"""v_bfe_u32 v{t1}, v{vL}, 2, 2
    v_add_u32 v{t1}, s{sT1}, v{t1}
    v_and_b32 v{t1}, 31, v{t1}
    v_lshlrev_b32 v{t1}, 7, v{t1}
    v_and_b32 v{t2}, 3, v{vL}
    v_lshl_add_u32 v{t1}, v{t2}, 3, v{t1}
    s_and_b32 s{sD}, s{sT1}, 7
    s_lshl_b32 s{sD}, s{sD}, 12
    s_add_u32 s{sD}, s{sD}, {FL1}
    s_waitcnt lgkmcnt(0)""")
    nonce()
    tag_wait(a, "f_m2", t1, sD, 1, FR, sleep=1)
    a(f"v_mov_b32 v{t1}, {F_S1F}\nv_mov_b32 v{t2}, 1\nds_write_b32 v{t1}, v{t2}")
    stamp(a, 5, "P")
    a("s_branch f_kv0")

    a.label("f_duty")
    a.vm = []
    vR0, vR1, vD0, vD1 = 2, 3, 6, 7
    ACC, R = 16, 80
    sRb, sGrp = 70, 76
    a(f"""v_lshlrev_b32 v{t0}, 2, v{vL}
    v_add_u32 v{t0}, {FLG}, v{t0}
    v_mov_b32 v{t1}, 0
    ds_write_b32 v{t0}, v{t1}""")
    xread(a, vR0, vR1, t2, t3)
    common_srd()
    a("s_barrier")
    a(f"""s_and_b32 s{sA}, s{sJ}, 1
    s_lshl_b32 s{sRb}, s{sA}, 5
    s_add_u32 s{sRb}, s{sRb}, s{sT1}
    s_mul_i32 s{sA}, s{sA}, 36864
    v_add_u32 v{vD0}, {LD}, v{vR0}
    v_xor_b32 v{vD1}, 32, v{vD0}
    v_add_u32 v{vR0}, s{sA}, v{vR0}
    v_xor_b32 v{vR1}, 32, v{vR0}
    v_and_b32 v{vF}, 3, v{vL}
    v_min_u32 v{vF}, 2, v{vF}
    v_lshlrev_b32 v{vF}, 2, v{vF}
    v_add_u32 v{vF}, {F_LD}, v{vF}
    s_cmp_ge_u32 s{sJ}, 4
    s_cbranch_scc1 f_cF
    v_and_b32 v{t2}, 3, v{vL}
    v_and_b32 v{t0}, 1, v{vL}
    v_bfe_u32 v{t3}, v{vL}, 1, 1
    v_lshl_or_b32 v{t0}, v{t0}, 1, v{t3}
    v_bfe_u32 v{t3}, v{vL}, 4, 1
    v_cmp_eq_u32 vcc, 0, v{t3}
    v_bfe_u32 v{vD0}, v{vL}, 2, 2
    v_lshrrev_b32 v{vD1}, 5, v{vL}
    v_cndmask_b32 v{t0}, v{t2}, v{t0}, vcc
    v_lshl_add_u32 v{vD0}, v{vD1}, 3, v{vD0}
    v_lshlrev_b32 v{vD0}, 6, v{vD0}
    v_lshl_add_u32 v{vD0}, v{t3}, 5, v{vD0}
    v_lshl_add_u32 v{vD0}, v{t0}, 3, v{vD0}
    v_add_u32 v{vD0}, {LD}, v{vD0}
    s_cmp_ge_u32 s{sJ}, 2
    s_cbranch_scc1 f_cV""")
    def duty_chain(kind):
        def reads(s):
            b = FR + 16*(s & 1)
            for p in range(2):
                a(f"ds_read_b128 v[{b+8*p}:{b+8*p+3}], v{vR1 if p else vR0} offset:{2048*s}")
                if kind == "F": a(f"ds_read_b128 v[{b+8*p+4}:{b+8*p+7}], v{vD1 if p else vD0} offset:{2048*s}")
                elif kind == "G": a(f"ds_read_b128 v[{b+8*p+4}:{b+8*p+7}], v{vD0} offset:{64*s+32*p}")
                else:
                    a(f"ds_read_b64_tr_b16 v[{b+8*p+4}:{b+8*p+5}], v{vD0} offset:{2048*s+1024*p}")
                    a(f"ds_read_b64_tr_b16 v[{b+8*p+6}:{b+8*p+7}], v{vD0} offset:{2048*s+1024*p+256}")
        n = 2 if kind in "FG" else 3
        for s in range(18):
            if s % 6 == 0:
                if kind != "G": lds_wait(a, f"f_d{kind}{s}", vF, t0, 1 + s//6)
                if s == 0 and kind != "G": stamp(a, 1, "P")
                if s == 0 or kind != "G": reads(s)
            more = s + 1 < 18 and (kind == "G" or (s + 1) % 6)
            if more: reads(s + 1)
            b = FR + 16*(s & 1)
            for p in range(2):
                a(f"s_waitcnt lgkmcnt({(2*n if more else 0) + (n if p == 0 else 0)})")
                X, D = b + 8*p, b + 8*p + 4
                A, B = (D, X) if kind in "KG" else (X, D)
                a(f"v_mfma_f32_32x32x16_bf16 v[{ACC}:{ACC+15}], v[{A}:{A+3}], v[{B}:{B+3}], " + ("0" if s + p == 0 else f"v[{ACC}:{ACC+15}]"))
        if kind != "G":
            a(f"v_mov_b32 v{t0}, {F_DUTY}\nv_mov_b32 v{t1}, 1\nds_write_b32 v{t0}, v{t1}")
            nonce()
            stamp(a, 2); stamp(a, 2, "P")
    def kv_off():
        a(f"""s_and_b32 s{sA}, s{sJ}, 1
        s_lshl_b32 s{sB}, s{sT1}, 1
        s_add_u32 s{sA}, s{sA}, s{sB}
        s_mul_i32 s{sF}, s{sA}, {TILE}
        s_add_u32 s{sF}, s{sF}, {KVG}
        s_add_u32 s{sE}, s{sF}, {64*TILE}""")
    duty_chain("K")
    kv_off()
    a(f"v_lshlrev_b32 v{t0}, 4, v{vL}\nv_lshlrev_b32 v{t1}, 2, v{vL}\ns_nop 0")
    for k in range(5): a(f"v_cvt_pk_bf16_f32 v{FR+k}, v{ACC+2*k}, v{ACC+2*k+1}")
    for s in (sF, sE): a(f"buffer_store_dwordx4 v[{FR}:{FR+3}], v{t0}, s[{sWS}:{sWS+3}], s{s} offen sc1")
    a(f"v_mul_f32 v{t3}, v{ACC}, v{ACC}")
    for r in range(1, 8): a(f"v_fmac_f32 v{t3}, v{ACC+r}, v{ACC+r}")
    a("s_mov_b32 exec_hi, 0")
    for s in (sF, sE): a(f"buffer_store_dword v{FR+4}, v{t1}, s[{sWS}:{sWS+3}], s{s} offen offset:1024 sc1")
    a(f"""v_fmac_f32 v{t3}, v{ACC+8}, v{ACC+8}
    v_fmac_f32 v{t3}, v{ACC+9}, v{ACC+9}
    s_mov_b64 exec, -1
    v_mov_b32 v{t0}, v{t3}
    s_nop 1
    v_permlane32_swap_b32 v{t0}, v{t3}
    v_add_f32 v{t3}, v{t0}, v{t3}""")
    wave_max(a, t3, sB)
    a(f"""v_mov_b32 v{t3}, s{sB}
    v_lshlrev_b32 v{t0}, 8, v{vL}
    s_lshl_b32 s{sA}, s{sA}, 2
    s_add_u32 s{sA}, s{sA}, {KMG}
    s_mov_b64 exec, 3
    buffer_store_dword v{t3}, v{t0}, s[{sWS}:{sWS+3}], s{sA} offen sc1
    s_mov_b64 exec, -1
    s_branch f_dP""")
    a.label("f_cV")
    duty_chain("V")
    kv_off()
    a(f"""v_and_b32 v{t0}, 31, v{vL}
    v_lshrrev_b32 v{t2}, 5, v{vL}
    v_mul_u32_u24 v{t1}, 19, v{t2}
    v_add_u32 v{t1}, v{t1}, v{t0}
    v_cmp_eq_u32 vcc, 19, v{vL}
    v_mov_b32 v{t3}, 38
    v_cmp_eq_u32 s[6:7], 18, v{t0}
    v_cndmask_b32 v{t1}, v{t1}, v{t3}, vcc
    v_lshlrev_b32 v{t1}, 4, v{t1}
    v_mov_b32 v{t3}, 0x3f803f80""")
    for k in range(8): a(f"v_cvt_pk_bf16_f32 v{FR+k}, v{ACC+2*k}, v{ACC+2*k+1}")
    for k in range(8):
        a(f"v_cndmask_b32 v{FR+k}, v{FR+k}, v{t3}, s[6:7]")
        a(f"v_cndmask_b32 v{FR+k}, v{FR+k}, 0, vcc")
    a("s_mov_b32 exec_lo, 0xfffff\ns_mov_b32 exec_hi, 0x7ffff")
    for s in (sF, sE):
        a(f"buffer_store_dwordx4 v[{FR}:{FR+3}], v{t1}, s[{sWS}:{sWS+3}], s{s} offen offset:1152 sc1")
        a(f"buffer_store_dwordx4 v[{FR+4}:{FR+7}], v{t1}, s[{sWS}:{sWS+3}], s{s} offen offset:{1152+624} sc1")
    a("s_mov_b64 exec, -1")
    a.label("f_dP")
    stamp(a, 3, "P")
    a("s_waitcnt vmcnt(0)")
    tag_signal(a, FL1, 8, t0, t2)
    stamp(a, 3); stamp(a, 4, "P")
    a("s_branch f_kv0")
    a.label("f_cF")
    a(f"s_bfe_u32 s{sGrp}, s{sJ}, 0x10001\ns_add_u32 s{sGrp}, s{sGrp}, 16")
    load_rf(a, R, vL, t0, "f_rf0")
    duty_chain("F")
    a.vm_wait("rf")
    a("s_nop 6")
    G0.fnet_tail(a, ACC, FR, FR+16, R, FR+32, vL, sWS, sRb, sGrp, 76+1, None, sc="sc1")
    stamp(a, 3, "P")
    a(f"""s_cmp_ge_u32 s{sJ}, 6
    s_cbranch_scc1 f_kv0
    v_lshrrev_b32 v{vD0}, 5, v{vL}
    v_lshlrev_b32 v{vD0}, 4, v{vD0}
    v_add_u32 v{vD0}, {LGATE}, v{vD0}""")
    lds_wait(a, "f_dGw", vF, t0, 4)
    duty_chain("G")
    a(f"""s_lshl_b32 s{sF}, s{sRb}, 7
    s_add_u32 s{sF}, s{sF}, {GG}
    v_lshlrev_b32 v{t1}, 2, v{vL}
    s_nop 8
    v_mul_f32 v{t3}, {f2u(-math.log2(math.e))}, v{ACC}
    v_exp_f32 v{t3}, v{t3}
    s_nop 0
    v_add_f32 v{t3}, 1.0, v{t3}
    v_rcp_f32 v{t3}, v{t3}
    s_mov_b32 exec_hi, 0
    buffer_store_dword v{t3}, v{t1}, s[{sWS}:{sWS+3}], s{sF} offen sc1
    s_mov_b32 exec_hi, -1""")
    stamp(a, 4, "P")
    a.label("f_kv0")
    a.vm = []
    a(f"""v_and_b32 v{t1}, 15, v{vL}
    v_min_u32 v{t1}, 8, v{t1}
    v_lshlrev_b32 v{t1}, 2, v{t1}
    v_add_u32 v{t1}, {F_PRG}, v{t1}
    s_mul_i32 s{sA}, s{sT1}, {2*TILE}
    s_lshl_b32 s{sB}, s{sWave}, 12
    s_add_u32 m0, s{sB}, {LW}
    s_add_u32 s{sA}, s{sA}, s{sB}
    s_add_u32 s{sA}, s{sA}, {KVG}
    v_lshlrev_b32 v{t0}, 4, v{vL}""")
    lds_wait(a, "f_kv1", t1, t2, 1)
    for k in range(4): a(f"buffer_load_dwordx4 v{t0}, s[{sWS}:{sWS+3}], s{sA} offen offset:{1024*k} sc1 lds")
    a(f"""v_mov_b32 v{vF}, {F_S1}
    s_cmp_lg_u32 s{sWave}, 3
    s_cbranch_scc1 f_hd
    v_lshrrev_b32 v{t1}, 2, v{vL}
    v_lshlrev_b32 v{t1}, 7, v{t1}
    v_and_b32 v{t2}, 3, v{vL}
    v_lshl_add_u32 v{t1}, v{t2}, 3, v{t1}
    buffer_load_dwordx2 v[{FR}:{FR+1}], v{t1}, s[{sWS}:{sWS+3}], s{sD} offen sc1
    buffer_load_dwordx2 v[{FR+2}:{FR+3}], v{t1}, s[{sWS}:{sWS+3}], s{sD} offen offset:2048 sc1
    v_mov_b32 v{t2}, 1
    s_waitcnt vmcnt(0)
    v_cmp_ne_u64 vcc, s[{sNon}:{sNon+1}], v[{FR}:{FR+1}]
    v_cmp_ne_u64 s[6:7], s[{sNon}:{sNon+1}], v[{FR+2}:{FR+3}]
    s_nop 0
    s_or_b64 vcc, vcc, s[6:7]
    s_cbranch_vccnz f_m4
    ds_write_b32 v{vF}, v{t2}
    s_branch f_hd""")
    a.label("f_m4")
    a("s_barrier")
    tag_wait(a, "f_m3", t1, sD, 2, FR, step=2048)
    a(f"ds_write_b32 v{vF}, v{t2}\ns_branch f_h1")
    a.label("f_hd")
    a("s_waitcnt vmcnt(0) lgkmcnt(0)")
    stamp(a, 6, "P")
    a("s_barrier")
    a.label("f_h1")
    stamp(a, 4)
    lds_wait(a, "f_h2", vF, t1, 1)
    stamp(a, 1, "H")
    a(f"""s_lshl_b32 s3, s{sWave}, 2
    s_add_u32 s3, s3, {F_KV}
    v_mov_b32 v{vF}, s3""")
    def grp(src, dst, tag):
        a(f"s_add_u32 m0, s{sB}, {dst}\ns_add_u32 s3, s{sA}, {src}")
        for k in range(4): a.vmem(f"buffer_load_dwordx4 v{t0}, s[{sWS}:{sWS+3}], s3 offen offset:{1024*k} sc1 lds", tag)
    P2 = J1*TILE
    grp(16384, LW + 16384, "c1"); grp(32768, LW + 32768, "c2"); grp(P2, 0, "p0")
    ldflag("c1", 1)
    grp(P2 + 16384, 16384, "p1"); grp(P2 + 32768, 32768, "p2")
    ldflag("p0", 2)
    for i in (3, 4, 5): grp(P2 + 16384*i, 16384*i, f"p{i}")
    a(f"s_cmp_ge_u32 s{sWave}, 2\ns_cbranch_scc1 f_h3")
    grp(P2 + 16384*6, 16384*6, "p6")
    a.label("f_h3")
    a(f"v_mov_b32 v{t1}, 3\ns_waitcnt vmcnt(0)\nds_write_b32 v{vF}, v{t1}")
    a.vm = []
    stamp(a, 2, "H")
    srd(a, sRA, 34, 576*1152)
    a(f"""s_lshr_b32 s3, s2, 3
    s_lshl_b32 s3, s3, 2
    s_add_u32 s3, s3, s{sWave}
    s_mul_i32 s3, s3, {41*128}
    v_min_u32 v{t1}, 40, v{vL}
    v_lshlrev_b32 v{t1}, 7, v{t1}
    buffer_load_dword v{t2}, v{t1}, s[{sRA}:{sRA+3}], s3 offen""")
    def all_tags(lab, area, flag, tmp, sleep):
        a(f"v_mov_b32 v{vF}, {flag}\ns_cmp_lg_u32 s{sWave}, 3\ns_cbranch_scc1 {lab}_x")
        a(f"""v_lshrrev_b32 v{t1}, 3, v{vL}
        v_lshlrev_b32 v{t1}, 7, v{t1}
        v_and_b32 v{t3}, 7, v{vL}
        v_lshl_add_u32 v{t1}, v{t3}, 3, v{t1}
        s_and_b32 s{sD}, s{sT1}, 7
        s_lshl_b32 s{sD}, s{sD}, 12
        s_add_u32 s{sD}, s{sD}, {area}""")
        tag_wait(a, lab, t1, sD, 4, tmp, sleep=sleep)
    H, R, RING = 16, 32, 48
    sS2, sGrp = 70, 71
    all_tags("f_s0", FL0, F_S0, RING, 4)
    a(f"v_mov_b32 v{t1}, 1\nds_write_b32 v{vF}, v{t1}")
    a.label("f_s0_x")
    a.vm = []
    load_rf(a, R, vL, t0, "f_rf1")
    a(f"""s_and_b32 s{sS2}, s{sJ}, 1
    s_lshl_b32 s{sS2}, s{sS2}, 5
    s_add_u32 s{sS2}, s{sS2}, s{sT1}
    s_lshr_b32 s{sGrp}, s{sJ}, 1
    s_lshl_b32 s{sGrp}, s{sGrp}, 2
    s_add_u32 s{sGrp}, s{sGrp}, s{sWave}
    s_mul_i32 s{sA}, s2, 36864
    s_add_u32 s{sA}, s{sA}, {XF}
    s_mul_i32 s{sB}, s{sGrp}, 9
    s_add_u32 s{sB}, s{sB}, s{sRot}
    s_lshl_b32 s{sB}, s{sB}, 12
    s_add_u32 s{sB}, s{sB}, {DF}
    s_mov_b32 s{sC}, s{sRot}
    v_and_b32 v{t3}, 7, v{vL}
    v_lshlrev_b32 v{t3}, 2, v{t3}
    v_add_u32 v{t3}, {F_PRG}, v{t3}""")
    ND = 8
    def ld(ks):
        r = RING + 8 * (ks % ND)
        a.vmem(f"buffer_load_dwordx4 v[{r}:{r+3}], v{t0}, s[{sWS}:{sWS+3}], s{sA} offen offset:{(ks&3)*1024}", f"j{ks}")
        a.vmem(f"buffer_load_dwordx4 v[{r+4}:{r+7}], v{t0}, s[{sWS}:{sWS+3}], s{sB} offen offset:{(ks&3)*1024} {'' if 'dfplain' in EXP else 'sc1'}", f"j{ks}")
        if ks & 3 == 3:
            a(f"""s_add_u32 s{sA}, s{sA}, 4096
            s_add_u32 s{sC}, s{sC}, 1
            s_cmp_eq_u32 s{sC}, 9
            s_cselect_b32 s3, 36864, 0
            s_sub_u32 s{sB}, s{sB}, s3
            s_add_u32 s{sB}, s{sB}, 4096""")
    lds_wait(a, "f_h4", t3, t1, 2)
    lds_wait(a, "f_h4a", vF, t1, 1)
    stamp(a, 5); stamp(a, 3, "H")
    if 'nojob' not in EXP:
        for ks in range(ND): ld(ks)
        for ks in range(36):
            r = RING + 8 * (ks % ND)
            a.vm_wait(f"j{ks}")
            a(f"v_mfma_f32_32x32x16_bf16 v[{H}:{H+15}], v[{r}:{r+3}], v[{r+4}:{r+7}], " + ("0" if ks == 0 else f"v[{H}:{H+15}]"))
            if ks + ND < 36: ld(ks + ND)
        stamp(a, 4, "H")
        a("s_nop 11")
        G0.fnet_tail(a, H, RING, RING+16, R, RING+32, vL, sWS, sS2, sGrp, 72, "f_nony", sc="" if 'gtplain' in EXP else "sc1")
    last_wave_signals(a, "f_h5", F_CNT2, 4, FL2, 8, t1, t2)
    stamp(a, 6)
    vK, vC, vS, vG, vTr, vPr = 2, 5, 12, 15, 6, 7
    vC = 24
    ACC, W2, OB, AR = 16, 36, 52, 124
    vK = 28
    sRb, sCol = 70, 71
    for i in range(3):
        a(f"s_add_u32 s{sC}, s{sWave}, {4*i}")
        dense_pos(a, sC, t1, vC+i, t2)
        a(f"""v_and_b32 v{t2}, 1, v{t1}
        v_bfe_u32 v{t3}, v{t1}, 1, 2
        v_and_b32 v{t1}, 56, v{t1}
        v_lshl_add_u32 v{t1}, v{t2}, 2, v{t1}
        v_add_u32 v{vK+i}, v{t1}, v{t3}
        v_lshrrev_b32 v{t2}, 4, v{vK+i}
        v_lshl_add_u32 v{t2}, v{t2}, 1, v{vK+i}
        s_movk_i32 s3, 1152
        v_mad_u32_u24 v{vS+i}, v{t2}, s3, v{vC+i}""")
    a(f"""s_lshr_b32 s{sRb}, s{sWave}, 1
    s_lshl_b32 s{sRb}, s{sRb}, 5
    s_add_u32 s{sRb}, s{sRb}, s{sT1}
    s_mul_i32 s{sCol}, s{sJ}, 144
    s_lshl_b32 s{sC}, s{sWave}, 10
    v_and_b32 v{vPr}, 7, v{vL}
    v_lshlrev_b32 v{vPr}, 2, v{vPr}
    v_add_u32 v{vPr}, {F_PRG}, v{vPr}""")
    srd(a, sRB, 18, 2048*4096); srd(a, sRC, 20, 2048*4096); srd(a, sRD, 38, 2048*1152)
    a(f"""v_and_b32 v{t0}, 15, v{vL}
    s_and_b32 s{sA}, s{sWave}, 1
    s_lshl_b32 s{sA}, s{sA}, 4
    v_add_u32 v{t0}, s{sA}, v{t0}
    v_lshlrev_b32 v{t1}, 18, v{t0}
    v_lshrrev_b32 v{t2}, 4, v{vL}
    v_lshl_add_u32 v{t1}, v{t2}, 4, v{t1}
    s_lshl_b32 s{sA}, s{sRb}, 12""")
    for k in range(4):
        r = sRB if k < 2 else sRC
        a(f"buffer_load_dwordx4 v[{W2+4*k}:{W2+4*k+3}], v{t1}, s[{r}:{r+3}], s{sA} offen offset:{64*(k&1)}")
    nds = [0]
    def dstep(dst, r, sc=""):
        nds[0] += 1
        for i in range(3):
            if i == 2: a(f"s_cmp_lg_u32 s{sWave}, 0\ns_cbranch_scc1 f_ds{nds[0]}")
            a(f"s_add_u32 m0, s{sC}, {dst + 4096*i}\ns_nop 0")
            a(f"buffer_load_dwordx4 v{vS+i}, s[{r}:{r+3}], s{sB} offen {sc} lds")
        a.label(f"f_ds{nds[0]}")
    def dsaddr(m): return LW + 9216*m if m < 5 else 9216*(m - 5)
    def wo_step(m):
        a(f"s_add_u32 s{sB}, s{sJ}, {m}\ns_and_b32 s{sB}, s{sB}, 7\ns_mul_i32 s{sB}, s{sB}, {72*1152}\ns_add_u32 s{sB}, s{sB}, s{sCol}")
        dstep(dsaddr(m), sRA)
    lds_wait(a, "f_t1", vPr, t1, 3)
    for m in range(5): wo_step(m)
    lds_wait(a, "f_t3", vPr, t1, 4)
    for m in range(5, 8): wo_step(m)
    for i in range(3):
        a(f"""v_lshrrev_b32 v{t2}, 1, v{vK+i}
        v_lshl_add_u32 v{t2}, v{t2}, 4, v{vK+i}
        v_add_u32 v{t2}, 16, v{t2}
        s_movk_i32 s3, 1152
        v_mad_u32_u24 v{vS+i}, v{t2}, s3, v{vC+i}""")
    all_tags("f_t6", FL2, F_S2, OB, 8)
    a(f"""v_and_b32 v{t1}, 31, v{vL}
    v_lshrrev_b32 v{t2}, 5, v{vL}
    v_lshlrev_b32 v{t1}, 2, v{t1}
    v_lshl_add_u32 v{t1}, v{t2}, 12, v{t1}
    s_lshl_b32 s3, s{sT1}, 7
    s_add_u32 s3, s3, {GG}
    buffer_load_dword v{t2}, v{t1}, s[{sWS}:{sWS+3}], s3 offen sc1
    v_lshlrev_b32 v{t1}, 2, v{vL}
    v_add_u32 v{t1}, {F_G}, v{t1}
    v_mov_b32 v{t3}, 1
    s_waitcnt vmcnt(0)
    ds_write_b32 v{t1}, v{t2}
    ds_write_b32 v{vF}, v{t3}
    s_cmp_lg_u32 s2, 0
    s_cbranch_scc1 f_t6_x
    v_mov_b32 v{t1}, {EP}
    v_mov_b32 v{t2}, s{sNon}
    v_mov_b32 v{t3}, s{sNon+1}
    s_mov_b64 exec, 1
    buffer_store_dwordx2 v[{t2}:{t3}], v{t1}, s[{sWS}:{sWS+3}], 0 offen
    s_mov_b64 exec, -1""")
    a.label("f_t6_x")
    stamp(a, 5, "H")
    lds_wait(a, "f_t7", vPr, t1, 5)
    a(f"s_mov_b32 s{sB}, s{sCol}")
    dstep(dsaddr(8), sRA)
    for i in range(3): a(f"s_movk_i32 s3, {GP}\nv_mad_u32_u24 v{vS+i}, v{vK+i}, s3, v{vC+i}")
    a(f"""s_mul_i32 s{sB}, s{sT1}, {128*GP}
    s_add_u32 s{sB}, s{sB}, {GT}
    s_add_u32 s{sB}, s{sB}, s{sCol}
    s_lshr_b32 s3, s{sWave}, 1
    s_lshl_b32 s3, s3, 7
    s_add_u32 s3, s3, {F_G}
    v_lshlrev_b32 v{t0}, 2, v{t0}
    v_add_u32 v{t0}, s3, v{t0}""")
    lds_wait(a, "f_t8", vF, t1, 1)
    a(f"ds_read_b32 v{vG}, v{t0}")
    dstep(dsaddr(9), sWS, "sc1")
    a(f"s_add_u32 s{sB}, s{sB}, {64*GP}")
    dstep(dsaddr(10), sWS, "sc1")
    a(f"""s_lshl_b32 s3, s{sWave}, 2
    s_add_u32 s3, s3, {F_TA}
    v_mov_b32 v{t0}, s3
    v_mov_b32 v{t1}, 1
    v_and_b32 v{vF}, 3, v{vL}
    v_lshlrev_b32 v{vF}, 2, v{vF}
    v_add_u32 v{vF}, {F_TA}, v{vF}
    v_lshrrev_b32 v{t2}, 4, v{vL}
    v_bfe_u32 v{t3}, v{vL}, 2, 2
    v_lshl_add_u32 v{t2}, v{t2}, 2, v{t3}
    v_mul_u32_u24 v{t2}, 288, v{t2}
    v_and_b32 v{t3}, 3, v{vL}
    v_lshl_add_u32 v{vTr}, v{t3}, 3, v{t2}
    v_add_u32 v{vPr}, {LW}, v{vTr}
    s_waitcnt vmcnt(0)
    ds_write_b32 v{t0}, v{t1}""")
    lds_wait(a, "f_t9", vF, t1, 1)
    stamp(a, 6, "H")
    NR = 7
    def rd(f):
        ks, mu = divmod(f, 5)
        m = 9 + (ks >> 1) if ks < 4 else (ks - 4) >> 1
        v, o = (vPr, 9216*m) if m < 5 else (vTr, 9216*(m - 5))
        o += 4608*(ks & 1) + 32*mu
        r = AR + 4 * (f % 8)
        a(f"ds_read_b64_tr_b16 v[{r}:{r+1}], v{v} offset:{o}")
        a(f"ds_read_b64_tr_b16 v[{r+2}:{r+3}], v{v} offset:{o+144}")
    for f in range(NR): rd(f)
    for f in range(110):
        ks, mu = divmod(f, 5)
        if f == 20:
            a("s_nop 3")
            for r in range(20): a(f"v_mul_f32 v{ACC+r}, v{ACC+r}, v{vG}")
            a(f"""v_and_b32 v{t1}, 7, v{vL}
            v_lshlrev_b32 v{t1}, 3, v{t1}
            s_lshl_b32 s{sD}, s{sWave}, 12
            s_lshl_b32 s3, s{sT1}, 7
            s_add_u32 s{sD}, s{sD}, s3
            s_add_u32 s{sD}, s{sD}, {FL3}
            s_lshl_b32 s{sA}, s{sT1}, 2
            s_add_u32 s{sA}, s{sA}, s{sWave}
            s_mul_i32 s{sA}, s{sA}, 18432
            s_add_u32 s{sA}, s{sA}, {OF}
            v_lshlrev_b32 v{t0}, 4, v{vL}""")
            stamp12(a, 1)
            tag_wait(a, "f_t10", t1, sD, 1, W2, sleep=1)
            stamp12(a, 2)
            for k in range(18):
                if k & 1 == 0:
                    if k < 16: a(f"s_add_u32 s3, s{sJ}, {k//2}\ns_and_b32 s3, s3, 7\ns_lshl_b32 s3, s3, 11\ns_add_u32 s3, s3, s{sA}")
                    else: a(f"s_add_u32 s3, s{sA}, 16384")
                a.vmem(f"buffer_load_dwordx4 v[{OB+4*k}:{OB+4*k+3}], v{t0}, s[{sWS}:{sWS+3}], s3 offen offset:{(k&1)*1024} {'' if 'oplain' in EXP else 'sc1'}", f"o{k}")
        if ks >= 4 and mu == 0: a.vm_wait(f"o{ks-4}")
        n = min(110, f + NR) - f - 1
        a(f"s_waitcnt lgkmcnt({2*n})")
        r = AR + 4 * (f % 8)
        B = W2 + 4*ks if ks < 4 else OB + 4*(ks-4)
        ac = ACC + 4*mu
        a(f"v_mfma_f32_16x16x32_bf16 v[{ac}:{ac+3}], v[{r}:{r+3}], v[{B}:{B+3}], " + ("0" if ks == 0 else f"v[{ac}:{ac+3}]"))
        if f + NR < 110: rd(f + NR)
    stamp12(a, 3)
    a(f"""s_mul_i32 s{sA}, s{sWave}, 2304
    s_add_u32 s{sA}, s{sA}, {56*1024}
    v_and_b32 v{t1}, 15, v{vL}
    v_mul_u32_u24 v{t1}, 144, v{t1}
    v_lshrrev_b32 v{t2}, 4, v{vL}
    v_lshl_add_u32 v{t1}, v{t2}, 3, v{t1}
    v_add_u32 v{t1}, s{sA}, v{t1}
    v_add_u32 v{t0}, s{sA}, v{t0}""")
    for mu in range(5):
        ac = ACC + 4*mu
        a(f"v_cvt_pk_bf16_f32 v{W2+2*mu}, v{ac}, v{ac+1}\nv_cvt_pk_bf16_f32 v{W2+2*mu+1}, v{ac+2}, v{ac+3}")
        if mu == 4: a("s_mov_b32 exec_hi, 0")
        a(f"ds_write_b64 v{t1}, v[{W2+2*mu}:{W2+2*mu+1}] offset:{32*mu}")
    a(f"""s_mov_b32 exec_hi, -1
    s_and_b32 s{sA}, s{sWave}, 1
    s_mul_i32 s{sA}, s{sA}, {16*73728}
    s_mul_i32 s{sB}, s{sRb}, 1152
    s_add_u32 s{sA}, s{sA}, s{sB}
    s_add_u32 s{sA}, s{sA}, s{sCol}
    s_mov_b32 s{sB}, {73728-144}
    s_waitcnt lgkmcnt(0)""")
    for it in range(3): a(f"ds_read_b128 v[{OB+4*it}:{OB+4*it+3}], v{t0} offset:{1024*it}")
    for it in range(3):
        a(f"""v_add_u32 v{t1}, {64*it}, v{vL}
        v_mul_u32_u24 v{t2}, 7282, v{t1}
        v_lshrrev_b32 v{t2}, 16, v{t2}
        v_lshlrev_b32 v{t1}, 4, v{t1}
        v_mad_u32_u24 v{12+it}, v{t2}, s{sB}, v{t1}""")
    for it in range(3):
        a(f"s_waitcnt lgkmcnt({2-it})")
        if it == 2: a("s_mov_b64 exec, 0xffff")
        a(f"buffer_store_dwordx4 v[{OB+4*it}:{OB+4*it+3}], v{12+it}, s[{sRD}:{sRD+3}], s{sA} offen")
    G0.stamp_end(a, 0, sWS, sWave)
    a("s_endpgm")

    a.label("f_att")
    a.vm = []
    Q1, Q2, vG, aK, ak, aV = 4, 8, 10, 11, 12, 13
    vt0, vt1, vt2, vt3 = 2, 3, 14, 15
    O, S, P, K1, K2, V = 16, [32, 48], [64, 72], [80, 84], [88, 90], [92, 100]
    aF, aP = 108, 109
    vW, vR0, vR1, vA0, vA1 = 110, 111, 112, 113, 114
    sW8, sRho, sHd = 70, 71, 72
    vDF, vP, vSt = 116, 132, 115
    sXf, sXa = 75, 76
    a("s_barrier")
    a(f"s_sub_u32 s{sW8}, s{sWave}, 4")
    a("s_getpc_b64 s[4:5]")
    a.label("f_pf")
    a(f"""s_sub_u32 s4, s4, f_pf-f_code
    s_subb_u32 s5, s5, 0
    s_lshr_b32 s3, s2, 3
    s_lshl_b32 s6, s{sW8}, 6
    s_add_u32 s3, s3, s6
    v_lshlrev_b32 v{vt0}, 5, v{vL}
    v_add_u32 v{vt0}, s3, v{vt0}
    v_lshlrev_b32 v{vt0}, 7, v{vt0}
    v_min_u32 v{vt0}, rf_end-f_code-4, v{vt0}
    s_mov_b64 exec, 3
    global_load_dword v{vW}, v{vt0}, s[4:5]
    s_mov_b64 exec, -1""")
    xread(a, vR0, vR1, vt0, vt1)
    a(f"""s_lshr_b32 s{sRho}, s{sW8}, 2
    s_and_b32 s{sHd}, s{sW8}, 3
    s_mul_i32 s3, s{sRho}, 36864
    v_add_u32 v{vR0}, s3, v{vR0}
    v_xor_b32 v{vR1}, 32, v{vR0}
    s_bitcmp1_b32 s{sHd}, 0
    s_mov_b32 s{sB}, 0x34343120
    s_mov_b32 s{sC}, {LW}
    s_cmov_b32 s{sB}, 0x44423120
    s_cmov_b32 s{sC}, {LW-4}
    s_mul_i32 s3, s{sHd}, 36
    s_add_u32 s{sC}, s{sC}, s3
    v_bfe_u32 v{vt0}, v{vL}, 4, 1
    v_and_b32 v{vt1}, 3, v{vL}
    v_lshl_add_u32 v{vt0}, v{vt0}, 2, v{vt1}
    v_lshlrev_b32 v{vt0}, 2, v{vt0}
    v_lshrrev_b32 v{vt0}, v{vt0}, s{sB}
    v_and_b32 v{vt0}, 15, v{vt0}
    v_bfe_u32 v{vt1}, v{vL}, 2, 2
    v_lshrrev_b32 v{vt3}, 5, v{vL}
    v_lshl_add_u32 v{vt1}, v{vt1}, 1, v{vt3}
    v_mul_u32_u24 v{vt1}, 288, v{vt1}
    v_lshl_add_u32 v{vA0}, v{vt0}, 3, v{vt1}
    v_add_u32 v{vA0}, s{sC}, v{vA0}
    v_subrev_u32 v{vA1}, {LW-LD}, v{vA0}
    v_and_b32 v{aF}, 3, v{vL}
    v_min_u32 v{aF}, 2, v{aF}
    v_lshlrev_b32 v{aF}, 2, v{aF}
    v_add_u32 v{aF}, {F_LD}, v{aF}
    v_and_b32 v{vt2}, 31, v{vL}
    v_lshlrev_b32 v{ak}, 2, v{vt2}
    s_lshl_b32 s3, s{sW8}, 2
    s_add_u32 s3, s3, {F_PRG}
    v_mov_b32 v{aP}, s3
    v_lshlrev_b32 v{vSt}, 4, v{vL}
    v_add_u32 v{aK}, {LW}, v{vSt}
    v_add_u32 v{ak}, {LW+1024}, v{ak}
    v_cmp_eq_u32 vcc, 28, v{vt2}
    v_mul_u32_u24 v{vt0}, 19, v{vt3}
    s_and_b32 s3, s{sJ}, 1
    v_cndmask_b32 v{aV}, v{vt2}, 18, vcc
    v_cmp_gt_u32 vcc, 19, v{aV}
    v_add_u32 v{aV}, v{aV}, v{vt0}
    s_cmp_eq_u32 s3, s{sRho}
    v_cndmask_b32 v{aV}, 38, v{aV}, vcc
    v_lshlrev_b32 v{aV}, 4, v{aV}
    v_add_u32 v{aV}, {LW+1152}, v{aV}
    s_cselect_b32 s{sXa}, s{sHd}, 9
    s_mul_i32 s{sXf}, s2, 36864
    s_add_u32 s{sXf}, s{sXf}, {XF}""")
    common_srd()
    a(f"""s_cmp_lt_u32 s2, 144
    s_cselect_b32 s{sD}, s{sW8}, 1
    s_cmp_lg_u32 s{sD}, 0
    s_cbranch_scc1 f_a0
    s_mul_i32 s{sA}, s2, 7282
    s_lshr_b32 s{sA}, s{sA}, 16
    s_mul_i32 s{sB}, s{sA}, 9
    s_sub_u32 s{sB}, s2, s{sB}""")
    dft_ptr(a, vP, sA, vt0, vt1, vt2)
    a(f"s_lshl_b32 s{sB}, s{sB}, 7\nv_add_co_u32 v{vP}, vcc, s{sB}, v{vP}\ns_nop 1\nv_addc_co_u32 v{vP+1}, vcc, 0, v{vP+1}, vcc")
    for k in range(4): a(f"global_load_dwordx4 v[{vDF+4*k}:{vDF+4*k+3}], v[{vP}:{vP+1}], off offset:{32*k}")
    a(f"s_lshl_b32 s{sA}, s2, 12\ns_add_u32 s{sA}, s{sA}, {DF}\ns_waitcnt vmcnt(0)")
    for k in range(4): a(f"buffer_store_dwordx4 v[{vDF+4*k}:{vDF+4*k+3}], v{vSt}, s[{sWS}:{sWS+3}], s{sA} offen offset:{1024*k} sc1")
    a.label("f_a0")
    stamp(a, 1, "P")
    QA, QR = S[0], 64
    for c in range(9):
        lds_wait(a, f"f_q{c}", aF, vt0, 4 + c)
        if c == 0: nonce(); stamp(a, 1); stamp(a, 2, "P")
        if c == 5: stamp(a, 3, "P")
        v, o = (vA0, 9216*c) if c < 5 else (vA1, 9216*(c-5))
        for i in range(4):
            b, ks = QR + 8*i, 4*c + i
            a(f"ds_read_b64_tr_b16 v[{b}:{b+1}], v{v} offset:{o + 2304*i}")
            a(f"ds_read_b64_tr_b16 v[{b+2}:{b+3}], v{v} offset:{o + 2304*i + 144}")
            a(f"ds_read_b128 v[{b+4}:{b+7}], v{vR1 if ks & 1 else vR0} offset:{2048*(ks>>1)}")
        for i in range(4):
            b, ks = QR + 8*i, 4*c + i
            a(f"s_waitcnt lgkmcnt({9 - 3*i})")
            a(f"v_mfma_f32_32x32x16_bf16 v[{QA}:{QA+15}], v[{b}:{b+3}], v[{b+4}:{b+7}], " + ("0" if ks == 0 else f"v[{QA}:{QA+15}]"))
        if c == 4: a(f"v_mov_b32 v{vt1}, 1\nds_write_b32 v{aP}, v{vt1}")
        for q in sorted({ks // 9 for ks in range(4*c, 4*c + 4)}):
            a(f"s_cmp_lg_u32 s{sXa}, {q}\ns_cbranch_scc1 f_x{c}_{q}")
            for i in range(4):
                if (4*c + i) // 9 == q: a(f"buffer_store_dwordx4 v[{QR+8*i+4}:{QR+8*i+7}], v{vSt}, s[{sWS}:{sWS+3}], s{sXf} offen offset:{1024*i}")
            a.label(f"f_x{c}_{q}")
        a(f"s_add_u32 s{sXf}, s{sXf}, 4096")
    stamp(a, 4, "P")
    a(f"""v_mov_b32 v{aF}, {F_S1F}
    s_lshl_b32 s{sA}, s{sT1}, 3
    s_add_u32 s{sA}, s{sA}, {KMG}
    v_and_b32 v{vt2}, 7, v{vL}
    v_lshlrev_b32 v{vt2}, 2, v{vt2}""")
    for r in range(16): a(f"v_mov_b32 v{O+r}, 0")
    a(f"s_mov_b32 s{sB}, {f2u(CQ)}\ns_bitcmp1_b32 s{sHd}, 0\ns_cbranch_scc1 f_qodd")
    T = S[1]
    def qmove(r0, rx):
        for r in range(8): a(f"v_mul_f32 v{T+r}, s{sB}, v{QA+r0+r}")
        for r in range(2): a(f"v_mul_f32 v{T+8+r}, s{sB}, v{QA+rx+r}")
    qmove(0, 8)
    a("s_branch f_qdone")
    a.label("f_qodd")
    qmove(2, 14)
    a.label("f_qdone")
    for r in range(2): a(f"v_cndmask_b32 v{T+8+r}, v{T+8+r}, 0, s[{sHi}:{sHi+1}]")
    a(f"v_mul_f32 v{vt0}, v{T}, v{T}")
    for r in range(1, 10): a(f"v_fmac_f32 v{vt0}, v{T+r}, v{T+r}")
    for k in range(5): a(f"v_cvt_pk_bf16_f32 v{Q1+k}, v{T+2*k}, v{T+2*k+1}")
    a(f"v_mov_b32 v{vt1}, v{vt0}")
    lds_wait(a, "f_a2", aF, vt3, 1)
    stamp(a, 2); stamp(a, 5, "P")
    a(f"""buffer_load_dword v{vW}, v{vt2}, s[{sWS}:{sWS+3}], s{sA} offen sc1
    v_and_b32 v{aF}, 3, v{vL}
    v_lshlrev_b32 v{aF}, 2, v{aF}
    v_add_u32 v{aF}, {F_KV}, v{aF}
    s_waitcnt vmcnt(0)""")
    wave_max(a, vW, sA)
    a(f"""v_permlane32_swap_b32 v{vt0}, v{vt1}
    v_sqrt_f32 v{vt3}, s{sA}
    v_add_f32 v{vt0}, v{vt0}, v{vt1}
    v_sqrt_f32 v{vt0}, v{vt0}
    v_mov_b32 v{vt2}, {f2u(OFFS)}
    v_cvt_pk_bf16_f32 v{K2[0]+1}, -v{vt3}, v{vt2}
    v_cvt_pk_bf16_f32 v{Q2+1}, v{vt0}, 1.0
    v_mov_b32 v{K2[1]+1}, v{K2[0]+1}
    v_cndmask_b32 v{Q2+1}, v{Q2+1}, 0, s[{sHi}:{sHi+1}]""")
    stamp(a, 6, "P")
    a(f"""s_barrier
    s_setprio {PRIO[0]}""")
    stamp(a, 3)
    base = {aK: LW, ak: LW, aV: LW}
    def off(v, j, extra=0):
        o = ltile(j) + extra - base[v]
        if not 0 <= o < 65536:
            nb = ltile(j)
            a(f"v_add_u32 v{v}, {(nb - base[v]) & 0xffffffff}, v{v}")
            base[v] = nb; o = extra
        return o
    rdK = lambda j: f"ds_read_b128 v[{K1[j&1]}:{K1[j&1]+3}], v{aK} offset:{off(aK, j)}"
    rdk = lambda j: f"ds_read_b32 v{K2[j&1]}, v{ak} offset:{off(ak, j)}"
    rdV = lambda j, u: f"ds_read_b128 v[{V[j&1]+4*u}:{V[j&1]+4*u+3}], v{aV} offset:{off(aV, j, 624) - 624*(1-u)}"
    def M1(j): return f"v_mfma_f32_32x32x16_bf16 v[{S[j&1]}:{S[j&1]+15}], v[{K1[j&1]}:{K1[j&1]+3}], v[{Q1}:{Q1+3}], 0"
    def M2(j): return f"v_mfma_f32_32x32x8_bf16 v[{S[j&1]}:{S[j&1]+15}], v[{K2[j&1]}:{K2[j&1]+1}], v[{Q2}:{Q2+1}], v[{S[j&1]}:{S[j&1]+15}]"
    def M3(j, u): return f"v_mfma_f32_32x32x16_bf16 v[{O}:{O+15}], v[{V[j&1]+4*u}:{V[j&1]+4*u+3}], v[{P[j&1]+4*u}:{P[j&1]+4*u+3}], v[{O}:{O+15}]"
    a(rdK(0)); a(rdk(0)); a(rdK(1)); a(rdk(1))
    a("s_waitcnt lgkmcnt(2)")
    a(M1(0)); a(M2(0))
    a("s_waitcnt lgkmcnt(0)\ns_nop 8")
    FCHK = {4: 1, 11: 2, 24: 3}
    PRG = {1: 2, 20: 3, 32: 4, 44: 5}
    for j in range(64):
        if j in PRIO and j: a(f"s_setprio {PRIO[j]}")
        if j == 32: stamp(a, 4)
        if j in PRG: a(f"v_mov_b32 v{vt1}, {PRG[j]}\nds_write_b32 v{aP}, v{vt1}")
        if j == 1:
            a(f"s_cmp_lg_u32 s{sW8}, 0\ns_cbranch_scc1 f_a3")
            tag_signal(a, FL0, 8, vt0, vt2)
            a.label("f_a3")
        if j in FCHK: lds_wait(a, f"f_w{j}", aF, vt0, FCHK[j])
        s, p = S[j & 1], P[j & 1]
        e = lambda i: f"v_exp_f32 v{s+i}, v{s+i}"
        c = lambda i: f"v_cvt_pk_bf16_f32 v{p+i}, v{s+2*i}, v{s+2*i+1}"
        nx, pv, ld = j + 1 < 64, j > 0, j + 2 < 64
        L = []
        if ld: lk, lk2 = rdK(j+2), rdk(j+2)
        lv0, lv1 = rdV(j, 0), rdV(j, 1)
        if nx: L.append(M1(j+1))
        if ld: L.append(lk)
        L += [e(0), e(1), e(2), e(3), c(0)]
        if nx: L.append(M2(j+1))
        if ld: L.append(lk2)
        L += [e(4), e(5), c(1), e(6), e(7), c(2)]
        if pv: L.append(M3(j-1, 0))
        L += [lv0, lv1]
        L += [e(8), e(9), c(3), e(10), e(11), c(4)]
        if pv: L.append(M3(j-1, 1))
        L += [e(12), e(13), c(5), e(14), e(15), c(6), c(7), "s_waitcnt lgkmcnt(0)"]
        for x in L: a(x)
    a("s_nop 0"); a(M3(63, 0)); a(M3(63, 1))
    stamp(a, 5)
    sO, sHead = 74, 73
    a(f"""s_lshl_b32 s3, s{sRho}, 7
    s_add_u32 s3, s3, {F_G}
    v_and_b32 v{vt0}, 31, v{vL}
    v_lshlrev_b32 v{vt0}, 2, v{vt0}
    v_add_u32 v{vt0}, s3, v{vt0}
    v_mov_b32 v{aF}, {F_S2}""")
    lds_wait(a, "f_a4", aF, vt1, 1)
    a(f"""ds_read_b32 v{vG}, v{vt0}
    s_lshl_b32 s{sHead}, s{sJ}, 2
    s_add_u32 s{sHead}, s{sHead}, s{sHd}
    s_lshl_b32 s{sA}, s{sT1}, 2
    s_lshl_b32 s{sB}, s{sRho}, 1
    s_add_u32 s{sA}, s{sA}, s{sB}
    s_mul_i32 s{sA}, s{sA}, 18432
    s_add_u32 s{sA}, s{sA}, {OF}
    s_lshr_b32 s{sB}, s{sHead}, 1
    s_lshl_b32 s{sB}, s{sB}, 10
    s_and_b32 s{sC}, s{sHead}, 1
    s_lshl_b32 s{sC}, s{sC}, 9
    s_add_u32 s{sB}, s{sB}, s{sC}
    s_add_u32 s{sO}, s{sA}, s{sB}
    s_lshr_b32 s{sB}, s{sHead}, 2
    s_lshl_b32 s{sB}, s{sB}, 8
    s_lshl_b32 s{sC}, s{sHd}, 2
    s_add_u32 s{sB}, s{sB}, s{sC}
    s_add_u32 s{sB}, s{sB}, 16384
    s_add_u32 s{sO+1}, s{sA}, s{sB}""")
    vl = S[0]
    a(f"v_cndmask_b32 v{vl}, v{O+10}, v{O+12}, s[{sHi}:{sHi+1}]")
    a(f"v_add_f32 v{vt0}, |v{O}|, |v{O+1}|")
    for r in range(2, 10): a(f"v_add_f32 v{vt0}, |v{O+r}|, v{vt0}")
    a(f"""v_add_f32 v{vt0}, v{vl}, v{vt0}
    v_cmp_le_f32 vcc, {f2u(LMIN)}, v{vl}
    v_mov_b32 v{vt1}, 0x7f800000
    v_cmp_lt_f32 s[6:7], v{vt0}, v{vt1}
    s_waitcnt lgkmcnt(0)
    s_and_b64 vcc, vcc, s[6:7]
    s_cmp_eq_u64 vcc, exec
    s_cbranch_scc0 f_fallback""")
    a.label("f_norm")
    a(f"""v_rcp_f32 v{vl}, v{vl}
    v_sub_f32 v{vG}, 1.0, v{vG}
    v_and_b32 v{vt0}, 15, v{vL}
    v_lshlrev_b32 v{vt0}, 4, v{vt0}
    v_mul_f32 v{vl}, v{vl}, v{vG}
    v_bfe_u32 v{vt1}, v{vL}, 4, 1
    v_mul_u32_u24 v{vt1}, 18432, v{vt1}
    v_add_u32 v{vt0}, v{vt0}, v{vt1}
    v_lshrrev_b32 v{vt1}, 5, v{vL}
    v_lshl_add_u32 v{vt1}, v{vt1}, 8, v{vt0}""")
    for r in range(10): a(f"v_mul_f32 v{O+r}, v{O+r}, v{vl}")
    for k in range(5): a(f"v_cvt_pk_bf16_f32 v{P[0]+k}, v{O+2*k}, v{O+2*k+1}")
    a(f"""buffer_store_dwordx4 v[{P[0]}:{P[0]+3}], v{vt1}, s[{sWS}:{sWS+3}], s{sO} offen sc1
    s_mov_b32 exec_hi, 0
    buffer_store_dword v{P[0]+4}, v{vt0}, s[{sWS}:{sWS+3}], s{sO+1} offen sc1
    s_mov_b32 exec_hi, -1""")
    last_wave_signals(a, "f_a9", F_CNT3, 8, FL3, 4, vt0, vt2)
    G0.stamp_end(a, 0, sWS, sWave)
    a("s_endpgm")
    a.label("f_fallback")
    s0 = S[0]
    a(f"""v_subrev_u32 v{aK}, {base[aK]}, v{aK}
    v_subrev_u32 v{ak}, {base[ak]}, v{ak}
    v_subrev_u32 v{aV}, {base[aV]}, v{aV}
    v_mov_b32 v{K2[0]+1}, 0
    v_mov_b32 v{vt0}, 0xff800000
    s_mov_b32 s{sA}, {KVG}""")
    a.label("f_fb1")
    a(f"""buffer_load_dwordx4 v[{K1[0]}:{K1[0]+3}], v{aK}, s[{sWS}:{sWS+3}], s{sA} offen sc1
    buffer_load_dword v{K2[0]}, v{ak}, s[{sWS}:{sWS+3}], s{sA} offen sc1
    s_waitcnt vmcnt(0)""")
    a(M1(0)); a(M2(0)); a("s_nop 11")
    for r in range(0, 16, 2): a(f"v_max3_f32 v{vt0}, v{s0+r}, v{s0+r+1}, v{vt0}")
    a(f"""s_add_u32 s{sA}, s{sA}, {TILE}
    s_cmp_lt_u32 s{sA}, {KVG+64*TILE}
    s_cbranch_scc1 f_fb1
    v_mov_b32 v{vt1}, v{vt0}
    s_nop 1
    v_permlane32_swap_b32 v{vt0}, v{vt1}
    v_max_f32 v{vt0}, v{vt0}, v{vt1}
    v_cvt_pk_bf16_f32 v{vt1}, v{vt0}, v{vt0}
    v_and_b32 v{vt1}, 0xffff0000, v{vt1}
    v_sub_f32 v{vt0}, v{vt0}, v{vt1}
    v_cvt_pk_bf16_f32 v{Q2+1}, v{vt1}, v{vt0}
    v_cndmask_b32 v{Q2+1}, v{Q2+1}, 0, s[{sHi}:{sHi+1}]
    v_mov_b32 v{K2[0]+1}, 0xbf80bf80
    s_mov_b32 s{sA}, {KVG}""")
    for r in range(16): a(f"v_mov_b32 v{O+r}, 0")
    a.label("f_fb2")
    a(f"""buffer_load_dwordx4 v[{K1[0]}:{K1[0]+3}], v{aK}, s[{sWS}:{sWS+3}], s{sA} offen sc1
    buffer_load_dword v{K2[0]}, v{ak}, s[{sWS}:{sWS+3}], s{sA} offen sc1
    buffer_load_dwordx4 v[{V[0]}:{V[0]+3}], v{aV}, s[{sWS}:{sWS+3}], s{sA} offen sc1
    buffer_load_dwordx4 v[{V[0]+4}:{V[0]+7}], v{aV}, s[{sWS}:{sWS+3}], s{sA} offen offset:624 sc1
    s_waitcnt vmcnt(0)""")
    a(M1(0)); a(M2(0)); a("s_nop 11")
    for r in range(16): a(f"v_exp_f32 v{s0+r}, v{s0+r}")
    a("s_nop 0")
    for k in range(8): a(f"v_cvt_pk_bf16_f32 v{P[0]+k}, v{s0+2*k}, v{s0+2*k+1}")
    a("s_nop 1"); a(M3(0, 0)); a(M3(0, 1))
    a(f"""s_add_u32 s{sA}, s{sA}, {TILE}
    s_cmp_lt_u32 s{sA}, {KVG+64*TILE}
    s_cbranch_scc1 f_fb2
    s_nop 11
    v_cndmask_b32 v{vl}, v{O+10}, v{O+12}, s[{sHi}:{sHi+1}]
    s_branch f_norm""")
    a.label("f_end")
    a("s_endpgm")
    return a

HEAD = """; Fused FNet + multi-query attention + gate.  One launch, 256 workgroups of 12 waves, one per CU.
"""
def build(a, vgpr=160):
    lab = G0.NAME + "_kernel"
    for p in check(a.lines): print(p, file=sys.stderr)
    out = [HEAD + f"; @launch grid=(256,1,1) block=(768,1,1) lds=163840", '.amdgcn_target "amdgcn-amd-amdhsa--gfx950"\n.text',
           f".globl {lab}\n.p2align 8\n.type {lab},@function\n{lab}:", a.text(), ".p2align 8\n.type rf_table,@object\nrf_table:"]
    w = rf_table()
    for i in range(0, len(w), 8): out.append(".long " + ",".join(f"0x{x:08x}" for x in w[i:i+8]))
    out += [".size rf_table, 4096", "rf_end:", '.section .rodata,"a"', kd(lab, vgpr)]
    return "\n".join(out) + "\n"

if __name__ == "__main__":
    if len(sys.argv) > 2 and sys.argv[2] == "stamp": G0.STAMP = True
    EXP.update(sys.argv[3:])
    open(sys.argv[1], "w").write(build(gen()))
```

```python
import math, struct, sys
from asmlib import Asm, check

NAME = "gated_mix__spectral_fnet__grouped_kv_mqa__prompt"
QN, XF, OF, GT, DF, KV, KM, GG, FL = 0x0, 0x240000, 0x480000, 0x6C0000, 0xB80000, 0xC10000, 0xC40000, 0xC40400, 0xC43000
WS_SIZE = 0xD50000
GP = 1216
TILE = 2400
CQ = math.log2(math.e) / math.sqrt(18.0)
def f2u(x): return struct.unpack("<I", struct.pack("<f", x))[0]
def bf16(x):
    u = f2u(x); return ((u + 0x7FFF + ((u >> 16) & 1)) >> 16) & 0xFFFF

def srd(a, d, ptr, size):
    a(f"s_mov_b32 s{d}, s{ptr}\ns_mov_b32 s{d+1}, s{ptr+1}\ns_mov_b32 s{d+2}, {size}\ns_mov_b32 s{d+3}, 0x20000")

STAMP = False
ST = 0xC44000
def stamp(a, slot):
    if not STAMP: return
    a(f"s_memrealtime s[{82+2*slot}:{83+2*slot}]")
    if slot == 0: a("s_memtime s[98:99]\ns_mov_b32 s80, 0\ns_mov_b32 s81, 0")
LEAK = None
_lk = [0]
def stamp_end(a, k, sWS, sWave, slot=7):
    if not STAMP: return
    if LEAK:
        w, sl, wg = LEAK
        _lk[0] += 1
        a("s_waitcnt vmcnt(0)")
        stamp(a, slot)
        a(f"""s_memtime s[100:101]
        s_waitcnt lgkmcnt(0)
        s_cmp_lg_u32 s{sWave}, {w}
        s_cbranch_scc1 lk_x{_lk[0]}""")
        if sl == 8:
            a("s_sub_u32 s3, s100, s98\ns_lshr_b32 s3, s3, 4\ns_add_u32 s3, s3, s82")
        else:
            a(f"s_mov_b32 s3, s{82+2*sl}")
        if wg is not None: a(f"s_cmp_eq_u32 s2, {wg}\ns_cselect_b32 s3, s3, s82")
        a("s_add_u32 s3, s3, 4500")
        a.label(f"lk_l{_lk[0]}")
        a(f"""s_memrealtime s[100:101]
        s_waitcnt lgkmcnt(0)
        s_sub_u32 s100, s100, s3
        s_cmp_lt_i32 s100, 0
        s_cbranch_scc1 lk_l{_lk[0]}""")
        a.label(f"lk_x{_lk[0]}")
        return
    a("s_waitcnt vmcnt(0)")
    stamp(a, slot)
    a(f"""s_memtime s[100:101]
    s_waitcnt lgkmcnt(0)
    s_sub_u32 s100, s100, s98
    s_mov_b64 exec, 1
    s_lshl_b32 s3, s2, 4
    s_add_u32 s3, s3, s{sWave}
    s_lshl_b32 s3, s3, 6
    s_add_u32 s3, s3, {ST + k*0x40000}
    v_mov_b32 v0, 0""")
    for q in range(8): a(f"v_mov_b32 v{4+q}, s{82+2*q}")
    a(f"""s_getreg_b32 s101, hwreg(HW_REG_XCC_ID)
    s_or_b32 s101, s101, s81
    v_mov_b32 v13, s101
    v_mov_b32 v12, s100
    buffer_store_dwordx4 v[4:7], v0, s[{sWS}:{sWS+3}], s3 offen
    buffer_store_dwordx4 v[8:11], v0, s[{sWS}:{sWS+3}], s3 offen offset:16
    buffer_store_dwordx2 v[12:13], v0, s[{sWS}:{sWS+3}], s3 offen offset:32""")

def code_prefetch(a, vtmp, vdst, end_label, here):
    a(f"s_getpc_b64 s[4:5]")
    a.label(here)
    a(f"v_lshlrev_b32 v{vtmp}, 7, v0")
    a(f"v_min_u32 v{vtmp}, {end_label}-{here}-4, v{vtmp}")
    a.vmem(f"global_load_dword v{vdst}, v{vtmp}, s[4:5]", "pf")

def fnet_tail(a, H, T1, T2, R, tmp, vL, sWS, sS2, sGrp, sT, special, sc=""):
    Hb = tmp
    for k in range(8): a(f"v_cvt_pk_bf16_f32 v{Hb+k}, v{H+2*k}, v{H+2*k+1}")
    vA, vB = tmp + 8, tmp + 9
    a(f"v_and_b32 v{vA}, 31, v{vL}")
    a(f"v_mul_u32_u24 v{vA}, {128*GP}, v{vA}")
    a(f"v_mfma_f32_32x32x16_bf16 v[{T1}:{T1+15}], v[{Hb}:{Hb+3}], v[{R}:{R+3}], 0")
    a(f"v_mfma_f32_32x32x16_bf16 v[{T2}:{T2+15}], v[{Hb}:{Hb+3}], v[{R+8}:{R+11}], 0")
    a(f"v_mfma_f32_32x32x16_bf16 v[{T1}:{T1+15}], v[{Hb+4}:{Hb+7}], v[{R+4}:{R+7}], v[{T1}:{T1+15}]")
    a(f"v_mfma_f32_32x32x16_bf16 v[{T2}:{T2+15}], v[{Hb+4}:{Hb+7}], v[{R+12}:{R+15}], v[{T2}:{T2+15}]")
    a(f"v_lshrrev_b32 v{vB}, 5, v{vL}")
    a(f"v_lshlrev_b32 v{vB}, 4, v{vB}")
    a(f"v_sub_u32 v{tmp+10}, v{vA}, v{vB}")
    a(f"v_add_u32 v{vA}, v{vA}, v{vB}")
    a(f"v_add_u32 v{vB}, 16, v{tmp+10}")
    a(f"s_mul_i32 s{sT}, s{sS2}, {GP}")
    a(f"s_add_u32 s{sT}, s{sT}, {GT}")
    a(f"s_lshl_b32 s{sT+1}, s{sGrp}, 5")
    a(f"s_sub_u32 s{sT+2}, s{sT}, s{sT+1}")
    a(f"s_add_u32 s{sT+2}, s{sT+2}, {2*(576-7)-16}")
    a(f"s_add_u32 s{sT+1}, s{sT}, s{sT+1}")
    a(f"s_add_u32 s{sT+3}, s{sT+1}, {64*GP}")
    a(f"s_add_u32 s{sT+4}, s{sT+2}, {64*GP}")
    a("s_nop 1")
    if special:
        lab = special
        a(f"s_cmp_lg_u32 s{sGrp}, 0")
        a(f"s_cbranch_scc1 {lab}")
        a(f"s_mov_b32 exec_hi, 0")
        a(f"v_cvt_pk_bf16_f32 v{tmp+11}, v{T1+8}, v{T2+8}")
        a(f"v_mov_b32 v{T1+8}, 0")
        a(f"v_mov_b32 v{T2+8}, 0")
        a(f"s_add_u32 s{sT+5}, s{sT}, {64*GP}")
        a.vmem(f"buffer_store_short v{tmp+11}, v{vA}, s[{sWS}:{sWS+3}], s{sT} offen offset:576 {sc}", "st")
        a.vmem(f"buffer_store_short_d16_hi v{tmp+11}, v{vA}, s[{sWS}:{sWS+3}], s{sT+5} offen offset:576 {sc}", "st")
        a(f"s_mov_b64 exec, -1")
        a.label(lab)
    D = H
    def outp(op, x, y, order, vaddr, soff, dst):
        for r in range(8): a(f"{op} v{D+r}, v{x+r}, v{y+r}")
        for k in range(4):
            i0, i1 = (2*k, 2*k+1) if order > 0 else (7-2*k, 6-2*k)
            a(f"v_cvt_pk_bf16_f32 v{dst+k}, v{D+i0}, v{D+i1}")
        a.vmem(f"buffer_store_dwordx4 v[{dst}:{dst+3}], v{vaddr}, s[{sWS}:{sWS+3}], s{soff} offen {sc}", "st")
    outp("v_add_f32", T1, T2+8, +1, vA, sT+1, D+8)
    outp("v_sub_f32", T2, T1+8, +1, vA, sT+3, D+12)
    outp("v_sub_f32", T1, T2+8, -1, vB, sT+2, Hb)
    outp("v_add_f32", T2, T1+8, -1, vB, sT+4, Hb+4)

def rf_table():
    w = []
    for fn in (math.cos, math.sin):
        for u in range(2):
            for l in range(64):
                t1, h = l & 31, l >> 5
                v = []
                for j in range(8):
                    r = 8*u + j
                    s1 = (r & 3) + 8*(r >> 2) + 4*h
                    v.append(bf16(fn(2*math.pi*((t1*s1) % 32)/32)))
                w += [v[0] | v[1] << 16, v[2] | v[3] << 16, v[4] | v[5] << 16, v[6] | v[7] << 16]
    return w

def load_rf(a, R, vL, vt, here):
    a(f"s_getpc_b64 s[4:5]")
    a.label(here)
    a(f"s_add_u32 s4, s4, rf_table-{here}")
    a(f"s_addc_u32 s5, s5, 0")
    a(f"v_lshlrev_b32 v{vt}, 4, v{vL}")
    for k in range(4):
        a.vmem(f"global_load_dwordx4 v[{R+4*k}:{R+4*k+3}], v{vt}, s[4:5] offset:{1024*k}", "rf")

K1_LDS = 155648
def gen_k1():
    a = Asm()
    sX, sW, sW2, sWS = 44, 48, 52, 56
    sWave, sT1, sRole, sM, sA, sB, sC, sD, sE, sF = 60, 61, 62, 63, 64, 65, 66, 67, 68, 69
    vL, vXs, vWs, vR0, vR1, vTr, vt0, vt1, vt2, vt3 = 1, 2, 3, 4, 5, 6, 7, 8, 9, 10
    vB0, vB1 = 11, 12
    ACC, FR = 16, 32
    a("s_cmp_ge_u32 s2, 256\ns_cbranch_scc1 k1_end")
    stamp(a, 0)
    a("s_load_dwordx16 s[16:31], s[0:1], 0\ns_load_dwordx8 s[32:39], s[0:1], 64\ns_load_dwordx2 s[40:41], s[0:1], 104")
    code_prefetch(a, vt0, 13, "k1_code_end", "k1_pf")
    a(f"""v_lshrrev_b32 v{vt0}, 6, v0
    v_and_b32 v{vL}, 63, v0
    v_readfirstlane_b32 s{sWave}, v{vt0}
    s_bfe_u32 s{sA}, s2, 0x20003
    s_and_b32 s{sT1}, s2, 7
    s_lshl_b32 s{sA}, s{sA}, 3
    s_add_u32 s{sT1}, s{sT1}, s{sA}
    s_lshr_b32 s{sRole}, s2, 5""")
    a(f"""v_lshrrev_b32 v{vt0}, 4, v{vL}
    v_xor_b32 v{vt0}, v{vt0}, v{vL}
    v_and_b32 v{vt0}, 3, v{vt0}
    v_lshlrev_b32 v{vt0}, 4, v{vt0}
    v_lshrrev_b32 v{vt1}, 2, v{vL}
    s_mov_b32 s{sA}, 73728
    v_mad_u32_u24 v{vXs}, v{vt1}, s{sA}, v{vt0}""")
    a(f"""v_lshrrev_b32 v{vt2}, 5, v{vL}
    v_xor_b32 v{vt3}, v{vt2}, v{vt1}
    v_and_b32 v{vt3}, 3, v{vt3}
    v_lshlrev_b32 v{vR0}, 4, v{vt3}
    v_and_b32 v{vt3}, 15, v{vL}
    v_lshl_add_u32 v{vR0}, v{vt3}, 6, v{vR0}
    v_bfe_u32 v{vt3}, v{vL}, 4, 1
    v_mul_u32_u24 v{vR1}, 3072, v{vt3}
    v_add_u32 v{vR0}, v{vR0}, v{vR1}""")
    a(f"""v_and_b32 v{vTr}, 3, v{vt1}
    v_lshl_add_u32 v{vTr}, v{vt2}, 3, v{vTr}
    v_lshlrev_b32 v{vTr}, 6, v{vTr}
    v_lshl_add_u32 v{vTr}, v{vt3}, 5, v{vTr}
    v_and_b32 v{vWs}, 3, v{vL}""")
    for r in range(16): a(f"v_mov_b32 v{ACC+r}, 0")
    a(f"s_cmp_ge_u32 s{sRole}, 6\ns_cbranch_scc1 k1_kv")

    def chunk_loop(rdA, rdB, nper, mfma, adjust, extra=None, dma5=None, tag="c"):
        for ch in range(6):
            if ch == 0: stamp(a, 1)
            if tag: a.vm_wait(f"c{ch}")
            a("s_barrier")
            if ch == 0: stamp(a, 2)
            if ch == 5: stamp(a, 3)
            if ch == 1 and dma5: dma5()
            if ch in (2, 4): adjust(61440)
            if ch == 5: adjust(-122880)
            off = (ch % 5 % 2) * 30720
            ahead = 15 // nper
            issued = 0
            for k in range(6):
                while issued < 6 and issued < k + ahead and (issued - k + 1) * nper <= 15:
                    rdA(issued, FR + 8*issued, off); rdB(issued, FR + 8*issued + 4, off); issued += 1
                a(f"s_waitcnt lgkmcnt({(issued - k - 1) * nper})")
                mfma(FR + 8*k, FR + 8*k + 4)
                if extra: extra(ch, k, FR + 8*k, FR + 8*k + 4)
    def rd_x(v0, v1, slot=0):
        return lambda k, reg, off: a(f"ds_read_b128 v[{reg}:{reg+3}], v{v1 if k & 1 else v0} offset:{off + (slot + (k >> 1)) * 1024}")
    def rd_tr(v, slot=0):
        def f(k, reg, off):
            a(f"ds_read_b64_tr_b16 v[{reg}:{reg+1}], v{v} offset:{off + (slot + k) * 1024}")
            a(f"ds_read_b64_tr_b16 v[{reg+2}:{reg+3}], v{v} offset:{off + (slot + k) * 1024 + 256}")
        return f
    def adj(*vs):
        def f(d):
            for v in vs: a(f"v_add_u32 v{v}, {d & 0xffffffff}, v{v}")
        return f
    mf = lambda A, B: a(f"v_mfma_f32_32x32x16_bf16 v[{ACC}:{ACC+15}], v[{A}:{A+3}], v[{B}:{B+3}], v[{ACC}:{ACC+15}]")

    vm0 = list(a.vm)
    a(f"""v_lshl_add_u32 v{vTr}, v{vWs}, 3, v{vTr}
    v_lshlrev_b32 v{vWs}, 4, v{vWs}
    s_movk_i32 s{sA}, 1152
    v_mad_u32_u24 v{vWs}, v{vt1}, s{sA}, v{vWs}""")
    def xoff(dst, slot):
        a(f"""s_mul_i32 s{sE}, s{slot}, 86
        s_lshr_b32 s{sE}, s{sE}, 8
        s_mul_i32 s{sF}, s{sE}, 3
        s_sub_u32 s{slot}, s{slot}, s{sF}
        s_lshl_b32 s{slot}, s{slot}, 6
        s_lshr_b32 s{sF}, s{sE}, 1
        s_mul_i32 s{sF}, s{sF}, 36864
        s_add_u32 s{slot}, s{slot}, s{sF}
        s_and_b32 s{sE}, s{sE}, 1
        s_mul_i32 s{sE}, s{sE}, 1179648
        s_add_u32 s{slot}, s{slot}, s{sE}
        s_add_u32 s{dst}, s{slot}, s{sD}""")
    a(f"s_mul_i32 s{sD}, s{sT1}, 1152\ns_lshl_b32 s{sA}, s{sWave}, 1\ns_add_u32 s{sB}, s{sA}, 1")
    xoff(sA, sA); xoff(sB, sB)
    a(f"""s_and_b32 s{sC}, s{sWave}, 1
    s_mul_i32 s{sC}, s{sC}, {48*1152}
    s_lshr_b32 s{sE}, s{sWave}, 1
    s_mul_i32 s{sF}, s{sRole}, 3
    s_add_u32 s{sE}, s{sE}, s{sF}
    s_lshl_b32 s{sE}, s{sE}, 6
    s_add_u32 s{sC}, s{sC}, s{sE}
    s_lshl_b32 s{sM}, s{sWave}, 11
    s_lshl_b32 s{sD}, s{sWave}, 10
    s_add_u32 s{sD}, s{sD}, 12288
    s_waitcnt lgkmcnt(0)""")
    srd(a, sX, 16, 2048*1152); srd(a, sW, 28, 576*1152)
    def dma_q():
        a(f"""s_mov_b32 m0, s{sM}
        s_nop 0
        buffer_load_dwordx4 v{vXs}, s[{sX}:{sX+3}], s{sA} offen lds
        s_add_u32 m0, m0, 1024
        s_add_u32 s{sA}, s{sA}, 192
        buffer_load_dwordx4 v{vXs}, s[{sX}:{sX+3}], s{sB} offen lds
        s_add_u32 m0, s{sM}, s{sD}
        s_add_u32 s{sB}, s{sB}, 192
        buffer_load_dwordx4 v{vWs}, s[{sW}:{sW+3}], s{sC} offen lds
        s_add_u32 m0, m0, 1024
        s_add_u32 s{sE}, s{sC}, 18432
        buffer_load_dwordx4 v{vWs}, s[{sW}:{sW+3}], s{sE} offen lds
        s_add_u32 m0, m0, 1024
        s_add_u32 s{sE}, s{sE}, 18432
        buffer_load_dwordx4 v{vWs}, s[{sW}:{sW+3}], s{sE} offen lds
        s_add_u32 s{sC}, s{sC}, 110592""")
    a.label("k1_q_dma")
    dma_q()
    a(f"s_add_u32 s{sM}, s{sM}, 30720\ns_cmp_lt_u32 s{sM}, 153600\ns_cbranch_scc1 k1_q_dma")
    for ch in range(5): a.vm_note(f"c{ch}", 5)
    a(f"s_sub_u32 s{sM}, s{sM}, 153600")
    sPhi, sGrp, sKs = 70, 71, 72
    vDF = 80
    srd(a, sWS, 40, WS_SIZE)
    a(f"""s_lshl_b32 s{sPhi}, s{sRole}, 5
    s_add_u32 s{sPhi}, s{sPhi}, s{sT1}
    s_mul_i32 s{sPhi}, s{sPhi}, 3
    s_lshr_b32 s{sE}, s{sWave}, 1
    s_add_u32 s{sPhi}, s{sPhi}, s{sE}
    s_mul_i32 s{sGrp}, s{sPhi}, 1821
    s_lshr_b32 s{sGrp}, s{sGrp}, 16
    s_mul_i32 s{sKs}, s{sGrp}, 36
    s_sub_u32 s{sKs}, s{sPhi}, s{sKs}
    s_bitcmp1_b32 s{sWave}, 0
    s_cselect_b32 s{sW2}, s24, s22
    s_cselect_b32 s{sW2+1}, s25, s23
    s_cselect_b64 s[74:75], -1, 0
    s_mov_b32 s{sW2+2}, {576*1152}
    s_mov_b32 s{sW2+3}, 0x20000
    v_and_b32 v{vt0}, 3, v{vL}
    v_bfe_u32 v{vt1}, v{vL}, 2, 1
    v_lshl_add_u32 v{vt0}, v{vt1}, 3, v{vt0}
    v_bfe_u32 v{vt1}, v{vL}, 3, 1
    v_lshl_add_u32 v{vt0}, v{vt1}, 2, v{vt0}
    s_lshl_b32 s{sE}, s{sGrp}, 4
    v_add_u32 v{vt0}, s{sE}, v{vt0}
    s_cmp_eq_u32 s{sGrp}, 0
    s_cselect_b32 s76, 0x10000, 0
    s_mov_b32 s77, s76
    v_mov_b32 v{vt1}, 288
    v_cndmask_b32 v{vt0}, v{vt0}, v{vt1}, s[76:77]
    v_mul_u32_u24 v{vt0}, 1152, v{vt0}
    v_lshl_add_u32 v{vt0}, v{vt2}, 4, v{vt0}
    s_or_b32 s76, s76, 0xffff
    s_mov_b32 s77, s76
    s_xor_b64 s[76:77], s[76:77], s[74:75]
    s_lshl_b32 s{sKs}, s{sKs}, 5
    s_mov_b64 exec, s[76:77]""")
    a.vmem(f"buffer_load_dwordx4 v[{vDF}:{vDF+3}], v{vt0}, s[{sW2}:{sW2+3}], s{sKs} offen", "df")
    a("s_mov_b64 exec, -1")
    a(f"""s_cmp_ge_u32 s{sWave}, 3
    s_cselect_b32 s{sE}, 3, 0
    s_cselect_b32 s{sF}, 6144, 0
    s_cselect_b32 s73, 32, 0
    s_sub_u32 s{sE}, s{sWave}, s{sE}
    v_add_u32 v{vR0}, s{sF}, v{vR0}
    v_xor_b32 v{vR1}, 32, v{vR0}
    s_mul_i32 s{sF}, s{sE}, 6144
    s_add_u32 s{sF}, s{sF}, 12288
    v_add_u32 v{vTr}, s{sF}, v{vTr}
    s_mul_i32 s{sF}, s{sRole}, 3
    s_add_u32 s78, s{sF}, s{sE}
    s_add_u32 s73, s73, s{sT1}""")
    def d5():
        dma_q(); a.vm_note("c5", 5)
    chunk_loop(rd_tr(vTr), rd_x(vR0, vR1), 3, mf, adj(vR0, vR1, vTr), dma5=d5)
    a(f"""s_lshl_b32 s{sPhi}, s{sPhi}, 10
    s_add_u32 s{sPhi}, s{sPhi}, {DF}
    v_lshlrev_b32 v{vt0}, 4, v{vL}
    s_mov_b64 exec, s[76:77]
    buffer_store_dwordx4 v[{vDF}:{vDF+3}], v{vt0}, s[{sWS}:{sWS+3}], s{sPhi} offen
    s_mov_b64 exec, -1
    v_and_b32 v{vt0}, 31, v{vL}
    v_lshlrev_b32 v{vt0}, 2, v{vt0}
    v_lshl_add_u32 v{vt0}, v{vt2}, 8, v{vt0}
    s_mul_i32 s73, s73, 36864
    s_lshl_b32 s78, s78, 11
    s_add_u32 s73, s73, s78
    s_mov_b32 s{sE}, {f2u(CQ)}
    s_nop 0""")
    for r in range(16): a(f"v_mul_f32 v{ACC+r}, s{sE}, v{ACC+r}")
    for k in range(8):
        a(f"v_cvt_pk_bf16_f32 v{FR+k}, v{ACC+2*k}, v{ACC+2*k+1}")
        a(f"buffer_store_dword v{FR+k}, v{vt0}, s[{sWS}:{sWS+3}], s73 offen offset:{(4*(k>>1)+(k&1))*128}")
    stamp(a, 4)
    stamp_end(a, 0, sWS, sWave)
    a("s_endpgm")

    a.label("k1_kv")
    sRb = 73
    a(f"""s_sub_u32 s{sRb}, s{sRole}, 6
    s_lshl_b32 s{sRb}, s{sRb}, 5
    s_add_u32 s{sRb}, s{sRb}, s{sT1}
    v_xor_b32 v{vR1}, 32, v{vR0}
    s_cmp_eq_u32 s{sWave}, 5
    s_cbranch_scc1 k1_end
    s_cmp_ge_u32 s{sWave}, 3
    s_cbranch_scc1 k1_job
    s_cmp_eq_u32 s{sWave}, 2
    s_cbranch_scc1 k1_gate""")
    def dma6(vsrc, srdA, srdB, step_in, step_ch, lab):
        def body():
            a(f"s_mov_b32 m0, s{sM}")
            a(f"s_mov_b32 s{sE}, s{sA}")
            for i in range(6):
                r = srdA if i < 3 else srdB
                a(f"buffer_load_dwordx4 v{vsrc}, s[{r}:{r+3}], s{sE} offen lds")
                if i < 5:
                    a("s_add_u32 m0, m0, 1024")
                    a(f"s_mov_b32 s{sE}, s{sB}" if i == 2 else f"s_add_u32 s{sE}, s{sE}, {step_in}")
            a(f"s_add_u32 s{sA}, s{sA}, {step_ch}\ns_add_u32 s{sB}, s{sB}, {step_ch}")
        a.label(lab)
        body()
        a(f"s_add_u32 s{sM}, s{sM}, 30720\ns_cmp_lt_u32 s{sM}, 153600\ns_cbranch_scc1 {lab}")
        for ch in range(5): a.vm_note(f"c{ch}", 6)
        a(f"s_sub_u32 s{sM}, s{sM}, 153600")
        def d5():
            body(); a.vm_note("c5", 6)
        return d5
    a.vm = list(vm0)
    a(f"""v_mul_u32_u24 v{vt0}, 36, v{vt1}
    v_lshl_add_u32 v{vt0}, v{vWs}, 4, v{vt0}
    v_and_b32 v{vt1}, 1, v{vL}
    v_bfe_u32 v{vB0}, v{vL}, 1, 1
    v_lshl_or_b32 v{vt1}, v{vt1}, 1, v{vB0}
    v_cmp_eq_u32 vcc, 0, v{vt3}
    s_mul_i32 s{sM}, s{sWave}, 6144
    s_add_u32 s{sM}, s{sM}, 6144
    v_cndmask_b32 v{vt1}, v{vWs}, v{vt1}, vcc
    v_lshl_add_u32 v{vTr}, v{vt1}, 3, v{vTr}
    v_mov_b32 v{vWs}, v{vt0}
    v_add_u32 v{vTr}, s{sM}, v{vTr}
    s_mov_b32 s{sA}, 0
    s_mov_b32 s{sB}, {48*36}
    s_cmp_eq_u32 s{sWave}, 0
    s_waitcnt lgkmcnt(0)
    s_cselect_b32 s{sW}, s30, s32
    s_cselect_b32 s{sW+1}, s31, s33
    s_mov_b32 s{sW+2}, {576*36}
    s_mov_b32 s{sW+3}, 0x20000""")
    d5 = dma6(vWs, sW, sW, 16*36, 96*36, "k1_kv_dma")
    srd(a, sWS, 40, WS_SIZE)
    a(f"s_mul_i32 s{sF}, s{sRb}, {TILE}\ns_add_u32 s{sF}, s{sF}, {KV}")
    a(f"s_cmp_eq_u32 s{sWave}, 1\ns_cbranch_scc1 k1_v")
    vmk = list(a.vm)
    chunk_loop(rd_tr(vTr), rd_x(vR0, vR1), 3, mf, adj(vR0, vR1, vTr), dma5=d5)
    a(f"""v_lshlrev_b32 v{vt0}, 4, v{vL}
    v_lshlrev_b32 v{vt1}, 2, v{vL}
    s_nop 9""")
    for k in range(5): a(f"v_cvt_pk_bf16_f32 v{FR+k}, v{ACC+2*k}, v{ACC+2*k+1}")
    a(f"buffer_store_dwordx4 v[{FR}:{FR+3}], v{vt0}, s[{sWS}:{sWS+3}], s{sF} offen")
    a(f"v_mul_f32 v{vt3}, v{ACC}, v{ACC}")
    for r in range(1, 8): a(f"v_fmac_f32 v{vt3}, v{ACC+r}, v{ACC+r}")
    a(f"""s_mov_b32 exec_hi, 0
    buffer_store_dword v{FR+4}, v{vt1}, s[{sWS}:{sWS+3}], s{sF} offen offset:1024
    v_fmac_f32 v{vt3}, v{ACC+8}, v{ACC+8}
    v_fmac_f32 v{vt3}, v{ACC+9}, v{ACC+9}
    s_mov_b64 exec, -1
    v_mov_b32 v{vt0}, v{vt3}
    s_nop 1
    v_permlane32_swap_b32 v{vt0}, v{vt3}
    v_add_f32 v{vt3}, v{vt0}, v{vt3}""")
    wave_max(a, vt3, sE)
    a(f"""v_mov_b32 v{vt3}, s{sE}
    v_mov_b32 v{vt0}, 0
    s_lshl_b32 s{sF}, s{sRb}, 2
    s_add_u32 s{sF}, s{sF}, {KM}
    s_mov_b64 exec, 1
    buffer_store_dword v{vt3}, v{vt0}, s[{sWS}:{sWS+3}], s{sF} offen""")
    stamp_end(a, 0, sWS, sWave)
    a("s_endpgm")
    a.label("k1_v")
    a.vm = list(vmk)
    chunk_loop(rd_x(vR0, vR1), rd_tr(vTr), 3, mf, adj(vR0, vR1, vTr), dma5=d5)
    a(f"""v_and_b32 v{vt0}, 31, v{vL}
    v_mul_u32_u24 v{vt1}, 19, v{vt2}
    v_add_u32 v{vt1}, v{vt1}, v{vt0}
    v_cmp_eq_u32 vcc, 19, v{vL}
    v_mov_b32 v{vt3}, 38
    v_cmp_eq_u32 s[74:75], 18, v{vt0}
    v_cndmask_b32 v{vt1}, v{vt1}, v{vt3}, vcc
    v_lshlrev_b32 v{vt1}, 4, v{vt1}
    v_mov_b32 v{vt3}, 0x3f803f80
    s_nop 2""")
    for k in range(8): a(f"v_cvt_pk_bf16_f32 v{FR+k}, v{ACC+2*k}, v{ACC+2*k+1}")
    for k in range(8):
        a(f"v_cndmask_b32 v{FR+k}, v{FR+k}, v{vt3}, s[74:75]")
        a(f"v_cndmask_b32 v{FR+k}, v{FR+k}, 0, vcc")
    a(f"""s_mov_b32 exec_lo, 0xfffff
    s_mov_b32 exec_hi, 0x7ffff
    buffer_store_dwordx4 v[{FR}:{FR+3}], v{vt1}, s[{sWS}:{sWS+3}], s{sF} offen offset:1152
    buffer_store_dwordx4 v[{FR+4}:{FR+7}], v{vt1}, s[{sWS}:{sWS+3}], s{sF} offen offset:{1152+624}""")
    stamp_end(a, 0, sWS, sWave)
    a("s_endpgm")
    a.label("k1_gate")
    a.vm = list(vm0)
    a(f"""s_mul_i32 s{sA}, s{sRb}, 1152
    s_add_u32 s{sB}, s{sA}, 1179648
    s_mov_b32 s{sM}, 0
    v_lshlrev_b32 v{vt0}, 4, v{vL}
    v_lshlrev_b32 v{vB0}, 4, v{vt2}
    v_add_u32 v{vB0}, 153600, v{vB0}
    s_waitcnt lgkmcnt(0)""")
    srd(a, sX, 16, 2048*1152); srd(a, sW2, 36, 1152)
    a(f"s_mov_b32 m0, 153600\ns_nop 0")
    a.vmem(f"buffer_load_dwordx4 v{vt0}, s[{sW2}:{sW2+3}], 0 offen lds", "g")
    a.vmem(f"buffer_load_dwordx4 v{vt0}, s[{sW2}:{sW2+3}], 0 offen offset:1024 lds", "g")
    d5 = dma6(vXs, sX, sX, 64, 192, "k1_x_dma")
    srd(a, sWS, 40, WS_SIZE)
    a(f"s_mul_i32 s{sF}, s{sRb}, 36864\ns_add_u32 s{sF}, s{sF}, {XF}")
    chn = [0]
    def rd_gate(k, reg, off):
        a(f"ds_read_b128 v[{reg}:{reg+3}], v{vB0} offset:{32*chn[0]}"); chn[0] += 1
    def xf_store(ch, k, A, B):
        a.vmem(f"buffer_store_dwordx4 v[{B}:{B+3}], v{vt0}, s[{sWS}:{sWS+3}], s{sF} offen offset:{(k&3)*1024}", "xf")
        if k in (3, 5): a(f"s_add_u32 s{sF}, s{sF}, {4096 if k == 3 else 2048}")
    chunk_loop(rd_gate, rd_x(vR0, vR1), 2, mf, adj(vR0, vR1), extra=xf_store, dma5=d5)
    a(f"""s_lshl_b32 s{sF}, s{sRb}, 7
    s_add_u32 s{sF}, s{sF}, {GG}
    v_lshlrev_b32 v{vt1}, 2, v{vL}
    s_nop 7
    v_mul_f32 v{vt3}, {f2u(-math.log2(math.e))}, v{ACC}
    v_exp_f32 v{vt3}, v{vt3}
    s_nop 0
    v_add_f32 v{vt3}, 1.0, v{vt3}
    v_rcp_f32 v{vt3}, v{vt3}
    s_mov_b32 exec_hi, 0
    buffer_store_dword v{vt3}, v{vt1}, s[{sWS}:{sWS+3}], s{sF} offen""")
    stamp_end(a, 0, sWS, sWave)
    a("s_endpgm")
    a.label("k1_job")
    a.vm = list(vm0)
    sGrp = 71
    a(f"""v_and_b32 v{vB0}, 3, v{vt1}
    v_bfe_u32 v{vB1}, v{vt1}, 2, 1
    v_lshl_add_u32 v{vB0}, v{vB1}, 3, v{vB0}
    v_bfe_u32 v{vB1}, v{vt1}, 3, 1
    v_lshl_add_u32 v{vB0}, v{vB1}, 2, v{vB0}
    s_movk_i32 s{sA}, 1152
    v_mad_u32_u24 v{vWs}, v{vB0}, s{sA}, v{vt0}
    s_add_u32 s{sGrp}, s{sWave}, 13
    s_mul_i32 s{sA}, s{sGrp}, {16*1152}
    s_mov_b32 s{sB}, s{sA}
    s_mul_i32 s{sM}, s{sWave}, 6144
    v_add_u32 v{vB0}, s{sM}, v{vR0}
    v_add_u32 v{vB1}, s{sM}, v{vR1}
    s_waitcnt lgkmcnt(0)""")
    srd(a, sW, 22, 576*1152); srd(a, sW2, 24, 576*1152)
    d5 = dma6(vWs, sW, sW2, 64, 192, "k1_d_dma")
    srd(a, sWS, 40, WS_SIZE)
    R = 80
    load_rf(a, R, vL, vt0, "k1_rf")
    chunk_loop(rd_x(vR0, vR1), rd_x(vB0, vB1), 2, mf, adj(vR0, vR1, vB0, vB1), dma5=d5)
    a("s_nop 11")
    fnet_tail(a, ACC, FR, FR+16, R, FR+32, vL, sWS, sRb, sGrp, 76, None)
    stamp_end(a, 0, sWS, sWave)
    a.label("k1_end")
    a("s_endpgm")
    a.label("k1_code_end")
    return a


K2_LDS = 163840
FLG = 159744
OFFS = 96.0
PRIO = {0: 2, 32: 1, 60: 0}
EXP = set()
def gen_k2(fused=False):
    a = Asm()
    sWS = 8
    sWave, sT1, sJ, sA, sB, sC, sD, sE = 20, 21, 22, 23, 24, 25, 26, 27
    sHi = 28
    vL, vt0, vt1, vt2, vt3 = 1, 2, 3, 14, 15
    a("s_cmp_ge_u32 s2, 256\ns_cbranch_scc1 k2_end")
    stamp(a, 0)
    a("s_load_dwordx2 s[16:17], s[0:1], 104")
    code_prefetch(a, vt0, 111, "k2_code_end", "k2_pf")
    a(f"""v_lshrrev_b32 v{vt0}, 6, v0
    v_and_b32 v{vL}, 63, v0
    v_readfirstlane_b32 s{sWave}, v{vt0}
    s_bfe_u32 s{sA}, s2, 0x20003
    s_and_b32 s{sT1}, s2, 7
    s_lshl_b32 s{sA}, s{sA}, 3
    s_add_u32 s{sT1}, s{sT1}, s{sA}
    s_lshr_b32 s{sJ}, s2, 5
    s_cmp_ge_u32 s{sWave}, 8
    s_cbranch_scc1 k2_helper""")
    vm0 = list(a.vm)
    Q1, Q2, vG, aK, ak, aV = 4, 8, 10, 11, 12, 13
    O, S, P, K1, K2, V = 16, [32, 48], [64, 72], [80, 84], [88, 90], [92, 100]
    aF = 108
    sRb, sHead = 30, 31
    a(f"""s_lshr_b32 s{sA}, s{sWave}, 2
    s_lshl_b32 s{sA}, s{sA}, 5
    s_add_u32 s{sRb}, s{sT1}, s{sA}
    s_and_b32 s{sA}, s{sWave}, 3
    s_lshl_b32 s{sHead}, s{sJ}, 2
    s_add_u32 s{sHead}, s{sHead}, s{sA}
    s_mul_i32 s{sA}, s{sRb}, 36864
    s_mul_i32 s{sB}, s{sHead}, 1152
    s_add_u32 s{sA}, s{sA}, s{sB}
    s_lshl_b32 s{sB}, s{sRb}, 7
    s_add_u32 s{sB}, s{sB}, {GG}
    s_mov_b32 s{sC}, {KM}
    v_and_b32 v{vt2}, 31, v{vL}
    v_lshrrev_b32 v{vt3}, 5, v{vL}
    v_lshlrev_b32 v{ak}, 2, v{vt2}
    v_lshl_add_u32 v{vt0}, v{vt3}, 9, v{ak}
    v_lshlrev_b32 v{aF}, 2, v{vL}
    s_waitcnt lgkmcnt(0)""")
    srd(a, sWS, 16, WS_SIZE)
    for k in range(4): a.vmem(f"buffer_load_dword v{Q1+k}, v{vt0}, s[{sWS}:{sWS+3}], s{sA} offen offset:{128*k}", "q")
    a.vmem(f"buffer_load_dword v{Q2}, v{ak}, s[{sWS}:{sWS+3}], s{sA} offen offset:1024", "q")
    a.vmem(f"buffer_load_dword v{K2[0]+1}, v{aF}, s[{sWS}:{sWS+3}], s{sC} offen", "q")
    a.vmem(f"buffer_load_dword v{vG}, v{ak}, s[{sWS}:{sWS+3}], s{sB} offen", "g")
    a(f"""v_add_u32 v{vt0}, {FLG}, v{aF}
    v_mov_b32 v{O}, 0
    ds_write_b32 v{vt0}, v{O}
    v_and_b32 v{aF}, 12, v{aF}
    v_add_u32 v{aF}, {FLG}, v{aF}
    v_lshlrev_b32 v{aK}, 4, v{vL}
    v_add_u32 v{ak}, 1024, v{ak}
    v_cmp_eq_u32 vcc, 28, v{vt2}
    v_mul_u32_u24 v{vt0}, 19, v{vt3}
    s_mov_b32 s{sHi}, 0
    v_cndmask_b32 v{aV}, v{vt2}, 18, vcc
    v_cmp_gt_u32 vcc, 19, v{aV}
    v_add_u32 v{aV}, v{aV}, v{vt0}
    s_mov_b32 s{sHi+1}, -1
    v_cndmask_b32 v{aV}, 38, v{aV}, vcc
    v_lshlrev_b32 v{aV}, 4, v{aV}
    v_add_u32 v{aV}, 1152, v{aV}""")
    for r in range(1, 16): a(f"v_mov_b32 v{O+r}, 0")
    stamp(a, 1)
    a.vm_wait("q")
    stamp(a, 2)
    a(f"""v_cndmask_b32 v{Q2}, v{Q2}, 0, s[{sHi}:{sHi+1}]
    v_dot2_f32_bf16 v{vt0}, v{Q1}, v{Q1}, 0
    v_dot2_f32_bf16 v{vt1}, v{Q1+1}, v{Q1+1}, 0
    v_dot2_f32_bf16 v{vt2}, v{Q1+2}, v{Q1+2}, 0
    v_dot2_f32_bf16 v{vt3}, v{Q1+3}, v{Q1+3}, 0
    v_dot2_f32_bf16 v{S[1]}, v{Q2}, v{Q2}, 0""")
    wave_max(a, K2[0]+1, sA)
    a(f"""v_add_f32 v{vt0}, v{vt0}, v{vt1}
    v_add_f32 v{vt2}, v{vt2}, v{vt3}
    v_sqrt_f32 v{vt3}, s{sA}
    v_add_f32 v{vt0}, v{vt0}, v{S[1]}
    v_add_f32 v{vt0}, v{vt0}, v{vt2}
    v_mov_b32 v{vt1}, v{vt0}
    v_mul_f32 v{vt3}, {f2u(-1.0079)}, v{vt3}
    v_mov_b32 v{vt2}, {f2u(OFFS)}
    v_permlane32_swap_b32 v{vt0}, v{vt1}
    v_cvt_pk_bf16_f32 v{K2[0]+1}, v{vt3}, v{vt2}
    v_add_f32 v{vt0}, v{vt0}, v{vt1}
    v_sqrt_f32 v{vt0}, v{vt0}
    v_mov_b32 v{K2[1]+1}, v{K2[0]+1}
    v_mul_f32 v{vt0}, {f2u(1.0079)}, v{vt0}
    v_cvt_pk_bf16_f32 v{Q2+1}, v{vt0}, 1.0
    v_cndmask_b32 v{Q2+1}, v{Q2+1}, 0, s[{sHi}:{sHi+1}]
    s_waitcnt lgkmcnt(0)
    s_barrier
    s_setprio {PRIO[0]}""")
    stamp(a, 3)
    seg = [0]
    def off(j, extra=0):
        o = (j - seg[0]) * TILE + extra
        assert 0 <= o < 65536
        return o
    rdK = lambda j: f"ds_read_b128 v[{K1[j&1]}:{K1[j&1]+3}], v{aK} offset:{off(j)}"
    rdk = lambda j: f"ds_read_b32 v{K2[j&1]}, v{ak} offset:{off(j)}"
    rdV = lambda j, u: f"ds_read_b128 v[{V[j&1]+4*u}:{V[j&1]+4*u+3}], v{aV} offset:{off(j, 624*u)}"
    def M1(j): return f"v_mfma_f32_32x32x16_bf16 v[{S[j&1]}:{S[j&1]+15}], v[{K1[j&1]}:{K1[j&1]+3}], v[{Q1}:{Q1+3}], 0"
    def M2(j): return f"v_mfma_f32_32x32x8_bf16 v[{S[j&1]}:{S[j&1]+15}], v[{K2[j&1]}:{K2[j&1]+1}], v[{Q2}:{Q2+1}], v[{S[j&1]}:{S[j&1]+15}]"
    def M3(j, u): return f"v_mfma_f32_32x32x16_bf16 v[{O}:{O+15}], v[{V[j&1]+4*u}:{V[j&1]+4*u+3}], v[{P[j&1]+4*u}:{P[j&1]+4*u+3}], v[{O}:{O+15}]"
    a(rdK(0)); a(rdk(0)); a(rdK(1)); a(rdk(1))
    a("s_waitcnt lgkmcnt(2)")
    a(M1(0)); a(M2(0))
    a("s_waitcnt lgkmcnt(0)\ns_nop 8")
    FCHK = {3: 1, 9: 2, 23: 3}
    for j in range(64):
        if j in PRIO and j: a(f"s_setprio {PRIO[j]}")
        if j == 32: stamp(a, 4)
        if j in FCHK:
            a.label(f"k2_w{j}")
            a(f"ds_read_b32 v{vt0}, v{aF}\ns_waitcnt lgkmcnt(0)\nv_cmp_gt_u32 vcc, {FCHK[j]}, v{vt0}\ns_cbranch_vccnz k2_w{j}")
        if j in (24, 48):
            for v in (aK, ak, aV): a(f"v_add_u32 v{v}, {24*TILE}, v{v}")
            seg[0] += 24
        s, p = S[j & 1], P[j & 1]
        e = lambda i: f"v_exp_f32 v{s+i}, v{s+i}"
        c = lambda i: f"v_cvt_pk_bf16_f32 v{p+i}, v{s+2*i}, v{s+2*i+1}"
        nx, pv, ld = j + 1 < 64, j > 0, j + 2 < 64
        L = []
        if nx: L.append(M1(j+1))
        if ld: L.append(rdK(j+2))
        L += [e(0), e(1), e(2), e(3), c(0)]
        if nx: L.append(M2(j+1))
        if ld: L.append(rdk(j+2))
        L += [e(4), e(5), c(1), e(6), e(7), c(2)]
        if pv: L.append(M3(j-1, 0))
        L += [rdV(j, 0), rdV(j, 1)]
        L += [e(8), e(9), c(3), e(10), e(11), c(4)]
        if pv: L.append(M3(j-1, 1))
        L += [e(12), e(13), c(5), e(14), e(15), c(6), c(7), "s_waitcnt lgkmcnt(0)"]
        if 'nopv' in EXP: L = [x for x in L if not (x.startswith('v_mfma') and f'v[{O}:{O+15}]' in x)]
        if 'noqk2' in EXP: L = [x for x in L if '32x32x8' not in x]
        if 'noqk' in EXP: L = [x for x in L if not (x.startswith('v_mfma') and f'v[{O}:{O+15}]' not in x)]
        if 'noexp' in EXP: L = [x.replace('v_exp_f32', 'v_mov_b32') for x in L]
        if 'nocvt' in EXP: L = [x for x in L if 'v_cvt' not in x]
        if 'nolds' in EXP: L = [x for x in L if 'ds_read' not in x]
        for x in L: a(x)
    a("s_nop 0"); a(M3(63, 0)); a(M3(63, 1))
    stamp(a, 5)
    sO = 32
    a(f"""s_lshl_b32 s{sA}, s{sT1}, 2
    s_lshr_b32 s{sB}, s{sWave}, 2
    s_lshl_b32 s{sB}, s{sB}, 1
    s_add_u32 s{sA}, s{sA}, s{sB}
    s_mul_i32 s{sA}, s{sA}, 18432
    s_add_u32 s{sA}, s{sA}, {OF}
    s_lshr_b32 s{sB}, s{sHead}, 1
    s_lshl_b32 s{sB}, s{sB}, 10
    s_and_b32 s{sC}, s{sHead}, 1
    s_lshl_b32 s{sC}, s{sC}, 9
    s_add_u32 s{sB}, s{sB}, s{sC}
    s_add_u32 s{sO}, s{sA}, s{sB}
    s_lshr_b32 s{sB}, s{sHead}, 2
    s_lshl_b32 s{sB}, s{sB}, 8
    s_and_b32 s{sC}, s{sHead}, 3
    s_lshl_b32 s{sC}, s{sC}, 2
    s_add_u32 s{sB}, s{sB}, s{sC}
    s_add_u32 s{sB}, s{sB}, 16384
    s_add_u32 s{sO+1}, s{sA}, s{sB}""")
    a.vm_wait("g")
    vl = S[0]
    a(f"v_cndmask_b32 v{vl}, v{O+10}, v{O+12}, s[{sHi}:{sHi+1}]")
    a(f"v_add_f32 v{vt0}, |v{O}|, |v{O+1}|")
    for r in range(2, 10): a(f"v_add_f32 v{vt0}, |v{O+r}|, v{vt0}")
    a(f"""v_add_f32 v{vt0}, v{vl}, v{vt0}
    v_cmp_le_f32 vcc, {f2u(2.0**-80)}, v{vl}
    v_mov_b32 v{vt1}, 0x7f800000
    v_cmp_lt_f32 s[{sA+1}:{sA+2}], v{vt0}, v{vt1}
    s_nop 1
    s_and_b64 vcc, vcc, s[{sA+1}:{sA+2}]
    s_cmp_eq_u64 vcc, exec""")
    if not EXP: a("s_cbranch_scc0 k2_fallback")
    a.label("k2_norm")
    a(f"""v_rcp_f32 v{vl}, v{vl}
    v_sub_f32 v{vG}, 1.0, v{vG}
    v_and_b32 v{vt0}, 15, v{vL}
    v_lshlrev_b32 v{vt0}, 4, v{vt0}
    v_mul_f32 v{vl}, v{vl}, v{vG}
    v_bfe_u32 v{vt1}, v{vL}, 4, 1
    v_mul_u32_u24 v{vt1}, 18432, v{vt1}
    v_add_u32 v{vt0}, v{vt0}, v{vt1}
    v_lshrrev_b32 v{vt1}, 5, v{vL}
    v_lshl_add_u32 v{vt1}, v{vt1}, 8, v{vt0}""")
    for r in range(10): a(f"v_mul_f32 v{O+r}, v{O+r}, v{vl}")
    for k in range(5): a(f"v_cvt_pk_bf16_f32 v{P[0]+k}, v{O+2*k}, v{O+2*k+1}")
    a(f"""buffer_store_dwordx4 v[{P[0]}:{P[0]+3}], v{vt1}, s[{sWS}:{sWS+3}], s{sO} offen
    s_mov_b32 exec_hi, 0
    buffer_store_dword v{P[0]+4}, v{vt0}, s[{sWS}:{sWS+3}], s{sO+1} offen""")
    stamp_end(a, 1, sWS, sWave)
    a("s_endpgm")
    a.label("k2_fallback")
    s0 = S[0]
    a(f"""v_lshlrev_b32 v{aK}, 4, v{vL}
    v_subrev_u32 v{ak}, {48*TILE}, v{ak}
    v_subrev_u32 v{aV}, {48*TILE}, v{aV}
    v_mov_b32 v{K2[0]+1}, 0
    v_mov_b32 v{vt0}, 0xff800000
    s_mov_b32 s{sA}, {KV}""")
    a.label("k2_fb1")
    a(f"""buffer_load_dwordx4 v[{K1[0]}:{K1[0]+3}], v{aK}, s[{sWS}:{sWS+3}], s{sA} offen
    buffer_load_dword v{K2[0]}, v{ak}, s[{sWS}:{sWS+3}], s{sA} offen
    s_waitcnt vmcnt(0)""")
    a(M1(0)); a(M2(0)); a("s_nop 11")
    for r in range(0, 16, 2): a(f"v_max3_f32 v{vt0}, v{s0+r}, v{s0+r+1}, v{vt0}")
    a(f"""s_add_u32 s{sA}, s{sA}, {TILE}
    s_cmp_lt_u32 s{sA}, {KV+64*TILE}
    s_cbranch_scc1 k2_fb1
    v_mov_b32 v{vt1}, v{vt0}
    s_nop 1
    v_permlane32_swap_b32 v{vt0}, v{vt1}
    v_max_f32 v{vt0}, v{vt0}, v{vt1}
    v_cvt_pk_bf16_f32 v{vt1}, v{vt0}, v{vt0}
    v_and_b32 v{vt1}, 0xffff0000, v{vt1}
    v_sub_f32 v{vt0}, v{vt0}, v{vt1}
    v_cvt_pk_bf16_f32 v{Q2+1}, v{vt1}, v{vt0}
    v_cndmask_b32 v{Q2+1}, v{Q2+1}, 0, s[{sHi}:{sHi+1}]
    v_mov_b32 v{K2[0]+1}, 0xbf80bf80
    s_mov_b32 s{sA}, {KV}""")
    for r in range(16): a(f"v_mov_b32 v{O+r}, 0")
    a.label("k2_fb2")
    a(f"""buffer_load_dwordx4 v[{K1[0]}:{K1[0]+3}], v{aK}, s[{sWS}:{sWS+3}], s{sA} offen
    buffer_load_dword v{K2[0]}, v{ak}, s[{sWS}:{sWS+3}], s{sA} offen
    buffer_load_dwordx4 v[{V[0]}:{V[0]+3}], v{aV}, s[{sWS}:{sWS+3}], s{sA} offen
    buffer_load_dwordx4 v[{V[0]+4}:{V[0]+7}], v{aV}, s[{sWS}:{sWS+3}], s{sA} offen offset:624
    s_waitcnt vmcnt(0)""")
    a(M1(0)); a(M2(0)); a("s_nop 11")
    for r in range(16): a(f"v_exp_f32 v{s0+r}, v{s0+r}")
    a("s_nop 0")
    for k in range(8): a(f"v_cvt_pk_bf16_f32 v{P[0]+k}, v{s0+2*k}, v{s0+2*k+1}")
    a("s_nop 1"); a(M3(0, 0)); a(M3(0, 1))
    a(f"""s_add_u32 s{sA}, s{sA}, {TILE}
    s_cmp_lt_u32 s{sA}, {KV+64*TILE}
    s_cbranch_scc1 k2_fb2
    s_nop 11
    v_cndmask_b32 v{vl}, v{O+10}, v{O+12}, s[{sHi}:{sHi+1}]
    s_branch k2_norm""")

    a.label("k2_helper")
    a.vm = list(vm0)
    sV, sS2, sGrp = 30, 31, 32
    a(f"""s_setprio 3
    s_sub_u32 s{sV}, s{sWave}, 8
    v_lshlrev_b32 v{vt0}, 4, v{vL}
    s_mul_i32 s{sA}, s{sV}, 3072
    s_mov_b32 m0, s{sA}
    s_add_u32 s{sA}, s{sA}, {KV}
    s_lshl_b32 s{sB}, s{sV}, 12
    s_add_u32 s{sB}, s{sB}, 12288
    s_waitcnt lgkmcnt(0)""")
    srd(a, sWS, 16, WS_SIZE)
    for k in range(3): a.vmem(f"buffer_load_dwordx4 v{vt0}, s[{sWS}:{sWS+3}], s{sA} offen offset:{1024*k} lds", "c0")
    a.label("k2_dma")
    a(f"s_mov_b32 m0, s{sB}\ns_add_u32 s{sA}, s{sB}, {KV}")
    for k in range(4): a(f"buffer_load_dwordx4 v{vt0}, s[{sWS}:{sWS+3}], s{sA} offen offset:{1024*k} lds")
    a(f"s_add_u32 s{sB}, s{sB}, 16384\ns_cmp_lt_u32 s{sB}, {FLG}\ns_cbranch_scc1 k2_dma")
    a.vm_note("c1", 4); a.vm_note("c2", 8); a.vm_note("c3", 24)
    a(f"s_lshl_b32 s{sA}, s{sV}, 2\ns_add_u32 s{sA}, s{sA}, {FLG}\nv_mov_b32 v{vt1}, s{sA}")
    stamp(a, 1)
    a.vm_wait("c0")
    stamp(a, 2)
    a("s_barrier")
    for k in (1, 2, 3):
        a(f"v_mov_b32 v{vt2}, {k}")
        a.vm_wait(f"c{k}")
        a(f"ds_write_b32 v{vt1}, v{vt2}")
    stamp(a, 3)
    if 'nojob' in EXP: a("s_branch k2_jobend")
    H, R, RING = 16, 32, 48
    load_rf(a, R, vL, vt0, "k2_rf")
    a(f"""s_lshr_b32 s{sS2}, s2, 2
    s_and_b32 s{sGrp}, s2, 3
    s_lshl_b32 s{sGrp}, s{sGrp}, 2
    s_add_u32 s{sGrp}, s{sGrp}, s{sV}
    s_mul_i32 s{sA}, s{sS2}, 36864
    s_add_u32 s{sA}, s{sA}, {XF}
    s_mul_i32 s{sB}, s{sGrp}, 36864
    s_add_u32 s{sB}, s{sB}, {DF}""")
    ND = 8
    def ld(ks):
        r = RING + 8 * (ks % ND)
        a.vmem(f"buffer_load_dwordx4 v[{r}:{r+3}], v{vt0}, s[{sWS}:{sWS+3}], s{sA} offen offset:{(ks&3)*1024}", f"j{ks}")
        a.vmem(f"buffer_load_dwordx4 v[{r+4}:{r+7}], v{vt0}, s[{sWS}:{sWS+3}], s{sB} offen offset:{(ks&3)*1024}", f"j{ks}")
        if ks & 3 == 3: a(f"s_add_u32 s{sA}, s{sA}, 4096\ns_add_u32 s{sB}, s{sB}, 4096")
    for ks in range(ND): ld(ks)
    for ks in range(36):
        r = RING + 8 * (ks % ND)
        a.vm_wait(f"j{ks}")
        a(f"v_mfma_f32_32x32x16_bf16 v[{H}:{H+15}], v[{r}:{r+3}], v[{r+4}:{r+7}], " + ("0" if ks == 0 else f"v[{H}:{H+15}]"))
        if ks + ND < 36: ld(ks + ND)
    a("s_nop 11")
    fnet_tail(a, H, RING, RING+16, R, RING+32, vL, sWS, sS2, sGrp, 34, "k2_nony")
    a.label("k2_jobend")
    stamp(a, 4)
    stamp_end(a, 1, sWS, sWave)
    a.label("k2_end")
    a("s_endpgm")
    a.label("k2_code_end")
    return a

K3_LDS = 112640 + 4*2304
def gen_k3():
    a = Asm()
    sWS, sWo, sRe, sIm, sOut = 8, 12, 40, 44, 48
    sV, sT1, sJ, sA, sB, sC, sD, sE, sRb = 52, 53, 54, 55, 56, 57, 58, 59, 60
    vL, vt0, vt1, vt2, vt3, vGs, vWm, vWx, vG, vTr = 1, 2, 3, 4, 5, 6, 7, 8, 9, 10
    ACC, W2, OB, AR = 12, 32, 48, 120
    a("s_cmp_ge_u32 s2, 256\ns_cbranch_scc1 k3_end")
    stamp(a, 0)
    a("s_load_dwordx4 s[16:19], s[0:1], 8\ns_load_dwordx2 s[20:21], s[0:1], 72\ns_load_dwordx2 s[22:23], s[0:1], 88\ns_load_dwordx2 s[24:25], s[0:1], 104")
    code_prefetch(a, vt0, 11, "k3_code_end", "k3_pf")
    a(f"""v_lshrrev_b32 v{vt0}, 6, v0
    v_and_b32 v{vL}, 63, v0
    v_readfirstlane_b32 s{sV}, v{vt0}
    s_bfe_u32 s{sA}, s2, 0x20003
    s_and_b32 s{sT1}, s2, 7
    s_lshl_b32 s{sA}, s{sA}, 3
    s_add_u32 s{sT1}, s{sT1}, s{sA}
    s_lshr_b32 s{sJ}, s2, 5""")
    a(f"""v_and_b32 v{vt0}, 24, v{vL}
    v_lshrrev_b32 v{vt1}, 5, v{vL}
    v_lshl_add_u32 v{vt0}, v{vt1}, 2, v{vt0}
    v_bfe_u32 v{vt1}, v{vL}, 1, 2
    v_add_u32 v{vt0}, v{vt0}, v{vt1}
    v_and_b32 v{vt1}, 1, v{vL}
    v_lshlrev_b32 v{vt1}, 4, v{vt1}
    s_movk_i32 s{sA}, {GP}
    v_mad_u32_u24 v{vGs}, v{vt0}, s{sA}, v{vt1}
    v_lshrrev_b32 v{vt2}, 4, v{vt0}
    v_lshl_add_u32 v{vt2}, v{vt2}, 1, v{vt0}
    s_movk_i32 s{sA}, 1152
    v_mad_u32_u24 v{vWm}, v{vt2}, s{sA}, v{vt1}
    v_lshrrev_b32 v{vt2}, 1, v{vt0}
    v_lshl_add_u32 v{vt2}, v{vt2}, 4, v{vt0}
    v_add_u32 v{vt2}, 16, v{vt2}
    v_mad_u32_u24 v{vWx}, v{vt2}, s{sA}, v{vt1}
    s_lshr_b32 s{sRb}, s{sV}, 1
    s_lshl_b32 s{sRb}, s{sRb}, 5
    s_add_u32 s{sRb}, s{sRb}, s{sT1}
    s_mul_i32 s{sE}, s{sJ}, 144
    s_waitcnt lgkmcnt(0)""")
    srd(a, sWS, 24, WS_SIZE); srd(a, sWo, 20, 576*1152)
    def dma5(v, r, soff):
        for mu in range(5):
            a(f"s_mov_b32 m0, s{sD}\ns_nop 0" if mu == 0 else "s_add_u32 m0, m0, 992\ns_nop 0")
            a.vmem(f"buffer_load_dwordx4 v{v}, s[{r}:{r+3}], s{soff} offen offset:{32*mu} lds", "a")
    a(f"""s_mul_i32 s{sA}, s{sT1}, {128*GP}
    s_mul_i32 s{sB}, s{sV}, {32*GP}
    s_add_u32 s{sA}, s{sA}, s{sB}
    s_add_u32 s{sA}, s{sA}, {GT}
    s_add_u32 s{sA}, s{sA}, s{sE}
    s_mul_i32 s{sD}, s{sV}, 5120""")
    dma5(vGs, sWS, sA)
    srd(a, sRe, 16, 2048*4096); srd(a, sIm, 18, 2048*4096)
    a(f"""v_and_b32 v{vt0}, 15, v{vL}
    s_and_b32 s{sA}, s{sV}, 1
    s_lshl_b32 s{sA}, s{sA}, 4
    v_add_u32 v{vt0}, s{sA}, v{vt0}
    v_lshlrev_b32 v{vt1}, 18, v{vt0}
    v_lshrrev_b32 v{vt2}, 4, v{vL}
    v_lshl_add_u32 v{vt1}, v{vt2}, 4, v{vt1}
    s_lshl_b32 s{sA}, s{sRb}, 12
    v_lshlrev_b32 v{vt0}, 2, v{vt0}
    s_lshl_b32 s{sB}, s{sRb}, 7
    s_add_u32 s{sB}, s{sB}, {GG}""")
    for k in range(4):
        r = sRe if k < 2 else sIm
        a.vmem(f"buffer_load_dwordx4 v[{W2+4*k}:{W2+4*k+3}], v{vt1}, s[{r}:{r+3}], s{sA} offen offset:{64*(k&1)}", "a")
    a.vmem(f"buffer_load_dword v{vG}, v{vt0}, s[{sWS}:{sWS+3}], s{sB} offen", "a")
    a(f"s_mul_i32 s{sA}, s{sV}, {36*1152}\ns_add_u32 s{sA}, s{sA}, s{sE}")
    for i in range(4):
        a(f"s_add_u32 s{sD}, s{sD}, 20480")
        dma5(vWm, sWo, sA)
        a(f"s_add_u32 s{sA}, s{sA}, {4*36*1152}")
    a(f"s_cmp_ge_u32 s{sV}, 2\ns_cbranch_scc1 k3_nox")
    a(f"s_mul_i32 s{sA}, s{sV}, {288*1152}\ns_add_u32 s{sA}, s{sA}, s{sE}\ns_add_u32 s{sD}, s{sD}, 20480")
    dma5(vWx, sWo, sA)
    a.label("k3_nox")
    a(f"""s_lshl_b32 s{sA}, s{sT1}, 2
    s_add_u32 s{sA}, s{sA}, s{sV}
    s_mul_i32 s{sA}, s{sA}, 18432
    s_add_u32 s{sA}, s{sA}, {OF}
    v_lshlrev_b32 v{vt0}, 4, v{vL}
    v_lshlrev_b32 v{vTr}, 3, v{vL}""")
    for ks in range(18):
        a(f"buffer_load_dwordx4 v[{OB+4*ks}:{OB+4*ks+3}], v{vt0}, s[{sWS}:{sWS+3}], s{sA} offen offset:{(ks&3)*1024}")
        if ks & 3 == 3: a(f"s_add_u32 s{sA}, s{sA}, 4096")
    srd(a, sOut, 22, 2048*1152)
    stamp(a, 1)
    a("s_waitcnt vmcnt(0)\ns_barrier")
    stamp(a, 2)
    NR = 7
    base = [0]
    def rd(f):
        if f - base[0] >= 64:
            a(f"v_add_u32 v{vTr}, 65536, v{vTr}"); base[0] += 64
        r = AR + 4 * (f % 8)
        a(f"ds_read_b64_tr_b16 v[{r}:{r+1}], v{vTr} offset:{(f-base[0])*1024}")
        a(f"ds_read_b64_tr_b16 v[{r+2}:{r+3}], v{vTr} offset:{(f-base[0])*1024+512}")
    for f in range(NR): rd(f)
    for f in range(110):
        ks, mu = divmod(f, 5)
        if f == 20:
            a("s_nop 3")
            for r in range(20): a(f"v_mul_f32 v{ACC+r}, v{ACC+r}, v{vG}")
        n = min(110, f + NR) - f - 1
        a(f"s_waitcnt lgkmcnt({2*n})")
        r = AR + 4 * (f % 8)
        B = W2 + 4*ks if ks < 4 else OB + 4*(ks-4)
        ac = ACC + 4*mu
        a(f"v_mfma_f32_16x16x32_bf16 v[{ac}:{ac+3}], v[{r}:{r+3}], v[{B}:{B+3}], " + ("0" if ks == 0 else f"v[{ac}:{ac+3}]"))
        if f + NR < 110: rd(f + NR)
    stamp(a, 3)
    a(f"""s_mul_i32 s{sA}, s{sV}, 2304
    s_add_u32 s{sA}, s{sA}, 112640
    v_and_b32 v{vt1}, 15, v{vL}
    v_mul_u32_u24 v{vt1}, 144, v{vt1}
    v_lshrrev_b32 v{vt2}, 4, v{vL}
    v_lshl_add_u32 v{vt1}, v{vt2}, 3, v{vt1}
    v_add_u32 v{vt1}, s{sA}, v{vt1}
    v_add_u32 v{vt0}, s{sA}, v{vt0}""")
    for mu in range(5):
        ac = ACC + 4*mu
        a(f"v_cvt_pk_bf16_f32 v{W2+2*mu}, v{ac}, v{ac+1}\nv_cvt_pk_bf16_f32 v{W2+2*mu+1}, v{ac+2}, v{ac+3}")
        if mu == 4: a("s_mov_b32 exec_hi, 0")
        a(f"ds_write_b64 v{vt1}, v[{W2+2*mu}:{W2+2*mu+1}] offset:{32*mu}")
    a(f"""s_mov_b32 exec_hi, -1
    s_and_b32 s{sA}, s{sV}, 1
    s_mul_i32 s{sA}, s{sA}, {16*73728}
    s_mul_i32 s{sB}, s{sRb}, 1152
    s_add_u32 s{sA}, s{sA}, s{sB}
    s_add_u32 s{sA}, s{sA}, s{sE}
    s_mov_b32 s{sB}, {73728-144}
    s_waitcnt lgkmcnt(0)""")
    for it in range(3):
        a(f"ds_read_b128 v[{OB+4*it}:{OB+4*it+3}], v{vt0} offset:{1024*it}")
    for it in range(3):
        a(f"""v_add_u32 v{vt1}, {64*it}, v{vL}
        v_mul_u32_u24 v{vt2}, 7282, v{vt1}
        v_lshrrev_b32 v{vt2}, 16, v{vt2}
        v_lshlrev_b32 v{vt1}, 4, v{vt1}
        v_mad_u32_u24 v{vGs+it}, v{vt2}, s{sB}, v{vt1}""")
    for it in range(3):
        a(f"s_waitcnt lgkmcnt({2-it})")
        if it == 2: a("s_mov_b64 exec, 0xffff")
        a(f"buffer_store_dwordx4 v[{OB+4*it}:{OB+4*it+3}], v{vGs+it}, s[{sOut}:{sOut+3}], s{sA} offen")
    stamp_end(a, 2, sWS, sV)
    a.label("k3_end")
    a("s_endpgm")
    a.label("k3_code_end")
    return a

def wave_max(a, v, s):
    for d in ("row_shr:1", "row_shr:2", "row_shr:4", "row_shr:8"):
        a("s_nop 1")
        a(f"v_max_f32_dpp v{v}, v{v}, v{v} {d} row_mask:0xf bank_mask:0xf")
    a("s_nop 1")
    a(f"v_max_f32_dpp v{v}, v{v}, v{v} row_bcast:15 row_mask:0xa bank_mask:0xf")
    a("s_nop 1")
    a(f"v_max_f32_dpp v{v}, v{v}, v{v} row_bcast:31 row_mask:0xc bank_mask:0xf")
    a("s_nop 0")
    a(f"v_readlane_b32 s{s}, v{v}, 63")
    a("s_nop 1")

def kd(name, vgpr, sgpr=102):
    return f""".p2align 6
.amdhsa_kernel {name}
  .amdhsa_next_free_vgpr {vgpr}
  .amdhsa_next_free_sgpr {sgpr}
  .amdhsa_accum_offset {(vgpr+3)//4*4}
  .amdhsa_group_segment_fixed_size 0
  .amdhsa_kernarg_size 112
  .amdhsa_user_sgpr_count 2
  .amdhsa_user_sgpr_kernarg_segment_ptr 1
  .amdhsa_system_sgpr_workgroup_id_x 1
.end_amdhsa_kernel
"""

def build(kernels):
    out = []
    for lab, a, g, b, lds, v in kernels:
        out.append(f"; @launch kernel={lab} grid=({g},1,1) block=({b},1,1) lds={lds}")
    out.append('.amdgcn_target "amdgcn-amd-amdhsa--gfx950"\n.text')
    for lab, a, g, b, lds, v in kernels:
        for p in check(a.lines): print(f"[{lab}] {p}", file=sys.stderr)
        out.append(f".globl {lab}\n.p2align 8\n.type {lab},@function\n{lab}:")
        out.append(a.text())
    out.append(".p2align 8\n.type rf_table,@object\nrf_table:")
    w = rf_table()
    for i in range(0, len(w), 8): out.append(".long " + ",".join(f"0x{x:08x}" for x in w[i:i+8]))
    out.append(".size rf_table, 4096")
    out.append('.section .rodata,"a"')
    for lab, a, g, b, lds, v in kernels: out.append(kd(lab, v))
    return "\n".join(out) + "\n"

def default_list():
    return [("k1_kernel", gen_k1(), 256, 384, K1_LDS, 96), ("k2_kernel", gen_k2(), 256, 768, K2_LDS, 112), ("k3_kernel", gen_k3(), 256, 256, K3_LDS, 152)]

if __name__ == "__main__":
    if len(sys.argv) > 2 and sys.argv[2] == "stamp": STAMP = True
    EXP.update(sys.argv[3:])
    ks = default_list()
    open(sys.argv[1] if len(sys.argv) > 1 else "out.s", "w").write(build(ks))
```

```python
import math, sys
import gen as G0
from gen import Asm, check, srd, f2u, bf16, CQ, GP, TILE, wave_max, load_rf, rf_table, kd
EP = 0x0
FL0, FL1, FL2, FL3 = 0x8000, 0x10000, 0x20000, 0x30000
KMG = 0x40000
GG = 0x41000
KVG = 0x50000
OF = 0x100000
GT = 0x340000
XF = 0x800000
DF = 0x1100000
ST = 0x1200000
WS_SIZE = 0x1300000
G0.GT = GT; G0.ST = ST
OFFS, LMIN = 80.0, 2.0**-100
LX, LD, LW, LGATE, FLG = 0, 73728, 110592, 156672, 159744
F_KV, F_PRG, F_S1F, F_S1, F_CNT2, F_CNT3, F_TA, F_S2, F_S0, F_DUTY, F_KC, F_LD, F_G = FLG, FLG+16, FLG+48, FLG+52, FLG+56, FLG+60, FLG+64, FLG+80, FLG+84, FLG+88, FLG+92, FLG+96, FLG+256
J1 = 20
def ltile(j): return LW + TILE*j if j < J1 else TILE*(j - J1)
PRIO = {0: 2, 32: 1, 60: 0}
SPIN = 400000
QF = 7
EXP = set()
def stamp(a, s, g="A"):
    if s == 0 or g in EXP or (g == "A" and not EXP & {"P", "H"}): G0.stamp(a, s)

sWS, sRA, sRB, sRC, sRD = 8, 12, 40, 44, 48
sNon, sWave, sT1, sJ = 54, 56, 57, 58
sA, sB, sC, sD, sE, sF, sG, sH = 59, 60, 61, 62, 63, 64, 65, 66
sHi = 68
sRot = 67
vL = 1

_n = [0]
def stamp12(a, slot):
    if not G0.STAMP or EXP & {'P', 'H'}: return
    _n[0] += 1
    a(f"s_sub_u32 s3, s{sWave}, 1\ns_cmp_ge_u32 s3, 2\ns_cbranch_scc1 f_st{_n[0]}")
    stamp(a, slot)
    a.label(f"f_st{_n[0]}")

def lds_wait(a, lab, vaddr, vt, val, sleep=0):
    if sleep:
        a(f"s_branch {lab}")
        a.label(lab + "_z")
        a(f"s_sleep {sleep}")
    a.label(lab)
    a(f"ds_read_b32 v{vt}, v{vaddr}\ns_waitcnt lgkmcnt(0)\nv_cmp_gt_i32 vcc, {val}, v{vt}\ns_cbranch_vccnz {lab + ('_z' if sleep else '')}")

def tag_wait(a, lab, vaddr, soff, n, vt, step=1024, sleep=2):
    a(f"s_mov_b32 s{sH}, 0")
    a.label(lab)
    for i in range(n): a(f"buffer_load_dwordx2 v[{vt+2*i}:{vt+2*i+1}], v{vaddr}, s[{sWS}:{sWS+3}], s{soff} offen offset:{i*step} sc1")
    a(f"s_add_u32 s{sH}, s{sH}, 1\ns_waitcnt vmcnt(0) lgkmcnt(0)")
    for i in range(n):
        a(f"v_cmp_ne_u64 {'vcc' if i == 0 else 's[6:7]'}, s[{sNon}:{sNon+1}], v[{vt+2*i}:{vt+2*i+1}]")
        if i: a("s_nop 0\ns_or_b64 vcc, vcc, s[6:7]")
    a(f"s_cbranch_vccz {lab}_ok\ns_cmp_ge_u32 s{sH}, {SPIN}\ns_cbranch_scc1 {lab}_ok\ns_sleep {sleep}\ns_branch {lab}")
    a.label(lab + "_ok")
    a.vm = []

def tag_signal(a, area, nrep, v0, v1):
    a(f"""s_lshl_b32 s{sG}, s{sT1}, 7
    s_lshl_b32 s{sH}, s{sJ}, 3
    s_add_u32 s{sG}, s{sG}, s{sH}
    s_add_u32 s{sG}, s{sG}, {area}
    v_lshlrev_b32 v{v0}, 12, v{vL}
    v_mov_b32 v{v1}, s{sNon}
    v_mov_b32 v{v1+1}, s{sNon+1}
    s_mov_b64 exec, {(1 << nrep) - 1}
    buffer_store_dwordx2 v[{v1}:{v1+1}], v{v0}, s[{sWS}:{sWS+3}], s{sG} offen sc1
    s_mov_b64 exec, -1""")

def last_wave_signals(a, lab, cnt, total, area, nrep, v0, v1):
    a(f"""s_waitcnt vmcnt(0)
    v_mov_b32 v{v0}, {cnt}
    v_mov_b32 v{v1}, 1
    s_mov_b64 exec, 1
    ds_add_rtn_u32 v{v1}, v{v0}, v{v1}
    s_waitcnt lgkmcnt(0)
    v_readfirstlane_b32 s{sG}, v{v1}
    s_mov_b64 exec, -1
    s_cmp_lg_u32 s{sG}, {total-1}
    s_cbranch_scc1 {lab}""")
    tag_signal(a, area, nrep, v0, v1)
    a.label(lab)
    a.vm = []

def xsrc(a, dst, t0, t1):
    a(f"""v_lshrrev_b32 v{t0}, 4, v{vL}
    v_xor_b32 v{t0}, v{t0}, v{vL}
    v_and_b32 v{t0}, 3, v{t0}
    v_lshlrev_b32 v{t0}, 4, v{t0}
    v_lshrrev_b32 v{t1}, 2, v{vL}
    s_mov_b32 s3, 73728
    v_mad_u32_u24 v{dst}, v{t1}, s3, v{t0}""")
def xread(a, r0, r1, t0, t1):
    a(f"""v_lshrrev_b32 v{t0}, 5, v{vL}
    v_lshrrev_b32 v{t1}, 2, v{vL}
    v_xor_b32 v{t0}, v{t0}, v{t1}
    v_and_b32 v{t0}, 3, v{t0}
    v_and_b32 v{t1}, 31, v{vL}
    v_lshlrev_b32 v{t1}, 6, v{t1}
    v_lshl_add_u32 v{r0}, v{t0}, 4, v{t1}""")
def dense_pos(a, sph, pos, c16, t):
    a(f"""s_lshl_b32 s3, s{sph}, 6
    v_add_u32 v{c16}, s3, v{vL}
    v_mul_u32_u24 v{pos}, 7282, v{c16}
    v_lshrrev_b32 v{pos}, 16, v{pos}
    v_mul_u32_u24 v{t}, 9, v{pos}
    v_sub_u32 v{c16}, v{c16}, v{t}
    v_lshlrev_b32 v{c16}, 4, v{c16}""")

def dft_ptr(a, vP, sg, t1, t2, t3):
    a(f"""v_and_b32 v{t1}, 3, v{vL}
    v_bfe_u32 v{t2}, v{vL}, 2, 1
    v_lshl_add_u32 v{t1}, v{t2}, 3, v{t1}
    v_bfe_u32 v{t2}, v{vL}, 3, 1
    v_lshl_add_u32 v{t1}, v{t2}, 2, v{t1}
    s_lshl_b32 s3, s{sg}, 4
    v_add_u32 v{t1}, s3, v{t1}
    s_cmp_eq_u32 s{sg}, 0
    s_cselect_b32 s6, 0x10000, 0
    s_mov_b32 s7, s6
    v_mov_b32 v{t2}, 288
    v_cndmask_b32 v{t1}, v{t1}, v{t2}, s[6:7]
    v_mul_u32_u24 v{t1}, 1152, v{t1}
    v_lshrrev_b32 v{t2}, 5, v{vL}
    v_lshl_add_u32 v{t1}, v{t2}, 4, v{t1}
    s_or_b32 s6, s6, 0xffff
    s_mov_b32 s7, s6
    v_mov_b32 v{vP}, s24
    v_mov_b32 v{vP+1}, s25
    v_mov_b32 v{t2}, s22
    v_mov_b32 v{t3}, s23
    v_cndmask_b32 v{vP}, v{vP}, v{t2}, s[6:7]
    v_cndmask_b32 v{vP+1}, v{vP+1}, v{t3}, s[6:7]
    v_add_co_u32 v{vP}, vcc, v{vP}, v{t1}
    s_nop 1
    v_addc_co_u32 v{vP+1}, vcc, 0, v{vP+1}, vcc""")

def gen():
    a = Asm()
    a.label("f_code")
    a("s_cmp_ge_u32 s2, 256\ns_cbranch_scc1 f_end")
    stamp(a, 0)
    a("s_load_dwordx2 s[52:53], s[0:1], 104\ns_load_dwordx16 s[16:31], s[0:1], 0\ns_load_dwordx8 s[32:39], s[0:1], 64")
    a(f"""v_lshrrev_b32 v2, 6, v0
    v_and_b32 v{vL}, 63, v0
    v_readfirstlane_b32 s{sWave}, v2
    s_bfe_u32 s3, s2, 0x20003
    s_lshr_b32 s{sRot}, s2, 6
    s_add_u32 s{sRot}, s{sRot}, s3
    s_and_b32 s{sRot}, s{sRot}, 3
    s_lshl_b32 s{sRot}, s{sRot}, 1
    s_and_b32 s{sT1}, s2, 7
    s_lshl_b32 s3, s3, 3
    s_add_u32 s{sT1}, s{sT1}, s3
    s_lshr_b32 s{sJ}, s2, 5
    s_mov_b32 s{sHi}, 0
    s_mov_b32 s{sHi+1}, -1
    s_cmp_ge_u32 s{sWave}, 4
    s_cbranch_scc1 f_att
    s_setprio 3
    s_cmp_eq_u32 s{sWave}, 0
    s_cbranch_scc1 f_duty""")
    def common_srd():
        a("s_waitcnt lgkmcnt(0)")
        a(f"s_load_dwordx2 s[{sNon}:{sNon+1}], s[52:53], {EP}")
        srd(a, sWS, 52, WS_SIZE)
    def nonce():
        a(f"s_add_u32 s{sNon}, s{sNon}, 1")
    t0, t1, t2, t3 = 8, 9, 10, 11
    vF = 4
    vXs, vDs, vW = 2, 3, 12
    sG_, sXo, sDa, sDb, sDs, sM, sXp = 70, 71, 72, 73, 74, 75, 76
    a("s_barrier")
    a(f"s_sub_u32 s{sG_}, s{sWave}, 1")
    for i in range(3):
        a(f"s_mul_i32 s{sC}, s{sG_}, 3\ns_add_u32 s{sC}, s{sC}, {i}")
        dense_pos(a, sC, t1, t0, t2)
        a(f"""v_and_b32 v{t2}, 3, v{t1}
        v_bfe_u32 v{t3}, v{t1}, 2, 2
        v_and_b32 v{t1}, 48, v{t1}
        v_lshl_add_u32 v{t1}, v{t2}, 2, v{t1}
        v_add_u32 v{t1}, v{t1}, v{t3}
        s_movk_i32 s3, 1152
        v_mad_u32_u24 v{vW+i}, v{t1}, s3, v{t0}""")
    a(f"s_lshl_b32 s3, s{sG_}, 2\ns_add_u32 s3, s3, {F_LD}\nv_mov_b32 v{vF}, s3\nv_mov_b32 v6, -1")
    xsrc(a, vXs, t0, t1)
    a(f"""    s_and_b32 s{sA}, s{sJ}, 1
    s_mul_i32 s{sM}, s{sA}, 36864
    s_lshl_b32 s{sA}, s{sA}, 5
    s_add_u32 s{sA}, s{sA}, s{sT1}
    s_mul_i32 s{sXo}, s{sA}, 1152
    s_cmp_ge_u32 s{sJ}, 4
    s_cbranch_scc1 f_lF
    v_and_b32 v{t2}, 3, v{vL}
    v_mul_u32_u24 v{vDs}, 36, v{t1}
    v_lshl_add_u32 v{vDs}, v{t2}, 4, v{vDs}
    s_mov_b32 s{sDa}, 0
    s_movk_i32 s{sDb}, 576
    s_movk_i32 s{sDs}, 1152
    s_cmp_lt_u32 s{sJ}, 2
    s_waitcnt lgkmcnt(0)
    s_cselect_b32 s{sRB}, s30, s32
    s_cselect_b32 s{sRB+1}, s31, s33
    s_mov_b32 s{sRB+2}, {576*36}
    s_mov_b32 s{sRB+3}, 0x20000
    s_mov_b64 s[{sRC}:{sRC+1}], s[{sRB}:{sRB+1}]
    s_mov_b32 s{sRC+2}, {576*36}
    s_mov_b32 s{sRC+3}, 0x20000
    s_branch f_lI""")
    a.label("f_lF")
    a(f"""v_and_b32 v{t2}, 3, v{t1}
    v_bfe_u32 v{t3}, v{t1}, 2, 1
    v_lshl_add_u32 v{t2}, v{t3}, 3, v{t2}
    v_bfe_u32 v{t3}, v{t1}, 3, 1
    v_lshl_add_u32 v{t2}, v{t3}, 2, v{t2}
    s_movk_i32 s3, 1152
    v_mad_u32_u24 v{vDs}, v{t2}, s3, v{t0}
    s_bfe_u32 s3, s{sJ}, 0x10001
    s_add_u32 s3, s3, 16
    s_mul_i32 s{sDa}, s3, {16*1152}
    s_mov_b32 s{sDb}, s{sDa}
    s_movk_i32 s{sDs}, 64
    s_waitcnt lgkmcnt(0)""")
    srd(a, sRB, 22, 576*1152); srd(a, sRC, 24, 576*1152)
    a.label("f_lI")
    srd(a, sRA, 16, 2048*1152)
    stamp(a, 1, "P")
    a(f"s_mov_b32 s{sB}, s{sG_}")
    a.label("f_lL")
    a(f"""s_lshl_b32 s{sC}, s{sRot}, 1
    s_add_u32 s{sC}, s{sC}, s{sB}
    s_cmp_ge_u32 s{sC}, 18
    s_cselect_b32 s3, 18, 0
    s_sub_u32 s{sC}, s{sC}, s3
    s_lshl_b32 s{sD}, s{sB}, 11
    s_add_u32 m0, s{sD}, s{sM}
    s_lshl_b32 s3, s{sC}, 6
    s_add_u32 s3, s3, s{sXo}
    buffer_load_dwordx4 v{vXs}, s[{sRA}:{sRA+3}], s3 offen lds
    s_add_u32 m0, m0, 1024
    s_add_u32 s3, s3, 1179648
    buffer_load_dwordx4 v{vXs}, s[{sRA}:{sRA+3}], s3 offen lds
    s_add_u32 m0, s{sD}, {LD}
    s_mul_i32 s{sC}, s{sC}, s{sDs}
    s_add_u32 s3, s{sC}, s{sDa}
    buffer_load_dwordx4 v{vDs}, s[{sRB}:{sRB+3}], s3 offen lds
    s_add_u32 m0, m0, 1024
    s_add_u32 s3, s{sC}, s{sDb}
    buffer_load_dwordx4 v{vDs}, s[{sRC}:{sRC+3}], s3 offen lds
    s_add_u32 s{sB}, s{sB}, 3
    s_waitcnt vmcnt(8)
    ds_write_b32 v{vF}, v6
    v_add_u32 v6, 1, v6
    s_cmp_lt_u32 s{sB}, 18
    s_cbranch_scc1 f_lL""")
    a.vm_note("d4", 4); a.vm_note("d5", 4)
    stamp(a, 2, "P")
    a(f"s_load_dwordx2 s[{sNon}:{sNon+1}], s[52:53], {EP}")
    srd(a, sWS, 52, WS_SIZE); srd(a, sRB, 28, 576*1152)
    a(f"""v_mov_b32 v5, {F_DUTY}
    s_mul_i32 s{sE}, s{sJ}, 144
    s_mul_i32 s{sF}, s{sG_}, 3072
    s_and_b32 s{sA}, s{sJ}, 1
    s_xor_b32 s{sA}, s{sA}, 1
    s_mul_i32 s{sM}, s{sA}, 36864
    s_lshl_b32 s3, s{sG_}, 10
    s_add_u32 s{sM}, s{sM}, s3
    s_lshl_b32 s{sA}, s{sA}, 5
    s_add_u32 s{sA}, s{sA}, s{sT1}
    s_mul_i32 s{sXp}, s{sA}, 1152
    s_mul_i32 s3, s{sG_}, 1179648
    s_add_u32 s{sXp}, s{sXp}, s3""")
    def ldflag(tag, val):
        a(f"v_mov_b32 v{t1}, {val}")
        a.vm_wait(tag)
        a(f"ds_write_b32 v{vF}, v{t1}")
    def chunk(c, withx):
        base = LW + 9216*c if c < 5 else LD + 9216*(c-5)
        a(f"""s_add_u32 s{sC}, s{sRot}, {c}
        s_cmp_ge_u32 s{sC}, 9
        s_cselect_b32 s3, 9, 0
        s_sub_u32 s{sC}, s{sC}, s3""")
        if withx:
            a(f"s_add_u32 m0, s{sM}, {4096*c}\ns_lshl_b32 s3, s{sC}, 7\ns_add_u32 s3, s3, s{sXp}")
            a.vmem(f"buffer_load_dwordx4 v{vXs}, s[{sRA}:{sRA+3}], s3 offen lds", f"c{c}")
            a("s_add_u32 m0, m0, 1984\ns_nop 0")
            a.vmem(f"buffer_load_dwordx4 v{vXs}, s[{sRA}:{sRA+3}], s3 offen offset:64 lds", f"c{c}")
        a(f"s_add_u32 m0, s{sF}, {base}\ns_mul_i32 s3, s{sC}, 73728\ns_add_u32 s3, s3, s{sE}")
        for i in range(3):
            if i: a("s_add_u32 m0, m0, 1024\ns_nop 0")
            a.vmem(f"buffer_load_dwordx4 v{vW+i}, s[{sRB}:{sRB+3}], s3 offen lds", f"c{c}")
    def chunks(withx, lab):
        chunk(0, withx)
        ldflag("d4", 5); ldflag("d5", 6)
        chunk(1, withx)
        for c in range(2, 9):
            if c == 5: lds_wait(a, lab, 5, t1, 1)
            chunk(c, withx)
            ldflag(f"c{c-2}", QF + c - 2)
        stamp(a, 3, "P")
        ldflag("c7", QF + 7); ldflag("c8", QF + 8)
        stamp(a, 4, "P")
    vml = list(a.vm)
    a(f"s_cmp_eq_u32 s{sWave}, 3\ns_cbranch_scc1 f_l3")
    chunks(True, "f_l1w")
    a("s_waitcnt lgkmcnt(0)")
    nonce()
    a("s_branch f_kv0")
    a.label("f_l3")
    a.vm = list(vml)
    srd(a, sRC, 36, 1152)
    for i in range(2):
        a(f"""s_lshl_b32 s3, s{sRot}, 7
        s_add_u32 s3, s3, {1024*i}
        v_lshlrev_b32 v{t1}, 4, v{vL}
        v_add_u32 v{t1}, s3, v{t1}
        v_subrev_u32 v{t2}, 1152, v{t1}
        v_min_u32 v{t1}, v{t1}, v{t2}
        s_mov_b32 m0, {LGATE + 1024*i}
        s_nop 0""")
        a.vmem(f"buffer_load_dwordx4 v{t1}, s[{sRC}:{sRC+3}], 0 offen lds", "c0")
    chunks(False, "f_l3w")
    FR = 32
    a("s_waitcnt lgkmcnt(0)")
    nonce()
    a("s_branch f_kv0")

    a.label("f_duty")
    a.vm = []
    vR0, vR1, vD0, vD1 = 2, 3, 6, 7
    ACC, R = 16, 80
    sRb, sGrp = 70, 76
    a(f"""v_lshlrev_b32 v{t0}, 2, v{vL}
    v_add_u32 v{t0}, {FLG}, v{t0}
    v_mov_b32 v{t1}, 0
    ds_write_b32 v{t0}, v{t1}""")
    xread(a, vR0, vR1, t2, t3)
    common_srd()
    a("s_barrier")
    a(f"""s_and_b32 s{sA}, s{sJ}, 1
    s_lshl_b32 s{sRb}, s{sA}, 5
    s_add_u32 s{sRb}, s{sRb}, s{sT1}
    s_mul_i32 s{sA}, s{sA}, 36864
    v_add_u32 v{vD0}, {LD}, v{vR0}
    v_xor_b32 v{vD1}, 32, v{vD0}
    v_add_u32 v{vR0}, s{sA}, v{vR0}
    v_xor_b32 v{vR1}, 32, v{vR0}
    v_and_b32 v{vF}, 3, v{vL}
    v_min_u32 v{vF}, 2, v{vF}
    v_lshlrev_b32 v{vF}, 2, v{vF}
    v_add_u32 v{vF}, {F_LD}, v{vF}
    s_cmp_ge_u32 s{sJ}, 4
    s_cbranch_scc1 f_cF
    v_and_b32 v{t2}, 3, v{vL}
    v_and_b32 v{t0}, 1, v{vL}
    v_bfe_u32 v{t3}, v{vL}, 1, 1
    v_lshl_or_b32 v{t0}, v{t0}, 1, v{t3}
    v_bfe_u32 v{t3}, v{vL}, 4, 1
    v_cmp_eq_u32 vcc, 0, v{t3}
    v_bfe_u32 v{vD0}, v{vL}, 2, 2
    v_lshrrev_b32 v{vD1}, 5, v{vL}
    v_cndmask_b32 v{t0}, v{t2}, v{t0}, vcc
    v_lshl_add_u32 v{vD0}, v{vD1}, 3, v{vD0}
    v_lshlrev_b32 v{vD0}, 6, v{vD0}
    v_lshl_add_u32 v{vD0}, v{t3}, 5, v{vD0}
    v_lshl_add_u32 v{vD0}, v{t0}, 3, v{vD0}
    v_add_u32 v{vD0}, {LD}, v{vD0}
    s_cmp_ge_u32 s{sJ}, 2
    s_cbranch_scc1 f_cV""")
    def duty_chain(kind):
        def reads(s):
            b = FR + 16*(s & 1)
            for p in range(2):
                a(f"ds_read_b128 v[{b+8*p}:{b+8*p+3}], v{vR1 if p else vR0} offset:{2048*s}")
                if kind == "F": a(f"ds_read_b128 v[{b+8*p+4}:{b+8*p+7}], v{vD1 if p else vD0} offset:{2048*s}")
                elif kind == "G": a(f"ds_read_b128 v[{b+8*p+4}:{b+8*p+7}], v{vD0} offset:{64*s+32*p}")
                else:
                    a(f"ds_read_b64_tr_b16 v[{b+8*p+4}:{b+8*p+5}], v{vD0} offset:{2048*s+1024*p}")
                    a(f"ds_read_b64_tr_b16 v[{b+8*p+6}:{b+8*p+7}], v{vD0} offset:{2048*s+1024*p+256}")
        n = 2 if kind in "FG" else 3
        for s in range(18):
            if s % 3 == 0:
                if kind != "G": lds_wait(a, f"f_d{kind}{s}", vF, t0, 1 + s//3)
                if s == 0 and kind != "G": stamp(a, 1, "P")
                if s == 0 or kind != "G": reads(s)
            more = s + 1 < 18 and (kind == "G" or (s + 1) % 3)
            if more: reads(s + 1)
            b = FR + 16*(s & 1)
            for p in range(2):
                a(f"s_waitcnt lgkmcnt({(2*n if more else 0) + (n if p == 0 else 0)})")
                X, D = b + 8*p, b + 8*p + 4
                A, B = (D, X) if kind in "KG" else (X, D)
                a(f"v_mfma_f32_32x32x16_bf16 v[{ACC}:{ACC+15}], v[{A}:{A+3}], v[{B}:{B+3}], " + ("0" if s + p == 0 else f"v[{ACC}:{ACC+15}]"))
        if kind != "G":
            a(f"v_mov_b32 v{t0}, {F_DUTY}\nv_mov_b32 v{t1}, 1\nds_write_b32 v{t0}, v{t1}")
            nonce()
            stamp(a, 2); stamp(a, 2, "P")
    def kv_off():
        a(f"""s_and_b32 s{sA}, s{sJ}, 1
        s_lshl_b32 s{sB}, s{sT1}, 1
        s_add_u32 s{sA}, s{sA}, s{sB}
        s_mul_i32 s{sF}, s{sA}, {TILE}
        s_add_u32 s{sF}, s{sF}, {KVG}
        s_add_u32 s{sE}, s{sF}, {64*TILE}""")
    duty_chain("K")
    kv_off()
    a(f"v_lshlrev_b32 v{t0}, 4, v{vL}\nv_lshlrev_b32 v{t1}, 2, v{vL}\ns_nop 0")
    for k in range(5): a(f"v_cvt_pk_bf16_f32 v{FR+k}, v{ACC+2*k}, v{ACC+2*k+1}")
    for s in (sF, sE): a(f"buffer_store_dwordx4 v[{FR}:{FR+3}], v{t0}, s[{sWS}:{sWS+3}], s{s} offen sc1")
    a(f"v_mul_f32 v{t3}, v{ACC}, v{ACC}")
    for r in range(1, 8): a(f"v_fmac_f32 v{t3}, v{ACC+r}, v{ACC+r}")
    a("s_mov_b32 exec_hi, 0")
    for s in (sF, sE): a(f"buffer_store_dword v{FR+4}, v{t1}, s[{sWS}:{sWS+3}], s{s} offen offset:1024 sc1")
    a(f"""v_fmac_f32 v{t3}, v{ACC+8}, v{ACC+8}
    v_fmac_f32 v{t3}, v{ACC+9}, v{ACC+9}
    s_mov_b64 exec, -1
    v_mov_b32 v{t0}, v{t3}
    s_nop 1
    v_permlane32_swap_b32 v{t0}, v{t3}
    v_add_f32 v{t3}, v{t0}, v{t3}""")
    wave_max(a, t3, sB)
    a(f"""v_mov_b32 v{t3}, s{sB}
    v_lshlrev_b32 v{t0}, 8, v{vL}
    s_lshl_b32 s{sA}, s{sA}, 2
    s_add_u32 s{sA}, s{sA}, {KMG}
    s_mov_b64 exec, 3
    buffer_store_dword v{t3}, v{t0}, s[{sWS}:{sWS+3}], s{sA} offen sc1
    s_mov_b64 exec, -1
    s_branch f_dP""")
    a.label("f_cV")
    duty_chain("V")
    kv_off()
    a(f"""v_and_b32 v{t0}, 31, v{vL}
    v_lshrrev_b32 v{t2}, 5, v{vL}
    v_mul_u32_u24 v{t1}, 19, v{t2}
    v_add_u32 v{t1}, v{t1}, v{t0}
    v_cmp_eq_u32 vcc, 19, v{vL}
    v_mov_b32 v{t3}, 38
    v_cmp_eq_u32 s[6:7], 18, v{t0}
    v_cndmask_b32 v{t1}, v{t1}, v{t3}, vcc
    v_lshlrev_b32 v{t1}, 4, v{t1}
    v_mov_b32 v{t3}, 0x3f803f80""")
    for k in range(8): a(f"v_cvt_pk_bf16_f32 v{FR+k}, v{ACC+2*k}, v{ACC+2*k+1}")
    for k in range(8):
        a(f"v_cndmask_b32 v{FR+k}, v{FR+k}, v{t3}, s[6:7]")
        a(f"v_cndmask_b32 v{FR+k}, v{FR+k}, 0, vcc")
    a("s_mov_b32 exec_lo, 0xfffff\ns_mov_b32 exec_hi, 0x7ffff")
    for s in (sF, sE):
        a(f"buffer_store_dwordx4 v[{FR}:{FR+3}], v{t1}, s[{sWS}:{sWS+3}], s{s} offen offset:1152 sc1")
        a(f"buffer_store_dwordx4 v[{FR+4}:{FR+7}], v{t1}, s[{sWS}:{sWS+3}], s{s} offen offset:{1152+624} sc1")
    a("s_mov_b64 exec, -1")
    a.label("f_dP")
    stamp(a, 3, "P")
    a("s_waitcnt vmcnt(0)")
    tag_signal(a, FL1, 8, t0, t2)
    stamp(a, 3); stamp(a, 4, "P")
    a("s_branch f_dS")
    a.label("f_cF")
    a(f"s_bfe_u32 s{sGrp}, s{sJ}, 0x10001\ns_add_u32 s{sGrp}, s{sGrp}, 16")
    load_rf(a, R, vL, t0, "f_rf0")
    duty_chain("F")
    a.vm_wait("rf")
    a("s_nop 6")
    G0.fnet_tail(a, ACC, FR, FR+16, R, FR+32, vL, sWS, sRb, sGrp, 76+1, None, sc="sc1")
    stamp(a, 3, "P")
    a(f"""s_cmp_ge_u32 s{sJ}, 6
    s_cbranch_scc1 f_dS
    v_lshrrev_b32 v{vD0}, 5, v{vL}
    v_lshlrev_b32 v{vD0}, 4, v{vD0}
    v_add_u32 v{vD0}, {LGATE}, v{vD0}""")
    lds_wait(a, "f_dGw", vF, t0, QF)
    duty_chain("G")
    a(f"""s_lshl_b32 s{sF}, s{sRb}, 7
    s_add_u32 s{sF}, s{sF}, {GG}
    v_lshlrev_b32 v{t1}, 2, v{vL}
    s_nop 8
    v_mul_f32 v{t3}, {f2u(-math.log2(math.e))}, v{ACC}
    v_exp_f32 v{t3}, v{t3}
    s_nop 0
    v_add_f32 v{t3}, 1.0, v{t3}
    v_rcp_f32 v{t3}, v{t3}
    s_mov_b32 exec_hi, 0
    buffer_store_dword v{t3}, v{t1}, s[{sWS}:{sWS+3}], s{sF} offen sc1
    s_mov_b32 exec_hi, -1""")
    stamp(a, 4, "P")
    a.label("f_dS")
    a(f"""v_bfe_u32 v{t1}, v{vL}, 2, 2
    v_add_u32 v{t1}, s{sT1}, v{t1}
    v_and_b32 v{t1}, 31, v{t1}
    v_lshlrev_b32 v{t1}, 7, v{t1}
    v_and_b32 v{t2}, 3, v{vL}
    v_lshl_add_u32 v{t1}, v{t2}, 3, v{t1}
    s_and_b32 s{sD}, s{sT1}, 7
    s_lshl_b32 s{sD}, s{sD}, 12
    s_add_u32 s{sD}, s{sD}, {FL1}""")
    tag_wait(a, "f_m2", t1, sD, 1, FR, sleep=2)
    vKM = 12
    a(f"""v_mov_b32 v{t1}, {F_S1F}
    v_mov_b32 v{t2}, 1
    ds_write_b32 v{t1}, v{t2}
    s_lshl_b32 s3, s{sT1}, 3
    s_add_u32 s3, s3, {KMG}
    v_and_b32 v{t2}, 7, v{vL}
    v_lshlrev_b32 v{t2}, 2, v{t2}
    buffer_load_dword v{vKM}, v{t2}, s[{sWS}:{sWS+3}], s3 offen sc1""")
    stamp(a, 5, "P")
    a.label("f_kv0")
    a.vm = []
    a(f"""v_and_b32 v{t1}, 15, v{vL}
    v_min_u32 v{t1}, 8, v{t1}
    v_lshlrev_b32 v{t1}, 2, v{t1}
    v_add_u32 v{t1}, {F_PRG}, v{t1}
    s_mul_i32 s{sA}, s{sT1}, {2*TILE}
    s_lshl_b32 s{sB}, s{sWave}, 12
    s_add_u32 m0, s{sB}, {LW}
    s_add_u32 s{sA}, s{sA}, s{sB}
    s_add_u32 s{sA}, s{sA}, {KVG}
    v_lshlrev_b32 v{t0}, 4, v{vL}""")
    lds_wait(a, "f_kv1", t1, t2, 1)
    for k in range(4): a(f"buffer_load_dwordx4 v{t0}, s[{sWS}:{sWS+3}], s{sA} offen offset:{1024*k} sc1 lds")
    a(f"""v_mov_b32 v{vF}, {F_S1}
    s_cmp_lg_u32 s{sWave}, 0
    s_cbranch_scc1 f_hd
    s_waitcnt vmcnt(4)""")
    wave_max(a, vKM, sC)
    a(f"""v_sqrt_f32 v{t3}, s{sC}
    v_mov_b32 v{t2}, {f2u(OFFS)}
    v_mov_b32 v{t1}, {F_KC}
    v_cvt_pk_bf16_f32 v{t3}, -v{t3}, v{t2}
    ds_write_b32 v{t1}, v{t3}
    v_lshrrev_b32 v{t1}, 2, v{vL}
    v_lshlrev_b32 v{t1}, 7, v{t1}
    v_and_b32 v{t2}, 3, v{vL}
    v_lshl_add_u32 v{t1}, v{t2}, 3, v{t1}
    buffer_load_dwordx2 v[{FR}:{FR+1}], v{t1}, s[{sWS}:{sWS+3}], s{sD} offen sc1
    buffer_load_dwordx2 v[{FR+2}:{FR+3}], v{t1}, s[{sWS}:{sWS+3}], s{sD} offen offset:2048 sc1
    v_mov_b32 v{t2}, 1
    s_waitcnt vmcnt(0)
    v_cmp_ne_u64 vcc, s[{sNon}:{sNon+1}], v[{FR}:{FR+1}]
    v_cmp_ne_u64 s[6:7], s[{sNon}:{sNon+1}], v[{FR+2}:{FR+3}]
    s_nop 0
    s_or_b64 vcc, vcc, s[6:7]
    s_waitcnt lgkmcnt(0)
    s_cbranch_vccnz f_m4
    ds_write_b32 v{vF}, v{t2}
    s_branch f_hd""")
    a.label("f_m4")
    a("s_barrier")
    tag_wait(a, "f_m3", t1, sD, 2, FR, step=2048)
    a(f"ds_write_b32 v{vF}, v{t2}\ns_branch f_h1")
    a.label("f_hd")
    a("s_waitcnt vmcnt(0) lgkmcnt(0)")
    stamp(a, 6, "P")
    a("s_barrier")
    a.label("f_h1")
    stamp(a, 4)
    lds_wait(a, "f_h2", vF, t1, 1, sleep=2)
    stamp(a, 1, "H")
    a(f"""s_lshl_b32 s3, s{sWave}, 2
    s_add_u32 s3, s3, {F_KV}
    v_mov_b32 v{vF}, s3""")
    def grp(src, dst, tag):
        a(f"s_add_u32 m0, s{sB}, {dst}\ns_add_u32 s3, s{sA}, {src}")
        for k in range(4): a.vmem(f"buffer_load_dwordx4 v{t0}, s[{sWS}:{sWS+3}], s3 offen offset:{1024*k} sc1 lds", tag)
    P2 = J1*TILE
    grp(16384, LW + 16384, "c1"); grp(32768, LW + 32768, "c2"); grp(P2, 0, "p0")
    ldflag("c1", 1)
    grp(P2 + 16384, 16384, "p1"); grp(P2 + 32768, 32768, "p2")
    ldflag("p0", 2)
    for i in (3, 4, 5): grp(P2 + 16384*i, 16384*i, f"p{i}")
    a(f"s_cmp_ge_u32 s{sWave}, 2\ns_cbranch_scc1 f_h3")
    grp(P2 + 16384*6, 16384*6, "p6")
    a.label("f_h3")
    a(f"v_mov_b32 v{t1}, 3\ns_waitcnt vmcnt(0)\nds_write_b32 v{vF}, v{t1}")
    a.vm = []
    stamp(a, 2, "H")
    srd(a, sRA, 34, 576*1152)
    a(f"""s_lshr_b32 s3, s2, 3
    s_lshl_b32 s3, s3, 2
    s_add_u32 s3, s3, s{sWave}
    s_mul_i32 s3, s3, {41*128}
    v_min_u32 v{t1}, 40, v{vL}
    v_lshlrev_b32 v{t1}, 7, v{t1}
    buffer_load_dword v{t2}, v{t1}, s[{sRA}:{sRA+3}], s3 offen""")
    def all_tags(lab, area, flag, tmp, sleep):
        a(f"v_mov_b32 v{vF}, {flag}\ns_cmp_lg_u32 s{sWave}, 3\ns_cbranch_scc1 {lab}_x")
        a(f"""v_lshrrev_b32 v{t1}, 3, v{vL}
        v_lshlrev_b32 v{t1}, 7, v{t1}
        v_and_b32 v{t3}, 7, v{vL}
        v_lshl_add_u32 v{t1}, v{t3}, 3, v{t1}
        s_and_b32 s{sD}, s{sT1}, 7
        s_lshl_b32 s{sD}, s{sD}, 12
        s_add_u32 s{sD}, s{sD}, {area}""")
        tag_wait(a, lab, t1, sD, 4, tmp, sleep=sleep)
    H, R, RING = 16, 32, 48
    sS2, sGrp = 70, 71
    all_tags("f_s0", FL0, F_S0, RING, 4)
    a(f"v_mov_b32 v{t1}, 1\nds_write_b32 v{vF}, v{t1}")
    a.label("f_s0_x")
    a.vm = []
    load_rf(a, R, vL, t0, "f_rf1")
    a(f"""s_and_b32 s{sS2}, s{sJ}, 1
    s_lshl_b32 s{sS2}, s{sS2}, 5
    s_add_u32 s{sS2}, s{sS2}, s{sT1}
    s_lshr_b32 s{sGrp}, s{sJ}, 1
    s_lshl_b32 s{sGrp}, s{sGrp}, 2
    s_add_u32 s{sGrp}, s{sGrp}, s{sWave}
    s_mul_i32 s{sA}, s2, 36864
    s_add_u32 s{sA}, s{sA}, {XF}
    s_mul_i32 s{sB}, s{sGrp}, 9
    s_add_u32 s{sB}, s{sB}, s{sRot}
    s_lshl_b32 s{sB}, s{sB}, 12
    s_add_u32 s{sB}, s{sB}, {DF}
    s_mov_b32 s{sC}, s{sRot}
    v_and_b32 v{t3}, 7, v{vL}
    v_lshlrev_b32 v{t3}, 2, v{t3}
    v_add_u32 v{t3}, {F_PRG}, v{t3}""")
    ND = 8
    def ld(ks):
        r = RING + 8 * (ks % ND)
        a.vmem(f"buffer_load_dwordx4 v[{r}:{r+3}], v{t0}, s[{sWS}:{sWS+3}], s{sA} offen offset:{(ks&3)*1024}", f"j{ks}")
        a.vmem(f"buffer_load_dwordx4 v[{r+4}:{r+7}], v{t0}, s[{sWS}:{sWS+3}], s{sB} offen offset:{(ks&3)*1024} {'' if 'dfplain' in EXP else 'sc1'}", f"j{ks}")
        if ks & 3 == 3:
            a(f"""s_add_u32 s{sA}, s{sA}, 4096
            s_add_u32 s{sC}, s{sC}, 1
            s_cmp_eq_u32 s{sC}, 9
            s_cselect_b32 s3, 36864, 0
            s_sub_u32 s{sB}, s{sB}, s3
            s_add_u32 s{sB}, s{sB}, 4096""")
    lds_wait(a, "f_h4", t3, t1, 2, sleep=4)
    lds_wait(a, "f_h4a", vF, t1, 1, sleep=4)
    stamp(a, 5); stamp(a, 3, "H")
    if 'nojob' not in EXP:
        for ks in range(ND): ld(ks)
        for ks in range(36):
            r = RING + 8 * (ks % ND)
            a.vm_wait(f"j{ks}")
            a(f"v_mfma_f32_32x32x16_bf16 v[{H}:{H+15}], v[{r}:{r+3}], v[{r+4}:{r+7}], " + ("0" if ks == 0 else f"v[{H}:{H+15}]"))
            if ks + ND < 36: ld(ks + ND)
        stamp(a, 4, "H")
        a("s_nop 11")
        G0.fnet_tail(a, H, RING, RING+16, R, RING+32, vL, sWS, sS2, sGrp, 72, "f_nony", sc="" if 'gtplain' in EXP else "sc1")
    last_wave_signals(a, "f_h5", F_CNT2, 4, FL2, 8, t1, t2)
    stamp(a, 6)
    vK, vC, vS, vG, vTr, vPr = 2, 5, 12, 15, 6, 7
    vC = 24
    ACC, W2, OB, AR = 16, 36, 52, 124
    vK = 28
    sRb, sCol = 70, 71
    for i in range(3):
        a(f"s_add_u32 s{sC}, s{sWave}, {4*i}")
        dense_pos(a, sC, t1, vC+i, t2)
        a(f"""v_and_b32 v{t2}, 1, v{t1}
        v_bfe_u32 v{t3}, v{t1}, 1, 2
        v_and_b32 v{t1}, 56, v{t1}
        v_lshl_add_u32 v{t1}, v{t2}, 2, v{t1}
        v_add_u32 v{vK+i}, v{t1}, v{t3}
        v_lshrrev_b32 v{t2}, 4, v{vK+i}
        v_lshl_add_u32 v{t2}, v{t2}, 1, v{vK+i}
        s_movk_i32 s3, 1152
        v_mad_u32_u24 v{vS+i}, v{t2}, s3, v{vC+i}""")
    a(f"""s_lshr_b32 s{sRb}, s{sWave}, 1
    s_lshl_b32 s{sRb}, s{sRb}, 5
    s_add_u32 s{sRb}, s{sRb}, s{sT1}
    s_mul_i32 s{sCol}, s{sJ}, 144
    s_lshl_b32 s{sC}, s{sWave}, 10
    v_and_b32 v{vPr}, 7, v{vL}
    v_lshlrev_b32 v{vPr}, 2, v{vPr}
    v_add_u32 v{vPr}, {F_PRG}, v{vPr}""")
    srd(a, sRB, 18, 2048*4096); srd(a, sRC, 20, 2048*4096); srd(a, sRD, 38, 2048*1152)
    a(f"""v_and_b32 v{t0}, 15, v{vL}
    s_and_b32 s{sA}, s{sWave}, 1
    s_lshl_b32 s{sA}, s{sA}, 4
    v_add_u32 v{t0}, s{sA}, v{t0}
    v_lshlrev_b32 v{t1}, 18, v{t0}
    v_lshrrev_b32 v{t2}, 4, v{vL}
    v_lshl_add_u32 v{t1}, v{t2}, 4, v{t1}
    s_lshl_b32 s{sA}, s{sRb}, 12""")
    for k in range(4):
        r = sRB if k < 2 else sRC
        a(f"buffer_load_dwordx4 v[{W2+4*k}:{W2+4*k+3}], v{t1}, s[{r}:{r+3}], s{sA} offen offset:{64*(k&1)}")
    nds = [0]
    def dstep(dst, r, sc=""):
        nds[0] += 1
        for i in range(3):
            if i == 2: a(f"s_cmp_lg_u32 s{sWave}, 0\ns_cbranch_scc1 f_ds{nds[0]}")
            a(f"s_add_u32 m0, s{sC}, {dst + 4096*i}\ns_nop 0")
            a(f"buffer_load_dwordx4 v{vS+i}, s[{r}:{r+3}], s{sB} offen {sc} lds")
        a.label(f"f_ds{nds[0]}")
    def dsaddr(m): return LW + 9216*m if m < 5 else 9216*(m - 5)
    def wo_step(m):
        a(f"s_add_u32 s{sB}, s{sJ}, {m}\ns_and_b32 s{sB}, s{sB}, 7\ns_mul_i32 s{sB}, s{sB}, {72*1152}\ns_add_u32 s{sB}, s{sB}, s{sCol}")
        dstep(dsaddr(m), sRA)
    lds_wait(a, "f_t1", vPr, t1, 3, sleep=16)
    for m in range(5): wo_step(m)
    lds_wait(a, "f_t3", vPr, t1, 4, sleep=16)
    for m in range(5, 8): wo_step(m)
    for i in range(3):
        a(f"""v_lshrrev_b32 v{t2}, 1, v{vK+i}
        v_lshl_add_u32 v{t2}, v{t2}, 4, v{vK+i}
        v_add_u32 v{t2}, 16, v{t2}
        s_movk_i32 s3, 1152
        v_mad_u32_u24 v{vS+i}, v{t2}, s3, v{vC+i}""")
    all_tags("f_t6", FL2, F_S2, OB, 8)
    a(f"""v_and_b32 v{t1}, 31, v{vL}
    v_lshrrev_b32 v{t2}, 5, v{vL}
    v_lshlrev_b32 v{t1}, 2, v{t1}
    v_lshl_add_u32 v{t1}, v{t2}, 12, v{t1}
    s_lshl_b32 s3, s{sT1}, 7
    s_add_u32 s3, s3, {GG}
    buffer_load_dword v{t2}, v{t1}, s[{sWS}:{sWS+3}], s3 offen sc1
    v_lshlrev_b32 v{t1}, 2, v{vL}
    v_add_u32 v{t1}, {F_G}, v{t1}
    v_mov_b32 v{t3}, 1
    s_waitcnt vmcnt(0)
    ds_write_b32 v{t1}, v{t2}
    ds_write_b32 v{vF}, v{t3}
    s_cmp_lg_u32 s2, 0
    s_cbranch_scc1 f_t6_x
    v_mov_b32 v{t1}, {EP}
    v_mov_b32 v{t2}, s{sNon}
    v_mov_b32 v{t3}, s{sNon+1}
    s_mov_b64 exec, 1
    buffer_store_dwordx2 v[{t2}:{t3}], v{t1}, s[{sWS}:{sWS+3}], 0 offen
    s_mov_b64 exec, -1""")
    a.label("f_t6_x")
    stamp(a, 5, "H")
    lds_wait(a, "f_t7", vPr, t1, 5, sleep=8)
    a(f"s_mov_b32 s{sB}, s{sCol}")
    dstep(dsaddr(8), sRA)
    for i in range(3): a(f"s_movk_i32 s3, {GP}\nv_mad_u32_u24 v{vS+i}, v{vK+i}, s3, v{vC+i}")
    a(f"""s_mul_i32 s{sB}, s{sT1}, {128*GP}
    s_add_u32 s{sB}, s{sB}, {GT}
    s_add_u32 s{sB}, s{sB}, s{sCol}
    s_lshr_b32 s3, s{sWave}, 1
    s_lshl_b32 s3, s3, 7
    s_add_u32 s3, s3, {F_G}
    v_lshlrev_b32 v{t0}, 2, v{t0}
    v_add_u32 v{t0}, s3, v{t0}""")
    lds_wait(a, "f_t8", vF, t1, 1, sleep=4)
    a(f"ds_read_b32 v{vG}, v{t0}")
    dstep(dsaddr(9), sWS, "sc1")
    a(f"s_add_u32 s{sB}, s{sB}, {64*GP}")
    dstep(dsaddr(10), sWS, "sc1")
    a(f"""s_lshl_b32 s3, s{sWave}, 2
    s_add_u32 s3, s3, {F_TA}
    v_mov_b32 v{t0}, s3
    v_mov_b32 v{t1}, 1
    v_and_b32 v{vF}, 3, v{vL}
    v_lshlrev_b32 v{vF}, 2, v{vF}
    v_add_u32 v{vF}, {F_TA}, v{vF}
    v_lshrrev_b32 v{t2}, 4, v{vL}
    v_bfe_u32 v{t3}, v{vL}, 2, 2
    v_lshl_add_u32 v{t2}, v{t2}, 2, v{t3}
    v_mul_u32_u24 v{t2}, 288, v{t2}
    v_and_b32 v{t3}, 3, v{vL}
    v_lshl_add_u32 v{vTr}, v{t3}, 3, v{t2}
    v_add_u32 v{vPr}, {LW}, v{vTr}
    s_waitcnt vmcnt(0)
    ds_write_b32 v{t0}, v{t1}""")
    lds_wait(a, "f_t9", vF, t1, 1, sleep=2)
    stamp(a, 6, "H")
    NR = 7
    def rd(f):
        ks, mu = divmod(f, 5)
        m = 9 + (ks >> 1) if ks < 4 else (ks - 4) >> 1
        v, o = (vPr, 9216*m) if m < 5 else (vTr, 9216*(m - 5))
        o += 4608*(ks & 1) + 32*mu
        r = AR + 4 * (f % 8)
        a(f"ds_read_b64_tr_b16 v[{r}:{r+1}], v{v} offset:{o}")
        a(f"ds_read_b64_tr_b16 v[{r+2}:{r+3}], v{v} offset:{o+144}")
    for f in range(NR): rd(f)
    for f in range(110):
        ks, mu = divmod(f, 5)
        if f == 20:
            a("s_nop 3")
            for r in range(20): a(f"v_mul_f32 v{ACC+r}, v{ACC+r}, v{vG}")
            a(f"""v_and_b32 v{t1}, 7, v{vL}
            v_lshlrev_b32 v{t1}, 3, v{t1}
            s_lshl_b32 s{sD}, s{sWave}, 12
            s_lshl_b32 s3, s{sT1}, 7
            s_add_u32 s{sD}, s{sD}, s3
            s_add_u32 s{sD}, s{sD}, {FL3}
            s_lshl_b32 s{sA}, s{sT1}, 2
            s_add_u32 s{sA}, s{sA}, s{sWave}
            s_mul_i32 s{sA}, s{sA}, 18432
            s_add_u32 s{sA}, s{sA}, {OF}
            v_lshlrev_b32 v{t0}, 4, v{vL}""")
            stamp12(a, 1)
            a(f"v_mov_b32 v{vF}, {F_CNT3}")
            lds_wait(a, "f_t11", vF, t2, 8, sleep=1)
            tag_wait(a, "f_t10", t1, sD, 1, W2, sleep=1)
            stamp12(a, 2)
            for k in range(18):
                if k & 1 == 0:
                    if k < 16: a(f"s_add_u32 s3, s{sJ}, {k//2}\ns_and_b32 s3, s3, 7\ns_lshl_b32 s3, s3, 11\ns_add_u32 s3, s3, s{sA}")
                    else: a(f"s_add_u32 s3, s{sA}, 16384")
                a.vmem(f"buffer_load_dwordx4 v[{OB+4*k}:{OB+4*k+3}], v{t0}, s[{sWS}:{sWS+3}], s3 offen offset:{(k&1)*1024} {'' if 'oplain' in EXP else 'sc1'}", f"o{k}")
        if ks >= 4 and mu == 0: a.vm_wait(f"o{ks-4}")
        n = min(110, f + NR) - f - 1
        a(f"s_waitcnt lgkmcnt({2*n})")
        r = AR + 4 * (f % 8)
        B = W2 + 4*ks if ks < 4 else OB + 4*(ks-4)
        ac = ACC + 4*mu
        a(f"v_mfma_f32_16x16x32_bf16 v[{ac}:{ac+3}], v[{r}:{r+3}], v[{B}:{B+3}], " + ("0" if ks == 0 else f"v[{ac}:{ac+3}]"))
        if f + NR < 110: rd(f + NR)
    stamp12(a, 3)
    a(f"""s_mul_i32 s{sA}, s{sWave}, 2304
    s_add_u32 s{sA}, s{sA}, {56*1024}
    v_and_b32 v{t1}, 15, v{vL}
    v_mul_u32_u24 v{t1}, 144, v{t1}
    v_lshrrev_b32 v{t2}, 4, v{vL}
    v_lshl_add_u32 v{t1}, v{t2}, 3, v{t1}
    v_add_u32 v{t1}, s{sA}, v{t1}
    v_add_u32 v{t0}, s{sA}, v{t0}""")
    for mu in range(5):
        ac = ACC + 4*mu
        a(f"v_cvt_pk_bf16_f32 v{W2+2*mu}, v{ac}, v{ac+1}\nv_cvt_pk_bf16_f32 v{W2+2*mu+1}, v{ac+2}, v{ac+3}")
        if mu == 4: a("s_mov_b32 exec_hi, 0")
        a(f"ds_write_b64 v{t1}, v[{W2+2*mu}:{W2+2*mu+1}] offset:{32*mu}")
    a(f"""s_mov_b32 exec_hi, -1
    s_and_b32 s{sA}, s{sWave}, 1
    s_mul_i32 s{sA}, s{sA}, {16*73728}
    s_mul_i32 s{sB}, s{sRb}, 1152
    s_add_u32 s{sA}, s{sA}, s{sB}
    s_add_u32 s{sA}, s{sA}, s{sCol}
    s_mov_b32 s{sB}, {73728-144}
    s_waitcnt lgkmcnt(0)""")
    for it in range(3): a(f"ds_read_b128 v[{OB+4*it}:{OB+4*it+3}], v{t0} offset:{1024*it}")
    for it in range(3):
        a(f"""v_add_u32 v{t1}, {64*it}, v{vL}
        v_mul_u32_u24 v{t2}, 7282, v{t1}
        v_lshrrev_b32 v{t2}, 16, v{t2}
        v_lshlrev_b32 v{t1}, 4, v{t1}
        v_mad_u32_u24 v{12+it}, v{t2}, s{sB}, v{t1}""")
    for it in range(3):
        a(f"s_waitcnt lgkmcnt({2-it})")
        if it == 2: a("s_mov_b64 exec, 0xffff")
        a(f"buffer_store_dwordx4 v[{OB+4*it}:{OB+4*it+3}], v{12+it}, s[{sRD}:{sRD+3}], s{sA} offen")
    G0.stamp_end(a, 0, sWS, sWave)
    a("s_endpgm")

    a.label("f_att")
    a.vm = []
    Q1, Q2, vG, aK, ak, aV = 4, 8, 10, 11, 12, 13
    vt0, vt1, vt2, vt3 = 2, 3, 14, 15
    O, S, P, K1, K2, V = 16, [32, 48], [64, 72], [80, 84], [88, 90], [92, 100]
    aF, aP = 108, 109
    vW, vR0, vR1, vA0, vA1 = 110, 111, 112, 113, 114
    sW8, sRho, sHd = 70, 71, 72
    vDF, vP, vSt = 116, 132, 115
    sXf, sXa = 75, 76
    a("s_barrier")
    a(f"s_sub_u32 s{sW8}, s{sWave}, 4")
    a("s_getpc_b64 s[4:5]")
    a.label("f_pf")
    a(f"""s_sub_u32 s4, s4, f_pf-f_code
    s_subb_u32 s5, s5, 0
    s_lshr_b32 s3, s2, 3
    s_lshl_b32 s6, s{sW8}, 6
    s_add_u32 s3, s3, s6
    v_lshlrev_b32 v{vt0}, 5, v{vL}
    v_add_u32 v{vt0}, s3, v{vt0}
    v_lshlrev_b32 v{vt0}, 7, v{vt0}
    v_min_u32 v{vt0}, rf_end-f_code-4, v{vt0}
    s_mov_b64 exec, 3
    global_load_dword v{vW}, v{vt0}, s[4:5]
    s_mov_b64 exec, -1""")
    xread(a, vR0, vR1, vt0, vt1)
    a(f"""s_lshr_b32 s{sRho}, s{sW8}, 2
    s_and_b32 s{sHd}, s{sW8}, 3
    s_mul_i32 s3, s{sRho}, 36864
    v_add_u32 v{vR0}, s3, v{vR0}
    v_xor_b32 v{vR1}, 32, v{vR0}
    s_bitcmp1_b32 s{sHd}, 0
    s_mov_b32 s{sB}, 0x34343120
    s_mov_b32 s{sC}, {LW}
    s_cmov_b32 s{sB}, 0x44423120
    s_cmov_b32 s{sC}, {LW-4}
    s_mul_i32 s3, s{sHd}, 36
    s_add_u32 s{sC}, s{sC}, s3
    v_bfe_u32 v{vt0}, v{vL}, 4, 1
    v_and_b32 v{vt1}, 3, v{vL}
    v_lshl_add_u32 v{vt0}, v{vt0}, 2, v{vt1}
    v_lshlrev_b32 v{vt0}, 2, v{vt0}
    v_lshrrev_b32 v{vt0}, v{vt0}, s{sB}
    v_and_b32 v{vt0}, 15, v{vt0}
    v_bfe_u32 v{vt1}, v{vL}, 2, 2
    v_lshrrev_b32 v{vt3}, 5, v{vL}
    v_lshl_add_u32 v{vt1}, v{vt1}, 1, v{vt3}
    v_mul_u32_u24 v{vt1}, 288, v{vt1}
    v_lshl_add_u32 v{vA0}, v{vt0}, 3, v{vt1}
    v_add_u32 v{vA0}, s{sC}, v{vA0}
    v_subrev_u32 v{vA1}, {LW-LD}, v{vA0}
    v_and_b32 v{aF}, 3, v{vL}
    v_min_u32 v{aF}, 2, v{aF}
    v_lshlrev_b32 v{aF}, 2, v{aF}
    v_add_u32 v{aF}, {F_LD}, v{aF}
    v_and_b32 v{vt2}, 31, v{vL}
    v_lshlrev_b32 v{ak}, 2, v{vt2}
    s_lshl_b32 s3, s{sW8}, 2
    s_add_u32 s3, s3, {F_PRG}
    v_mov_b32 v{aP}, s3
    v_lshlrev_b32 v{vSt}, 4, v{vL}
    v_add_u32 v{aK}, {LW}, v{vSt}
    v_add_u32 v{ak}, {LW+1024}, v{ak}
    v_cmp_eq_u32 vcc, 28, v{vt2}
    v_mul_u32_u24 v{vt0}, 19, v{vt3}
    s_and_b32 s3, s{sJ}, 1
    v_cndmask_b32 v{aV}, v{vt2}, 18, vcc
    v_cmp_gt_u32 vcc, 19, v{aV}
    v_add_u32 v{aV}, v{aV}, v{vt0}
    s_cmp_eq_u32 s3, s{sRho}
    v_cndmask_b32 v{aV}, 38, v{aV}, vcc
    v_lshlrev_b32 v{aV}, 4, v{aV}
    v_add_u32 v{aV}, {LW+1152}, v{aV}
    s_cselect_b32 s{sXa}, s{sHd}, 9
    s_mul_i32 s{sXf}, s2, 36864
    s_add_u32 s{sXf}, s{sXf}, {XF}""")
    common_srd()
    a(f"""s_cmp_lt_u32 s2, 144
    s_cselect_b32 s{sD}, s{sW8}, 1
    s_cmp_lg_u32 s{sD}, 0
    s_cbranch_scc1 f_a0
    s_mul_i32 s{sA}, s2, 7282
    s_lshr_b32 s{sA}, s{sA}, 16
    s_mul_i32 s{sB}, s{sA}, 9
    s_sub_u32 s{sB}, s2, s{sB}""")
    dft_ptr(a, vP, sA, vt0, vt1, vt2)
    a(f"s_lshl_b32 s{sB}, s{sB}, 7\nv_add_co_u32 v{vP}, vcc, s{sB}, v{vP}\ns_nop 1\nv_addc_co_u32 v{vP+1}, vcc, 0, v{vP+1}, vcc")
    for k in range(4): a(f"global_load_dwordx4 v[{vDF+4*k}:{vDF+4*k+3}], v[{vP}:{vP+1}], off offset:{32*k}")
    a(f"s_lshl_b32 s{sA}, s2, 12\ns_add_u32 s{sA}, s{sA}, {DF}\ns_waitcnt vmcnt(0)")
    for k in range(4): a(f"buffer_store_dwordx4 v[{vDF+4*k}:{vDF+4*k+3}], v{vSt}, s[{sWS}:{sWS+3}], s{sA} offen offset:{1024*k} sc1")
    a.label("f_a0")
    stamp(a, 1, "P")
    QA, QR = S[0], 64
    for c in range(9):
        if c: a(f"v_cmp_gt_i32 vcc, {QF + c}, v{vt0}\ns_cbranch_vccz f_q{c}_ok")
        lds_wait(a, f"f_q{c}", aF, vt0, QF + c)
        a.label(f"f_q{c}_ok")
        if c == 0: nonce(); stamp(a, 1); stamp(a, 2, "P")
        if c == 5: stamp(a, 3, "P")
        v, o = (vA0, 9216*c) if c < 5 else (vA1, 9216*(c-5))
        for i in range(4):
            b, ks = QR + 8*i, 4*c + i
            a(f"ds_read_b64_tr_b16 v[{b}:{b+1}], v{v} offset:{o + 2304*i}")
            a(f"ds_read_b64_tr_b16 v[{b+2}:{b+3}], v{v} offset:{o + 2304*i + 144}")
            a(f"ds_read_b128 v[{b+4}:{b+7}], v{vR1 if ks & 1 else vR0} offset:{2048*(ks>>1)}")
        for i in range(4):
            b, ks = QR + 8*i, 4*c + i
            if i == 3 and c < 8: a(f"ds_read_b32 v{vt0}, v{aF}")
            a(f"s_waitcnt lgkmcnt({9 - 3*i + (i == 3 and c < 8)})")
            a(f"v_mfma_f32_32x32x16_bf16 v[{QA}:{QA+15}], v[{b}:{b+3}], v[{b+4}:{b+7}], " + ("0" if ks == 0 else f"v[{QA}:{QA+15}]"))
        if c == 4: a(f"v_mov_b32 v{vt1}, 1\nds_write_b32 v{aP}, v{vt1}")
        for q in sorted({ks // 9 for ks in range(4*c, 4*c + 4)}):
            a(f"s_cmp_lg_u32 s{sXa}, {q}\ns_cbranch_scc1 f_x{c}_{q}")
            for i in range(4):
                if (4*c + i) // 9 == q: a(f"buffer_store_dwordx4 v[{QR+8*i+4}:{QR+8*i+7}], v{vSt}, s[{sWS}:{sWS+3}], s{sXf} offen offset:{1024*i}")
            a.label(f"f_x{c}_{q}")
        a(f"s_add_u32 s{sXf}, s{sXf}, 4096\ns_waitcnt lgkmcnt(0)")
    stamp(a, 4, "P")
    for r in range(16): a(f"v_mov_b32 v{O+r}, 0")
    a(f"s_mov_b32 s{sB}, {f2u(CQ)}\ns_bitcmp1_b32 s{sHd}, 0\ns_cbranch_scc1 f_qodd")
    T = S[1]
    def qmove(r0, rx):
        for r in range(8): a(f"v_mul_f32 v{T+r}, s{sB}, v{QA+r0+r}")
        for r in range(2): a(f"v_mul_f32 v{T+8+r}, s{sB}, v{QA+rx+r}")
    qmove(0, 8)
    a("s_branch f_qdone")
    a.label("f_qodd")
    qmove(2, 14)
    a.label("f_qdone")
    for r in range(2): a(f"v_cndmask_b32 v{T+8+r}, v{T+8+r}, 0, s[{sHi}:{sHi+1}]")
    a(f"v_mul_f32 v{vt0}, v{T}, v{T}")
    for r in range(1, 10): a(f"v_fmac_f32 v{vt0}, v{T+r}, v{T+r}")
    for k in range(5): a(f"v_cvt_pk_bf16_f32 v{Q1+k}, v{T+2*k}, v{T+2*k+1}")
    a(f"v_mov_b32 v{vt1}, v{vt0}")
    a(f"""v_and_b32 v{aF}, 3, v{vL}
    v_lshlrev_b32 v{aF}, 2, v{aF}
    v_permlane32_swap_b32 v{vt0}, v{vt1}
    v_add_u32 v{aF}, {F_KV}, v{aF}
    v_add_f32 v{vt0}, v{vt0}, v{vt1}
    v_sqrt_f32 v{vt0}, v{vt0}
    v_mov_b32 v{vt2}, {F_KC}
    v_cvt_pk_bf16_f32 v{Q2+1}, v{vt0}, 1.0
    v_cndmask_b32 v{Q2+1}, v{Q2+1}, 0, s[{sHi}:{sHi+1}]""")
    stamp(a, 6, "P")
    a(f"""s_barrier
    s_setprio {PRIO[0]}""")
    stamp(a, 3)
    base = {aK: LW, ak: LW, aV: LW}
    def off(v, j, extra=0):
        o = ltile(j) + extra - base[v]
        if not 0 <= o < 65536:
            nb = ltile(j)
            a(f"v_add_u32 v{v}, {(nb - base[v]) & 0xffffffff}, v{v}")
            base[v] = nb; o = extra
        return o
    rdK = lambda j: f"ds_read_b128 v[{K1[j&1]}:{K1[j&1]+3}], v{aK} offset:{off(aK, j)}"
    rdk = lambda j: f"ds_read_b32 v{K2[j&1]}, v{ak} offset:{off(ak, j)}"
    rdV = lambda j, u: f"ds_read_b128 v[{V[j&1]+4*u}:{V[j&1]+4*u+3}], v{aV} offset:{off(aV, j, 624) - 624*(1-u)}"
    def M1(j): return f"v_mfma_f32_32x32x16_bf16 v[{S[j&1]}:{S[j&1]+15}], v[{K1[j&1]}:{K1[j&1]+3}], v[{Q1}:{Q1+3}], 0"
    def M2(j): return f"v_mfma_f32_32x32x8_bf16 v[{S[j&1]}:{S[j&1]+15}], v[{K2[j&1]}:{K2[j&1]+1}], v[{Q2}:{Q2+1}], v[{S[j&1]}:{S[j&1]+15}]"
    def M3(j, u): return f"v_mfma_f32_32x32x16_bf16 v[{O}:{O+15}], v[{V[j&1]+4*u}:{V[j&1]+4*u+3}], v[{P[j&1]+4*u}:{P[j&1]+4*u+3}], v[{O}:{O+15}]"
    a(rdK(0)); a(rdk(0)); a(f"ds_read_b32 v{K2[0]+1}, v{vt2}"); a(rdK(1)); a(rdk(1)); a(f"ds_read_b32 v{K2[1]+1}, v{vt2}")
    a("s_waitcnt lgkmcnt(3)")
    a(M1(0)); a(M2(0))
    a("s_waitcnt lgkmcnt(0)\ns_nop 8")
    FCHK = {4: 1, 11: 2, 24: 3}
    PRG = {3: 2, 20: 3, 32: 4, 44: 5}
    for j in range(64):
        if j in PRIO and j: a(f"s_setprio {PRIO[j]}")
        if j == 32: stamp(a, 4)
        if j == 3: a("s_waitcnt vmcnt(0)")
        if j in PRG: a(f"v_mov_b32 v{vt1}, {PRG[j]}\nds_write_b32 v{aP}, v{vt1}")
        if j == 3:
            a(f"s_cmp_lg_u32 s{sW8}, 0\ns_cbranch_scc1 f_a3")
            tag_signal(a, FL0, 8, vt0, vt2)
            a.label("f_a3")
        if j in FCHK: lds_wait(a, f"f_w{j}", aF, vt0, FCHK[j])
        s, p = S[j & 1], P[j & 1]
        e = lambda i: f"v_exp_f32 v{s+i}, v{s+i}"
        c = lambda i: f"v_cvt_pk_bf16_f32 v{p+i}, v{s+2*i}, v{s+2*i+1}"
        nx, pv, ld = j + 1 < 64, j > 0, j + 2 < 64
        L = []
        if ld: lk, lk2 = rdK(j+2), rdk(j+2)
        lv0, lv1 = rdV(j, 0), rdV(j, 1)
        if nx: L.append(M1(j+1))
        if ld: L.append(lk)
        L += [e(0), e(1), e(2), e(3), c(0)]
        if nx: L.append(M2(j+1))
        if ld: L.append(lk2)
        L += [e(4), e(5), c(1), e(6), e(7), c(2)]
        if pv: L.append(M3(j-1, 0))
        L += [lv0, lv1]
        L += [e(8), e(9), c(3), e(10), e(11), c(4)]
        if pv: L.append(M3(j-1, 1))
        L += [e(12), e(13), c(5), e(14), e(15), c(6), c(7), "s_waitcnt lgkmcnt(0)"]
        for x in L: a(x)
    a("s_nop 0"); a(M3(63, 0)); a(M3(63, 1))
    stamp(a, 5)
    sO, sHead = 74, 73
    a(f"""s_lshl_b32 s3, s{sRho}, 7
    s_add_u32 s3, s3, {F_G}
    v_and_b32 v{vt0}, 31, v{vL}
    v_lshlrev_b32 v{vt0}, 2, v{vt0}
    v_add_u32 v{vt0}, s3, v{vt0}
    v_mov_b32 v{aF}, {F_S2}""")
    lds_wait(a, "f_a4", aF, vt1, 1)
    a(f"""ds_read_b32 v{vG}, v{vt0}
    s_lshl_b32 s{sHead}, s{sJ}, 2
    s_add_u32 s{sHead}, s{sHead}, s{sHd}
    s_lshl_b32 s{sA}, s{sT1}, 2
    s_lshl_b32 s{sB}, s{sRho}, 1
    s_add_u32 s{sA}, s{sA}, s{sB}
    s_mul_i32 s{sA}, s{sA}, 18432
    s_add_u32 s{sA}, s{sA}, {OF}
    s_lshr_b32 s{sB}, s{sHead}, 1
    s_lshl_b32 s{sB}, s{sB}, 10
    s_and_b32 s{sC}, s{sHead}, 1
    s_lshl_b32 s{sC}, s{sC}, 9
    s_add_u32 s{sB}, s{sB}, s{sC}
    s_add_u32 s{sO}, s{sA}, s{sB}
    s_lshr_b32 s{sB}, s{sHead}, 2
    s_lshl_b32 s{sB}, s{sB}, 8
    s_lshl_b32 s{sC}, s{sHd}, 2
    s_add_u32 s{sB}, s{sB}, s{sC}
    s_add_u32 s{sB}, s{sB}, 16384
    s_add_u32 s{sO+1}, s{sA}, s{sB}""")
    vl = S[0]
    a(f"v_cndmask_b32 v{vl}, v{O+10}, v{O+12}, s[{sHi}:{sHi+1}]")
    a(f"v_add_f32 v{vt0}, |v{O}|, |v{O+1}|")
    for r in range(2, 10): a(f"v_add_f32 v{vt0}, |v{O+r}|, v{vt0}")
    a(f"""v_add_f32 v{vt0}, v{vl}, v{vt0}
    v_cmp_le_f32 vcc, {f2u(LMIN)}, v{vl}
    v_mov_b32 v{vt1}, 0x7f800000
    v_cmp_lt_f32 s[6:7], v{vt0}, v{vt1}
    s_waitcnt lgkmcnt(0)
    s_and_b64 vcc, vcc, s[6:7]
    s_cmp_eq_u64 vcc, exec
    s_cbranch_scc0 f_fallback""")
    a.label("f_norm")
    a(f"""v_rcp_f32 v{vl}, v{vl}
    v_sub_f32 v{vG}, 1.0, v{vG}
    v_and_b32 v{vt0}, 15, v{vL}
    v_lshlrev_b32 v{vt0}, 4, v{vt0}
    v_mul_f32 v{vl}, v{vl}, v{vG}
    v_bfe_u32 v{vt1}, v{vL}, 4, 1
    v_mul_u32_u24 v{vt1}, 18432, v{vt1}
    v_add_u32 v{vt0}, v{vt0}, v{vt1}
    v_lshrrev_b32 v{vt1}, 5, v{vL}
    v_lshl_add_u32 v{vt1}, v{vt1}, 8, v{vt0}""")
    for r in range(10): a(f"v_mul_f32 v{O+r}, v{O+r}, v{vl}")
    for k in range(5): a(f"v_cvt_pk_bf16_f32 v{P[0]+k}, v{O+2*k}, v{O+2*k+1}")
    a(f"""buffer_store_dwordx4 v[{P[0]}:{P[0]+3}], v{vt1}, s[{sWS}:{sWS+3}], s{sO} offen sc1
    s_mov_b32 exec_hi, 0
    buffer_store_dword v{P[0]+4}, v{vt0}, s[{sWS}:{sWS+3}], s{sO+1} offen sc1
    s_mov_b32 exec_hi, -1""")
    last_wave_signals(a, "f_a9", F_CNT3, 8, FL3, 4, vt0, vt2)
    G0.stamp_end(a, 0, sWS, sWave)
    a("s_endpgm")
    a.label("f_fallback")
    s0 = S[0]
    a(f"""v_subrev_u32 v{aK}, {base[aK]}, v{aK}
    v_subrev_u32 v{ak}, {base[ak]}, v{ak}
    v_subrev_u32 v{aV}, {base[aV]}, v{aV}
    v_mov_b32 v{K2[0]+1}, 0
    v_mov_b32 v{vt0}, 0xff800000
    s_mov_b32 s{sA}, {KVG}""")
    a.label("f_fb1")
    a(f"""buffer_load_dwordx4 v[{K1[0]}:{K1[0]+3}], v{aK}, s[{sWS}:{sWS+3}], s{sA} offen sc1
    buffer_load_dword v{K2[0]}, v{ak}, s[{sWS}:{sWS+3}], s{sA} offen sc1
    s_waitcnt vmcnt(0)""")
    a(M1(0)); a(M2(0)); a("s_nop 11")
    for r in range(0, 16, 2): a(f"v_max3_f32 v{vt0}, v{s0+r}, v{s0+r+1}, v{vt0}")
    a(f"""s_add_u32 s{sA}, s{sA}, {TILE}
    s_cmp_lt_u32 s{sA}, {KVG+64*TILE}
    s_cbranch_scc1 f_fb1
    v_mov_b32 v{vt1}, v{vt0}
    s_nop 1
    v_permlane32_swap_b32 v{vt0}, v{vt1}
    v_max_f32 v{vt0}, v{vt0}, v{vt1}
    v_cvt_pk_bf16_f32 v{vt1}, v{vt0}, v{vt0}
    v_and_b32 v{vt1}, 0xffff0000, v{vt1}
    v_sub_f32 v{vt0}, v{vt0}, v{vt1}
    v_cvt_pk_bf16_f32 v{Q2+1}, v{vt1}, v{vt0}
    v_cndmask_b32 v{Q2+1}, v{Q2+1}, 0, s[{sHi}:{sHi+1}]
    v_mov_b32 v{K2[0]+1}, 0xbf80bf80
    s_mov_b32 s{sA}, {KVG}""")
    for r in range(16): a(f"v_mov_b32 v{O+r}, 0")
    a.label("f_fb2")
    a(f"""buffer_load_dwordx4 v[{K1[0]}:{K1[0]+3}], v{aK}, s[{sWS}:{sWS+3}], s{sA} offen sc1
    buffer_load_dword v{K2[0]}, v{ak}, s[{sWS}:{sWS+3}], s{sA} offen sc1
    buffer_load_dwordx4 v[{V[0]}:{V[0]+3}], v{aV}, s[{sWS}:{sWS+3}], s{sA} offen sc1
    buffer_load_dwordx4 v[{V[0]+4}:{V[0]+7}], v{aV}, s[{sWS}:{sWS+3}], s{sA} offen offset:624 sc1
    s_waitcnt vmcnt(0)""")
    a(M1(0)); a(M2(0)); a("s_nop 11")
    for r in range(16): a(f"v_exp_f32 v{s0+r}, v{s0+r}")
    a("s_nop 0")
    for k in range(8): a(f"v_cvt_pk_bf16_f32 v{P[0]+k}, v{s0+2*k}, v{s0+2*k+1}")
    a("s_nop 1"); a(M3(0, 0)); a(M3(0, 1))
    a(f"""s_add_u32 s{sA}, s{sA}, {TILE}
    s_cmp_lt_u32 s{sA}, {KVG+64*TILE}
    s_cbranch_scc1 f_fb2
    s_nop 11
    v_cndmask_b32 v{vl}, v{O+10}, v{O+12}, s[{sHi}:{sHi+1}]
    s_branch f_norm""")
    a.label("f_end")
    a("s_endpgm")
    return a

HEAD = """; Fused FNet + multi-query attention + gate.  One launch, 256 workgroups of 12 waves, one per CU.
"""
def build(a, vgpr=160):
    lab = G0.NAME + "_kernel"
    for p in check(a.lines): print(p, file=sys.stderr)
    out = [HEAD + f"; @launch grid=(256,1,1) block=(768,1,1) lds=163840", '.amdgcn_target "amdgcn-amd-amdhsa--gfx950"\n.text',
           f".globl {lab}\n.p2align 8\n.type {lab},@function\n{lab}:", a.text(), ".p2align 8\n.type rf_table,@object\nrf_table:"]
    w = rf_table()
    for i in range(0, len(w), 8): out.append(".long " + ",".join(f"0x{x:08x}" for x in w[i:i+8]))
    out += [".size rf_table, 4096", "rf_end:", '.section .rodata,"a"', kd(lab, vgpr)]
    return "\n".join(out) + "\n"

if __name__ == "__main__":
    if len(sys.argv) > 2 and sys.argv[2] == "stamp": G0.STAMP = True
    for x in sys.argv[3:]:
        if x.startswith("leak"):
            p = x.split(":"); G0.LEAK = (int(p[1]), int(p[2]), int(p[3]) if len(p) > 3 else None)
        else: EXP.add(x)
    open(sys.argv[1], "w").write(build(gen()))
```

```python
import math, sys
import gen as G0
from gen import Asm, check, srd, f2u, bf16, CQ, GP, TILE, wave_max, load_rf, rf_table, kd
EP = 0x0
FL0, FL1, FL2, FL3 = 0x8000, 0x10000, 0x20000, 0x30000
KMG = 0x40000
GG = 0x41000
KVG = 0x50000
OF = 0x100000
GT = 0x340000
XF = 0x800000
DF = 0x1100000
ST = 0x1200000
WS_SIZE = 0x1300000
G0.GT = GT; G0.ST = ST
OFFS, LMIN = 80.0, 2.0**-100
LX, LD, LW, LGATE, FLG = 0, 73728, 110592, 156672, 159744
F_KV, F_PRG, F_S1F, F_S1, F_CNT2, F_CNT3, F_TA, F_S2, F_S0, F_DUTY, F_KC, F_LD, F_G = FLG, FLG+16, FLG+48, FLG+52, FLG+56, FLG+60, FLG+64, FLG+80, FLG+84, FLG+88, FLG+92, FLG+96, FLG+256
J1 = 20
def ltile(j): return LW + TILE*j if j < J1 else TILE*(j - J1)
PRIO = {0: 2, 32: 1, 60: 0}
SPIN = 400000
QF = 7
EXP = set()
def stamp(a, s, g="A"):
    if s == 0 or g in EXP or (g == "A" and not EXP & {"P", "H"}): G0.stamp(a, s)

sWS, sRA, sRB, sRC, sRD = 8, 12, 40, 44, 48
sNon, sWave, sT1, sJ = 54, 56, 57, 58
sA, sB, sC, sD, sE, sF, sG, sH = 59, 60, 61, 62, 63, 64, 65, 66
sHi = 68
sRot = 67
vL = 1

_n = [0]
def stamp12(a, slot):
    if not G0.STAMP or EXP & {'P', 'H'}: return
    _n[0] += 1
    a(f"s_sub_u32 s3, s{sWave}, 1\ns_cmp_ge_u32 s3, 2\ns_cbranch_scc1 f_st{_n[0]}")
    stamp(a, slot)
    a.label(f"f_st{_n[0]}")

def lds_wait(a, lab, vaddr, vt, val, sleep=0):
    if sleep:
        a(f"s_branch {lab}")
        a.label(lab + "_z")
        a(f"s_sleep {sleep}")
    a.label(lab)
    a(f"ds_read_b32 v{vt}, v{vaddr}\ns_waitcnt lgkmcnt(0)\nv_cmp_gt_i32 vcc, {val}, v{vt}\ns_cbranch_vccnz {lab + ('_z' if sleep else '')}")

def tag_wait(a, lab, vaddr, soff, n, vt, step=1024, sleep=2):
    a(f"s_mov_b32 s{sH}, 0")
    a.label(lab)
    for i in range(n): a(f"buffer_load_dwordx2 v[{vt+2*i}:{vt+2*i+1}], v{vaddr}, s[{sWS}:{sWS+3}], s{soff} offen offset:{i*step} sc1")
    a(f"s_add_u32 s{sH}, s{sH}, 1\ns_waitcnt vmcnt(0) lgkmcnt(0)")
    for i in range(n):
        a(f"v_cmp_ne_u64 {'vcc' if i == 0 else 's[6:7]'}, s[{sNon}:{sNon+1}], v[{vt+2*i}:{vt+2*i+1}]")
        if i: a("s_nop 0\ns_or_b64 vcc, vcc, s[6:7]")
    a(f"s_cbranch_vccz {lab}_ok\ns_cmp_ge_u32 s{sH}, {SPIN}\ns_cbranch_scc1 {lab}_ok\ns_sleep {sleep}\ns_branch {lab}")
    a.label(lab + "_ok")
    a.vm = []

def tag_signal(a, area, nrep, v0, v1):
    a(f"""s_lshl_b32 s{sG}, s{sT1}, 7
    s_lshl_b32 s{sH}, s{sJ}, 3
    s_add_u32 s{sG}, s{sG}, s{sH}
    s_add_u32 s{sG}, s{sG}, {area}
    v_lshlrev_b32 v{v0}, 12, v{vL}
    v_mov_b32 v{v1}, s{sNon}
    v_mov_b32 v{v1+1}, s{sNon+1}
    s_mov_b64 exec, {(1 << nrep) - 1}
    buffer_store_dwordx2 v[{v1}:{v1+1}], v{v0}, s[{sWS}:{sWS+3}], s{sG} offen sc1
    s_mov_b64 exec, -1""")

def last_wave_signals(a, lab, cnt, total, area, nrep, v0, v1):
    a(f"""s_waitcnt vmcnt(0)
    v_mov_b32 v{v0}, {cnt}
    v_mov_b32 v{v1}, 1
    s_mov_b64 exec, 1
    ds_add_rtn_u32 v{v1}, v{v0}, v{v1}
    s_waitcnt lgkmcnt(0)
    v_readfirstlane_b32 s{sG}, v{v1}
    s_mov_b64 exec, -1
    s_cmp_lg_u32 s{sG}, {total-1}
    s_cbranch_scc1 {lab}""")
    tag_signal(a, area, nrep, v0, v1)
    a.label(lab)
    a.vm = []

def xsrc(a, dst, t0, t1):
    a(f"""v_lshrrev_b32 v{t0}, 4, v{vL}
    v_xor_b32 v{t0}, v{t0}, v{vL}
    v_and_b32 v{t0}, 3, v{t0}
    v_lshlrev_b32 v{t0}, 4, v{t0}
    v_lshrrev_b32 v{t1}, 2, v{vL}
    s_mov_b32 s3, 73728
    v_mad_u32_u24 v{dst}, v{t1}, s3, v{t0}""")
def xread(a, r0, r1, t0, t1):
    a(f"""v_lshrrev_b32 v{t0}, 5, v{vL}
    v_lshrrev_b32 v{t1}, 2, v{vL}
    v_xor_b32 v{t0}, v{t0}, v{t1}
    v_and_b32 v{t0}, 3, v{t0}
    v_and_b32 v{t1}, 31, v{vL}
    v_lshlrev_b32 v{t1}, 6, v{t1}
    v_lshl_add_u32 v{r0}, v{t0}, 4, v{t1}""")
def dense_pos(a, sph, pos, c16, t):
    a(f"""s_lshl_b32 s3, s{sph}, 6
    v_add_u32 v{c16}, s3, v{vL}
    v_mul_u32_u24 v{pos}, 7282, v{c16}
    v_lshrrev_b32 v{pos}, 16, v{pos}
    v_mul_u32_u24 v{t}, 9, v{pos}
    v_sub_u32 v{c16}, v{c16}, v{t}
    v_lshlrev_b32 v{c16}, 4, v{c16}""")

def dft_ptr(a, vP, sg, t1, t2, t3):
    a(f"""v_and_b32 v{t1}, 3, v{vL}
    v_bfe_u32 v{t2}, v{vL}, 2, 1
    v_lshl_add_u32 v{t1}, v{t2}, 3, v{t1}
    v_bfe_u32 v{t2}, v{vL}, 3, 1
    v_lshl_add_u32 v{t1}, v{t2}, 2, v{t1}
    s_lshl_b32 s3, s{sg}, 4
    v_add_u32 v{t1}, s3, v{t1}
    s_cmp_eq_u32 s{sg}, 0
    s_cselect_b32 s6, 0x10000, 0
    s_mov_b32 s7, s6
    v_mov_b32 v{t2}, 288
    v_cndmask_b32 v{t1}, v{t1}, v{t2}, s[6:7]
    v_mul_u32_u24 v{t1}, 1152, v{t1}
    v_lshrrev_b32 v{t2}, 5, v{vL}
    v_lshl_add_u32 v{t1}, v{t2}, 4, v{t1}
    s_or_b32 s6, s6, 0xffff
    s_mov_b32 s7, s6
    v_mov_b32 v{vP}, s24
    v_mov_b32 v{vP+1}, s25
    v_mov_b32 v{t2}, s22
    v_mov_b32 v{t3}, s23
    v_cndmask_b32 v{vP}, v{vP}, v{t2}, s[6:7]
    v_cndmask_b32 v{vP+1}, v{vP+1}, v{t3}, s[6:7]
    v_add_co_u32 v{vP}, vcc, v{vP}, v{t1}
    s_nop 1
    v_addc_co_u32 v{vP+1}, vcc, 0, v{vP+1}, vcc""")

def gen():
    a = Asm()
    a.label("f_code")
    a("s_cmp_ge_u32 s2, 256\ns_cbranch_scc1 f_end")
    stamp(a, 0)
    a("s_load_dwordx2 s[52:53], s[0:1], 104\ns_load_dwordx16 s[16:31], s[0:1], 0\ns_load_dwordx8 s[32:39], s[0:1], 64")
    a(f"""v_lshrrev_b32 v2, 6, v0
    v_and_b32 v{vL}, 63, v0
    v_readfirstlane_b32 s{sWave}, v2
    s_bfe_u32 s3, s2, 0x20003
    s_lshr_b32 s{sRot}, s2, 6
    s_add_u32 s{sRot}, s{sRot}, s3
    s_and_b32 s{sRot}, s{sRot}, 3
    s_lshl_b32 s{sRot}, s{sRot}, 1
    s_and_b32 s{sT1}, s2, 7
    s_lshl_b32 s3, s3, 3
    s_add_u32 s{sT1}, s{sT1}, s3
    s_lshr_b32 s{sJ}, s2, 5
    s_mov_b32 s{sHi}, 0
    s_mov_b32 s{sHi+1}, -1
    s_cmp_ge_u32 s{sWave}, 4
    s_cbranch_scc1 f_att
    s_setprio 3
    s_cmp_eq_u32 s{sWave}, 0
    s_cbranch_scc1 f_duty""")
    def common_srd():
        a("s_waitcnt lgkmcnt(0)")
        a(f"s_load_dwordx2 s[{sNon}:{sNon+1}], s[52:53], {EP}")
        srd(a, sWS, 52, WS_SIZE)
    def nonce():
        a(f"s_add_u32 s{sNon}, s{sNon}, 1")
    t0, t1, t2, t3 = 8, 9, 10, 11
    vF = 4
    vXs, vDs, vW = 2, 3, 12
    sG_, sXo, sDa, sDb, sDs, sM, sXp = 70, 71, 72, 73, 74, 75, 76
    a("s_barrier")
    a(f"s_sub_u32 s{sG_}, s{sWave}, 1")
    a(f"s_lshl_b32 s3, s{sG_}, 2\ns_add_u32 s3, s3, {F_LD}\nv_mov_b32 v{vF}, s3\nv_mov_b32 v6, -1")
    xsrc(a, vXs, t0, t1)
    a(f"""    s_and_b32 s{sA}, s{sJ}, 1
    s_mul_i32 s{sM}, s{sA}, 36864
    s_lshl_b32 s{sA}, s{sA}, 5
    s_add_u32 s{sA}, s{sA}, s{sT1}
    s_mul_i32 s{sXo}, s{sA}, 1152
    s_cmp_ge_u32 s{sJ}, 4
    s_cbranch_scc1 f_lF
    v_and_b32 v{t2}, 3, v{vL}
    v_mul_u32_u24 v{vDs}, 36, v{t1}
    v_lshl_add_u32 v{vDs}, v{t2}, 4, v{vDs}
    s_mov_b32 s{sDa}, 0
    s_movk_i32 s{sDb}, 576
    s_movk_i32 s{sDs}, 1152
    s_cmp_lt_u32 s{sJ}, 2
    s_waitcnt lgkmcnt(0)
    s_cselect_b32 s{sRB}, s30, s32
    s_cselect_b32 s{sRB+1}, s31, s33
    s_mov_b32 s{sRB+2}, {576*36}
    s_mov_b32 s{sRB+3}, 0x20000
    s_mov_b64 s[{sRC}:{sRC+1}], s[{sRB}:{sRB+1}]
    s_mov_b32 s{sRC+2}, {576*36}
    s_mov_b32 s{sRC+3}, 0x20000
    s_branch f_lI""")
    a.label("f_lF")
    a(f"""v_and_b32 v{t2}, 3, v{t1}
    v_bfe_u32 v{t3}, v{t1}, 2, 1
    v_lshl_add_u32 v{t2}, v{t3}, 3, v{t2}
    v_bfe_u32 v{t3}, v{t1}, 3, 1
    v_lshl_add_u32 v{t2}, v{t3}, 2, v{t2}
    s_movk_i32 s3, 1152
    v_mad_u32_u24 v{vDs}, v{t2}, s3, v{t0}
    s_bfe_u32 s3, s{sJ}, 0x10001
    s_add_u32 s3, s3, 16
    s_mul_i32 s{sDa}, s3, {16*1152}
    s_mov_b32 s{sDb}, s{sDa}
    s_movk_i32 s{sDs}, 64
    s_waitcnt lgkmcnt(0)""")
    srd(a, sRB, 22, 576*1152); srd(a, sRC, 24, 576*1152)
    a.label("f_lI")
    srd(a, sRA, 16, 2048*1152)
    stamp(a, 1, "P")
    a(f"s_mov_b32 s{sB}, s{sG_}")
    a.label("f_lL")
    a(f"""s_lshl_b32 s{sC}, s{sRot}, 1
    s_add_u32 s{sC}, s{sC}, s{sB}
    s_cmp_ge_u32 s{sC}, 18
    s_cselect_b32 s3, 18, 0
    s_sub_u32 s{sC}, s{sC}, s3
    s_lshl_b32 s{sD}, s{sB}, 11
    s_add_u32 m0, s{sD}, s{sM}
    s_lshl_b32 s3, s{sC}, 6
    s_add_u32 s3, s3, s{sXo}
    buffer_load_dwordx4 v{vXs}, s[{sRA}:{sRA+3}], s3 offen lds
    s_add_u32 m0, m0, 1024
    s_add_u32 s3, s3, 1179648
    buffer_load_dwordx4 v{vXs}, s[{sRA}:{sRA+3}], s3 offen lds
    s_add_u32 m0, s{sD}, {LD}
    s_mul_i32 s{sC}, s{sC}, s{sDs}
    s_add_u32 s3, s{sC}, s{sDa}
    buffer_load_dwordx4 v{vDs}, s[{sRB}:{sRB+3}], s3 offen lds
    s_add_u32 m0, m0, 1024
    s_add_u32 s3, s{sC}, s{sDb}
    buffer_load_dwordx4 v{vDs}, s[{sRC}:{sRC+3}], s3 offen lds
    s_add_u32 s{sB}, s{sB}, 3
    s_waitcnt vmcnt(8)
    ds_write_b32 v{vF}, v6
    v_add_u32 v6, 1, v6
    s_cmp_lt_u32 s{sB}, 18
    s_cbranch_scc1 f_lL""")
    a.vm_note("d4", 4); a.vm_note("d5", 4)
    stamp(a, 2, "P")
    a(f"s_load_dwordx2 s[{sNon}:{sNon+1}], s[52:53], {EP}")
    srd(a, sWS, 52, WS_SIZE); srd(a, sRB, 28, 576*1152)
    for i in range(3):
        a(f"s_mul_i32 s{sC}, s{sG_}, 3\ns_add_u32 s{sC}, s{sC}, {i}")
        dense_pos(a, sC, t1, t0, t2)
        a(f"""v_and_b32 v{t2}, 3, v{t1}
        v_bfe_u32 v{t3}, v{t1}, 2, 2
        v_and_b32 v{t1}, 48, v{t1}
        v_lshl_add_u32 v{t1}, v{t2}, 2, v{t1}
        v_add_u32 v{t1}, v{t1}, v{t3}
        s_movk_i32 s3, 1152
        v_mad_u32_u24 v{vW+i}, v{t1}, s3, v{t0}""")
    a(f"""v_mov_b32 v5, {F_DUTY}
    s_mul_i32 s{sE}, s{sJ}, 144
    s_mul_i32 s{sF}, s{sG_}, 3072
    s_and_b32 s{sA}, s{sJ}, 1
    s_xor_b32 s{sA}, s{sA}, 1
    s_mul_i32 s{sM}, s{sA}, 36864
    s_lshl_b32 s3, s{sG_}, 10
    s_add_u32 s{sM}, s{sM}, s3
    s_lshl_b32 s{sA}, s{sA}, 5
    s_add_u32 s{sA}, s{sA}, s{sT1}
    s_mul_i32 s{sXp}, s{sA}, 1152
    s_mul_i32 s3, s{sG_}, 1179648
    s_add_u32 s{sXp}, s{sXp}, s3""")
    def ldflag(tag, val):
        a(f"v_mov_b32 v{t1}, {val}")
        a.vm_wait(tag)
        a(f"ds_write_b32 v{vF}, v{t1}")
    def chunk(c, withx):
        base = LW + 9216*c if c < 5 else LD + 9216*(c-5)
        a(f"""s_add_u32 s{sC}, s{sRot}, {c}
        s_cmp_ge_u32 s{sC}, 9
        s_cselect_b32 s3, 9, 0
        s_sub_u32 s{sC}, s{sC}, s3""")
        if withx:
            a(f"s_add_u32 m0, s{sM}, {4096*c}\ns_lshl_b32 s3, s{sC}, 7\ns_add_u32 s3, s3, s{sXp}")
            a.vmem(f"buffer_load_dwordx4 v{vXs}, s[{sRA}:{sRA+3}], s3 offen lds", f"c{c}")
            a("s_add_u32 m0, m0, 1984\ns_nop 0")
            a.vmem(f"buffer_load_dwordx4 v{vXs}, s[{sRA}:{sRA+3}], s3 offen offset:64 lds", f"c{c}")
        a(f"s_add_u32 m0, s{sF}, {base}\ns_mul_i32 s3, s{sC}, 73728\ns_add_u32 s3, s3, s{sE}")
        for i in range(3):
            if i: a("s_add_u32 m0, m0, 1024\ns_nop 0")
            a.vmem(f"buffer_load_dwordx4 v{vW+i}, s[{sRB}:{sRB+3}], s3 offen lds", f"c{c}")
    def chunks(withx, lab):
        chunk(0, withx)
        ldflag("d4", 5); ldflag("d5", 6)
        chunk(1, withx)
        for c in range(2, 9):
            if c == 5: lds_wait(a, lab, 5, t1, 1)
            chunk(c, withx)
            ldflag(f"c{c-2}", QF + c - 2)
        stamp(a, 3, "P")
        ldflag("c7", QF + 7); ldflag("c8", QF + 8)
        stamp(a, 4, "P")
    vml = list(a.vm)
    a(f"s_cmp_eq_u32 s{sWave}, 3\ns_cbranch_scc1 f_l3")
    chunks(True, "f_l1w")
    a("s_waitcnt lgkmcnt(0)")
    nonce()
    a("s_branch f_kv0")
    a.label("f_l3")
    a.vm = list(vml)
    srd(a, sRC, 36, 1152)
    for i in range(2):
        a(f"""s_lshl_b32 s3, s{sRot}, 7
        s_add_u32 s3, s3, {1024*i}
        v_lshlrev_b32 v{t1}, 4, v{vL}
        v_add_u32 v{t1}, s3, v{t1}
        v_subrev_u32 v{t2}, 1152, v{t1}
        v_min_u32 v{t1}, v{t1}, v{t2}
        s_mov_b32 m0, {LGATE + 1024*i}
        s_nop 0""")
        a.vmem(f"buffer_load_dwordx4 v{t1}, s[{sRC}:{sRC+3}], 0 offen lds", "c0")
    chunks(False, "f_l3w")
    FR = 32
    a("s_waitcnt lgkmcnt(0)")
    nonce()
    a("s_branch f_kv0")

    a.label("f_duty")
    a.vm = []
    vR0, vR1, vD0, vD1 = 2, 3, 6, 7
    ACC, R = 16, 80
    sRb, sGrp = 70, 76
    a(f"""v_lshlrev_b32 v{t0}, 2, v{vL}
    v_add_u32 v{t0}, {FLG}, v{t0}
    v_mov_b32 v{t1}, 0
    ds_write_b32 v{t0}, v{t1}""")
    xread(a, vR0, vR1, t2, t3)
    common_srd()
    a("s_barrier")
    a(f"""s_and_b32 s{sA}, s{sJ}, 1
    s_lshl_b32 s{sRb}, s{sA}, 5
    s_add_u32 s{sRb}, s{sRb}, s{sT1}
    s_mul_i32 s{sA}, s{sA}, 36864
    v_add_u32 v{vD0}, {LD}, v{vR0}
    v_xor_b32 v{vD1}, 32, v{vD0}
    v_add_u32 v{vR0}, s{sA}, v{vR0}
    v_xor_b32 v{vR1}, 32, v{vR0}
    v_and_b32 v{vF}, 3, v{vL}
    v_min_u32 v{vF}, 2, v{vF}
    v_lshlrev_b32 v{vF}, 2, v{vF}
    v_add_u32 v{vF}, {F_LD}, v{vF}
    s_cmp_ge_u32 s{sJ}, 4
    s_cbranch_scc1 f_cF
    v_and_b32 v{t2}, 3, v{vL}
    v_and_b32 v{t0}, 1, v{vL}
    v_bfe_u32 v{t3}, v{vL}, 1, 1
    v_lshl_or_b32 v{t0}, v{t0}, 1, v{t3}
    v_bfe_u32 v{t3}, v{vL}, 4, 1
    v_cmp_eq_u32 vcc, 0, v{t3}
    v_bfe_u32 v{vD0}, v{vL}, 2, 2
    v_lshrrev_b32 v{vD1}, 5, v{vL}
    v_cndmask_b32 v{t0}, v{t2}, v{t0}, vcc
    v_lshl_add_u32 v{vD0}, v{vD1}, 3, v{vD0}
    v_lshlrev_b32 v{vD0}, 6, v{vD0}
    v_lshl_add_u32 v{vD0}, v{t3}, 5, v{vD0}
    v_lshl_add_u32 v{vD0}, v{t0}, 3, v{vD0}
    v_add_u32 v{vD0}, {LD}, v{vD0}
    s_cmp_ge_u32 s{sJ}, 2
    s_cbranch_scc1 f_cV""")
    def duty_chain(kind):
        def reads(s):
            b = FR + 16*(s & 1)
            for p in range(2):
                a(f"ds_read_b128 v[{b+8*p}:{b+8*p+3}], v{vR1 if p else vR0} offset:{2048*s}")
                if kind == "F": a(f"ds_read_b128 v[{b+8*p+4}:{b+8*p+7}], v{vD1 if p else vD0} offset:{2048*s}")
                elif kind == "G": a(f"ds_read_b128 v[{b+8*p+4}:{b+8*p+7}], v{vD0} offset:{64*s+32*p}")
                else:
                    a(f"ds_read_b64_tr_b16 v[{b+8*p+4}:{b+8*p+5}], v{vD0} offset:{2048*s+1024*p}")
                    a(f"ds_read_b64_tr_b16 v[{b+8*p+6}:{b+8*p+7}], v{vD0} offset:{2048*s+1024*p+256}")
        n = 2 if kind in "FG" else 3
        for s in range(18):
            if s % 3 == 0:
                if kind != "G": lds_wait(a, f"f_d{kind}{s}", vF, t0, 1 + s//3)
                if s == 0 and kind != "G": stamp(a, 1, "P")
                if s == 0 or kind != "G": reads(s)
            more = s + 1 < 18 and (kind == "G" or (s + 1) % 3)
            if more: reads(s + 1)
            b = FR + 16*(s & 1)
            for p in range(2):
                a(f"s_waitcnt lgkmcnt({(2*n if more else 0) + (n if p == 0 else 0)})")
                X, D = b + 8*p, b + 8*p + 4
                A, B = (D, X) if kind in "KG" else (X, D)
                a(f"v_mfma_f32_32x32x16_bf16 v[{ACC}:{ACC+15}], v[{A}:{A+3}], v[{B}:{B+3}], " + ("0" if s + p == 0 else f"v[{ACC}:{ACC+15}]"))
        if kind != "G":
            a(f"v_mov_b32 v{t0}, {F_DUTY}\nv_mov_b32 v{t1}, 1\nds_write_b32 v{t0}, v{t1}")
            nonce()
            stamp(a, 2); stamp(a, 2, "P")
    def kv_off():
        a(f"""s_and_b32 s{sA}, s{sJ}, 1
        s_lshl_b32 s{sB}, s{sT1}, 1
        s_add_u32 s{sA}, s{sA}, s{sB}
        s_mul_i32 s{sF}, s{sA}, {TILE}
        s_add_u32 s{sF}, s{sF}, {KVG}
        s_add_u32 s{sE}, s{sF}, {64*TILE}""")
    duty_chain("K")
    kv_off()
    a(f"v_lshlrev_b32 v{t0}, 4, v{vL}\nv_lshlrev_b32 v{t1}, 2, v{vL}\ns_nop 0")
    for k in range(5): a(f"v_cvt_pk_bf16_f32 v{FR+k}, v{ACC+2*k}, v{ACC+2*k+1}")
    for s in (sF, sE): a(f"buffer_store_dwordx4 v[{FR}:{FR+3}], v{t0}, s[{sWS}:{sWS+3}], s{s} offen sc1")
    a(f"v_mul_f32 v{t3}, v{ACC}, v{ACC}")
    for r in range(1, 8): a(f"v_fmac_f32 v{t3}, v{ACC+r}, v{ACC+r}")
    a("s_mov_b32 exec_hi, 0")
    for s in (sF, sE): a(f"buffer_store_dword v{FR+4}, v{t1}, s[{sWS}:{sWS+3}], s{s} offen offset:1024 sc1")
    a(f"""v_fmac_f32 v{t3}, v{ACC+8}, v{ACC+8}
    v_fmac_f32 v{t3}, v{ACC+9}, v{ACC+9}
    s_mov_b64 exec, -1
    v_mov_b32 v{t0}, v{t3}
    s_nop 1
    v_permlane32_swap_b32 v{t0}, v{t3}
    v_add_f32 v{t3}, v{t0}, v{t3}""")
    wave_max(a, t3, sB)
    a(f"""v_mov_b32 v{t3}, s{sB}
    v_lshlrev_b32 v{t0}, 8, v{vL}
    s_lshl_b32 s{sA}, s{sA}, 2
    s_add_u32 s{sA}, s{sA}, {KMG}
    s_mov_b64 exec, 3
    buffer_store_dword v{t3}, v{t0}, s[{sWS}:{sWS+3}], s{sA} offen sc1
    s_mov_b64 exec, -1
    s_branch f_dP""")
    a.label("f_cV")
    duty_chain("V")
    kv_off()
    a(f"""v_and_b32 v{t0}, 31, v{vL}
    v_lshrrev_b32 v{t2}, 5, v{vL}
    v_mul_u32_u24 v{t1}, 19, v{t2}
    v_add_u32 v{t1}, v{t1}, v{t0}
    v_cmp_eq_u32 vcc, 19, v{vL}
    v_mov_b32 v{t3}, 38
    v_cmp_eq_u32 s[6:7], 18, v{t0}
    v_cndmask_b32 v{t1}, v{t1}, v{t3}, vcc
    v_lshlrev_b32 v{t1}, 4, v{t1}
    v_mov_b32 v{t3}, 0x3f803f80""")
    for k in range(8): a(f"v_cvt_pk_bf16_f32 v{FR+k}, v{ACC+2*k}, v{ACC+2*k+1}")
    for k in range(8):
        a(f"v_cndmask_b32 v{FR+k}, v{FR+k}, v{t3}, s[6:7]")
        a(f"v_cndmask_b32 v{FR+k}, v{FR+k}, 0, vcc")
    a("s_mov_b32 exec_lo, 0xfffff\ns_mov_b32 exec_hi, 0x7ffff")
    for s in (sF, sE):
        a(f"buffer_store_dwordx4 v[{FR}:{FR+3}], v{t1}, s[{sWS}:{sWS+3}], s{s} offen offset:1152 sc1")
        a(f"buffer_store_dwordx4 v[{FR+4}:{FR+7}], v{t1}, s[{sWS}:{sWS+3}], s{s} offen offset:{1152+624} sc1")
    a("s_mov_b64 exec, -1")
    a.label("f_dP")
    stamp(a, 3, "P")
    a("s_waitcnt vmcnt(0)")
    tag_signal(a, FL1, 8, t0, t2)
    stamp(a, 3); stamp(a, 4, "P")
    a("s_branch f_dS")
    a.label("f_cF")
    a(f"s_bfe_u32 s{sGrp}, s{sJ}, 0x10001\ns_add_u32 s{sGrp}, s{sGrp}, 16")
    load_rf(a, R, vL, t0, "f_rf0")
    duty_chain("F")
    a.vm_wait("rf")
    a("s_nop 6")
    G0.fnet_tail(a, ACC, FR, FR+16, R, FR+32, vL, sWS, sRb, sGrp, 76+1, None, sc="sc1")
    stamp(a, 3, "P")
    a(f"""s_cmp_ge_u32 s{sJ}, 6
    s_cbranch_scc1 f_dS
    v_lshrrev_b32 v{vD0}, 5, v{vL}
    v_lshlrev_b32 v{vD0}, 4, v{vD0}
    v_add_u32 v{vD0}, {LGATE}, v{vD0}""")
    lds_wait(a, "f_dGw", vF, t0, QF)
    duty_chain("G")
    a(f"""s_lshl_b32 s{sF}, s{sRb}, 7
    s_add_u32 s{sF}, s{sF}, {GG}
    v_lshlrev_b32 v{t1}, 2, v{vL}
    s_nop 8
    v_mul_f32 v{t3}, {f2u(-math.log2(math.e))}, v{ACC}
    v_exp_f32 v{t3}, v{t3}
    s_nop 0
    v_add_f32 v{t3}, 1.0, v{t3}
    v_rcp_f32 v{t3}, v{t3}
    s_mov_b32 exec_hi, 0
    buffer_store_dword v{t3}, v{t1}, s[{sWS}:{sWS+3}], s{sF} offen sc1
    s_mov_b32 exec_hi, -1""")
    stamp(a, 4, "P")
    a.label("f_dS")
    a(f"""v_bfe_u32 v{t1}, v{vL}, 2, 2
    v_add_u32 v{t1}, s{sT1}, v{t1}
    v_and_b32 v{t1}, 31, v{t1}
    v_lshlrev_b32 v{t1}, 7, v{t1}
    v_and_b32 v{t2}, 3, v{vL}
    v_lshl_add_u32 v{t1}, v{t2}, 3, v{t1}
    s_and_b32 s{sD}, s{sT1}, 7
    s_lshl_b32 s{sD}, s{sD}, 12
    s_add_u32 s{sD}, s{sD}, {FL1}""")
    tag_wait(a, "f_m2", t1, sD, 1, FR, sleep=2)
    vKM = 12
    a(f"""v_mov_b32 v{t1}, {F_S1F}
    v_mov_b32 v{t2}, 1
    ds_write_b32 v{t1}, v{t2}
    s_lshl_b32 s3, s{sT1}, 3
    s_add_u32 s3, s3, {KMG}
    v_and_b32 v{t2}, 7, v{vL}
    v_lshlrev_b32 v{t2}, 2, v{t2}
    buffer_load_dword v{vKM}, v{t2}, s[{sWS}:{sWS+3}], s3 offen sc1""")
    stamp(a, 5, "P")
    a.label("f_kv0")
    a.vm = []
    a(f"""v_and_b32 v{t1}, 15, v{vL}
    v_min_u32 v{t1}, 8, v{t1}
    v_lshlrev_b32 v{t1}, 2, v{t1}
    v_add_u32 v{t1}, {F_PRG}, v{t1}
    s_mul_i32 s{sA}, s{sT1}, {2*TILE}
    s_lshl_b32 s{sB}, s{sWave}, 12
    s_add_u32 m0, s{sB}, {LW}
    s_add_u32 s{sA}, s{sA}, s{sB}
    s_add_u32 s{sA}, s{sA}, {KVG}
    v_lshlrev_b32 v{t0}, 4, v{vL}""")
    lds_wait(a, "f_kv1", t1, t2, 1)
    for k in range(4): a(f"buffer_load_dwordx4 v{t0}, s[{sWS}:{sWS+3}], s{sA} offen offset:{1024*k} sc1 lds")
    a(f"""v_mov_b32 v{vF}, {F_S1}
    s_cmp_lg_u32 s{sWave}, 0
    s_cbranch_scc1 f_hd
    s_waitcnt vmcnt(4)""")
    wave_max(a, vKM, sC)
    a(f"""v_sqrt_f32 v{t3}, s{sC}
    v_mov_b32 v{t2}, {f2u(OFFS)}
    v_mov_b32 v{t1}, {F_KC}
    v_cvt_pk_bf16_f32 v{t3}, -v{t3}, v{t2}
    ds_write_b32 v{t1}, v{t3}
    v_lshrrev_b32 v{t1}, 2, v{vL}
    v_lshlrev_b32 v{t1}, 7, v{t1}
    v_and_b32 v{t2}, 3, v{vL}
    v_lshl_add_u32 v{t1}, v{t2}, 3, v{t1}
    buffer_load_dwordx2 v[{FR}:{FR+1}], v{t1}, s[{sWS}:{sWS+3}], s{sD} offen sc1
    buffer_load_dwordx2 v[{FR+2}:{FR+3}], v{t1}, s[{sWS}:{sWS+3}], s{sD} offen offset:2048 sc1
    v_mov_b32 v{t2}, 1
    s_waitcnt vmcnt(0)
    v_cmp_ne_u64 vcc, s[{sNon}:{sNon+1}], v[{FR}:{FR+1}]
    v_cmp_ne_u64 s[6:7], s[{sNon}:{sNon+1}], v[{FR+2}:{FR+3}]
    s_nop 0
    s_or_b64 vcc, vcc, s[6:7]
    s_waitcnt lgkmcnt(0)
    s_cbranch_vccnz f_m4
    ds_write_b32 v{vF}, v{t2}
    s_branch f_hd""")
    a.label("f_m4")
    a("s_barrier")
    tag_wait(a, "f_m3", t1, sD, 2, FR, step=2048)
    a(f"ds_write_b32 v{vF}, v{t2}\ns_branch f_h1")
    a.label("f_hd")
    a("s_waitcnt vmcnt(0) lgkmcnt(0)")
    stamp(a, 6, "P")
    a("s_barrier")
    a.label("f_h1")
    stamp(a, 4)
    lds_wait(a, "f_h2", vF, t1, 1, sleep=2)
    stamp(a, 1, "H")
    a(f"""s_lshl_b32 s3, s{sWave}, 2
    s_add_u32 s3, s3, {F_KV}
    v_mov_b32 v{vF}, s3""")
    def grp(src, dst, tag):
        a(f"s_add_u32 m0, s{sB}, {dst}\ns_add_u32 s3, s{sA}, {src}")
        for k in range(4): a.vmem(f"buffer_load_dwordx4 v{t0}, s[{sWS}:{sWS+3}], s3 offen offset:{1024*k} sc1 lds", tag)
    P2 = J1*TILE
    grp(16384, LW + 16384, "c1"); grp(32768, LW + 32768, "c2"); grp(P2, 0, "p0")
    ldflag("c1", 1)
    grp(P2 + 16384, 16384, "p1"); grp(P2 + 32768, 32768, "p2")
    ldflag("p0", 2)
    for i in (3, 4, 5): grp(P2 + 16384*i, 16384*i, f"p{i}")
    a(f"s_cmp_ge_u32 s{sWave}, 2\ns_cbranch_scc1 f_h3")
    grp(P2 + 16384*6, 16384*6, "p6")
    a.label("f_h3")
    a(f"v_mov_b32 v{t1}, 3\ns_waitcnt vmcnt(0)\nds_write_b32 v{vF}, v{t1}")
    a.vm = []
    stamp(a, 2, "H")
    srd(a, sRA, 34, 576*1152)
    a(f"""s_lshr_b32 s3, s2, 3
    s_lshl_b32 s3, s3, 2
    s_add_u32 s3, s3, s{sWave}
    s_mul_i32 s3, s3, {41*128}
    v_min_u32 v{t1}, 40, v{vL}
    v_lshlrev_b32 v{t1}, 7, v{t1}
    buffer_load_dword v{t2}, v{t1}, s[{sRA}:{sRA+3}], s3 offen""")
    def all_tags(lab, area, flag, tmp, sleep):
        a(f"v_mov_b32 v{vF}, {flag}\ns_cmp_lg_u32 s{sWave}, 3\ns_cbranch_scc1 {lab}_x")
        a(f"""v_lshrrev_b32 v{t1}, 3, v{vL}
        v_lshlrev_b32 v{t1}, 7, v{t1}
        v_and_b32 v{t3}, 7, v{vL}
        v_lshl_add_u32 v{t1}, v{t3}, 3, v{t1}
        s_and_b32 s{sD}, s{sT1}, 7
        s_lshl_b32 s{sD}, s{sD}, 12
        s_add_u32 s{sD}, s{sD}, {area}""")
        tag_wait(a, lab, t1, sD, 4, tmp, sleep=sleep)
    H, R, RING = 16, 32, 48
    sS2, sGrp = 70, 71
    all_tags("f_s0", FL0, F_S0, RING, 4)
    a(f"v_mov_b32 v{t1}, 1\nds_write_b32 v{vF}, v{t1}")
    a.label("f_s0_x")
    a.vm = []
    load_rf(a, R, vL, t0, "f_rf1")
    a(f"""s_and_b32 s{sS2}, s{sJ}, 1
    s_lshl_b32 s{sS2}, s{sS2}, 5
    s_add_u32 s{sS2}, s{sS2}, s{sT1}
    s_lshr_b32 s{sGrp}, s{sJ}, 1
    s_lshl_b32 s{sGrp}, s{sGrp}, 2
    s_add_u32 s{sGrp}, s{sGrp}, s{sWave}
    s_mul_i32 s{sA}, s2, 36864
    s_add_u32 s{sA}, s{sA}, {XF}
    s_mul_i32 s{sB}, s{sGrp}, 9
    s_add_u32 s{sB}, s{sB}, s{sRot}
    s_lshl_b32 s{sB}, s{sB}, 12
    s_add_u32 s{sB}, s{sB}, {DF}
    s_mov_b32 s{sC}, s{sRot}
    v_and_b32 v{t3}, 7, v{vL}
    v_lshlrev_b32 v{t3}, 2, v{t3}
    v_add_u32 v{t3}, {F_PRG}, v{t3}""")
    ND = 8
    def ld(ks):
        r = RING + 8 * (ks % ND)
        a.vmem(f"buffer_load_dwordx4 v[{r}:{r+3}], v{t0}, s[{sWS}:{sWS+3}], s{sA} offen offset:{(ks&3)*1024}", f"j{ks}")
        a.vmem(f"buffer_load_dwordx4 v[{r+4}:{r+7}], v{t0}, s[{sWS}:{sWS+3}], s{sB} offen offset:{(ks&3)*1024} {'' if 'dfplain' in EXP else 'sc1'}", f"j{ks}")
        if ks & 3 == 3:
            a(f"""s_add_u32 s{sA}, s{sA}, 4096
            s_add_u32 s{sC}, s{sC}, 1
            s_cmp_eq_u32 s{sC}, 9
            s_cselect_b32 s3, 36864, 0
            s_sub_u32 s{sB}, s{sB}, s3
            s_add_u32 s{sB}, s{sB}, 4096""")
    lds_wait(a, "f_h4", t3, t1, 2, sleep=4)
    lds_wait(a, "f_h4a", vF, t1, 1, sleep=4)
    stamp(a, 5); stamp(a, 3, "H")
    if 'nojob' not in EXP:
        for ks in range(ND): ld(ks)
        for ks in range(36):
            r = RING + 8 * (ks % ND)
            a.vm_wait(f"j{ks}")
            a(f"v_mfma_f32_32x32x16_bf16 v[{H}:{H+15}], v[{r}:{r+3}], v[{r+4}:{r+7}], " + ("0" if ks == 0 else f"v[{H}:{H+15}]"))
            if ks + ND < 36: ld(ks + ND)
        stamp(a, 4, "H")
        a("s_nop 11")
        G0.fnet_tail(a, H, RING, RING+16, R, RING+32, vL, sWS, sS2, sGrp, 72, "f_nony", sc="" if 'gtplain' in EXP else "sc1")
    last_wave_signals(a, "f_h5", F_CNT2, 4, FL2, 8, t1, t2)
    stamp(a, 6)
    vK, vC, vS, vG, vTr, vPr = 2, 5, 12, 15, 6, 7
    vC = 24
    ACC, W2, OB, AR = 16, 36, 52, 124
    vK = 28
    sRb, sCol = 70, 71
    for i in range(3):
        a(f"s_add_u32 s{sC}, s{sWave}, {4*i}")
        dense_pos(a, sC, t1, vC+i, t2)
        a(f"""v_and_b32 v{t2}, 1, v{t1}
        v_bfe_u32 v{t3}, v{t1}, 1, 2
        v_and_b32 v{t1}, 56, v{t1}
        v_lshl_add_u32 v{t1}, v{t2}, 2, v{t1}
        v_add_u32 v{vK+i}, v{t1}, v{t3}
        v_lshrrev_b32 v{t2}, 4, v{vK+i}
        v_lshl_add_u32 v{t2}, v{t2}, 1, v{vK+i}
        s_movk_i32 s3, 1152
        v_mad_u32_u24 v{vS+i}, v{t2}, s3, v{vC+i}""")
    a(f"""s_lshr_b32 s{sRb}, s{sWave}, 1
    s_lshl_b32 s{sRb}, s{sRb}, 5
    s_add_u32 s{sRb}, s{sRb}, s{sT1}
    s_mul_i32 s{sCol}, s{sJ}, 144
    s_lshl_b32 s{sC}, s{sWave}, 10
    v_and_b32 v{vPr}, 7, v{vL}
    v_lshlrev_b32 v{vPr}, 2, v{vPr}
    v_add_u32 v{vPr}, {F_PRG}, v{vPr}""")
    srd(a, sRB, 18, 2048*4096); srd(a, sRC, 20, 2048*4096); srd(a, sRD, 38, 2048*1152)
    a(f"""v_and_b32 v{t0}, 15, v{vL}
    s_and_b32 s{sA}, s{sWave}, 1
    s_lshl_b32 s{sA}, s{sA}, 4
    v_add_u32 v{t0}, s{sA}, v{t0}
    v_lshlrev_b32 v{t1}, 18, v{t0}
    v_lshrrev_b32 v{t2}, 4, v{vL}
    v_lshl_add_u32 v{t1}, v{t2}, 4, v{t1}
    s_lshl_b32 s{sA}, s{sRb}, 12""")
    for k in range(4):
        r = sRB if k < 2 else sRC
        a(f"buffer_load_dwordx4 v[{W2+4*k}:{W2+4*k+3}], v{t1}, s[{r}:{r+3}], s{sA} offen offset:{64*(k&1)}")
    nds = [0]
    def dstep(dst, r, sc=""):
        nds[0] += 1
        for i in range(3):
            if i == 2: a(f"s_cmp_lg_u32 s{sWave}, 0\ns_cbranch_scc1 f_ds{nds[0]}")
            a(f"s_add_u32 m0, s{sC}, {dst + 4096*i}\ns_nop 0")
            a(f"buffer_load_dwordx4 v{vS+i}, s[{r}:{r+3}], s{sB} offen {sc} lds")
        a.label(f"f_ds{nds[0]}")
    def dsaddr(m): return LW + 9216*m if m < 5 else 9216*(m - 5)
    def wo_step(m):
        a(f"s_add_u32 s{sB}, s{sJ}, {m}\ns_and_b32 s{sB}, s{sB}, 7\ns_mul_i32 s{sB}, s{sB}, {72*1152}\ns_add_u32 s{sB}, s{sB}, s{sCol}")
        dstep(dsaddr(m), sRA)
    lds_wait(a, "f_t1", vPr, t1, 3, sleep=16)
    for m in range(5): wo_step(m)
    lds_wait(a, "f_t3", vPr, t1, 4, sleep=16)
    for m in range(5, 8): wo_step(m)
    for i in range(3):
        a(f"""v_lshrrev_b32 v{t2}, 1, v{vK+i}
        v_lshl_add_u32 v{t2}, v{t2}, 4, v{vK+i}
        v_add_u32 v{t2}, 16, v{t2}
        s_movk_i32 s3, 1152
        v_mad_u32_u24 v{vS+i}, v{t2}, s3, v{vC+i}""")
    all_tags("f_t6", FL2, F_S2, OB, 8)
    a(f"""v_and_b32 v{t1}, 31, v{vL}
    v_lshrrev_b32 v{t2}, 5, v{vL}
    v_lshlrev_b32 v{t1}, 2, v{t1}
    v_lshl_add_u32 v{t1}, v{t2}, 12, v{t1}
    s_lshl_b32 s3, s{sT1}, 7
    s_add_u32 s3, s3, {GG}
    buffer_load_dword v{t2}, v{t1}, s[{sWS}:{sWS+3}], s3 offen sc1
    v_lshlrev_b32 v{t1}, 2, v{vL}
    v_add_u32 v{t1}, {F_G}, v{t1}
    v_mov_b32 v{t3}, 1
    s_waitcnt vmcnt(0)
    ds_write_b32 v{t1}, v{t2}
    ds_write_b32 v{vF}, v{t3}
    s_cmp_lg_u32 s2, 0
    s_cbranch_scc1 f_t6_x
    v_mov_b32 v{t1}, {EP}
    v_mov_b32 v{t2}, s{sNon}
    v_mov_b32 v{t3}, s{sNon+1}
    s_mov_b64 exec, 1
    buffer_store_dwordx2 v[{t2}:{t3}], v{t1}, s[{sWS}:{sWS+3}], 0 offen
    s_mov_b64 exec, -1""")
    a.label("f_t6_x")
    stamp(a, 5, "H")
    lds_wait(a, "f_t7", vPr, t1, 5, sleep=8)
    a(f"s_mov_b32 s{sB}, s{sCol}")
    dstep(dsaddr(8), sRA)
    for i in range(3): a(f"s_movk_i32 s3, {GP}\nv_mad_u32_u24 v{vS+i}, v{vK+i}, s3, v{vC+i}")
    a(f"""s_mul_i32 s{sB}, s{sT1}, {128*GP}
    s_add_u32 s{sB}, s{sB}, {GT}
    s_add_u32 s{sB}, s{sB}, s{sCol}
    s_lshr_b32 s3, s{sWave}, 1
    s_lshl_b32 s3, s3, 7
    s_add_u32 s3, s3, {F_G}
    v_lshlrev_b32 v{t0}, 2, v{t0}
    v_add_u32 v{t0}, s3, v{t0}""")
    lds_wait(a, "f_t8", vF, t1, 1, sleep=4)
    a(f"ds_read_b32 v{vG}, v{t0}")
    dstep(dsaddr(9), sWS, "sc1")
    a(f"s_add_u32 s{sB}, s{sB}, {64*GP}")
    dstep(dsaddr(10), sWS, "sc1")
    a(f"""s_lshl_b32 s3, s{sWave}, 2
    s_add_u32 s3, s3, {F_TA}
    v_mov_b32 v{t0}, s3
    v_mov_b32 v{t1}, 1
    v_and_b32 v{vF}, 3, v{vL}
    v_lshlrev_b32 v{vF}, 2, v{vF}
    v_add_u32 v{vF}, {F_TA}, v{vF}
    v_lshrrev_b32 v{t2}, 4, v{vL}
    v_bfe_u32 v{t3}, v{vL}, 2, 2
    v_lshl_add_u32 v{t2}, v{t2}, 2, v{t3}
    v_mul_u32_u24 v{t2}, 288, v{t2}
    v_and_b32 v{t3}, 3, v{vL}
    v_lshl_add_u32 v{vTr}, v{t3}, 3, v{t2}
    v_add_u32 v{vPr}, {LW}, v{vTr}
    s_waitcnt vmcnt(0)
    ds_write_b32 v{t0}, v{t1}""")
    lds_wait(a, "f_t9", vF, t1, 1, sleep=2)
    stamp(a, 6, "H")
    NR = 7
    def rd(f):
        ks, mu = divmod(f, 5)
        m = 9 + (ks >> 1) if ks < 4 else (ks - 4) >> 1
        v, o = (vPr, 9216*m) if m < 5 else (vTr, 9216*(m - 5))
        o += 4608*(ks & 1) + 32*mu
        r = AR + 4 * (f % 8)
        a(f"ds_read_b64_tr_b16 v[{r}:{r+1}], v{v} offset:{o}")
        a(f"ds_read_b64_tr_b16 v[{r+2}:{r+3}], v{v} offset:{o+144}")
    for f in range(NR): rd(f)
    for f in range(110):
        ks, mu = divmod(f, 5)
        if f == 20:
            a("s_nop 3")
            for r in range(20): a(f"v_mul_f32 v{ACC+r}, v{ACC+r}, v{vG}")
            a(f"""v_and_b32 v{t1}, 7, v{vL}
            v_lshlrev_b32 v{t1}, 3, v{t1}
            s_lshl_b32 s{sD}, s{sWave}, 12
            s_lshl_b32 s3, s{sT1}, 7
            s_add_u32 s{sD}, s{sD}, s3
            s_add_u32 s{sD}, s{sD}, {FL3}
            s_lshl_b32 s{sA}, s{sT1}, 2
            s_add_u32 s{sA}, s{sA}, s{sWave}
            s_mul_i32 s{sA}, s{sA}, 18432
            s_add_u32 s{sA}, s{sA}, {OF}
            v_lshlrev_b32 v{t0}, 4, v{vL}""")
            stamp12(a, 1)
            a(f"v_mov_b32 v{vF}, {F_CNT3}")
            lds_wait(a, "f_t11", vF, t2, 8, sleep=1)
            tag_wait(a, "f_t10", t1, sD, 1, W2, sleep=1)
            stamp12(a, 2)
            for k in range(18):
                if k & 1 == 0:
                    if k < 16: a(f"s_add_u32 s3, s{sJ}, {k//2}\ns_and_b32 s3, s3, 7\ns_lshl_b32 s3, s3, 11\ns_add_u32 s3, s3, s{sA}")
                    else: a(f"s_add_u32 s3, s{sA}, 16384")
                a.vmem(f"buffer_load_dwordx4 v[{OB+4*k}:{OB+4*k+3}], v{t0}, s[{sWS}:{sWS+3}], s3 offen offset:{(k&1)*1024} {'' if 'oplain' in EXP else 'sc1'}", f"o{k}")
        if ks >= 4 and mu == 0: a.vm_wait(f"o{ks-4}")
        n = min(110, f + NR) - f - 1
        a(f"s_waitcnt lgkmcnt({2*n})")
        r = AR + 4 * (f % 8)
        B = W2 + 4*ks if ks < 4 else OB + 4*(ks-4)
        ac = ACC + 4*mu
        a(f"v_mfma_f32_16x16x32_bf16 v[{ac}:{ac+3}], v[{r}:{r+3}], v[{B}:{B+3}], " + ("0" if ks == 0 else f"v[{ac}:{ac+3}]"))
        if f + NR < 110: rd(f + NR)
    stamp12(a, 3)
    a(f"""s_mul_i32 s{sA}, s{sWave}, 2304
    s_add_u32 s{sA}, s{sA}, {56*1024}
    v_and_b32 v{t1}, 15, v{vL}
    v_mul_u32_u24 v{t1}, 144, v{t1}
    v_lshrrev_b32 v{t2}, 4, v{vL}
    v_lshl_add_u32 v{t1}, v{t2}, 3, v{t1}
    v_add_u32 v{t1}, s{sA}, v{t1}
    v_add_u32 v{t0}, s{sA}, v{t0}""")
    for mu in range(5):
        ac = ACC + 4*mu
        a(f"v_cvt_pk_bf16_f32 v{W2+2*mu}, v{ac}, v{ac+1}\nv_cvt_pk_bf16_f32 v{W2+2*mu+1}, v{ac+2}, v{ac+3}")
        if mu == 4: a("s_mov_b32 exec_hi, 0")
        a(f"ds_write_b64 v{t1}, v[{W2+2*mu}:{W2+2*mu+1}] offset:{32*mu}")
    a(f"""s_mov_b32 exec_hi, -1
    s_and_b32 s{sA}, s{sWave}, 1
    s_mul_i32 s{sA}, s{sA}, {16*73728}
    s_mul_i32 s{sB}, s{sRb}, 1152
    s_add_u32 s{sA}, s{sA}, s{sB}
    s_add_u32 s{sA}, s{sA}, s{sCol}
    s_mov_b32 s{sB}, {73728-144}
    s_waitcnt lgkmcnt(0)""")
    for it in range(3): a(f"ds_read_b128 v[{OB+4*it}:{OB+4*it+3}], v{t0} offset:{1024*it}")
    for it in range(3):
        a(f"""v_add_u32 v{t1}, {64*it}, v{vL}
        v_mul_u32_u24 v{t2}, 7282, v{t1}
        v_lshrrev_b32 v{t2}, 16, v{t2}
        v_lshlrev_b32 v{t1}, 4, v{t1}
        v_mad_u32_u24 v{12+it}, v{t2}, s{sB}, v{t1}""")
    for it in range(3):
        a(f"s_waitcnt lgkmcnt({2-it})")
        if it == 2: a("s_mov_b64 exec, 0xffff")
        a(f"buffer_store_dwordx4 v[{OB+4*it}:{OB+4*it+3}], v{12+it}, s[{sRD}:{sRD+3}], s{sA} offen {'sc1' if 'outsc1' in EXP else 'nt' if 'outnt' in EXP else 'sc0 sc1' if 'outsys' in EXP else ''}")
    G0.stamp_end(a, 0, sWS, sWave)
    a("s_endpgm")

    a.label("f_att")
    a.vm = []
    Q1, Q2, vG, aK, ak, aV = 4, 8, 10, 11, 12, 13
    vt0, vt1, vt2, vt3 = 2, 3, 14, 15
    O, S, P, K1, K2, V = 16, [32, 48], [64, 72], [80, 84], [88, 90], [92, 100]
    aF, aP = 108, 109
    vW, vR0, vR1, vA0, vA1 = 110, 111, 112, 113, 114
    sW8, sRho, sHd = 70, 71, 72
    vDF, vP, vSt = 116, 132, 115
    sXf, sXa = 75, 76
    a("s_barrier")
    a(f"s_sub_u32 s{sW8}, s{sWave}, 4")
    a("s_getpc_b64 s[4:5]")
    a.label("f_pf")
    a(f"""s_sub_u32 s4, s4, f_pf-f_code
    s_subb_u32 s5, s5, 0
    s_lshr_b32 s3, s2, 3
    s_lshl_b32 s6, s{sW8}, 6
    s_add_u32 s3, s3, s6
    v_lshlrev_b32 v{vt0}, 5, v{vL}
    v_add_u32 v{vt0}, s3, v{vt0}
    v_lshlrev_b32 v{vt0}, 7, v{vt0}
    v_min_u32 v{vt0}, rf_end-f_code-4, v{vt0}
    s_mov_b64 exec, 3
    global_load_dword v{vW}, v{vt0}, s[4:5]
    s_mov_b64 exec, -1""")
    xread(a, vR0, vR1, vt0, vt1)
    a(f"""s_lshr_b32 s{sRho}, s{sW8}, 2
    s_and_b32 s{sHd}, s{sW8}, 3
    s_mul_i32 s3, s{sRho}, 36864
    v_add_u32 v{vR0}, s3, v{vR0}
    v_xor_b32 v{vR1}, 32, v{vR0}
    s_bitcmp1_b32 s{sHd}, 0
    s_mov_b32 s{sB}, 0x34343120
    s_mov_b32 s{sC}, {LW}
    s_cmov_b32 s{sB}, 0x44423120
    s_cmov_b32 s{sC}, {LW-4}
    s_mul_i32 s3, s{sHd}, 36
    s_add_u32 s{sC}, s{sC}, s3
    v_bfe_u32 v{vt0}, v{vL}, 4, 1
    v_and_b32 v{vt1}, 3, v{vL}
    v_lshl_add_u32 v{vt0}, v{vt0}, 2, v{vt1}
    v_lshlrev_b32 v{vt0}, 2, v{vt0}
    v_lshrrev_b32 v{vt0}, v{vt0}, s{sB}
    v_and_b32 v{vt0}, 15, v{vt0}
    v_bfe_u32 v{vt1}, v{vL}, 2, 2
    v_lshrrev_b32 v{vt3}, 5, v{vL}
    v_lshl_add_u32 v{vt1}, v{vt1}, 1, v{vt3}
    v_mul_u32_u24 v{vt1}, 288, v{vt1}
    v_lshl_add_u32 v{vA0}, v{vt0}, 3, v{vt1}
    v_add_u32 v{vA0}, s{sC}, v{vA0}
    v_subrev_u32 v{vA1}, {LW-LD}, v{vA0}
    v_and_b32 v{aF}, 3, v{vL}
    v_min_u32 v{aF}, 2, v{aF}
    v_lshlrev_b32 v{aF}, 2, v{aF}
    v_add_u32 v{aF}, {F_LD}, v{aF}
    v_and_b32 v{vt2}, 31, v{vL}
    v_lshlrev_b32 v{ak}, 2, v{vt2}
    s_lshl_b32 s3, s{sW8}, 2
    s_add_u32 s3, s3, {F_PRG}
    v_mov_b32 v{aP}, s3
    v_lshlrev_b32 v{vSt}, 4, v{vL}
    v_add_u32 v{aK}, {LW}, v{vSt}
    v_add_u32 v{ak}, {LW+1024}, v{ak}
    v_cmp_eq_u32 vcc, 28, v{vt2}
    v_mul_u32_u24 v{vt0}, 19, v{vt3}
    s_and_b32 s3, s{sJ}, 1
    v_cndmask_b32 v{aV}, v{vt2}, 18, vcc
    v_cmp_gt_u32 vcc, 19, v{aV}
    v_add_u32 v{aV}, v{aV}, v{vt0}
    s_cmp_eq_u32 s3, s{sRho}
    v_cndmask_b32 v{aV}, 38, v{aV}, vcc
    v_lshlrev_b32 v{aV}, 4, v{aV}
    v_add_u32 v{aV}, {LW+1152}, v{aV}
    s_cselect_b32 s{sXa}, s{sHd}, 9
    s_mul_i32 s{sXf}, s2, 36864
    s_add_u32 s{sXf}, s{sXf}, {XF}""")
    common_srd()
    a(f"""s_cmp_lt_u32 s2, 144
    s_cselect_b32 s{sD}, s{sW8}, 1
    s_cmp_lg_u32 s{sD}, 0
    s_cbranch_scc1 f_a0
    s_mul_i32 s{sA}, s2, 7282
    s_lshr_b32 s{sA}, s{sA}, 16
    s_mul_i32 s{sB}, s{sA}, 9
    s_sub_u32 s{sB}, s2, s{sB}""")
    dft_ptr(a, vP, sA, vt0, vt1, vt2)
    a(f"s_lshl_b32 s{sB}, s{sB}, 7\nv_add_co_u32 v{vP}, vcc, s{sB}, v{vP}\ns_nop 1\nv_addc_co_u32 v{vP+1}, vcc, 0, v{vP+1}, vcc")
    for k in range(4): a(f"global_load_dwordx4 v[{vDF+4*k}:{vDF+4*k+3}], v[{vP}:{vP+1}], off offset:{32*k}")
    a(f"s_lshl_b32 s{sA}, s2, 12\ns_add_u32 s{sA}, s{sA}, {DF}\ns_waitcnt vmcnt(0)")
    for k in range(4): a(f"buffer_store_dwordx4 v[{vDF+4*k}:{vDF+4*k+3}], v{vSt}, s[{sWS}:{sWS+3}], s{sA} offen offset:{1024*k} sc1")
    a.label("f_a0")
    stamp(a, 1, "P")
    QA, QR = S[0], 64
    for c in range(9):
        if c: a(f"v_cmp_gt_i32 vcc, {QF + c}, v{vt0}\ns_cbranch_vccz f_q{c}_ok")
        lds_wait(a, f"f_q{c}", aF, vt0, QF + c)
        a.label(f"f_q{c}_ok")
        if c == 0: nonce(); stamp(a, 1); stamp(a, 2, "P")
        if c == 5: stamp(a, 3, "P")
        v, o = (vA0, 9216*c) if c < 5 else (vA1, 9216*(c-5))
        for i in range(4):
            b, ks = QR + 8*i, 4*c + i
            a(f"ds_read_b64_tr_b16 v[{b}:{b+1}], v{v} offset:{o + 2304*i}")
            a(f"ds_read_b64_tr_b16 v[{b+2}:{b+3}], v{v} offset:{o + 2304*i + 144}")
            a(f"ds_read_b128 v[{b+4}:{b+7}], v{vR1 if ks & 1 else vR0} offset:{2048*(ks>>1)}")
        for i in range(4):
            b, ks = QR + 8*i, 4*c + i
            if i == 3 and c < 8: a(f"ds_read_b32 v{vt0}, v{aF}")
            a(f"s_waitcnt lgkmcnt({9 - 3*i + (i == 3 and c < 8)})")
            a(f"v_mfma_f32_32x32x16_bf16 v[{QA}:{QA+15}], v[{b}:{b+3}], v[{b+4}:{b+7}], " + ("0" if ks == 0 else f"v[{QA}:{QA+15}]"))
        if c == 4: a(f"v_mov_b32 v{vt1}, 1\nds_write_b32 v{aP}, v{vt1}")
        for q in sorted({ks // 9 for ks in range(4*c, 4*c + 4)}):
            a(f"s_cmp_lg_u32 s{sXa}, {q}\ns_cbranch_scc1 f_x{c}_{q}")
            for i in range(4):
                if (4*c + i) // 9 == q: a(f"buffer_store_dwordx4 v[{QR+8*i+4}:{QR+8*i+7}], v{vSt}, s[{sWS}:{sWS+3}], s{sXf} offen offset:{1024*i} {'sc1' if 'xfsc1' in EXP else 'nt' if 'xfnt' in EXP else ''}")
            a.label(f"f_x{c}_{q}")
        a(f"s_add_u32 s{sXf}, s{sXf}, 4096\ns_waitcnt lgkmcnt(0)")
    stamp(a, 4, "P")
    for r in range(16): a(f"v_mov_b32 v{O+r}, 0")
    a(f"s_mov_b32 s{sB}, {f2u(CQ)}\ns_bitcmp1_b32 s{sHd}, 0\ns_cbranch_scc1 f_qodd")
    T = S[1]
    def qmove(r0, rx):
        for r in range(8): a(f"v_mul_f32 v{T+r}, s{sB}, v{QA+r0+r}")
        for r in range(2): a(f"v_mul_f32 v{T+8+r}, s{sB}, v{QA+rx+r}")
    qmove(0, 8)
    a("s_branch f_qdone")
    a.label("f_qodd")
    qmove(2, 14)
    a.label("f_qdone")
    for r in range(2): a(f"v_cndmask_b32 v{T+8+r}, v{T+8+r}, 0, s[{sHi}:{sHi+1}]")
    a(f"v_mul_f32 v{vt0}, v{T}, v{T}")
    for r in range(1, 10): a(f"v_fmac_f32 v{vt0}, v{T+r}, v{T+r}")
    for k in range(5): a(f"v_cvt_pk_bf16_f32 v{Q1+k}, v{T+2*k}, v{T+2*k+1}")
    a(f"v_mov_b32 v{vt1}, v{vt0}")
    a(f"""v_and_b32 v{aF}, 3, v{vL}
    v_lshlrev_b32 v{aF}, 2, v{aF}
    v_permlane32_swap_b32 v{vt0}, v{vt1}
    v_add_u32 v{aF}, {F_KV}, v{aF}
    v_add_f32 v{vt0}, v{vt0}, v{vt1}
    v_sqrt_f32 v{vt0}, v{vt0}
    v_mov_b32 v{vt2}, {F_KC}
    v_cvt_pk_bf16_f32 v{Q2+1}, v{vt0}, 1.0
    v_cndmask_b32 v{Q2+1}, v{Q2+1}, 0, s[{sHi}:{sHi+1}]""")
    stamp(a, 6, "P")
    a(f"""s_barrier
    s_setprio {PRIO[0]}""")
    stamp(a, 3)
    base = {aK: LW, ak: LW, aV: LW}
    def off(v, j, extra=0):
        o = ltile(j) + extra - base[v]
        if not 0 <= o < 65536:
            nb = ltile(j)
            a(f"v_add_u32 v{v}, {(nb - base[v]) & 0xffffffff}, v{v}")
            base[v] = nb; o = extra
        return o
    rdK = lambda j: f"ds_read_b128 v[{K1[j&1]}:{K1[j&1]+3}], v{aK} offset:{off(aK, j)}"
    rdk = lambda j: f"ds_read_b32 v{K2[j&1]}, v{ak} offset:{off(ak, j)}"
    rdV = lambda j, u: f"ds_read_b128 v[{V[j&1]+4*u}:{V[j&1]+4*u+3}], v{aV} offset:{off(aV, j, 624) - 624*(1-u)}"
    def M1(j): return f"v_mfma_f32_32x32x16_bf16 v[{S[j&1]}:{S[j&1]+15}], v[{K1[j&1]}:{K1[j&1]+3}], v[{Q1}:{Q1+3}], 0"
    def M2(j): return f"v_mfma_f32_32x32x8_bf16 v[{S[j&1]}:{S[j&1]+15}], v[{K2[j&1]}:{K2[j&1]+1}], v[{Q2}:{Q2+1}], v[{S[j&1]}:{S[j&1]+15}]"
    def M3(j, u): return f"v_mfma_f32_32x32x16_bf16 v[{O}:{O+15}], v[{V[j&1]+4*u}:{V[j&1]+4*u+3}], v[{P[j&1]+4*u}:{P[j&1]+4*u+3}], v[{O}:{O+15}]"
    a(rdK(0)); a(rdk(0)); a(f"ds_read_b32 v{K2[0]+1}, v{vt2}"); a(rdK(1)); a(rdk(1)); a(f"ds_read_b32 v{K2[1]+1}, v{vt2}")
    a("s_waitcnt lgkmcnt(3)")
    a(M1(0)); a(M2(0))
    a("s_waitcnt lgkmcnt(0)\ns_nop 8")
    FCHK = {4: 1, 11: 2, 24: 3}
    PRG = {3: 2, 20: 3, 32: 4, 44: 5}
    for j in range(64):
        if j in PRIO and j: a(f"s_setprio {PRIO[j]}")
        if j == 32: stamp(a, 4)
        if j == 3: a("s_waitcnt vmcnt(0)")
        if j in PRG: a(f"v_mov_b32 v{vt1}, {PRG[j]}\nds_write_b32 v{aP}, v{vt1}")
        if j == 3:
            a(f"s_cmp_lg_u32 s{sW8}, 0\ns_cbranch_scc1 f_a3")
            tag_signal(a, FL0, 8, vt0, vt2)
            a.label("f_a3")
        if j in FCHK: lds_wait(a, f"f_w{j}", aF, vt0, FCHK[j])
        s, p = S[j & 1], P[j & 1]
        e = lambda i: f"v_exp_f32 v{s+i}, v{s+i}"
        c = lambda i: f"v_cvt_pk_bf16_f32 v{p+i}, v{s+2*i}, v{s+2*i+1}"
        nx, pv, ld = j + 1 < 64, j > 0, j + 2 < 64
        L = []
        if ld: lk, lk2 = rdK(j+2), rdk(j+2)
        lv0, lv1 = rdV(j, 0), rdV(j, 1)
        if nx: L.append(M1(j+1))
        if ld: L.append(lk)
        L += [e(0), e(1), e(2), e(3), c(0)]
        if nx: L.append(M2(j+1))
        if ld: L.append(lk2)
        L += [e(4), e(5), c(1), e(6), e(7), c(2)]
        if pv: L.append(M3(j-1, 0))
        L += [lv0, lv1]
        L += [e(8), e(9), c(3), e(10), e(11), c(4)]
        if pv: L.append(M3(j-1, 1))
        L += [e(12), e(13), c(5), e(14), e(15), c(6), c(7), "s_waitcnt lgkmcnt(0)"]
        for x in L: a(x)
    a("s_nop 0"); a(M3(63, 0)); a(M3(63, 1))
    stamp(a, 5)
    sO, sHead = 74, 73
    a(f"""s_lshl_b32 s3, s{sRho}, 7
    s_add_u32 s3, s3, {F_G}
    v_and_b32 v{vt0}, 31, v{vL}
    v_lshlrev_b32 v{vt0}, 2, v{vt0}
    v_add_u32 v{vt0}, s3, v{vt0}
    v_mov_b32 v{aF}, {F_S2}""")
    lds_wait(a, "f_a4", aF, vt1, 1)
    a(f"""ds_read_b32 v{vG}, v{vt0}
    s_lshl_b32 s{sHead}, s{sJ}, 2
    s_add_u32 s{sHead}, s{sHead}, s{sHd}
    s_lshl_b32 s{sA}, s{sT1}, 2
    s_lshl_b32 s{sB}, s{sRho}, 1
    s_add_u32 s{sA}, s{sA}, s{sB}
    s_mul_i32 s{sA}, s{sA}, 18432
    s_add_u32 s{sA}, s{sA}, {OF}
    s_lshr_b32 s{sB}, s{sHead}, 1
    s_lshl_b32 s{sB}, s{sB}, 10
    s_and_b32 s{sC}, s{sHead}, 1
    s_lshl_b32 s{sC}, s{sC}, 9
    s_add_u32 s{sB}, s{sB}, s{sC}
    s_add_u32 s{sO}, s{sA}, s{sB}
    s_lshr_b32 s{sB}, s{sHead}, 2
    s_lshl_b32 s{sB}, s{sB}, 8
    s_lshl_b32 s{sC}, s{sHd}, 2
    s_add_u32 s{sB}, s{sB}, s{sC}
    s_add_u32 s{sB}, s{sB}, 16384
    s_add_u32 s{sO+1}, s{sA}, s{sB}""")
    vl = S[0]
    a(f"v_cndmask_b32 v{vl}, v{O+10}, v{O+12}, s[{sHi}:{sHi+1}]")
    a(f"v_add_f32 v{vt0}, |v{O}|, |v{O+1}|")
    for r in range(2, 10): a(f"v_add_f32 v{vt0}, |v{O+r}|, v{vt0}")
    a(f"""v_add_f32 v{vt0}, v{vl}, v{vt0}
    v_cmp_le_f32 vcc, {f2u(LMIN)}, v{vl}
    v_mov_b32 v{vt1}, 0x7f800000
    v_cmp_lt_f32 s[6:7], v{vt0}, v{vt1}
    s_waitcnt lgkmcnt(0)
    s_and_b64 vcc, vcc, s[6:7]
    s_cmp_eq_u64 vcc, exec
    s_cbranch_scc0 f_fallback""")
    a.label("f_norm")
    a(f"""v_rcp_f32 v{vl}, v{vl}
    v_sub_f32 v{vG}, 1.0, v{vG}
    v_and_b32 v{vt0}, 15, v{vL}
    v_lshlrev_b32 v{vt0}, 4, v{vt0}
    v_mul_f32 v{vl}, v{vl}, v{vG}
    v_bfe_u32 v{vt1}, v{vL}, 4, 1
    v_mul_u32_u24 v{vt1}, 18432, v{vt1}
    v_add_u32 v{vt0}, v{vt0}, v{vt1}
    v_lshrrev_b32 v{vt1}, 5, v{vL}
    v_lshl_add_u32 v{vt1}, v{vt1}, 8, v{vt0}""")
    for r in range(10): a(f"v_mul_f32 v{O+r}, v{O+r}, v{vl}")
    for k in range(5): a(f"v_cvt_pk_bf16_f32 v{P[0]+k}, v{O+2*k}, v{O+2*k+1}")
    a(f"""buffer_store_dwordx4 v[{P[0]}:{P[0]+3}], v{vt1}, s[{sWS}:{sWS+3}], s{sO} offen sc1
    s_mov_b32 exec_hi, 0
    buffer_store_dword v{P[0]+4}, v{vt0}, s[{sWS}:{sWS+3}], s{sO+1} offen sc1
    s_mov_b32 exec_hi, -1""")
    last_wave_signals(a, "f_a9", F_CNT3, 8, FL3, 4, vt0, vt2)
    G0.stamp_end(a, 0, sWS, sWave)
    a("s_endpgm")
    a.label("f_fallback")
    s0 = S[0]
    a(f"""v_subrev_u32 v{aK}, {base[aK]}, v{aK}
    v_subrev_u32 v{ak}, {base[ak]}, v{ak}
    v_subrev_u32 v{aV}, {base[aV]}, v{aV}
    v_mov_b32 v{K2[0]+1}, 0
    v_mov_b32 v{vt0}, 0xff800000
    s_mov_b32 s{sA}, {KVG}""")
    a.label("f_fb1")
    a(f"""buffer_load_dwordx4 v[{K1[0]}:{K1[0]+3}], v{aK}, s[{sWS}:{sWS+3}], s{sA} offen sc1
    buffer_load_dword v{K2[0]}, v{ak}, s[{sWS}:{sWS+3}], s{sA} offen sc1
    s_waitcnt vmcnt(0)""")
    a(M1(0)); a(M2(0)); a("s_nop 11")
    for r in range(0, 16, 2): a(f"v_max3_f32 v{vt0}, v{s0+r}, v{s0+r+1}, v{vt0}")
    a(f"""s_add_u32 s{sA}, s{sA}, {TILE}
    s_cmp_lt_u32 s{sA}, {KVG+64*TILE}
    s_cbranch_scc1 f_fb1
    v_mov_b32 v{vt1}, v{vt0}
    s_nop 1
    v_permlane32_swap_b32 v{vt0}, v{vt1}
    v_max_f32 v{vt0}, v{vt0}, v{vt1}
    v_cvt_pk_bf16_f32 v{vt1}, v{vt0}, v{vt0}
    v_and_b32 v{vt1}, 0xffff0000, v{vt1}
    v_sub_f32 v{vt0}, v{vt0}, v{vt1}
    v_cvt_pk_bf16_f32 v{Q2+1}, v{vt1}, v{vt0}
    v_cndmask_b32 v{Q2+1}, v{Q2+1}, 0, s[{sHi}:{sHi+1}]
    v_mov_b32 v{K2[0]+1}, 0xbf80bf80
    s_mov_b32 s{sA}, {KVG}""")
    for r in range(16): a(f"v_mov_b32 v{O+r}, 0")
    a.label("f_fb2")
    a(f"""buffer_load_dwordx4 v[{K1[0]}:{K1[0]+3}], v{aK}, s[{sWS}:{sWS+3}], s{sA} offen sc1
    buffer_load_dword v{K2[0]}, v{ak}, s[{sWS}:{sWS+3}], s{sA} offen sc1
    buffer_load_dwordx4 v[{V[0]}:{V[0]+3}], v{aV}, s[{sWS}:{sWS+3}], s{sA} offen sc1
    buffer_load_dwordx4 v[{V[0]+4}:{V[0]+7}], v{aV}, s[{sWS}:{sWS+3}], s{sA} offen offset:624 sc1
    s_waitcnt vmcnt(0)""")
    a(M1(0)); a(M2(0)); a("s_nop 11")
    for r in range(16): a(f"v_exp_f32 v{s0+r}, v{s0+r}")
    a("s_nop 0")
    for k in range(8): a(f"v_cvt_pk_bf16_f32 v{P[0]+k}, v{s0+2*k}, v{s0+2*k+1}")
    a("s_nop 1"); a(M3(0, 0)); a(M3(0, 1))
    a(f"""s_add_u32 s{sA}, s{sA}, {TILE}
    s_cmp_lt_u32 s{sA}, {KVG+64*TILE}
    s_cbranch_scc1 f_fb2
    s_nop 11
    v_cndmask_b32 v{vl}, v{O+10}, v{O+12}, s[{sHi}:{sHi+1}]
    s_branch f_norm""")
    a.label("f_end")
    a("s_endpgm")
    return a

HEAD = """; Fused FNet + multi-query attention + gate.  One launch, 256 workgroups of 12 waves, one per CU.
"""
def build(a, vgpr=160):
    lab = G0.NAME + "_kernel"
    for p in check(a.lines): print(p, file=sys.stderr)
    out = [HEAD + f"; @launch grid=(256,1,1) block=(768,1,1) lds=163840", '.amdgcn_target "amdgcn-amd-amdhsa--gfx950"\n.text',
           f".globl {lab}\n.p2align 8\n.type {lab},@function\n{lab}:", a.text(), ".p2align 8\n.type rf_table,@object\nrf_table:"]
    w = rf_table()
    for i in range(0, len(w), 8): out.append(".long " + ",".join(f"0x{x:08x}" for x in w[i:i+8]))
    out += [".size rf_table, 4096", "rf_end:", '.section .rodata,"a"', kd(lab, vgpr)]
    return "\n".join(out) + "\n"

if __name__ == "__main__":
    if len(sys.argv) > 2 and sys.argv[2] == "stamp": G0.STAMP = True
    for x in sys.argv[3:]:
        if x.startswith("leak"):
            p = x.split(":"); G0.LEAK = (int(p[1]), int(p[2]), int(p[3]) if len(p) > 3 else None)
        else: EXP.add(x)
    open(sys.argv[1], "w").write(build(gen()))
```

```python
import math, sys
import gen as G0
from gen import Asm, check, srd, f2u, bf16, CQ, TILE, wave_max, load_rf, rf_table, kd
GP, GU = 1280, 704
EP = 0x0
FL0, FL1, FL2, FL3 = 0x8000, 0x10000, 0x20000, 0x30000
KMG = 0x40000
GG = 0x41000
KVG = 0x50000
OF = 0x100000
OX = 0x300000
GT = 0x340000
ST = 0x1200000
WS_SIZE = 0x1300000
G0.GT = GT; G0.ST = ST
OFFS, LMIN = 80.0, 2.0**-100
LX, LD, LW, LGATE, FLG = 0, 73728, 110592, 156672, 159744
F_KV, F_PRG, F_S1F, F_S1, F_CNT2, F_CNT3, F_TA, F_S2, F_S0, F_DUTY, F_KC, F_LD, F_XC, F_BIG, F_G, F_N, F_G2, F_DUMP = FLG, FLG+16, FLG+48, FLG+52, FLG+56, FLG+60, FLG+64, FLG+80, FLG+84, FLG+88, FLG+92, FLG+96, FLG+112, FLG+140, FLG+256, FLG+512, FLG+640, FLG+1024
GSC = 81920
J1 = 20
def ltile(j): return LW + TILE*j if j < J1 else TILE*(j - J1)
PRIO = {0: 2, 32: 1, 60: 0}
if 'p20' in sys.argv: PRIO = {0: 2, 20: 1, 58: 0}
if 'p44' in sys.argv: PRIO = {0: 2, 21: 1, 45: 0}
SPIN = 3000
THR = lambda k, d: next((int(x[len(k):]) for x in EXP if x.startswith(k) and x[len(k):].isdigit()), d)
QF = 7
EXP = set()
def stamp(a, s, g="A"):
    if s == 0 or g in EXP or (g == "A" and not EXP & {"P", "H", "R", "T", "J"}): G0.stamp(a, s)

sWS, sRA, sRB, sRC, sRD = 8, 12, 40, 44, 48
sNon, sWave, sT1, sJ = 54, 56, 57, 58
sA, sB, sC, sD, sE, sF, sG, sH = 59, 60, 61, 62, 63, 64, 65, 66
sHi = 68
sRot = 67
vL = 1

_n = [0]
LABS = {}
def stamp12(a, slot):
    if not G0.STAMP or EXP & {'P', 'H', 'R', 'T', 'J'}: return
    _n[0] += 1
    a(f"s_sub_u32 s3, s{sWave}, 1\ns_cmp_ge_u32 s3, 2\ns_cbranch_scc1 f_st{_n[0]}")
    stamp(a, slot)
    a.label(f"f_st{_n[0]}")

def lds_wait(a, lab, vaddr, vt, val, sleep=0):
    if sleep:
        a(f"s_branch {lab}")
        a.label(lab + "_z")
        a(f"s_sleep {sleep}")
    a.label(lab)
    if G0.STAMP:
        _n[0] += 1
        a(f"s_add_u32 s83, s83, 1\ns_cmp_lt_u32 s83, 200000\ns_cbranch_scc1 {lab}_go\ns_mov_b32 s99, {0x77770000}\ns_mov_b32 s97, {_n[0]}\ns_branch {lab}_to")
        a.label(lab + "_go")
    a(f"ds_read_b32 v{vt}, v{vaddr}\ns_waitcnt lgkmcnt(0)\nv_cmp_gt_i32 vcc, {val}, v{vt}\ns_cbranch_vccnz {lab + ('_z' if sleep else '')}")
    if G0.STAMP: a.label(lab + "_to"); LABS[_n[0]] = lab

def tag_wait(a, lab, vaddr, soff, n, vt, step=1024, sleep=2, lanes=0):
    a(f"s_mov_b32 s{sH}, 0")
    if lanes: a(f"s_mov_b64 exec, {(1 << lanes) - 1}")
    a.label(lab)
    if lanes:
        a(f"v_mov_b32 v{vt}, 0\nv_mov_b32 v{vt+1}, 0\nbuffer_atomic_or_x2 v[{vt}:{vt+1}], v{vaddr}, s[{sWS}:{sWS+3}], s{soff} offen sc0 sc1")
    else:
        for i in range(n): a(f"buffer_load_dwordx2 v[{vt+2*i}:{vt+2*i+1}], v{vaddr}, s[{sWS}:{sWS+3}], s{soff} offen offset:{i*step} sc1")
    a(f"s_add_u32 s{sH}, s{sH}, 1\ns_waitcnt vmcnt(0) lgkmcnt(0)")
    for i in range(n):
        a(f"v_cmp_ne_u64 {'vcc' if i == 0 else 's[6:7]'}, s[{sNon}:{sNon+1}], v[{vt+2*i}:{vt+2*i+1}]")
        if i: a("s_nop 0\ns_or_b64 vcc, vcc, s[6:7]")
    a(f"s_cbranch_vccz {lab}_ok\ns_sleep {sleep}\ns_cmp_lt_u32 s{sH}, {SPIN}\ns_cbranch_scc1 {lab}")
    if G0.STAMP: a("s_mov_b32 s99, 0x77770000")
    a.label(lab + "_ok")
    if lanes: a("s_mov_b64 exec, -1")
    a.vm = []

def tag_signal(a, area, nrep, v0, v1, atomic=False):
    a(f"""s_lshl_b32 s{sG}, s{sT1}, 7
    s_lshl_b32 s{sH}, s{sJ}, 3
    s_add_u32 s{sG}, s{sG}, s{sH}
    s_add_u32 s{sG}, s{sG}, {area}
    v_lshlrev_b32 v{v0}, 12, v{vL}
    v_mov_b32 v{v1}, s{sNon}
    v_mov_b32 v{v1+1}, s{sNon+1}
    s_mov_b64 exec, {(1 << nrep) - 1}
    {"buffer_atomic_swap_x2" if atomic else "buffer_store_dwordx2"} v[{v1}:{v1+1}], v{v0}, s[{sWS}:{sWS+3}], s{sG} offen sc1
    s_mov_b64 exec, -1""")

def last_wave_signals(a, lab, cnt, total, area, nrep, v0, v1, atomic=False):
    a(f"""s_waitcnt vmcnt(0)
    v_mov_b32 v{v0}, {cnt}
    v_mov_b32 v{v1}, 1
    s_mov_b64 exec, 1
    ds_add_rtn_u32 v{v1}, v{v0}, v{v1}
    s_waitcnt lgkmcnt(0)
    v_readfirstlane_b32 s{sG}, v{v1}
    s_mov_b64 exec, -1
    s_cmp_lg_u32 s{sG}, {total-1}
    s_cbranch_scc1 {lab}""")
    tag_signal(a, area, nrep, v0, v1, atomic)
    a.label(lab)
    a.vm = []

def xsrc(a, dst, t0, t1):
    a(f"""v_lshrrev_b32 v{t0}, 4, v{vL}
    v_xor_b32 v{t0}, v{t0}, v{vL}
    v_and_b32 v{t0}, 3, v{t0}
    v_lshlrev_b32 v{t0}, 4, v{t0}
    v_lshrrev_b32 v{t1}, 2, v{vL}
    s_mov_b32 s3, 73728
    v_mad_u32_u24 v{dst}, v{t1}, s3, v{t0}""")
def xread(a, r0, r1, t0, t1):
    a(f"""v_lshrrev_b32 v{t0}, 5, v{vL}
    v_lshrrev_b32 v{t1}, 2, v{vL}
    v_xor_b32 v{t0}, v{t0}, v{t1}
    v_and_b32 v{t0}, 3, v{t0}
    v_and_b32 v{t1}, 31, v{vL}
    v_lshlrev_b32 v{t1}, 6, v{t1}
    v_lshl_add_u32 v{r0}, v{t0}, 4, v{t1}""")
def dense_pos(a, sph, pos, c16, t):
    a(f"""s_lshl_b32 s3, s{sph}, 6
    v_add_u32 v{c16}, s3, v{vL}
    v_mul_u32_u24 v{pos}, 7282, v{c16}
    v_lshrrev_b32 v{pos}, 16, v{pos}
    v_mul_u32_u24 v{t}, 9, v{pos}
    v_sub_u32 v{c16}, v{c16}, v{t}
    v_lshlrev_b32 v{c16}, 4, v{c16}""")

J_GO, J_N, J_vX, J_vF, J_sG = [116, 120, 124, 132], 130, 110, 108, 74
def fnet_job(a):
    GO, vN, vX, vF, sGrp = J_GO, J_N, J_vX, J_vF, J_sG
    H1, H2, C = 16, 32, 16
    B = [72 + 4*i for i in range(9)] + [132 + 4*i for i in range(9)]
    free = [48 + 4*i for i in range(6)] + [116, 120, 124]
    e, p, co, x0, x1 = 4, 5, 6, 7, 8
    stamp(a, 1, "J")
    a(f"""v_and_b32 v{e}, 3, v{vL}
    v_bfe_u32 v{p}, v{vL}, 2, 1
    v_lshl_add_u32 v{e}, v{p}, 3, v{e}
    v_bfe_u32 v{p}, v{vL}, 3, 1
    v_lshl_add_u32 v{e}, v{p}, 2, v{e}
    s_lshl_b32 s3, s{sGrp}, 4
    v_add_u32 v{e}, s3, v{e}
    s_cmp_eq_u32 s{sGrp}, 0
    s_cselect_b32 s6, 0x10000, 0
    s_mov_b32 s7, s6
    v_mov_b32 v{p}, 288
    v_cndmask_b32 v{e}, v{e}, v{p}, s[6:7]
    s_or_b32 s6, s6, 0xffff
    s_mov_b32 s7, s6
    v_mov_b32 v{p}, 144
    v_cndmask_b32 v{p}, v{p}, 0, s[6:7]
    v_lshrrev_b32 v{co}, 5, v{vL}
    v_lshlrev_b32 v{co}, 3, v{co}
    s_lshl_b32 s3, s{sRot}, 6
    v_add_u32 v{co}, s3, v{co}
    v_mad_u32_u24 v{p}, v{e}, v{co}, v{p}
    s_mov_b32 s6, {(2**32 + 575)//576}
    s_mov_b32 s7, {f2u(1.0/576)}""")
    def cosv(dst, src):
        a(f"""v_mul_hi_u32 v{x1}, v{src}, s6
        v_mul_u32_u24 v{x1}, 576, v{x1}
        v_sub_u32 v{x1}, v{src}, v{x1}
        v_cvt_f32_u32 v{x1}, v{x1}
        v_mul_f32 v{x1}, s7, v{x1}
        v_cos_f32 v{dst}, v{x1}""")
    cosv(C, p); a(f"v_add_u32 v{p}, v{p}, v{e}"); cosv(C + 1, p)
    a(f"v_mul_u32_u24 v{co}, 15, v{e}\nv_add_u32 v{p}, v{p}, v{co}")
    cosv(C + 8, p); a(f"v_add_u32 v{p}, v{p}, v{e}"); cosv(C + 9, p)
    cosv(x0, e)
    a(f"v_lshlrev_b32 v{co}, 4, v{e}\nv_add_f32 v{x0}, v{x0}, v{x0}")
    cosv(co, co)
    for j in range(2, 8):
        for k in range(2): a(f"v_fma_f32 v{C+8*k+j}, v{x0}, v{C+8*k+j-1}, -v{C+8*k+j-2}")
    a(f"v_add_f32 v{co}, v{co}, v{co}\nv_lshlrev_b32 v{e}, 31, v{e}\nv_or_b32 v{e}, 1.0, v{e}\nv_xor_b32 v{x1}, 32, v{vX}")
    for k in range(18):
        c, o = C + 8*(k & 1), C + 8*(1 - (k & 1))
        for j in range(4): a(f"v_cvt_pk_bf16_f32 v{B[k]+j}, v{c+2*j}, v{c+2*j+1}")
        if k < 16:
            for j in range(8): a(f"v_fma_f32 v{c+j}, v{co}, v{o+j}, -v{c+j}")
    stamp(a, 3, "J")
    lds_wait(a, "f_j1", vF, p, 6, sleep=1)
    stamp(a, 4, "J")
    order = [k // 2 + 18*(k & 1) for k in range(36)]
    where, issued = {}, 0
    R = B[0]
    for i, k in enumerate(order):
        while issued < 36 and free and issued - i < 14:
            kk = order[issued]; where[kk] = free.pop(0); issued += 1
            a(f"ds_read_b128 v[{where[kk]}:{where[kk]+3}], v{x1 if kk & 1 else vX} offset:{2048*(kk>>1)}")
        a(f"s_waitcnt lgkmcnt({issued - i - 1})")
        H, b = (H2 if k >= 18 else H1), B[k % 18]
        a(f"v_mfma_f32_32x32x16_bf16 v[{H}:{H+15}], v[{where[k]}:{where[k]+3}], v[{b}:{b+3}], " + ("0" if k % 18 == 0 else f"v[{H}:{H+15}]"))
        free.append(where[k])
        if k >= 22: free.append(b)
        if k == 21: load_rf(a, R, vL, p, "f_rf1")
    stamp(a, 5, "J")
    T1, T2, Hb = 48, 32, 88
    a("s_nop 11")
    for r in range(16): a(f"v_fmac_f32 v{H1+r}, v{e}, v{H2+r}")
    for k in range(8): a(f"v_cvt_pk_bf16_f32 v{Hb+k}, v{H1+2*k}, v{H1+2*k+1}")
    a("s_waitcnt vmcnt(0)\ns_nop 0")
    a(f"v_mfma_f32_32x32x16_bf16 v[{T1}:{T1+15}], v[{Hb}:{Hb+3}], v[{R}:{R+3}], 0")
    a(f"v_mfma_f32_32x32x16_bf16 v[{T2}:{T2+15}], v[{Hb}:{Hb+3}], v[{R+8}:{R+11}], 0")
    a(f"v_mfma_f32_32x32x16_bf16 v[{T1}:{T1+15}], v[{Hb+4}:{Hb+7}], v[{R+4}:{R+7}], v[{T1}:{T1+15}]")
    a(f"v_mfma_f32_32x32x16_bf16 v[{T2}:{T2+15}], v[{Hb+4}:{Hb+7}], v[{R+12}:{R+15}], v[{T2}:{T2+15}]")
    a(f"""s_cmp_eq_u32 s{sGrp}, 0
    s_cselect_b32 s6, -1, 0
    s_mov_b32 s7, 0
    s_nop 8
    v_cvt_pk_bf16_f32 v{vN}, v{T1+8}, v{T2+8}
    v_cndmask_b32 v{T1+8}, v{T1+8}, 0, s[6:7]
    v_cndmask_b32 v{T2+8}, v{T2+8}, 0, s[6:7]""")
    for kind, (op, x, y, order) in enumerate((("v_add_f32", T1, T2+8, 1), ("v_sub_f32", T2, T1+8, 1), ("v_sub_f32", T1, T2+8, -1), ("v_add_f32", T2, T1+8, -1))):
        for r in range(8): a(f"{op} v{H1+r}, v{x+r}, v{y+r}")
        for k in range(4):
            i0, i1 = (2*k, 2*k+1) if order > 0 else (7-2*k, 6-2*k)
            a(f"v_cvt_pk_bf16_f32 v{GO[kind]+k}, v{H1+i0}, v{H1+i1}")

def gen():
    a = Asm()
    a.label("f_code")
    a("s_cmp_ge_u32 s2, 256\ns_cbranch_scc1 f_end")
    stamp(a, 0)
    a("s_load_dwordx2 s[52:53], s[0:1], 104\ns_load_dwordx16 s[16:31], s[0:1], 0\ns_load_dwordx8 s[32:39], s[0:1], 64")
    a(f"""v_lshrrev_b32 v2, 6, v0
    v_and_b32 v{vL}, 63, v0
    v_readfirstlane_b32 s{sWave}, v2
    s_bfe_u32 s3, s2, 0x20003
    s_lshr_b32 s{sRot}, s2, 6
    s_add_u32 s{sRot}, s{sRot}, s3
    s_and_b32 s{sRot}, s{sRot}, 3
    s_lshl_b32 s{sRot}, s{sRot}, 1
    {"s_mov_b32 s%d, 0" % sRot if "norot" in EXP else ""}
    s_and_b32 s{sT1}, s2, 7
    s_lshl_b32 s3, s3, 3
    s_add_u32 s{sT1}, s{sT1}, s3
    s_lshr_b32 s{sJ}, s2, 5
    s_mov_b32 s{sHi}, 0
    {"s_waitcnt lgkmcnt(0)" if G0.STAMP and 0 else ""}
    s_mov_b32 s{sHi+1}, -1
    s_cmp_ge_u32 s{sWave}, 4
    s_cbranch_scc1 f_att
    s_setprio 3
    s_cmp_eq_u32 s{sWave}, 0
    s_cbranch_scc1 f_duty""")
    def common_srd():
        a("s_waitcnt lgkmcnt(0)")
        a(f"s_load_dwordx2 s[{sNon}:{sNon+1}], s[52:53], {EP}")
        srd(a, sWS, 52, WS_SIZE)
    def nonce():
        a(f"s_add_u32 s{sNon}, s{sNon}, 1")
    t0, t1, t2, t3 = 8, 9, 10, 11
    vF = 4
    vXs, vDs, vW = 2, 3, 12
    sG_, sXo, sDa, sDb, sDs, sM, sXp = 70, 71, 72, 73, 74, 75, 76
    a(f"s_sub_u32 s{sG_}, s{sWave}, 1")
    xsrc(a, vXs, t0, t1)
    a(f"""v_and_b32 v{t2}, 3, v{vL}
    v_mul_u32_u24 v{t1}, 36, v{t1}
    v_lshl_add_u32 v{vDs}, v{t2}, 4, v{t1}
    s_and_b32 s{sA}, s{sJ}, 1
    s_mul_i32 s{sM}, s{sA}, 36864
    s_lshl_b32 s{sA}, s{sA}, 5
    s_add_u32 s{sA}, s{sA}, s{sT1}
    s_mul_i32 s{sXo}, s{sA}, 1152
    s_cmp_lt_u32 s{sJ}, 4
    s_cselect_b32 s{sRB+2}, {576*36}, 0
    s_cselect_b32 s{sDa}, -1, 0
    s_mov_b32 s{sDb}, {F_DUMP}
    s_cmov_b32 s{sDb}, {LD}
    s_mov_b32 s{sRA+2}, {2048*1152}
    s_mov_b32 s{sRA+3}, 0x20000
    s_mov_b32 s{sRB+3}, 0x20000
    s_mov_b32 s{sB}, s{sG_}
    s_barrier
    s_cmp_lt_u32 s{sJ}, 2
    s_waitcnt lgkmcnt(0)
    s_cselect_b64 s[{sRB}:{sRB+1}], s[30:31], s[32:33]
    s_mov_b64 s[{sRA}:{sRA+1}], s[16:17]""")
    stamp(a, 1, "P")
    TD, TW = THR("td", 0), THR("tw", 0)
    def lround(th=""):
        a(f"""s_lshl_b32 s{sC}, s{sRot}, 1
        s_add_u32 s{sC}, s{sC}, s{sB}
        s_cmp_ge_u32 s{sC}, 18
        s_cselect_b32 s3, 18, 0
        s_sub_u32 s{sC}, s{sC}, s3
        s_lshl_b32 s{sD}, s{sB}, 11
        s_add_u32 m0, s{sD}, s{sM}
        s_lshl_b32 s3, s{sC}, 6
        s_add_u32 s3, s3, s{sXo}
        {th}
        buffer_load_dwordx4 v{vXs}, s[{sRA}:{sRA+3}], s3 offen lds
        s_add_u32 m0, m0, 1024
        s_add_u32 s3, s3, 1179648
        {th}
        buffer_load_dwordx4 v{vXs}, s[{sRA}:{sRA+3}], s3 offen lds
        s_and_b32 s3, s{sD}, s{sDa}
        s_add_u32 m0, s3, s{sDb}
        s_mul_i32 s3, s{sC}, 1152
        {th}
        buffer_load_dwordx4 v{vDs}, s[{sRB}:{sRB+3}], s3 offen lds
        s_add_u32 m0, m0, 448
        {th or "s_nop 0"}
        buffer_load_dwordx4 v{vDs}, s[{sRB}:{sRB+3}], s3 offen offset:576 lds
        s_add_u32 s{sB}, s{sB}, 3""")
    a.label("f_lL")
    lround()
    NR0 = 3 if not TD else max(1, TD // 4)
    a(f"s_cmp_lt_u32 s{sB}, {3*NR0}\ns_cbranch_scc1 f_lL")
    stamp(a, 5, "P")
    a(f"s_load_dwordx2 s[{sNon}:{sNon+1}], s[52:53], {EP}")
    srd(a, sWS, 52, WS_SIZE); srd(a, sRD, 28, 576*1152)
    for i in range(3):
        a(f"s_mul_i32 s{sC}, s{sG_}, 3\ns_add_u32 s{sC}, s{sC}, {i}")
        dense_pos(a, sC, t1, t0, t2)
        a(f"""v_and_b32 v{t2}, 3, v{t1}
        v_bfe_u32 v{t3}, v{t1}, 2, 2
        v_and_b32 v{t1}, 48, v{t1}
        v_lshl_add_u32 v{t1}, v{t2}, 2, v{t1}
        v_add_u32 v{t1}, v{t1}, v{t3}
        s_movk_i32 s3, 1152
        v_mad_u32_u24 v{vW+i}, v{t1}, s3, v{t0}""")
    sM2 = 77
    a(f"""s_lshl_b32 s3, s{sG_}, 2
    s_add_u32 s3, s3, {F_LD}
    v_mov_b32 v{vF}, s3
    v_mov_b32 v6, 1
    v_mov_b32 v5, {F_DUTY}
    s_mul_i32 s{sE}, s{sJ}, 144
    s_mul_i32 s{sF}, s{sG_}, 3072
    s_and_b32 s{sA}, s{sJ}, 1
    s_xor_b32 s{sA}, s{sA}, 1
    s_mul_i32 s{sM2}, s{sA}, 36864
    s_lshl_b32 s3, s{sG_}, 10
    s_add_u32 s{sM2}, s{sM2}, s3
    s_lshl_b32 s{sA}, s{sA}, 5
    s_add_u32 s{sA}, s{sA}, s{sT1}
    s_mul_i32 s{sXp}, s{sA}, 1152
    s_mul_i32 s3, s{sG_}, 1179648
    s_add_u32 s{sXp}, s{sXp}, s3""")
    a(f"s_cmp_lg_u32 s{sWave}, 3\ns_cbranch_scc1 f_lM")
    srd(a, sRC, 36, 1152)
    for i in range(2):
        a(f"""s_lshl_b32 s3, s{sRot}, 7
        s_add_u32 s3, s3, {1024*i}
        v_lshlrev_b32 v{t1}, 4, v{vL}
        v_add_u32 v{t1}, s3, v{t1}
        v_subrev_u32 v{t2}, 1152, v{t1}
        v_min_u32 v{t1}, v{t1}, v{t2}
        s_mov_b32 m0, {LGATE + 1024*i}
        s_nop 0""")
        a(f"buffer_load_dwordx4 v{t1}, s[{sRC}:{sRC+3}], 0 offen lds")
    a.label("f_lM")
    if not TD:
        a(f"s_waitcnt vmcnt(8)\nds_write_b32 v{vF}, v6\nv_add_u32 v6, 1, v6")
        lround()
    else:
        lround(f"s_waitcnt vmcnt({TD-1})")
        a(f"s_waitcnt vmcnt({4*NR0})\nds_write_b32 v{vF}, v6\nv_add_u32 v6, 1, v6")
    a(f"s_cmp_lt_u32 s{sB}, 18\ns_cbranch_scc1 f_lM")
    for r in range(6 - NR0, 6): a.vm_note(f"d{r}", 4)
    stamp(a, 2, "P")
    def ldflag(tag, val):
        a(f"v_mov_b32 v{t1}, {val}")
        if tag in a.vm: a.vm_wait(tag)
        a(f"ds_write_b32 v{vF}, v{t1}")
    def thr():
        if TW and len(a.vm) >= TW:
            a(f"s_waitcnt vmcnt({TW-1})"); a.vm = a.vm[len(a.vm) - (TW-1):]
            done = [t for t in pend if t not in a.vm]
            if done:
                ldflag(done[-1], val_of(done[-1]))
                for t in done: pend.remove(t)
    pend = []
    val_of = lambda t: int(t[1:]) + (1 if t[0] == "d" else QF)
    def chunk(c, withx):
        base = LW + 9216*c if c < 5 else LD + 9216*(c-5)
        a(f"""s_add_u32 s{sC}, s{sRot}, {c}
        s_cmp_ge_u32 s{sC}, 9
        s_cselect_b32 s3, 9, 0
        s_sub_u32 s{sC}, s{sC}, s3""")
        if withx and "nox" not in EXP:
            a(f"s_add_u32 m0, s{sM2}, {4096*c}\ns_lshl_b32 s3, s{sC}, 7\ns_add_u32 s3, s3, s{sXp}")
            thr()
            a.vmem(f"buffer_load_dwordx4 v{vXs}, s[{sRA}:{sRA+3}], s3 offen lds", f"c{c}")
            a("s_add_u32 m0, m0, 1984\ns_nop 0")
            thr()
            a.vmem(f"buffer_load_dwordx4 v{vXs}, s[{sRA}:{sRA+3}], s3 offen offset:64 lds", f"c{c}")
        a(f"s_add_u32 m0, s{sF}, {base}\ns_mul_i32 s3, s{sC}, 73728\ns_add_u32 s3, s3, s{sE}")
        for i in range(3):
            if i: a("s_add_u32 m0, m0, 1024\ns_nop 0")
            thr()
            a.vmem(f"buffer_load_dwordx4 v{vW+i}, s[{sRD}:{sRD+3}], s3 offen lds", f"c{c}")
    def chunks(withx, lab):
        if TW:
            pend[:] = [f"d{r}" for r in range(6 - NR0, 6)]
            for c in range(9):
                if c == 5: lds_wait(a, lab, 5, t1, 1)
                chunk(c, withx)
                pend.append(f"c{c}")
            stamp(a, 3, "P")
            for t in list(pend): ldflag(t, val_of(t))
            stamp(a, 4, "P")
            return
        if "d3" in a.vm: ldflag("d3", 4)
        chunk(0, withx)
        ldflag("d4", 5); ldflag("d5", 6)
        chunk(1, withx)
        D = 2 if "deep" in EXP else 1
        if D == 1: ldflag("c0", QF)
        for c in range(2, 9):
            if c == 5 and not THR("pc", 0): lds_wait(a, lab, 5, t1, 1)
            if c == THR("pc", 0): lds_wait(a, lab, 5, t1, 2, sleep=1)
            chunk(c, withx)
            if c >= D: ldflag(f"c{c-D}", QF + c - D)
        stamp(a, 3, "P")
        for c in range(9 - D, 9): ldflag(f"c{c}", QF + c)
        stamp(a, 4, "P")
        if "only" in EXP:
            G0.stamp_end(a, 0, sWS, sWave); a("s_endpgm")
    vml = list(a.vm)
    a(f"s_cmp_eq_u32 s{sWave}, 3\ns_cbranch_scc1 f_l3")
    chunks(True, "f_l1w")
    a("s_waitcnt lgkmcnt(0)")
    nonce()
    a("s_branch f_kv0")
    a.label("f_l3")
    a.vm = list(vml)
    chunks(False, "f_l3w")
    FR = 32
    a("s_waitcnt lgkmcnt(0)")
    nonce()
    a("s_branch f_kv0")

    a.label("f_duty")
    a.vm = []
    vR0, vR1, vD0, vD1 = 2, 3, 6, 7
    ACC, R = 16, 80
    sRb, sGrp = 70, 76
    a(f"""v_lshlrev_b32 v{t0}, 2, v{vL}
    v_add_u32 v{t0}, {FLG}, v{t0}
    s_cmp_ge_u32 s{sJ}, 4
    s_cselect_b32 s6, {1 << ((F_DUTY - FLG)//4)}, 0
    s_mov_b32 s7, {1 << ((F_BIG - FLG)//4 - 32)}
    v_cndmask_b32 v{t1}, 0, 2, s[6:7]
    ds_write_b32 v{t0}, v{t1}""")
    xread(a, vR0, vR1, t2, t3)
    common_srd()
    a("s_barrier")
    if "only" in EXP: G0.stamp_end(a, 0, sWS, sWave); a("s_endpgm")
    a(f"""s_and_b32 s{sA}, s{sJ}, 1
    s_lshl_b32 s{sRb}, s{sA}, 5
    s_add_u32 s{sRb}, s{sRb}, s{sT1}
    s_mul_i32 s{sA}, s{sA}, 36864
    v_add_u32 v{vR0}, s{sA}, v{vR0}
    v_xor_b32 v{vR1}, 32, v{vR0}
    v_and_b32 v{vF}, 3, v{vL}
    v_min_u32 v{vF}, 2, v{vF}
    v_lshlrev_b32 v{vF}, 2, v{vF}
    v_add_u32 v{vF}, {F_LD}, v{vF}
    s_cmp_ge_u32 s{sJ}, 4
    s_cbranch_scc1 f_cF
    v_and_b32 v{t2}, 3, v{vL}
    v_and_b32 v{t0}, 1, v{vL}
    v_bfe_u32 v{t3}, v{vL}, 1, 1
    v_lshl_or_b32 v{t0}, v{t0}, 1, v{t3}
    v_bfe_u32 v{t3}, v{vL}, 4, 1
    v_cmp_eq_u32 vcc, 0, v{t3}
    v_bfe_u32 v{vD0}, v{vL}, 2, 2
    v_lshrrev_b32 v{vD1}, 5, v{vL}
    v_cndmask_b32 v{t0}, v{t2}, v{t0}, vcc
    v_lshl_add_u32 v{vD0}, v{vD1}, 3, v{vD0}
    v_lshlrev_b32 v{vD0}, 6, v{vD0}
    v_lshl_add_u32 v{vD0}, v{t3}, 5, v{vD0}
    v_lshl_add_u32 v{vD0}, v{t0}, 3, v{vD0}
    v_add_u32 v{vD0}, {LD}, v{vD0}
    s_cmp_ge_u32 s{sJ}, 2
    s_cbranch_scc1 f_cV""")
    def duty_chain(kind, ACC=ACC, vR0=vR0, vR1=vR1, vD0=vD0):
        lg = []
        def rd(txt, tag): a(txt); lg.append(tag)
        def wait(tag):
            i = max(k for k, t in enumerate(lg) if t == tag)
            a(f"s_waitcnt lgkmcnt({len(lg) - 1 - i})"); del lg[:i + 1]
        def reads(s):
            b = FR + 16*(s % 3)
            for p in range(2):
                rd(f"ds_read_b128 v[{b+8*p}:{b+8*p+3}], v{vR1 if p else vR0} offset:{2048*s}", (s, p))
                if kind == "F": rd(f"ds_read_b128 v[{b+8*p+4}:{b+8*p+7}], v{vD1 if p else vD0} offset:{2048*s}", (s, p))
                elif kind == "G": rd(f"ds_read_b128 v[{b+8*p+4}:{b+8*p+7}], v{vD0} offset:{64*s+32*p}", (s, p))
                else:
                    rd(f"ds_read_b64_tr_b16 v[{b+8*p+4}:{b+8*p+5}], v{vD0} offset:{2048*s+1024*p}", (s, p))
                    rd(f"ds_read_b64_tr_b16 v[{b+8*p+6}:{b+8*p+7}], v{vD0} offset:{2048*s+1024*p+256}", (s, p))
        if kind != "G":
            lds_wait(a, f"f_d{kind}0", vF, t0, 1)
            stamp(a, 1, "P")
        reads(0)
        if kind != "G": rd(f"ds_read_b32 v{t0}, v{vF}", "f")
        reads(1)
        for s in range(18):
            if kind != "G" and s % 3 == 1 and s < 15:
                if "f" in lg: wait("f")
                a(f"v_cmp_gt_i32 vcc, {2 + s//3}, v{t0}\ns_cbranch_vccz f_d{kind}{s}_ok")
                lds_wait(a, f"f_d{kind}{s}", vF, t0, 2 + s//3)
                a.label(f"f_d{kind}{s}_ok")
            b = FR + 16*(s % 3)
            for p in range(2):
                if (s, p) in lg: wait((s, p))
                if p == 1:
                    if kind != "G" and s % 3 == 0 and 0 < s < 15: rd(f"ds_read_b32 v{t0}, v{vF}", "f")
                    if s + 2 < 18: reads(s + 2)
                    assert len(lg) <= 15
                X, D = b + 8*p, b + 8*p + 4
                A, B = (D, X) if kind in "KG" else (X, D)
                a(f"v_mfma_f32_32x32x16_bf16 v[{ACC}:{ACC+15}], v[{A}:{A+3}], v[{B}:{B+3}], " + ("0" if s + p == 0 else f"v[{ACC}:{ACC+15}]"))
        if kind != "G":
            a(f"v_mov_b32 v{t0}, {F_DUTY}\nv_mov_b32 v{t1}, 1\nds_write_b32 v{t0}, v{t1}")
            nonce()
            stamp(a, 2); stamp(a, 2, "P")
    def kv_off():
        a(f"""s_and_b32 s{sA}, s{sJ}, 1
        s_lshl_b32 s{sB}, s{sT1}, 1
        s_add_u32 s{sA}, s{sA}, s{sB}
        s_mul_i32 s{sF}, s{sA}, {TILE}
        s_add_u32 s{sF}, s{sF}, {KVG}
        s_add_u32 s{sE}, s{sF}, {64*TILE}""")
    kv_off()
    a(f"v_lshlrev_b32 v14, 4, v{vL}\nv_lshlrev_b32 v15, 2, v{vL}")
    duty_chain("K")
    a("s_nop 7")
    for k in range(5): a(f"v_cvt_pk_bf16_f32 v{FR+k}, v{ACC+2*k}, v{ACC+2*k+1}")
    for s in ((sF,) if 'nodup' in EXP else (sF, sE)): a(f"buffer_store_dwordx4 v[{FR}:{FR+3}], v14, s[{sWS}:{sWS+3}], s{s} offen sc1")
    a(f"v_mul_f32 v{t3}, v{ACC}, v{ACC}")
    for r in range(1, 8): a(f"v_fmac_f32 v{t3}, v{ACC+r}, v{ACC+r}")
    a("s_mov_b32 exec_hi, 0")
    for s in ((sF,) if 'nodup' in EXP else (sF, sE)): a(f"buffer_store_dword v{FR+4}, v15, s[{sWS}:{sWS+3}], s{s} offen offset:1024 sc1")
    a(f"""v_fmac_f32 v{t3}, v{ACC+8}, v{ACC+8}
    v_fmac_f32 v{t3}, v{ACC+9}, v{ACC+9}
    s_mov_b64 exec, -1
    v_mov_b32 v{t0}, v{t3}
    s_nop 1
    v_permlane32_swap_b32 v{t0}, v{t3}
    v_add_f32 v{t3}, v{t0}, v{t3}""")
    wave_max(a, t3, sB)
    a(f"""v_mov_b32 v{t3}, s{sB}
    v_lshlrev_b32 v{t0}, 8, v{vL}
    s_lshl_b32 s{sA}, s{sA}, 2
    s_add_u32 s{sA}, s{sA}, {KMG}
    s_mov_b64 exec, 3
    buffer_store_dword v{t3}, v{t0}, s[{sWS}:{sWS+3}], s{sA} offen sc1
    s_mov_b64 exec, -1
    s_branch f_dP""")
    a.label("f_cV")
    kv_off()
    a(f"""v_and_b32 v{t0}, 31, v{vL}
    v_lshrrev_b32 v{t2}, 5, v{vL}
    v_mul_u32_u24 v14, 19, v{t2}
    v_add_u32 v14, v14, v{t0}
    v_cmp_eq_u32 vcc, 19, v{vL}
    v_mov_b32 v{t3}, 0x3f803f80
    s_nop 0
    v_cndmask_b32 v14, v14, 38, vcc
    v_cndmask_b32 v80, v{t3}, 0, vcc
    v_lshlrev_b32 v14, 4, v14
    v_mov_b32 v81, v80
    v_mov_b32 v82, v80
    v_mov_b32 v83, v80
    s_mov_b32 exec_lo, 0xc0000
    s_mov_b32 exec_hi, 0x40000""")
    for s in (sF, sE):
        for u in range(2): a(f"buffer_store_dwordx4 v[80:83], v14, s[{sWS}:{sWS+3}], s{s} offen offset:{1152+624*u} sc1")
    a("s_mov_b64 exec, -1")
    duty_chain("V")
    a("s_mov_b32 exec_lo, 0x3ffff\ns_mov_b32 exec_hi, 0x3ffff\ns_nop 5")
    for u in range(2):
        for k in range(4*u, 4*u + 4): a(f"v_cvt_pk_bf16_f32 v{FR+k}, v{ACC+2*k}, v{ACC+2*k+1}")
        for s in (sF, sE): a(f"buffer_store_dwordx4 v[{FR+4*u}:{FR+4*u+3}], v14, s[{sWS}:{sWS+3}], s{s} offen offset:{1152+624*u} sc1")
    a("s_mov_b64 exec, -1")
    a.label("f_dP")
    stamp(a, 3, "P")
    a("s_waitcnt vmcnt(0)")
    tag_signal(a, FL1, 8, t0, t2, 'noat' not in EXP)
    if THR("pc", 0): a(f"v_mov_b32 v{t0}, {F_DUTY}\nv_mov_b32 v{t1}, 2\nds_write_b32 v{t0}, v{t1}")
    stamp(a, 3); stamp(a, 4, "P")
    a("s_branch f_dS")
    a.label("f_cF")
    a(f"s_bfe_u32 s{sGrp}, s{sJ}, 0x10001\ns_add_u32 s{sGrp}, s{sGrp}, 16\ns_waitcnt lgkmcnt(0)")
    nonce()
    lds_wait(a, "f_cF1", vF, t0, QF + 2, sleep=4)
    a.label("f_dS")
    a(f"""v_bfe_u32 v{t1}, v{vL}, 2, 2
    v_add_u32 v{t1}, s{sT1}, v{t1}
    v_and_b32 v{t1}, 31, v{t1}
    v_lshlrev_b32 v{t1}, 7, v{t1}
    v_and_b32 v{t2}, 3, v{vL}
    v_lshl_add_u32 v{t1}, v{t2}, 3, v{t1}
    s_and_b32 s{sD}, s{sT1}, 7
    s_lshl_b32 s{sD}, s{sD}, 12
    s_add_u32 s{sD}, s{sD}, {FL1}""")
    tag_wait(a, "f_m2", t1, sD, 1, FR, sleep=1, lanes=16 if 'noat' not in EXP else 0)
    vKM = 12
    a(f"""v_mov_b32 v{t1}, {F_S1F}
    v_mov_b32 v{t2}, 1
    ds_write_b32 v{t1}, v{t2}
    s_lshl_b32 s3, s{sT1}, 3
    s_add_u32 s3, s3, {KMG}
    v_and_b32 v{t2}, 7, v{vL}
    v_lshlrev_b32 v{t2}, 2, v{t2}
    buffer_load_dword v{vKM}, v{t2}, s[{sWS}:{sWS+3}], s3 offen sc1
    v_lshrrev_b32 v14, 2, v{vL}
    v_lshlrev_b32 v14, 7, v14
    v_and_b32 v{t2}, 3, v{vL}
    v_lshl_add_u32 v14, v{t2}, 3, v14
    buffer_load_dwordx2 v[{FR}:{FR+1}], v14, s[{sWS}:{sWS+3}], s{sD} offen sc1
    buffer_load_dwordx2 v[{FR+2}:{FR+3}], v14, s[{sWS}:{sWS+3}], s{sD} offen offset:2048 sc1""")
    stamp(a, 5, "P")
    a.label("f_kv0")
    a.vm = []
    a(f"""v_and_b32 v{t1}, 15, v{vL}
    v_min_u32 v{t1}, 8, v{t1}
    v_lshlrev_b32 v{t1}, 2, v{t1}
    v_add_u32 v{t1}, {F_PRG}, v{t1}
    s_mul_i32 s{sA}, s{sT1}, {2*TILE}
    s_lshl_b32 s{sB}, s{sWave}, 12
    s_add_u32 m0, s{sB}, {LW}
    s_add_u32 s{sA}, s{sA}, s{sB}
    s_add_u32 s{sA}, s{sA}, {KVG}
    v_lshlrev_b32 v{t0}, 4, v{vL}""")
    lds_wait(a, "f_kv1", t1, t2, 1)
    for k in range(4): a(f"buffer_load_dwordx4 v{t0}, s[{sWS}:{sWS+3}], s{sA} offen offset:{1024*k} sc1 lds")
    a(f"""v_mov_b32 v{vF}, {F_S1}
    s_cmp_lg_u32 s{sWave}, 0
    s_cbranch_scc1 f_hd
    s_waitcnt vmcnt(4)""")
    wave_max(a, vKM, sC)
    a(f"""v_sqrt_f32 v{t3}, s{sC}
    v_mov_b32 v{t2}, {f2u(OFFS)}
    v_mov_b32 v{t1}, {F_KC}
    v_cvt_pk_bf16_f32 v{t3}, -v{t3}, v{t2}
    ds_write_b32 v{t1}, v{t3}
    v_mov_b32 v{t2}, 1
    v_cmp_ne_u64 vcc, s[{sNon}:{sNon+1}], v[{FR}:{FR+1}]
    v_cmp_ne_u64 s[6:7], s[{sNon}:{sNon+1}], v[{FR+2}:{FR+3}]
    s_nop 0
    s_or_b64 vcc, vcc, s[6:7]
    s_waitcnt vmcnt(0) lgkmcnt(0)
    s_cbranch_vccnz f_m4
    ds_write_b32 v{vF}, v{t2}
    s_branch f_hd""")
    a.label("f_m4")
    a("s_barrier")
    tag_wait(a, "f_m3", 14, sD, 2, FR, step=2048)
    a(f"ds_write_b32 v{vF}, v{t2}\ns_branch f_h1")
    a.label("f_hd")
    a("s_waitcnt vmcnt(0) lgkmcnt(0)")
    stamp(a, 6, "P")
    a("s_barrier")
    a.label("f_h1")
    stamp(a, 4)
    lds_wait(a, "f_h2", vF, t1, 1, sleep=2)
    stamp(a, 1, "H")
    a(f"""s_lshl_b32 s3, s{sWave}, 2
    s_add_u32 s3, s3, {F_KV}
    v_mov_b32 v{vF}, s3""")
    def grp(src, dst, tag):
        a(f"s_add_u32 m0, s{sB}, {dst}\ns_add_u32 s3, s{sA}, {src}")
        for k in range(4): a.vmem(f"buffer_load_dwordx4 v{t0}, s[{sWS}:{sWS+3}], s3 offen offset:{1024*k} sc1 lds", tag)
    P2 = J1*TILE
    grp(16384, LW + 16384, "c1"); grp(32768, LW + 32768, "c2"); grp(P2, 0, "p0")
    ldflag("c1", 1)
    grp(P2 + 16384, 16384, "p1"); grp(P2 + 32768, 32768, "p2")
    ldflag("p0", 2)
    sS2, sT = 71, 72
    a(f"""v_and_b32 v5, 3, v{vL}
    v_lshlrev_b32 v5, 2, v5
    v_add_u32 v5, {F_XC}, v5
    v_lshrrev_b32 v{t2}, 3, v{vL}
    v_xor_b32 v{t3}, v{t2}, v{vL}
    v_and_b32 v{t3}, 7, v{t3}
    v_lshlrev_b32 v{t3}, 4, v{t3}
    v_lshl_add_u32 v{t3}, v{t2}, 7, v{t3}
    s_add_u32 s3, s{sB}, {GSC}
    v_add_u32 v{t3}, s3, v{t3}
    v_mul_u32_u24 v{t2}, {128*GP}, v{t2}
    v_and_b32 v{t1}, 7, v{vL}
    v_lshl_add_u32 v{t2}, v{t1}, 4, v{t2}
    s_and_b32 s{sS2}, s{sJ}, 1
    s_lshl_b32 s{sS2}, s{sS2}, 5
    s_add_u32 s{sS2}, s{sS2}, s{sT1}
    s_mul_i32 s{sS2}, s{sS2}, {GP}
    s_add_u32 s{sS2}, s{sS2}, {GT}
    s_lshr_b32 s{sT}, s{sJ}, 1
    s_lshl_b32 s{sT}, s{sT}, 7
    s_sub_u32 s3, {GU + 448}, s{sT}
    s_cmp_lt_u32 s{sWave}, 2
    s_cselect_b32 s{sT}, s{sT}, s3
    s_add_u32 s{sT}, s{sT}, s{sS2}
    s_bitcmp1_b32 s{sWave}, 0
    s_cselect_b32 s3, {64*GP}, 0
    s_add_u32 s{sT}, s{sT}, s3""")
    lds_wait(a, "f_x3", 5, t1, 1, sleep=1)
    for i in range(4): a(f"ds_read_b128 v[{32+4*i}:{35+4*i}], v{t3} offset:{1024*i}")
    for i in range(4):
        a(f"s_waitcnt lgkmcnt({3-i})")
        a(f"buffer_store_dwordx4 v[{32+4*i}:{35+4*i}], v{t2}, s[{sWS}:{sWS+3}], s{sT} offen sc1")
        if i < 3: a(f"s_add_u32 s{sT}, s{sT}, {8*128*GP}")
    a(f"s_lshl_b32 s3, s{sWave}, 2\ns_add_u32 s3, s3, {F_TA}\nv_mov_b32 v{t2}, s3\nv_mov_b32 v{t1}, 1\nds_write_b32 v{t2}, v{t1}\nv_add_u32 v5, {F_TA - F_XC}, v5")
    GOF = [48, 52, 56, 60]
    a(f"s_cmp_ge_u32 s{sJ}, 4\ns_cselect_b32 s3, s{sWave}, 1\ns_cmp_lg_u32 s3, 0\ns_cbranch_scc1 f_x6\nv_mov_b32 v{t2}, {F_XC + 20}")
    lds_wait(a, "f_x5", t2, t1, 1, sleep=1)
    a(f"v_add_u32 v{t2}, {GSC + 16384}, v{t0}\nv_lshrrev_b32 v13, 2, v{t0}\nv_add_u32 v13, {F_G2}, v13")
    for kind in range(4): a(f"ds_read_b128 v[{GOF[kind]}:{GOF[kind]+3}], v{t2} offset:{1024*kind}")
    a("ds_read_b32 v13, v13\ns_waitcnt lgkmcnt(0)")
    a.label("f_x6")
    for i in (3, 4): grp(P2 + 16384*i, 16384*i, f"p{i}")
    lds_wait(a, "f_x4", 5, t1, 1, sleep=1)
    grp(P2 + 16384*5, 16384*5, "p5")
    a(f"s_cmp_ge_u32 s{sWave}, 2\ns_cbranch_scc1 f_h3")
    grp(P2 + 16384*6, 16384*6, "p6")
    a.label("f_h3")
    a(f"v_mov_b32 v{t1}, 3\ns_waitcnt vmcnt(0)\nds_write_b32 v{vF}, v{t1}")
    a.vm = []
    stamp(a, 2, "H")
    def bail():
        a(f"v_mov_b32 v{t1}, {F_S2}\nv_mov_b32 v{t2}, 1\nds_write_b32 v{t1}, v{t2}")
        G0.stamp_end(a, 0, sWS, sWave); a("s_endpgm")
    if "attonly" in EXP: bail()
    a(f"""s_cmp_lg_u32 s{sWave}, 0
    s_cbranch_scc1 f_h3b
    v_and_b32 v{t1}, 31, v{vL}
    v_mul_u32_u24 v{t2}, {128*GP}, v{t1}
    s_cmp_ge_u32 s{sJ}, 4
    s_cbranch_scc1 f_h3a
    s_cmp_ge_u32 s{sJ}, 2
    s_cbranch_scc1 f_h3b
    v_lshlrev_b32 v{t1}, 2, v{t1}
    v_add_u32 v{t1}, {F_N}, v{t1}
    ds_read_b32 v{t1}, v{t1}
    s_add_u32 s3, s{sS2}, {64*GP}
    s_mov_b32 exec_hi, 0
    s_waitcnt lgkmcnt(0)
    buffer_store_short v{t1}, v{t2}, s[{sWS}:{sWS+3}], s{sS2} offen offset:{GU-2} sc1
    buffer_store_short_d16_hi v{t1}, v{t2}, s[{sWS}:{sWS+3}], s3 offen offset:{GU-2} sc1
    s_mov_b32 exec_hi, -1
    s_branch f_h3b""")
    a.label("f_h3a")
    a(f"""v_lshrrev_b32 v{t3}, 5, v{vL}
    v_lshlrev_b32 v{t3}, 4, v{t3}
    v_sub_u32 v{t1}, v{t2}, v{t3}
    v_add_u32 v{t2}, v{t2}, v{t3}
    v_add_u32 v{t1}, 16, v{t1}
    s_lshl_b32 s3, s{sGrp}, 5
    s_add_u32 s{sT}, s{sS2}, s3
    s_sub_u32 s{sT+1}, s{sS2}, s3
    s_add_u32 s{sT+1}, s{sT+1}, {GU + 560 - 16}""")
    for kind in range(4):
        if kind & 1: a(f"s_add_u32 s{sT + (kind >> 1)}, s{sT + (kind >> 1)}, {64*GP}")
        a(f"buffer_store_dwordx4 v[{GOF[kind]}:{GOF[kind]+3}], v{t1 if kind >> 1 else t2}, s[{sWS}:{sWS+3}], s{sT + (kind >> 1)} offen sc1")
    a(f"""s_cmp_ge_u32 s{sJ}, 6
    s_cbranch_scc1 f_h3b
    s_lshl_b32 s{sF}, s{sRb}, 7
    s_add_u32 s{sF}, s{sF}, {GG}
    v_lshlrev_b32 v{t3}, 2, v{vL}
    s_mov_b32 exec_hi, 0
    buffer_store_dword v13, v{t3}, s[{sWS}:{sWS+3}], s{sF} offen sc1
    s_mov_b32 exec_hi, -1""")
    a.label("f_h3b")
    if "b1" in EXP: bail()
    srd(a, sRA, 34, 576*1152)
    a(f"""s_lshr_b32 s3, s2, 3
    s_lshl_b32 s3, s3, 2
    s_add_u32 s3, s3, s{sWave}
    s_mul_i32 s3, s3, {41*128}
    v_min_u32 v{t1}, 40, v{vL}
    v_lshlrev_b32 v{t1}, 7, v{t1}
    buffer_load_dword v14, v{t1}, s[{sRA}:{sRA+3}], s3 offen""")
    def all_tags(lab, area, flag, tmp, sleep):
        a(f"v_mov_b32 v{vF}, {flag}\ns_cmp_lg_u32 s{sWave}, 3\ns_cbranch_scc1 {lab}_x")
        a(f"""v_lshrrev_b32 v{t1}, 3, v{vL}
        v_lshlrev_b32 v{t1}, 7, v{t1}
        v_and_b32 v{t3}, 7, v{vL}
        v_lshl_add_u32 v{t1}, v{t3}, 3, v{t1}
        s_and_b32 s{sD}, s{sT1}, 7
        s_lshl_b32 s{sD}, s{sD}, 12
        s_add_u32 s{sD}, s{sD}, {area}""")
        tag_wait(a, lab, t1, sD, 4, tmp, sleep=sleep)
    last_wave_signals(a, "f_h5", F_CNT2, 4, FL2, 8, t1, t2)
    stamp(a, 6)
    if "notail" in EXP: bail()
    vK, vC, vS, vG, vTr, vPr = 2, 24, 12, 15, 6, 7
    vC = 24
    ACC, W2, OB, AR = 16, 36, 52, 124
    vK = 28
    sRb, sCol = 70, 71
    for i in range(3):
        a(f"s_add_u32 s{sC}, s{sWave}, {4*i}")
        dense_pos(a, sC, t1, vC+i, t2)
        a(f"""v_and_b32 v{t2}, 1, v{t1}
        v_bfe_u32 v{t3}, v{t1}, 1, 2
        v_and_b32 v{t1}, 56, v{t1}
        v_lshl_add_u32 v{t1}, v{t2}, 2, v{t1}
        v_add_u32 v{vK+i}, v{t1}, v{t3}
        v_lshrrev_b32 v{t2}, 4, v{vK+i}
        v_lshl_add_u32 v{t2}, v{t2}, 1, v{vK+i}
        s_movk_i32 s3, 1152
        v_mad_u32_u24 v{vS+i}, v{t2}, s3, v{vC+i}""")
    a(f"""s_lshr_b32 s{sRb}, s{sWave}, 1
    s_lshl_b32 s{sRb}, s{sRb}, 5
    s_add_u32 s{sRb}, s{sRb}, s{sT1}
    s_mul_i32 s{sCol}, s{sJ}, 144
    s_lshl_b32 s{sC}, s{sWave}, 10
    v_and_b32 v{vPr}, 7, v{vL}
    v_lshlrev_b32 v{vPr}, 2, v{vPr}
    v_add_u32 v{vPr}, {F_PRG}, v{vPr}""")
    srd(a, sRB, 18, 2048*4096); srd(a, sRC, 20, 2048*4096); srd(a, sRD, 38, 2048*1152)
    a(f"""v_and_b32 v{t0}, 15, v{vL}
    s_and_b32 s{sA}, s{sWave}, 1
    s_lshl_b32 s{sA}, s{sA}, 4
    v_add_u32 v{t0}, s{sA}, v{t0}
    v_lshlrev_b32 v{t1}, 18, v{t0}
    v_lshrrev_b32 v{t2}, 4, v{vL}
    v_lshl_add_u32 v{t1}, v{t2}, 4, v{t1}
    s_lshl_b32 s{sA}, s{sRb}, 12""")
    for k in range(4):
        r = sRB if k < 2 else sRC
        a(f"buffer_load_dwordx4 v[{W2+4*k}:{W2+4*k+3}], v{t1}, s[{r}:{r+3}], s{sA} offen offset:{64*(k&1)}")
    nds = [0]
    def dstep(dst, r, sc=""):
        nds[0] += 1
        for i in range(3):
            if i == 2: a(f"s_cmp_lg_u32 s{sWave}, 0\ns_cbranch_scc1 f_ds{nds[0]}")
            a(f"s_add_u32 m0, s{sC}, {dst + 4096*i}\ns_nop 0")
            a(f"buffer_load_dwordx4 v{vS+i}, s[{r}:{r+3}], s{sB} offen {sc} lds")
        a.label(f"f_ds{nds[0]}")
    def dsaddr(m): return LW + 9216*m if m < 5 else 9216*(m - 5)
    def wo_step(m):
        a(f"s_add_u32 s{sB}, s{sJ}, {m}\ns_and_b32 s{sB}, s{sB}, 7\ns_mul_i32 s{sB}, s{sB}, {72*1152}\ns_add_u32 s{sB}, s{sB}, s{sCol}")
        dstep(dsaddr(m), sRA)
    lds_wait(a, "f_t1", vPr, t1, 3, sleep=16)
    for m in range(5): wo_step(m)
    lds_wait(a, "f_t3", vPr, t1, 4, sleep=16)
    for m in range(5, 8): wo_step(m)
    for i in range(3):
        a(f"""v_lshrrev_b32 v{t2}, 1, v{vK+i}
        v_lshl_add_u32 v{t2}, v{t2}, 4, v{vK+i}
        v_add_u32 v{t2}, 16, v{t2}
        s_movk_i32 s3, 1152
        v_mad_u32_u24 v{vS+i}, v{t2}, s3, v{vC+i}""")
    if "b5" in EXP: bail()
    all_tags("f_t6", FL2, F_S2, OB, 8)
    a(f"""v_and_b32 v{t1}, 31, v{vL}
    v_lshrrev_b32 v{t2}, 5, v{vL}
    v_lshlrev_b32 v{t1}, 2, v{t1}
    v_lshl_add_u32 v{t1}, v{t2}, 12, v{t1}
    s_lshl_b32 s3, s{sT1}, 7
    s_add_u32 s3, s3, {GG}
    buffer_load_dword v{t2}, v{t1}, s[{sWS}:{sWS+3}], s3 offen sc1
    v_lshlrev_b32 v{t1}, 2, v{vL}
    v_add_u32 v{t1}, {F_G}, v{t1}
    v_mov_b32 v{t3}, 1
    s_waitcnt vmcnt(0)
    ds_write_b32 v{t1}, v{t2}
    ds_write_b32 v{vF}, v{t3}
    s_cmp_lg_u32 s2, 0
    s_cbranch_scc1 f_t6_x
    v_mov_b32 v{t1}, {EP}
    v_mov_b32 v{t2}, s{sNon}
    v_mov_b32 v{t3}, s{sNon+1}
    s_mov_b64 exec, 1
    buffer_store_dwordx2 v[{t2}:{t3}], v{t1}, s[{sWS}:{sWS+3}], 0 offen
    s_mov_b64 exec, -1""")
    a.label("f_t6_x")
    stamp(a, 5, "H")
    lds_wait(a, "f_t7", vPr, t1, 5, sleep=8)
    a(f"s_mov_b32 s{sB}, s{sCol}")
    dstep(dsaddr(8), sRA)
    for i in range(3): a(f"s_movk_i32 s3, {GP}\nv_mad_u32_u24 v{vS+i}, v{vK+i}, s3, v{vC+i}")
    a(f"""s_mul_i32 s{sB}, s{sT1}, {128*GP}
    s_add_u32 s{sB}, s{sB}, {GT}
    s_add_u32 s{sB}, s{sB}, s{sCol}
    s_cmp_ge_u32 s{sJ}, 4
    s_cselect_b32 s3, {GU - 2 - 576}, 0
    s_add_u32 s{sB}, s{sB}, s3
    s_lshr_b32 s3, s{sWave}, 1
    s_lshl_b32 s3, s3, 7
    s_add_u32 s3, s3, {F_G}
    v_lshlrev_b32 v{t0}, 2, v{t0}
    v_add_u32 v{t0}, s3, v{t0}""")
    lds_wait(a, "f_t8", vF, t1, 1, sleep=4)
    a(f"ds_read_b32 v{vG}, v{t0}")
    dstep(dsaddr(9), sWS, "sc1")
    a(f"s_add_u32 s{sB}, s{sB}, {64*GP}")
    dstep(dsaddr(10), sWS, "sc1")
    a(f"""s_lshl_b32 s3, s{sWave}, 2
    s_add_u32 s3, s3, {F_TA}
    v_mov_b32 v{t0}, s3
    v_mov_b32 v{t1}, 2
    v_and_b32 v{vF}, 3, v{vL}
    v_lshlrev_b32 v{vF}, 2, v{vF}
    v_add_u32 v{vF}, {F_TA}, v{vF}
    v_lshrrev_b32 v{t2}, 4, v{vL}
    v_bfe_u32 v{t3}, v{vL}, 2, 2
    v_lshl_add_u32 v{t2}, v{t2}, 2, v{t3}
    v_mul_u32_u24 v{t2}, 288, v{t2}
    v_and_b32 v{t3}, 3, v{vL}
    v_lshl_add_u32 v{vTr}, v{t3}, 3, v{t2}
    v_add_u32 v{vPr}, {LW}, v{vTr}
    s_waitcnt vmcnt(0)
    ds_write_b32 v{t0}, v{t1}""")
    lds_wait(a, "f_t9", vF, t1, 2, sleep=2)
    stamp(a, 6, "H")
    NR = 7
    def rd(f):
        ks, mu = divmod(f, 5)
        m = 9 + (ks >> 1) if ks < 4 else (ks - 4) >> 1
        v, o = (vPr, 9216*m) if m < 5 else (vTr, 9216*(m - 5))
        o += 4608*(ks & 1) + 32*mu
        r = AR + 4 * (f % 8)
        a(f"ds_read_b64_tr_b16 v[{r}:{r+1}], v{v} offset:{o}")
        a(f"ds_read_b64_tr_b16 v[{r+2}:{r+3}], v{v} offset:{o+144}")
    a(f"v_mov_b32 v{vF}, {F_CNT3}")
    if "fearly" not in EXP: lds_wait(a, "f_t12", vF, 5, 8, sleep=2)
    for f in range(NR): rd(f)
    for f in range(110):
        ks, mu = divmod(f, 5)
        if f == 20:
            a("s_nop 3")
            for r in range(20): a(f"v_mul_f32 v{ACC+r}, v{ACC+r}, v{vG}")
            a(f"""v_and_b32 v{t1}, 7, v{vL}
            v_lshlrev_b32 v{t1}, 3, v{t1}
            s_lshl_b32 s{sD}, s{sWave}, 12
            s_lshl_b32 s3, s{sT1}, 7
            s_add_u32 s{sD}, s{sD}, s3
            s_add_u32 s{sD}, s{sD}, {FL3}
            s_lshl_b32 s{sA}, s{sT1}, 2
            s_add_u32 s{sA}, s{sA}, s{sWave}
            s_lshl_b32 s{sB}, s{sA}, 11
            s_and_b32 s{sB}, s{sB}, {0xfffff000}
            s_and_b32 s3, s{sWave}, 1
            s_lshl_b32 s3, s3, 6
            s_add_u32 s{sB}, s{sB}, s3
            s_add_u32 s{sB}, s{sB}, {OX}
            s_lshl_b32 s{sA}, s{sA}, 14
            s_add_u32 s{sA}, s{sA}, {OF}
            v_and_b32 v{t2}, 15, v{vL}
            v_lshrrev_b32 v{t3}, 4, v{vL}
            v_lshlrev_b32 v{t2}, 2, v{t2}
            v_lshl_add_u32 v{t3}, v{t3}, 9, v{t2}
            v_lshlrev_b32 v{t0}, 4, v{vL}""")
            stamp12(a, 1)
            a(f"v_mov_b32 v{vF}, {F_CNT3}")
            lds_wait(a, "f_t11", vF, 5, 8, sleep=1)
            stamp(a, 1, "T")
            tag_wait(a, "f_t10", t1, sD, 1, W2, sleep=1, lanes=8 if 'noat' not in EXP else 0)
            stamp12(a, 2); stamp(a, 2, "T")
            for k in range(18):
                if k >= 16:
                    for j in range(4): a.vmem(f"buffer_load_dword v{OB+4*k+j}, v{t3}, s[{sWS}:{sWS+3}], s{sB} offen offset:{2048*(k-16) + 128*j} sc1", f"o{k}")
                    continue
                if k & 1 == 0: a(f"s_add_u32 s3, s{sJ}, {k//2}\ns_and_b32 s3, s3, 7\ns_lshl_b32 s3, s3, 11\ns_add_u32 s3, s3, s{sA}")
                a.vmem(f"buffer_load_dwordx4 v[{OB+4*k}:{OB+4*k+3}], v{t0}, s[{sWS}:{sWS+3}], s3 offen offset:{(k&1)*1024} {'' if 'oplain' in EXP else 'sc1'}", f"o{k}")
        if ks >= 4 and mu == 0: a.vm_wait(f"o{ks-4}")
        if ks == 4 and mu == 0: stamp(a, 3, "T")
        if ks == 21 and mu == 0: stamp(a, 4, "T")
        if f & 1 == 0: a(f"s_waitcnt lgkmcnt({2*(min(110, f + NR) - f - 2)})")
        r = AR + 4 * (f % 8)
        B = W2 + 4*ks if ks < 4 else OB + 4*(ks-4)
        ac = ACC + 4*mu
        a(f"v_mfma_f32_16x16x32_bf16 v[{ac}:{ac+3}], v[{r}:{r+3}], v[{B}:{B+3}], " + ("0" if ks == 0 else f"v[{ac}:{ac+3}]"))
        if f + NR < 110: rd(f + NR)
    stamp12(a, 3); stamp(a, 5, "T")
    a(f"""s_mul_i32 s{sA}, s{sWave}, 2304
    s_add_u32 s{sA}, s{sA}, {56*1024}
    v_and_b32 v{t1}, 15, v{vL}
    v_mul_u32_u24 v{t1}, 144, v{t1}
    v_lshrrev_b32 v{t2}, 4, v{vL}
    v_lshl_add_u32 v{t1}, v{t2}, 3, v{t1}
    v_add_u32 v{t1}, s{sA}, v{t1}
    v_add_u32 v{t0}, s{sA}, v{t0}""")
    for mu in range(5):
        ac = ACC + 4*mu
        a(f"v_cvt_pk_bf16_f32 v{W2+2*mu}, v{ac}, v{ac+1}\nv_cvt_pk_bf16_f32 v{W2+2*mu+1}, v{ac+2}, v{ac+3}")
        if mu == 4: a("s_mov_b32 exec_hi, 0")
        a(f"ds_write_b64 v{t1}, v[{W2+2*mu}:{W2+2*mu+1}] offset:{32*mu}")
    a(f"""s_mov_b32 exec_hi, -1
    s_and_b32 s{sA}, s{sWave}, 1
    s_mul_i32 s{sA}, s{sA}, {16*73728}
    s_mul_i32 s{sB}, s{sRb}, 1152
    s_add_u32 s{sA}, s{sA}, s{sB}
    s_add_u32 s{sA}, s{sA}, s{sCol}
    s_mov_b32 s{sB}, {73728-144}
    s_waitcnt lgkmcnt(0)""")
    for it in range(3): a(f"ds_read_b128 v[{OB+4*it}:{OB+4*it+3}], v{t0} offset:{1024*it}")
    for it in range(3):
        a(f"""v_add_u32 v{t1}, {64*it}, v{vL}
        v_mul_u32_u24 v{t2}, 7282, v{t1}
        v_lshrrev_b32 v{t2}, 16, v{t2}
        v_lshlrev_b32 v{t1}, 4, v{t1}
        v_mad_u32_u24 v{12+it}, v{t2}, s{sB}, v{t1}""")
    for it in range(3):
        a(f"s_waitcnt lgkmcnt({2-it})")
        if it == 2: a("s_mov_b64 exec, 0xffff")
        a(f"buffer_store_dwordx4 v[{OB+4*it}:{OB+4*it+3}], v{12+it}, s[{sRD}:{sRD+3}], s{sA} offen {'sc1' if 'outsc1' in EXP else 'nt' if 'outnt' in EXP else 'sc0 sc1' if 'outsys' in EXP else ''}")
    stamp(a, 6, "T")
    G0.stamp_end(a, 0, sWS, sWave)
    a("s_endpgm")

    a.label("f_att")
    a.vm = []
    Q1, Q2, vG, aK, ak, aV = 4, 8, 10, 11, 12, 13
    vt0, vt1, vt2, vt3 = 2, 3, 14, 15
    O, S, P, K1, K2, V = 16, [32, 48], [64, 72], [80, 84], [88, 90], [92, 100]
    aF, aP = 108, 109
    vW, vR0, vR1, vA0, vA1 = 110, 111, 112, 113, 114
    sW8, sRho, sHd = 70, 71, 72
    vSt = 115
    a("s_barrier")
    if "only" in EXP and "pfonly" not in EXP: a("s_endpgm")
    a(f"s_sub_u32 s{sW8}, s{sWave}, 4")
    if "xpf" in EXP:
        a(f"""s_cmp_lt_u32 s{sWave}, 8
        s_cbranch_scc1 f_pf9
        s_cmp_ge_u32 s{sWave}, 10
        s_cbranch_scc1 f_pf2
        v_mul_u32_u24 v{vt1}, 7282, v{vL}
        v_lshrrev_b32 v{vt1}, 16, v{vt1}
        v_lshlrev_b32 v{vt0}, 7, v{vL}
        s_mov_b32 s3, {36864 - 1152}
        v_mad_u32_u24 v{vt0}, v{vt1}, s3, v{vt0}
        s_lshl_b32 s3, s{sJ}, 1
        s_and_b32 s6, s{sWave}, 1
        s_add_u32 s3, s3, s6
        s_mul_i32 s3, s3, {4*36864}
        s_mul_i32 s6, s{sT1}, 1152
        s_add_u32 s3, s3, s6
        s_waitcnt lgkmcnt(0)""")
        srd(a, sRA, 16, 2048*1152)
        a(f"""s_mov_b32 exec_hi, 0xf
        buffer_load_dword v{vW}, v{vt0}, s[{sRA}:{sRA+3}], s3 offen
        s_mov_b32 exec_hi, -1
        s_branch f_pf8""")
        a.label("f_pf2")
        a(f"""s_lshr_b32 s3, s2, 3
        s_mul_i32 s3, s3, 768
        v_lshlrev_b32 v{vt0}, 7, v{vL}
        s_cmp_eq_u32 s{sWave}, 10
        s_waitcnt lgkmcnt(0)
        s_cselect_b32 s{sRA}, s30, s32
        s_cselect_b32 s{sRA+1}, s31, s33
        s_mov_b32 s{sRA+2}, {576*36}
        s_mov_b32 s{sRA+3}, 0x20000
        s_mov_b64 exec, 0x3f
        buffer_load_dword v{vW}, v{vt0}, s[{sRA}:{sRA+3}], s3 offen
        s_mov_b64 exec, -1""")
        a.label("f_pf8")
        if "wqpf" in EXP:
            srd(a, sRA, 28, 576*1152)
            a(f"""s_lshr_b32 s3, s2, 3
            s_lshl_b32 s3, s3, 2
            s_add_u32 s3, s3, s{sWave}
            s_sub_u32 s3, s3, 8
            s_mul_i32 s3, s3, {41*128}
            v_lshlrev_b32 v{vt0}, 7, v{vL}
            {"s_waitcnt vmcnt(0)" if "wqw" in EXP else ""}
            s_mov_b32 exec_hi, 0x1ff
            buffer_load_dword v{vW}, v{vt0}, s[{sRA}:{sRA+3}], s3 offen
            s_mov_b32 exec_hi, -1""")
        a.label("f_pf9")
    a("s_getpc_b64 s[4:5]")
    a.label("f_pf")
    a(f"""s_sub_u32 s4, s4, f_pf-f_code
    s_subb_u32 s5, s5, 0
    s_lshr_b32 s3, s2, 3
    s_lshl_b32 s6, s{sW8}, 6
    s_add_u32 s3, s3, s6
    v_lshlrev_b32 v{vt0}, 5, v{vL}
    v_add_u32 v{vt0}, s3, v{vt0}
    v_lshlrev_b32 v{vt0}, 7, v{vt0}
    v_min_u32 v{vt0}, rf_end-f_code-4, v{vt0}
    s_mov_b64 exec, 3
    global_load_dword v130, v{vt0}, s[4:5]
    s_mov_b64 exec, -1""")
    if "pfonly" in EXP: a("s_endpgm")
    xread(a, vR0, vR1, vt0, vt1)
    a(f"""s_lshr_b32 s{sRho}, s{sW8}, 2
    s_and_b32 s{sHd}, s{sW8}, 3
    s_mul_i32 s3, s{sRho}, 36864
    v_add_u32 v{vR0}, s3, v{vR0}
    v_xor_b32 v{vR1}, 32, v{vR0}
    s_bitcmp1_b32 s{sHd}, 0
    s_mov_b32 s{sB}, 0x34343120
    s_mov_b32 s{sC}, {LW}
    s_cmov_b32 s{sB}, 0x44423120
    s_cmov_b32 s{sC}, {LW-4}
    s_mul_i32 s3, s{sHd}, 36
    s_add_u32 s{sC}, s{sC}, s3
    v_bfe_u32 v{vt0}, v{vL}, 4, 1
    v_and_b32 v{vt1}, 3, v{vL}
    v_lshl_add_u32 v{vt0}, v{vt0}, 2, v{vt1}
    v_lshlrev_b32 v{vt0}, 2, v{vt0}
    v_lshrrev_b32 v{vt0}, v{vt0}, s{sB}
    v_and_b32 v{vt0}, 15, v{vt0}
    v_bfe_u32 v{vt1}, v{vL}, 2, 2
    v_lshrrev_b32 v{vt3}, 5, v{vL}
    v_lshl_add_u32 v{vt1}, v{vt1}, 1, v{vt3}
    v_mul_u32_u24 v{vt1}, 288, v{vt1}
    v_lshl_add_u32 v{vA0}, v{vt0}, 3, v{vt1}
    v_add_u32 v{vA0}, s{sC}, v{vA0}
    v_subrev_u32 v{vA1}, {LW-LD}, v{vA0}
    v_and_b32 v{aF}, 3, v{vL}
    v_min_u32 v{aF}, 2, v{aF}
    v_lshlrev_b32 v{aF}, 2, v{aF}
    v_add_u32 v{aF}, {F_LD}, v{aF}
    v_and_b32 v{vt2}, 31, v{vL}
    v_lshlrev_b32 v{ak}, 2, v{vt2}
    s_lshl_b32 s3, s{sW8}, 2
    s_add_u32 s3, s3, {F_PRG}
    v_mov_b32 v{aP}, s3
    v_lshlrev_b32 v{vSt}, 4, v{vL}
    v_add_u32 v{aK}, {LW}, v{vSt}
    v_add_u32 v{ak}, {LW+1024}, v{ak}
    v_cmp_eq_u32 vcc, 28, v{vt2}
    v_mul_u32_u24 v{vt0}, 19, v{vt3}
    s_nop 0
    v_cndmask_b32 v{aV}, v{vt2}, 18, vcc
    v_cmp_gt_u32 vcc, 19, v{aV}
    v_add_u32 v{aV}, v{aV}, v{vt0}
    s_nop 0
    v_cndmask_b32 v{aV}, 38, v{aV}, vcc
    v_lshlrev_b32 v{aV}, 4, v{aV}
    v_add_u32 v{aV}, {LW+1152}, v{aV}""")
    sO, sHead, vOa, vOb, vGa = 76, 73, 128, 129, 131
    a(f"""s_lshl_b32 s{sHead}, s{sJ}, 2
    s_add_u32 s{sHead}, s{sHead}, s{sHd}
    s_lshl_b32 s{sA}, s{sT1}, 1
    s_add_u32 s{sA}, s{sA}, s{sRho}
    s_lshl_b32 s{sB}, s{sA}, 12
    s_lshl_b32 s3, s{sHead}, 7
    s_add_u32 s{sB}, s{sB}, s3
    s_add_u32 s{sO+1}, s{sB}, {OX}
    s_lshl_b32 s{sA}, s{sA}, 15
    s_lshl_b32 s3, s{sHead}, 9
    s_add_u32 s{sA}, s{sA}, s3
    s_add_u32 s{sO}, s{sA}, {OF}
    v_lshlrev_b32 v{vOb}, 2, v{vt2}
    v_and_b32 v{vOa}, 15, v{vL}
    v_lshlrev_b32 v{vOa}, 4, v{vOa}
    v_bfe_u32 v{vt1}, v{vL}, 4, 1
    v_lshl_add_u32 v{vOa}, v{vt1}, 14, v{vOa}
    v_lshl_add_u32 v{vOa}, v{vt3}, 8, v{vOa}
    s_lshl_b32 s3, s{sRho}, 7
    s_add_u32 s3, s3, {F_G}
    v_add_u32 v{vGa}, s3, v{vOb}""")
    common_srd()
    GO, vN, sGrp = [116, 120, 124, 132], 130, 74
    sGi = 75
    a(f"""s_mov_b32 s{sGi}, 0x44443210
    s_cmp_ge_u32 s{sJ}, 4
    s_cmov_b32 s{sGi}, 0x46543210
    s_cmp_ge_u32 s{sJ}, 6
    s_cmov_b32 s{sGi}, 0x44543210
    s_lshl_b32 s3, s{sW8}, 2
    s_lshr_b32 s{sGi}, s{sGi}, s3
    s_and_b32 s{sGi}, s{sGi}, 15
    s_and_b32 s3, s{sJ}, 1
    s_sub_u32 s3, s3, s{sRho}
    s_mul_i32 s3, s3, 36864
    v_add_u32 v{vW}, s3, v{vR0}
    s_cmp_eq_u32 s{sGi}, 4
    s_cbranch_scc1 f_a0
    s_cmp_eq_u32 s{sGi}, 6
    s_cbranch_scc1 f_gate
    s_lshr_b32 s{sGrp}, s{sJ}, 1
    s_add_u32 s3, s{sGrp}, 14
    s_lshl_b32 s{sGrp}, s{sGrp}, 2
    s_add_u32 s{sGrp}, s{sGrp}, s{sGi}
    s_cmp_eq_u32 s{sGi}, 5
    s_cselect_b32 s{sGrp}, s3, s{sGrp}""")
    a.label("f_job")
    fnet_job(a)
    stamp(a, 6, "J")
    a("s_branch f_a0")
    a.label("f_gate")
    a(f"""v_xor_b32 v4, 32, v{vW}
    v_lshlrev_b32 v5, 4, v{vt3}
    v_add_u32 v5, {LGATE}, v5
    v_add_u32 v6, {F_G2}, v{vOb}""")
    lds_wait(a, "f_g1", aF, vt0, 6, sleep=1)
    duty_chain("G", 16, vW, 4, 5)
    a(f"""s_nop 11
    v_mul_f32 v4, {f2u(-math.log2(math.e))}, v16
    v_exp_f32 v4, v4
    s_nop 0
    v_add_f32 v4, 1.0, v4
    v_rcp_f32 v4, v4
    s_nop 0
    ds_write_b32 v6, v4""")
    a.label("f_a0")
    stamp(a, 1, "P")
    QA, QR = S[0], 64
    for c in range(9):
        if c: a(f"v_cmp_gt_i32 vcc, {QF + c}, v{vt0}\ns_cbranch_vccz f_q{c}_ok")
        lds_wait(a, f"f_q{c}", aF, vt0, QF + c, sleep=2 if "qsleep" in EXP else 0)
        a.label(f"f_q{c}_ok")
        if c == 0:
            nonce(); stamp(a, 2, "P")
            if "C" not in EXP: stamp(a, 1)
        if c == 5: stamp(a, 3, "P")
        v, o = (vA0, 9216*c) if c < 5 else (vA1, 9216*(c-5))
        for i in range(4):
            b, ks = QR + 8*i, 4*c + i
            if "noqrd" in EXP: continue
            a(f"ds_read_b64_tr_b16 v[{b}:{b+1}], v{v} offset:{o + 2304*i}")
            a(f"ds_read_b64_tr_b16 v[{b+2}:{b+3}], v{v} offset:{o + 2304*i + 144}")
            a(f"ds_read_b128 v[{b+4}:{b+7}], v{vR1 if ks & 1 else vR0} offset:{2048*(ks>>1)}")
        for i in range(4):
            b, ks = QR + 8*i, 4*c + i
            if i == 3 and c < 8: a(f"ds_read_b32 v{vt0}, v{aF}")
            a(f"s_waitcnt lgkmcnt({9 - 3*i + (i == 3 and c < 8)})")
            a(f"v_mfma_f32_32x32x16_bf16 v[{QA}:{QA+15}], v[{b}:{b+3}], v[{b+4}:{b+7}], " + ("0" if ks == 0 else f"v[{QA}:{QA+15}]"))
        if c == 1: a(f"v_mov_b32 v{vt1}, 1\nds_write_b32 v{aP}, v{vt1}")
        a("s_waitcnt lgkmcnt(0)")
    stamp(a, 4, "P")
    for r in range(16): a(f"v_mov_b32 v{O+r}, 0")
    a(f"s_mov_b32 s{sB}, {f2u(CQ)}\ns_bitcmp1_b32 s{sHd}, 0\ns_cbranch_scc1 f_qodd")
    T = S[1]
    def qmove(r0, rx):
        for r in range(8): a(f"v_mul_f32 v{T+r}, s{sB}, v{QA+r0+r}")
        for r in range(2): a(f"v_mul_f32 v{T+8+r}, s{sB}, v{QA+rx+r}")
    qmove(0, 8)
    a("s_branch f_qdone")
    a.label("f_qodd")
    qmove(2, 14)
    a.label("f_qdone")
    for r in range(2): a(f"v_cndmask_b32 v{T+8+r}, v{T+8+r}, 0, s[{sHi}:{sHi+1}]")
    a(f"v_mul_f32 v{vt0}, v{T}, v{T}")
    for r in range(1, 10): a(f"v_fmac_f32 v{vt0}, v{T+r}, v{T+r}")
    for k in range(5): a(f"v_cvt_pk_bf16_f32 v{Q1+k}, v{T+2*k}, v{T+2*k+1}")
    a(f"v_mov_b32 v{vt1}, v{vt0}")
    a(f"""v_and_b32 v{aF}, 3, v{vL}
    v_lshlrev_b32 v{aF}, 2, v{aF}
    v_permlane32_swap_b32 v{vt0}, v{vt1}
    v_add_u32 v{aF}, {F_KV}, v{aF}
    v_add_f32 v{vt0}, v{vt0}, v{vt1}
    v_sqrt_f32 v{vt0}, v{vt0}
    v_mov_b32 v{vt2}, {F_KC}
    v_cvt_pk_bf16_f32 v{Q2+1}, v{vt0}, 1.0
    v_cndmask_b32 v{Q2+1}, v{Q2+1}, 0, s[{sHi}:{sHi+1}]""")
    a(f"""s_lshl_b32 s3, s{sGi}, 1
    v_lshrrev_b32 v{vt0}, 5, v{vL}
    v_add_u32 v{vt0}, s3, v{vt0}
    v_xor_b32 v{vt0}, v{vt0}, v{vL}
    v_and_b32 v{vt0}, 7, v{vt0}
    v_lshlrev_b32 v{vt0}, 4, v{vt0}
    v_lshl_add_u32 v{vt0}, v{vOb}, 5, v{vt0}
    v_add_u32 v{vt0}, {GSC}, v{vt0}
    v_xor_b32 v{vt1}, 112, v{vt0}
    v_add_u32 v{vW}, {F_N}, v{vOb}
    s_lshl_b32 s3, s{sGi}, 2
    s_add_u32 s3, s3, {F_XC}
    v_mov_b32 v{vA0}, s3
    v_mov_b32 v{vA1}, 1""")
    stamp(a, 6, "P")
    a(f"""s_barrier
    s_setprio {PRIO[0]}""")
    stamp(a, 3)
    a(f"s_cmp_lg_u32 s{sGi}, 5\ns_cbranch_scc1 f_a5\nv_add_u32 v{vt0}, {GSC + 16384}, v{vSt}")
    for kind in range(4): a(f"ds_write_b128 v{vt0}, v[{GO[kind]}:{GO[kind]+3}] offset:{1024*kind}")
    a("s_branch f_a3")
    a.label("f_a5")
    a(f"s_cmp_ge_u32 s{sGi}, 4\ns_cbranch_scc1 f_a1")
    for kind in range(4): a(f"ds_write_b128 v{vt1 if kind >> 1 else vt0}, v[{GO[kind]}:{GO[kind]+3}] offset:{4096*kind}")
    a(f"s_cmp_lg_u32 s{sGi}, 0\ns_cbranch_scc1 f_a3\ns_mov_b32 exec_hi, 0\nds_write_b32 v{vW}, v{vN}\ns_mov_b32 exec_hi, -1")
    a.label("f_a3")
    a(f"ds_write_b32 v{vA0}, v{vA1}")
    a.label("f_a1")
    if G0.STAMP and "C" in EXP: a("s_memtime s[84:85]")
    base = {aK: LW, ak: LW, aV: LW}
    def off(v, j, extra=0):
        o = ltile(j) + extra - base[v]
        if not 0 <= o < 65536:
            nb = ltile(j)
            a(f"v_add_u32 v{v}, {(nb - base[v]) & 0xffffffff}, v{v}")
            base[v] = nb; o = extra
        return o
    rdK = lambda j: f"ds_read_b128 v[{K1[j&1]}:{K1[j&1]+3}], v{aK} offset:{off(aK, j)}"
    rdk = lambda j: f"ds_read_b32 v{K2[j&1]}, v{ak} offset:{off(ak, j)}"
    rdV = lambda j, u: f"ds_read_b128 v[{V[j&1]+4*u}:{V[j&1]+4*u+3}], v{aV} offset:{off(aV, j, 624) - 624*(1-u)}"
    def M1(j): return f"v_mfma_f32_32x32x16_bf16 v[{S[j&1]}:{S[j&1]+15}], v[{K1[j&1]}:{K1[j&1]+3}], v[{Q1}:{Q1+3}], 0"
    def M2(j): return f"v_mfma_f32_32x32x8_bf16 v[{S[j&1]}:{S[j&1]+15}], v[{K2[j&1]}:{K2[j&1]+1}], v[{Q2}:{Q2+1}], v[{S[j&1]}:{S[j&1]+15}]"
    def M3(j, u): return f"v_mfma_f32_32x32x16_bf16 v[{O}:{O+15}], v[{V[j&1]+4*u}:{V[j&1]+4*u+3}], v[{P[j&1]+4*u}:{P[j&1]+4*u+3}], v[{O}:{O+15}]"
    a(rdK(0)); a(rdk(0)); a(f"ds_read_b32 v{K2[0]+1}, v{vt2}"); a(rdK(1)); a(rdk(1)); a(f"ds_read_b32 v{K2[1]+1}, v{vt2}")
    a("s_waitcnt lgkmcnt(3)")
    a(M1(0)); a(M2(0))
    a("s_waitcnt lgkmcnt(0)\ns_nop 8")
    FCHK = {4: 1, 11: 2, 24: 3}
    PRG = {20: 3, 32: 4, 44: 5}
    for j in range(64):
        if j in PRIO and j: a(f"s_setprio {PRIO[j]}")
        if j == 32: stamp(a, 4)
        if j in PRG: a(f"v_mov_b32 v{vt1}, {PRG[j]}\nds_write_b32 v{aP}, v{vt1}")
        if j in FCHK: lds_wait(a, f"f_w{j}", aF, vt0, FCHK[j])
        if j == 25: a(f"v_mov_b32 v{aF}, {F_S2}")
        if j == 61:
            lds_wait(a, "f_a4", aF, vt0, 1)
            a(f"ds_read_b32 v{vG}, v{vGa}")
        if j == 62: a(f"v_sub_f32 v{vG}, 1.0, v{vG}")
        s, p = S[j & 1], P[j & 1]
        e = lambda i: f"v_exp_f32 v{s+i}, v{s+i}"
        c = lambda i: f"v_cvt_pk_bf16_f32 v{p+i}, v{s+2*i}, v{s+2*i+1}"
        nx, pv, ld = j + 1 < 64, j > 0, j + 2 < 64
        L = []
        if ld: lk, lk2 = rdK(j+2), rdk(j+2)
        lv0, lv1 = rdV(j, 0), rdV(j, 1)
        if nx: L.append(M1(j+1))
        if ld: L.append(lk)
        L += [e(0), e(1), e(2), e(3), c(0)]
        if nx: L.append(M2(j+1))
        if ld: L.append(lk2)
        L += [e(4), e(5), c(1), e(6), e(7), c(2)]
        if pv: L.append(M3(j-1, 0))
        L += [lv0, lv1]
        L += [e(8), e(9), c(3), e(10), e(11), c(4)]
        if pv: L.append(M3(j-1, 1))
        L += [e(12), e(13), c(5), e(14), e(15), c(6), c(7), "s_waitcnt lgkmcnt(0)"]
        for x in L: a(x)
    a("s_nop 0"); a(M3(63, 0)); a(M3(63, 1))
    stamp(a, 5); stamp(a, 5, "T")
    if G0.STAMP and "C" in EXP: a("s_memtime s[86:87]")
    a("s_nop 11")
    vl = S[0]
    a(f"v_cndmask_b32 v{vl}, v{O+10}, v{O+12}, s[{sHi}:{sHi+1}]")
    a(f"v_add_f32 v{vt0}, |v{O}|, |v{O+1}|")
    for r in range(2, 10): a(f"v_add_f32 v{vt0}, |v{O+r}|, v{vt0}")
    a(f"""v_add_f32 v{vt0}, v{vl}, v{vt0}
    v_cmp_le_f32 vcc, {f2u(LMIN)}, v{vl}
    v_mov_b32 v{vt1}, 0x7f800000
    v_cmp_lt_f32 s[6:7], v{vt0}, v{vt1}
    s_nop 0
    s_and_b64 vcc, vcc, s[6:7]
    s_cmp_eq_u64 vcc, exec
    {"" if "nofb" in EXP else "s_cbranch_scc0 f_fallback"}""")
    a.label("f_norm")
    a(f"v_rcp_f32 v{vl}, v{vl}\ns_nop 0\nv_mul_f32 v{vl}, v{vl}, v{vG}")
    for r in range(10): a(f"v_mul_f32 v{O+r}, v{O+r}, v{vl}")
    for k in range(5): a(f"v_cvt_pk_bf16_f32 v{P[0]+k}, v{O+2*k}, v{O+2*k+1}")
    a(f"""buffer_store_dwordx4 v[{P[0]}:{P[0]+3}], v{vOa}, s[{sWS}:{sWS+3}], s{sO} offen sc1
    s_mov_b32 exec_hi, 0
    {"" if "noext" in EXP else f"buffer_store_dword v{P[0]+4}, v{vOb}, s[{sWS}:{sWS+3}], s{sO+1} offen sc1"}
    s_mov_b32 exec_hi, -1""")
    stamp(a, 1, "T")
    if "T" in EXP: a("s_waitcnt vmcnt(0)")
    stamp(a, 2, "T")
    last_wave_signals(a, "f_a9", F_CNT3, 8, FL3, 4, vt0, vt2, 'noat' not in EXP)
    stamp(a, 3, "T")
    G0.stamp_end(a, 0, sWS, sWave)
    a("s_endpgm")
    a.label("f_fallback")
    s0 = S[0]
    a(f"""v_subrev_u32 v{aK}, {base[aK]}, v{aK}
    v_subrev_u32 v{ak}, {base[ak]}, v{ak}
    v_subrev_u32 v{aV}, {base[aV]}, v{aV}
    v_mov_b32 v{K2[0]+1}, 0
    v_mov_b32 v{vt0}, 0xff800000
    s_mov_b32 s{sA}, {KVG}""")
    a.label("f_fb1")
    a(f"""buffer_load_dwordx4 v[{K1[0]}:{K1[0]+3}], v{aK}, s[{sWS}:{sWS+3}], s{sA} offen sc1
    buffer_load_dword v{K2[0]}, v{ak}, s[{sWS}:{sWS+3}], s{sA} offen sc1
    s_waitcnt vmcnt(0)""")
    a(M1(0)); a(M2(0)); a("s_nop 11")
    for r in range(0, 16, 2): a(f"v_max3_f32 v{vt0}, v{s0+r}, v{s0+r+1}, v{vt0}")
    a(f"""s_add_u32 s{sA}, s{sA}, {TILE}
    s_cmp_lt_u32 s{sA}, {KVG+64*TILE}
    s_cbranch_scc1 f_fb1
    v_mov_b32 v{vt1}, v{vt0}
    s_nop 1
    v_permlane32_swap_b32 v{vt0}, v{vt1}
    v_max_f32 v{vt0}, v{vt0}, v{vt1}
    v_cvt_pk_bf16_f32 v{vt1}, v{vt0}, v{vt0}
    v_and_b32 v{vt1}, 0xffff0000, v{vt1}
    v_sub_f32 v{vt0}, v{vt0}, v{vt1}
    v_cvt_pk_bf16_f32 v{Q2+1}, v{vt1}, v{vt0}
    v_cndmask_b32 v{Q2+1}, v{Q2+1}, 0, s[{sHi}:{sHi+1}]
    v_mov_b32 v{K2[0]+1}, 0xbf80bf80
    s_mov_b32 s{sA}, {KVG}""")
    for r in range(16): a(f"v_mov_b32 v{O+r}, 0")
    a.label("f_fb2")
    a(f"""buffer_load_dwordx4 v[{K1[0]}:{K1[0]+3}], v{aK}, s[{sWS}:{sWS+3}], s{sA} offen sc1
    buffer_load_dword v{K2[0]}, v{ak}, s[{sWS}:{sWS+3}], s{sA} offen sc1
    buffer_load_dwordx4 v[{V[0]}:{V[0]+3}], v{aV}, s[{sWS}:{sWS+3}], s{sA} offen sc1
    buffer_load_dwordx4 v[{V[0]+4}:{V[0]+7}], v{aV}, s[{sWS}:{sWS+3}], s{sA} offen offset:624 sc1
    s_waitcnt vmcnt(0)""")
    a(M1(0)); a(M2(0)); a("s_nop 11")
    for r in range(16): a(f"v_exp_f32 v{s0+r}, v{s0+r}")
    a("s_nop 0")
    for k in range(8): a(f"v_cvt_pk_bf16_f32 v{P[0]+k}, v{s0+2*k}, v{s0+2*k+1}")
    a("s_nop 1"); a(M3(0, 0)); a(M3(0, 1))
    a(f"""s_add_u32 s{sA}, s{sA}, {TILE}
    s_cmp_lt_u32 s{sA}, {KVG+64*TILE}
    s_cbranch_scc1 f_fb2
    s_nop 11
    v_cndmask_b32 v{vl}, v{O+10}, v{O+12}, s[{sHi}:{sHi+1}]
    s_branch f_norm""")
    a.label("f_end")
    a("s_endpgm")
    return a

HEAD = """; Fused FNet + multi-query attention + gate.  One launch, 256 workgroups of 12 waves, one per CU.
"""
def build(a, vgpr=168):
    i0, i1 = a.lines.index("f_duty:"), a.lines.index("f_dS:")
    if "dplain" in EXP: a.lines[i0:i1] = [l.replace(" sc1", "") if "buffer_store" in l and "dwordx2" not in l else l for l in a.lines[i0:i1]]
    if "dnost" in EXP: a.lines[i0:i1] = [l for l in a.lines[i0:i1] if not ("buffer_store" in l and "dwordx2" not in l)]
    if "noprio" in EXP: a.lines = [l for l in a.lines if l != "s_setprio 3"]
    lab = G0.NAME + "_kernel"
    for p in check(a.lines): print(p, file=sys.stderr)
    out = [HEAD + f"; @launch grid=(256,1,1) block=(768,1,1) lds=163840", '.amdgcn_target "amdgcn-amd-amdhsa--gfx950"\n.text',
           f".globl {lab}\n.p2align 8\n.type {lab},@function\n{lab}:", a.text(), ".p2align 8\n.type rf_table,@object\nrf_table:"]
    w = rf_table()
    for i in range(0, len(w), 8): out.append(".long " + ",".join(f"0x{x:08x}" for x in w[i:i+8]))
    out += [".size rf_table, 4096", "rf_end:", '.section .rodata,"a"', kd(lab, vgpr)]
    return "\n".join(out) + "\n"

if __name__ == "__main__":
    if len(sys.argv) > 2 and sys.argv[2] == "stamp": G0.STAMP = True
    for x in sys.argv[3:]:
        if x.startswith("leak"):
            p = x.split(":"); G0.LEAK = (int(p[1]), int(p[2]), int(p[3]) if len(p) > 3 else None)
        else: EXP.add(x)
    open(sys.argv[1], "w").write(build(gen()))
```

```python
import math, sys
import gen as G0
from gen import Asm, check, srd, f2u, bf16, CQ, TILE, wave_max, load_rf, rf_table, kd
GP, GU = 1280, 704
EP = 0x0
FL0, FL1, FL2, FL3 = 0x8000, 0x10000, 0x20000, 0x30000
KMG = 0x40000
GG = 0x41000
KVG = 0x50000
OF = 0x100000
OX = 0x300000
GT = 0x340000
ST = 0x1200000
WS_SIZE = 0x1300000
G0.GT = GT; G0.ST = ST
OFFS, LMIN = 80.0, 2.0**-100
LX, LD, LW, LGATE, FLG = 0, 73728, 110592, 156672, 159744
F_KV, F_PRG, F_S1F, F_S1, F_CNT2, F_CNT3, F_TA, F_S2, F_S0, F_DUTY, F_KC, F_LD, F_XC, F_BIG, F_G, F_N, F_G2, F_DUMP = FLG, FLG+16, FLG+48, FLG+52, FLG+56, FLG+60, FLG+64, FLG+80, FLG+84, FLG+88, FLG+92, FLG+96, FLG+112, FLG+140, FLG+256, FLG+512, FLG+640, FLG+1024
GSC = 81920
J1 = 20
def ltile(j): return LW + TILE*j if j < J1 else TILE*(j - J1)
PRIO = {0: 2, 32: 1, 60: 0}
if 'p20' in sys.argv: PRIO = {0: 2, 20: 1, 58: 0}
if 'p44' in sys.argv: PRIO = {0: 2, 21: 1, 45: 0}
SPIN = 3000
THR = lambda k, d: next((int(x[len(k):]) for x in EXP if x.startswith(k) and x[len(k):].isdigit()), d)
QF = 7
EXP = set()
def stamp(a, s, g="A"):
    if s == 0 or g in EXP or (g == "A" and not EXP & {"P", "H", "R", "T", "J", "L", "M", "K"}): G0.stamp(a, s)

sWS, sRA, sRB, sRC, sRD = 8, 12, 40, 44, 48
sNon, sWave, sT1, sJ = 54, 56, 57, 58
sA, sB, sC, sD, sE, sF, sG, sH = 59, 60, 61, 62, 63, 64, 65, 66
sHi = 68
sRot = 67
vL = 1

_n = [0]
LABS = {}
def stamp12(a, slot):
    if not G0.STAMP or EXP & {'P', 'H', 'R', 'T', 'J', 'L', 'M', 'K'}: return
    _n[0] += 1
    a(f"s_sub_u32 s3, s{sWave}, 1\ns_cmp_ge_u32 s3, 2\ns_cbranch_scc1 f_st{_n[0]}")
    stamp(a, slot)
    a.label(f"f_st{_n[0]}")

def lds_wait(a, lab, vaddr, vt, val, sleep=0):
    if sleep:
        a(f"s_branch {lab}")
        a.label(lab + "_z")
        a(f"s_sleep {sleep}")
    a.label(lab)
    if G0.STAMP:
        _n[0] += 1
        a(f"s_add_u32 s83, s83, 1\ns_cmp_lt_u32 s83, 200000\ns_cbranch_scc1 {lab}_go\ns_mov_b32 s99, {0x77770000}\ns_mov_b32 s97, {_n[0]}\ns_branch {lab}_to")
        a.label(lab + "_go")
    a(f"ds_read_b32 v{vt}, v{vaddr}\ns_waitcnt lgkmcnt(0)\nv_cmp_gt_i32 vcc, {val}, v{vt}\ns_cbranch_vccnz {lab + ('_z' if sleep else '')}")
    if G0.STAMP: a.label(lab + "_to"); LABS[_n[0]] = lab

def tag_wait(a, lab, vaddr, soff, n, vt, step=1024, sleep=2, lanes=0):
    a(f"s_mov_b32 s{sH}, 0")
    if lanes: a(f"s_mov_b64 exec, {(1 << lanes) - 1}")
    a.label(lab)
    if lanes:
        a(f"v_mov_b32 v{vt}, 0\nv_mov_b32 v{vt+1}, 0\nbuffer_atomic_or_x2 v[{vt}:{vt+1}], v{vaddr}, s[{sWS}:{sWS+3}], s{soff} offen sc0 sc1")
    else:
        for i in range(n): a(f"buffer_load_dwordx2 v[{vt+2*i}:{vt+2*i+1}], v{vaddr}, s[{sWS}:{sWS+3}], s{soff} offen offset:{i*step} sc1")
    a(f"s_add_u32 s{sH}, s{sH}, 1\ns_waitcnt vmcnt(0) lgkmcnt(0)")
    for i in range(n):
        a(f"v_cmp_ne_u64 {'vcc' if i == 0 else 's[6:7]'}, s[{sNon}:{sNon+1}], v[{vt+2*i}:{vt+2*i+1}]")
        if i: a("s_nop 0\ns_or_b64 vcc, vcc, s[6:7]")
    a(f"s_cbranch_vccz {lab}_ok\ns_sleep {sleep}\ns_cmp_lt_u32 s{sH}, {SPIN}\ns_cbranch_scc1 {lab}")
    if G0.STAMP: a("s_mov_b32 s99, 0x77770000")
    a.label(lab + "_ok")
    if lanes: a("s_mov_b64 exec, -1")
    a.vm = []

def tag_signal(a, area, nrep, v0, v1, atomic=False):
    a(f"""s_lshl_b32 s{sG}, s{sT1}, 7
    s_lshl_b32 s{sH}, s{sJ}, 3
    s_add_u32 s{sG}, s{sG}, s{sH}
    s_add_u32 s{sG}, s{sG}, {area}
    v_lshlrev_b32 v{v0}, 12, v{vL}
    v_mov_b32 v{v1}, s{sNon}
    v_mov_b32 v{v1+1}, s{sNon+1}
    s_mov_b64 exec, {(1 << nrep) - 1}
    {"buffer_atomic_swap_x2" if atomic else "buffer_store_dwordx2"} v[{v1}:{v1+1}], v{v0}, s[{sWS}:{sWS+3}], s{sG} offen sc1
    s_mov_b64 exec, -1""")

def last_wave_signals(a, lab, cnt, total, area, nrep, v0, v1, atomic=False):
    a(f"""s_waitcnt vmcnt(0)
    v_mov_b32 v{v0}, {cnt}
    v_mov_b32 v{v1}, 1
    s_mov_b64 exec, 1
    ds_add_rtn_u32 v{v1}, v{v0}, v{v1}
    s_waitcnt lgkmcnt(0)
    v_readfirstlane_b32 s{sG}, v{v1}
    s_mov_b64 exec, -1
    s_cmp_lg_u32 s{sG}, {total-1}
    s_cbranch_scc1 {lab}""")
    tag_signal(a, area, nrep, v0, v1, atomic)
    a.label(lab)
    a.vm = []

def xsrc(a, dst, t0, t1):
    a(f"""v_lshrrev_b32 v{t0}, 4, v{vL}
    v_xor_b32 v{t0}, v{t0}, v{vL}
    v_and_b32 v{t0}, 3, v{t0}
    v_lshlrev_b32 v{t0}, 4, v{t0}
    v_lshrrev_b32 v{t1}, 2, v{vL}
    s_mov_b32 s3, 73728
    v_mad_u32_u24 v{dst}, v{t1}, s3, v{t0}""")
def xread(a, r0, r1, t0, t1):
    a(f"""v_lshrrev_b32 v{t0}, 5, v{vL}
    v_lshrrev_b32 v{t1}, 2, v{vL}
    v_xor_b32 v{t0}, v{t0}, v{t1}
    v_and_b32 v{t0}, 3, v{t0}
    v_and_b32 v{t1}, 31, v{vL}
    v_lshlrev_b32 v{t1}, 6, v{t1}
    v_lshl_add_u32 v{r0}, v{t0}, 4, v{t1}""")
def dense_pos(a, sph, pos, c16, t):
    a(f"""s_lshl_b32 s3, s{sph}, 6
    v_add_u32 v{c16}, s3, v{vL}
    v_mul_u32_u24 v{pos}, 7282, v{c16}
    v_lshrrev_b32 v{pos}, 16, v{pos}
    v_mul_u32_u24 v{t}, 9, v{pos}
    v_sub_u32 v{c16}, v{c16}, v{t}
    v_lshlrev_b32 v{c16}, 4, v{c16}""")

J_GO, J_N, J_vX, J_vF, J_sG = [116, 120, 124, 132], 130, 110, 108, 74
def fnet_job(a):
    GO, vN, vX, vF, sGrp = J_GO, J_N, J_vX, J_vF, J_sG
    H1, H2, C = 16, 32, 16
    B = [72 + 4*i for i in range(9)] + [132 + 4*i for i in range(9)]
    free = [48 + 4*i for i in range(6)] + [116, 120, 124]
    e, p, co, x0, x1 = 4, 5, 6, 7, 8
    stamp(a, 1, "J")
    a(f"""v_and_b32 v{e}, 3, v{vL}
    v_bfe_u32 v{p}, v{vL}, 2, 1
    v_lshl_add_u32 v{e}, v{p}, 3, v{e}
    v_bfe_u32 v{p}, v{vL}, 3, 1
    v_lshl_add_u32 v{e}, v{p}, 2, v{e}
    s_lshl_b32 s3, s{sGrp}, 4
    v_add_u32 v{e}, s3, v{e}
    s_cmp_eq_u32 s{sGrp}, 0
    s_cselect_b32 s6, 0x10000, 0
    s_mov_b32 s7, s6
    v_mov_b32 v{p}, 288
    v_cndmask_b32 v{e}, v{e}, v{p}, s[6:7]
    s_or_b32 s6, s6, 0xffff
    s_mov_b32 s7, s6
    v_mov_b32 v{p}, 144
    v_cndmask_b32 v{p}, v{p}, 0, s[6:7]
    v_lshrrev_b32 v{co}, 5, v{vL}
    v_lshlrev_b32 v{co}, 3, v{co}
    s_lshl_b32 s3, s{sRot}, 6
    v_add_u32 v{co}, s3, v{co}
    v_mad_u32_u24 v{p}, v{e}, v{co}, v{p}
    s_mov_b32 s6, {(2**32 + 575)//576}
    s_mov_b32 s7, {f2u(1.0/576)}""")
    def cosv(dst, src):
        a(f"""v_mul_hi_u32 v{x1}, v{src}, s6
        v_mul_u32_u24 v{x1}, 576, v{x1}
        v_sub_u32 v{x1}, v{src}, v{x1}
        v_cvt_f32_u32 v{x1}, v{x1}
        v_mul_f32 v{x1}, s7, v{x1}
        v_cos_f32 v{dst}, v{x1}""")
    cosv(C, p); a(f"v_add_u32 v{p}, v{p}, v{e}"); cosv(C + 1, p)
    a(f"v_mul_u32_u24 v{co}, 15, v{e}\nv_add_u32 v{p}, v{p}, v{co}")
    cosv(C + 8, p); a(f"v_add_u32 v{p}, v{p}, v{e}"); cosv(C + 9, p)
    cosv(x0, e)
    a(f"v_lshlrev_b32 v{co}, 4, v{e}\nv_add_f32 v{x0}, v{x0}, v{x0}")
    cosv(co, co)
    for j in range(2, 8):
        for k in range(2): a(f"v_fma_f32 v{C+8*k+j}, v{x0}, v{C+8*k+j-1}, -v{C+8*k+j-2}")
    a(f"v_add_f32 v{co}, v{co}, v{co}\nv_lshlrev_b32 v{e}, 31, v{e}\nv_or_b32 v{e}, 1.0, v{e}\nv_xor_b32 v{x1}, 32, v{vX}")
    for k in range(18):
        c, o = C + 8*(k & 1), C + 8*(1 - (k & 1))
        for j in range(4): a(f"v_cvt_pk_bf16_f32 v{B[k]+j}, v{c+2*j}, v{c+2*j+1}")
        if k < 16:
            for j in range(8): a(f"v_fma_f32 v{c+j}, v{co}, v{o+j}, -v{c+j}")
    stamp(a, 3, "J")
    lds_wait(a, "f_j1", vF, p, 6, sleep=1)
    stamp(a, 4, "J")
    order = [k // 2 + 18*(k & 1) for k in range(36)]
    where, issued = {}, 0
    R = B[0]
    for i, k in enumerate(order):
        while issued < 36 and free and issued - i < 14:
            kk = order[issued]; where[kk] = free.pop(0); issued += 1
            a(f"ds_read_b128 v[{where[kk]}:{where[kk]+3}], v{x1 if kk & 1 else vX} offset:{2048*(kk>>1)}")
        a(f"s_waitcnt lgkmcnt({issued - i - 1})")
        H, b = (H2 if k >= 18 else H1), B[k % 18]
        a(f"v_mfma_f32_32x32x16_bf16 v[{H}:{H+15}], v[{where[k]}:{where[k]+3}], v[{b}:{b+3}], " + ("0" if k % 18 == 0 else f"v[{H}:{H+15}]"))
        free.append(where[k])
        if k >= 22: free.append(b)
        if k == 21: load_rf(a, R, vL, p, "f_rf1")
    stamp(a, 5, "J")
    T1, T2, Hb = 48, 32, 88
    a("s_nop 11")
    for r in range(16): a(f"v_fmac_f32 v{H1+r}, v{e}, v{H2+r}")
    for k in range(8): a(f"v_cvt_pk_bf16_f32 v{Hb+k}, v{H1+2*k}, v{H1+2*k+1}")
    a("s_waitcnt vmcnt(0)\ns_nop 0")
    a(f"v_mfma_f32_32x32x16_bf16 v[{T1}:{T1+15}], v[{Hb}:{Hb+3}], v[{R}:{R+3}], 0")
    a(f"v_mfma_f32_32x32x16_bf16 v[{T2}:{T2+15}], v[{Hb}:{Hb+3}], v[{R+8}:{R+11}], 0")
    a(f"v_mfma_f32_32x32x16_bf16 v[{T1}:{T1+15}], v[{Hb+4}:{Hb+7}], v[{R+4}:{R+7}], v[{T1}:{T1+15}]")
    a(f"v_mfma_f32_32x32x16_bf16 v[{T2}:{T2+15}], v[{Hb+4}:{Hb+7}], v[{R+12}:{R+15}], v[{T2}:{T2+15}]")
    a(f"""s_cmp_eq_u32 s{sGrp}, 0
    s_cselect_b32 s6, -1, 0
    s_mov_b32 s7, 0
    s_nop 8
    v_cvt_pk_bf16_f32 v{vN}, v{T1+8}, v{T2+8}
    v_cndmask_b32 v{T1+8}, v{T1+8}, 0, s[6:7]
    v_cndmask_b32 v{T2+8}, v{T2+8}, 0, s[6:7]""")
    for kind, (op, x, y, order) in enumerate((("v_add_f32", T1, T2+8, 1), ("v_sub_f32", T2, T1+8, 1), ("v_sub_f32", T1, T2+8, -1), ("v_add_f32", T2, T1+8, -1))):
        for r in range(8): a(f"{op} v{H1+r}, v{x+r}, v{y+r}")
        for k in range(4):
            i0, i1 = (2*k, 2*k+1) if order > 0 else (7-2*k, 6-2*k)
            a(f"v_cvt_pk_bf16_f32 v{GO[kind]+k}, v{H1+i0}, v{H1+i1}")

hSm, hSx, hSg, hGr, hGs, hW2, hGa, hPr, hXc, hTa, hMt, hMk, hS2 = 100, 103, 106, 109, 110, 111, 112, 113, 114, 115, 116, 117, 118
hL16, hTr, hTw, hOx, hTg, hOo, hOw, hOr = 156, 157, 158, 159, 160, 161, 164, 165
OUTB = 56*1024
def helper_setup(a, t0, t1, t2, t3):
    for i in range(3):
        a(f"s_add_u32 s6, s{sWave}, {4*i}")
        dense_pos(a, 6, t1, t0, t2)
        a(f"""v_and_b32 v{t2}, 1, v{t1}
        v_bfe_u32 v{t3}, v{t1}, 1, 2
        v_and_b32 v{t1}, 56, v{t1}
        v_lshl_add_u32 v{t1}, v{t2}, 2, v{t1}
        v_add_u32 v{t1}, v{t1}, v{t3}
        s_movk_i32 s3, {GP}
        v_mad_u32_u24 v{hSg+i}, v{t1}, s3, v{t0}
        s_movk_i32 s3, 1152
        v_lshrrev_b32 v{t2}, 4, v{t1}
        v_lshl_add_u32 v{t2}, v{t2}, 1, v{t1}
        v_mad_u32_u24 v{hSm+i}, v{t2}, s3, v{t0}
        v_lshrrev_b32 v{t2}, 1, v{t1}
        v_lshl_add_u32 v{t2}, v{t2}, 4, v{t1}
        v_add_u32 v{t2}, 16, v{t2}
        v_mad_u32_u24 v{hSx+i}, v{t2}, s3, v{t0}
        v_add_u32 v{t1}, {64*i}, v{vL}
        v_mul_u32_u24 v{t2}, 7282, v{t1}
        v_lshrrev_b32 v{t2}, 16, v{t2}
        v_lshlrev_b32 v{t1}, 4, v{t1}
        s_mov_b32 s3, {73728-144}
        v_mad_u32_u24 v{hOo+i}, v{t2}, s3, v{t1}""")
    a(f"""v_lshlrev_b32 v{hL16}, 4, v{vL}
    v_lshrrev_b32 v{t2}, 3, v{vL}
    v_xor_b32 v{t3}, v{t2}, v{vL}
    v_and_b32 v{t3}, 7, v{t3}
    v_lshlrev_b32 v{t3}, 4, v{t3}
    v_lshl_add_u32 v{t3}, v{t2}, 7, v{t3}
    s_lshl_b32 s3, s{sWave}, 12
    s_add_u32 s3, s3, {GSC}
    v_add_u32 v{hGr}, s3, v{t3}
    v_and_b32 v{t1}, 7, v{vL}
    v_lshlrev_b32 v{hTg}, 3, v{t1}
    v_lshl_add_u32 v{hS2}, v{t2}, 7, v{hTg}
    v_mul_u32_u24 v{t2}, {128*GP}, v{t2}
    v_lshl_add_u32 v{hGs}, v{t1}, 4, v{t2}
    v_lshlrev_b32 v{t1}, 2, v{t1}
    v_add_u32 v{hPr}, {F_PRG}, v{t1}
    v_and_b32 v{t1}, 12, v{t1}
    v_add_u32 v{hXc}, {F_XC}, v{t1}
    v_add_u32 v{hTa}, {F_TA}, v{t1}
    s_lshl_b32 s3, s{sWave}, 2
    s_add_u32 s6, s3, {F_TA}
    v_mov_b32 v{hMt}, s6
    s_add_u32 s6, s3, {F_KV}
    v_mov_b32 v{hMk}, s6
    v_and_b32 v{t0}, 15, v{vL}
    v_lshrrev_b32 v{t2}, 4, v{vL}
    v_lshlrev_b32 v{t1}, 2, v{t0}
    v_lshl_add_u32 v{hOx}, v{t2}, 9, v{t1}
    s_lshl_b32 s3, s{sWave}, 6
    s_add_u32 s3, s3, {F_G}
    v_add_u32 v{hGa}, s3, v{t1}
    s_and_b32 s3, s{sWave}, 1
    s_lshl_b32 s3, s3, 22
    v_lshlrev_b32 v{t1}, 18, v{t0}
    v_lshl_add_u32 v{t1}, v{t2}, 4, v{t1}
    v_add_u32 v{hW2}, s3, v{t1}
    s_mul_i32 s3, s{sWave}, 2304
    s_add_u32 s3, s3, {OUTB}
    v_mul_u32_u24 v{t1}, 144, v{t0}
    v_lshl_add_u32 v{t1}, v{t2}, 3, v{t1}
    v_add_u32 v{hOw}, s3, v{t1}
    v_add_u32 v{hOr}, s3, v{hL16}
    v_bfe_u32 v{t3}, v{vL}, 2, 2
    v_lshl_add_u32 v{t2}, v{t2}, 2, v{t3}
    v_mul_u32_u24 v{t2}, 288, v{t2}
    v_and_b32 v{t3}, 3, v{vL}
    v_lshl_add_u32 v{hTr}, v{t3}, 3, v{t2}
    v_add_u32 v{hTw}, {LW}, v{hTr}""")

def gen():
    a = Asm()
    a.label("f_code")
    a("s_cmp_ge_u32 s2, 256\ns_cbranch_scc1 f_end")
    stamp(a, 0)
    a("s_load_dwordx2 s[52:53], s[0:1], 104\ns_load_dwordx16 s[16:31], s[0:1], 0\ns_load_dwordx8 s[32:39], s[0:1], 64")
    a(f"""v_lshrrev_b32 v2, 6, v0
    v_and_b32 v{vL}, 63, v0
    v_readfirstlane_b32 s{sWave}, v2
    s_bfe_u32 s3, s2, 0x20003
    s_lshr_b32 s{sRot}, s2, 6
    s_add_u32 s{sRot}, s{sRot}, s3
    s_and_b32 s{sRot}, s{sRot}, 3
    s_lshl_b32 s{sRot}, s{sRot}, 1
    {"s_bfe_u32 s6, s2, 0x10005" if "rot8" in EXP else ""}
    {"s_add_u32 s%d, s%d, s6" % (sRot, sRot) if "rot8" in EXP else ""}
    {"s_mov_b32 s%d, 0" % sRot if "norot" in EXP else ""}
    s_and_b32 s{sT1}, s2, 7
    s_lshl_b32 s3, s3, 3
    s_add_u32 s{sT1}, s{sT1}, s3
    s_lshr_b32 s{sJ}, s2, 5
    s_mov_b32 s{sHi}, 0
    {"s_waitcnt lgkmcnt(0)" if G0.STAMP and 0 else ""}
    s_mov_b32 s{sHi+1}, -1
    s_cmp_ge_u32 s{sWave}, 4
    s_cbranch_scc1 f_att
    s_setprio 3
    s_cmp_eq_u32 s{sWave}, 0
    s_cbranch_scc1 f_duty""")
    def common_srd():
        a("s_waitcnt lgkmcnt(0)")
        a(f"s_load_dwordx2 s[{sNon}:{sNon+1}], s[52:53], {EP}")
        srd(a, sWS, 52, WS_SIZE)
    def nonce():
        a(f"s_add_u32 s{sNon}, s{sNon}, 1")
    t0, t1, t2, t3 = 8, 9, 10, 11
    vF = 4
    vXs, vDs, vW = 2, 3, 12
    sG_, sXo, sDa, sDb, sDs, sM, sXp = 70, 71, 72, 73, 74, 75, 76
    a(f"s_sub_u32 s{sG_}, s{sWave}, 1")
    xsrc(a, vXs, t0, t1)
    a(f"""v_and_b32 v{t2}, 3, v{vL}
    v_mul_u32_u24 v{t1}, 36, v{t1}
    v_lshl_add_u32 v{vDs}, v{t2}, 4, v{t1}
    s_and_b32 s{sA}, s{sJ}, 1
    s_mul_i32 s{sM}, s{sA}, 36864
    s_lshl_b32 s{sA}, s{sA}, 5
    s_add_u32 s{sA}, s{sA}, s{sT1}
    s_mul_i32 s{sXo}, s{sA}, 1152
    s_cmp_lt_u32 s{sJ}, 4
    s_cselect_b32 s{sRB+2}, {576*36}, 0
    s_cselect_b32 s{sDa}, -1, 0
    s_mov_b32 s{sDb}, {F_DUMP}
    s_cmov_b32 s{sDb}, {LD}
    s_mov_b32 s{sRA+2}, {2048*1152}
    s_mov_b32 s{sRA+3}, 0x20000
    s_mov_b32 s{sRB+3}, 0x20000
    s_mov_b32 s{sB}, s{sG_}
    s_barrier
    s_cmp_lt_u32 s{sJ}, 2
    s_waitcnt lgkmcnt(0)
    s_cselect_b64 s[{sRB}:{sRB+1}], s[30:31], s[32:33]
    s_mov_b64 s[{sRA}:{sRA+1}], s[16:17]""")
    stamp(a, 1, "P")
    TD, TW = THR("td", 0), THR("tw", 0)
    def lround(th=""):
        a(f"""s_lshl_b32 s{sC}, s{sRot}, 1
        s_add_u32 s{sC}, s{sC}, s{sB}
        s_cmp_ge_u32 s{sC}, 18
        s_cselect_b32 s3, 18, 0
        s_sub_u32 s{sC}, s{sC}, s3
        s_lshl_b32 s{sD}, s{sB}, 11
        s_add_u32 m0, s{sD}, s{sM}
        s_lshl_b32 s3, s{sC}, 6
        s_add_u32 s3, s3, s{sXo}
        {th}
        buffer_load_dwordx4 v{vXs}, s[{sRA}:{sRA+3}], s3 offen lds
        s_add_u32 m0, m0, 1024
        s_add_u32 s3, s3, 1179648
        {th}
        buffer_load_dwordx4 v{vXs}, s[{sRA}:{sRA+3}], s3 offen lds
        s_and_b32 s3, s{sD}, s{sDa}
        s_add_u32 m0, s3, s{sDb}
        s_mul_i32 s3, s{sC}, 1152
        {th}
        buffer_load_dwordx4 v{vDs}, s[{sRB}:{sRB+3}], s3 offen lds
        s_add_u32 m0, m0, 448
        {th or "s_nop 0"}
        buffer_load_dwordx4 v{vDs}, s[{sRB}:{sRB+3}], s3 offen offset:576 lds
        s_add_u32 s{sB}, s{sB}, 3""")
    a.label("f_lL")
    lround()
    NR0 = 3 if not TD else max(1, TD // 4)
    a(f"s_cmp_lt_u32 s{sB}, {3*NR0}\ns_cbranch_scc1 f_lL")
    stamp(a, 5, "P")
    a(f"s_load_dwordx2 s[{sNon}:{sNon+1}], s[52:53], {EP}")
    srd(a, sWS, 52, WS_SIZE); srd(a, sRD, 28, 576*1152)
    for i in range(3):
        a(f"s_mul_i32 s{sC}, s{sG_}, 3\ns_add_u32 s{sC}, s{sC}, {i}")
        dense_pos(a, sC, t1, t0, t2)
        a(f"""v_and_b32 v{t2}, 3, v{t1}
        v_bfe_u32 v{t3}, v{t1}, 2, 2
        v_and_b32 v{t1}, 48, v{t1}
        v_lshl_add_u32 v{t1}, v{t2}, 2, v{t1}
        v_add_u32 v{t1}, v{t1}, v{t3}
        s_movk_i32 s3, 1152
        v_mad_u32_u24 v{vW+i}, v{t1}, s3, v{t0}""")
    sM2 = 77
    a(f"""s_lshl_b32 s3, s{sG_}, 2
    s_add_u32 s3, s3, {F_LD}
    v_mov_b32 v{vF}, s3
    v_mov_b32 v6, 1
    v_mov_b32 v5, {F_DUTY}
    s_mul_i32 s{sE}, s{sJ}, 144
    s_mul_i32 s{sF}, s{sG_}, 3072
    s_and_b32 s{sA}, s{sJ}, 1
    s_xor_b32 s{sA}, s{sA}, 1
    s_mul_i32 s{sM2}, s{sA}, 36864
    s_lshl_b32 s3, s{sG_}, 10
    s_add_u32 s{sM2}, s{sM2}, s3
    s_lshl_b32 s{sA}, s{sA}, 5
    s_add_u32 s{sA}, s{sA}, s{sT1}
    s_mul_i32 s{sXp}, s{sA}, 1152
    s_mul_i32 s3, s{sG_}, 1179648
    s_add_u32 s{sXp}, s{sXp}, s3""")
    a(f"s_cmp_lg_u32 s{sWave}, 3\ns_cbranch_scc1 f_lM")
    srd(a, sRC, 36, 1152)
    for i in range(2):
        a(f"""s_lshl_b32 s3, s{sRot}, 7
        s_add_u32 s3, s3, {1024*i}
        v_lshlrev_b32 v{t1}, 4, v{vL}
        v_add_u32 v{t1}, s3, v{t1}
        v_subrev_u32 v{t2}, 1152, v{t1}
        v_min_u32 v{t1}, v{t1}, v{t2}
        s_mov_b32 m0, {LGATE + 1024*i}
        s_nop 0""")
        a(f"buffer_load_dwordx4 v{t1}, s[{sRC}:{sRC+3}], 0 offen lds")
    a.label("f_lM")
    if not TD:
        a(f"s_waitcnt vmcnt(8)\nds_write_b32 v{vF}, v6\nv_add_u32 v6, 1, v6")
        lround()
    else:
        lround(f"s_waitcnt vmcnt({TD-1})")
        a(f"s_waitcnt vmcnt({4*NR0})\nds_write_b32 v{vF}, v6\nv_add_u32 v6, 1, v6")
    a(f"s_cmp_lt_u32 s{sB}, 18\ns_cbranch_scc1 f_lM")
    for r in range(6 - NR0, 6): a.vm_note(f"d{r}", 4)
    stamp(a, 2, "P")
    def ldflag(tag, val):
        a(f"v_mov_b32 v{t1}, {val}")
        if tag in a.vm: a.vm_wait(tag)
        a(f"ds_write_b32 v{vF}, v{t1}")
    def thr():
        if TW and len(a.vm) >= TW:
            a(f"s_waitcnt vmcnt({TW-1})"); a.vm = a.vm[len(a.vm) - (TW-1):]
            done = [t for t in pend if t not in a.vm]
            if done:
                ldflag(done[-1], val_of(done[-1]))
                for t in done: pend.remove(t)
    pend = []
    val_of = lambda t: int(t[1:]) + (1 if t[0] == "d" else QF)
    def chunk(c, withx):
        base = LW + 9216*c if c < 5 else LD + 9216*(c-5)
        a(f"""s_add_u32 s{sC}, s{sRot}, {c}
        s_cmp_ge_u32 s{sC}, 9
        s_cselect_b32 s3, 9, 0
        s_sub_u32 s{sC}, s{sC}, s3""")
        if withx and "nox" not in EXP:
            a(f"s_add_u32 m0, s{sM2}, {4096*c}\ns_lshl_b32 s3, s{sC}, 7\ns_add_u32 s3, s3, s{sXp}")
            thr()
            a.vmem(f"buffer_load_dwordx4 v{vXs}, s[{sRA}:{sRA+3}], s3 offen lds", f"c{c}")
            a("s_add_u32 m0, m0, 1984\ns_nop 0")
            thr()
            a.vmem(f"buffer_load_dwordx4 v{vXs}, s[{sRA}:{sRA+3}], s3 offen offset:64 lds", f"c{c}")
        a(f"s_add_u32 m0, s{sF}, {base}\ns_mul_i32 s3, s{sC}, 73728\ns_add_u32 s3, s3, s{sE}")
        for i in range(3):
            if i: a("s_add_u32 m0, m0, 1024\ns_nop 0")
            thr()
            a.vmem(f"buffer_load_dwordx4 v{vW+i}, s[{sRD}:{sRD+3}], s3 offen lds", f"c{c}")
    def chunks(withx, lab):
        if TW:
            pend[:] = [f"d{r}" for r in range(6 - NR0, 6)]
            for c in range(9):
                if c == 5: lds_wait(a, lab, 5, t1, 1)
                chunk(c, withx)
                pend.append(f"c{c}")
            stamp(a, 3, "P")
            for t in list(pend): ldflag(t, val_of(t))
            stamp(a, 4, "P")
            return
        if "d3" in a.vm: ldflag("d3", 4)
        chunk(0, withx)
        ldflag("d4", 5); ldflag("d5", 6)
        chunk(1, withx)
        D = 2 if "deep" in EXP else 1
        if D == 1: ldflag("c0", QF)
        for c in range(2, 9):
            if c == 5 and not THR("pc", 0): lds_wait(a, lab, 5, t1, 1)
            if c == THR("pc", 0): lds_wait(a, lab, 5, t1, 2, sleep=1)
            chunk(c, withx)
            if c >= D: ldflag(f"c{c-D}", QF + c - D)
        stamp(a, 3, "P")
        for c in range(9 - D, 9): ldflag(f"c{c}", QF + c)
        stamp(a, 4, "P")
        if "only" in EXP:
            G0.stamp_end(a, 0, sWS, sWave); a("s_endpgm")
    vml = list(a.vm)
    a(f"s_cmp_eq_u32 s{sWave}, 3\ns_cbranch_scc1 f_l3")
    chunks(True, "f_l1w")
    a("s_branch f_l4")
    a.label("f_l3")
    a.vm = list(vml)
    chunks(False, "f_l3w")
    FR = 32
    a.label("f_l4")
    a(f"v_lshlrev_b32 v{hL16}, 4, v{vL}\ns_lshl_b32 s3, s{sWave}, 2\ns_add_u32 s3, s3, {F_KV}\nv_mov_b32 v{hMk}, s3")
    one, val = 6, 7
    def kv_first(lab):
        a.vm = []
        a(f"""v_and_b32 v{t1}, 15, v{vL}
        v_min_u32 v{t1}, 8, v{t1}
        v_lshlrev_b32 v{t1}, 2, v{t1}
        v_add_u32 v{t1}, {F_PRG}, v{t1}
        s_mul_i32 s{sA}, s{sT1}, {2*TILE}
        s_lshl_b32 s{sB}, s{sWave}, 12
        s_add_u32 m0, s{sB}, {LW}
        s_add_u32 s{sA}, s{sA}, s{sB}
        s_add_u32 s{sA}, s{sA}, {KVG}
        v_mov_b32 v{one}, 1
        v_mov_b32 v{vF}, {F_S1}""")
        stamp(a, 1, "K")
        lds_wait(a, lab, t1, t2, 1)
        stamp(a, 2, "K")
        for k in range(4): a(f"buffer_load_dwordx4 v{hL16}, s[{sWS}:{sWS+3}], s{sA} offen offset:{1024*k} {'' if 'k0plain' in EXP else 'sc1'} lds")
    kv_first("f_kv2")
    nonce()
    if "su0" not in EXP: helper_setup(a, t0, t1, t2, t3)
    a(f"s_waitcnt vmcnt(0)\nds_write_b32 v{hMk}, v{one}")
    if "su0" in EXP: helper_setup(a, t0, t1, t2, t3)
    a("s_branch f_h1")

    a.label("f_duty")
    a.vm = []
    vR0, vR1, vD0, vD1 = 2, 3, 6, 7
    ACC, R = 16, 80
    sRb, sGrp = 70, 76
    a(f"""v_lshlrev_b32 v{t0}, 2, v{vL}
    v_add_u32 v{t0}, {FLG}, v{t0}
    s_cmp_ge_u32 s{sJ}, 4
    s_cselect_b32 s6, {1 << ((F_DUTY - FLG)//4)}, 0
    s_mov_b32 s7, {1 << ((F_BIG - FLG)//4 - 32)}
    v_cndmask_b32 v{t1}, 0, 2, s[6:7]
    ds_write_b32 v{t0}, v{t1}""")
    xread(a, vR0, vR1, t2, t3)
    common_srd()
    a("s_barrier")
    helper_setup(a, t0, t1, t2, t3)
    a(f"""s_and_b32 s{sA}, s{sJ}, 1
    s_lshl_b32 s{sRb}, s{sA}, 5
    s_add_u32 s{sRb}, s{sRb}, s{sT1}
    s_mul_i32 s{sA}, s{sA}, 36864
    v_add_u32 v{vR0}, s{sA}, v{vR0}
    v_xor_b32 v{vR1}, 32, v{vR0}
    v_and_b32 v{vF}, 3, v{vL}
    v_min_u32 v{vF}, 2, v{vF}
    v_lshlrev_b32 v{vF}, 2, v{vF}
    v_add_u32 v{vF}, {F_LD}, v{vF}
    s_cmp_ge_u32 s{sJ}, 4
    s_cbranch_scc1 f_cF
    v_and_b32 v{t2}, 3, v{vL}
    v_and_b32 v{t0}, 1, v{vL}
    v_bfe_u32 v{t3}, v{vL}, 1, 1
    v_lshl_or_b32 v{t0}, v{t0}, 1, v{t3}
    v_bfe_u32 v{t3}, v{vL}, 4, 1
    v_cmp_eq_u32 vcc, 0, v{t3}
    v_bfe_u32 v{vD0}, v{vL}, 2, 2
    v_lshrrev_b32 v{vD1}, 5, v{vL}
    v_cndmask_b32 v{t0}, v{t2}, v{t0}, vcc
    v_lshl_add_u32 v{vD0}, v{vD1}, 3, v{vD0}
    v_lshlrev_b32 v{vD0}, 6, v{vD0}
    v_lshl_add_u32 v{vD0}, v{t3}, 5, v{vD0}
    v_lshl_add_u32 v{vD0}, v{t0}, 3, v{vD0}
    v_add_u32 v{vD0}, {LD}, v{vD0}
    s_cmp_ge_u32 s{sJ}, 2
    s_cbranch_scc1 f_cV""")
    def duty_chain(kind, ACC=ACC, vR0=vR0, vR1=vR1, vD0=vD0):
        lg = []
        def rd(txt, tag): a(txt); lg.append(tag)
        def wait(tag):
            i = max(k for k, t in enumerate(lg) if t == tag)
            a(f"s_waitcnt lgkmcnt({len(lg) - 1 - i})"); del lg[:i + 1]
        def reads(s):
            b = FR + 16*(s % 3)
            for p in range(2):
                rd(f"ds_read_b128 v[{b+8*p}:{b+8*p+3}], v{vR1 if p else vR0} offset:{2048*s}", (s, p))
                if kind == "F": rd(f"ds_read_b128 v[{b+8*p+4}:{b+8*p+7}], v{vD1 if p else vD0} offset:{2048*s}", (s, p))
                elif kind == "G": rd(f"ds_read_b128 v[{b+8*p+4}:{b+8*p+7}], v{vD0} offset:{64*s+32*p}", (s, p))
                else:
                    rd(f"ds_read_b64_tr_b16 v[{b+8*p+4}:{b+8*p+5}], v{vD0} offset:{2048*s+1024*p}", (s, p))
                    rd(f"ds_read_b64_tr_b16 v[{b+8*p+6}:{b+8*p+7}], v{vD0} offset:{2048*s+1024*p+256}", (s, p))
        if kind != "G":
            ST = {0: [1, 2, 3, 4, 5, 6], 2: [3, 3, 3, 6, 6, 6], 3: [2, 2, 4, 4, 6, 6], 1: [6]*6}[THR("ds", 0)]
            lds_wait(a, f"f_d{kind}0", vF, t0, ST[0])
            stamp(a, 1, "P")
        reads(0)
        if kind != "G" and ST[1] > ST[0]: rd(f"ds_read_b32 v{t0}, v{vF}", "f")
        reads(1)
        for s in range(18):
            if kind != "G" and s % 3 == 1 and s < 15 and ST[s//3 + 1] > ST[s//3]:
                if "f" in lg: wait("f")
                a(f"v_cmp_gt_i32 vcc, {ST[s//3 + 1]}, v{t0}\ns_cbranch_vccz f_d{kind}{s}_ok")
                lds_wait(a, f"f_d{kind}{s}", vF, t0, ST[s//3 + 1])
                a.label(f"f_d{kind}{s}_ok")
            b = FR + 16*(s % 3)
            for p in range(2):
                if (s, p) in lg: wait((s, p))
                if p == 1:
                    if kind != "G" and s % 3 == 0 and 0 < s < 15 and ST[s//3 + 1] > ST[s//3]: rd(f"ds_read_b32 v{t0}, v{vF}", "f")
                    if s + 2 < 18: reads(s + 2)
                    assert len(lg) <= 15
                X, D = b + 8*p, b + 8*p + 4
                A, B = (D, X) if kind in "KG" else (X, D)
                a(f"v_mfma_f32_32x32x16_bf16 v[{ACC}:{ACC+15}], v[{A}:{A+3}], v[{B}:{B+3}], " + ("0" if s + p == 0 else f"v[{ACC}:{ACC+15}]"))
        if kind != "G":
            a(f"v_mov_b32 v{t0}, {F_DUTY}\nv_mov_b32 v{t1}, 1\nds_write_b32 v{t0}, v{t1}")
            nonce()
            stamp(a, 2); stamp(a, 2, "P")
    def kv_off():
        a(f"""s_and_b32 s{sA}, s{sJ}, 1
        s_lshl_b32 s{sB}, s{sT1}, 1
        s_add_u32 s{sA}, s{sA}, s{sB}
        s_mul_i32 s{sF}, s{sA}, {TILE}
        s_add_u32 s{sF}, s{sF}, {KVG}
        s_add_u32 s{sE}, s{sF}, {64*TILE}""")
    kv_off()
    a(f"v_lshlrev_b32 v14, 4, v{vL}\nv_lshlrev_b32 v15, 2, v{vL}")
    duty_chain("K")
    a("s_nop 7")
    for k in range(5): a(f"v_cvt_pk_bf16_f32 v{FR+k}, v{ACC+2*k}, v{ACC+2*k+1}")
    for s in ((sF,) if 'nodup' in EXP else (sF, sE)): a(f"buffer_store_dwordx4 v[{FR}:{FR+3}], v14, s[{sWS}:{sWS+3}], s{s} offen sc1")
    a(f"v_mul_f32 v{t3}, v{ACC}, v{ACC}")
    for r in range(1, 8): a(f"v_fmac_f32 v{t3}, v{ACC+r}, v{ACC+r}")
    a("s_mov_b32 exec_hi, 0")
    for s in ((sF,) if 'nodup' in EXP else (sF, sE)): a(f"buffer_store_dword v{FR+4}, v15, s[{sWS}:{sWS+3}], s{s} offen offset:1024 sc1")
    a(f"""v_fmac_f32 v{t3}, v{ACC+8}, v{ACC+8}
    v_fmac_f32 v{t3}, v{ACC+9}, v{ACC+9}
    s_mov_b64 exec, -1
    v_mov_b32 v{t0}, v{t3}
    s_nop 1
    v_permlane32_swap_b32 v{t0}, v{t3}
    v_add_f32 v{t3}, v{t0}, v{t3}""")
    wave_max(a, t3, sB)
    a(f"""v_mov_b32 v{t3}, s{sB}
    v_lshlrev_b32 v{t0}, 8, v{vL}
    s_lshl_b32 s{sA}, s{sA}, 2
    s_add_u32 s{sA}, s{sA}, {KMG}
    s_mov_b64 exec, 3
    buffer_store_dword v{t3}, v{t0}, s[{sWS}:{sWS+3}], s{sA} offen sc1
    s_mov_b64 exec, -1
    s_branch f_dP""")
    a.label("f_cV")
    kv_off()
    a(f"""v_and_b32 v{t0}, 31, v{vL}
    v_lshrrev_b32 v{t2}, 5, v{vL}
    v_mul_u32_u24 v14, 19, v{t2}
    v_add_u32 v14, v14, v{t0}
    v_cmp_eq_u32 vcc, 19, v{vL}
    v_mov_b32 v{t3}, 0x3f803f80
    s_nop 0
    v_cndmask_b32 v14, v14, 38, vcc
    v_cndmask_b32 v80, v{t3}, 0, vcc
    v_lshlrev_b32 v14, 4, v14
    v_mov_b32 v81, v80
    v_mov_b32 v82, v80
    v_mov_b32 v83, v80
    s_mov_b32 exec_lo, 0xc0000
    s_mov_b32 exec_hi, 0x40000""")
    for s in (sF, sE):
        for u in range(2): a(f"buffer_store_dwordx4 v[80:83], v14, s[{sWS}:{sWS+3}], s{s} offen offset:{1152+624*u} sc1")
    a("s_mov_b64 exec, -1")
    duty_chain("V")
    a("s_mov_b32 exec_lo, 0x3ffff\ns_mov_b32 exec_hi, 0x3ffff\ns_nop 5")
    for u in range(2):
        for k in range(4*u, 4*u + 4): a(f"v_cvt_pk_bf16_f32 v{FR+k}, v{ACC+2*k}, v{ACC+2*k+1}")
        for s in (sF, sE): a(f"buffer_store_dwordx4 v[{FR+4*u}:{FR+4*u+3}], v14, s[{sWS}:{sWS+3}], s{s} offen offset:{1152+624*u} sc1")
    a("s_mov_b64 exec, -1")
    a.label("f_dP")
    stamp(a, 3, "P")
    a("s_waitcnt vmcnt(0)")
    tag_signal(a, FL1, 8, t0, t2, True)
    if "fl0" in EXP:
        a(f"s_add_u32 s{sG}, s{sG}, {(FL0 - FL1) & 0xffffffff}\ns_mov_b64 exec, 255\nbuffer_store_dwordx2 v[{t2}:{t2+1}], v{t0}, s[{sWS}:{sWS+3}], s{sG} offen sc1\ns_mov_b64 exec, -1")
    if THR("pc", 0): a(f"v_mov_b32 v{t0}, {F_DUTY}\nv_mov_b32 v{t1}, 2\nds_write_b32 v{t0}, v{t1}")
    stamp(a, 3); stamp(a, 4, "P")
    a("s_branch f_dS")
    a.label("f_cF")
    a(f"s_bfe_u32 s{sGrp}, s{sJ}, 0x10001\ns_add_u32 s{sGrp}, s{sGrp}, 16\ns_waitcnt lgkmcnt(0)")
    nonce()
    lds_wait(a, "f_cF1", vF, t0, QF + 2, sleep=4)
    a.label("f_dS")
    a(f"""v_bfe_u32 v{t1}, v{vL}, 2, 2
    v_add_u32 v{t1}, s{sT1}, v{t1}
    v_and_b32 v{t1}, 31, v{t1}
    v_lshlrev_b32 v{t1}, 7, v{t1}
    v_and_b32 v{t2}, 3, v{vL}
    v_lshl_add_u32 v{t1}, v{t2}, 3, v{t1}
    s_and_b32 s{sD}, s{sT1}, 7
    s_lshl_b32 s{sD}, s{sD}, 12
    s_add_u32 s{sD}, s{sD}, {FL1}""")
    tag_wait(a, "f_m2", t1, sD, 1, FR, sleep=1, lanes=16 if 'noat' not in EXP else 0)
    vKM = 12
    a(f"""v_mov_b32 v{t1}, {F_S1F}
    v_mov_b32 v{t2}, 1
    ds_write_b32 v{t1}, v{t2}
    s_lshl_b32 s3, s{sT1}, 3
    s_add_u32 s3, s3, {KMG}
    v_and_b32 v{t2}, 7, v{vL}
    v_lshlrev_b32 v{t2}, 2, v{t2}
    buffer_load_dword v{vKM}, v{t2}, s[{sWS}:{sWS+3}], s3 offen sc1
    v_lshrrev_b32 v14, 2, v{vL}
    v_lshlrev_b32 v14, 7, v14
    v_and_b32 v{t2}, 3, v{vL}
    v_lshl_add_u32 v14, v{t2}, 3, v14
""")
    if "fl0" in EXP: a(f"s_add_u32 s{sD}, s{sD}, {(FL0 - FL1) & 0xffffffff}")
    def look():
        a(f"""buffer_load_dwordx2 v[{FR}:{FR+1}], v14, s[{sWS}:{sWS+3}], s{sD} offen sc1
        buffer_load_dwordx2 v[{FR+2}:{FR+3}], v14, s[{sWS}:{sWS+3}], s{sD} offen offset:2048 sc1""")
    if "fl0" in EXP: look()
    stamp(a, 5, "P")
    kv_first("f_kv1")
    a("s_waitcnt vmcnt(4)")
    wave_max(a, vKM, sC)
    a(f"""v_sqrt_f32 v{t3}, s{sC}
    v_mov_b32 v{t2}, {f2u(OFFS)}
    v_mov_b32 v{t1}, {F_KC}
    v_cvt_pk_bf16_f32 v{t3}, -v{t3}, v{t2}
    ds_write_b32 v{t1}, v{t3}
    v_cmp_ne_u64 vcc, s[{sNon}:{sNon+1}], v[{FR}:{FR+1}]
    v_cmp_ne_u64 s[6:7], s[{sNon}:{sNon+1}], v[{FR+2}:{FR+3}]
    s_waitcnt vmcnt(0)
    ds_write_b32 v{hMk}, v{one}
    s_or_b64 vcc, vcc, s[6:7]
    {"s_cbranch_vccz f_m4" if "fl0" in EXP else ""}""")
    tag_wait(a, "f_m3", 14, sD, 2, FR, step=2048)
    a.label("f_m4")
    a(f"ds_write_b32 v{vF}, v{one}")
    a.label("f_h1")
    stamp(a, 6, "P"); stamp(a, 4); stamp(a, 3, "K")
    lds_wait(a, "f_h2", vF, t1, 1, sleep=1)
    lds_wait(a, "f_h2a", hPr, t1, 2, sleep=1)
    stamp(a, 1, "H"); stamp(a, 4, "K")
    due = {}
    def grp(src, dst, tag, TK=THR("tk", 3)):
        a(f"s_add_u32 m0, s{sB}, {dst}\ns_add_u32 s3, s{sA}, {src}")
        for k in range(4):
            if len(a.vm) >= TK:
                a(f"s_waitcnt vmcnt({TK-1})"); a.vm = a.vm[len(a.vm) - (TK-1):]
                for t in [t for t in due if t not in a.vm]: a(f"v_mov_b32 v{val}, {due.pop(t)}\nds_write_b32 v{hMk}, v{val}")
            a.vmem(f"buffer_load_dwordx4 v{hL16}, s[{sWS}:{sWS+3}], s3 offen offset:{1024*k} sc1 lds", tag)
    P2 = J1*TILE
    grp(16384, LW + 16384, "c1", THR("tc", 4)); due["c1"] = 2
    grp(32768, LW + 32768, "c2"); grp(P2, 0, "p0"); due["p0"] = 3
    grp(P2 + 16384, 16384, "p1"); grp(P2 + 32768, 32768, "p2")
    assert not due
    for i in (3, 4): grp(P2 + 16384*i, 16384*i, f"p{i}")
    sS2, sT = 71, 72
    a(f"""s_and_b32 s{sS2}, s{sJ}, 1
    s_lshl_b32 s{sS2}, s{sS2}, 5
    s_add_u32 s{sS2}, s{sS2}, s{sT1}
    s_mul_i32 s{sS2}, s{sS2}, {GP}
    s_add_u32 s{sS2}, s{sS2}, {GT}
    s_lshr_b32 s{sT}, s{sJ}, 1
    s_lshl_b32 s{sT}, s{sT}, 7
    s_sub_u32 s3, {GU + 448}, s{sT}
    s_cmp_lt_u32 s{sWave}, 2
    s_cselect_b32 s{sT}, s{sT}, s3
    s_add_u32 s{sT}, s{sT}, s{sS2}
    s_bitcmp1_b32 s{sWave}, 0
    s_cselect_b32 s3, {64*GP}, 0
    s_add_u32 s{sT}, s{sT}, s3""")
    lds_wait(a, "f_x3", hXc, t1, 1, sleep=2)
    for i in range(4): a(f"ds_read_b128 v[{32+4*i}:{35+4*i}], v{hGr} offset:{1024*i}")
    GOF = [48, 52, 56, 60]
    a(f"s_cmp_ge_u32 s{sJ}, 4\ns_cselect_b32 s3, s{sWave}, 1\ns_cmp_lg_u32 s3, 0\ns_cbranch_scc1 f_x6\nv_mov_b32 v{t2}, {F_XC + 20}")
    lds_wait(a, "f_x5", t2, t1, 1, sleep=2)
    a(f"v_add_u32 v{t2}, {GSC + 16384}, v{hL16}")
    for kind in range(4): a(f"ds_read_b128 v[{GOF[kind]}:{GOF[kind]+3}], v{t2} offset:{1024*kind}")
    a.label("f_x6")
    a(f"s_waitcnt lgkmcnt(0)\nds_write_b32 v{hMt}, v{one}")
    lds_wait(a, "f_x4", hTa, t1, 1, sleep=1)
    grp(P2 + 16384*5, 16384*5, "p5")
    a(f"s_cmp_ge_u32 s{sWave}, 2\ns_cbranch_scc1 f_h3")
    grp(P2 + 16384*6, 16384*6, "p6")
    a.label("f_h3")
    a(f"v_mov_b32 v{val}, 4\ns_waitcnt vmcnt(0)\nds_write_b32 v{hMk}, v{val}")
    a.vm = []
    stamp(a, 2, "H")
    for i in range(4):
        a(f"buffer_store_dwordx4 v[{32+4*i}:{35+4*i}], v{hGs}, s[{sWS}:{sWS+3}], s{sT} offen sc1")
        if i < 3: a(f"s_add_u32 s{sT}, s{sT}, {8*128*GP}")
    a(f"""s_cmp_lg_u32 s{sWave}, 0
    s_cbranch_scc1 f_h3b
    s_lshr_b32 s3, s{sJ}, 1
    s_cmp_lg_u32 s3, {THR("gj", 0)//2}
    s_cbranch_scc1 f_h3c
    v_lshlrev_b32 v{t3}, 2, v{vL}
    v_add_u32 v13, {F_G2}, v{t3}
    ds_read_b32 v13, v13
    s_lshl_b32 s{sF}, s{sRb}, 7
    s_add_u32 s{sF}, s{sF}, {GG}
    s_mov_b32 exec_hi, 0
    s_waitcnt lgkmcnt(0)
    buffer_store_dword v13, v{t3}, s[{sWS}:{sWS+3}], s{sF} offen sc1
    s_mov_b32 exec_hi, -1""")
    a.label("f_h3c")
    a(f"""v_and_b32 v{t1}, 31, v{vL}
    v_mul_u32_u24 v{t2}, {128*GP}, v{t1}
    s_cmp_ge_u32 s{sJ}, 4
    s_cbranch_scc1 f_h3a
    s_cmp_ge_u32 s{sJ}, 2
    s_cbranch_scc1 f_h3b
    v_lshlrev_b32 v{t1}, 2, v{t1}
    v_add_u32 v{t1}, {F_N}, v{t1}
    ds_read_b32 v{t1}, v{t1}
    s_add_u32 s3, s{sS2}, {64*GP}
    s_mov_b32 exec_hi, 0
    s_waitcnt lgkmcnt(0)
    buffer_store_short v{t1}, v{t2}, s[{sWS}:{sWS+3}], s{sS2} offen offset:{GU-2} sc1
    buffer_store_short_d16_hi v{t1}, v{t2}, s[{sWS}:{sWS+3}], s3 offen offset:{GU-2} sc1
    s_mov_b32 exec_hi, -1
    s_branch f_h3b""")
    a.label("f_h3a")
    a(f"""v_lshrrev_b32 v{t3}, 5, v{vL}
    v_lshlrev_b32 v{t3}, 4, v{t3}
    v_sub_u32 v{t1}, v{t2}, v{t3}
    v_add_u32 v{t2}, v{t2}, v{t3}
    v_add_u32 v{t1}, 16, v{t1}
    s_lshl_b32 s3, s{sGrp}, 5
    s_add_u32 s{sT}, s{sS2}, s3
    s_sub_u32 s{sT+1}, s{sS2}, s3
    s_add_u32 s{sT+1}, s{sT+1}, {GU + 560 - 16}""")
    for kind in range(4):
        if kind & 1: a(f"s_add_u32 s{sT + (kind >> 1)}, s{sT + (kind >> 1)}, {64*GP}")
        a(f"buffer_store_dwordx4 v[{GOF[kind]}:{GOF[kind]+3}], v{t1 if kind >> 1 else t2}, s[{sWS}:{sWS+3}], s{sT + (kind >> 1)} offen sc1")
    a.label("f_h3b")
    last_wave_signals(a, "f_h5", F_CNT2, 4, FL2, 8, t1, t2)
    stamp(a, 6)
    vG = 15
    ACC, W2, OB, AR = 16, 36, 52, 124
    sRb, sCol = 70, 71
    srd(a, sRA, 34, 576*1152); srd(a, sRB, 18, 2048*4096); srd(a, sRC, 20, 2048*4096); srd(a, sRD, 38, 2048*1152)
    a(f"""s_lshr_b32 s3, s2, 3
    s_lshl_b32 s3, s3, 2
    s_add_u32 s3, s3, s{sWave}
    s_mul_i32 s3, s3, {41*128}
    v_lshlrev_b32 v{t1}, 3, v{hL16}
    s_mov_b32 exec_hi, 0x1ff
    buffer_load_dword v14, v{t1}, s[{sRA}:{sRA+3}], s3 offen
    s_mov_b32 exec_hi, -1
    s_lshr_b32 s{sRb}, s{sWave}, 1
    s_lshl_b32 s{sRb}, s{sRb}, 5
    s_add_u32 s{sRb}, s{sRb}, s{sT1}
    s_mul_i32 s{sCol}, s{sJ}, 144
    s_lshl_b32 s{sC}, s{sWave}, 10
    s_lshl_b32 s{sA}, s{sRb}, 12""")
    for k in range(4):
        r = sRB if k < 2 else sRC
        a(f"buffer_load_dwordx4 v[{W2+4*k}:{W2+4*k+3}], v{hW2}, s[{r}:{r+3}], s{sA} offen offset:{64*(k&1)}")
    nds = [0]
    def dstep(dst, r, vS, sc=""):
        nds[0] += 1
        for i in range(3):
            if i == 2: a(f"s_cmp_lg_u32 s{sWave}, 0\ns_cbranch_scc1 f_ds{nds[0]}")
            a(f"s_add_u32 m0, s{sC}, {dst + 4096*i}\n" + (f"s_waitcnt vmcnt({THR('tt', 3) - 1})" if THR("tt", 3) else "s_nop 0"))
            a(f"buffer_load_dwordx4 v{vS+i}, s[{r}:{r+3}], s{sB} offen {sc} lds")
        a.label(f"f_ds{nds[0]}")
    def dsaddr(m): return LW + 9216*m if m < 5 else 9216*(m - 5)
    def wo_step(m):
        a(f"s_add_u32 s{sB}, s{sJ}, {m}\ns_and_b32 s{sB}, s{sB}, 7\ns_mul_i32 s{sB}, s{sB}, {72*1152}\ns_add_u32 s{sB}, s{sB}, s{sCol}")
        dstep(dsaddr(m), sRA, hSm)
    lds_wait(a, "f_t1", hPr, t1, 3, sleep=32)
    for m in range(5): wo_step(m)
    lds_wait(a, "f_t3", hPr, t1, 4, sleep=32)
    for m in range(5, 8): wo_step(m)
    a(f"""v_mov_b32 v{vF}, {F_S2}
    s_cmp_lg_u32 s{sWave}, 3
    s_cbranch_scc1 f_t6_x
    s_and_b32 s{sD}, s{sT1}, 7
    s_lshl_b32 s{sD}, s{sD}, 12
    s_add_u32 s{sD}, s{sD}, {FL2}""")
    tag_wait(a, "f_t6", hS2, sD, 4, OB, sleep=8)
    a(f"""v_and_b32 v{t1}, 31, v{vL}
    v_lshrrev_b32 v{t2}, 5, v{vL}
    v_lshlrev_b32 v{t1}, 2, v{t1}
    v_lshl_add_u32 v{t1}, v{t2}, 12, v{t1}
    s_lshl_b32 s3, s{sT1}, 7
    s_add_u32 s3, s3, {GG}
    buffer_load_dword v{t2}, v{t1}, s[{sWS}:{sWS+3}], s3 offen sc1
    v_lshrrev_b32 v{t1}, 2, v{hL16}
    v_add_u32 v{t1}, {F_G}, v{t1}
    s_waitcnt vmcnt(0)
    ds_write_b32 v{t1}, v{t2}
    ds_write_b32 v{vF}, v{one}
    s_cmp_lg_u32 s2, 0
    s_cbranch_scc1 f_t6_x
    v_mov_b32 v{t1}, {EP}
    v_mov_b32 v{t2}, s{sNon}
    v_mov_b32 v{t3}, s{sNon+1}
    s_mov_b64 exec, 1
    buffer_store_dwordx2 v[{t2}:{t3}], v{t1}, s[{sWS}:{sWS+3}], 0 offen
    s_mov_b64 exec, -1""")
    a.label("f_t6_x")
    stamp(a, 5, "H")
    lds_wait(a, "f_t7", hPr, t1, 5, sleep=16)
    a(f"s_mov_b32 s{sB}, s{sCol}")
    dstep(dsaddr(8), sRA, hSx)
    a(f"""s_mul_i32 s{sB}, s{sT1}, {128*GP}
    s_add_u32 s{sB}, s{sB}, {GT}
    s_add_u32 s{sB}, s{sB}, s{sCol}
    s_cmp_ge_u32 s{sJ}, 4
    s_cselect_b32 s3, {GU - 2 - 576}, 0
    s_add_u32 s{sB}, s{sB}, s3""")
    lds_wait(a, "f_t8", vF, t1, 1, sleep=4)
    a(f"ds_read_b32 v{vG}, v{hGa}")
    dstep(dsaddr(9), sWS, hSg, "sc1")
    a(f"s_add_u32 s{sB}, s{sB}, {64*GP}")
    dstep(dsaddr(10), sWS, hSg, "sc1")
    a(f"""v_mov_b32 v{val}, 2
    v_mov_b32 v{vF}, {F_CNT3}
    s_lshl_b32 s{sD}, s{sWave}, 12
    s_lshl_b32 s3, s{sT1}, 7
    s_add_u32 s{sD}, s{sD}, s3
    s_add_u32 s{sD}, s{sD}, {FL3}
    s_lshl_b32 s{sA}, s{sT1}, 2
    s_add_u32 s{sA}, s{sA}, s{sWave}
    s_lshl_b32 s{sB}, s{sA}, 11
    s_and_b32 s{sB}, s{sB}, {0xfffff000}
    s_and_b32 s3, s{sWave}, 1
    s_mul_i32 s{sE}, s3, {16*73728}
    s_lshl_b32 s3, s3, 6
    s_add_u32 s{sB}, s{sB}, s3
    s_add_u32 s{sB}, s{sB}, {OX}
    s_lshl_b32 s{sA}, s{sA}, 14
    s_add_u32 s{sA}, s{sA}, {OF}
    s_mul_i32 s3, s{sRb}, 1152
    s_add_u32 s{sE}, s{sE}, s3
    s_add_u32 s{sE}, s{sE}, s{sCol}
    s_waitcnt vmcnt(0)
    ds_write_b32 v{hMt}, v{val}""")
    lds_wait(a, "f_t9", hTa, t1, 2, sleep=4)
    stamp(a, 6, "H")
    NR = 7
    def rd(f):
        ks, mu = divmod(f, 5)
        m = 9 + (ks >> 1) if ks < 4 else (ks - 4) >> 1
        v, o = (hTw, 9216*m) if m < 5 else (hTr, 9216*(m - 5))
        o += 4608*(ks & 1) + 32*mu
        r = AR + 4 * (f % 8)
        a(f"ds_read_b64_tr_b16 v[{r}:{r+1}], v{v} offset:{o}")
        a(f"ds_read_b64_tr_b16 v[{r+2}:{r+3}], v{v} offset:{o+144}")
    lds_wait(a, "f_t12", vF, t1, 8, sleep=2)
    for f in range(NR): rd(f)
    for f in range(110):
        ks, mu = divmod(f, 5)
        if f == 20:
            a("s_nop 3")
            for r in range(20): a(f"v_mul_f32 v{ACC+r}, v{ACC+r}, v{vG}")
            stamp12(a, 1); stamp(a, 1, "T")
            tag_wait(a, "f_t10", hTg, sD, 1, W2, sleep=1, lanes=8)
            stamp12(a, 2); stamp(a, 2, "T")
            for k in range(18):
                if k >= 16:
                    for j in range(4): a.vmem(f"buffer_load_dword v{OB+4*k+j}, v{hOx}, s[{sWS}:{sWS+3}], s{sB} offen offset:{2048*(k-16) + 128*j} sc1", f"o{k}")
                    continue
                if k & 1 == 0: a(f"s_add_u32 s3, s{sJ}, {k//2}\ns_and_b32 s3, s3, 7\ns_lshl_b32 s3, s3, 11\ns_add_u32 s3, s3, s{sA}")
                a.vmem(f"buffer_load_dwordx4 v[{OB+4*k}:{OB+4*k+3}], v{hL16}, s[{sWS}:{sWS+3}], s3 offen offset:{(k&1)*1024} sc1", f"o{k}")
        if ks >= 4 and mu == 0: a.vm_wait(f"o{ks-4}")
        if ks == 4 and mu == 0: stamp(a, 3, "T")
        if ks == 21 and mu == 0: stamp(a, 4, "T")
        if f & 1 == 0: a(f"s_waitcnt lgkmcnt({2*(min(110, f + NR) - f - 2)})")
        r = AR + 4 * (f % 8)
        B = W2 + 4*ks if ks < 4 else OB + 4*(ks-4)
        ac = ACC + 4*mu
        a(f"v_mfma_f32_16x16x32_bf16 v[{ac}:{ac+3}], v[{r}:{r+3}], v[{B}:{B+3}], " + ("0" if ks == 0 else f"v[{ac}:{ac+3}]"))
        if f + NR < 110: rd(f + NR)
    stamp12(a, 3); stamp(a, 5, "T")
    a("s_nop 3")
    for mu in range(5):
        ac = ACC + 4*mu
        if mu == 4: a("s_mov_b32 exec_hi, 0")
        a(f"v_cvt_pk_bf16_f32 v{W2+2*mu}, v{ac}, v{ac+1}\nv_cvt_pk_bf16_f32 v{W2+2*mu+1}, v{ac+2}, v{ac+3}")
        a(f"ds_write_b64 v{hOw}, v[{W2+2*mu}:{W2+2*mu+1}] offset:{32*mu}")
    a("s_mov_b32 exec_hi, -1")
    for it in range(3): a(f"ds_read_b128 v[{OB+4*it}:{OB+4*it+3}], v{hOr} offset:{1024*it}")
    for it in range(3):
        a(f"s_waitcnt lgkmcnt({2-it})")
        if it == 2: a("s_mov_b64 exec, 0xffff")
        a(f"buffer_store_dwordx4 v[{OB+4*it}:{OB+4*it+3}], v{hOo+it}, s[{sRD}:{sRD+3}], s{sE} offen")
    stamp(a, 6, "T")
    G0.stamp_end(a, 0, sWS, sWave)
    a("s_endpgm")

    a.label("f_att")
    a.vm = []
    Q1, Q2, vG, aK, ak, aV = 4, 8, 10, 11, 12, 13
    vt0, vt1, vt2, vt3 = 2, 3, 14, 15
    O, S, P, K1, K2, V = 16, [32, 48], [64, 72], [80, 84], [88, 90], [92, 100]
    aF, aP = 108, 109
    vW, vR0, vR1, vA0, vA1 = 110, 111, 112, 113, 114
    sW8, sRho, sHd = 70, 71, 72
    vSt = 115
    a("s_barrier")
    if "only" in EXP and "pfonly" not in EXP: a("s_endpgm")
    a(f"s_sub_u32 s{sW8}, s{sWave}, 4")
    if "xpf" in EXP:
        a(f"""s_cmp_lt_u32 s{sWave}, 8
        s_cbranch_scc1 f_pf9
        s_cmp_ge_u32 s{sWave}, 10
        s_cbranch_scc1 f_pf2
        v_mul_u32_u24 v{vt1}, 7282, v{vL}
        v_lshrrev_b32 v{vt1}, 16, v{vt1}
        v_lshlrev_b32 v{vt0}, 7, v{vL}
        s_mov_b32 s3, {36864 - 1152}
        v_mad_u32_u24 v{vt0}, v{vt1}, s3, v{vt0}
        s_lshl_b32 s3, s{sJ}, 1
        s_and_b32 s6, s{sWave}, 1
        s_add_u32 s3, s3, s6
        s_mul_i32 s3, s3, {4*36864}
        s_mul_i32 s6, s{sT1}, 1152
        s_add_u32 s3, s3, s6
        s_waitcnt lgkmcnt(0)""")
        srd(a, sRA, 16, 2048*1152)
        a(f"""s_mov_b32 exec_hi, 0xf
        buffer_load_dword v{vW}, v{vt0}, s[{sRA}:{sRA+3}], s3 offen
        s_mov_b32 exec_hi, -1
        s_branch f_pf8""")
        a.label("f_pf2")
        a(f"""s_lshr_b32 s3, s2, 3
        s_mul_i32 s3, s3, 768
        v_lshlrev_b32 v{vt0}, 7, v{vL}
        s_cmp_eq_u32 s{sWave}, 10
        s_waitcnt lgkmcnt(0)
        s_cselect_b32 s{sRA}, s30, s32
        s_cselect_b32 s{sRA+1}, s31, s33
        s_mov_b32 s{sRA+2}, {576*36}
        s_mov_b32 s{sRA+3}, 0x20000
        s_mov_b64 exec, 0x3f
        buffer_load_dword v{vW}, v{vt0}, s[{sRA}:{sRA+3}], s3 offen
        s_mov_b64 exec, -1""")
        a.label("f_pf8")
        if "wqpf" in EXP:
            srd(a, sRA, 28, 576*1152)
            a(f"""s_lshr_b32 s3, s2, 3
            s_lshl_b32 s3, s3, 2
            s_add_u32 s3, s3, s{sWave}
            s_sub_u32 s3, s3, 8
            s_mul_i32 s3, s3, {41*128}
            v_lshlrev_b32 v{vt0}, 7, v{vL}
            {"s_waitcnt vmcnt(0)" if "wqw" in EXP else ""}
            s_mov_b32 exec_hi, 0x1ff
            buffer_load_dword v{vW}, v{vt0}, s[{sRA}:{sRA+3}], s3 offen
            s_mov_b32 exec_hi, -1""")
        a.label("f_pf9")
    a("s_getpc_b64 s[4:5]")
    a.label("f_pf")
    a(f"""s_sub_u32 s4, s4, f_pf-f_code
    s_subb_u32 s5, s5, 0
    s_lshr_b32 s3, s2, 3
    s_lshl_b32 s6, s{sW8}, 6
    s_add_u32 s3, s3, s6
    v_lshlrev_b32 v{vt0}, 5, v{vL}
    v_add_u32 v{vt0}, s3, v{vt0}
    v_lshlrev_b32 v{vt0}, 7, v{vt0}
    v_min_u32 v{vt0}, rf_end-f_code-4, v{vt0}
    s_mov_b64 exec, 3
    global_load_dword v130, v{vt0}, s[4:5]
    s_mov_b64 exec, -1""")
    if "pfonly" in EXP: a("s_endpgm")
    xread(a, vR0, vR1, vt0, vt1)
    a(f"""s_lshr_b32 s{sRho}, s{sW8}, 2
    s_and_b32 s{sHd}, s{sW8}, 3
    s_mul_i32 s3, s{sRho}, 36864
    v_add_u32 v{vR0}, s3, v{vR0}
    v_xor_b32 v{vR1}, 32, v{vR0}
    s_bitcmp1_b32 s{sHd}, 0
    s_mov_b32 s{sB}, 0x34343120
    s_mov_b32 s{sC}, {LW}
    s_cmov_b32 s{sB}, 0x44423120
    s_cmov_b32 s{sC}, {LW-4}
    s_mul_i32 s3, s{sHd}, 36
    s_add_u32 s{sC}, s{sC}, s3
    v_bfe_u32 v{vt0}, v{vL}, 4, 1
    v_and_b32 v{vt1}, 3, v{vL}
    v_lshl_add_u32 v{vt0}, v{vt0}, 2, v{vt1}
    v_lshlrev_b32 v{vt0}, 2, v{vt0}
    v_lshrrev_b32 v{vt0}, v{vt0}, s{sB}
    v_and_b32 v{vt0}, 15, v{vt0}
    v_bfe_u32 v{vt1}, v{vL}, 2, 2
    v_lshrrev_b32 v{vt3}, 5, v{vL}
    v_lshl_add_u32 v{vt1}, v{vt1}, 1, v{vt3}
    v_mul_u32_u24 v{vt1}, 288, v{vt1}
    v_lshl_add_u32 v{vA0}, v{vt0}, 3, v{vt1}
    v_add_u32 v{vA0}, s{sC}, v{vA0}
    v_subrev_u32 v{vA1}, {LW-LD}, v{vA0}
    v_and_b32 v{aF}, 3, v{vL}
    v_min_u32 v{aF}, 2, v{aF}
    v_lshlrev_b32 v{aF}, 2, v{aF}
    v_add_u32 v{aF}, {F_LD}, v{aF}
    v_and_b32 v{vt2}, 31, v{vL}
    v_lshlrev_b32 v{ak}, 2, v{vt2}
    s_lshl_b32 s3, s{sW8}, 2
    s_add_u32 s3, s3, {F_PRG}
    v_mov_b32 v{aP}, s3
    v_lshlrev_b32 v{vSt}, 4, v{vL}
    v_add_u32 v{aK}, {LW}, v{vSt}
    v_add_u32 v{ak}, {LW+1024}, v{ak}
    v_cmp_eq_u32 vcc, 28, v{vt2}
    v_mul_u32_u24 v{vt0}, 19, v{vt3}
    s_nop 0
    v_cndmask_b32 v{aV}, v{vt2}, 18, vcc
    v_cmp_gt_u32 vcc, 19, v{aV}
    v_add_u32 v{aV}, v{aV}, v{vt0}
    s_nop 0
    v_cndmask_b32 v{aV}, 38, v{aV}, vcc
    v_lshlrev_b32 v{aV}, 4, v{aV}
    v_add_u32 v{aV}, {LW+1152}, v{aV}""")
    sO, sHead, vOa, vOb, vGa = 76, 73, 128, 129, 131
    a(f"""s_lshl_b32 s{sHead}, s{sJ}, 2
    s_add_u32 s{sHead}, s{sHead}, s{sHd}
    s_lshl_b32 s{sA}, s{sT1}, 1
    s_add_u32 s{sA}, s{sA}, s{sRho}
    s_lshl_b32 s{sB}, s{sA}, 12
    s_lshl_b32 s3, s{sHead}, 7
    s_add_u32 s{sB}, s{sB}, s3
    s_add_u32 s{sO+1}, s{sB}, {OX}
    s_lshl_b32 s{sA}, s{sA}, 15
    s_lshl_b32 s3, s{sHead}, 9
    s_add_u32 s{sA}, s{sA}, s3
    s_add_u32 s{sO}, s{sA}, {OF}
    v_lshlrev_b32 v{vOb}, 2, v{vt2}
    v_and_b32 v{vOa}, 15, v{vL}
    v_lshlrev_b32 v{vOa}, 4, v{vOa}
    v_bfe_u32 v{vt1}, v{vL}, 4, 1
    v_lshl_add_u32 v{vOa}, v{vt1}, 14, v{vOa}
    v_lshl_add_u32 v{vOa}, v{vt3}, 8, v{vOa}
    s_lshl_b32 s3, s{sRho}, 7
    s_add_u32 s3, s3, {F_G}
    v_add_u32 v{vGa}, s3, v{vOb}""")
    common_srd()
    GO, vN, sGrp = [116, 120, 124, 132], 130, 74
    sGi = 75
    GJ = THR("gj", 0)
    a(f"""s_mov_b32 s{sGi}, 0x44443210
    s_cmp_ge_u32 s{sJ}, 4
    s_cmov_b32 s{sGi}, 0x44453210
    s_lshr_b32 s3, s{sJ}, 1
    s_cmp_eq_u32 s3, {GJ//2}
    s_cselect_b32 s3, 0x02000000, 0
    s_add_u32 s{sGi}, s{sGi}, s3
    s_lshl_b32 s3, s{sW8}, 2
    s_lshr_b32 s{sGi}, s{sGi}, s3
    s_and_b32 s{sGi}, s{sGi}, 15
    s_and_b32 s3, s{sJ}, 1
    s_sub_u32 s3, s3, s{sRho}
    s_mul_i32 s3, s3, 36864
    v_add_u32 v{vW}, s3, v{vR0}
    s_cmp_eq_u32 s{sGi}, 4
    s_cbranch_scc1 f_a0
    {"s_setprio 1" if "nojprio" not in EXP else ""}
    s_cmp_eq_u32 s{sGi}, 6
    s_cbranch_scc1 f_gate
    s_lshr_b32 s{sGrp}, s{sJ}, 1
    s_add_u32 s3, s{sGrp}, 14
    s_lshl_b32 s{sGrp}, s{sGrp}, 2
    s_add_u32 s{sGrp}, s{sGrp}, s{sGi}
    s_cmp_eq_u32 s{sGi}, 5
    s_cselect_b32 s{sGrp}, s3, s{sGrp}""")
    a.label("f_job")
    fnet_job(a)
    stamp(a, 6, "J")
    a("s_branch f_a0")
    a.label("f_gate")
    a(f"""v_xor_b32 v4, 32, v{vW}
    v_lshlrev_b32 v5, 4, v{vt3}
    v_add_u32 v5, {LGATE}, v5
    v_add_u32 v6, {F_G2}, v{vOb}""")
    lds_wait(a, "f_g1", aF, vt0, 6, sleep=1)
    duty_chain("G", 16, vW, 4, 5)
    a(f"""s_nop 11
    v_mul_f32 v4, {f2u(-math.log2(math.e))}, v16
    v_exp_f32 v4, v4
    s_nop 0
    v_add_f32 v4, 1.0, v4
    v_rcp_f32 v4, v4
    s_nop 0
    ds_write_b32 v6, v4""")
    a.label("f_a0")
    if "nojprio" not in EXP: a("s_setprio 0")
    if "nobprio" not in EXP: a(f"s_cmp_lg_u32 s{sGi}, 5\ns_cbranch_scc1 f_a00\ns_setprio 1"); a.label("f_a00")
    stamp(a, 1, "P")
    QA, QR = S[0], 64
    lg = []
    def qwait(tag):
        if tag in lg:
            i = max(k for k, t in enumerate(lg) if t == tag)
            a(f"s_waitcnt lgkmcnt({len(lg) - 1 - i})"); del lg[:i + 1]
    def qrd(ks):
        c, b = ks >> 2, QR + 8*(ks % 5)
        v, o = (vA0, 9216*c) if c < 5 else (vA1, 9216*(c-5))
        o += 2304*(ks & 3)
        a(f"ds_read_b64_tr_b16 v[{b}:{b+1}], v{v} offset:{o}")
        a(f"ds_read_b64_tr_b16 v[{b+2}:{b+3}], v{v} offset:{o + 144}")
        a(f"ds_read_b128 v[{b+4}:{b+7}], v{vR1 if ks & 1 else vR0} offset:{2048*(ks>>1)}")
        lg.extend([ks]*3)
        assert len(lg) <= 15
    lds_wait(a, "f_q0", aF, vt0, QF)
    nonce(); stamp(a, 2, "P")
    if "C" not in EXP: stamp(a, 1)
    for ks in range(4): qrd(ks)
    for ks in range(36):
        c, b = ks >> 2, QR + 8*(ks % 5)
        qwait(ks)
        a(f"v_mfma_f32_32x32x16_bf16 v[{QA}:{QA+15}], v[{b}:{b+3}], v[{b+4}:{b+7}], " + ("0" if ks == 0 else f"v[{QA}:{QA+15}]"))
        if ks == 7: a(f"v_mov_b32 v{vt1}, 1\nds_write_b32 v{aP}, v{vt1}"); lg.append("w"); stamp(a, 1, "K")
        if ks & 3 == 0 and c < 8:
            qwait("f")
            a(f"v_cmp_gt_i32 vcc, {QF + c + 1}, v{vt0}\ns_cbranch_vccz f_q{c+1}_ok")
            lds_wait(a, f"f_q{c+1}", aF, vt0, QF + c + 1)
            a.label(f"f_q{c+1}_ok")
            if c == 4: stamp(a, 3, "P")
        if ks & 3 == 2 and c < 7: a(f"ds_read_b32 v{vt0}, v{aF}"); lg.append("f")
        if ks + 4 < 36: qrd(ks + 4)
    stamp(a, 4, "P")
    for r in range(16): a(f"v_mov_b32 v{O+r}, 0")
    a(f"s_mov_b32 s{sB}, {f2u(CQ)}\ns_bitcmp1_b32 s{sHd}, 0\ns_cbranch_scc1 f_qodd")
    T = S[1]
    def qmove(r0, rx):
        for r in range(8): a(f"v_mul_f32 v{T+r}, s{sB}, v{QA+r0+r}")
        for r in range(2): a(f"v_mul_f32 v{T+8+r}, s{sB}, v{QA+rx+r}")
    qmove(0, 8)
    a("s_branch f_qdone")
    a.label("f_qodd")
    qmove(2, 14)
    a.label("f_qdone")
    for r in range(2): a(f"v_cndmask_b32 v{T+8+r}, v{T+8+r}, 0, s[{sHi}:{sHi+1}]")
    a(f"v_mul_f32 v{vt0}, v{T}, v{T}")
    for r in range(1, 10): a(f"v_fmac_f32 v{vt0}, v{T+r}, v{T+r}")
    for k in range(5): a(f"v_cvt_pk_bf16_f32 v{Q1+k}, v{T+2*k}, v{T+2*k+1}")
    a(f"v_mov_b32 v{vt1}, v{vt0}")
    a(f"""v_and_b32 v{aF}, 3, v{vL}
    v_lshlrev_b32 v{aF}, 2, v{aF}
    v_permlane32_swap_b32 v{vt0}, v{vt1}
    v_add_u32 v{aF}, {F_KV}, v{aF}
    v_add_f32 v{vt0}, v{vt0}, v{vt1}
    v_sqrt_f32 v{vt0}, v{vt0}
    v_mov_b32 v{vt2}, {F_KC}
    v_cvt_pk_bf16_f32 v{Q2+1}, v{vt0}, 1.0
    v_cndmask_b32 v{Q2+1}, v{Q2+1}, 0, s[{sHi}:{sHi+1}]""")
    vH0, vH1 = vR0, vR1
    a(f"""s_lshl_b32 s3, s{sGi}, 1
    v_lshrrev_b32 v{vH0}, 5, v{vL}
    v_add_u32 v{vH0}, s3, v{vH0}
    v_xor_b32 v{vH0}, v{vH0}, v{vL}
    v_and_b32 v{vH0}, 7, v{vH0}
    v_lshlrev_b32 v{vH0}, 4, v{vH0}
    v_lshl_add_u32 v{vH0}, v{vOb}, 5, v{vH0}
    v_add_u32 v{vH0}, {GSC}, v{vH0}
    v_xor_b32 v{vH1}, 112, v{vH0}
    v_add_u32 v{vW}, {F_N}, v{vOb}
    s_lshl_b32 s3, s{sGi}, 2
    s_add_u32 s3, s3, {F_XC}
    v_mov_b32 v{vA0}, s3
    v_mov_b32 v{vA1}, 1""")
    stamp(a, 6, "P")
    a(f"v_mov_b32 v{vG}, 2\nds_write_b32 v{aP}, v{vG}")
    a(f"""s_cmp_lg_u32 s{sGi}, 5
    s_cbranch_scc1 f_a5
    v_and_b32 v{vH1}, 28, v{vOb}
    v_add_u32 v{vH1}, {F_PRG}, v{vH1}
    v_add_u32 v{vH0}, {GSC + 16384}, v{vSt}""")
    lds_wait(a, "f_a7", vH1, vt3, 2)
    for kind in range(4): a(f"ds_write_b128 v{vH0}, v[{GO[kind]}:{GO[kind]+3}] offset:{1024*kind}")
    a(f"ds_write_b32 v{vA0}, v{vA1}")
    a.label("f_a5")
    stamp(a, 2, "K")
    lds_wait(a, "f_a6", aF, vt3, 1)
    stamp(a, 3, "K")
    a(f"""s_setprio {PRIO[0]}""")
    stamp(a, 3)
    if G0.STAMP and "C" in EXP: a("s_memtime s[84:85]")
    base = {aK: LW, ak: LW, aV: LW}
    def off(v, j, extra=0):
        o = ltile(j) + extra - base[v]
        if not 0 <= o < 65536:
            nb = ltile(j)
            a(f"v_add_u32 v{v}, {(nb - base[v]) & 0xffffffff}, v{v}")
            base[v] = nb; o = extra
        return o
    NB = 3 if "nb3" in EXP else 2
    K1, K2, V = K1 + [136], K2 + [140], V + [144]
    rdK = lambda j: f"ds_read_b128 v[{K1[j%NB]}:{K1[j%NB]+3}], v{aK} offset:{off(aK, j)}"
    rdk = lambda j: f"ds_read_b32 v{K2[j%NB]}, v{ak} offset:{off(ak, j)}"
    rdV = lambda j, u: f"ds_read_b128 v[{V[j%NB]+4*u}:{V[j%NB]+4*u+3}], v{aV} offset:{off(aV, j, 624) - 624*(1-u)}"
    def M1(j): return f"v_mfma_f32_32x32x16_bf16 v[{S[j&1]}:{S[j&1]+15}], v[{K1[j%NB]}:{K1[j%NB]+3}], v[{Q1}:{Q1+3}], 0"
    def M2(j): return f"v_mfma_f32_32x32x8_bf16 v[{S[j&1]}:{S[j&1]+15}], v[{K2[j%NB]}:{K2[j%NB]+1}], v[{Q2}:{Q2+1}], v[{S[j&1]}:{S[j&1]+15}]"
    def M3(j, u): return f"v_mfma_f32_32x32x16_bf16 v[{O}:{O+15}], v[{V[j%NB]+4*u}:{V[j%NB]+4*u+3}], v[{P[j&1]+4*u}:{P[j&1]+4*u+3}], v[{O}:{O+15}]"
    for b in range(NB): a(rdK(b)); a(rdk(b)); a(f"ds_read_b32 v{K2[b]+1}, v{vt2}")
    if NB == 3: a(rdV(0, 0)); a(rdV(0, 1))
    a(f"s_waitcnt lgkmcnt({3 if NB == 2 else 8})")
    a(M1(0)); a(M2(0))
    a(f"s_waitcnt lgkmcnt({0 if NB == 2 else 5})\ns_nop 8")
    FCHK = {6 - NB: 2, 13 - NB: 3, 26 - NB: 4}
    PRG = {20: 3, 32: 4, 44: 5}
    for j in range(64):
        if j in PRIO and j: a(f"s_setprio {PRIO[j]}")
        if j == 32: stamp(a, 4)
        if j in PRG: a(f"v_mov_b32 v{vt1}, {PRG[j]}\nds_write_b32 v{aP}, v{vt1}")
        if "M" in EXP and j in (0, 24, 60):
            q = {0: 1, 24: 3, 60: 5}[j]
            a(f"s_memrealtime s[{82+2*q}:{83+2*q}]\ns_memtime s[{84+2*q}:{85+2*q}]")
        if j in (0, 3, 10, 23) and "L" in EXP: stamp(a, {0: 1, 3: 2, 10: 4, 23: 6}[j], "L")
        if j in FCHK: lds_wait(a, f"f_w{j}", aF, vt0, FCHK[j])
        if j in (3, 10) and "L" in EXP: stamp(a, {3: 3, 10: 5}[j], "L")
        if j == 6 - NB:
            a(f"s_cmp_ge_u32 s{sGi}, 4\ns_cbranch_scc1 f_a1")
            for kind in range(4): a(f"ds_write_b128 v{vH1 if kind >> 1 else vH0}, v[{GO[kind]}:{GO[kind]+3}] offset:{4096*kind}")
            a(f"s_cmp_lg_u32 s{sGi}, 0\ns_cbranch_scc1 f_a3\ns_mov_b32 exec_hi, 0\nds_write_b32 v{vW}, v{vN}\ns_mov_b32 exec_hi, -1")
            a.label("f_a3")
            a(f"ds_write_b32 v{vA0}, v{vA1}")
            a.label("f_a1")
        if j == 25: a(f"v_mov_b32 v{aF}, {F_S2}")
        if j == 61:
            lds_wait(a, "f_a4", aF, vt0, 1)
            a(f"ds_read_b32 v{vG}, v{vGa}")
        if j == 63: a(f"v_sub_f32 v{vG}, 1.0, v{vG}")
        s, p = S[j & 1], P[j & 1]
        e = lambda i: f"v_exp_f32 v{s+i}, v{s+i}"
        c = lambda i: f"v_cvt_pk_bf16_f32 v{p+i}, v{s+2*i}, v{s+2*i+1}"
        nx, pv, ld, lv = j + 1 < 64, j > 0, j + NB < 64, j + NB - 2 < 64
        L = []
        if ld: lk, lk2 = rdK(j+NB), rdk(j+NB)
        if lv: lv0, lv1 = rdV(j+NB-2, 0), rdV(j+NB-2, 1)
        if nx: L.append(M1(j+1))
        if ld: L.append(lk)
        L += [e(0), e(1), e(2), e(3), c(0)]
        if nx: L.append(M2(j+1))
        if ld: L.append(lk2)
        L += [e(4), e(5), c(1), e(6), e(7), c(2)]
        if pv: L.append(M3(j-1, 0))
        if lv: L += [lv0, lv1]
        L += [e(8), e(9), c(3), e(10), e(11), c(4)]
        if pv: L.append(M3(j-1, 1))
        L += [e(12), e(13), c(5), e(14), e(15), c(6), c(7), f"s_waitcnt lgkmcnt({0 if NB == 2 else 2*ld + 2*lv})"]
        for x in L: a(x)
    a("s_nop 0"); a(M3(63, 0)); a(M3(63, 1))
    stamp(a, 5); stamp(a, 5, "T")
    if G0.STAMP and "C" in EXP: a("s_memtime s[86:87]")
    a("s_nop 11")
    vl = S[0]
    a(f"v_cndmask_b32 v{vl}, v{O+10}, v{O+12}, s[{sHi}:{sHi+1}]")
    a(f"v_add_f32 v{vt0}, |v{O}|, |v{O+1}|")
    for r in range(2, 10): a(f"v_add_f32 v{vt0}, |v{O+r}|, v{vt0}")
    a(f"""v_add_f32 v{vt0}, v{vl}, v{vt0}
    v_cmp_le_f32 vcc, {f2u(LMIN)}, v{vl}
    v_mov_b32 v{vt1}, 0x7f800000
    v_cmp_lt_f32 s[6:7], v{vt0}, v{vt1}
    s_nop 0
    s_and_b64 vcc, vcc, s[6:7]
    s_cmp_eq_u64 vcc, exec
    {"" if "nofb" in EXP else "s_cbranch_scc0 f_fallback"}""")
    a.label("f_norm")
    a(f"v_rcp_f32 v{vl}, v{vl}\ns_nop 0\nv_mul_f32 v{vl}, v{vl}, v{vG}")
    for r in range(10): a(f"v_mul_f32 v{O+r}, v{O+r}, v{vl}")
    for k in range(5): a(f"v_cvt_pk_bf16_f32 v{P[0]+k}, v{O+2*k}, v{O+2*k+1}")
    a(f"""buffer_store_dwordx4 v[{P[0]}:{P[0]+3}], v{vOa}, s[{sWS}:{sWS+3}], s{sO} offen sc1
    s_mov_b32 exec_hi, 0
    {"" if "noext" in EXP else f"buffer_store_dword v{P[0]+4}, v{vOb}, s[{sWS}:{sWS+3}], s{sO+1} offen sc1"}
    s_mov_b32 exec_hi, -1""")
    stamp(a, 1, "T")
    if "T" in EXP: a("s_waitcnt vmcnt(0)")
    stamp(a, 2, "T")
    last_wave_signals(a, "f_a9", F_CNT3, 8, FL3, 4, vt0, vt2, 'noat' not in EXP)
    stamp(a, 3, "T")
    G0.stamp_end(a, 0, sWS, sWave)
    a("s_endpgm")
    a.label("f_fallback")
    s0 = S[0]
    a(f"""v_subrev_u32 v{aK}, {base[aK]}, v{aK}
    v_subrev_u32 v{ak}, {base[ak]}, v{ak}
    v_subrev_u32 v{aV}, {base[aV]}, v{aV}
    v_mov_b32 v{K2[0]+1}, 0
    v_mov_b32 v{vt0}, 0xff800000
    s_mov_b32 s{sA}, {KVG}""")
    a.label("f_fb1")
    a(f"""buffer_load_dwordx4 v[{K1[0]}:{K1[0]+3}], v{aK}, s[{sWS}:{sWS+3}], s{sA} offen sc1
    buffer_load_dword v{K2[0]}, v{ak}, s[{sWS}:{sWS+3}], s{sA} offen sc1
    s_waitcnt vmcnt(0)""")
    a(M1(0)); a(M2(0)); a("s_nop 11")
    for r in range(0, 16, 2): a(f"v_max3_f32 v{vt0}, v{s0+r}, v{s0+r+1}, v{vt0}")
    a(f"""s_add_u32 s{sA}, s{sA}, {TILE}
    s_cmp_lt_u32 s{sA}, {KVG+64*TILE}
    s_cbranch_scc1 f_fb1
    v_mov_b32 v{vt1}, v{vt0}
    s_nop 1
    v_permlane32_swap_b32 v{vt0}, v{vt1}
    v_max_f32 v{vt0}, v{vt0}, v{vt1}
    v_cvt_pk_bf16_f32 v{vt1}, v{vt0}, v{vt0}
    v_and_b32 v{vt1}, 0xffff0000, v{vt1}
    v_sub_f32 v{vt0}, v{vt0}, v{vt1}
    v_cvt_pk_bf16_f32 v{Q2+1}, v{vt1}, v{vt0}
    v_cndmask_b32 v{Q2+1}, v{Q2+1}, 0, s[{sHi}:{sHi+1}]
    v_mov_b32 v{K2[0]+1}, 0xbf80bf80
    s_mov_b32 s{sA}, {KVG}""")
    for r in range(16): a(f"v_mov_b32 v{O+r}, 0")
    a.label("f_fb2")
    a(f"""buffer_load_dwordx4 v[{K1[0]}:{K1[0]+3}], v{aK}, s[{sWS}:{sWS+3}], s{sA} offen sc1
    buffer_load_dword v{K2[0]}, v{ak}, s[{sWS}:{sWS+3}], s{sA} offen sc1
    buffer_load_dwordx4 v[{V[0]}:{V[0]+3}], v{aV}, s[{sWS}:{sWS+3}], s{sA} offen sc1
    buffer_load_dwordx4 v[{V[0]+4}:{V[0]+7}], v{aV}, s[{sWS}:{sWS+3}], s{sA} offen offset:624 sc1
    s_waitcnt vmcnt(0)""")
    a(M1(0)); a(M2(0)); a("s_nop 11")
    for r in range(16): a(f"v_exp_f32 v{s0+r}, v{s0+r}")
    a("s_nop 0")
    for k in range(8): a(f"v_cvt_pk_bf16_f32 v{P[0]+k}, v{s0+2*k}, v{s0+2*k+1}")
    a("s_nop 1"); a(M3(0, 0)); a(M3(0, 1))
    a(f"""s_add_u32 s{sA}, s{sA}, {TILE}
    s_cmp_lt_u32 s{sA}, {KVG+64*TILE}
    s_cbranch_scc1 f_fb2
    s_nop 11
    v_cndmask_b32 v{vl}, v{O+10}, v{O+12}, s[{sHi}:{sHi+1}]
    s_branch f_norm""")
    a.label("f_end")
    a("s_endpgm")
    return a

HEAD = """; Fused FNet + multi-query attention + gate.  One launch, 256 workgroups of 12 waves, one per CU.
"""
def build(a, vgpr=168):
    i0, i1 = a.lines.index("f_duty:"), a.lines.index("f_dS:")
    if "dplain" in EXP: a.lines[i0:i1] = [l.replace(" sc1", "") if "buffer_store" in l and "dwordx2" not in l else l for l in a.lines[i0:i1]]
    if "dnost" in EXP: a.lines[i0:i1] = [l for l in a.lines[i0:i1] if not ("buffer_store" in l and "dwordx2" not in l)]
    if "noprio" in EXP: a.lines = [l for l in a.lines if l != "s_setprio 3"]
    lab = G0.NAME + "_kernel"
    for p in check(a.lines): print(p, file=sys.stderr)
    out = [HEAD + f"; @launch grid=(256,1,1) block=(768,1,1) lds=163840", '.amdgcn_target "amdgcn-amd-amdhsa--gfx950"\n.text',
           f".globl {lab}\n.p2align 8\n.type {lab},@function\n{lab}:", a.text(), ".p2align 8\n.type rf_table,@object\nrf_table:"]
    w = rf_table()
    for i in range(0, len(w), 8): out.append(".long " + ",".join(f"0x{x:08x}" for x in w[i:i+8]))
    out += [".size rf_table, 4096", "rf_end:", '.section .rodata,"a"', kd(lab, vgpr)]
    return "\n".join(out) + "\n"

if __name__ == "__main__":
    if len(sys.argv) > 2 and sys.argv[2] == "stamp": G0.STAMP = True
    for x in sys.argv[3:]:
        if x.startswith("leak"):
            p = x.split(":"); G0.LEAK = (int(p[1]), int(p[2]), int(p[3]) if len(p) > 3 else None)
        else: EXP.add(x)
    open(sys.argv[1], "w").write(build(gen()))
```

```python
import math, sys
import gen as G0
from gen import Asm, check, srd, f2u, bf16, CQ, wave_max, load_rf, rf_table, kd
TILE, VB = 2432, 640
GP, GU = 1280, 704
EP = 0x0
FL0, FL1, FL2, FL3 = 0x8000, 0x10000, 0x20000, 0x30000
KMG = 0x44000
GG = 0x41000
KVG = 0x50000
OF = 0x100000
OX = 0x300000
GT = 0x340000
ST = 0x1200000
WS_SIZE = 0x1300000
G0.GT = GT; G0.ST = ST
OFFS, LMIN = 80.0, 2.0**-100
LX, LD, LW, LGATE, FLG = 0, 73728, 110592, 156672, 159744
F_KV, F_PRG, F_S1F, F_S1, F_CNT2, F_CNT3, F_TA, F_S2, F_S0, F_DUTY, F_KC, F_LD, F_XC, F_BIG, F_G, F_N, F_G2, F_DUMP = FLG, FLG+16, FLG+48, FLG+52, FLG+56, FLG+60, FLG+64, FLG+80, FLG+84, FLG+88, FLG+92, FLG+96, FLG+112, FLG+140, FLG+256, FLG+512, FLG+640, FLG+1024
GSC = 81920
J1 = 20
def ltile(j): return LW + TILE*j if j < J1 else TILE*(j - J1)
PRIO = {0: 2, 32: 1, 60: 0}
for _x in sys.argv:
    if _x.startswith("pr:"): PRIO = {int(k): int(v) for k, v in (p.split("=") for p in _x[3:].split(","))}
SPIN = 20000
THR = lambda k, d: next((int(x[len(k):]) for x in EXP if x.startswith(k) and x[len(k):].isdigit()), d)
QF = 7
EXP = set()
def stamp(a, s, g="A"):
    if s == 0 or g in EXP or (g == "A" and not EXP & {"P", "H", "R", "T", "J", "L", "M", "K", "D"}): G0.stamp(a, s)

sWS, sRA, sRB, sRC, sRD = 8, 12, 40, 44, 48
sNon, sWave, sT1, sJ = 54, 56, 57, 58
sA, sB, sC, sD, sE, sF, sG, sH = 59, 60, 61, 62, 63, 64, 65, 66
sHi = 68
sRot = 67
vL = 1

_n = [0]
LABS = {}
def stamp12(a, slot):
    if not G0.STAMP or EXP & {'P', 'H', 'R', 'T', 'J', 'L', 'M', 'K', 'D'}: return
    _n[0] += 1
    a(f"s_sub_u32 s3, s{sWave}, 1\ns_cmp_ge_u32 s3, 2\ns_cbranch_scc1 f_st{_n[0]}")
    stamp(a, slot)
    a.label(f"f_st{_n[0]}")

def lds_wait(a, lab, vaddr, vt, val, sleep=0):
    if sleep:
        a(f"s_branch {lab}")
        a.label(lab + "_z")
        a(f"s_sleep {sleep}")
    a.label(lab)
    if G0.STAMP:
        _n[0] += 1
        a(f"s_add_u32 s83, s83, 1\ns_cmp_lt_u32 s83, 200000\ns_cbranch_scc1 {lab}_go\ns_mov_b32 s99, {0x77770000}\ns_mov_b32 s97, {_n[0]}\ns_branch {lab}_to")
        a.label(lab + "_go")
    a(f"ds_read_b32 v{vt}, v{vaddr}\ns_waitcnt lgkmcnt(0)\nv_cmp_gt_i32 vcc, {val}, v{vt}\ns_cbranch_vccnz {lab + ('_z' if sleep else '')}")
    if G0.STAMP: a.label(lab + "_to"); LABS[_n[0]] = lab

def tag_wait(a, lab, vaddr, soff, n, vt, step=1024, sleep=2, lanes=0, sent=False):
    a(f"s_mov_b32 s{sH}, 0")
    if lanes: a(f"s_mov_b64 exec, {(1 << lanes) - 1}")
    if sent: a(f"s_branch {lab}_s")
    a.label(lab)
    if lanes:
        a(f"v_mov_b32 v{vt}, 0\nv_mov_b32 v{vt+1}, 0\nbuffer_atomic_or_x2 v[{vt}:{vt+1}], v{vaddr}, s[{sWS}:{sWS+3}], s{soff} offen sc0 sc1")
    else:
        for i in range(n): a(f"buffer_load_dwordx2 v[{vt+2*i}:{vt+2*i+1}], v{vaddr}, s[{sWS}:{sWS+3}], s{soff} offen offset:{i*step} sc1")
    if sent: a.label(lab + "_s")
    a(f"s_add_u32 s{sH}, s{sH}, 1\ns_waitcnt vmcnt(0)" + ("" if sent else " lgkmcnt(0)"))
    for i in range(n):
        a(f"v_cmp_ne_u64 {'vcc' if i == 0 else 's[6:7]'}, s[{sNon}:{sNon+1}], v[{vt+2*i}:{vt+2*i+1}]")
        if i: a("s_nop 0\ns_or_b64 vcc, vcc, s[6:7]")
    a(f"s_cbranch_vccz {lab}_ok\ns_sleep {sleep}\ns_cmp_lt_u32 s{sH}, {SPIN}\ns_cbranch_scc1 {lab}")
    if G0.STAMP: a("s_mov_b32 s99, 0x77770000")
    a.label(lab + "_ok")
    if lanes: a("s_mov_b64 exec, -1")
    a.vm = []

def tag_signal(a, area, nrep, v0, v1, atomic=False):
    a(f"""s_lshl_b32 s{sG}, s{sT1}, 7
    s_lshl_b32 s{sH}, s{sJ}, 3
    s_add_u32 s{sG}, s{sG}, s{sH}
    s_add_u32 s{sG}, s{sG}, {area}
    v_lshlrev_b32 v{v0}, 12, v{vL}
    v_mov_b32 v{v1}, s{sNon}
    v_mov_b32 v{v1+1}, s{sNon+1}
    s_mov_b64 exec, {(1 << nrep) - 1}
    {"buffer_atomic_swap_x2" if atomic else "buffer_store_dwordx2"} v[{v1}:{v1+1}], v{v0}, s[{sWS}:{sWS+3}], s{sG} offen sc1
    s_mov_b64 exec, -1""")

def last_wave_signals(a, lab, cnt, total, area, nrep, v0, v1, atomic=False):
    a(f"""s_waitcnt vmcnt(0)
    v_mov_b32 v{v0}, {cnt}
    v_mov_b32 v{v1}, 1
    s_mov_b64 exec, 1
    ds_add_rtn_u32 v{v1}, v{v0}, v{v1}
    s_waitcnt lgkmcnt(0)
    v_readfirstlane_b32 s{sG}, v{v1}
    s_mov_b64 exec, -1
    s_cmp_lg_u32 s{sG}, {total-1}
    s_cbranch_scc1 {lab}""")
    tag_signal(a, area, nrep, v0, v1, atomic)
    a.label(lab)
    a.vm = []

def xsrc(a, dst, t0, t1):
    a(f"""v_lshrrev_b32 v{t0}, 4, v{vL}
    v_xor_b32 v{t0}, v{t0}, v{vL}
    v_and_b32 v{t0}, 3, v{t0}
    v_lshlrev_b32 v{t0}, 4, v{t0}
    v_lshrrev_b32 v{t1}, 2, v{vL}
    s_mov_b32 s3, 73728
    v_mad_u32_u24 v{dst}, v{t1}, s3, v{t0}""")
def xread(a, r0, r1, t0, t1):
    a(f"""v_lshrrev_b32 v{t0}, 5, v{vL}
    v_lshrrev_b32 v{t1}, 2, v{vL}
    v_xor_b32 v{t0}, v{t0}, v{t1}
    v_and_b32 v{t0}, 3, v{t0}
    v_and_b32 v{t1}, 31, v{vL}
    v_lshlrev_b32 v{t1}, 6, v{t1}
    v_lshl_add_u32 v{r0}, v{t0}, 4, v{t1}""")
def dense_pos(a, sph, pos, c16, t):
    a(f"""s_lshl_b32 s3, s{sph}, 6
    v_add_u32 v{c16}, s3, v{vL}
    v_mul_u32_u24 v{pos}, 7282, v{c16}
    v_lshrrev_b32 v{pos}, 16, v{pos}
    v_mul_u32_u24 v{t}, 9, v{pos}
    v_sub_u32 v{c16}, v{c16}, v{t}
    v_lshlrev_b32 v{c16}, 4, v{c16}""")

J_GO, J_N, J_vX, J_vF, J_sG, J_HB, J_R = [116, 120, 124, 132], 130, 110, 108, 74, 116, 132
def fnet_job(a):
    GO, vN, vX, vF, sGrp = J_GO, J_N, J_vX, J_vF, J_sG
    H1, H2, C = 16, 32, 16
    B = [72 + 4*i for i in range(9)] + [132 + 4*i for i in range(9)]
    free = [48 + 4*i for i in range(6)] + [116, 120, 124]
    e, p, co, x0, x1 = 4, 5, 6, 7, 8
    stamp(a, 1, "J")
    a(f"""v_and_b32 v{e}, 3, v{vL}
    v_bfe_u32 v{p}, v{vL}, 2, 1
    v_lshl_add_u32 v{e}, v{p}, 3, v{e}
    v_bfe_u32 v{p}, v{vL}, 3, 1
    v_lshl_add_u32 v{e}, v{p}, 2, v{e}
    s_lshl_b32 s3, s{sGrp}, 4
    v_add_u32 v{e}, s3, v{e}
    s_cmp_eq_u32 s{sGrp}, 0
    s_cselect_b32 s6, 0x10000, 0
    s_mov_b32 s7, s6
    v_mov_b32 v{p}, 288
    v_cndmask_b32 v{e}, v{e}, v{p}, s[6:7]
    s_or_b32 s6, s6, 0xffff
    s_mov_b32 s7, s6
    v_mov_b32 v{p}, 144
    v_cndmask_b32 v{p}, v{p}, 0, s[6:7]
    v_lshrrev_b32 v{co}, 5, v{vL}
    v_lshlrev_b32 v{co}, 3, v{co}
    s_lshl_b32 s3, s{sRot}, 6
    v_add_u32 v{co}, s3, v{co}
    v_mad_u32_u24 v{p}, v{e}, v{co}, v{p}
    s_mov_b32 s6, {(2**32 + 575)//576}
    s_mov_b32 s7, {f2u(1.0/576)}""")
    def cosv(dst, src):
        a(f"""v_mul_hi_u32 v{x1}, v{src}, s6
        v_mul_u32_u24 v{x1}, 576, v{x1}
        v_sub_u32 v{x1}, v{src}, v{x1}
        v_cvt_f32_u32 v{x1}, v{x1}
        v_mul_f32 v{x1}, s7, v{x1}
        v_cos_f32 v{dst}, v{x1}""")
    cosv(C, p); a(f"v_add_u32 v{p}, v{p}, v{e}"); cosv(C + 1, p)
    a(f"v_mul_u32_u24 v{co}, 15, v{e}\nv_add_u32 v{p}, v{p}, v{co}")
    cosv(C + 8, p); a(f"v_add_u32 v{p}, v{p}, v{e}"); cosv(C + 9, p)
    cosv(x0, e)
    a(f"v_lshlrev_b32 v{co}, 4, v{e}\nv_add_f32 v{x0}, v{x0}, v{x0}")
    cosv(co, co)
    for j in range(2, 8):
        for k in range(2): a(f"v_fma_f32 v{C+8*k+j}, v{x0}, v{C+8*k+j-1}, -v{C+8*k+j-2}")
    a(f"v_add_f32 v{co}, v{co}, v{co}\nv_lshlrev_b32 v{e}, 31, v{e}\nv_or_b32 v{e}, 1.0, v{e}\nv_xor_b32 v{x1}, 32, v{vX}")
    for k in range(18):
        c, o = C + 8*(k & 1), C + 8*(1 - (k & 1))
        for j in range(4): a(f"v_cvt_pk_bf16_f32 v{B[k]+j}, v{c+2*j}, v{c+2*j+1}")
        if k < 16:
            for j in range(8): a(f"v_fma_f32 v{c+j}, v{co}, v{o+j}, -v{c+j}")
    stamp(a, 3, "J")
    J1F = THR("jf", 3)
    if "w4wait" in EXP:
        a(f"s_cmp_lg_u32 s{sWave}, 4\ns_cbranch_scc1 f_j0\nv_mov_b32 v9, {F_DUTY}")
        lds_wait(a, "f_j00", 9, p, 1, sleep=1)
        a.label("f_j0")
    lds_wait(a, "f_j1", vF, p, J1F, sleep=1)
    stamp(a, 4, "J")
    where, issued, lg = {}, 0, []
    for k in range(36):
        while issued < 36 and free and len(lg) < 14:
            if issued == 12 and J1F < 6: a(f"ds_read_b32 v{p}, v{vF}"); lg.append("f")
            if issued == 18 and J1F < 6:
                if k < 15: break
                if "f" in lg:
                    i = lg.index("f"); a(f"s_waitcnt lgkmcnt({len(lg) - 1 - i})"); del lg[:i + 1]
                a(f"v_cmp_gt_i32 vcc, 6, v{p}\ns_cbranch_vccz f_j2_ok")
                lds_wait(a, "f_j2", vF, p, 6)
                a.label("f_j2_ok")
            where[issued] = free.pop(0)
            a(f"ds_read_b128 v[{where[issued]}:{where[issued]+3}], v{x1 if issued & 1 else vX} offset:{2048*(issued>>1)}")
            lg.append(issued); issued += 1
        if k in lg:
            i = lg.index(k); a(f"s_waitcnt lgkmcnt({len(lg) - 1 - i})"); del lg[:i + 1]
        H, b = (H2 if k >= 18 else H1), B[k % 18]
        a(f"v_mfma_f32_32x32x16_bf16 v[{H}:{H+15}], v[{where[k]}:{where[k]+3}], v[{b}:{b+3}], " + ("0" if k % 18 == 0 else f"v[{H}:{H+15}]"))
        free.append(where[k])
        if 18 <= k < 27: free.append(b)
        if k == 30: load_rf(a, J_R, vL, p, "f_rf1")
    stamp(a, 5, "J")
    a("s_nop 11")
    for r in range(16): a(f"v_fmac_f32 v{H1+r}, v{e}, v{H2+r}")
    for k in range(8): a(f"v_cvt_pk_bf16_f32 v{J_HB+k}, v{H1+2*k}, v{H1+2*k+1}")

def fnet_job2(a):
    GO, vN, sGrp = J_GO, J_N, J_sG
    T1, T2, Hb, R, H1 = 32, 64, J_HB, J_R, 80
    a("s_waitcnt vmcnt(0)")
    a(f"v_mfma_f32_32x32x16_bf16 v[{T1}:{T1+15}], v[{Hb}:{Hb+3}], v[{R}:{R+3}], 0")
    a(f"v_mfma_f32_32x32x16_bf16 v[{T2}:{T2+15}], v[{Hb}:{Hb+3}], v[{R+8}:{R+11}], 0")
    a(f"v_mfma_f32_32x32x16_bf16 v[{T1}:{T1+15}], v[{Hb+4}:{Hb+7}], v[{R+4}:{R+7}], v[{T1}:{T1+15}]")
    a(f"v_mfma_f32_32x32x16_bf16 v[{T2}:{T2+15}], v[{Hb+4}:{Hb+7}], v[{R+12}:{R+15}], v[{T2}:{T2+15}]")
    a(f"""s_cmp_eq_u32 s{sGrp}, 0
    s_cselect_b32 s6, -1, 0
    s_mov_b32 s7, 0
    s_nop 8
    v_cvt_pk_bf16_f32 v{vN}, v{T1+8}, v{T2+8}
    v_cndmask_b32 v{T1+8}, v{T1+8}, 0, s[6:7]
    v_cndmask_b32 v{T2+8}, v{T2+8}, 0, s[6:7]""")
    for kind, (op, x, y, order) in enumerate((("v_add_f32", T1, T2+8, 1), ("v_sub_f32", T2, T1+8, 1), ("v_sub_f32", T1, T2+8, -1), ("v_add_f32", T2, T1+8, -1))):
        for r in range(8): a(f"{op} v{H1+r}, v{x+r}, v{y+r}")
        for k in range(4):
            i0, i1 = (2*k, 2*k+1) if order > 0 else (7-2*k, 6-2*k)
            a(f"v_cvt_pk_bf16_f32 v{GO[kind]+k}, v{H1+i0}, v{H1+i1}")

hSm, hSx, hSg, hGr, hGs, hW2, hGa, hPr, hXc, hTa, hMt, hMk, hS2 = 100, 103, 106, 109, 110, 111, 112, 113, 114, 115, 116, 117, 118
hL16, hTr, hTw, hOx, hTg, hOo, hOw, hOr = 156, 157, 158, 159, 160, 161, 164, 165
OUTB = 56*1024
def helper_setup(a, t0, t1, t2, t3):
    for i in range(3):
        a(f"s_add_u32 s6, s{sWave}, {4*i}")
        dense_pos(a, 6, t1, t0, t2)
        a(f"""v_and_b32 v{t2}, 1, v{t1}
        v_bfe_u32 v{t3}, v{t1}, 1, 2
        v_and_b32 v{t1}, 56, v{t1}
        v_lshl_add_u32 v{t1}, v{t2}, 2, v{t1}
        v_add_u32 v{t1}, v{t1}, v{t3}
        s_movk_i32 s3, {GP}
        v_mad_u32_u24 v{hSg+i}, v{t1}, s3, v{t0}
        s_movk_i32 s3, 1152
        v_lshrrev_b32 v{t2}, 4, v{t1}
        v_lshl_add_u32 v{t2}, v{t2}, 1, v{t1}
        v_mad_u32_u24 v{hSm+i}, v{t2}, s3, v{t0}
        v_lshrrev_b32 v{t2}, 1, v{t1}
        v_lshl_add_u32 v{t2}, v{t2}, 4, v{t1}
        v_add_u32 v{t2}, 16, v{t2}
        v_mad_u32_u24 v{hSx+i}, v{t2}, s3, v{t0}
        v_add_u32 v{t1}, {64*i}, v{vL}
        v_mul_u32_u24 v{t2}, 7282, v{t1}
        v_lshrrev_b32 v{t2}, 16, v{t2}
        v_lshlrev_b32 v{t1}, 4, v{t1}
        s_mov_b32 s3, {73728-144}
        v_mad_u32_u24 v{hOo+i}, v{t2}, s3, v{t1}""")
    a(f"""v_lshlrev_b32 v{hL16}, 4, v{vL}
    v_lshrrev_b32 v{t2}, 3, v{vL}
    v_xor_b32 v{t3}, v{t2}, v{vL}
    v_and_b32 v{t3}, 7, v{t3}
    v_lshlrev_b32 v{t3}, 4, v{t3}
    v_lshl_add_u32 v{t3}, v{t2}, 7, v{t3}
    s_lshl_b32 s3, s{sWave}, 12
    s_add_u32 s3, s3, {GSC}
    v_add_u32 v{hGr}, s3, v{t3}
    v_and_b32 v{t1}, 7, v{vL}
    v_lshlrev_b32 v{hTg}, 3, v{t1}
    v_lshl_add_u32 v{hS2}, v{t2}, 7, v{hTg}
    v_mul_u32_u24 v{t2}, {128*GP}, v{t2}
    v_lshl_add_u32 v{hGs}, v{t1}, 4, v{t2}
    v_lshlrev_b32 v{t1}, 2, v{t1}
    v_add_u32 v{hPr}, {F_PRG}, v{t1}
    v_and_b32 v{t1}, 12, v{t1}
    v_add_u32 v{hXc}, {F_XC}, v{t1}
    v_add_u32 v{hTa}, {F_TA}, v{t1}
    s_lshl_b32 s3, s{sWave}, 2
    s_add_u32 s6, s3, {F_TA}
    v_mov_b32 v{hMt}, s6
    s_add_u32 s6, s3, {F_KV}
    v_mov_b32 v{hMk}, s6
    v_and_b32 v{t0}, 15, v{vL}
    v_lshrrev_b32 v{t2}, 4, v{vL}
    v_lshlrev_b32 v{t1}, 2, v{t0}
    v_lshl_add_u32 v{hOx}, v{t2}, 9, v{t1}
    s_lshl_b32 s3, s{sWave}, 6
    s_add_u32 s3, s3, {F_G}
    v_add_u32 v{hGa}, s3, v{t1}
    s_and_b32 s3, s{sWave}, 1
    s_lshl_b32 s3, s3, 22
    v_lshlrev_b32 v{t1}, 18, v{t0}
    v_lshl_add_u32 v{t1}, v{t2}, 4, v{t1}
    v_add_u32 v{hW2}, s3, v{t1}
    s_mul_i32 s3, s{sWave}, 2304
    s_add_u32 s3, s3, {OUTB}
    v_mul_u32_u24 v{t1}, 144, v{t0}
    v_lshl_add_u32 v{t1}, v{t2}, 3, v{t1}
    v_add_u32 v{hOw}, s3, v{t1}
    v_add_u32 v{hOr}, s3, v{hL16}
    v_bfe_u32 v{t3}, v{vL}, 2, 2
    v_lshl_add_u32 v{t2}, v{t2}, 2, v{t3}
    v_mul_u32_u24 v{t2}, 288, v{t2}
    v_and_b32 v{t3}, 3, v{vL}
    v_lshl_add_u32 v{hTr}, v{t3}, 3, v{t2}
    v_add_u32 v{hTw}, {LW}, v{hTr}""")

def gen():
    a = Asm()
    a.label("f_code")
    a("s_cmp_ge_u32 s2, 256\ns_cbranch_scc1 f_end")
    stamp(a, 0)
    a("s_load_dwordx2 s[52:53], s[0:1], 104\ns_load_dwordx16 s[16:31], s[0:1], 0\ns_load_dwordx8 s[32:39], s[0:1], 64")
    a(f"""v_lshrrev_b32 v2, 6, v0
    v_and_b32 v{vL}, 63, v0
    v_readfirstlane_b32 s{sWave}, v2
    s_bfe_u32 s3, s2, 0x20003
    s_lshr_b32 s{sRot}, s2, 6
    s_add_u32 s{sRot}, s{sRot}, s3
    s_and_b32 s{sRot}, s{sRot}, 3
    s_lshl_b32 s{sRot}, s{sRot}, 1
    {"s_bfe_u32 s6, s2, 0x10005" if "rot8" in EXP else ""}
    {"s_add_u32 s%d, s%d, s6" % (sRot, sRot) if "rot8" in EXP else ""}
    {"s_mov_b32 s%d, 0" % sRot if "norot" in EXP else ""}
    s_and_b32 s{sT1}, s2, 7
    s_lshl_b32 s3, s3, 3
    s_add_u32 s{sT1}, s{sT1}, s3
    s_lshr_b32 s{sJ}, s2, 5
    s_mov_b32 s{sHi}, 0
    {"s_waitcnt lgkmcnt(0)" if G0.STAMP and 0 else ""}
    s_mov_b32 s{sHi+1}, -1
    s_cmp_ge_u32 s{sWave}, 4
    s_cbranch_scc1 f_att
    s_setprio 3
    s_cmp_eq_u32 s{sWave}, 0
    s_cbranch_scc1 f_duty""")
    def common_srd():
        a("s_waitcnt lgkmcnt(0)")
        a(f"s_load_dwordx2 s[{sNon}:{sNon+1}], s[52:53], {EP}")
        srd(a, sWS, 52, WS_SIZE)
    def nonce():
        a(f"s_add_u32 s{sNon}, s{sNon}, 1")
    t0, t1, t2, t3 = 8, 9, 10, 11
    vF = 4
    vXs, vDs, vW = 2, 3, 12
    sG_, sXo, sDa, sDb, sDs, sM, sXp = 70, 71, 72, 73, 74, 75, 76
    a(f"s_sub_u32 s{sG_}, s{sWave}, 1")
    xsrc(a, vXs, t0, t1)
    a(f"""v_and_b32 v{t2}, 3, v{vL}
    v_mul_u32_u24 v{t1}, 36, v{t1}
    v_lshl_add_u32 v{vDs}, v{t2}, 4, v{t1}
    s_and_b32 s{sA}, s{sJ}, 1
    s_mul_i32 s{sM}, s{sA}, 36864
    s_lshl_b32 s{sA}, s{sA}, 5
    s_add_u32 s{sA}, s{sA}, s{sT1}
    s_mul_i32 s{sXo}, s{sA}, 1152
    s_cmp_lt_u32 s{sJ}, 4
    s_cselect_b32 s{sRB+2}, {576*36}, 0
    s_cselect_b32 s{sDa}, -1, 0
    s_mov_b32 s{sDb}, {F_DUMP}
    s_cmov_b32 s{sDb}, {LD}
    s_mov_b32 s{sRA+2}, {2048*1152}
    s_mov_b32 s{sRA+3}, 0x20000
    s_mov_b32 s{sRB+3}, 0x20000
    s_mov_b32 s{sB}, s{sG_}
    s_barrier
    s_cmp_lt_u32 s{sJ}, 2
    s_waitcnt lgkmcnt(0)
    s_cselect_b64 s[{sRB}:{sRB+1}], s[30:31], s[32:33]
    s_mov_b64 s[{sRA}:{sRA+1}], s[16:17]""")
    stamp(a, 1, "P")
    TD, TW = THR("td", 0), THR("tw", 0)
    def lround(th=""):
        a(f"""s_lshl_b32 s{sC}, s{sRot}, 1
        s_add_u32 s{sC}, s{sC}, s{sB}
        s_cmp_ge_u32 s{sC}, 18
        s_cselect_b32 s3, 18, 0
        s_sub_u32 s{sC}, s{sC}, s3
        s_lshl_b32 s{sD}, s{sB}, 11
        s_add_u32 m0, s{sD}, s{sM}
        s_lshl_b32 s3, s{sC}, 6
        s_add_u32 s3, s3, s{sXo}
        {th}
        buffer_load_dwordx4 v{vXs}, s[{sRA}:{sRA+3}], s3 offen lds
        s_add_u32 m0, m0, 1024
        s_add_u32 s3, s3, 1179648
        {th}
        buffer_load_dwordx4 v{vXs}, s[{sRA}:{sRA+3}], s3 offen lds
        s_and_b32 s3, s{sD}, s{sDa}
        s_add_u32 m0, s3, s{sDb}
        s_mul_i32 s3, s{sC}, 1152
        {th}
        buffer_load_dwordx4 v{vDs}, s[{sRB}:{sRB+3}], s3 offen lds
        s_add_u32 m0, m0, 448
        {th or "s_nop 0"}
        buffer_load_dwordx4 v{vDs}, s[{sRB}:{sRB+3}], s3 offen offset:576 lds
        s_add_u32 s{sB}, s{sB}, 3""")
    a.label("f_lL")
    lround()
    NR0 = 3 if not TD else max(1, TD // 4)
    a(f"s_cmp_lt_u32 s{sB}, {3*NR0}\ns_cbranch_scc1 f_lL")
    stamp(a, 5, "P")
    a(f"s_load_dwordx2 s[{sNon}:{sNon+1}], s[52:53], {EP}")
    srd(a, sWS, 52, WS_SIZE); srd(a, sRD, 28, 576*1152)
    for i in range(3):
        a(f"s_mul_i32 s{sC}, s{sG_}, 3\ns_add_u32 s{sC}, s{sC}, {i}")
        dense_pos(a, sC, t1, t0, t2)
        a(f"""v_and_b32 v{t2}, 3, v{t1}
        v_bfe_u32 v{t3}, v{t1}, 2, 2
        v_and_b32 v{t1}, 48, v{t1}
        v_lshl_add_u32 v{t1}, v{t2}, 2, v{t1}
        v_add_u32 v{t1}, v{t1}, v{t3}
        s_movk_i32 s3, 1152
        v_mad_u32_u24 v{vW+i}, v{t1}, s3, v{t0}""")
    sM2 = 77
    a(f"""s_lshl_b32 s3, s{sG_}, 2
    s_add_u32 s3, s3, {F_LD}
    v_mov_b32 v{vF}, s3
    v_mov_b32 v6, 1
    v_mov_b32 v5, {F_DUTY}
    s_mul_i32 s{sE}, s{sJ}, 144
    s_mul_i32 s{sF}, s{sG_}, 3072
    s_and_b32 s{sA}, s{sJ}, 1
    s_xor_b32 s{sA}, s{sA}, 1
    s_mul_i32 s{sM2}, s{sA}, 36864
    s_lshl_b32 s3, s{sG_}, 10
    s_add_u32 s{sM2}, s{sM2}, s3
    s_lshl_b32 s{sA}, s{sA}, 5
    s_add_u32 s{sA}, s{sA}, s{sT1}
    s_mul_i32 s{sXp}, s{sA}, 1152
    s_mul_i32 s3, s{sG_}, 1179648
    s_add_u32 s{sXp}, s{sXp}, s3""")
    a(f"s_cmp_lg_u32 s{sWave}, 3\ns_cbranch_scc1 f_lM")
    srd(a, sRC, 36, 1152)
    for i in range(2):
        a(f"""s_lshl_b32 s3, s{sRot}, 7
        s_add_u32 s3, s3, {1024*i}
        v_lshlrev_b32 v{t1}, 4, v{vL}
        v_add_u32 v{t1}, s3, v{t1}
        v_subrev_u32 v{t2}, 1152, v{t1}
        v_min_u32 v{t1}, v{t1}, v{t2}
        s_mov_b32 m0, {LGATE + 1024*i}
        s_nop 0""")
        a(f"buffer_load_dwordx4 v{t1}, s[{sRC}:{sRC+3}], 0 offen lds")
    a.label("f_lM")
    if not TD:
        a(f"s_waitcnt vmcnt(8)\nds_write_b32 v{vF}, v6\nv_add_u32 v6, 1, v6")
        lround()
    else:
        lround(f"s_waitcnt vmcnt({TD-1})")
        a(f"s_waitcnt vmcnt({4*NR0})\nds_write_b32 v{vF}, v6\nv_add_u32 v6, 1, v6")
    a(f"s_cmp_lt_u32 s{sB}, 18\ns_cbranch_scc1 f_lM")
    for r in range(6 - NR0, 6): a.vm_note(f"d{r}", 4)
    stamp(a, 2, "P")
    def ldflag(tag, val):
        a(f"v_mov_b32 v{t1}, {val}")
        if tag in a.vm: a.vm_wait(tag)
        a(f"ds_write_b32 v{vF}, v{t1}")
        if val in (4, 5, 6, 7): stamp(a, val - 2, "D")
    def thr():
        if TW and len(a.vm) >= TW:
            a(f"s_waitcnt vmcnt({TW-1})"); a.vm = a.vm[len(a.vm) - (TW-1):]
            done = [t for t in pend if t not in a.vm]
            if done:
                ldflag(done[-1], val_of(done[-1]))
                for t in done: pend.remove(t)
    pend = []
    val_of = lambda t: int(t[1:]) + (1 if t[0] == "d" else QF)
    def chunk(c, withx):
        base = LW + 9216*c if c < 5 else LD + 9216*(c-5)
        a(f"""s_add_u32 s{sC}, s{sRot}, {c}
        s_cmp_ge_u32 s{sC}, 9
        s_cselect_b32 s3, 9, 0
        s_sub_u32 s{sC}, s{sC}, s3""")
        if withx and "nox" not in EXP:
            a(f"s_add_u32 m0, s{sM2}, {4096*c}\ns_lshl_b32 s3, s{sC}, 7\ns_add_u32 s3, s3, s{sXp}")
            thr()
            a.vmem(f"buffer_load_dwordx4 v{vXs}, s[{sRA}:{sRA+3}], s3 offen lds", f"c{c}")
            a("s_add_u32 m0, m0, 1984\ns_nop 0")
            thr()
            a.vmem(f"buffer_load_dwordx4 v{vXs}, s[{sRA}:{sRA+3}], s3 offen offset:64 lds", f"c{c}")
        a(f"s_add_u32 m0, s{sF}, {base}\ns_mul_i32 s3, s{sC}, 73728\ns_add_u32 s3, s3, s{sE}")
        for i in range(3):
            if i: a("s_add_u32 m0, m0, 1024\ns_nop 0")
            thr()
            a.vmem(f"buffer_load_dwordx4 v{vW+i}, s[{sRD}:{sRD+3}], s3 offen lds", f"c{c}")
    def chunks(withx, lab):
        if TW:
            pend[:] = [f"d{r}" for r in range(6 - NR0, 6)]
            for c in range(9):
                if c == 5: lds_wait(a, lab, 5, t1, 1)
                chunk(c, withx)
                pend.append(f"c{c}")
            stamp(a, 3, "P")
            for t in list(pend): ldflag(t, val_of(t))
            stamp(a, 4, "P")
            return
        if "d3" in a.vm: ldflag("d3", 4)
        if "pz" in EXP:
            ldflag("d4", 5); ldflag("d5", 6)
            lds_wait(a, lab + "z", 5, t1, THR("pz", 2) if False else (1 if "pz1" in EXP else 2), sleep=1)
        chunk(0, withx)
        if "pz" not in EXP: ldflag("d4", 5); ldflag("d5", 6)
        chunk(1, withx)
        D = 2 if "deep" in EXP else 1
        if D == 1: ldflag("c0", QF)
        for c in range(2, 9):
            if c == 5 and not THR("pc", 0): lds_wait(a, lab, 5, t1, 1)
            if c == THR("pc", 0): lds_wait(a, lab, 5, t1, 2, sleep=1)
            chunk(c, withx)
            if c >= D: ldflag(f"c{c-D}", QF + c - D)
        stamp(a, 3, "P")
        for c in range(9 - D, 9): ldflag(f"c{c}", QF + c)
        stamp(a, 4, "P")
        if "only" in EXP:
            G0.stamp_end(a, 0, sWS, sWave); a("s_endpgm")
    vml = list(a.vm)
    a(f"s_cmp_eq_u32 s{sWave}, 3\ns_cbranch_scc1 f_l3")
    chunks(True, "f_l1w")
    a("s_branch f_l4")
    a.label("f_l3")
    a.vm = list(vml)
    chunks(False, "f_l3w")
    FR = 32
    a.label("f_l4")
    a(f"v_lshlrev_b32 v{hL16}, 4, v{vL}\ns_lshl_b32 s3, s{sWave}, 2\ns_add_u32 s3, s3, {F_KV}\nv_mov_b32 v{hMk}, s3")
    one, val = 6, 7
    def kv_first(lab):
        a.vm = []
        a(f"""v_and_b32 v{t1}, 15, v{vL}
        v_min_u32 v{t1}, 8, v{t1}
        v_lshlrev_b32 v{t1}, 2, v{t1}
        v_add_u32 v{t1}, {F_PRG}, v{t1}
        s_mul_i32 s{sA}, s{sT1}, {2*TILE}
        s_lshl_b32 s{sB}, s{sWave}, 12
        s_add_u32 m0, s{sB}, {LW}
        s_add_u32 s{sA}, s{sA}, s{sB}
        s_add_u32 s{sA}, s{sA}, {KVG}
        v_mov_b32 v{one}, 1
        v_mov_b32 v{vF}, {F_S1}""")
        stamp(a, 1, "K")
        lds_wait(a, lab, t1, t2, 1)
        stamp(a, 2, "K")
        for k in range(4): a(f"buffer_load_dwordx4 v{hL16}, s[{sWS}:{sWS+3}], s{sA} offen offset:{1024*k} {'' if 'k0plain' in EXP else 'sc1'} lds")
    kv_first("f_kv2")
    nonce()
    if "su0" not in EXP: helper_setup(a, t0, t1, t2, t3)
    a(f"s_waitcnt vmcnt(0)\nds_write_b32 v{hMk}, v{one}")
    if "su0" in EXP: helper_setup(a, t0, t1, t2, t3)
    a("s_branch f_h1")

    a.label("f_duty")
    a.vm = []
    vR0, vR1, vD0, vD1 = 2, 3, 6, 7
    ACC, R = 16, 80
    sRb, sGrp = 70, 76
    a(f"""v_lshlrev_b32 v{t0}, 2, v{vL}
    v_add_u32 v{t0}, {FLG}, v{t0}
    s_cmp_ge_u32 s{sJ}, 4
    s_cselect_b32 s6, {1 << ((F_DUTY - FLG)//4)}, 0
    s_mov_b32 s7, {1 << ((F_BIG - FLG)//4 - 32)}
    v_cndmask_b32 v{t1}, 0, 2, s[6:7]
    ds_write_b32 v{t0}, v{t1}""")
    xread(a, vR0, vR1, t2, t3)
    common_srd()
    a("s_barrier")
    a(f"""s_and_b32 s{sA}, s{sJ}, 1
    s_lshl_b32 s{sRb}, s{sA}, 5
    s_add_u32 s{sRb}, s{sRb}, s{sT1}
    s_mul_i32 s{sA}, s{sA}, 36864
    v_add_u32 v{vR0}, s{sA}, v{vR0}
    v_xor_b32 v{vR1}, 32, v{vR0}
    v_and_b32 v{vF}, 3, v{vL}
    v_min_u32 v{vF}, 2, v{vF}
    v_lshlrev_b32 v{vF}, 2, v{vF}
    v_add_u32 v{vF}, {F_LD}, v{vF}
    s_cmp_ge_u32 s{sJ}, 4
    s_cbranch_scc1 f_cF
    v_and_b32 v{t2}, 3, v{vL}
    v_and_b32 v{t0}, 1, v{vL}
    v_bfe_u32 v{t3}, v{vL}, 1, 1
    v_lshl_or_b32 v{t0}, v{t0}, 1, v{t3}
    v_bfe_u32 v{t3}, v{vL}, 4, 1
    v_cmp_eq_u32 vcc, 0, v{t3}
    v_bfe_u32 v{vD0}, v{vL}, 2, 2
    v_lshrrev_b32 v{vD1}, 5, v{vL}
    v_cndmask_b32 v{t0}, v{t2}, v{t0}, vcc
    v_lshl_add_u32 v{vD0}, v{vD1}, 3, v{vD0}
    v_lshlrev_b32 v{vD0}, 6, v{vD0}
    v_lshl_add_u32 v{vD0}, v{t3}, 5, v{vD0}
    v_lshl_add_u32 v{vD0}, v{t0}, 3, v{vD0}
    v_add_u32 v{vD0}, {LD}, v{vD0}
    s_cmp_ge_u32 s{sJ}, 2
    s_cbranch_scc1 f_cV""")
    def duty_chain(kind, ACC=ACC, vR0=vR0, vR1=vR1, vD0=vD0):
        lg = []
        def rd(txt, tag): a(txt); lg.append(tag)
        def wait(tag):
            i = max(k for k, t in enumerate(lg) if t == tag)
            a(f"s_waitcnt lgkmcnt({len(lg) - 1 - i})"); del lg[:i + 1]
        def reads(s):
            b = FR + 16*(s % 3)
            for p in range(2):
                rd(f"ds_read_b128 v[{b+8*p}:{b+8*p+3}], v{vR1 if p else vR0} offset:{2048*s}", (s, p))
                if kind == "F": rd(f"ds_read_b128 v[{b+8*p+4}:{b+8*p+7}], v{vD1 if p else vD0} offset:{2048*s}", (s, p))
                elif kind == "G": rd(f"ds_read_b128 v[{b+8*p+4}:{b+8*p+7}], v{vD0} offset:{64*s+32*p}", (s, p))
                else:
                    rd(f"ds_read_b64_tr_b16 v[{b+8*p+4}:{b+8*p+5}], v{vD0} offset:{2048*s+1024*p}", (s, p))
                    rd(f"ds_read_b64_tr_b16 v[{b+8*p+6}:{b+8*p+7}], v{vD0} offset:{2048*s+1024*p+256}", (s, p))
        if kind != "G":
            ST = {0: [1, 2, 3, 4, 5, 6], 2: [3, 3, 3, 6, 6, 6], 3: [2, 2, 4, 4, 6, 6], 1: [6]*6}[THR("ds", 3)]
            lds_wait(a, f"f_d{kind}0", vF, t0, ST[0])
            stamp(a, 1, "P"); stamp(a, 1, "D")
        reads(0)
        if kind != "G" and ST[1] > ST[0]: rd(f"ds_read_b32 v{t0}, v{vF}", "f")
        reads(1)
        for s in range(18):
            if kind != "G" and s % 3 == 1 and s < 15 and ST[s//3 + 1] > ST[s//3]:
                if "f" in lg: wait("f")
                a(f"v_cmp_gt_i32 vcc, {ST[s//3 + 1]}, v{t0}\ns_cbranch_vccz f_d{kind}{s}_ok")
                lds_wait(a, f"f_d{kind}{s}", vF, t0, ST[s//3 + 1])
                a.label(f"f_d{kind}{s}_ok")
                if s//3 in (0, 2, 3, 4): stamp(a, {0: 2, 2: 3, 3: 4, 4: 5}[s//3], "D")
            b = FR + 16*(s % 3)
            for p in range(2):
                if (s, p) in lg: wait((s, p))
                if p == 1:
                    if kind != "G" and s % 3 == 0 and 0 < s < 15 and ST[s//3 + 1] > ST[s//3]: rd(f"ds_read_b32 v{t0}, v{vF}", "f")
                    if s + 2 < 18: reads(s + 2)
                    assert len(lg) <= 15
                X, D = b + 8*p, b + 8*p + 4
                A, B = (D, X) if kind in "KG" else (X, D)
                a(f"v_mfma_f32_32x32x16_bf16 v[{ACC}:{ACC+15}], v[{A}:{A+3}], v[{B}:{B+3}], " + ("0" if s + p == 0 else f"v[{ACC}:{ACC+15}]"))
        if kind != "G":
            a(f"v_mov_b32 v{t0}, {F_DUTY}\nv_mov_b32 v{t1}, 1\nds_write_b32 v{t0}, v{t1}")
            nonce()
            stamp(a, 2); stamp(a, 2, "P"); stamp(a, 6, "D")
    def kv_off():
        a(f"""s_and_b32 s{sA}, s{sJ}, 1
        s_lshl_b32 s{sB}, s{sT1}, 1
        s_add_u32 s{sA}, s{sA}, s{sB}
        s_mul_i32 s{sF}, s{sA}, {TILE}
        s_add_u32 s{sF}, s{sF}, {KVG}
        s_add_u32 s{sE}, s{sF}, {64*TILE}""")
    kv_off()
    a(f"""v_lshlrev_b32 v14, 4, v{vL}
    v_lshlrev_b32 v15, 2, v{vL}
    v_and_b32 v13, 124, v15
    v_lshrrev_b32 v12, 5, v{vL}
    v_lshl_add_u32 v13, v12, 13, v13
    s_lshl_b32 s{sA}, s{sA}, 7
    s_add_u32 s{sA}, s{sA}, {KMG}""")
    duty_chain("K")
    a("s_nop 7")
    for k in range(5): a(f"v_cvt_pk_bf16_f32 v{FR+k}, v{ACC+2*k}, v{ACC+2*k+1}")
    for s in ((sF,) if 'nodup' in EXP else (sF, sE)): a(f"buffer_store_dwordx4 v[{FR}:{FR+3}], v14, s[{sWS}:{sWS+3}], s{s} offen sc1")
    a(f"v_mul_f32 v{t3}, v{ACC}, v{ACC}")
    for r in range(1, 8): a(f"v_fmac_f32 v{t3}, v{ACC+r}, v{ACC+r}")
    a("s_mov_b32 exec_hi, 0")
    for s in ((sF,) if 'nodup' in EXP else (sF, sE)): a(f"buffer_store_dword v{FR+4}, v15, s[{sWS}:{sWS+3}], s{s} offen offset:1024 sc1")
    a(f"""v_fmac_f32 v{t3}, v{ACC+8}, v{ACC+8}
    v_fmac_f32 v{t3}, v{ACC+9}, v{ACC+9}
    s_mov_b64 exec, -1
    v_mov_b32 v{t0}, v{t3}
    s_nop 1
    v_permlane32_swap_b32 v{t0}, v{t3}
    v_add_f32 v{t3}, v{t0}, v{t3}""")
    a(f"buffer_store_dword v{t3}, v13, s[{sWS}:{sWS+3}], s{sA} offen sc1\ns_branch f_dP")
    a.label("f_cV")
    kv_off()
    a(f"""v_and_b32 v{t0}, 31, v{vL}
    v_lshrrev_b32 v{t2}, 5, v{vL}
    v_mul_u32_u24 v14, 19, v{t2}
    v_add_u32 v14, v14, v{t0}
    v_add_u32 v{t2}, 38, v{t2}
    v_cmp_eq_u32 vcc, 19, v{t0}
    v_mov_b32 v{t3}, 0x3f803f80
    s_nop 0
    v_cndmask_b32 v14, v14, v{t2}, vcc
    v_cndmask_b32 v80, v{t3}, 0, vcc
    v_lshlrev_b32 v14, 4, v14""")
    for k in range(1, 8): a(f"v_mov_b32 v{80+k}, v80")
    duty_chain("V")
    a("s_mov_b32 exec_lo, 0x3ffff\ns_mov_b32 exec_hi, 0x3ffff\ns_nop 5")
    for k in range(8): a(f"v_cvt_pk_bf16_f32 v{80+k}, v{ACC+2*k}, v{ACC+2*k+1}")
    a("s_mov_b32 exec_lo, 0xfffff\ns_mov_b32 exec_hi, 0xfffff")
    for s in (sF, sE):
        for u in range(2): a(f"buffer_store_dwordx4 v[{80+4*u}:{83+4*u}], v14, s[{sWS}:{sWS+3}], s{s} offen offset:{1152+VB*u} sc1")
    a("s_mov_b64 exec, -1")
    a.label("f_dP")
    stamp(a, 3, "P")
    a("s_waitcnt vmcnt(0)")
    tag_signal(a, FL1, 8, t0, t2, True)
    if "fl0" in EXP:
        a(f"s_add_u32 s{sG}, s{sG}, {(FL0 - FL1) & 0xffffffff}\ns_mov_b64 exec, 255\nbuffer_store_dwordx2 v[{t2}:{t2+1}], v{t0}, s[{sWS}:{sWS+3}], s{sG} offen sc1\ns_mov_b64 exec, -1")
    if THR("pc", 0) or "pz" in EXP: a(f"v_mov_b32 v{t0}, {F_DUTY}\nv_mov_b32 v{t1}, 2\nds_write_b32 v{t0}, v{t1}")
    stamp(a, 3); stamp(a, 4, "P")
    a("s_branch f_dS")
    a.label("f_cF")
    a(f"s_bfe_u32 s{sGrp}, s{sJ}, 0x10001\ns_add_u32 s{sGrp}, s{sGrp}, 16\ns_waitcnt lgkmcnt(0)")
    nonce()
    lds_wait(a, "f_cF1", vF, t0, QF + 1, sleep=4)
    a.label("f_dS")
    helper_setup(a, t0, t1, t2, t3)
    a(f"""v_bfe_u32 v{t1}, v{vL}, 2, 2
    v_add_u32 v{t1}, s{sT1}, v{t1}
    v_and_b32 v{t1}, 31, v{t1}
    v_lshlrev_b32 v{t1}, 7, v{t1}
    v_and_b32 v{t2}, 3, v{vL}
    v_lshl_add_u32 v{t1}, v{t2}, 3, v{t1}
    s_and_b32 s{sD}, s{sT1}, 7
    s_lshl_b32 s{sD}, s{sD}, 12
    s_add_u32 s{sD}, s{sD}, {FL1}""")
    tag_wait(a, "f_m2", t1, sD, 1, FR, sleep=1, lanes=16 if 'noat' not in EXP else 0)
    vKM = 40
    a(f"""v_mov_b32 v{t1}, {F_S1F}
    v_mov_b32 v{t2}, 1
    ds_write_b32 v{t1}, v{t2}
    s_lshl_b32 s3, s{sT1}, 8
    s_add_u32 s3, s3, {KMG}
    buffer_load_dwordx4 v[{vKM}:{vKM+3}], v{hL16}, s[{sWS}:{sWS+3}], s3 offen sc1
    v_lshrrev_b32 v14, 2, v{vL}
    v_lshlrev_b32 v14, 7, v14
    v_and_b32 v{t2}, 3, v{vL}
    v_lshl_add_u32 v14, v{t2}, 3, v14
""")
    if "fl0" in EXP: a(f"s_add_u32 s{sD}, s{sD}, {(FL0 - FL1) & 0xffffffff}")
    def look():
        a(f"""buffer_load_dwordx2 v[{FR}:{FR+1}], v14, s[{sWS}:{sWS+3}], s{sD} offen sc1
        buffer_load_dwordx2 v[{FR+2}:{FR+3}], v14, s[{sWS}:{sWS+3}], s{sD} offen offset:2048 sc1""")
    if "fl0" in EXP: look()
    stamp(a, 5, "P")
    kv_first("f_kv1")
    a(f"s_waitcnt vmcnt(4)\nv_max3_f32 v{vKM}, v{vKM}, v{vKM+1}, v{vKM+2}\nv_max_f32 v{vKM}, v{vKM}, v{vKM+3}")
    wave_max(a, vKM, sC)
    a(f"""v_sqrt_f32 v{t3}, s{sC}
    v_mov_b32 v{t2}, {f2u(OFFS)}
    v_mov_b32 v{t1}, {F_KC}
    v_cvt_pk_bf16_f32 v{t3}, -v{t3}, v{t2}
    ds_write_b32 v{t1}, v{t3}
    v_cmp_ne_u64 vcc, s[{sNon}:{sNon+1}], v[{FR}:{FR+1}]
    v_cmp_ne_u64 s[6:7], s[{sNon}:{sNon+1}], v[{FR+2}:{FR+3}]
    s_waitcnt vmcnt(0)
    ds_write_b32 v{hMk}, v{one}
    s_or_b64 vcc, vcc, s[6:7]
    {"s_cbranch_vccz f_m4" if "fl0" in EXP else ""}""")
    tag_wait(a, "f_m3", 14, sD, 2, FR, step=2048)
    a.label("f_m4")
    a(f"ds_write_b32 v{vF}, v{one}")
    a.label("f_h1")
    stamp(a, 6, "P"); stamp(a, 4); stamp(a, 3, "K")
    lds_wait(a, "f_h2", vF, t1, 1, sleep=1)
    lds_wait(a, "f_h2a", hPr, t1, 2, sleep=1)
    stamp(a, 1, "H"); stamp(a, 4, "K")
    due = {}
    def grp(src, dst, tag, TK=THR("tk", 3)):
        a(f"s_add_u32 m0, s{sB}, {dst}\ns_add_u32 s3, s{sA}, {src}")
        for k in range(4):
            if len(a.vm) >= TK:
                a(f"s_waitcnt vmcnt({TK-1})"); a.vm = a.vm[len(a.vm) - (TK-1):]
                for t in [t for t in due if t not in a.vm]: a(f"v_mov_b32 v{val}, {due.pop(t)}\nds_write_b32 v{hMk}, v{val}")
            a.vmem(f"buffer_load_dwordx4 v{hL16}, s[{sWS}:{sWS+3}], s3 offen offset:{1024*k} sc1 lds", tag)
    P2 = J1*TILE
    grp(16384, LW + 16384, "c1", THR("tc", 4)); due["c1"] = 2
    grp(32768, LW + 32768, "c2"); grp(P2, 0, "p0"); due["p0"] = 3
    grp(P2 + 16384, 16384, "p1"); grp(P2 + 32768, 32768, "p2")
    assert not due
    for i in (3, 4): grp(P2 + 16384*i, 16384*i, f"p{i}")
    sS2, sT = 71, 72
    a(f"""s_and_b32 s{sS2}, s{sJ}, 1
    s_lshl_b32 s{sS2}, s{sS2}, 5
    s_add_u32 s{sS2}, s{sS2}, s{sT1}
    s_mul_i32 s{sS2}, s{sS2}, {GP}
    s_add_u32 s{sS2}, s{sS2}, {GT}
    s_lshr_b32 s{sT}, s{sJ}, 1
    s_lshl_b32 s{sT}, s{sT}, 7
    s_sub_u32 s3, {GU + 448}, s{sT}
    s_cmp_lt_u32 s{sWave}, 2
    s_cselect_b32 s{sT}, s{sT}, s3
    s_add_u32 s{sT}, s{sT}, s{sS2}
    s_bitcmp1_b32 s{sWave}, 0
    s_cselect_b32 s3, {64*GP}, 0
    s_add_u32 s{sT}, s{sT}, s3""")
    if "nojob" not in EXP: lds_wait(a, "f_x3", hXc, t1, 1, sleep=2)
    for i in range(4): a(f"ds_read_b128 v[{32+4*i}:{35+4*i}], v{hGr} offset:{1024*i}")
    GOF = [48, 52, 56, 60]
    a(f"s_cmp_ge_u32 s{sJ}, 4\ns_cselect_b32 s3, s{sWave}, 1\ns_cmp_lg_u32 s3, 0\ns_cbranch_scc1 f_x6\nv_mov_b32 v{t2}, {F_XC + 20}")
    if "nojob" not in EXP: lds_wait(a, "f_x5", t2, t1, 1, sleep=2)
    a(f"v_add_u32 v{t2}, {GSC + 16384}, v{hL16}")
    for kind in range(4): a(f"ds_read_b128 v[{GOF[kind]}:{GOF[kind]+3}], v{t2} offset:{1024*kind}")
    a.label("f_x6")
    a(f"s_waitcnt lgkmcnt(0)\nds_write_b32 v{hMt}, v{one}")
    lds_wait(a, "f_x4", hTa, t1, 1, sleep=1)
    grp(P2 + 16384*5, 16384*5, "p5")
    a(f"s_cmp_ge_u32 s{sWave}, 3\ns_cbranch_scc1 f_h3")
    grp(P2 + 16384*6, 16384*6, "p6")
    a.label("f_h3")
    a(f"v_mov_b32 v{val}, 4\ns_waitcnt vmcnt(0)\nds_write_b32 v{hMk}, v{val}")
    a.vm = []
    stamp(a, 2, "H")
    for i in range(4):
        a(f"buffer_store_dwordx4 v[{32+4*i}:{35+4*i}], v{hGs}, s[{sWS}:{sWS+3}], s{sT} offen sc1")
        if i < 3: a(f"s_add_u32 s{sT}, s{sT}, {8*128*GP}")
    a(f"""s_cmp_lg_u32 s{sWave}, 0
    s_cbranch_scc1 f_h3b
    s_lshr_b32 s3, s{sJ}, 1
    s_cmp_lg_u32 s3, {THR("gj", 0)//2}
    s_cbranch_scc1 f_h3c
    v_lshlrev_b32 v{t3}, 2, v{vL}
    v_add_u32 v13, {F_G2}, v{t3}
    ds_read_b32 v13, v13
    s_lshl_b32 s{sF}, s{sRb}, 7
    s_add_u32 s{sF}, s{sF}, {GG}
    s_mov_b32 exec_hi, 0
    s_waitcnt lgkmcnt(0)
    buffer_store_dword v13, v{t3}, s[{sWS}:{sWS+3}], s{sF} offen sc1
    s_mov_b32 exec_hi, -1""")
    a.label("f_h3c")
    a(f"""v_and_b32 v{t1}, 31, v{vL}
    v_mul_u32_u24 v{t2}, {128*GP}, v{t1}
    s_cmp_ge_u32 s{sJ}, 4
    s_cbranch_scc1 f_h3a
    s_cmp_ge_u32 s{sJ}, 2
    s_cbranch_scc1 f_h3b
    v_lshlrev_b32 v{t1}, 2, v{t1}
    v_add_u32 v{t1}, {F_N}, v{t1}
    ds_read_b32 v{t1}, v{t1}
    s_add_u32 s3, s{sS2}, {64*GP}
    s_mov_b32 exec_hi, 0
    s_waitcnt lgkmcnt(0)
    buffer_store_short v{t1}, v{t2}, s[{sWS}:{sWS+3}], s{sS2} offen offset:{GU-2} sc1
    buffer_store_short_d16_hi v{t1}, v{t2}, s[{sWS}:{sWS+3}], s3 offen offset:{GU-2} sc1
    s_mov_b32 exec_hi, -1
    s_branch f_h3b""")
    a.label("f_h3a")
    a(f"""v_lshrrev_b32 v{t3}, 5, v{vL}
    v_lshlrev_b32 v{t3}, 4, v{t3}
    v_sub_u32 v{t1}, v{t2}, v{t3}
    v_add_u32 v{t2}, v{t2}, v{t3}
    v_add_u32 v{t1}, 16, v{t1}
    s_lshl_b32 s3, s{sGrp}, 5
    s_add_u32 s{sT}, s{sS2}, s3
    s_sub_u32 s{sT+1}, s{sS2}, s3
    s_add_u32 s{sT+1}, s{sT+1}, {GU + 560 - 16}""")
    for kind in range(4):
        if kind & 1: a(f"s_add_u32 s{sT + (kind >> 1)}, s{sT + (kind >> 1)}, {64*GP}")
        a(f"buffer_store_dwordx4 v[{GOF[kind]}:{GOF[kind]+3}], v{t1 if kind >> 1 else t2}, s[{sWS}:{sWS+3}], s{sT + (kind >> 1)} offen sc1")
    a.label("f_h3b")
    last_wave_signals(a, "f_h5", F_CNT2, 4, FL2, 8, t1, t2)
    stamp(a, 6)
    vG = 15
    ACC, W2, OB, AR = 16, 36, 52, 124
    sRb, sCol = 70, 71
    srd(a, sRA, 34, 576*1152); srd(a, sRB, 18, 2048*4096); srd(a, sRC, 20, 2048*4096); srd(a, sRD, 38, 2048*1152)
    a(f"""s_lshr_b32 s3, s2, 3
    s_lshl_b32 s3, s3, 2
    s_add_u32 s3, s3, s{sWave}
    s_mul_i32 s3, s3, {41*128}
    v_lshlrev_b32 v{t1}, 3, v{hL16}
    s_mov_b32 exec_hi, 0x1ff
    buffer_load_dword v14, v{t1}, s[{sRA}:{sRA+3}], s3 offen
    s_mov_b32 exec_hi, -1
    s_lshr_b32 s{sRb}, s{sWave}, 1
    s_lshl_b32 s{sRb}, s{sRb}, 5
    s_add_u32 s{sRb}, s{sRb}, s{sT1}
    s_mul_i32 s{sCol}, s{sJ}, 144
    s_lshl_b32 s{sC}, s{sWave}, 10
    s_lshl_b32 s{sA}, s{sRb}, 12""")
    for k in range(4):
        r = sRB if k < 2 else sRC
        a(f"buffer_load_dwordx4 v[{W2+4*k}:{W2+4*k+3}], v{hW2}, s[{r}:{r+3}], s{sA} offen offset:{64*(k&1)}")
    nds = [0]
    def dstep(dst, r, vS, sc=""):
        nds[0] += 1
        for i in range(3):
            if i == 2: a(f"s_cmp_lg_u32 s{sWave}, 0\ns_cbranch_scc1 f_ds{nds[0]}")
            a(f"s_add_u32 m0, s{sC}, {dst + 4096*i}\n" + (f"s_waitcnt vmcnt({THR('tt', 3) - 1})" if THR("tt", 3) else "s_nop 0"))
            a(f"buffer_load_dwordx4 v{vS+i}, s[{r}:{r+3}], s{sB} offen {sc} lds")
        a.label(f"f_ds{nds[0]}")
    def dsaddr(m): return LW + 9216*m if m < 5 else 9216*(m - 5)
    def wo_step(m):
        a(f"s_add_u32 s{sB}, s{sJ}, {m}\ns_and_b32 s{sB}, s{sB}, 7\ns_mul_i32 s{sB}, s{sB}, {72*1152}\ns_add_u32 s{sB}, s{sB}, s{sCol}")
        dstep(dsaddr(m), sRA, hSm)
    lds_wait(a, "f_t1", hPr, t1, 3, sleep=32)
    for m in range(5): wo_step(m)
    lds_wait(a, "f_t3", hPr, t1, 4, sleep=32)
    for m in range(5, 8): wo_step(m)
    a(f"""v_mov_b32 v{vF}, {F_S2}
    s_cmp_lg_u32 s{sWave}, 3
    s_cbranch_scc1 f_t6_x
    s_and_b32 s{sD}, s{sT1}, 7
    s_lshl_b32 s{sD}, s{sD}, 12
    s_add_u32 s{sD}, s{sD}, {FL2}""")
    tag_wait(a, "f_t6", hS2, sD, 4, OB, sleep=8)
    a(f"""v_and_b32 v{t1}, 31, v{vL}
    v_lshrrev_b32 v{t2}, 5, v{vL}
    v_lshlrev_b32 v{t1}, 2, v{t1}
    v_lshl_add_u32 v{t1}, v{t2}, 12, v{t1}
    s_lshl_b32 s3, s{sT1}, 7
    s_add_u32 s3, s3, {GG}
    buffer_load_dword v{t2}, v{t1}, s[{sWS}:{sWS+3}], s3 offen sc1
    v_lshrrev_b32 v{t1}, 2, v{hL16}
    v_add_u32 v{t1}, {F_G}, v{t1}
    s_waitcnt vmcnt(0)
    ds_write_b32 v{t1}, v{t2}
    ds_write_b32 v{vF}, v{one}
    s_cmp_lg_u32 s2, 0
    s_cbranch_scc1 f_t6_x
    v_mov_b32 v{t1}, {EP}
    v_mov_b32 v{t2}, s{sNon}
    v_mov_b32 v{t3}, s{sNon+1}
    s_mov_b64 exec, 1
    buffer_store_dwordx2 v[{t2}:{t3}], v{t1}, s[{sWS}:{sWS+3}], 0 offen
    s_mov_b64 exec, -1""")
    a.label("f_t6_x")
    stamp(a, 5, "H")
    lds_wait(a, "f_t7", hPr, t1, 5, sleep=16)
    a(f"s_mov_b32 s{sB}, s{sCol}")
    dstep(dsaddr(8), sRA, hSx)
    a(f"""s_mul_i32 s{sB}, s{sT1}, {128*GP}
    s_add_u32 s{sB}, s{sB}, {GT}
    s_add_u32 s{sB}, s{sB}, s{sCol}
    s_cmp_ge_u32 s{sJ}, 4
    s_cselect_b32 s3, {GU - 2 - 576}, 0
    s_add_u32 s{sB}, s{sB}, s3""")
    lds_wait(a, "f_t8", vF, t1, 1, sleep=4)
    a(f"ds_read_b32 v{vG}, v{hGa}")
    dstep(dsaddr(9), sWS, hSg, "sc1")
    a(f"s_add_u32 s{sB}, s{sB}, {64*GP}")
    dstep(dsaddr(10), sWS, hSg, "sc1")
    a(f"""v_mov_b32 v{val}, 2
    v_mov_b32 v{vF}, {F_CNT3}
    s_lshl_b32 s{sD}, s{sWave}, 12
    s_lshl_b32 s3, s{sT1}, 7
    s_add_u32 s{sD}, s{sD}, s3
    s_add_u32 s{sD}, s{sD}, {FL3}
    s_lshl_b32 s{sA}, s{sT1}, 2
    s_add_u32 s{sA}, s{sA}, s{sWave}
    s_lshl_b32 s{sB}, s{sA}, 11
    s_and_b32 s{sB}, s{sB}, {0xfffff000}
    s_and_b32 s3, s{sWave}, 1
    s_mul_i32 s{sE}, s3, {16*73728}
    s_lshl_b32 s3, s3, 6
    s_add_u32 s{sB}, s{sB}, s3
    s_add_u32 s{sB}, s{sB}, {OX}
    s_lshl_b32 s{sA}, s{sA}, 14
    s_add_u32 s{sA}, s{sA}, {OF}
    s_mul_i32 s3, s{sRb}, 1152
    s_add_u32 s{sE}, s{sE}, s3
    s_add_u32 s{sE}, s{sE}, s{sCol}
    s_waitcnt vmcnt(0)
    ds_write_b32 v{hMt}, v{val}""")
    lds_wait(a, "f_t9", hTa, t1, 2, sleep=4)
    stamp(a, 6, "H")
    NR = 7
    def rd(f):
        ks, mu = divmod(f, 5)
        m = 9 + (ks >> 1) if ks < 4 else (ks - 4) >> 1
        v, o = (hTw, 9216*m) if m < 5 else (hTr, 9216*(m - 5))
        o += 4608*(ks & 1) + 32*mu
        r = AR + 4 * (f % 8)
        a(f"ds_read_b64_tr_b16 v[{r}:{r+1}], v{v} offset:{o}")
        a(f"ds_read_b64_tr_b16 v[{r+2}:{r+3}], v{v} offset:{o+144}")
    lds_wait(a, "f_t11", vF, t1, 4, sleep=4)
    lds_wait(a, "f_t12", vF, t1, 8, sleep=THR("cs", 1))
    if "pe" in EXP: a(f"v_mov_b32 v12, 0\nv_mov_b32 v13, 0\ns_mov_b64 exec, 0xff\nbuffer_atomic_or_x2 v[12:13], v{hTg}, s[{sWS}:{sWS+3}], s{sD} offen sc0 sc1\ns_mov_b64 exec, -1")
    for f in range(NR): rd(f)
    for f in range(110):
        ks, mu = divmod(f, 5)
        if f == 20:
            a("s_nop 3")
            for r in range(20): a(f"v_mul_f32 v{ACC+r}, v{ACC+r}, v{vG}")
            stamp12(a, 1); stamp(a, 1, "T")
            tag_wait(a, "f_t10", hTg, sD, 1, 12, sleep=1, lanes=8, sent="pe" in EXP)
            stamp12(a, 2); stamp(a, 2, "T")
            for k in range(18):
                if k >= 16:
                    for j in range(4): a.vmem(f"buffer_load_dword v{OB+4*k+j}, v{hOx}, s[{sWS}:{sWS+3}], s{sB} offen offset:{2048*(k-16) + 128*j} sc1", f"o{k}")
                    continue
                if k & 1 == 0: a(f"s_add_u32 s3, s{sJ}, {k//2}\ns_and_b32 s3, s3, 7\ns_lshl_b32 s3, s3, 11\ns_add_u32 s3, s3, s{sA}")
                a.vmem(f"buffer_load_dwordx4 v[{OB+4*k}:{OB+4*k+3}], v{hL16}, s[{sWS}:{sWS+3}], s3 offen offset:{(k&1)*1024} sc1", f"o{k}")
        if ks >= 4 and mu == 0: a.vm_wait(f"o{ks-4}")
        if ks == 4 and mu == 0: stamp(a, 3, "T")
        if ks == 21 and mu == 0: stamp(a, 4, "T")
        if f & 1 == 0: a(f"s_waitcnt lgkmcnt({2*(min(110, f + NR) - f - 2)})")
        r = AR + 4 * (f % 8)
        B = W2 + 4*ks if ks < 4 else OB + 4*(ks-4)
        ac = ACC + 4*mu
        a(f"v_mfma_f32_16x16x32_bf16 v[{ac}:{ac+3}], v[{r}:{r+3}], v[{B}:{B+3}], " + ("0" if ks == 0 else f"v[{ac}:{ac+3}]"))
        if f + NR < 110: rd(f + NR)
    stamp12(a, 3); stamp(a, 5, "T")
    a("s_nop 3")
    for mu in range(5):
        ac = ACC + 4*mu
        if mu == 4: a("s_mov_b32 exec_hi, 0")
        a(f"v_cvt_pk_bf16_f32 v{W2+2*mu}, v{ac}, v{ac+1}\nv_cvt_pk_bf16_f32 v{W2+2*mu+1}, v{ac+2}, v{ac+3}")
        a(f"ds_write_b64 v{hOw}, v[{W2+2*mu}:{W2+2*mu+1}] offset:{32*mu}")
    a("s_mov_b32 exec_hi, -1")
    for it in range(3): a(f"ds_read_b128 v[{OB+4*it}:{OB+4*it+3}], v{hOr} offset:{1024*it}")
    for it in range(3):
        a(f"s_waitcnt lgkmcnt({2-it})")
        if it == 2: a("s_mov_b64 exec, 0xffff")
        a(f"buffer_store_dwordx4 v[{OB+4*it}:{OB+4*it+3}], v{hOo+it}, s[{sRD}:{sRD+3}], s{sE} offen")
    stamp(a, 6, "T")
    G0.stamp_end(a, 0, sWS, sWave)
    a("s_endpgm")

    a.label("f_att")
    a.vm = []
    Q1, Q2, vG, aK, ak, aV = 4, 8, 10, 11, 12, 13
    vt0, vt1, vt2, vt3 = 2, 3, 14, 15
    O, S, P, K1, K2, V = 16, [32, 48], [64, 72], [80, 84], [88, 90], [92, 100]
    aF, aP = 108, 109
    vW, vR0, vR1, vA0, vA1 = 110, 111, 112, 113, 114
    sW8, sRho, sHd = 70, 71, 72
    vSt = 115
    a("s_barrier")
    if "only" in EXP and "pfonly" not in EXP: a("s_endpgm")
    a(f"s_sub_u32 s{sW8}, s{sWave}, 4")
    if "xpf" in EXP:
        a(f"""s_cmp_lt_u32 s{sWave}, 8
        s_cbranch_scc1 f_pf9
        s_cmp_ge_u32 s{sWave}, 10
        s_cbranch_scc1 f_pf2
        v_mul_u32_u24 v{vt1}, 7282, v{vL}
        v_lshrrev_b32 v{vt1}, 16, v{vt1}
        v_lshlrev_b32 v{vt0}, 7, v{vL}
        s_mov_b32 s3, {36864 - 1152}
        v_mad_u32_u24 v{vt0}, v{vt1}, s3, v{vt0}
        s_lshl_b32 s3, s{sJ}, 1
        s_and_b32 s6, s{sWave}, 1
        s_add_u32 s3, s3, s6
        s_mul_i32 s3, s3, {4*36864}
        s_mul_i32 s6, s{sT1}, 1152
        s_add_u32 s3, s3, s6
        s_waitcnt lgkmcnt(0)""")
        srd(a, sRA, 16, 2048*1152)
        a(f"""s_mov_b32 exec_hi, 0xf
        buffer_load_dword v{vW}, v{vt0}, s[{sRA}:{sRA+3}], s3 offen
        s_mov_b32 exec_hi, -1
        s_branch f_pf8""")
        a.label("f_pf2")
        a(f"""s_lshr_b32 s3, s2, 3
        s_mul_i32 s3, s3, 768
        v_lshlrev_b32 v{vt0}, 7, v{vL}
        s_cmp_eq_u32 s{sWave}, 10
        s_waitcnt lgkmcnt(0)
        s_cselect_b32 s{sRA}, s30, s32
        s_cselect_b32 s{sRA+1}, s31, s33
        s_mov_b32 s{sRA+2}, {576*36}
        s_mov_b32 s{sRA+3}, 0x20000
        s_mov_b64 exec, 0x3f
        buffer_load_dword v{vW}, v{vt0}, s[{sRA}:{sRA+3}], s3 offen
        s_mov_b64 exec, -1""")
        a.label("f_pf8")
        if "wqpf" in EXP:
            srd(a, sRA, 28, 576*1152)
            a(f"""s_lshr_b32 s3, s2, 3
            s_lshl_b32 s3, s3, 2
            s_add_u32 s3, s3, s{sWave}
            s_sub_u32 s3, s3, 8
            s_mul_i32 s3, s3, {41*128}
            v_lshlrev_b32 v{vt0}, 7, v{vL}
            {"s_waitcnt vmcnt(0)" if "wqw" in EXP else ""}
            s_mov_b32 exec_hi, 0x1ff
            buffer_load_dword v{vW}, v{vt0}, s[{sRA}:{sRA+3}], s3 offen
            s_mov_b32 exec_hi, -1""")
        a.label("f_pf9")
    a("s_getpc_b64 s[4:5]")
    a.label("f_pf")
    a(f"""s_sub_u32 s4, s4, f_pf-f_code
    s_subb_u32 s5, s5, 0
    s_lshr_b32 s3, s2, 3
    s_lshl_b32 s6, s{sW8}, 6
    s_add_u32 s3, s3, s6
    v_lshlrev_b32 v{vt0}, 5, v{vL}
    v_add_u32 v{vt0}, s3, v{vt0}
    v_lshlrev_b32 v{vt0}, 7, v{vt0}
    v_min_u32 v{vt0}, rf_end-f_code-4, v{vt0}
    s_mov_b64 exec, 3
    global_load_dword v130, v{vt0}, s[4:5]
    s_mov_b64 exec, -1""")
    if "pfonly" in EXP: a("s_endpgm")
    xread(a, vR0, vR1, vt0, vt1)
    a(f"""s_lshr_b32 s{sRho}, s{sW8}, 2
    s_and_b32 s{sHd}, s{sW8}, 3
    s_mul_i32 s3, s{sRho}, 36864
    v_add_u32 v{vR0}, s3, v{vR0}
    v_xor_b32 v{vR1}, 32, v{vR0}
    s_bitcmp1_b32 s{sHd}, 0
    s_mov_b32 s{sB}, 0x34343120
    s_mov_b32 s{sC}, {LW}
    s_cmov_b32 s{sB}, 0x44423120
    s_cmov_b32 s{sC}, {LW-4}
    s_mul_i32 s3, s{sHd}, 36
    s_add_u32 s{sC}, s{sC}, s3
    v_bfe_u32 v{vt0}, v{vL}, 4, 1
    v_and_b32 v{vt1}, 3, v{vL}
    v_lshl_add_u32 v{vt0}, v{vt0}, 2, v{vt1}
    v_lshlrev_b32 v{vt0}, 2, v{vt0}
    v_lshrrev_b32 v{vt0}, v{vt0}, s{sB}
    v_and_b32 v{vt0}, 15, v{vt0}
    v_bfe_u32 v{vt1}, v{vL}, 2, 2
    v_lshrrev_b32 v{vt3}, 5, v{vL}
    v_lshl_add_u32 v{vt1}, v{vt1}, 1, v{vt3}
    v_mul_u32_u24 v{vt1}, 288, v{vt1}
    v_lshl_add_u32 v{vA0}, v{vt0}, 3, v{vt1}
    v_add_u32 v{vA0}, s{sC}, v{vA0}
    v_subrev_u32 v{vA1}, {LW-LD}, v{vA0}
    v_and_b32 v{aF}, 3, v{vL}
    v_min_u32 v{aF}, 2, v{aF}
    v_lshlrev_b32 v{aF}, 2, v{aF}
    v_add_u32 v{aF}, {F_LD}, v{aF}
    v_and_b32 v{vt2}, 31, v{vL}
    v_lshlrev_b32 v{ak}, 2, v{vt2}
    s_lshl_b32 s3, s{sW8}, 2
    s_add_u32 s3, s3, {F_PRG}
    v_mov_b32 v{aP}, s3
    v_lshlrev_b32 v{vSt}, 4, v{vL}
    v_add_u32 v{aK}, {LW}, v{vSt}
    v_add_u32 v{ak}, {LW+1024}, v{ak}
    v_cmp_eq_u32 vcc, 28, v{vt2}
    v_mul_u32_u24 v{vt0}, 19, v{vt3}
    s_nop 0
    v_cndmask_b32 v{aV}, v{vt2}, 18, vcc
    v_cmp_gt_u32 vcc, 19, v{aV}
    v_add_u32 v{aV}, v{aV}, v{vt0}
    v_subrev_u32 v{vt0}, 52, v{vL}
    v_cmp_gt_u32 s[6:7], 8, v{vt0}
    v_cndmask_b32 v{aV}, 38, v{aV}, vcc
    s_nop 0
    v_cndmask_b32 v{aV}, v{aV}, 39, s[6:7]
    v_lshlrev_b32 v{aV}, 4, v{aV}
    v_add_u32 v{aV}, {LW+1152}, v{aV}""")
    sO, sHead, vOa, vOb, vGa = 76, 73, 128, 129, 131
    a(f"""s_lshl_b32 s{sHead}, s{sJ}, 2
    s_add_u32 s{sHead}, s{sHead}, s{sHd}
    s_lshl_b32 s{sA}, s{sT1}, 1
    s_add_u32 s{sA}, s{sA}, s{sRho}
    s_lshl_b32 s{sB}, s{sA}, 12
    s_lshl_b32 s3, s{sHead}, 7
    s_add_u32 s{sB}, s{sB}, s3
    s_add_u32 s{sO+1}, s{sB}, {OX}
    s_lshl_b32 s{sA}, s{sA}, 15
    s_lshl_b32 s3, s{sHead}, 9
    s_add_u32 s{sA}, s{sA}, s3
    s_add_u32 s{sO}, s{sA}, {OF}
    v_lshlrev_b32 v{vOb}, 2, v{vt2}
    v_and_b32 v{vOa}, 15, v{vL}
    v_lshlrev_b32 v{vOa}, 4, v{vOa}
    v_bfe_u32 v{vt1}, v{vL}, 4, 1
    v_lshl_add_u32 v{vOa}, v{vt1}, 14, v{vOa}
    v_lshl_add_u32 v{vOa}, v{vt3}, 8, v{vOa}
    s_lshl_b32 s3, s{sRho}, 7
    s_add_u32 s3, s3, {F_G}
    v_add_u32 v{vGa}, s3, v{vOb}""")
    common_srd()
    GO, vN, sGrp = [116, 120, 124, 132], 130, 74
    sGi = 75
    GJ = THR("gj", 0)
    a(f"""s_mov_b32 s{sGi}, {"0x04443214" if "jw11" in EXP else "0x44443210"}
    s_cmp_ge_u32 s{sJ}, 4
    s_cmov_b32 s{sGi}, 0x44453210
    s_lshr_b32 s3, s{sJ}, 1
    s_cmp_eq_u32 s3, {GJ//2}
    s_cselect_b32 s3, 0x02000000, 0
    s_add_u32 s{sGi}, s{sGi}, s3
    s_lshl_b32 s3, s{sW8}, 2
    s_lshr_b32 s{sGi}, s{sGi}, s3
    s_and_b32 s{sGi}, s{sGi}, 15
    s_and_b32 s3, s{sJ}, 1
    s_sub_u32 s3, s3, s{sRho}
    s_mul_i32 s3, s3, 36864
    v_add_u32 v{vW}, s3, v{vR0}
    {"s_mov_b32 s%d, 4" % sGi if "nojob" in EXP else ""}
    s_cmp_eq_u32 s{sGi}, 4
    s_cbranch_scc1 {"f_wp" if "wp" in EXP else "f_a0"}
    {"s_setprio 1" if "nojprio" not in EXP else ""}
    s_cmp_eq_u32 s{sGi}, 6
    s_cbranch_scc1 f_gate
    s_lshr_b32 s{sGrp}, s{sJ}, 1
    s_add_u32 s3, s{sGrp}, 14
    s_lshl_b32 s{sGrp}, s{sGrp}, 2
    s_add_u32 s{sGrp}, s{sGrp}, s{sGi}
    s_cmp_eq_u32 s{sGi}, 5
    s_cselect_b32 s{sGrp}, s3, s{sGrp}""")
    a.label("f_job")
    fnet_job(a)
    stamp(a, 6, "J")
    a("s_branch f_a0")
    if "wp" in EXP:
        a.label("f_wp")
        a(f"s_cmp_lg_u32 s{sWave}, 11\ns_cbranch_scc1 f_a0")
        srd(a, sRA, 28, 576*1152)
        a(f"""s_lshr_b32 s3, s2, 3
        s_mul_i32 s3, s3, {162*128}
        v_lshlrev_b32 v4, 7, v{vL}""")
        lds_wait(a, "f_wp1", aF, vt0, THR("wf", 1), sleep=1)
        a(f"""buffer_load_dword v5, v4, s[{sRA}:{sRA+3}], s3 offen
        s_add_u32 s3, s3, 8192
        buffer_load_dword v5, v4, s[{sRA}:{sRA+3}], s3 offen
        s_add_u32 s3, s3, 8192
        s_mov_b32 exec_hi, 3
        buffer_load_dword v5, v4, s[{sRA}:{sRA+3}], s3 offen
        s_mov_b32 exec_hi, -1
        s_waitcnt vmcnt(0)
        s_branch f_a0""")
    a.label("f_gate")
    a(f"""v_xor_b32 v4, 32, v{vW}
    v_lshlrev_b32 v5, 4, v{vt3}
    v_add_u32 v5, {LGATE}, v5
    v_add_u32 v6, {F_G2}, v{vOb}""")
    lds_wait(a, "f_g1", aF, vt0, 6, sleep=1)
    duty_chain("G", 16, vW, 4, 5)
    a(f"""s_nop 11
    v_mul_f32 v4, {f2u(-math.log2(math.e))}, v16
    v_exp_f32 v4, v4
    s_nop 0
    v_add_f32 v4, 1.0, v4
    v_rcp_f32 v4, v4
    s_nop 0
    ds_write_b32 v6, v4""")
    a.label("f_a0")
    if "nojprio" not in EXP: a("s_setprio 0")
    if "nobprio" not in EXP: a(f"s_cmp_lg_u32 s{sGi}, 5\ns_cbranch_scc1 f_a00\ns_setprio 1"); a.label("f_a00")
    stamp(a, 1, "P")
    QA, QR = S[0], 64
    lg = []
    def qwait(tag):
        if tag in lg:
            i = max(k for k, t in enumerate(lg) if t == tag)
            a(f"s_waitcnt lgkmcnt({len(lg) - 1 - i})"); del lg[:i + 1]
    def qrd(ks):
        c, b = ks >> 2, QR + 8*(ks % 5)
        v, o = (vA0, 9216*c) if c < 5 else (vA1, 9216*(c-5))
        o += 2304*(ks & 3)
        a(f"ds_read_b64_tr_b16 v[{b}:{b+1}], v{v} offset:{o}")
        a(f"ds_read_b64_tr_b16 v[{b+2}:{b+3}], v{v} offset:{o + 144}")
        a(f"ds_read_b128 v[{b+4}:{b+7}], v{vR1 if ks & 1 else vR0} offset:{2048*(ks>>1)}")
        lg.extend([ks]*3)
        assert len(lg) <= 15
    lds_wait(a, "f_q0", aF, vt0, QF)
    nonce(); stamp(a, 2, "P")
    if "C" not in EXP: stamp(a, 1)
    for ks in range(4): qrd(ks)
    for ks in range(36):
        c, b = ks >> 2, QR + 8*(ks % 5)
        qwait(ks)
        a(f"v_mfma_f32_32x32x16_bf16 v[{QA}:{QA+15}], v[{b}:{b+3}], v[{b+4}:{b+7}], " + ("0" if ks == 0 else f"v[{QA}:{QA+15}]"))
        if ks == 7: a(f"v_mov_b32 v{vt1}, 1\nds_write_b32 v{aP}, v{vt1}"); lg.append("w"); stamp(a, 1, "K")
        if ks & 3 == 0 and c < 8:
            qwait("f")
            a(f"v_cmp_gt_i32 vcc, {QF + c + 1}, v{vt0}\ns_cbranch_vccz f_q{c+1}_ok")
            lds_wait(a, f"f_q{c+1}", aF, vt0, QF + c + 1)
            a.label(f"f_q{c+1}_ok")
            if c == 4: stamp(a, 3, "P")
        if ks & 3 == 2 and c < 7: a(f"ds_read_b32 v{vt0}, v{aF}"); lg.append("f")
        if ks + 4 < 36: qrd(ks + 4)
    stamp(a, 4, "P")
    for r in range(16): a(f"v_mov_b32 v{O+r}, 0")
    a(f"s_mov_b32 s{sB}, {f2u(CQ)}\ns_bitcmp1_b32 s{sHd}, 0\ns_cbranch_scc1 f_qodd")
    T = S[1]
    def qmove(r0, rx):
        for r in range(8): a(f"v_mul_f32 v{T+r}, s{sB}, v{QA+r0+r}")
        for r in range(2): a(f"v_mul_f32 v{T+8+r}, s{sB}, v{QA+rx+r}")
    qmove(0, 8)
    a("s_branch f_qdone")
    a.label("f_qodd")
    qmove(2, 14)
    a.label("f_qdone")
    for r in range(2): a(f"v_cndmask_b32 v{T+8+r}, v{T+8+r}, 0, s[{sHi}:{sHi+1}]")
    a(f"v_mul_f32 v{vt0}, v{T}, v{T}")
    for r in range(1, 10): a(f"v_fmac_f32 v{vt0}, v{T+r}, v{T+r}")
    for k in range(5): a(f"v_cvt_pk_bf16_f32 v{Q1+k}, v{T+2*k}, v{T+2*k+1}")
    a(f"v_mov_b32 v{vt1}, v{vt0}")
    a(f"""v_and_b32 v{aF}, 3, v{vL}
    v_lshlrev_b32 v{aF}, 2, v{aF}
    v_permlane32_swap_b32 v{vt0}, v{vt1}
    v_add_u32 v{aF}, {F_KV}, v{aF}
    v_add_f32 v{vt0}, v{vt0}, v{vt1}
    v_sqrt_f32 v{vt0}, v{vt0}
    v_mov_b32 v{vt2}, {F_KC}
    v_cvt_pk_bf16_f32 v{Q2+1}, v{vt0}, 1.0
    v_cndmask_b32 v{Q2+1}, v{Q2+1}, 0, s[{sHi}:{sHi+1}]""")
    vH0, vH1 = vR0, vR1
    a(f"v_mov_b32 v{vG}, 2\nds_write_b32 v{aP}, v{vG}")
    a(f"s_lshl_b32 s3, 1, s{sGi}\ns_and_b32 s3, s3, 0x2f\ns_cbranch_scc0 f_a8")
    fnet_job2(a)
    a.label("f_a8")
    a(f"""s_lshl_b32 s3, s{sGi}, 1
    v_lshrrev_b32 v{vH0}, 5, v{vL}
    v_add_u32 v{vH0}, s3, v{vH0}
    v_xor_b32 v{vH0}, v{vH0}, v{vL}
    v_and_b32 v{vH0}, 7, v{vH0}
    v_lshlrev_b32 v{vH0}, 4, v{vH0}
    v_lshl_add_u32 v{vH0}, v{vOb}, 5, v{vH0}
    v_add_u32 v{vH0}, {GSC}, v{vH0}
    v_xor_b32 v{vH1}, 112, v{vH0}
    v_add_u32 v{vW}, {F_N}, v{vOb}
    s_lshl_b32 s3, s{sGi}, 2
    s_add_u32 s3, s3, {F_XC}
    v_mov_b32 v{vA0}, s3
    v_mov_b32 v{vA1}, 1""")
    stamp(a, 6, "P")
    a(f"""s_cmp_lg_u32 s{sGi}, 5
    s_cbranch_scc1 f_a5
    v_and_b32 v{vH1}, 28, v{vOb}
    v_add_u32 v{vH1}, {F_PRG}, v{vH1}
    v_add_u32 v{vH0}, {GSC + 16384}, v{vSt}""")
    lds_wait(a, "f_a7", vH1, vt3, 2)
    for kind in range(4): a(f"ds_write_b128 v{vH0}, v[{GO[kind]}:{GO[kind]+3}] offset:{1024*kind}")
    a(f"ds_write_b32 v{vA0}, v{vA1}")
    a.label("f_a5")
    stamp(a, 2, "K")
    lds_wait(a, "f_a6", aF, vt3, 1)
    stamp(a, 3, "K")
    a(f"""s_setprio {PRIO[0]}""")
    stamp(a, 3)
    if G0.STAMP and "C" in EXP: a("s_memtime s[84:85]")
    base = {aK: LW, ak: LW, aV: LW}
    def off(v, j, extra=0):
        o = ltile(j) + extra - base[v]
        if not 0 <= o < 65536:
            nb = ltile(j)
            a(f"v_add_u32 v{v}, {(nb - base[v]) & 0xffffffff}, v{v}")
            base[v] = nb; o = extra
        return o
    NB = 3 if "nb3" in EXP else 2
    K1, K2, V = K1 + [136], K2 + [140], V + [144]
    rdK = lambda j: f"ds_read_b128 v[{K1[j%NB]}:{K1[j%NB]+3}], v{aK} offset:{off(aK, j)}"
    rdk = lambda j: f"ds_read_b32 v{K2[j%NB]}, v{ak} offset:{off(ak, j)}"
    rdV = lambda j, u: f"ds_read_b128 v[{V[j%NB]+4*u}:{V[j%NB]+4*u+3}], v{aV} offset:{off(aV, j, VB) - VB*(1-u)}"
    def M1(j): return f"v_mfma_f32_32x32x16_bf16 v[{S[j&1]}:{S[j&1]+15}], v[{K1[j%NB]}:{K1[j%NB]+3}], v[{Q1}:{Q1+3}], 0"
    def M2(j): return f"v_mfma_f32_32x32x8_bf16 v[{S[j&1]}:{S[j&1]+15}], v[{K2[j%NB]}:{K2[j%NB]+1}], v[{Q2}:{Q2+1}], v[{S[j&1]}:{S[j&1]+15}]"
    def M3(j, u): return f"v_mfma_f32_32x32x16_bf16 v[{O}:{O+15}], v[{V[j%NB]+4*u}:{V[j%NB]+4*u+3}], v[{P[j&1]+4*u}:{P[j&1]+4*u+3}], v[{O}:{O+15}]"
    for b in range(NB): a(rdK(b)); a(rdk(b)); a(f"ds_read_b32 v{K2[b]+1}, v{vt2}")
    if NB == 3: a(rdV(0, 0)); a(rdV(0, 1))
    a(f"s_waitcnt lgkmcnt({3 if NB == 2 else 8})")
    a(M1(0)); a(M2(0))
    a(f"s_waitcnt lgkmcnt({0 if NB == 2 else 5})\ns_nop 8")
    FCHK = {6 - NB: 2, 13 - NB: 3, 26 - NB: 4}
    PRG = {20: 3, 32: 4, 44: 5}
    for j in range(64):
        if j in PRIO and j: a(f"s_setprio {PRIO[j]}")
        if j == 32: stamp(a, 4)
        if j in PRG: a(f"v_mov_b32 v{vt1}, {PRG[j]}\nds_write_b32 v{aP}, v{vt1}")
        if "M" in EXP and j in (0, 24, 60):
            q = {0: 1, 24: 3, 60: 5}[j]
            a(f"s_memrealtime s[{82+2*q}:{83+2*q}]\ns_memtime s[{84+2*q}:{85+2*q}]")
        if j in (0, 3, 10, 23) and "L" in EXP: stamp(a, {0: 1, 3: 2, 10: 4, 23: 6}[j], "L")
        if j in FCHK: lds_wait(a, f"f_w{j}", aF, vt0, FCHK[j])
        if j in (3, 10) and "L" in EXP: stamp(a, {3: 3, 10: 5}[j], "L")
        if j == 6 - NB:
            a(f"s_cmp_ge_u32 s{sGi}, 4\ns_cbranch_scc1 f_a1")
            for kind in range(4): a(f"ds_write_b128 v{vH1 if kind >> 1 else vH0}, v[{GO[kind]}:{GO[kind]+3}] offset:{4096*kind}")
            a(f"s_cmp_lg_u32 s{sGi}, 0\ns_cbranch_scc1 f_a3\ns_mov_b32 exec_hi, 0\nds_write_b32 v{vW}, v{vN}\ns_mov_b32 exec_hi, -1")
            a.label("f_a3")
            a(f"ds_write_b32 v{vA0}, v{vA1}")
            a.label("f_a1")
        if j == 25: a(f"v_mov_b32 v{aF}, {F_S2}")
        if j == 61:
            lds_wait(a, "f_a4", aF, vt0, 1)
            a(f"ds_read_b32 v{vG}, v{vGa}")
        if j == 63: a(f"v_sub_f32 v{vG}, 1.0, v{vG}")
        s, p = S[j & 1], P[j & 1]
        e = lambda i: f"v_exp_f32 v{s+i}, v{s+i}"
        c = lambda i: f"v_cvt_pk_bf16_f32 v{p+i}, v{s+2*i}, v{s+2*i+1}"
        nx, pv, ld, lv = j + 1 < 64, j > 0, j + NB < 64, j + NB - 2 < 64
        L = []
        if ld: lk, lk2 = rdK(j+NB), rdk(j+NB)
        if lv: lv0, lv1 = rdV(j+NB-2, 0), rdV(j+NB-2, 1)
        if nx: L.append(M1(j+1))
        if ld: L.append(lk)
        L += [e(0), e(1), e(2), e(3), c(0)]
        if nx: L.append(M2(j+1))
        if ld: L.append(lk2)
        L += [e(4), e(5), c(1), e(6), e(7), c(2)]
        if pv: L.append(M3(j-1, 0))
        if lv: L += [lv0, lv1]
        L += [e(8), e(9), c(3), e(10), e(11), c(4)]
        if pv: L.append(M3(j-1, 1))
        L += [e(12), e(13), c(5), e(14), e(15), c(6), c(7), f"s_waitcnt lgkmcnt({0 if NB == 2 else 2*ld + 2*lv})"]
        for x in L: a(x)
    a("s_nop 0"); a(M3(63, 0)); a(M3(63, 1))
    stamp(a, 5); stamp(a, 5, "T")
    if G0.STAMP and "C" in EXP: a("s_memtime s[86:87]")
    a("s_nop 11")
    vl = S[0]
    a(f"v_cndmask_b32 v{vl}, v{O+10}, v{O+12}, s[{sHi}:{sHi+1}]")
    def chk():
        a(f"v_add_f32 v{vt0}, |v{O}|, |v{O+1}|")
        for r in range(2, 10): a(f"v_add_f32 v{vt0}, |v{O+r}|, v{vt0}")
        a(f"""v_add_f32 v{vt0}, v{vl}, v{vt0}
    v_cmp_le_f32 vcc, {f2u(LMIN)}, v{vl}
    v_mov_b32 v{vt1}, 0x7f800000
    v_cmp_lt_f32 s[6:7], v{vt0}, v{vt1}
    s_nop 0
    s_and_b64 vcc, vcc, s[6:7]
    s_cmp_eq_u64 vcc, exec
    {"" if "nofb" in EXP else "s_cbranch_scc0 f_fallback"}""")
    if "nolc" in EXP: chk()
    a.label("f_norm")
    ON = S[1]
    a(f"v_rcp_f32 v{vl+1}, v{vl}\ns_nop 0\nv_mul_f32 v{vl+1}, v{vl+1}, v{vG}")
    for r in range(10): a(f"v_mul_f32 v{ON+r}, v{O+r}, v{vl+1}")
    for k in range(5): a(f"v_cvt_pk_bf16_f32 v{P[0]+k}, v{ON+2*k}, v{ON+2*k+1}")
    a(f"""buffer_store_dwordx4 v[{P[0]}:{P[0]+3}], v{vOa}, s[{sWS}:{sWS+3}], s{sO} offen sc1
    s_mov_b32 exec_hi, 0
    {"" if "noext" in EXP else f"buffer_store_dword v{P[0]+4}, v{vOb}, s[{sWS}:{sWS+3}], s{sO+1} offen sc1"}
    s_mov_b32 exec_hi, -1""")
    if "nolc" not in EXP:
        a(f"s_cmp_lg_u32 s{sGi}, 99\ns_cbranch_scc0 f_n2")
        chk()
        a.label("f_n2")
    stamp(a, 1, "T")
    if "T" in EXP: a("s_waitcnt vmcnt(0)")
    stamp(a, 2, "T")
    last_wave_signals(a, "f_a9", F_CNT3, 8, FL3, 4, vt0, vt2, 'noat' not in EXP)
    stamp(a, 3, "T")
    G0.stamp_end(a, 0, sWS, sWave)
    a("s_endpgm")
    a.label("f_fallback")
    s0 = S[0]
    a(f"s_mov_b32 s{sGi}, 99\ns_waitcnt vmcnt(0)")
    a(f"""v_subrev_u32 v{aK}, {base[aK]}, v{aK}
    v_subrev_u32 v{ak}, {base[ak]}, v{ak}
    v_subrev_u32 v{aV}, {base[aV]}, v{aV}
    v_mov_b32 v{K2[0]+1}, 0
    v_mov_b32 v{vt0}, 0xff800000
    s_mov_b32 s{sA}, {KVG}""")
    a.label("f_fb1")
    a(f"""buffer_load_dwordx4 v[{K1[0]}:{K1[0]+3}], v{aK}, s[{sWS}:{sWS+3}], s{sA} offen sc1
    buffer_load_dword v{K2[0]}, v{ak}, s[{sWS}:{sWS+3}], s{sA} offen sc1
    s_waitcnt vmcnt(0)""")
    a(M1(0)); a(M2(0)); a("s_nop 11")
    for r in range(0, 16, 2): a(f"v_max3_f32 v{vt0}, v{s0+r}, v{s0+r+1}, v{vt0}")
    a(f"""s_add_u32 s{sA}, s{sA}, {TILE}
    s_cmp_lt_u32 s{sA}, {KVG+64*TILE}
    s_cbranch_scc1 f_fb1
    v_mov_b32 v{vt1}, v{vt0}
    s_nop 1
    v_permlane32_swap_b32 v{vt0}, v{vt1}
    v_max_f32 v{vt0}, v{vt0}, v{vt1}
    v_cvt_pk_bf16_f32 v{vt1}, v{vt0}, v{vt0}
    v_and_b32 v{vt1}, 0xffff0000, v{vt1}
    v_sub_f32 v{vt0}, v{vt0}, v{vt1}
    v_cvt_pk_bf16_f32 v{Q2+1}, v{vt1}, v{vt0}
    v_cndmask_b32 v{Q2+1}, v{Q2+1}, 0, s[{sHi}:{sHi+1}]
    v_mov_b32 v{K2[0]+1}, 0xbf80bf80
    s_mov_b32 s{sA}, {KVG}""")
    for r in range(16): a(f"v_mov_b32 v{O+r}, 0")
    a.label("f_fb2")
    a(f"""buffer_load_dwordx4 v[{K1[0]}:{K1[0]+3}], v{aK}, s[{sWS}:{sWS+3}], s{sA} offen sc1
    buffer_load_dword v{K2[0]}, v{ak}, s[{sWS}:{sWS+3}], s{sA} offen sc1
    buffer_load_dwordx4 v[{V[0]}:{V[0]+3}], v{aV}, s[{sWS}:{sWS+3}], s{sA} offen sc1
    buffer_load_dwordx4 v[{V[0]+4}:{V[0]+7}], v{aV}, s[{sWS}:{sWS+3}], s{sA} offen offset:{VB} sc1
    s_waitcnt vmcnt(0)""")
    a(M1(0)); a(M2(0)); a("s_nop 11")
    for r in range(16): a(f"v_exp_f32 v{s0+r}, v{s0+r}")
    a("s_nop 0")
    for k in range(8): a(f"v_cvt_pk_bf16_f32 v{P[0]+k}, v{s0+2*k}, v{s0+2*k+1}")
    a("s_nop 1"); a(M3(0, 0)); a(M3(0, 1))
    a(f"""s_add_u32 s{sA}, s{sA}, {TILE}
    s_cmp_lt_u32 s{sA}, {KVG+64*TILE}
    s_cbranch_scc1 f_fb2
    s_nop 11
    v_cndmask_b32 v{vl}, v{O+10}, v{O+12}, s[{sHi}:{sHi+1}]
    s_branch f_norm""")
    a.label("f_end")
    a("s_endpgm")
    return a

HEAD = """; Fused FNet + multi-query attention + gate.  One launch, 256 workgroups of 12 waves, one per CU.
"""
def build(a, vgpr=168):
    i0, i1 = a.lines.index("f_duty:"), a.lines.index("f_dS:")
    if "dplain" in EXP: a.lines[i0:i1] = [l.replace(" sc1", "") if "buffer_store" in l and "dwordx2" not in l else l for l in a.lines[i0:i1]]
    if "dnost" in EXP: a.lines[i0:i1] = [l for l in a.lines[i0:i1] if not ("buffer_store" in l and "dwordx2" not in l)]
    if "noprio" in EXP: a.lines = [l for l in a.lines if l != "s_setprio 3"]
    lab = G0.NAME + "_kernel"
    for p in check(a.lines): print(p, file=sys.stderr)
    out = [HEAD + f"; @launch grid=(256,1,1) block=(768,1,1) lds=163840", '.amdgcn_target "amdgcn-amd-amdhsa--gfx950"\n.text',
           f".globl {lab}\n.p2align 8\n.type {lab},@function\n{lab}:", a.text(), ".p2align 8\n.type rf_table,@object\nrf_table:"]
    w = rf_table()
    for i in range(0, len(w), 8): out.append(".long " + ",".join(f"0x{x:08x}" for x in w[i:i+8]))
    out += [".size rf_table, 4096", "rf_end:", '.section .rodata,"a"', kd(lab, vgpr)]
    return "\n".join(out) + "\n"

if __name__ == "__main__":
    if len(sys.argv) > 2 and sys.argv[2] == "stamp": G0.STAMP = True
    for x in sys.argv[3:]:
        if x.startswith("leak"):
            p = x.split(":"); G0.LEAK = (int(p[1]), int(p[2]), int(p[3]) if len(p) > 3 else None)
        else: EXP.add(x)
    open(sys.argv[1], "w").write(build(gen()))
```

```python
import math, sys
import gen as G0
from gen import Asm, check, srd, f2u, bf16, CQ, wave_max, load_rf, rf_table, kd
TILE, VB = 2432, 640
GP, GU = 1280, 704
EP = 0x0
FL0, FL1, FL2, FL3 = 0x8000, 0x10000, 0x20000, 0x30000
KMG = 0x44000
GG = 0x41000
KVG = 0x50000
OF = 0x100000
OX = 0x300000
GT = 0x340000
ST = 0x1200000
WS_SIZE = 0x1300000
G0.GT = GT; G0.ST = ST
OFFS, LMIN = 80.0, 2.0**-100
LX, LD, LW, LGATE, FLG = 0, 73728, 110592, 156672, 159744
F_KV, F_PRG, F_S1F, F_S1, F_CNT2, F_CNT3, F_TA, F_S2, F_S0, F_DUTY, F_KC, F_LD, F_XC, F_BIG, F_G, F_N, F_G2, F_DUMP = FLG, FLG+16, FLG+48, FLG+52, FLG+56, FLG+60, FLG+64, FLG+80, FLG+84, FLG+88, FLG+92, FLG+96, FLG+112, FLG+140, FLG+256, FLG+512, FLG+640, FLG+1024
GSC = 81920
J1 = 20
def ltile(j): return LW + TILE*j if j < J1 else TILE*(j - J1)
PRIO = {0: 2, 32: 1, 60: 0}
for _x in sys.argv:
    if _x.startswith("pr:"): PRIO = {int(k): int(v) for k, v in (p.split("=") for p in _x[3:].split(","))}
SPIN = 20000
THR = lambda k, d: next((int(x[len(k):]) for x in EXP if x.startswith(k) and x[len(k):].isdigit()), d)
QF = 7
EXP = set()
def stamp(a, s, g="A"):
    if s == 0 or g in EXP or (g == "A" and not EXP & {"P", "H", "R", "T", "J", "L", "M", "K", "D"}): G0.stamp(a, s)

sWS, sRA, sRB, sRC, sRD = 8, 12, 40, 44, 48
sNon, sWave, sT1, sJ = 54, 56, 57, 58
sA, sB, sC, sD, sE, sF, sG, sH = 59, 60, 61, 62, 63, 64, 65, 66
sHi = 68
sRot = 67
vL = 1

_n = [0]
LABS = {}
def stamp12(a, slot):
    if not G0.STAMP or EXP & {'P', 'H', 'R', 'T', 'J', 'L', 'M', 'K', 'D'}: return
    _n[0] += 1
    a(f"s_sub_u32 s3, s{sWave}, 1\ns_cmp_ge_u32 s3, 2\ns_cbranch_scc1 f_st{_n[0]}")
    stamp(a, slot)
    a.label(f"f_st{_n[0]}")

def lds_wait(a, lab, vaddr, vt, val, sleep=0):
    if sleep:
        a(f"s_branch {lab}")
        a.label(lab + "_z")
        a(f"s_sleep {sleep}")
    a.label(lab)
    if G0.STAMP:
        _n[0] += 1
        a(f"s_add_u32 s83, s83, 1\ns_cmp_lt_u32 s83, 200000\ns_cbranch_scc1 {lab}_go\ns_mov_b32 s99, {0x77770000}\ns_mov_b32 s97, {_n[0]}\ns_branch {lab}_to")
        a.label(lab + "_go")
    a(f"ds_read_b32 v{vt}, v{vaddr}\ns_waitcnt lgkmcnt(0)\nv_cmp_gt_i32 vcc, {val}, v{vt}\ns_cbranch_vccnz {lab + ('_z' if sleep else '')}")
    if G0.STAMP: a.label(lab + "_to"); LABS[_n[0]] = lab

def tag_wait(a, lab, vaddr, soff, n, vt, step=1024, sleep=2, lanes=0, sent=False):
    a(f"s_mov_b32 s{sH}, 0")
    if lanes: a(f"s_mov_b64 exec, {(1 << lanes) - 1}")
    if sent: a(f"s_branch {lab}_s")
    a.label(lab)
    if lanes:
        a(f"v_mov_b32 v{vt}, 0\nv_mov_b32 v{vt+1}, 0\nbuffer_atomic_or_x2 v[{vt}:{vt+1}], v{vaddr}, s[{sWS}:{sWS+3}], s{soff} offen sc0 sc1")
    else:
        for i in range(n): a(f"buffer_load_dwordx2 v[{vt+2*i}:{vt+2*i+1}], v{vaddr}, s[{sWS}:{sWS+3}], s{soff} offen offset:{i*step} sc1")
    if sent: a.label(lab + "_s")
    a(f"s_add_u32 s{sH}, s{sH}, 1\ns_waitcnt vmcnt(0)" + ("" if sent else " lgkmcnt(0)"))
    for i in range(n):
        a(f"v_cmp_ne_u64 {'vcc' if i == 0 else 's[6:7]'}, s[{sNon}:{sNon+1}], v[{vt+2*i}:{vt+2*i+1}]")
        if i: a("s_nop 0\ns_or_b64 vcc, vcc, s[6:7]")
    a(f"s_cbranch_vccz {lab}_ok\ns_sleep {sleep}\ns_cmp_lt_u32 s{sH}, {SPIN}\ns_cbranch_scc1 {lab}")
    if G0.STAMP: a("s_mov_b32 s99, 0x77770000")
    a.label(lab + "_ok")
    if lanes: a("s_mov_b64 exec, -1")
    a.vm = []

def tag_signal(a, area, nrep, v0, v1, atomic=False):
    a(f"""s_lshl_b32 s{sG}, s{sT1}, 7
    s_lshl_b32 s{sH}, s{sJ}, 3
    s_add_u32 s{sG}, s{sG}, s{sH}
    s_add_u32 s{sG}, s{sG}, {area}
    v_lshlrev_b32 v{v0}, 12, v{vL}
    v_mov_b32 v{v1}, s{sNon}
    v_mov_b32 v{v1+1}, s{sNon+1}
    s_mov_b64 exec, {(1 << nrep) - 1}
    {"buffer_atomic_swap_x2" if atomic else "buffer_store_dwordx2"} v[{v1}:{v1+1}], v{v0}, s[{sWS}:{sWS+3}], s{sG} offen sc1
    s_mov_b64 exec, -1""")

def last_wave_signals(a, lab, cnt, total, area, nrep, v0, v1, atomic=False):
    a(f"""s_waitcnt vmcnt(0)
    v_mov_b32 v{v0}, {cnt}
    v_mov_b32 v{v1}, 1
    s_mov_b64 exec, 1
    ds_add_rtn_u32 v{v1}, v{v0}, v{v1}
    s_waitcnt lgkmcnt(0)
    v_readfirstlane_b32 s{sG}, v{v1}
    s_mov_b64 exec, -1
    s_cmp_lg_u32 s{sG}, {total-1}
    s_cbranch_scc1 {lab}""")
    tag_signal(a, area, nrep, v0, v1, atomic)
    a.label(lab)
    a.vm = []

def xsrc(a, dst, t0, t1):
    a(f"""v_lshrrev_b32 v{t0}, 4, v{vL}
    v_xor_b32 v{t0}, v{t0}, v{vL}
    v_and_b32 v{t0}, 3, v{t0}
    v_lshlrev_b32 v{t0}, 4, v{t0}
    v_lshrrev_b32 v{t1}, 2, v{vL}
    s_mov_b32 s3, 73728
    v_mad_u32_u24 v{dst}, v{t1}, s3, v{t0}""")
def xread(a, r0, r1, t0, t1, vL=vL):
    a(f"""v_lshrrev_b32 v{t0}, 5, v{vL}
    v_lshrrev_b32 v{t1}, 2, v{vL}
    v_xor_b32 v{t0}, v{t0}, v{t1}
    v_and_b32 v{t0}, 3, v{t0}
    v_and_b32 v{t1}, 31, v{vL}
    v_lshlrev_b32 v{t1}, 6, v{t1}
    v_lshl_add_u32 v{r0}, v{t0}, 4, v{t1}""")
def dense_pos(a, sph, pos, c16, t):
    a(f"""s_lshl_b32 s3, s{sph}, 6
    v_add_u32 v{c16}, s3, v{vL}
    v_mul_u32_u24 v{pos}, 7282, v{c16}
    v_lshrrev_b32 v{pos}, 16, v{pos}
    v_mul_u32_u24 v{t}, 9, v{pos}
    v_sub_u32 v{c16}, v{c16}, v{t}
    v_lshlrev_b32 v{c16}, 4, v{c16}""")

J_GO, J_N, J_vX, J_vF, J_sG, J_HB, J_R = [116, 120, 124, 132], 130, 110, 108, 74, 116, 132
def fnet_job(a):
    GO, vN, vX, vF, sGrp = J_GO, J_N, J_vX, J_vF, J_sG
    H1, H2, C = 16, 32, 16
    B = [72 + 4*i for i in range(9)] + [132 + 4*i for i in range(9)]
    free = [48 + 4*i for i in range(6)] + [116, 120, 124]
    e, p, co, x0, x1 = 4, 5, 6, 7, 8
    stamp(a, 1, "J")
    a(f"""v_and_b32 v{e}, 3, v{vL}
    v_bfe_u32 v{p}, v{vL}, 2, 1
    v_lshl_add_u32 v{e}, v{p}, 3, v{e}
    v_bfe_u32 v{p}, v{vL}, 3, 1
    v_lshl_add_u32 v{e}, v{p}, 2, v{e}
    s_lshl_b32 s3, s{sGrp}, 4
    v_add_u32 v{e}, s3, v{e}
    s_cmp_eq_u32 s{sGrp}, 0
    s_cselect_b32 s6, 0x10000, 0
    s_mov_b32 s7, s6
    v_mov_b32 v{p}, 288
    v_cndmask_b32 v{e}, v{e}, v{p}, s[6:7]
    s_or_b32 s6, s6, 0xffff
    s_mov_b32 s7, s6
    v_mov_b32 v{p}, 144
    v_cndmask_b32 v{p}, v{p}, 0, s[6:7]
    v_lshrrev_b32 v{co}, 5, v{vL}
    v_lshlrev_b32 v{co}, 3, v{co}
    s_lshl_b32 s3, s{sRot}, 6
    v_add_u32 v{co}, s3, v{co}
    v_mad_u32_u24 v{p}, v{e}, v{co}, v{p}
    s_mov_b32 s6, {(2**32 + 575)//576}
    s_mov_b32 s7, {f2u(1.0/576)}""")
    def cosv(dst, src):
        a(f"""v_mul_hi_u32 v{x1}, v{src}, s6
        v_mul_u32_u24 v{x1}, 576, v{x1}
        v_sub_u32 v{x1}, v{src}, v{x1}
        v_cvt_f32_u32 v{x1}, v{x1}
        v_mul_f32 v{x1}, s7, v{x1}
        v_cos_f32 v{dst}, v{x1}""")
    cosv(C, p); a(f"v_add_u32 v{p}, v{p}, v{e}"); cosv(C + 1, p)
    a(f"v_mul_u32_u24 v{co}, 15, v{e}\nv_add_u32 v{p}, v{p}, v{co}")
    cosv(C + 8, p); a(f"v_add_u32 v{p}, v{p}, v{e}"); cosv(C + 9, p)
    cosv(x0, e)
    a(f"v_lshlrev_b32 v{co}, 4, v{e}\nv_add_f32 v{x0}, v{x0}, v{x0}")
    cosv(co, co)
    for j in range(2, 8):
        for k in range(2): a(f"v_fma_f32 v{C+8*k+j}, v{x0}, v{C+8*k+j-1}, -v{C+8*k+j-2}")
    a(f"v_add_f32 v{co}, v{co}, v{co}\nv_lshlrev_b32 v{e}, 31, v{e}\nv_or_b32 v{e}, 1.0, v{e}\nv_xor_b32 v{x1}, 32, v{vX}")
    for k in range(18):
        c, o = C + 8*(k & 1), C + 8*(1 - (k & 1))
        for j in range(4): a(f"v_cvt_pk_bf16_f32 v{B[k]+j}, v{c+2*j}, v{c+2*j+1}")
        if k < 16:
            for j in range(8): a(f"v_fma_f32 v{c+j}, v{co}, v{o+j}, -v{c+j}")
    stamp(a, 3, "J")
    J1F = THR("jf", 3)
    if "w4wait" in EXP:
        a(f"s_cmp_lg_u32 s{sWave}, 4\ns_cbranch_scc1 f_j0\nv_mov_b32 v9, {F_DUTY}")
        lds_wait(a, "f_j00", 9, p, 1, sleep=1)
        a.label("f_j0")
    lds_wait(a, "f_j1", vF, p, J1F, sleep=1)
    stamp(a, 4, "J")
    where, issued, lg = {}, 0, []
    for k in range(36):
        while issued < 36 and free and len(lg) < 14:
            if issued == 12 and J1F < 6: a(f"ds_read_b32 v{p}, v{vF}"); lg.append("f")
            if issued == 18 and J1F < 6:
                if k < 15: break
                if "f" in lg:
                    i = lg.index("f"); a(f"s_waitcnt lgkmcnt({len(lg) - 1 - i})"); del lg[:i + 1]
                a(f"v_cmp_gt_i32 vcc, 6, v{p}\ns_cbranch_vccz f_j2_ok")
                lds_wait(a, "f_j2", vF, p, 6)
                a.label("f_j2_ok")
            where[issued] = free.pop(0)
            a(f"ds_read_b128 v[{where[issued]}:{where[issued]+3}], v{x1 if issued & 1 else vX} offset:{2048*(issued>>1)}")
            lg.append(issued); issued += 1
        if k in lg:
            i = lg.index(k); a(f"s_waitcnt lgkmcnt({len(lg) - 1 - i})"); del lg[:i + 1]
        H, b = (H2 if k >= 18 else H1), B[k % 18]
        a(f"v_mfma_f32_32x32x16_bf16 v[{H}:{H+15}], v[{where[k]}:{where[k]+3}], v[{b}:{b+3}], " + ("0" if k % 18 == 0 else f"v[{H}:{H+15}]"))
        free.append(where[k])
        if 18 <= k < 27: free.append(b)
        if k == 30: load_rf(a, J_R, vL, p, "f_rf1")
    stamp(a, 5, "J")
    a("s_nop 11")
    for r in range(16): a(f"v_fmac_f32 v{H1+r}, v{e}, v{H2+r}")
    for k in range(8): a(f"v_cvt_pk_bf16_f32 v{J_HB+k}, v{H1+2*k}, v{H1+2*k+1}")

def fnet_job2(a):
    GO, vN, sGrp = J_GO, J_N, J_sG
    T1, T2, Hb, R, H1 = 32, 64, J_HB, J_R, 80
    a("s_waitcnt vmcnt(0)")
    a(f"v_mfma_f32_32x32x16_bf16 v[{T1}:{T1+15}], v[{Hb}:{Hb+3}], v[{R}:{R+3}], 0")
    a(f"v_mfma_f32_32x32x16_bf16 v[{T2}:{T2+15}], v[{Hb}:{Hb+3}], v[{R+8}:{R+11}], 0")
    a(f"v_mfma_f32_32x32x16_bf16 v[{T1}:{T1+15}], v[{Hb+4}:{Hb+7}], v[{R+4}:{R+7}], v[{T1}:{T1+15}]")
    a(f"v_mfma_f32_32x32x16_bf16 v[{T2}:{T2+15}], v[{Hb+4}:{Hb+7}], v[{R+12}:{R+15}], v[{T2}:{T2+15}]")
    a(f"""s_cmp_eq_u32 s{sGrp}, 0
    s_cselect_b32 s6, -1, 0
    s_mov_b32 s7, 0
    s_nop 8
    v_cvt_pk_bf16_f32 v{vN}, v{T1+8}, v{T2+8}
    v_cndmask_b32 v{T1+8}, v{T1+8}, 0, s[6:7]
    v_cndmask_b32 v{T2+8}, v{T2+8}, 0, s[6:7]""")
    for kind, (op, x, y, order) in enumerate((("v_add_f32", T1, T2+8, 1), ("v_sub_f32", T2, T1+8, 1), ("v_sub_f32", T1, T2+8, -1), ("v_add_f32", T2, T1+8, -1))):
        for r in range(8): a(f"{op} v{H1+r}, v{x+r}, v{y+r}")
        for k in range(4):
            i0, i1 = (2*k, 2*k+1) if order > 0 else (7-2*k, 6-2*k)
            a(f"v_cvt_pk_bf16_f32 v{GO[kind]+k}, v{H1+i0}, v{H1+i1}")

hSm, hSx, hSg, hGr, hGs, hW2, hGa, hPr, hXc, hTa, hMt, hMk, hS2 = 100, 103, 106, 109, 110, 111, 112, 113, 114, 115, 116, 117, 118
hL16, hTr, hTw, hOx, hTg, hOo, hOw, hOr = 156, 157, 158, 159, 160, 161, 164, 165
OUTB = 56*1024
def helper_setup(a, t0, t1, t2, t3):
    for i in range(3):
        a(f"s_add_u32 s6, s{sWave}, {4*i}")
        dense_pos(a, 6, t1, t0, t2)
        a(f"""v_and_b32 v{t2}, 1, v{t1}
        v_bfe_u32 v{t3}, v{t1}, 1, 2
        v_and_b32 v{t1}, 56, v{t1}
        v_lshl_add_u32 v{t1}, v{t2}, 2, v{t1}
        v_add_u32 v{t1}, v{t1}, v{t3}
        s_movk_i32 s3, {GP}
        v_mad_u32_u24 v{hSg+i}, v{t1}, s3, v{t0}
        s_movk_i32 s3, 1152
        v_lshrrev_b32 v{t2}, 4, v{t1}
        v_lshl_add_u32 v{t2}, v{t2}, 1, v{t1}
        v_mad_u32_u24 v{hSm+i}, v{t2}, s3, v{t0}
        v_lshrrev_b32 v{t2}, 1, v{t1}
        v_lshl_add_u32 v{t2}, v{t2}, 4, v{t1}
        v_add_u32 v{t2}, 16, v{t2}
        v_mad_u32_u24 v{hSx+i}, v{t2}, s3, v{t0}
        v_add_u32 v{t1}, {64*i}, v{vL}
        v_mul_u32_u24 v{t2}, 7282, v{t1}
        v_lshrrev_b32 v{t2}, 16, v{t2}
        v_lshlrev_b32 v{t1}, 4, v{t1}
        s_mov_b32 s3, {73728-144}
        v_mad_u32_u24 v{hOo+i}, v{t2}, s3, v{t1}""")
    a(f"""v_lshlrev_b32 v{hL16}, 4, v{vL}
    v_lshrrev_b32 v{t2}, 3, v{vL}
    v_xor_b32 v{t3}, v{t2}, v{vL}
    v_and_b32 v{t3}, 7, v{t3}
    v_lshlrev_b32 v{t3}, 4, v{t3}
    v_lshl_add_u32 v{t3}, v{t2}, 7, v{t3}
    s_lshl_b32 s3, s{sWave}, 12
    s_add_u32 s3, s3, {GSC}
    v_add_u32 v{hGr}, s3, v{t3}
    v_and_b32 v{t1}, 7, v{vL}
    v_lshlrev_b32 v{hTg}, 3, v{t1}
    v_lshl_add_u32 v{hS2}, v{t2}, 7, v{hTg}
    v_mul_u32_u24 v{t2}, {128*GP}, v{t2}
    v_lshl_add_u32 v{hGs}, v{t1}, 4, v{t2}
    v_lshlrev_b32 v{t1}, 2, v{t1}
    v_add_u32 v{hPr}, {F_PRG}, v{t1}
    v_and_b32 v{t1}, 12, v{t1}
    v_add_u32 v{hXc}, {F_XC}, v{t1}
    v_add_u32 v{hTa}, {F_TA}, v{t1}
    s_lshl_b32 s3, s{sWave}, 2
    s_add_u32 s6, s3, {F_TA}
    v_mov_b32 v{hMt}, s6
    s_add_u32 s6, s3, {F_KV}
    v_mov_b32 v{hMk}, s6
    v_and_b32 v{t0}, 15, v{vL}
    v_lshrrev_b32 v{t2}, 4, v{vL}
    v_lshlrev_b32 v{t1}, 2, v{t0}
    v_lshl_add_u32 v{hOx}, v{t2}, 9, v{t1}
    s_lshl_b32 s3, s{sWave}, 6
    s_add_u32 s3, s3, {F_G}
    v_add_u32 v{hGa}, s3, v{t1}
    s_and_b32 s3, s{sWave}, 1
    s_lshl_b32 s3, s3, 22
    v_lshlrev_b32 v{t1}, 18, v{t0}
    v_lshl_add_u32 v{t1}, v{t2}, 4, v{t1}
    v_add_u32 v{hW2}, s3, v{t1}
    s_mul_i32 s3, s{sWave}, 2304
    s_add_u32 s3, s3, {OUTB}
    v_mul_u32_u24 v{t1}, 144, v{t0}
    v_lshl_add_u32 v{t1}, v{t2}, 3, v{t1}
    v_add_u32 v{hOw}, s3, v{t1}
    v_add_u32 v{hOr}, s3, v{hL16}
    v_bfe_u32 v{t3}, v{vL}, 2, 2
    v_lshl_add_u32 v{t2}, v{t2}, 2, v{t3}
    v_mul_u32_u24 v{t2}, 288, v{t2}
    v_and_b32 v{t3}, 3, v{vL}
    v_lshl_add_u32 v{hTr}, v{t3}, 3, v{t2}
    v_add_u32 v{hTw}, {LW}, v{hTr}""")

def gen():
    a = Asm()
    a.label("f_code")
    a("s_cmp_ge_u32 s2, 256\ns_cbranch_scc1 f_end")
    stamp(a, 0)
    a("s_load_dwordx2 s[52:53], s[0:1], 104\ns_load_dwordx16 s[16:31], s[0:1], 0\ns_load_dwordx8 s[32:39], s[0:1], 64")
    a(f"""v_lshrrev_b32 v2, 6, v0
    v_and_b32 v{vL}, 63, v0
    v_readfirstlane_b32 s{sWave}, v2
    s_bfe_u32 s3, s2, 0x20003
    s_lshr_b32 s{sRot}, s2, 6
    s_add_u32 s{sRot}, s{sRot}, s3
    s_and_b32 s{sRot}, s{sRot}, 3
    s_lshl_b32 s{sRot}, s{sRot}, 1
    {"s_bfe_u32 s6, s2, 0x10005" if "rot8" in EXP else ""}
    {"s_add_u32 s%d, s%d, s6" % (sRot, sRot) if "rot8" in EXP else ""}
    {"s_mov_b32 s%d, 0" % sRot if "norot" in EXP else ""}
    s_and_b32 s{sT1}, s2, 7
    s_lshl_b32 s3, s3, 3
    s_add_u32 s{sT1}, s{sT1}, s3
    s_lshr_b32 s{sJ}, s2, 5
    s_mov_b32 s{sHi}, 0
    {"s_waitcnt lgkmcnt(0)" if G0.STAMP and 0 else ""}
    s_mov_b32 s{sHi+1}, -1
    s_cmp_ge_u32 s{sWave}, 4
    s_cbranch_scc1 f_att
    s_setprio 3
    s_cmp_eq_u32 s{sWave}, 0
    s_cbranch_scc1 f_duty""")
    def common_srd():
        a("s_waitcnt lgkmcnt(0)")
        a(f"s_load_dwordx2 s[{sNon}:{sNon+1}], s[52:53], {EP}")
        srd(a, sWS, 52, WS_SIZE)
    def nonce():
        a(f"s_add_u32 s{sNon}, s{sNon}, 1")
    t0, t1, t2, t3 = 8, 9, 10, 11
    vF = 4
    vXs, vDs, vW = 2, 3, 12
    sG_, sXo, sDa, sDb, sDs, sM, sXp = 70, 71, 72, 73, 74, 75, 76
    a(f"s_sub_u32 s{sG_}, s{sWave}, 1")
    xsrc(a, vXs, t0, t1)
    a(f"""v_and_b32 v{t2}, 3, v{vL}
    v_mul_u32_u24 v{t1}, 36, v{t1}
    v_lshl_add_u32 v{vDs}, v{t2}, 4, v{t1}
    s_and_b32 s{sA}, s{sJ}, 1
    s_mul_i32 s{sM}, s{sA}, 36864
    s_lshl_b32 s{sA}, s{sA}, 5
    s_add_u32 s{sA}, s{sA}, s{sT1}
    s_mul_i32 s{sXo}, s{sA}, 1152
    s_cmp_lt_u32 s{sJ}, 4
    s_cselect_b32 s{sRB+2}, {576*36}, 0
    s_cselect_b32 s{sDa}, -1, 0
    s_mov_b32 s{sDb}, {F_DUMP}
    s_cmov_b32 s{sDb}, {LD}
    s_mov_b32 s{sRA+2}, {2048*1152}
    s_mov_b32 s{sRA+3}, 0x20000
    s_mov_b32 s{sRB+3}, 0x20000
    s_mov_b32 s{sB}, s{sG_}
    s_barrier
    s_cmp_lt_u32 s{sJ}, 2
    s_waitcnt lgkmcnt(0)
    s_cselect_b64 s[{sRB}:{sRB+1}], s[30:31], s[32:33]
    s_mov_b64 s[{sRA}:{sRA+1}], s[16:17]""")
    stamp(a, 1, "P")
    TD, TW = THR("td", 0), THR("tw", 0)
    def lround(th=""):
        a(f"""s_lshl_b32 s{sC}, s{sRot}, 1
        s_add_u32 s{sC}, s{sC}, s{sB}
        s_cmp_ge_u32 s{sC}, 18
        s_cselect_b32 s3, 18, 0
        s_sub_u32 s{sC}, s{sC}, s3
        s_lshl_b32 s{sD}, s{sB}, 11
        s_add_u32 m0, s{sD}, s{sM}
        s_lshl_b32 s3, s{sC}, 6
        s_add_u32 s3, s3, s{sXo}
        {th}
        buffer_load_dwordx4 v{vXs}, s[{sRA}:{sRA+3}], s3 offen lds
        s_add_u32 m0, m0, 1024
        s_add_u32 s3, s3, 1179648
        {th}
        buffer_load_dwordx4 v{vXs}, s[{sRA}:{sRA+3}], s3 offen lds
        s_and_b32 s3, s{sD}, s{sDa}
        s_add_u32 m0, s3, s{sDb}
        s_mul_i32 s3, s{sC}, 1152
        {th}
        buffer_load_dwordx4 v{vDs}, s[{sRB}:{sRB+3}], s3 offen lds
        s_add_u32 m0, m0, 448
        {th or "s_nop 0"}
        buffer_load_dwordx4 v{vDs}, s[{sRB}:{sRB+3}], s3 offen offset:576 lds
        s_add_u32 s{sB}, s{sB}, 3""")
    a.label("f_lL")
    lround()
    NR0 = 3 if not TD else max(1, TD // 4)
    a(f"s_cmp_lt_u32 s{sB}, {3*NR0}\ns_cbranch_scc1 f_lL")
    stamp(a, 5, "P")
    a(f"s_load_dwordx2 s[{sNon}:{sNon+1}], s[52:53], {EP}")
    srd(a, sWS, 52, WS_SIZE); srd(a, sRD, 28, 576*1152)
    for i in range(3):
        a(f"s_mul_i32 s{sC}, s{sG_}, 3\ns_add_u32 s{sC}, s{sC}, {i}")
        dense_pos(a, sC, t1, t0, t2)
        a(f"""v_and_b32 v{t2}, 3, v{t1}
        v_bfe_u32 v{t3}, v{t1}, 2, 2
        v_and_b32 v{t1}, 48, v{t1}
        v_lshl_add_u32 v{t1}, v{t2}, 2, v{t1}
        v_add_u32 v{t1}, v{t1}, v{t3}
        s_movk_i32 s3, 1152
        v_mad_u32_u24 v{vW+i}, v{t1}, s3, v{t0}""")
    sM2 = 77
    a(f"""s_lshl_b32 s3, s{sG_}, 2
    s_add_u32 s3, s3, {F_LD}
    v_mov_b32 v{vF}, s3
    v_mov_b32 v6, 1
    v_mov_b32 v5, {F_DUTY}
    s_mul_i32 s{sE}, s{sJ}, 144
    s_mul_i32 s{sF}, s{sG_}, 3072
    s_and_b32 s{sA}, s{sJ}, 1
    s_xor_b32 s{sA}, s{sA}, 1
    s_mul_i32 s{sM2}, s{sA}, 36864
    s_lshl_b32 s3, s{sG_}, 10
    s_add_u32 s{sM2}, s{sM2}, s3
    s_lshl_b32 s{sA}, s{sA}, 5
    s_add_u32 s{sA}, s{sA}, s{sT1}
    s_mul_i32 s{sXp}, s{sA}, 1152
    s_mul_i32 s3, s{sG_}, 1179648
    s_add_u32 s{sXp}, s{sXp}, s3""")
    a(f"s_cmp_lg_u32 s{sWave}, 3\ns_cbranch_scc1 f_lM")
    srd(a, sRC, 36, 1152)
    for i in range(2):
        a(f"""s_lshl_b32 s3, s{sRot}, 7
        s_add_u32 s3, s3, {1024*i}
        v_lshlrev_b32 v{t1}, 4, v{vL}
        v_add_u32 v{t1}, s3, v{t1}
        v_subrev_u32 v{t2}, 1152, v{t1}
        v_min_u32 v{t1}, v{t1}, v{t2}
        s_mov_b32 m0, {LGATE + 1024*i}
        s_nop 0""")
        a(f"buffer_load_dwordx4 v{t1}, s[{sRC}:{sRC+3}], 0 offen lds")
    a.label("f_lM")
    if not TD:
        a(f"s_waitcnt vmcnt(8)\nds_write_b32 v{vF}, v6\nv_add_u32 v6, 1, v6")
        lround()
    else:
        lround(f"s_waitcnt vmcnt({TD-1})")
        a(f"s_waitcnt vmcnt({4*NR0})\nds_write_b32 v{vF}, v6\nv_add_u32 v6, 1, v6")
    a(f"s_cmp_lt_u32 s{sB}, 18\ns_cbranch_scc1 f_lM")
    for r in range(6 - NR0, 6): a.vm_note(f"d{r}", 4)
    stamp(a, 2, "P")
    def ldflag(tag, val):
        a(f"v_mov_b32 v{t1}, {val}")
        if tag in a.vm: a.vm_wait(tag)
        a(f"ds_write_b32 v{vF}, v{t1}")
        if val in (4, 5, 6, 7): stamp(a, val - 2, "D")
    def thr():
        if TW and len(a.vm) >= TW:
            a(f"s_waitcnt vmcnt({TW-1})"); a.vm = a.vm[len(a.vm) - (TW-1):]
            done = [t for t in pend if t not in a.vm]
            if done:
                ldflag(done[-1], val_of(done[-1]))
                for t in done: pend.remove(t)
    pend = []
    val_of = lambda t: int(t[1:]) + (1 if t[0] == "d" else QF)
    def chunk(c, withx):
        base = LW + 9216*c if c < 5 else LD + 9216*(c-5)
        a(f"""s_add_u32 s{sC}, s{sRot}, {c}
        s_cmp_ge_u32 s{sC}, 9
        s_cselect_b32 s3, 9, 0
        s_sub_u32 s{sC}, s{sC}, s3""")
        if withx and "nox" not in EXP:
            a(f"s_add_u32 m0, s{sM2}, {4096*c}\ns_lshl_b32 s3, s{sC}, 7\ns_add_u32 s3, s3, s{sXp}")
            thr()
            a.vmem(f"buffer_load_dwordx4 v{vXs}, s[{sRA}:{sRA+3}], s3 offen lds", f"c{c}")
            a("s_add_u32 m0, m0, 1984\ns_nop 0")
            thr()
            a.vmem(f"buffer_load_dwordx4 v{vXs}, s[{sRA}:{sRA+3}], s3 offen offset:64 lds", f"c{c}")
        a(f"s_add_u32 m0, s{sF}, {base}\ns_mul_i32 s3, s{sC}, 73728\ns_add_u32 s3, s3, s{sE}")
        for i in range(3):
            if i: a("s_add_u32 m0, m0, 1024\ns_nop 0")
            thr()
            a.vmem(f"buffer_load_dwordx4 v{vW+i}, s[{sRD}:{sRD+3}], s3 offen lds", f"c{c}")
    def chunks(withx, lab):
        if TW:
            pend[:] = [f"d{r}" for r in range(6 - NR0, 6)]
            for c in range(9):
                if c == 5: lds_wait(a, lab, 5, t1, 1)
                chunk(c, withx)
                pend.append(f"c{c}")
            stamp(a, 3, "P")
            for t in list(pend): ldflag(t, val_of(t))
            stamp(a, 4, "P")
            return
        if "d3" in a.vm: ldflag("d3", 4)
        if "pz" in EXP:
            ldflag("d4", 5); ldflag("d5", 6)
            lds_wait(a, lab + "z", 5, t1, THR("pz", 2) if False else (1 if "pz1" in EXP else 2), sleep=1)
        chunk(0, withx)
        if "pz" not in EXP: ldflag("d4", 5); ldflag("d5", 6)
        chunk(1, withx)
        D = 2 if "deep" in EXP else 1
        if D == 1: ldflag("c0", QF)
        for c in range(2, 9):
            if c == 5 and not THR("pc", 0): lds_wait(a, lab, 5, t1, 1)
            if c == THR("pc", 0): lds_wait(a, lab, 5, t1, 2, sleep=1)
            chunk(c, withx)
            if c >= D: ldflag(f"c{c-D}", QF + c - D)
        stamp(a, 3, "P")
        for c in range(9 - D, 9): ldflag(f"c{c}", QF + c)
        stamp(a, 4, "P")
        if "only" in EXP:
            G0.stamp_end(a, 0, sWS, sWave); a("s_endpgm")
    vml = list(a.vm)
    a(f"s_cmp_eq_u32 s{sWave}, 3\ns_cbranch_scc1 f_l3")
    chunks(True, "f_l1w")
    a("s_branch f_l4")
    a.label("f_l3")
    a.vm = list(vml)
    chunks(False, "f_l3w")
    FR = 32
    a.label("f_l4")
    a(f"v_lshlrev_b32 v{hL16}, 4, v{vL}\ns_lshl_b32 s3, s{sWave}, 2\ns_add_u32 s3, s3, {F_KV}\nv_mov_b32 v{hMk}, s3")
    one, val = 6, 7
    def kv_first(lab):
        a.vm = []
        a(f"""v_and_b32 v{t1}, 15, v{vL}
        v_min_u32 v{t1}, 8, v{t1}
        v_lshlrev_b32 v{t1}, 2, v{t1}
        v_add_u32 v{t1}, {F_PRG}, v{t1}
        s_mul_i32 s{sA}, s{sT1}, {2*TILE}
        s_lshl_b32 s{sB}, s{sWave}, 12
        s_add_u32 m0, s{sB}, {LW}
        s_add_u32 s{sA}, s{sA}, s{sB}
        s_add_u32 s{sA}, s{sA}, {KVG}
        v_mov_b32 v{one}, 1
        v_mov_b32 v{vF}, {F_S1}""")
        stamp(a, 1, "K")
        lds_wait(a, lab, t1, t2, 1)
        stamp(a, 2, "K")
        for k in range(4): a(f"buffer_load_dwordx4 v{hL16}, s[{sWS}:{sWS+3}], s{sA} offen offset:{1024*k} {'' if 'k0plain' in EXP else 'sc1'} lds")
    kv_first("f_kv2")
    nonce()
    if "su0" not in EXP: helper_setup(a, t0, t1, t2, t3)
    a(f"s_waitcnt vmcnt(0)\nds_write_b32 v{hMk}, v{one}")
    if "su0" in EXP: helper_setup(a, t0, t1, t2, t3)
    a("s_branch f_h1")

    a.label("f_duty")
    a.vm = []
    vR0, vR1, vD0, vD1 = 2, 3, 6, 7
    ACC, R = 16, 80
    sRb, sGrp = 70, 76
    a(f"""v_lshlrev_b32 v{t0}, 2, v{vL}
    v_add_u32 v{t0}, {FLG}, v{t0}
    s_cmp_ge_u32 s{sJ}, 4
    s_cselect_b32 s6, {1 << ((F_DUTY - FLG)//4)}, 0
    s_mov_b32 s7, {1 << ((F_BIG - FLG)//4 - 32)}
    v_cndmask_b32 v{t1}, 0, 2, s[6:7]
    ds_write_b32 v{t0}, v{t1}""")
    xread(a, vR0, vR1, t2, t3)
    common_srd()
    a("s_barrier")
    a(f"""s_and_b32 s{sA}, s{sJ}, 1
    s_lshl_b32 s{sRb}, s{sA}, 5
    s_add_u32 s{sRb}, s{sRb}, s{sT1}
    s_mul_i32 s{sA}, s{sA}, 36864
    v_add_u32 v{vR0}, s{sA}, v{vR0}
    v_xor_b32 v{vR1}, 32, v{vR0}
    v_and_b32 v{vF}, 3, v{vL}
    v_min_u32 v{vF}, 2, v{vF}
    v_lshlrev_b32 v{vF}, 2, v{vF}
    v_add_u32 v{vF}, {F_LD}, v{vF}
    s_cmp_ge_u32 s{sJ}, 4
    s_cbranch_scc1 f_cF
    v_and_b32 v{t2}, 3, v{vL}
    v_and_b32 v{t0}, 1, v{vL}
    v_bfe_u32 v{t3}, v{vL}, 1, 1
    v_lshl_or_b32 v{t0}, v{t0}, 1, v{t3}
    v_bfe_u32 v{t3}, v{vL}, 4, 1
    v_cmp_eq_u32 vcc, 0, v{t3}
    v_bfe_u32 v{vD0}, v{vL}, 2, 2
    v_lshrrev_b32 v{vD1}, 5, v{vL}
    v_cndmask_b32 v{t0}, v{t2}, v{t0}, vcc
    v_lshl_add_u32 v{vD0}, v{vD1}, 3, v{vD0}
    v_lshlrev_b32 v{vD0}, 6, v{vD0}
    v_lshl_add_u32 v{vD0}, v{t3}, 5, v{vD0}
    v_lshl_add_u32 v{vD0}, v{t0}, 3, v{vD0}
    v_add_u32 v{vD0}, {LD}, v{vD0}
    s_cmp_ge_u32 s{sJ}, 2
    s_cbranch_scc1 f_cV""")
    def duty_chain(kind, ACC=ACC, vR0=vR0, vR1=vR1, vD0=vD0):
        lg = []
        def rd(txt, tag): a(txt); lg.append(tag)
        def wait(tag):
            i = max(k for k, t in enumerate(lg) if t == tag)
            a(f"s_waitcnt lgkmcnt({len(lg) - 1 - i})"); del lg[:i + 1]
        def reads(s):
            b = FR + 16*(s % 3)
            for p in range(2):
                rd(f"ds_read_b128 v[{b+8*p}:{b+8*p+3}], v{vR1 if p else vR0} offset:{2048*s}", (s, p))
                if kind == "F": rd(f"ds_read_b128 v[{b+8*p+4}:{b+8*p+7}], v{vD1 if p else vD0} offset:{2048*s}", (s, p))
                elif kind == "G": rd(f"ds_read_b128 v[{b+8*p+4}:{b+8*p+7}], v{vD0} offset:{64*s+32*p}", (s, p))
                else:
                    rd(f"ds_read_b64_tr_b16 v[{b+8*p+4}:{b+8*p+5}], v{vD0} offset:{2048*s+1024*p}", (s, p))
                    rd(f"ds_read_b64_tr_b16 v[{b+8*p+6}:{b+8*p+7}], v{vD0} offset:{2048*s+1024*p+256}", (s, p))
        if kind != "G":
            ST = {0: [1, 2, 3, 4, 5, 6], 2: [3, 3, 3, 6, 6, 6], 3: [2, 2, 4, 4, 6, 6], 1: [6]*6}[THR("ds", 3)]
            lds_wait(a, f"f_d{kind}0", vF, t0, ST[0])
            stamp(a, 1, "P"); stamp(a, 1, "D")
        reads(0)
        if kind != "G" and ST[1] > ST[0]: rd(f"ds_read_b32 v{t0}, v{vF}", "f")
        reads(1)
        for s in range(18):
            if kind != "G" and s % 3 == 1 and s < 15 and ST[s//3 + 1] > ST[s//3]:
                if "f" in lg: wait("f")
                a(f"v_cmp_gt_i32 vcc, {ST[s//3 + 1]}, v{t0}\ns_cbranch_vccz f_d{kind}{s}_ok")
                lds_wait(a, f"f_d{kind}{s}", vF, t0, ST[s//3 + 1])
                a.label(f"f_d{kind}{s}_ok")
                if s//3 in (0, 2, 3, 4): stamp(a, {0: 2, 2: 3, 3: 4, 4: 5}[s//3], "D")
            b = FR + 16*(s % 3)
            for p in range(2):
                if (s, p) in lg: wait((s, p))
                if p == 1:
                    if kind != "G" and s % 3 == 0 and 0 < s < 15 and ST[s//3 + 1] > ST[s//3]: rd(f"ds_read_b32 v{t0}, v{vF}", "f")
                    if s + 2 < 18: reads(s + 2)
                    assert len(lg) <= 15
                X, D = b + 8*p, b + 8*p + 4
                A, B = (D, X) if kind in "KG" else (X, D)
                a(f"v_mfma_f32_32x32x16_bf16 v[{ACC}:{ACC+15}], v[{A}:{A+3}], v[{B}:{B+3}], " + ("0" if s + p == 0 else f"v[{ACC}:{ACC+15}]"))
        if kind != "G":
            a(f"v_mov_b32 v{t0}, {F_DUTY}\nv_mov_b32 v{t1}, 1\nds_write_b32 v{t0}, v{t1}")
            nonce()
            stamp(a, 2); stamp(a, 2, "P"); stamp(a, 6, "D")
    def kv_off():
        a(f"""s_and_b32 s{sA}, s{sJ}, 1
        s_lshl_b32 s{sB}, s{sT1}, 1
        s_add_u32 s{sA}, s{sA}, s{sB}
        s_mul_i32 s{sF}, s{sA}, {TILE}
        s_add_u32 s{sF}, s{sF}, {KVG}
        s_add_u32 s{sE}, s{sF}, {64*TILE}""")
    kv_off()
    a(f"""v_lshlrev_b32 v14, 4, v{vL}
    v_lshlrev_b32 v15, 2, v{vL}
    v_and_b32 v13, 124, v15
    v_lshrrev_b32 v12, 5, v{vL}
    v_lshl_add_u32 v13, v12, 13, v13
    s_lshl_b32 s{sA}, s{sA}, 7
    s_add_u32 s{sA}, s{sA}, {KMG}""")
    duty_chain("K")
    a("s_nop 7")
    for k in range(5): a(f"v_cvt_pk_bf16_f32 v{FR+k}, v{ACC+2*k}, v{ACC+2*k+1}")
    for s in ((sF,) if 'nodup' in EXP else (sF, sE)): a(f"buffer_store_dwordx4 v[{FR}:{FR+3}], v14, s[{sWS}:{sWS+3}], s{s} offen sc1")
    a(f"v_mul_f32 v{t3}, v{ACC}, v{ACC}")
    for r in range(1, 8): a(f"v_fmac_f32 v{t3}, v{ACC+r}, v{ACC+r}")
    a("s_mov_b32 exec_hi, 0")
    for s in ((sF,) if 'nodup' in EXP else (sF, sE)): a(f"buffer_store_dword v{FR+4}, v15, s[{sWS}:{sWS+3}], s{s} offen offset:1024 sc1")
    a(f"""v_fmac_f32 v{t3}, v{ACC+8}, v{ACC+8}
    v_fmac_f32 v{t3}, v{ACC+9}, v{ACC+9}
    s_mov_b64 exec, -1
    v_mov_b32 v{t0}, v{t3}
    s_nop 1
    v_permlane32_swap_b32 v{t0}, v{t3}
    v_add_f32 v{t3}, v{t0}, v{t3}""")
    a(f"buffer_store_dword v{t3}, v13, s[{sWS}:{sWS+3}], s{sA} offen sc1\ns_branch f_dP")
    a.label("f_cV")
    kv_off()
    a(f"""v_and_b32 v{t0}, 51, v{vL}
    v_bfe_u32 v{t1}, v{vL}, 2, 1
    v_lshl_add_u32 v{t0}, v{t1}, 3, v{t0}
    v_bfe_u32 v{t1}, v{vL}, 3, 1
    v_lshl_add_u32 v{t0}, v{t1}, 2, v{t0}""")
    xread(a, vR0, None, t2, t3, t0)
    a(f"s_and_b32 s3, s{sJ}, 1\ns_mul_i32 s3, s3, 36864\nv_add_u32 v{vR0}, s3, v{vR0}\nv_xor_b32 v{vR1}, 32, v{vR0}")
    a(f"""v_and_b32 v{t0}, 31, v{vL}
    v_lshrrev_b32 v{t2}, 5, v{vL}
    v_mul_u32_u24 v14, 19, v{t2}
    v_add_u32 v14, v14, v{t0}
    v_add_u32 v{t2}, 38, v{t2}
    v_cmp_eq_u32 vcc, 19, v{t0}
    v_mov_b32 v{t3}, 0x3f803f80
    s_nop 0
    v_cndmask_b32 v14, v14, v{t2}, vcc
    v_cndmask_b32 v80, v{t3}, 0, vcc
    v_lshlrev_b32 v14, 4, v14""")
    for k in range(1, 8): a(f"v_mov_b32 v{80+k}, v80")
    duty_chain("V")
    a("s_mov_b32 exec_lo, 0x3ffff\ns_mov_b32 exec_hi, 0x3ffff\ns_nop 5")
    for k in range(8): a(f"v_cvt_pk_bf16_f32 v{80+k}, v{ACC+2*k}, v{ACC+2*k+1}")
    a("s_mov_b32 exec_lo, 0xfffff\ns_mov_b32 exec_hi, 0xfffff")
    for s in (sF, sE):
        for u in range(2): a(f"buffer_store_dwordx4 v[{80+4*u}:{83+4*u}], v14, s[{sWS}:{sWS+3}], s{s} offen offset:{1152+VB*u} sc1")
    a("s_mov_b64 exec, -1")
    a.label("f_dP")
    stamp(a, 3, "P")
    a("s_waitcnt vmcnt(0)")
    tag_signal(a, FL1, 8, t0, t2, True)
    if "fl0" in EXP:
        a(f"s_add_u32 s{sG}, s{sG}, {(FL0 - FL1) & 0xffffffff}\ns_mov_b64 exec, 255\nbuffer_store_dwordx2 v[{t2}:{t2+1}], v{t0}, s[{sWS}:{sWS+3}], s{sG} offen sc1\ns_mov_b64 exec, -1")
    if THR("pc", 0) or "pz" in EXP: a(f"v_mov_b32 v{t0}, {F_DUTY}\nv_mov_b32 v{t1}, 2\nds_write_b32 v{t0}, v{t1}")
    stamp(a, 3); stamp(a, 4, "P")
    a("s_branch f_dS")
    a.label("f_cF")
    a(f"s_bfe_u32 s{sGrp}, s{sJ}, 0x10001\ns_add_u32 s{sGrp}, s{sGrp}, 16\ns_waitcnt lgkmcnt(0)")
    nonce()
    lds_wait(a, "f_cF1", vF, t0, QF + 1, sleep=4)
    a.label("f_dS")
    helper_setup(a, t0, t1, t2, t3)
    a(f"""v_bfe_u32 v{t1}, v{vL}, 2, 2
    v_add_u32 v{t1}, s{sT1}, v{t1}
    v_and_b32 v{t1}, 31, v{t1}
    v_lshlrev_b32 v{t1}, 7, v{t1}
    v_and_b32 v{t2}, 3, v{vL}
    v_lshl_add_u32 v{t1}, v{t2}, 3, v{t1}
    s_and_b32 s{sD}, s{sT1}, 7
    s_lshl_b32 s{sD}, s{sD}, 12
    s_add_u32 s{sD}, s{sD}, {FL1}""")
    tag_wait(a, "f_m2", t1, sD, 1, FR, sleep=1, lanes=16 if 'noat' not in EXP else 0)
    vKM = 40
    a(f"""v_mov_b32 v{t1}, {F_S1F}
    v_mov_b32 v{t2}, 1
    ds_write_b32 v{t1}, v{t2}
    s_lshl_b32 s3, s{sT1}, 8
    s_add_u32 s3, s3, {KMG}
    buffer_load_dwordx4 v[{vKM}:{vKM+3}], v{hL16}, s[{sWS}:{sWS+3}], s3 offen sc1
    v_lshrrev_b32 v14, 2, v{vL}
    v_lshlrev_b32 v14, 7, v14
    v_and_b32 v{t2}, 3, v{vL}
    v_lshl_add_u32 v14, v{t2}, 3, v14
""")
    if "fl0" in EXP: a(f"s_add_u32 s{sD}, s{sD}, {(FL0 - FL1) & 0xffffffff}")
    def look():
        a(f"""buffer_load_dwordx2 v[{FR}:{FR+1}], v14, s[{sWS}:{sWS+3}], s{sD} offen sc1
        buffer_load_dwordx2 v[{FR+2}:{FR+3}], v14, s[{sWS}:{sWS+3}], s{sD} offen offset:2048 sc1""")
    if "fl0" in EXP: look()
    stamp(a, 5, "P")
    kv_first("f_kv1")
    a(f"s_waitcnt vmcnt(4)\nv_max3_f32 v{vKM}, v{vKM}, v{vKM+1}, v{vKM+2}\nv_max_f32 v{vKM}, v{vKM}, v{vKM+3}")
    wave_max(a, vKM, sC)
    a(f"""v_sqrt_f32 v{t3}, s{sC}
    v_mov_b32 v{t2}, {f2u(OFFS)}
    v_mov_b32 v{t1}, {F_KC}
    v_cvt_pk_bf16_f32 v{t3}, -v{t3}, v{t2}
    ds_write_b32 v{t1}, v{t3}
    v_cmp_ne_u64 vcc, s[{sNon}:{sNon+1}], v[{FR}:{FR+1}]
    v_cmp_ne_u64 s[6:7], s[{sNon}:{sNon+1}], v[{FR+2}:{FR+3}]
    s_waitcnt vmcnt(0)
    ds_write_b32 v{hMk}, v{one}
    s_or_b64 vcc, vcc, s[6:7]
    {"s_cbranch_vccz f_m4" if "fl0" in EXP else ""}""")
    tag_wait(a, "f_m3", 14, sD, 2, FR, step=2048)
    a.label("f_m4")
    a(f"ds_write_b32 v{vF}, v{one}")
    a.label("f_h1")
    stamp(a, 6, "P"); stamp(a, 4); stamp(a, 3, "K")
    lds_wait(a, "f_h2", vF, t1, 1, sleep=1)
    lds_wait(a, "f_h2a", hPr, t1, 2, sleep=1)
    stamp(a, 1, "H"); stamp(a, 4, "K")
    due = {}
    def grp(src, dst, tag, TK=THR("tk", 3)):
        a(f"s_add_u32 m0, s{sB}, {dst}\ns_add_u32 s3, s{sA}, {src}")
        for k in range(4):
            if len(a.vm) >= TK:
                a(f"s_waitcnt vmcnt({TK-1})"); a.vm = a.vm[len(a.vm) - (TK-1):]
                for t in [t for t in due if t not in a.vm]: a(f"v_mov_b32 v{val}, {due.pop(t)}\nds_write_b32 v{hMk}, v{val}")
            a.vmem(f"buffer_load_dwordx4 v{hL16}, s[{sWS}:{sWS+3}], s3 offen offset:{1024*k} sc1 lds", tag)
    P2 = J1*TILE
    grp(16384, LW + 16384, "c1", THR("tc", 4)); due["c1"] = 2
    grp(32768, LW + 32768, "c2"); grp(P2, 0, "p0"); due["p0"] = 3
    grp(P2 + 16384, 16384, "p1"); grp(P2 + 32768, 32768, "p2")
    assert not due
    for i in (3, 4): grp(P2 + 16384*i, 16384*i, f"p{i}")
    sS2, sT = 71, 72
    a(f"""s_and_b32 s{sS2}, s{sJ}, 1
    s_lshl_b32 s{sS2}, s{sS2}, 5
    s_add_u32 s{sS2}, s{sS2}, s{sT1}
    s_mul_i32 s{sS2}, s{sS2}, {GP}
    s_add_u32 s{sS2}, s{sS2}, {GT}
    s_lshr_b32 s{sT}, s{sJ}, 1
    s_lshl_b32 s{sT}, s{sT}, 7
    s_sub_u32 s3, {GU + 448}, s{sT}
    s_cmp_lt_u32 s{sWave}, 2
    s_cselect_b32 s{sT}, s{sT}, s3
    s_add_u32 s{sT}, s{sT}, s{sS2}
    s_bitcmp1_b32 s{sWave}, 0
    s_cselect_b32 s3, {64*GP}, 0
    s_add_u32 s{sT}, s{sT}, s3""")
    if "nojob" not in EXP: lds_wait(a, "f_x3", hXc, t1, 1, sleep=2)
    for i in range(4): a(f"ds_read_b128 v[{32+4*i}:{35+4*i}], v{hGr} offset:{1024*i}")
    GOF = [48, 52, 56, 60]
    a(f"s_cmp_ge_u32 s{sJ}, 4\ns_cselect_b32 s3, s{sWave}, 1\ns_cmp_lg_u32 s3, 0\ns_cbranch_scc1 f_x6\nv_mov_b32 v{t2}, {F_XC + 20}")
    if "nojob" not in EXP: lds_wait(a, "f_x5", t2, t1, 1, sleep=2)
    a(f"v_add_u32 v{t2}, {GSC + 16384}, v{hL16}")
    for kind in range(4): a(f"ds_read_b128 v[{GOF[kind]}:{GOF[kind]+3}], v{t2} offset:{1024*kind}")
    a.label("f_x6")
    a(f"s_waitcnt lgkmcnt(0)\nds_write_b32 v{hMt}, v{one}")
    lds_wait(a, "f_x4", hTa, t1, 1, sleep=1)
    grp(P2 + 16384*5, 16384*5, "p5")
    a(f"s_cmp_ge_u32 s{sWave}, 3\ns_cbranch_scc1 f_h3")
    grp(P2 + 16384*6, 16384*6, "p6")
    a.label("f_h3")
    a(f"v_mov_b32 v{val}, 4\ns_waitcnt vmcnt(0)\nds_write_b32 v{hMk}, v{val}")
    a.vm = []
    stamp(a, 2, "H")
    for i in range(4):
        a(f"buffer_store_dwordx4 v[{32+4*i}:{35+4*i}], v{hGs}, s[{sWS}:{sWS+3}], s{sT} offen sc1")
        if i < 3: a(f"s_add_u32 s{sT}, s{sT}, {8*128*GP}")
    a(f"""s_cmp_lg_u32 s{sWave}, 0
    s_cbranch_scc1 f_h3b
    s_lshr_b32 s3, s{sJ}, 1
    s_cmp_lg_u32 s3, {THR("gj", 0)//2}
    s_cbranch_scc1 f_h3c
    v_lshlrev_b32 v{t3}, 2, v{vL}
    v_add_u32 v13, {F_G2}, v{t3}
    ds_read_b32 v13, v13
    s_lshl_b32 s{sF}, s{sRb}, 7
    s_add_u32 s{sF}, s{sF}, {GG}
    s_mov_b32 exec_hi, 0
    s_waitcnt lgkmcnt(0)
    buffer_store_dword v13, v{t3}, s[{sWS}:{sWS+3}], s{sF} offen sc1
    s_mov_b32 exec_hi, -1""")
    a.label("f_h3c")
    a(f"""v_and_b32 v{t1}, 31, v{vL}
    v_mul_u32_u24 v{t2}, {128*GP}, v{t1}
    s_cmp_ge_u32 s{sJ}, 4
    s_cbranch_scc1 f_h3a
    s_cmp_ge_u32 s{sJ}, 2
    s_cbranch_scc1 f_h3b
    v_lshlrev_b32 v{t1}, 2, v{t1}
    v_add_u32 v{t1}, {F_N}, v{t1}
    ds_read_b32 v{t1}, v{t1}
    s_add_u32 s3, s{sS2}, {64*GP}
    s_mov_b32 exec_hi, 0
    s_waitcnt lgkmcnt(0)
    buffer_store_short v{t1}, v{t2}, s[{sWS}:{sWS+3}], s{sS2} offen offset:{GU-2} sc1
    buffer_store_short_d16_hi v{t1}, v{t2}, s[{sWS}:{sWS+3}], s3 offen offset:{GU-2} sc1
    s_mov_b32 exec_hi, -1
    s_branch f_h3b""")
    a.label("f_h3a")
    a(f"""v_lshrrev_b32 v{t3}, 5, v{vL}
    v_lshlrev_b32 v{t3}, 4, v{t3}
    v_sub_u32 v{t1}, v{t2}, v{t3}
    v_add_u32 v{t2}, v{t2}, v{t3}
    v_add_u32 v{t1}, 16, v{t1}
    s_lshl_b32 s3, s{sGrp}, 5
    s_add_u32 s{sT}, s{sS2}, s3
    s_sub_u32 s{sT+1}, s{sS2}, s3
    s_add_u32 s{sT+1}, s{sT+1}, {GU + 560 - 16}""")
    for kind in range(4):
        if kind & 1: a(f"s_add_u32 s{sT + (kind >> 1)}, s{sT + (kind >> 1)}, {64*GP}")
        a(f"buffer_store_dwordx4 v[{GOF[kind]}:{GOF[kind]+3}], v{t1 if kind >> 1 else t2}, s[{sWS}:{sWS+3}], s{sT + (kind >> 1)} offen sc1")
    a.label("f_h3b")
    last_wave_signals(a, "f_h5", F_CNT2, 4, FL2, 8, t1, t2)
    stamp(a, 6)
    vG = 15
    ACC, W2, OB, AR = 16, 36, 52, 124
    sRb, sCol = 70, 71
    srd(a, sRA, 34, 576*1152); srd(a, sRB, 18, 2048*4096); srd(a, sRC, 20, 2048*4096); srd(a, sRD, 38, 2048*1152)
    a(f"""s_lshr_b32 s3, s2, 3
    s_lshl_b32 s3, s3, 2
    s_add_u32 s3, s3, s{sWave}
    s_mul_i32 s3, s3, {41*128}
    v_lshlrev_b32 v{t1}, 3, v{hL16}
    s_mov_b32 exec_hi, 0x1ff
    buffer_load_dword v14, v{t1}, s[{sRA}:{sRA+3}], s3 offen
    s_mov_b32 exec_hi, -1
    s_lshr_b32 s{sRb}, s{sWave}, 1
    s_lshl_b32 s{sRb}, s{sRb}, 5
    s_add_u32 s{sRb}, s{sRb}, s{sT1}
    s_mul_i32 s{sCol}, s{sJ}, 144
    s_lshl_b32 s{sC}, s{sWave}, 10
    s_lshl_b32 s{sA}, s{sRb}, 12""")
    for k in range(4):
        r = sRB if k < 2 else sRC
        a(f"buffer_load_dwordx4 v[{W2+4*k}:{W2+4*k+3}], v{hW2}, s[{r}:{r+3}], s{sA} offen offset:{64*(k&1)}")
    nds = [0]
    def dstep(dst, r, vS, sc=""):
        nds[0] += 1
        for i in range(3):
            if i == 2: a(f"s_cmp_lg_u32 s{sWave}, 0\ns_cbranch_scc1 f_ds{nds[0]}")
            a(f"s_add_u32 m0, s{sC}, {dst + 4096*i}\n" + (f"s_waitcnt vmcnt({THR('tt', 3) - 1})" if THR("tt", 3) else "s_nop 0"))
            a(f"buffer_load_dwordx4 v{vS+i}, s[{r}:{r+3}], s{sB} offen {sc} lds")
        a.label(f"f_ds{nds[0]}")
    def dsaddr(m): return LW + 9216*m if m < 5 else 9216*(m - 5)
    def wo_step(m):
        a(f"s_add_u32 s{sB}, s{sJ}, {m}\ns_and_b32 s{sB}, s{sB}, 7\ns_mul_i32 s{sB}, s{sB}, {72*1152}\ns_add_u32 s{sB}, s{sB}, s{sCol}")
        dstep(dsaddr(m), sRA, hSm)
    lds_wait(a, "f_t1", hPr, t1, 3, sleep=32)
    for m in range(5): wo_step(m)
    lds_wait(a, "f_t3", hPr, t1, 4, sleep=32)
    for m in range(5, 8): wo_step(m)
    a(f"""v_mov_b32 v{vF}, {F_S2}
    s_cmp_lg_u32 s{sWave}, 3
    s_cbranch_scc1 f_t6_x
    s_and_b32 s{sD}, s{sT1}, 7
    s_lshl_b32 s{sD}, s{sD}, 12
    s_add_u32 s{sD}, s{sD}, {FL2}""")
    tag_wait(a, "f_t6", hS2, sD, 4, OB, sleep=8)
    a(f"""v_and_b32 v{t1}, 31, v{vL}
    v_lshrrev_b32 v{t2}, 5, v{vL}
    v_lshlrev_b32 v{t1}, 2, v{t1}
    v_lshl_add_u32 v{t1}, v{t2}, 12, v{t1}
    s_lshl_b32 s3, s{sT1}, 7
    s_add_u32 s3, s3, {GG}
    buffer_load_dword v{t2}, v{t1}, s[{sWS}:{sWS+3}], s3 offen sc1
    v_lshrrev_b32 v{t1}, 2, v{hL16}
    v_add_u32 v{t1}, {F_G}, v{t1}
    s_waitcnt vmcnt(0)
    ds_write_b32 v{t1}, v{t2}
    ds_write_b32 v{vF}, v{one}
    s_cmp_lg_u32 s2, 0
    s_cbranch_scc1 f_t6_x
    v_mov_b32 v{t1}, {EP}
    v_mov_b32 v{t2}, s{sNon}
    v_mov_b32 v{t3}, s{sNon+1}
    s_mov_b64 exec, 1
    buffer_store_dwordx2 v[{t2}:{t3}], v{t1}, s[{sWS}:{sWS+3}], 0 offen
    s_mov_b64 exec, -1""")
    a.label("f_t6_x")
    stamp(a, 5, "H")
    lds_wait(a, "f_t7", hPr, t1, 5, sleep=16)
    a(f"s_mov_b32 s{sB}, s{sCol}")
    dstep(dsaddr(8), sRA, hSx)
    a(f"""s_mul_i32 s{sB}, s{sT1}, {128*GP}
    s_add_u32 s{sB}, s{sB}, {GT}
    s_add_u32 s{sB}, s{sB}, s{sCol}
    s_cmp_ge_u32 s{sJ}, 4
    s_cselect_b32 s3, {GU - 2 - 576}, 0
    s_add_u32 s{sB}, s{sB}, s3""")
    lds_wait(a, "f_t8", vF, t1, 1, sleep=4)
    a(f"ds_read_b32 v{vG}, v{hGa}")
    dstep(dsaddr(9), sWS, hSg, "sc1")
    a(f"s_add_u32 s{sB}, s{sB}, {64*GP}")
    dstep(dsaddr(10), sWS, hSg, "sc1")
    a(f"""v_mov_b32 v{val}, 2
    v_mov_b32 v{vF}, {F_CNT3}
    s_lshl_b32 s{sD}, s{sWave}, 12
    s_lshl_b32 s3, s{sT1}, 7
    s_add_u32 s{sD}, s{sD}, s3
    s_add_u32 s{sD}, s{sD}, {FL3}
    s_lshl_b32 s{sA}, s{sT1}, 2
    s_add_u32 s{sA}, s{sA}, s{sWave}
    s_lshl_b32 s{sB}, s{sA}, 11
    s_and_b32 s{sB}, s{sB}, {0xfffff000}
    s_and_b32 s3, s{sWave}, 1
    s_mul_i32 s{sE}, s3, {16*73728}
    s_lshl_b32 s3, s3, 6
    s_add_u32 s{sB}, s{sB}, s3
    s_add_u32 s{sB}, s{sB}, {OX}
    s_lshl_b32 s{sA}, s{sA}, 14
    s_add_u32 s{sA}, s{sA}, {OF}
    s_mul_i32 s3, s{sRb}, 1152
    s_add_u32 s{sE}, s{sE}, s3
    s_add_u32 s{sE}, s{sE}, s{sCol}
    s_waitcnt vmcnt(0)
    ds_write_b32 v{hMt}, v{val}""")
    lds_wait(a, "f_t9", hTa, t1, 2, sleep=4)
    stamp(a, 6, "H")
    NR = 7
    def rd(f):
        ks, mu = divmod(f, 5)
        m = 9 + (ks >> 1) if ks < 4 else (ks - 4) >> 1
        v, o = (hTw, 9216*m) if m < 5 else (hTr, 9216*(m - 5))
        o += 4608*(ks & 1) + 32*mu
        r = AR + 4 * (f % 8)
        a(f"ds_read_b64_tr_b16 v[{r}:{r+1}], v{v} offset:{o}")
        a(f"ds_read_b64_tr_b16 v[{r+2}:{r+3}], v{v} offset:{o+144}")
    lds_wait(a, "f_t11", vF, t1, 4, sleep=4)
    lds_wait(a, "f_t12", vF, t1, 8, sleep=THR("cs", 1))
    if "pe" in EXP: a(f"v_mov_b32 v12, 0\nv_mov_b32 v13, 0\ns_mov_b64 exec, 0xff\nbuffer_atomic_or_x2 v[12:13], v{hTg}, s[{sWS}:{sWS+3}], s{sD} offen sc0 sc1\ns_mov_b64 exec, -1")
    for f in range(NR): rd(f)
    for f in range(110):
        ks, mu = divmod(f, 5)
        if f == 20:
            a("s_nop 3")
            for r in range(20): a(f"v_mul_f32 v{ACC+r}, v{ACC+r}, v{vG}")
            stamp12(a, 1); stamp(a, 1, "T")
            tag_wait(a, "f_t10", hTg, sD, 1, 12, sleep=1, lanes=8, sent="pe" in EXP)
            stamp12(a, 2); stamp(a, 2, "T")
            for k in range(18):
                if k >= 16:
                    for j in range(4): a.vmem(f"buffer_load_dword v{OB+4*k+j}, v{hOx}, s[{sWS}:{sWS+3}], s{sB} offen offset:{2048*(k-16) + 128*j} sc1", f"o{k}")
                    continue
                if k & 1 == 0: a(f"s_add_u32 s3, s{sJ}, {k//2}\ns_and_b32 s3, s3, 7\ns_lshl_b32 s3, s3, 11\ns_add_u32 s3, s3, s{sA}")
                a.vmem(f"buffer_load_dwordx4 v[{OB+4*k}:{OB+4*k+3}], v{hL16}, s[{sWS}:{sWS+3}], s3 offen offset:{(k&1)*1024} sc1", f"o{k}")
        if ks >= 4 and mu == 0: a.vm_wait(f"o{ks-4}")
        if ks == 4 and mu == 0: stamp(a, 3, "T")
        if ks == 21 and mu == 0: stamp(a, 4, "T")
        if f & 1 == 0: a(f"s_waitcnt lgkmcnt({2*(min(110, f + NR) - f - 2)})")
        r = AR + 4 * (f % 8)
        B = W2 + 4*ks if ks < 4 else OB + 4*(ks-4)
        ac = ACC + 4*mu
        a(f"v_mfma_f32_16x16x32_bf16 v[{ac}:{ac+3}], v[{r}:{r+3}], v[{B}:{B+3}], " + ("0" if ks == 0 else f"v[{ac}:{ac+3}]"))
        if f + NR < 110: rd(f + NR)
    stamp12(a, 3); stamp(a, 5, "T")
    a("s_nop 3")
    for mu in range(5):
        ac = ACC + 4*mu
        if mu == 4: a("s_mov_b32 exec_hi, 0")
        a(f"v_cvt_pk_bf16_f32 v{W2+2*mu}, v{ac}, v{ac+1}\nv_cvt_pk_bf16_f32 v{W2+2*mu+1}, v{ac+2}, v{ac+3}")
        a(f"ds_write_b64 v{hOw}, v[{W2+2*mu}:{W2+2*mu+1}] offset:{32*mu}")
    a("s_mov_b32 exec_hi, -1")
    for it in range(3): a(f"ds_read_b128 v[{OB+4*it}:{OB+4*it+3}], v{hOr} offset:{1024*it}")
    for it in range(3):
        a(f"s_waitcnt lgkmcnt({2-it})")
        if it == 2: a("s_mov_b64 exec, 0xffff")
        a(f"buffer_store_dwordx4 v[{OB+4*it}:{OB+4*it+3}], v{hOo+it}, s[{sRD}:{sRD+3}], s{sE} offen")
    stamp(a, 6, "T")
    G0.stamp_end(a, 0, sWS, sWave)
    a("s_endpgm")

    a.label("f_att")
    a.vm = []
    Q1, Q2, vG, aK, ak, aV = 4, 8, 10, 11, 12, 13
    vt0, vt1, vt2, vt3 = 2, 3, 14, 15
    O, S, P, K1, K2, V = 16, [32, 48, 64], [64, 72], [80, 84], [88, 90], [92, 100]
    aF, aP = 108, 109
    vW, vR0, vR1, vA0, vA1 = 110, 111, 112, 113, 114
    sW8, sRho, sHd = 70, 71, 72
    vSt = 115
    a("s_barrier")
    if "only" in EXP and "pfonly" not in EXP: a("s_endpgm")
    a(f"s_sub_u32 s{sW8}, s{sWave}, 4")
    if "xpf" in EXP:
        a(f"""s_cmp_lt_u32 s{sWave}, 8
        s_cbranch_scc1 f_pf9
        s_cmp_ge_u32 s{sWave}, 10
        s_cbranch_scc1 f_pf2
        v_mul_u32_u24 v{vt1}, 7282, v{vL}
        v_lshrrev_b32 v{vt1}, 16, v{vt1}
        v_lshlrev_b32 v{vt0}, 7, v{vL}
        s_mov_b32 s3, {36864 - 1152}
        v_mad_u32_u24 v{vt0}, v{vt1}, s3, v{vt0}
        s_lshl_b32 s3, s{sJ}, 1
        s_and_b32 s6, s{sWave}, 1
        s_add_u32 s3, s3, s6
        s_mul_i32 s3, s3, {4*36864}
        s_mul_i32 s6, s{sT1}, 1152
        s_add_u32 s3, s3, s6
        s_waitcnt lgkmcnt(0)""")
        srd(a, sRA, 16, 2048*1152)
        a(f"""s_mov_b32 exec_hi, 0xf
        buffer_load_dword v{vW}, v{vt0}, s[{sRA}:{sRA+3}], s3 offen
        s_mov_b32 exec_hi, -1
        s_branch f_pf8""")
        a.label("f_pf2")
        a(f"""s_lshr_b32 s3, s2, 3
        s_mul_i32 s3, s3, 768
        v_lshlrev_b32 v{vt0}, 7, v{vL}
        s_cmp_eq_u32 s{sWave}, 10
        s_waitcnt lgkmcnt(0)
        s_cselect_b32 s{sRA}, s30, s32
        s_cselect_b32 s{sRA+1}, s31, s33
        s_mov_b32 s{sRA+2}, {576*36}
        s_mov_b32 s{sRA+3}, 0x20000
        s_mov_b64 exec, 0x3f
        buffer_load_dword v{vW}, v{vt0}, s[{sRA}:{sRA+3}], s3 offen
        s_mov_b64 exec, -1""")
        a.label("f_pf8")
        if "wqpf" in EXP:
            srd(a, sRA, 28, 576*1152)
            a(f"""s_lshr_b32 s3, s2, 3
            s_lshl_b32 s3, s3, 2
            s_add_u32 s3, s3, s{sWave}
            s_sub_u32 s3, s3, 8
            s_mul_i32 s3, s3, {41*128}
            v_lshlrev_b32 v{vt0}, 7, v{vL}
            {"s_waitcnt vmcnt(0)" if "wqw" in EXP else ""}
            s_mov_b32 exec_hi, 0x1ff
            buffer_load_dword v{vW}, v{vt0}, s[{sRA}:{sRA+3}], s3 offen
            s_mov_b32 exec_hi, -1""")
        a.label("f_pf9")
    a("s_getpc_b64 s[4:5]")
    a.label("f_pf")
    a(f"""s_sub_u32 s4, s4, f_pf-f_code
    s_subb_u32 s5, s5, 0
    s_lshr_b32 s3, s2, 3
    s_lshl_b32 s6, s{sW8}, 6
    s_add_u32 s3, s3, s6
    v_lshlrev_b32 v{vt0}, 5, v{vL}
    v_add_u32 v{vt0}, s3, v{vt0}
    v_lshlrev_b32 v{vt0}, 7, v{vt0}
    v_min_u32 v{vt0}, rf_end-f_code-4, v{vt0}
    s_mov_b64 exec, 3
    global_load_dword v130, v{vt0}, s[4:5]
    s_mov_b64 exec, -1""")
    if "pfonly" in EXP: a("s_endpgm")
    xread(a, vR0, vR1, vt0, vt1)
    a(f"""s_lshr_b32 s{sRho}, s{sW8}, 2
    s_and_b32 s{sHd}, s{sW8}, 3
    s_mul_i32 s3, s{sRho}, 36864
    v_add_u32 v{vR0}, s3, v{vR0}
    v_xor_b32 v{vR1}, 32, v{vR0}
    s_bitcmp1_b32 s{sHd}, 0
    s_mov_b32 s{sB}, 0x34343120
    s_mov_b32 s{sC}, {LW}
    s_cmov_b32 s{sB}, 0x44423120
    s_cmov_b32 s{sC}, {LW-4}
    s_mul_i32 s3, s{sHd}, 36
    s_add_u32 s{sC}, s{sC}, s3
    v_bfe_u32 v{vt0}, v{vL}, 4, 1
    v_and_b32 v{vt1}, 3, v{vL}
    v_lshl_add_u32 v{vt0}, v{vt0}, 2, v{vt1}
    v_lshlrev_b32 v{vt0}, 2, v{vt0}
    v_lshrrev_b32 v{vt0}, v{vt0}, s{sB}
    v_and_b32 v{vt0}, 15, v{vt0}
    v_bfe_u32 v{vt1}, v{vL}, 2, 2
    v_lshrrev_b32 v{vt3}, 5, v{vL}
    v_lshl_add_u32 v{vt1}, v{vt1}, 1, v{vt3}
    v_mul_u32_u24 v{vt1}, 288, v{vt1}
    v_lshl_add_u32 v{vA0}, v{vt0}, 3, v{vt1}
    v_add_u32 v{vA0}, s{sC}, v{vA0}
    v_subrev_u32 v{vA1}, {LW-LD}, v{vA0}
    v_and_b32 v{aF}, 3, v{vL}
    v_min_u32 v{aF}, 2, v{aF}
    v_lshlrev_b32 v{aF}, 2, v{aF}
    v_add_u32 v{aF}, {F_LD}, v{aF}
    v_and_b32 v{vt2}, 31, v{vL}
    v_lshlrev_b32 v{ak}, 2, v{vt2}
    s_lshl_b32 s3, s{sW8}, 2
    s_add_u32 s3, s3, {F_PRG}
    v_mov_b32 v{aP}, s3
    v_lshlrev_b32 v{vSt}, 4, v{vL}
    v_add_u32 v{aK}, {LW}, v{vSt}
    v_add_u32 v{ak}, {LW+1024}, v{ak}
    v_cmp_eq_u32 vcc, 28, v{vt2}
    v_mul_u32_u24 v{vt0}, 19, v{vt3}
    s_nop 0
    v_cndmask_b32 v{aV}, v{vt2}, 18, vcc
    v_cmp_gt_u32 vcc, 19, v{aV}
    v_add_u32 v{aV}, v{aV}, v{vt0}
    v_subrev_u32 v{vt0}, 52, v{vL}
    v_cmp_gt_u32 s[6:7], 8, v{vt0}
    v_cndmask_b32 v{aV}, 38, v{aV}, vcc
    s_nop 0
    v_cndmask_b32 v{aV}, v{aV}, 39, s[6:7]
    v_lshlrev_b32 v{aV}, 4, v{aV}
    v_add_u32 v{aV}, {LW+1152}, v{aV}""")
    sO, sHead, vOa, vOb, vGa = 76, 73, 128, 129, 131
    a(f"""s_lshl_b32 s{sHead}, s{sJ}, 2
    s_add_u32 s{sHead}, s{sHead}, s{sHd}
    s_lshl_b32 s{sA}, s{sT1}, 1
    s_add_u32 s{sA}, s{sA}, s{sRho}
    s_lshl_b32 s{sB}, s{sA}, 12
    s_lshl_b32 s3, s{sHead}, 7
    s_add_u32 s{sB}, s{sB}, s3
    s_add_u32 s{sO+1}, s{sB}, {OX}
    s_lshl_b32 s{sA}, s{sA}, 15
    s_lshl_b32 s3, s{sHead}, 9
    s_add_u32 s{sA}, s{sA}, s3
    s_add_u32 s{sO}, s{sA}, {OF}
    v_lshlrev_b32 v{vOb}, 2, v{vt2}
    v_and_b32 v{vOa}, 15, v{vL}
    v_lshlrev_b32 v{vOa}, 4, v{vOa}
    v_bfe_u32 v{vt1}, v{vL}, 4, 1
    v_lshl_add_u32 v{vOa}, v{vt1}, 14, v{vOa}
    v_lshl_add_u32 v{vOa}, v{vt3}, 8, v{vOa}
    s_lshl_b32 s3, s{sRho}, 7
    s_add_u32 s3, s3, {F_G}
    v_add_u32 v{vGa}, s3, v{vOb}""")
    common_srd()
    GO, vN, sGrp = [116, 120, 124, 132], 130, 74
    sGi = 75
    GJ = THR("gj", 0)
    a(f"""s_mov_b32 s{sGi}, {"0x04443214" if "jw11" in EXP else "0x44443210"}
    s_cmp_ge_u32 s{sJ}, 4
    s_cmov_b32 s{sGi}, 0x44453210
    s_lshr_b32 s3, s{sJ}, 1
    s_cmp_eq_u32 s3, {GJ//2}
    s_cselect_b32 s3, 0x02000000, 0
    s_add_u32 s{sGi}, s{sGi}, s3
    s_lshl_b32 s3, s{sW8}, 2
    s_lshr_b32 s{sGi}, s{sGi}, s3
    s_and_b32 s{sGi}, s{sGi}, 15
    s_and_b32 s3, s{sJ}, 1
    s_sub_u32 s3, s3, s{sRho}
    s_mul_i32 s3, s3, 36864
    v_add_u32 v{vW}, s3, v{vR0}
    {"s_mov_b32 s%d, 4" % sGi if "nojob" in EXP else ""}
    s_cmp_eq_u32 s{sGi}, 4
    s_cbranch_scc1 {"f_wp" if "wp" in EXP else "f_a0"}
    {"s_setprio 1" if "nojprio" not in EXP else ""}
    s_cmp_eq_u32 s{sGi}, 6
    s_cbranch_scc1 f_gate
    s_lshr_b32 s{sGrp}, s{sJ}, 1
    s_add_u32 s3, s{sGrp}, 14
    s_lshl_b32 s{sGrp}, s{sGrp}, 2
    s_add_u32 s{sGrp}, s{sGrp}, s{sGi}
    s_cmp_eq_u32 s{sGi}, 5
    s_cselect_b32 s{sGrp}, s3, s{sGrp}""")
    a.label("f_job")
    fnet_job(a)
    stamp(a, 6, "J")
    a("s_branch f_a0")
    if "wp" in EXP:
        a.label("f_wp")
        a(f"s_cmp_lg_u32 s{sWave}, 11\ns_cbranch_scc1 f_a0")
        srd(a, sRA, 28, 576*1152)
        a(f"""s_lshr_b32 s3, s2, 3
        s_mul_i32 s3, s3, {162*128}
        v_lshlrev_b32 v4, 7, v{vL}""")
        lds_wait(a, "f_wp1", aF, vt0, THR("wf", 1), sleep=1)
        a(f"""buffer_load_dword v5, v4, s[{sRA}:{sRA+3}], s3 offen
        s_add_u32 s3, s3, 8192
        buffer_load_dword v5, v4, s[{sRA}:{sRA+3}], s3 offen
        s_add_u32 s3, s3, 8192
        s_mov_b32 exec_hi, 3
        buffer_load_dword v5, v4, s[{sRA}:{sRA+3}], s3 offen
        s_mov_b32 exec_hi, -1
        s_waitcnt vmcnt(0)
        s_branch f_a0""")
    a.label("f_gate")
    a(f"""v_xor_b32 v4, 32, v{vW}
    v_lshlrev_b32 v5, 4, v{vt3}
    v_add_u32 v5, {LGATE}, v5
    v_add_u32 v6, {F_G2}, v{vOb}""")
    lds_wait(a, "f_g1", aF, vt0, 6, sleep=1)
    duty_chain("G", 16, vW, 4, 5)
    a(f"""s_nop 11
    v_mul_f32 v4, {f2u(-math.log2(math.e))}, v16
    v_exp_f32 v4, v4
    s_nop 0
    v_add_f32 v4, 1.0, v4
    v_rcp_f32 v4, v4
    s_nop 0
    ds_write_b32 v6, v4""")
    a.label("f_a0")
    if "nojprio" not in EXP: a("s_setprio 0")
    if "nobprio" not in EXP: a(f"s_cmp_lg_u32 s{sGi}, 5\ns_cbranch_scc1 f_a00\ns_setprio 1"); a.label("f_a00")
    stamp(a, 1, "P")
    QA, QR = S[0], 64
    lg = []
    def qwait(tag):
        if tag in lg:
            i = max(k for k, t in enumerate(lg) if t == tag)
            a(f"s_waitcnt lgkmcnt({len(lg) - 1 - i})"); del lg[:i + 1]
    def qrd(ks):
        c, b = ks >> 2, QR + 8*(ks % 5)
        v, o = (vA0, 9216*c) if c < 5 else (vA1, 9216*(c-5))
        o += 2304*(ks & 3)
        a(f"ds_read_b64_tr_b16 v[{b}:{b+1}], v{v} offset:{o}")
        a(f"ds_read_b64_tr_b16 v[{b+2}:{b+3}], v{v} offset:{o + 144}")
        a(f"ds_read_b128 v[{b+4}:{b+7}], v{vR1 if ks & 1 else vR0} offset:{2048*(ks>>1)}")
        lg.extend([ks]*3)
        assert len(lg) <= 15
    lds_wait(a, "f_q0", aF, vt0, QF)
    nonce(); stamp(a, 2, "P")
    if "C" not in EXP: stamp(a, 1)
    for ks in range(4): qrd(ks)
    for ks in range(36):
        c, b = ks >> 2, QR + 8*(ks % 5)
        qwait(ks)
        a(f"v_mfma_f32_32x32x16_bf16 v[{QA}:{QA+15}], v[{b}:{b+3}], v[{b+4}:{b+7}], " + ("0" if ks == 0 else f"v[{QA}:{QA+15}]"))
        if ks == 7: a(f"v_mov_b32 v{vt1}, 1\nds_write_b32 v{aP}, v{vt1}"); lg.append("w"); stamp(a, 1, "K")
        if ks & 3 == 0 and c < 8:
            qwait("f")
            a(f"v_cmp_gt_i32 vcc, {QF + c + 1}, v{vt0}\ns_cbranch_vccz f_q{c+1}_ok")
            lds_wait(a, f"f_q{c+1}", aF, vt0, QF + c + 1)
            a.label(f"f_q{c+1}_ok")
            if c == 4: stamp(a, 3, "P")
        if ks & 3 == 2 and c < 7: a(f"ds_read_b32 v{vt0}, v{aF}"); lg.append("f")
        if ks + 4 < 36: qrd(ks + 4)
    stamp(a, 4, "P")
    for r in range(16): a(f"v_mov_b32 v{O+r}, 0")
    a(f"s_mov_b32 s{sB}, {f2u(CQ)}\ns_bitcmp1_b32 s{sHd}, 0\ns_cbranch_scc1 f_qodd")
    T = S[1]
    def qmove(r0, rx):
        for r in range(8): a(f"v_mul_f32 v{T+r}, s{sB}, v{QA+r0+r}")
        for r in range(2): a(f"v_mul_f32 v{T+8+r}, s{sB}, v{QA+rx+r}")
    qmove(0, 8)
    a("s_branch f_qdone")
    a.label("f_qodd")
    qmove(2, 14)
    a.label("f_qdone")
    for r in range(2): a(f"v_cndmask_b32 v{T+8+r}, v{T+8+r}, 0, s[{sHi}:{sHi+1}]")
    a(f"v_mul_f32 v{vt0}, v{T}, v{T}")
    for r in range(1, 10): a(f"v_fmac_f32 v{vt0}, v{T+r}, v{T+r}")
    for k in range(5): a(f"v_cvt_pk_bf16_f32 v{Q1+k}, v{T+2*k}, v{T+2*k+1}")
    a(f"v_mov_b32 v{vt1}, v{vt0}")
    a(f"""v_and_b32 v{aF}, 3, v{vL}
    v_lshlrev_b32 v{aF}, 2, v{aF}
    v_permlane32_swap_b32 v{vt0}, v{vt1}
    v_add_u32 v{aF}, {F_KV}, v{aF}
    v_add_f32 v{vt0}, v{vt0}, v{vt1}
    v_sqrt_f32 v{vt0}, v{vt0}
    v_mov_b32 v{vt2}, {F_KC}
    v_cvt_pk_bf16_f32 v{Q2+1}, v{vt0}, 1.0
    v_cndmask_b32 v{Q2+1}, v{Q2+1}, 0, s[{sHi}:{sHi+1}]""")
    vH0, vH1 = vR0, vR1
    a(f"v_mov_b32 v{vG}, 2\nds_write_b32 v{aP}, v{vG}")
    a(f"s_lshl_b32 s3, 1, s{sGi}\ns_and_b32 s3, s3, 0x2f\ns_cbranch_scc0 f_a8")
    fnet_job2(a)
    a.label("f_a8")
    a(f"""s_lshl_b32 s3, s{sGi}, 1
    v_lshrrev_b32 v{vH0}, 5, v{vL}
    v_add_u32 v{vH0}, s3, v{vH0}
    v_xor_b32 v{vH0}, v{vH0}, v{vL}
    v_and_b32 v{vH0}, 7, v{vH0}
    v_lshlrev_b32 v{vH0}, 4, v{vH0}
    v_lshl_add_u32 v{vH0}, v{vOb}, 5, v{vH0}
    v_add_u32 v{vH0}, {GSC}, v{vH0}
    v_xor_b32 v{vH1}, 112, v{vH0}
    v_add_u32 v{vW}, {F_N}, v{vOb}
    s_lshl_b32 s3, s{sGi}, 2
    s_add_u32 s3, s3, {F_XC}
    v_mov_b32 v{vA0}, s3
    v_mov_b32 v{vA1}, 1""")
    stamp(a, 6, "P")
    a(f"""s_cmp_lg_u32 s{sGi}, 5
    s_cbranch_scc1 f_a5
    v_and_b32 v{vH1}, 28, v{vOb}
    v_add_u32 v{vH1}, {F_PRG}, v{vH1}
    v_add_u32 v{vH0}, {GSC + 16384}, v{vSt}""")
    lds_wait(a, "f_a7", vH1, vt3, 2)
    for kind in range(4): a(f"ds_write_b128 v{vH0}, v[{GO[kind]}:{GO[kind]+3}] offset:{1024*kind}")
    a(f"ds_write_b32 v{vA0}, v{vA1}")
    a.label("f_a5")
    stamp(a, 2, "K")
    lds_wait(a, "f_a6", aF, vt3, 1)
    stamp(a, 3, "K")
    a(f"""s_setprio {PRIO[0]}""")
    stamp(a, 3)
    if G0.STAMP and "C" in EXP: a("s_memtime s[84:85]")
    base = {aK: LW, ak: LW, aV: LW}
    def off(v, j, extra=0):
        o = ltile(j) + extra - base[v]
        if not 0 <= o < 65536:
            nb = ltile(j)
            a(f"v_add_u32 v{v}, {(nb - base[v]) & 0xffffffff}, v{v}")
            base[v] = nb; o = extra
        return o
    NB = 3 if "nb3" in EXP else 2
    K1, K2, V = K1 + [136], K2 + [140], V + [144]
    rdK = lambda j: f"ds_read_b128 v[{K1[j%NB]}:{K1[j%NB]+3}], v{aK} offset:{off(aK, j)}"
    rdk = lambda j: f"ds_read_b32 v{K2[j%NB]}, v{ak} offset:{off(ak, j)}"
    rdV = lambda j, u: f"ds_read_b128 v[{V[j%NB]+4*u}:{V[j%NB]+4*u+3}], v{aV} offset:{off(aV, j, VB) - VB*(1-u)}"
    vIx = 3
    def M1(j): return f"v_mfma_f32_32x32x16_bf16 v[{S[j%3]}:{S[j%3]+15}], v[{K1[j%NB]}:{K1[j%NB]+3}], v[{Q1}:{Q1+3}], 0"
    def M2(j): return f"v_mfma_f32_32x32x8_bf16 v[{S[j%3]}:{S[j%3]+15}], v[{K2[j%NB]}:{K2[j%NB]+1}], v[{Q2}:{Q2+1}], v[{S[j%3]}:{S[j%3]+15}]"
    def M3(j, u): return f"v_smfmac_f32_32x32x32_bf16 v[{O}:{O+15}], v[{V[j%NB]+4*u}:{V[j%NB]+4*u+3}], v[{S[j%3]+8*u}:{S[j%3]+8*u+7}], v{vIx}"
    a(f"v_mov_b32 v{vIx}, 0xdddd")
    for b in range(NB): a(rdK(b)); a(rdk(b)); a(f"ds_read_b32 v{K2[b]+1}, v{vt2}")
    if NB == 3: a(rdV(0, 0)); a(rdV(0, 1))
    a(f"s_waitcnt lgkmcnt({3 if NB == 2 else 8})")
    a(M1(0)); a(M2(0))
    a(f"s_waitcnt lgkmcnt({0 if NB == 2 else 5})\ns_nop 8")
    FCHK = {6 - NB: 2, 13 - NB: 3, 26 - NB: 4}
    PRG = {20: 3, 32: 4, 44: 5}
    for j in range(64):
        if j in PRIO and j: a(f"s_setprio {PRIO[j]}")
        if j == 32: stamp(a, 4)
        if j in PRG: a(f"v_mov_b32 v{vt3}, {PRG[j]}\nds_write_b32 v{aP}, v{vt3}")
        if "M" in EXP and j in (0, 24, 60):
            q = {0: 1, 24: 3, 60: 5}[j]
            a(f"s_memrealtime s[{82+2*q}:{83+2*q}]\ns_memtime s[{84+2*q}:{85+2*q}]")
        if j in (0, 3, 10, 23) and "L" in EXP: stamp(a, {0: 1, 3: 2, 10: 4, 23: 6}[j], "L")
        if j in FCHK: lds_wait(a, f"f_w{j}", aF, vt0, FCHK[j])
        if j in (3, 10) and "L" in EXP: stamp(a, {3: 3, 10: 5}[j], "L")
        if j == 6 - NB:
            a(f"s_cmp_ge_u32 s{sGi}, 4\ns_cbranch_scc1 f_a1")
            for kind in range(4): a(f"ds_write_b128 v{vH1 if kind >> 1 else vH0}, v[{GO[kind]}:{GO[kind]+3}] offset:{4096*kind}")
            a(f"s_cmp_lg_u32 s{sGi}, 0\ns_cbranch_scc1 f_a3\ns_mov_b32 exec_hi, 0\nds_write_b32 v{vW}, v{vN}\ns_mov_b32 exec_hi, -1")
            a.label("f_a3")
            a(f"ds_write_b32 v{vA0}, v{vA1}")
            a.label("f_a1")
        if j == 25: a(f"v_mov_b32 v{aF}, {F_S2}")
        if j == 61:
            lds_wait(a, "f_a4", aF, vt0, 1)
            a(f"ds_read_b32 v{vG}, v{vGa}")
        if j == 63: a(f"v_sub_f32 v{vG}, 1.0, v{vG}")
        s = S[j % 3]
        e = lambda i: [f"v_exp_f32 v{s+q}, v{s+q}" for q in range(4*i, 4*i + 4)]
        nx, pv, ld, lv = j + 1 < 64, j > 0, j + NB < 64, j + NB - 2 < 64
        lk = [rdK(j+NB), rdk(j+NB)] if ld else ["s_nop 1"]
        lvv = [rdV(j+NB-2, 0), rdV(j+NB-2, 1)] if lv else []
        m1, m2 = ([M1(j+1)], [M2(j+1)]) if nx else ([], [])
        p0, p1 = ([M3(j-1, 0)], [M3(j-1, 1)]) if pv else ([], [])
        if "o1" not in EXP: L = m1 + lk[:1] + e(0) + m2 + lk[1:] + e(1) + p0 + lvv + e(2) + p1 + e(3)
        else: L = m1 + lk + e(0) + p0 + lvv + e(1) + m2 + e(2) + p1 + e(3)
        L.append(f"s_waitcnt lgkmcnt({0 if NB == 2 else 2*ld + 2*lv})")
        for x in L: a(x)
    a("s_nop 0"); a(M3(63, 0)); a(M3(63, 1))
    stamp(a, 5); stamp(a, 5, "T")
    if G0.STAMP and "C" in EXP: a("s_memtime s[86:87]")
    a("s_nop 11")
    vl = S[1] + 10
    a(f"v_cndmask_b32 v{vl}, v{O+10}, v{O+12}, s[{sHi}:{sHi+1}]")
    def chk():
        a(f"v_add_f32 v{vt0}, |v{O}|, |v{O+1}|")
        for r in range(2, 10): a(f"v_add_f32 v{vt0}, |v{O+r}|, v{vt0}")
        a(f"""v_add_f32 v{vt0}, v{vl}, v{vt0}
    v_cmp_le_f32 vcc, {f2u(LMIN)}, v{vl}
    v_mov_b32 v{vt3}, 0x7f800000
    v_cmp_lt_f32 s[6:7], v{vt0}, v{vt3}
    s_nop 0
    s_and_b64 vcc, vcc, s[6:7]
    s_cmp_eq_u64 vcc, exec
    {"" if "nofb" in EXP else "s_cbranch_scc0 f_fallback"}""")
    if "nolc" in EXP: chk()
    a.label("f_norm")
    ON = S[1]
    a(f"v_rcp_f32 v{vl+1}, v{vl}\ns_nop 0\nv_mul_f32 v{vl+1}, v{vl+1}, v{vG}")
    for r in range(10): a(f"v_mul_f32 v{ON+r}, v{O+r}, v{vl+1}")
    for k in range(5): a(f"v_cvt_pk_bf16_f32 v{P[0]+k}, v{ON+2*k}, v{ON+2*k+1}")
    a(f"""buffer_store_dwordx4 v[{P[0]}:{P[0]+3}], v{vOa}, s[{sWS}:{sWS+3}], s{sO} offen sc1
    s_mov_b32 exec_hi, 0
    {"" if "noext" in EXP else f"buffer_store_dword v{P[0]+4}, v{vOb}, s[{sWS}:{sWS+3}], s{sO+1} offen sc1"}
    s_mov_b32 exec_hi, -1""")
    if "nolc" not in EXP:
        a(f"s_cmp_lg_u32 s{sGi}, 99\ns_cbranch_scc0 f_n2")
        chk()
        a.label("f_n2")
    stamp(a, 1, "T")
    if "T" in EXP: a("s_waitcnt vmcnt(0)")
    stamp(a, 2, "T")
    last_wave_signals(a, "f_a9", F_CNT3, 8, FL3, 4, vt0, vt2, 'noat' not in EXP)
    stamp(a, 3, "T")
    G0.stamp_end(a, 0, sWS, sWave)
    a("s_endpgm")
    a.label("f_fallback")
    s0 = S[0]
    a(f"s_mov_b32 s{sGi}, 99\ns_waitcnt vmcnt(0)")
    a(f"""v_subrev_u32 v{aK}, {base[aK]}, v{aK}
    v_subrev_u32 v{ak}, {base[ak]}, v{ak}
    v_subrev_u32 v{aV}, {base[aV]}, v{aV}
    v_mov_b32 v{K2[0]+1}, 0
    v_mov_b32 v{vt0}, 0xff800000
    s_mov_b32 s{sA}, {KVG}""")
    a.label("f_fb1")
    a(f"""buffer_load_dwordx4 v[{K1[0]}:{K1[0]+3}], v{aK}, s[{sWS}:{sWS+3}], s{sA} offen sc1
    buffer_load_dword v{K2[0]}, v{ak}, s[{sWS}:{sWS+3}], s{sA} offen sc1
    s_waitcnt vmcnt(0)""")
    a(M1(0)); a(M2(0)); a("s_nop 11")
    for r in range(0, 16, 2): a(f"v_max3_f32 v{vt0}, v{s0+r}, v{s0+r+1}, v{vt0}")
    a(f"""s_add_u32 s{sA}, s{sA}, {TILE}
    s_cmp_lt_u32 s{sA}, {KVG+64*TILE}
    s_cbranch_scc1 f_fb1
    v_mov_b32 v{vt3}, v{vt0}
    s_nop 1
    v_permlane32_swap_b32 v{vt0}, v{vt3}
    v_max_f32 v{vt0}, v{vt0}, v{vt3}
    v_cvt_pk_bf16_f32 v{vt3}, v{vt0}, v{vt0}
    v_and_b32 v{vt3}, 0xffff0000, v{vt3}
    v_sub_f32 v{vt0}, v{vt0}, v{vt3}
    v_cvt_pk_bf16_f32 v{Q2+1}, v{vt3}, v{vt0}
    v_cndmask_b32 v{Q2+1}, v{Q2+1}, 0, s[{sHi}:{sHi+1}]
    v_mov_b32 v{K2[0]+1}, 0xbf80bf80
    s_mov_b32 s{sA}, {KVG}""")
    for r in range(16): a(f"v_mov_b32 v{O+r}, 0")
    a.label("f_fb2")
    a(f"""buffer_load_dwordx4 v[{K1[0]}:{K1[0]+3}], v{aK}, s[{sWS}:{sWS+3}], s{sA} offen sc1
    buffer_load_dword v{K2[0]}, v{ak}, s[{sWS}:{sWS+3}], s{sA} offen sc1
    buffer_load_dwordx4 v[{V[0]}:{V[0]+3}], v{aV}, s[{sWS}:{sWS+3}], s{sA} offen sc1
    buffer_load_dwordx4 v[{V[0]+4}:{V[0]+7}], v{aV}, s[{sWS}:{sWS+3}], s{sA} offen offset:{VB} sc1
    s_waitcnt vmcnt(0)""")
    a(M1(0)); a(M2(0)); a("s_nop 11")
    for r in range(16): a(f"v_exp_f32 v{s0+r}, v{s0+r}")
    a("s_nop 1"); a(M3(0, 0)); a(M3(0, 1))
    a(f"""s_add_u32 s{sA}, s{sA}, {TILE}
    s_cmp_lt_u32 s{sA}, {KVG+64*TILE}
    s_cbranch_scc1 f_fb2
    s_nop 11
    v_cndmask_b32 v{vl}, v{O+10}, v{O+12}, s[{sHi}:{sHi+1}]
    s_branch f_norm""")
    a.label("f_end")
    a("s_endpgm")
    return a

HEAD = """; Fused FNet + multi-query attention + gate.  One launch, 256 workgroups of 12 waves, one per CU.
"""
def build(a, vgpr=168):
    i0, i1 = a.lines.index("f_duty:"), a.lines.index("f_dS:")
    if "dplain" in EXP: a.lines[i0:i1] = [l.replace(" sc1", "") if "buffer_store" in l and "dwordx2" not in l else l for l in a.lines[i0:i1]]
    if "dnost" in EXP: a.lines[i0:i1] = [l for l in a.lines[i0:i1] if not ("buffer_store" in l and "dwordx2" not in l)]
    if "noprio" in EXP: a.lines = [l for l in a.lines if l != "s_setprio 3"]
    lab = G0.NAME + "_kernel"
    for p in check(a.lines): print(p, file=sys.stderr)
    out = [HEAD + f"; @launch grid=(256,1,1) block=(768,1,1) lds=163840", '.amdgcn_target "amdgcn-amd-amdhsa--gfx950"\n.text',
           f".globl {lab}\n.p2align 8\n.type {lab},@function\n{lab}:", a.text(), ".p2align 8\n.type rf_table,@object\nrf_table:"]
    w = rf_table()
    for i in range(0, len(w), 8): out.append(".long " + ",".join(f"0x{x:08x}" for x in w[i:i+8]))
    out += [".size rf_table, 4096", "rf_end:", '.section .rodata,"a"', kd(lab, vgpr)]
    return "\n".join(out) + "\n"

if __name__ == "__main__":
    if len(sys.argv) > 2 and sys.argv[2] == "stamp": G0.STAMP = True
    for x in sys.argv[3:]:
        if x.startswith("leak"):
            p = x.split(":"); G0.LEAK = (int(p[1]), int(p[2]), int(p[3]) if len(p) > 3 else None)
        else: EXP.add(x)
    open(sys.argv[1], "w").write(build(gen()))
```

```python
import math, sys
import gen as G0
from gen import Asm, check, srd, f2u, bf16, CQ, wave_max, load_rf, rf_table, kd
TILE, VB = 2432, 640
GP, GU = 1280, 704
EP = 0x0
FL0, FL1, FL2, FL3 = 0x8000, 0x10000, 0x20000, 0x30000
KMG = 0x44000
GG = 0x41000
KVG = 0x50000
OF = 0x100000
OX = 0x300000
GT = 0x340000
ST = 0x1200000
WS_SIZE = 0x1300000
G0.GT = GT; G0.ST = ST
OFFS, LMIN = 80.0, 2.0**-100
LX, LD, LW, LGATE, FLG = 0, 73728, 110592, 156672, 159744
F_KV, F_PRG, F_S1F, F_S1, F_CNT2, F_CNT3, F_TA, F_S2, F_S0, F_DUTY, F_KC, F_LD, F_XC, F_OH, F_QH, F_G, F_N, F_G2, F_DUMP = FLG, FLG+16, FLG+48, FLG+52, FLG+56, FLG+60, FLG+64, FLG+80, FLG+84, FLG+88, FLG+92, FLG+96, FLG+112, FLG+128, FLG+160, FLG+256, FLG+512, FLG+640, FLG+1024
GSC = 81920
QHA = LW + 32768
OPA = 56320
J1 = 20
def ltile(j): return LW + TILE*j if j < J1 else TILE*(j - J1)
PRIO = {0: 2, 16: 1, 29: 0}
for _x in sys.argv:
    if _x.startswith("pr:"): PRIO = {int(k): int(v) for k, v in (p.split("=") for p in _x[3:].split(","))}
SPIN = 20000
THR = lambda k, d: next((int(x[len(k):]) for x in EXP if x.startswith(k) and x[len(k):].isdigit()), d)
QF = 7
EXP = set()
def stamp(a, s, g="A"):
    if s == 0 or g in EXP or (g == "A" and not EXP & {"P", "H", "R", "T", "J", "L", "M", "K", "D", "N"}): G0.stamp(a, s)

sWS, sRA, sRB, sRC, sRD = 8, 12, 40, 44, 48
sNon, sWave, sT1, sJ = 54, 56, 57, 58
sA, sB, sC, sD, sE, sF, sG, sH = 59, 60, 61, 62, 63, 64, 65, 66
sHi = 68
sRot = 67
vL = 1

_n = [0]
LABS = {}
def stamp12(a, slot):
    if not G0.STAMP or EXP & {'P', 'H', 'R', 'T', 'J', 'L', 'M', 'K', 'D', 'N'}: return
    _n[0] += 1
    a(f"s_sub_u32 s3, s{sWave}, 1\ns_cmp_ge_u32 s3, 2\ns_cbranch_scc1 f_st{_n[0]}")
    stamp(a, slot)
    a.label(f"f_st{_n[0]}")

def lds_wait(a, lab, vaddr, vt, val, sleep=0):
    if sleep:
        a(f"s_branch {lab}")
        a.label(lab + "_z")
        a(f"s_sleep {sleep}")
    a.label(lab)
    if G0.STAMP:
        _n[0] += 1
        a(f"s_add_u32 s83, s83, 1\ns_cmp_lt_u32 s83, 200000\ns_cbranch_scc1 {lab}_go\ns_mov_b32 s99, {0x77770000}\ns_mov_b32 s97, {_n[0]}\ns_branch {lab}_to")
        a.label(lab + "_go")
    a(f"ds_read_b32 v{vt}, v{vaddr}\ns_waitcnt lgkmcnt(0)\nv_cmp_gt_i32 vcc, {val}, v{vt}\ns_cbranch_vccnz {lab + ('_z' if sleep else '')}")
    if G0.STAMP: a.label(lab + "_to"); LABS[_n[0]] = lab

def tag_wait(a, lab, vaddr, soff, n, vt, step=1024, sleep=2, lanes=0, sent=False):
    a(f"s_mov_b32 s{sH}, 0")
    if lanes: a(f"s_mov_b64 exec, {(1 << lanes) - 1}")
    if sent: a(f"s_branch {lab}_s")
    a.label(lab)
    if lanes:
        a(f"v_mov_b32 v{vt}, 0\nv_mov_b32 v{vt+1}, 0\nbuffer_atomic_or_x2 v[{vt}:{vt+1}], v{vaddr}, s[{sWS}:{sWS+3}], s{soff} offen sc0 sc1")
    else:
        for i in range(n): a(f"buffer_load_dwordx2 v[{vt+2*i}:{vt+2*i+1}], v{vaddr}, s[{sWS}:{sWS+3}], s{soff} offen offset:{i*step} sc1")
    if sent: a.label(lab + "_s")
    a(f"s_add_u32 s{sH}, s{sH}, 1\ns_waitcnt vmcnt(0)" + ("" if sent else " lgkmcnt(0)"))
    for i in range(n):
        a(f"v_cmp_ne_u64 {'vcc' if i == 0 else 's[6:7]'}, s[{sNon}:{sNon+1}], v[{vt+2*i}:{vt+2*i+1}]")
        if i: a("s_nop 0\ns_or_b64 vcc, vcc, s[6:7]")
    a(f"s_cbranch_vccz {lab}_ok\ns_sleep {sleep}\ns_cmp_lt_u32 s{sH}, {SPIN}\ns_cbranch_scc1 {lab}")
    if G0.STAMP: a("s_mov_b32 s99, 0x77770000")
    a.label(lab + "_ok")
    if lanes: a("s_mov_b64 exec, -1")
    a.vm = []

def tag_signal(a, area, nrep, v0, v1, atomic=False):
    a(f"""s_lshl_b32 s{sG}, s{sT1}, 7
    s_lshl_b32 s{sH}, s{sJ}, 3
    s_add_u32 s{sG}, s{sG}, s{sH}
    s_add_u32 s{sG}, s{sG}, {area}
    v_lshlrev_b32 v{v0}, 12, v{vL}
    v_mov_b32 v{v1}, s{sNon}
    v_mov_b32 v{v1+1}, s{sNon+1}
    s_mov_b64 exec, {(1 << nrep) - 1}
    {"buffer_atomic_swap_x2" if atomic else "buffer_store_dwordx2"} v[{v1}:{v1+1}], v{v0}, s[{sWS}:{sWS+3}], s{sG} offen sc1
    s_mov_b64 exec, -1""")

def last_wave_signals(a, lab, cnt, total, area, nrep, v0, v1, atomic=False):
    a(f"""s_waitcnt vmcnt(0)
    v_mov_b32 v{v0}, {cnt}
    v_mov_b32 v{v1}, 1
    s_mov_b64 exec, 1
    ds_add_rtn_u32 v{v1}, v{v0}, v{v1}
    s_waitcnt lgkmcnt(0)
    v_readfirstlane_b32 s{sG}, v{v1}
    s_mov_b64 exec, -1
    s_cmp_lg_u32 s{sG}, {total-1}
    s_cbranch_scc1 {lab}""")
    tag_signal(a, area, nrep, v0, v1, atomic)
    a.label(lab)
    a.vm = []

def xsrc(a, dst, t0, t1):
    a(f"""v_lshrrev_b32 v{t0}, 4, v{vL}
    v_xor_b32 v{t0}, v{t0}, v{vL}
    v_and_b32 v{t0}, 3, v{t0}
    v_lshlrev_b32 v{t0}, 4, v{t0}
    v_lshrrev_b32 v{t1}, 2, v{vL}
    s_mov_b32 s3, 73728
    v_mad_u32_u24 v{dst}, v{t1}, s3, v{t0}""")
def xread(a, r0, r1, t0, t1, vL=vL):
    a(f"""v_lshrrev_b32 v{t0}, 5, v{vL}
    v_lshrrev_b32 v{t1}, 2, v{vL}
    v_xor_b32 v{t0}, v{t0}, v{t1}
    v_and_b32 v{t0}, 3, v{t0}
    v_and_b32 v{t1}, 31, v{vL}
    v_lshlrev_b32 v{t1}, 6, v{t1}
    v_lshl_add_u32 v{r0}, v{t0}, 4, v{t1}""")
def dense_pos(a, sph, pos, c16, t):
    a(f"""s_lshl_b32 s3, s{sph}, 6
    v_add_u32 v{c16}, s3, v{vL}
    v_mul_u32_u24 v{pos}, 7282, v{c16}
    v_lshrrev_b32 v{pos}, 16, v{pos}
    v_mul_u32_u24 v{t}, 9, v{pos}
    v_sub_u32 v{c16}, v{c16}, v{t}
    v_lshlrev_b32 v{c16}, 4, v{c16}""")

J_GO, J_N, J_vX, J_vF, J_sG, J_HB, J_R = [116, 120, 124, 132], 130, 110, 108, 74, 116, 132
def fnet_job(a, pre='f_j'):
    GO, vN, vX, vF, sGrp = J_GO, J_N, J_vX, J_vF, J_sG
    H1, H2, C = 16, 32, 16
    B = [72 + 4*i for i in range(9)] + [132 + 4*i for i in range(9)]
    free = [48 + 4*i for i in range(6)] + [116, 120, 124]
    e, p, co, x0, x1 = 4, 5, 6, 7, 8
    stamp(a, 1, "J")
    a(f"""v_and_b32 v{e}, 3, v{vL}
    v_bfe_u32 v{p}, v{vL}, 2, 1
    v_lshl_add_u32 v{e}, v{p}, 3, v{e}
    v_bfe_u32 v{p}, v{vL}, 3, 1
    v_lshl_add_u32 v{e}, v{p}, 2, v{e}
    s_lshl_b32 s3, s{sGrp}, 4
    v_add_u32 v{e}, s3, v{e}
    s_cmp_eq_u32 s{sGrp}, 0
    s_cselect_b32 s6, 0x10000, 0
    s_mov_b32 s7, s6
    v_mov_b32 v{p}, 288
    v_cndmask_b32 v{e}, v{e}, v{p}, s[6:7]
    s_or_b32 s6, s6, 0xffff
    s_mov_b32 s7, s6
    v_mov_b32 v{p}, 144
    v_cndmask_b32 v{p}, v{p}, 0, s[6:7]
    v_lshrrev_b32 v{co}, 5, v{vL}
    v_lshlrev_b32 v{co}, 3, v{co}
    s_lshl_b32 s3, s{sRot}, 6
    v_add_u32 v{co}, s3, v{co}
    v_mad_u32_u24 v{p}, v{e}, v{co}, v{p}
    s_mov_b32 s6, {(2**32 + 575)//576}
    s_mov_b32 s7, {f2u(1.0/576)}""")
    def cosv(dst, src):
        a(f"""v_mul_hi_u32 v{x1}, v{src}, s6
        v_mul_u32_u24 v{x1}, 576, v{x1}
        v_sub_u32 v{x1}, v{src}, v{x1}
        v_cvt_f32_u32 v{x1}, v{x1}
        v_mul_f32 v{x1}, s7, v{x1}
        v_cos_f32 v{dst}, v{x1}""")
    cosv(C, p); a(f"v_add_u32 v{p}, v{p}, v{e}"); cosv(C + 1, p)
    a(f"v_mul_u32_u24 v{co}, 15, v{e}\nv_add_u32 v{p}, v{p}, v{co}")
    cosv(C + 8, p); a(f"v_add_u32 v{p}, v{p}, v{e}"); cosv(C + 9, p)
    cosv(x0, e)
    a(f"v_lshlrev_b32 v{co}, 4, v{e}\nv_add_f32 v{x0}, v{x0}, v{x0}")
    cosv(co, co)
    for j in range(2, 8):
        for k in range(2): a(f"v_fma_f32 v{C+8*k+j}, v{x0}, v{C+8*k+j-1}, -v{C+8*k+j-2}")
    a(f"v_add_f32 v{co}, v{co}, v{co}\nv_lshlrev_b32 v{e}, 31, v{e}\nv_or_b32 v{e}, 1.0, v{e}\nv_xor_b32 v{x1}, 32, v{vX}")
    for k in range(18):
        c, o = C + 8*(k & 1), C + 8*(1 - (k & 1))
        for j in range(4): a(f"v_cvt_pk_bf16_f32 v{B[k]+j}, v{c+2*j}, v{c+2*j+1}")
        if k < 16:
            for j in range(8): a(f"v_fma_f32 v{c+j}, v{co}, v{o+j}, -v{c+j}")
    stamp(a, 3, "J")
    J1F = THR("jf", 3)
    lds_wait(a, pre + "1", vF, p, J1F, sleep=1)
    stamp(a, 4, "J")
    where, issued, lg = {}, 0, []
    for k in range(36):
        while issued < 36 and free and len(lg) < 14:
            if issued == 12 and J1F < 6: a(f"ds_read_b32 v{p}, v{vF}"); lg.append("f")
            if issued == 18 and J1F < 6:
                if k < 15: break
                if "f" in lg:
                    i = lg.index("f"); a(f"s_waitcnt lgkmcnt({len(lg) - 1 - i})"); del lg[:i + 1]
                a(f"v_cmp_gt_i32 vcc, 6, v{p}\ns_cbranch_vccz {pre}2_ok")
                lds_wait(a, pre + "2", vF, p, 6)
                a.label(pre + "2_ok")
            where[issued] = free.pop(0)
            a(f"ds_read_b128 v[{where[issued]}:{where[issued]+3}], v{x1 if issued & 1 else vX} offset:{2048*(issued>>1)}")
            lg.append(issued); issued += 1
        if k in lg:
            i = lg.index(k); a(f"s_waitcnt lgkmcnt({len(lg) - 1 - i})"); del lg[:i + 1]
        H, b = (H2 if k >= 18 else H1), B[k % 18]
        a(f"v_mfma_f32_32x32x16_bf16 v[{H}:{H+15}], v[{where[k]}:{where[k]+3}], v[{b}:{b+3}], " + ("0" if k % 18 == 0 else f"v[{H}:{H+15}]"))
        free.append(where[k])
        if 18 <= k < 27: free.append(b)
        if k == 30: load_rf(a, J_R, vL, p, pre + "rf")
    stamp(a, 5, "J")
    a("s_nop 11")
    for r in range(16): a(f"v_fmac_f32 v{H1+r}, v{e}, v{H2+r}")
    for k in range(8): a(f"v_cvt_pk_bf16_f32 v{J_HB+k}, v{H1+2*k}, v{H1+2*k+1}")

def fnet_job2(a, GO=J_GO):
    vN, sGrp = J_N, J_sG
    T1, T2, Hb, R, H1 = 32, 64, J_HB, J_R, 80
    a("s_waitcnt vmcnt(0)")
    a(f"v_mfma_f32_32x32x16_bf16 v[{T1}:{T1+15}], v[{Hb}:{Hb+3}], v[{R}:{R+3}], 0")
    a(f"v_mfma_f32_32x32x16_bf16 v[{T2}:{T2+15}], v[{Hb}:{Hb+3}], v[{R+8}:{R+11}], 0")
    a(f"v_mfma_f32_32x32x16_bf16 v[{T1}:{T1+15}], v[{Hb+4}:{Hb+7}], v[{R+4}:{R+7}], v[{T1}:{T1+15}]")
    a(f"v_mfma_f32_32x32x16_bf16 v[{T2}:{T2+15}], v[{Hb+4}:{Hb+7}], v[{R+12}:{R+15}], v[{T2}:{T2+15}]")
    a(f"""s_cmp_eq_u32 s{sGrp}, 0
    s_cselect_b32 s6, -1, 0
    s_mov_b32 s7, 0
    s_nop 8
    v_cvt_pk_bf16_f32 v{vN}, v{T1+8}, v{T2+8}
    v_cndmask_b32 v{T1+8}, v{T1+8}, 0, s[6:7]
    v_cndmask_b32 v{T2+8}, v{T2+8}, 0, s[6:7]""")
    for kind, (op, x, y, order) in enumerate((("v_add_f32", T1, T2+8, 1), ("v_sub_f32", T2, T1+8, 1), ("v_sub_f32", T1, T2+8, -1), ("v_add_f32", T2, T1+8, -1))):
        for r in range(8): a(f"{op} v{H1+r}, v{x+r}, v{y+r}")
        for k in range(4):
            i0, i1 = (2*k, 2*k+1) if order > 0 else (7-2*k, 6-2*k)
            a(f"v_cvt_pk_bf16_f32 v{GO[kind]+k}, v{H1+i0}, v{H1+i1}")

hSm, hSx, hSg, hGr, hGs, hW2, hGa, hPr, hXc, hTa, hMt, hMk, hS2 = 100, 103, 106, 109, 110, 111, 112, 113, 114, 115, 116, 117, 118
hL16, hTr, hTw, hOx, hTg, hOo, hOw, hOr = 156, 157, 158, 159, 160, 161, 164, 165
OUTB = 56*1024
def helper_setup(a, t0, t1, t2, t3):
    for i in range(3):
        a(f"s_add_u32 s6, s{sWave}, {4*i}")
        dense_pos(a, 6, t1, t0, t2)
        a(f"""v_and_b32 v{t2}, 1, v{t1}
        v_bfe_u32 v{t3}, v{t1}, 1, 2
        v_and_b32 v{t1}, 56, v{t1}
        v_lshl_add_u32 v{t1}, v{t2}, 2, v{t1}
        v_add_u32 v{t1}, v{t1}, v{t3}
        s_movk_i32 s3, {GP}
        v_mad_u32_u24 v{hSg+i}, v{t1}, s3, v{t0}
        s_movk_i32 s3, 1152
        v_lshrrev_b32 v{t2}, 4, v{t1}
        v_lshl_add_u32 v{t2}, v{t2}, 1, v{t1}
        v_mad_u32_u24 v{hSm+i}, v{t2}, s3, v{t0}
        v_lshrrev_b32 v{t2}, 1, v{t1}
        v_lshl_add_u32 v{t2}, v{t2}, 4, v{t1}
        v_add_u32 v{t2}, 16, v{t2}
        v_mad_u32_u24 v{hSx+i}, v{t2}, s3, v{t0}
        v_add_u32 v{t1}, {64*i}, v{vL}
        v_mul_u32_u24 v{t2}, 7282, v{t1}
        v_lshrrev_b32 v{t2}, 16, v{t2}
        v_lshlrev_b32 v{t1}, 4, v{t1}
        s_mov_b32 s3, {73728-144}
        v_mad_u32_u24 v{hOo+i}, v{t2}, s3, v{t1}""")
    a(f"""v_lshlrev_b32 v{hL16}, 4, v{vL}
    v_lshrrev_b32 v{t2}, 3, v{vL}
    v_xor_b32 v{t3}, v{t2}, v{vL}
    v_and_b32 v{t3}, 7, v{t3}
    v_lshlrev_b32 v{t3}, 4, v{t3}
    v_lshl_add_u32 v{t3}, v{t2}, 7, v{t3}
    s_lshl_b32 s3, s{sWave}, 12
    s_add_u32 s3, s3, {GSC}
    v_add_u32 v{hGr}, s3, v{t3}
    v_and_b32 v{t1}, 7, v{vL}
    v_lshlrev_b32 v{hTg}, 3, v{t1}
    v_lshl_add_u32 v{hS2}, v{t2}, 7, v{hTg}
    v_mul_u32_u24 v{t2}, {128*GP}, v{t2}
    v_lshl_add_u32 v{hGs}, v{t1}, 4, v{t2}
    v_lshlrev_b32 v{t1}, 2, v{t1}
    v_add_u32 v{hPr}, {F_PRG}, v{t1}
    v_and_b32 v{t1}, 12, v{t1}
    v_add_u32 v{hXc}, {F_XC}, v{t1}
    v_add_u32 v{hTa}, {F_TA}, v{t1}
    s_lshl_b32 s3, s{sWave}, 2
    s_add_u32 s6, s3, {F_TA}
    v_mov_b32 v{hMt}, s6
    s_add_u32 s6, s3, {F_KV}
    v_mov_b32 v{hMk}, s6
    v_and_b32 v{t0}, 15, v{vL}
    v_lshrrev_b32 v{t2}, 4, v{vL}
    v_lshlrev_b32 v{t1}, 2, v{t0}
    v_lshl_add_u32 v{hOx}, v{t2}, 9, v{t1}
    s_lshl_b32 s3, s{sWave}, 6
    s_add_u32 s3, s3, {F_G}
    v_add_u32 v{hGa}, s3, v{t1}
    s_and_b32 s3, s{sWave}, 1
    s_lshl_b32 s3, s3, 22
    v_lshlrev_b32 v{t1}, 18, v{t0}
    v_lshl_add_u32 v{t1}, v{t2}, 4, v{t1}
    v_add_u32 v{hW2}, s3, v{t1}
    s_mul_i32 s3, s{sWave}, 2304
    s_add_u32 s3, s3, {OUTB}
    v_mul_u32_u24 v{t1}, 144, v{t0}
    v_lshl_add_u32 v{t1}, v{t2}, 3, v{t1}
    v_add_u32 v{hOw}, s3, v{t1}
    v_add_u32 v{hOr}, s3, v{hL16}
    v_bfe_u32 v{t3}, v{vL}, 2, 2
    v_lshl_add_u32 v{t2}, v{t2}, 2, v{t3}
    v_mul_u32_u24 v{t2}, 288, v{t2}
    v_and_b32 v{t3}, 3, v{vL}
    v_lshl_add_u32 v{hTr}, v{t3}, 3, v{t2}
    v_add_u32 v{hTw}, {LW}, v{hTr}""")

def gen():
    a = Asm()
    a.label("f_code")
    a("s_cmp_ge_u32 s2, 256\ns_cbranch_scc1 f_end")
    stamp(a, 0)
    a("s_load_dwordx2 s[52:53], s[0:1], 104\ns_load_dwordx16 s[16:31], s[0:1], 0\ns_load_dwordx8 s[32:39], s[0:1], 64")
    a(f"""v_lshrrev_b32 v2, 6, v0
    v_and_b32 v{vL}, 63, v0
    v_readfirstlane_b32 s{sWave}, v2
    s_bfe_u32 s3, s2, 0x20003
    s_lshr_b32 s{sRot}, s2, 6
    s_add_u32 s{sRot}, s{sRot}, s3
    s_and_b32 s{sRot}, s{sRot}, 3
    s_lshl_b32 s{sRot}, s{sRot}, 1
    {"s_bfe_u32 s6, s2, 0x10005" if "rot8" in EXP else ""}
    {"s_add_u32 s%d, s%d, s6" % (sRot, sRot) if "rot8" in EXP else ""}
    {"s_mov_b32 s%d, 0" % sRot if "norot" in EXP else ""}
    s_and_b32 s{sT1}, s2, 7
    s_lshl_b32 s3, s3, 3
    s_add_u32 s{sT1}, s{sT1}, s3
    s_lshr_b32 s{sJ}, s2, 5
    s_mov_b32 s{sHi}, 0
    {"s_waitcnt lgkmcnt(0)" if G0.STAMP and 0 else ""}
    s_mov_b32 s{sHi+1}, -1
    s_cmp_ge_u32 s{sWave}, 4
    s_cbranch_scc1 f_att
    s_setprio 3
    s_cmp_eq_u32 s{sWave}, 0
    s_cbranch_scc1 f_duty""")
    def common_srd():
        a("s_waitcnt lgkmcnt(0)")
        a(f"s_load_dwordx2 s[{sNon}:{sNon+1}], s[52:53], {EP}")
        srd(a, sWS, 52, WS_SIZE)
    def nonce():
        a(f"s_add_u32 s{sNon}, s{sNon}, 1")
    t0, t1, t2, t3 = 8, 9, 10, 11
    vF = 4
    vXs, vDs, vW = 2, 3, 12
    sG_, sXo, sDa, sDb, sDs, sM, sXp = 70, 71, 72, 73, 74, 75, 76
    a(f"s_sub_u32 s{sG_}, s{sWave}, 1")
    xsrc(a, vXs, t0, t1)
    a(f"""v_and_b32 v{t2}, 3, v{vL}
    v_mul_u32_u24 v{t1}, 36, v{t1}
    v_lshl_add_u32 v{vDs}, v{t2}, 4, v{t1}
    s_and_b32 s{sA}, s{sJ}, 1
    s_mul_i32 s{sM}, s{sA}, 36864
    s_lshl_b32 s{sA}, s{sA}, 5
    s_add_u32 s{sA}, s{sA}, s{sT1}
    s_mul_i32 s{sXo}, s{sA}, 1152
    s_cmp_lt_u32 s{sJ}, 4
    s_cselect_b32 s{sRB+2}, {576*36}, 0
    s_cselect_b32 s{sDa}, -1, 0
    s_mov_b32 s{sDb}, {F_DUMP}
    s_cmov_b32 s{sDb}, {LD}
    s_mov_b32 s{sRA+2}, {2048*1152}
    s_mov_b32 s{sRA+3}, 0x20000
    s_mov_b32 s{sRB+3}, 0x20000
    s_mov_b32 s{sB}, s{sG_}
    s_barrier
    s_cmp_lt_u32 s{sJ}, 2
    s_waitcnt lgkmcnt(0)
    s_cselect_b64 s[{sRB}:{sRB+1}], s[30:31], s[32:33]
    s_mov_b64 s[{sRA}:{sRA+1}], s[16:17]""")
    stamp(a, 1, "P")
    TD, TW = THR("td", 0), THR("tw", 0)
    def lround(th=""):
        a(f"""s_lshl_b32 s{sC}, s{sRot}, 1
        s_add_u32 s{sC}, s{sC}, s{sB}
        s_cmp_ge_u32 s{sC}, 18
        s_cselect_b32 s3, 18, 0
        s_sub_u32 s{sC}, s{sC}, s3
        s_lshl_b32 s{sD}, s{sB}, 11
        s_add_u32 m0, s{sD}, s{sM}
        s_lshl_b32 s3, s{sC}, 6
        s_add_u32 s3, s3, s{sXo}
        {th}
        buffer_load_dwordx4 v{vXs}, s[{sRA}:{sRA+3}], s3 offen lds
        s_add_u32 m0, m0, 1024
        s_add_u32 s3, s3, 1179648
        {th}
        buffer_load_dwordx4 v{vXs}, s[{sRA}:{sRA+3}], s3 offen lds
        s_and_b32 s3, s{sD}, s{sDa}
        s_add_u32 m0, s3, s{sDb}
        s_mul_i32 s3, s{sC}, 1152
        {th}
        buffer_load_dwordx4 v{vDs}, s[{sRB}:{sRB+3}], s3 offen lds
        s_add_u32 m0, m0, 448
        {th or "s_nop 0"}
        buffer_load_dwordx4 v{vDs}, s[{sRB}:{sRB+3}], s3 offen offset:576 lds
        s_add_u32 s{sB}, s{sB}, 3""")
    a.label("f_lL")
    lround()
    NR0 = 3 if not TD else max(1, TD // 4)
    a(f"s_cmp_lt_u32 s{sB}, {3*NR0}\ns_cbranch_scc1 f_lL")
    stamp(a, 5, "P")
    a(f"s_load_dwordx2 s[{sNon}:{sNon+1}], s[52:53], {EP}")
    srd(a, sWS, 52, WS_SIZE); srd(a, sRD, 28, 576*1152)
    for i in range(3):
        a(f"s_mul_i32 s{sC}, s{sG_}, 3\ns_add_u32 s{sC}, s{sC}, {i}")
        dense_pos(a, sC, t1, t0, t2)
        a(f"""v_and_b32 v{t2}, 3, v{t1}
        v_bfe_u32 v{t3}, v{t1}, 2, 2
        v_and_b32 v{t1}, 48, v{t1}
        v_lshl_add_u32 v{t1}, v{t2}, 2, v{t1}
        v_add_u32 v{t1}, v{t1}, v{t3}
        s_movk_i32 s3, 1152
        v_mad_u32_u24 v{vW+i}, v{t1}, s3, v{t0}""")
    sM2 = 77
    a(f"""s_lshl_b32 s3, s{sG_}, 2
    s_add_u32 s3, s3, {F_LD}
    v_mov_b32 v{vF}, s3
    v_mov_b32 v6, 1
    v_mov_b32 v5, {F_DUTY}
    s_mul_i32 s{sE}, s{sJ}, 144
    s_mul_i32 s{sF}, s{sG_}, 3072
    s_and_b32 s{sA}, s{sJ}, 1
    s_xor_b32 s{sA}, s{sA}, 1
    s_mul_i32 s{sM2}, s{sA}, 36864
    s_lshl_b32 s3, s{sG_}, 10
    s_add_u32 s{sM2}, s{sM2}, s3
    s_lshl_b32 s{sA}, s{sA}, 5
    s_add_u32 s{sA}, s{sA}, s{sT1}
    s_mul_i32 s{sXp}, s{sA}, 1152
    s_mul_i32 s3, s{sG_}, 1179648
    s_add_u32 s{sXp}, s{sXp}, s3""")
    a(f"s_cmp_lg_u32 s{sWave}, 3\ns_cbranch_scc1 f_lM")
    srd(a, sRC, 36, 1152)
    for i in range(2):
        a(f"""s_lshl_b32 s3, s{sRot}, 7
        s_add_u32 s3, s3, {1024*i}
        v_lshlrev_b32 v{t1}, 4, v{vL}
        v_add_u32 v{t1}, s3, v{t1}
        v_subrev_u32 v{t2}, 1152, v{t1}
        v_min_u32 v{t1}, v{t1}, v{t2}
        s_mov_b32 m0, {LGATE + 1024*i}
        s_nop 0""")
        a(f"buffer_load_dwordx4 v{t1}, s[{sRC}:{sRC+3}], 0 offen lds")
    a.label("f_lM")
    if not TD:
        a(f"s_waitcnt vmcnt(8)\nds_write_b32 v{vF}, v6\nv_add_u32 v6, 1, v6")
        lround()
    else:
        lround(f"s_waitcnt vmcnt({TD-1})")
        a(f"s_waitcnt vmcnt({4*NR0})\nds_write_b32 v{vF}, v6\nv_add_u32 v6, 1, v6")
    a(f"s_cmp_lt_u32 s{sB}, 18\ns_cbranch_scc1 f_lM")
    for r in range(6 - NR0, 6): a.vm_note(f"d{r}", 4)
    stamp(a, 2, "P")
    def ldflag(tag, val):
        a(f"v_mov_b32 v{t1}, {val}")
        if tag in a.vm: a.vm_wait(tag)
        a(f"ds_write_b32 v{vF}, v{t1}")
        if val in (4, 5, 6, 7): stamp(a, val - 2, "D")
    def thr():
        if TW and len(a.vm) >= TW:
            a(f"s_waitcnt vmcnt({TW-1})"); a.vm = a.vm[len(a.vm) - (TW-1):]
            done = [t for t in pend if t not in a.vm]
            if done:
                ldflag(done[-1], val_of(done[-1]))
                for t in done: pend.remove(t)
    pend = []
    val_of = lambda t: int(t[1:]) + (1 if t[0] == "d" else QF)
    def chunk(c, withx):
        base = LW + 9216*c if c < 5 else LD + 9216*(c-5)
        a(f"""s_add_u32 s{sC}, s{sRot}, {c}
        s_cmp_ge_u32 s{sC}, 9
        s_cselect_b32 s3, 9, 0
        s_sub_u32 s{sC}, s{sC}, s3""")
        if withx and "nox" not in EXP:
            a(f"s_add_u32 m0, s{sM2}, {4096*c}\ns_lshl_b32 s3, s{sC}, 7\ns_add_u32 s3, s3, s{sXp}")
            thr()
            a.vmem(f"buffer_load_dwordx4 v{vXs}, s[{sRA}:{sRA+3}], s3 offen lds", f"c{c}")
            a("s_add_u32 m0, m0, 1984\ns_nop 0")
            thr()
            a.vmem(f"buffer_load_dwordx4 v{vXs}, s[{sRA}:{sRA+3}], s3 offen offset:64 lds", f"c{c}")
        a(f"s_add_u32 m0, s{sF}, {base}\ns_mul_i32 s3, s{sC}, 73728\ns_add_u32 s3, s3, s{sE}")
        for i in range(3):
            if i: a("s_add_u32 m0, m0, 1024\ns_nop 0")
            thr()
            a.vmem(f"buffer_load_dwordx4 v{vW+i}, s[{sRD}:{sRD+3}], s3 offen lds", f"c{c}")
    def chunks(withx, lab):
        if TW:
            pend[:] = [f"d{r}" for r in range(6 - NR0, 6)]
            for c in range(9):
                if c == 5: lds_wait(a, lab, 5, t1, 1)
                chunk(c, withx)
                pend.append(f"c{c}")
            stamp(a, 3, "P")
            for t in list(pend): ldflag(t, val_of(t))
            stamp(a, 4, "P")
            return
        if "d3" in a.vm: ldflag("d3", 4)
        if "pz" in EXP:
            ldflag("d4", 5); ldflag("d5", 6)
            lds_wait(a, lab + "z", 5, t1, THR("pz", 2) if False else (1 if "pz1" in EXP else 2), sleep=1)
        chunk(0, withx)
        if "pz" not in EXP: ldflag("d4", 5); ldflag("d5", 6)
        chunk(1, withx)
        D = 1 if "shallow" in EXP else 2
        if D == 1: ldflag("c0", QF)
        for c in range(2, 9):
            if c == 5 and not THR("pc", 0): lds_wait(a, lab, 5, t1, 1)
            if c == THR("pc", 0): lds_wait(a, lab, 5, t1, 2, sleep=1)
            chunk(c, withx)
            if c >= D: ldflag(f"c{c-D}", QF + c - D)
        stamp(a, 3, "P")
        for c in range(9 - D, 9): ldflag(f"c{c}", QF + c)
        stamp(a, 4, "P")
        if "only" in EXP:
            G0.stamp_end(a, 0, sWS, sWave); a("s_endpgm")
    vml = list(a.vm)
    a(f"s_cmp_eq_u32 s{sWave}, 3\ns_cbranch_scc1 f_l3")
    chunks(True, "f_l1w")
    a("s_branch f_l4")
    a.label("f_l3")
    a.vm = list(vml)
    chunks(False, "f_l3w")
    FR = 32
    a.label("f_l4")
    a(f"v_lshlrev_b32 v{hL16}, 4, v{vL}\ns_lshl_b32 s3, s{sWave}, 2\ns_add_u32 s3, s3, {F_KV}\nv_mov_b32 v{hMk}, s3")
    one, val = 6, 7
    def kv_first(lab):
        a.vm = []
        a(f"""v_and_b32 v{t1}, 15, v{vL}
        v_min_u32 v{t1}, 8, v{t1}
        v_lshlrev_b32 v{t1}, 2, v{t1}
        v_add_u32 v{t1}, {F_PRG}, v{t1}
        s_mul_i32 s{sA}, s{sT1}, {2*TILE}
        s_lshl_b32 s{sB}, s{sWave}, 12
        s_add_u32 m0, s{sB}, {LW}
        s_add_u32 s{sA}, s{sA}, s{sB}
        s_add_u32 s{sA}, s{sA}, {KVG}
        v_mov_b32 v{one}, 1
        v_mov_b32 v{vF}, {F_S1}""")
        stamp(a, 1, "K")
        lds_wait(a, lab, t1, t2, 1)
        stamp(a, 2, "K")
        for k in range(4): a(f"buffer_load_dwordx4 v{hL16}, s[{sWS}:{sWS+3}], s{sA} offen offset:{1024*k} {'' if 'k0plain' in EXP else 'sc1'} lds")
    kv_first("f_kv2")
    nonce()
    if "su0" not in EXP: helper_setup(a, t0, t1, t2, t3)
    a(f"s_waitcnt vmcnt(0)\nds_write_b32 v{hMk}, v{one}")
    if "su0" in EXP: helper_setup(a, t0, t1, t2, t3)
    a("s_branch f_h1")

    a.label("f_duty")
    a.vm = []
    vR0, vR1, vD0, vD1 = 2, 3, 6, 7
    ACC, R = 16, 80
    sRb, sGrp = 70, 76
    a(f"""v_lshlrev_b32 v{t0}, 2, v{vL}
    v_add_u32 v{t0}, {FLG}, v{t0}
    s_cmp_ge_u32 s{sJ}, 4
    s_cselect_b32 s6, {1 << ((F_DUTY - FLG)//4)}, 0
    s_mov_b32 s7, 0
    v_cndmask_b32 v{t1}, 0, 2, s[6:7]
    ds_write_b32 v{t0}, v{t1}""")
    xread(a, vR0, vR1, t2, t3)
    common_srd()
    a("s_barrier")
    a(f"""s_and_b32 s{sA}, s{sJ}, 1
    s_lshl_b32 s{sRb}, s{sA}, 5
    s_add_u32 s{sRb}, s{sRb}, s{sT1}
    s_mul_i32 s{sA}, s{sA}, 36864
    v_add_u32 v{vR0}, s{sA}, v{vR0}
    v_xor_b32 v{vR1}, 32, v{vR0}
    v_and_b32 v{vF}, 3, v{vL}
    v_min_u32 v{vF}, 2, v{vF}
    v_lshlrev_b32 v{vF}, 2, v{vF}
    v_add_u32 v{vF}, {F_LD}, v{vF}
    s_cmp_ge_u32 s{sJ}, 4
    s_cbranch_scc1 f_cF
    v_and_b32 v{t2}, 3, v{vL}
    v_and_b32 v{t0}, 1, v{vL}
    v_bfe_u32 v{t3}, v{vL}, 1, 1
    v_lshl_or_b32 v{t0}, v{t0}, 1, v{t3}
    v_bfe_u32 v{t3}, v{vL}, 4, 1
    v_cmp_eq_u32 vcc, 0, v{t3}
    v_bfe_u32 v{vD0}, v{vL}, 2, 2
    v_lshrrev_b32 v{vD1}, 5, v{vL}
    v_cndmask_b32 v{t0}, v{t2}, v{t0}, vcc
    v_lshl_add_u32 v{vD0}, v{vD1}, 3, v{vD0}
    v_lshlrev_b32 v{vD0}, 6, v{vD0}
    v_lshl_add_u32 v{vD0}, v{t3}, 5, v{vD0}
    v_lshl_add_u32 v{vD0}, v{t0}, 3, v{vD0}
    v_add_u32 v{vD0}, {LD}, v{vD0}
    s_cmp_ge_u32 s{sJ}, 2
    s_cbranch_scc1 f_cV""")
    def duty_chain(kind, ACC=ACC, vR0=vR0, vR1=vR1, vD0=vD0):
        lg = []
        def rd(txt, tag): a(txt); lg.append(tag)
        def wait(tag):
            i = max(k for k, t in enumerate(lg) if t == tag)
            a(f"s_waitcnt lgkmcnt({len(lg) - 1 - i})"); del lg[:i + 1]
        def reads(s):
            b = FR + 16*(s % 3)
            for p in range(2):
                rd(f"ds_read_b128 v[{b+8*p}:{b+8*p+3}], v{vR1 if p else vR0} offset:{2048*s}", (s, p))
                if kind == "F": rd(f"ds_read_b128 v[{b+8*p+4}:{b+8*p+7}], v{vD1 if p else vD0} offset:{2048*s}", (s, p))
                elif kind == "G": rd(f"ds_read_b128 v[{b+8*p+4}:{b+8*p+7}], v{vD0} offset:{64*s+32*p}", (s, p))
                else:
                    rd(f"ds_read_b64_tr_b16 v[{b+8*p+4}:{b+8*p+5}], v{vD0} offset:{2048*s+1024*p}", (s, p))
                    rd(f"ds_read_b64_tr_b16 v[{b+8*p+6}:{b+8*p+7}], v{vD0} offset:{2048*s+1024*p+256}", (s, p))
        if kind != "G":
            ST = {0: [1, 2, 3, 4, 5, 6], 2: [3, 3, 3, 6, 6, 6], 3: [2, 2, 4, 4, 6, 6], 1: [6]*6}[THR("ds", 3)]
            lds_wait(a, f"f_d{kind}0", vF, t0, ST[0])
            stamp(a, 1, "P"); stamp(a, 1, "D")
        reads(0)
        if kind != "G" and ST[1] > ST[0]: rd(f"ds_read_b32 v{t0}, v{vF}", "f")
        reads(1)
        for s in range(18):
            if kind != "G" and s % 3 == 1 and s < 15 and ST[s//3 + 1] > ST[s//3]:
                if "f" in lg: wait("f")
                a(f"v_cmp_gt_i32 vcc, {ST[s//3 + 1]}, v{t0}\ns_cbranch_vccz f_d{kind}{s}_ok")
                lds_wait(a, f"f_d{kind}{s}", vF, t0, ST[s//3 + 1])
                a.label(f"f_d{kind}{s}_ok")
                if s//3 in (0, 2, 3, 4): stamp(a, {0: 2, 2: 3, 3: 4, 4: 5}[s//3], "D")
            b = FR + 16*(s % 3)
            for p in range(2):
                if (s, p) in lg: wait((s, p))
                if p == 1:
                    if kind != "G" and s % 3 == 0 and 0 < s < 15 and ST[s//3 + 1] > ST[s//3]: rd(f"ds_read_b32 v{t0}, v{vF}", "f")
                    if s + 2 < 18: reads(s + 2)
                    assert len(lg) <= 15
                X, D = b + 8*p, b + 8*p + 4
                A, B = (D, X) if kind in "KG" else (X, D)
                a(f"v_mfma_f32_32x32x16_bf16 v[{ACC}:{ACC+15}], v[{A}:{A+3}], v[{B}:{B+3}], " + ("0" if s + p == 0 else f"v[{ACC}:{ACC+15}]"))
        if kind != "G":
            a(f"v_mov_b32 v{t0}, {F_DUTY}\nv_mov_b32 v{t1}, 1\nds_write_b32 v{t0}, v{t1}")
            nonce()
            stamp(a, 2); stamp(a, 2, "P"); stamp(a, 6, "D")
    def kv_off():
        a(f"""s_and_b32 s{sA}, s{sJ}, 1
        s_lshl_b32 s{sB}, s{sT1}, 1
        s_add_u32 s{sA}, s{sA}, s{sB}
        s_mul_i32 s{sF}, s{sA}, {TILE}
        s_add_u32 s{sF}, s{sF}, {KVG}
        s_add_u32 s{sE}, s{sF}, {64*TILE}""")
    kv_off()
    a(f"""v_lshlrev_b32 v14, 4, v{vL}
    v_lshlrev_b32 v15, 2, v{vL}
    v_and_b32 v13, 124, v15
    v_lshrrev_b32 v12, 5, v{vL}
    v_lshl_add_u32 v13, v12, 13, v13
    s_lshl_b32 s{sA}, s{sA}, 7
    s_add_u32 s{sA}, s{sA}, {KMG}""")
    duty_chain("K")
    a("s_nop 7")
    for k in range(5): a(f"v_cvt_pk_bf16_f32 v{FR+k}, v{ACC+2*k}, v{ACC+2*k+1}")
    for s in ((sF,) if 'nodup' in EXP else (sF, sE)): a(f"buffer_store_dwordx4 v[{FR}:{FR+3}], v14, s[{sWS}:{sWS+3}], s{s} offen sc1")
    a(f"v_mul_f32 v{t3}, v{ACC}, v{ACC}")
    for r in range(1, 8): a(f"v_fmac_f32 v{t3}, v{ACC+r}, v{ACC+r}")
    a("s_mov_b32 exec_hi, 0")
    for s in ((sF,) if 'nodup' in EXP else (sF, sE)): a(f"buffer_store_dword v{FR+4}, v15, s[{sWS}:{sWS+3}], s{s} offen offset:1024 sc1")
    a(f"""v_fmac_f32 v{t3}, v{ACC+8}, v{ACC+8}
    v_fmac_f32 v{t3}, v{ACC+9}, v{ACC+9}
    s_mov_b64 exec, -1
    v_mov_b32 v{t0}, v{t3}
    s_nop 1
    v_permlane32_swap_b32 v{t0}, v{t3}
    v_add_f32 v{t3}, v{t0}, v{t3}""")
    a(f"buffer_store_dword v{t3}, v13, s[{sWS}:{sWS+3}], s{sA} offen sc1\ns_branch f_dP")
    a.label("f_cV")
    kv_off()
    a(f"""v_and_b32 v{t0}, 51, v{vL}
    v_bfe_u32 v{t1}, v{vL}, 2, 1
    v_lshl_add_u32 v{t0}, v{t1}, 3, v{t0}
    v_bfe_u32 v{t1}, v{vL}, 3, 1
    v_lshl_add_u32 v{t0}, v{t1}, 2, v{t0}""")
    xread(a, vR0, None, t2, t3, t0)
    a(f"s_and_b32 s3, s{sJ}, 1\ns_mul_i32 s3, s3, 36864\nv_add_u32 v{vR0}, s3, v{vR0}\nv_xor_b32 v{vR1}, 32, v{vR0}")
    a(f"""v_and_b32 v{t0}, 31, v{vL}
    v_lshrrev_b32 v{t2}, 5, v{vL}
    v_mul_u32_u24 v14, 19, v{t2}
    v_add_u32 v14, v14, v{t0}
    v_add_u32 v{t2}, 38, v{t2}
    v_cmp_eq_u32 vcc, 19, v{t0}
    v_mov_b32 v{t3}, 0x3f803f80
    s_nop 0
    v_cndmask_b32 v14, v14, v{t2}, vcc
    v_cndmask_b32 v80, v{t3}, 0, vcc
    v_lshlrev_b32 v14, 4, v14""")
    for k in range(1, 8): a(f"v_mov_b32 v{80+k}, v80")
    duty_chain("V")
    a("s_mov_b32 exec_lo, 0x3ffff\ns_mov_b32 exec_hi, 0x3ffff\ns_nop 5")
    for k in range(8): a(f"v_cvt_pk_bf16_f32 v{80+k}, v{ACC+2*k}, v{ACC+2*k+1}")
    a("s_mov_b32 exec_lo, 0xfffff\ns_mov_b32 exec_hi, 0xfffff")
    for s in (sF, sE):
        for u in range(2): a(f"buffer_store_dwordx4 v[{80+4*u}:{83+4*u}], v14, s[{sWS}:{sWS+3}], s{s} offen offset:{1152+VB*u} sc1")
    a("s_mov_b64 exec, -1")
    a.label("f_dP")
    stamp(a, 3, "P")
    a("s_waitcnt vmcnt(0)")
    tag_signal(a, FL1, 8, t0, t2, True)
    if "fl0" in EXP:
        a(f"s_add_u32 s{sG}, s{sG}, {(FL0 - FL1) & 0xffffffff}\ns_mov_b64 exec, 255\nbuffer_store_dwordx2 v[{t2}:{t2+1}], v{t0}, s[{sWS}:{sWS+3}], s{sG} offen sc1\ns_mov_b64 exec, -1")
    if THR("pc", 0) or "pz" in EXP: a(f"v_mov_b32 v{t0}, {F_DUTY}\nv_mov_b32 v{t1}, 2\nds_write_b32 v{t0}, v{t1}")
    stamp(a, 3); stamp(a, 4, "P")
    a("s_branch f_dS")
    a.label("f_cF")
    a(f"s_bfe_u32 s{sGrp}, s{sJ}, 0x10001\ns_add_u32 s{sGrp}, s{sGrp}, 16\ns_waitcnt lgkmcnt(0)")
    nonce()
    a(f"s_mov_b32 s{J_sG}, s{sGrp}\nv_mov_b32 v{J_vX}, v{vR0}\nv_mov_b32 v{J_vF}, v{vF}\ns_setprio {THR('wp', 2)}")
    fnet_job(a, "f_k")
    fnet_job2(a, [48, 52, 56, 60])
    a("s_setprio 3")
    a.label("f_dS")
    helper_setup(a, t0, t1, t2, t3)
    a(f"""v_bfe_u32 v{t1}, v{vL}, 2, 2
    v_add_u32 v{t1}, s{sT1}, v{t1}
    v_and_b32 v{t1}, 31, v{t1}
    v_lshlrev_b32 v{t1}, 7, v{t1}
    v_and_b32 v{t2}, 3, v{vL}
    v_lshl_add_u32 v{t1}, v{t2}, 3, v{t1}
    s_and_b32 s{sD}, s{sT1}, 7
    s_lshl_b32 s{sD}, s{sD}, 12
    s_add_u32 s{sD}, s{sD}, {FL1}""")
    tag_wait(a, "f_m2", t1, sD, 1, FR, sleep=1, lanes=16 if 'noat' not in EXP else 0)
    vKM = 40
    a(f"""v_mov_b32 v{t1}, {F_S1F}
    v_mov_b32 v{t2}, 1
    ds_write_b32 v{t1}, v{t2}
    s_lshl_b32 s3, s{sT1}, 8
    s_add_u32 s3, s3, {KMG}
    buffer_load_dwordx4 v[{vKM}:{vKM+3}], v{hL16}, s[{sWS}:{sWS+3}], s3 offen sc1
    v_lshrrev_b32 v14, 2, v{vL}
    v_lshlrev_b32 v14, 7, v14
    v_and_b32 v{t2}, 3, v{vL}
    v_lshl_add_u32 v14, v{t2}, 3, v14
""")
    if "fl0" in EXP: a(f"s_add_u32 s{sD}, s{sD}, {(FL0 - FL1) & 0xffffffff}")
    def look():
        a(f"""buffer_load_dwordx2 v[{FR}:{FR+1}], v14, s[{sWS}:{sWS+3}], s{sD} offen sc1
        buffer_load_dwordx2 v[{FR+2}:{FR+3}], v14, s[{sWS}:{sWS+3}], s{sD} offen offset:2048 sc1""")
    if "fl0" in EXP: look()
    stamp(a, 5, "P")
    kv_first("f_kv1")
    a(f"s_waitcnt vmcnt(4)\nv_max3_f32 v{vKM}, v{vKM}, v{vKM+1}, v{vKM+2}\nv_max_f32 v{vKM}, v{vKM}, v{vKM+3}")
    wave_max(a, vKM, sC)
    a(f"""v_sqrt_f32 v{t3}, s{sC}
    v_mov_b32 v{t2}, {f2u(OFFS)}
    v_mov_b32 v{t1}, {F_KC}
    v_cvt_pk_bf16_f32 v{t3}, -v{t3}, v{t2}
    ds_write_b32 v{t1}, v{t3}
    v_cmp_ne_u64 vcc, s[{sNon}:{sNon+1}], v[{FR}:{FR+1}]
    v_cmp_ne_u64 s[6:7], s[{sNon}:{sNon+1}], v[{FR+2}:{FR+3}]
    s_waitcnt vmcnt(0)
    ds_write_b32 v{hMk}, v{one}
    s_or_b64 vcc, vcc, s[6:7]
    {"s_cbranch_vccz f_m4" if "fl0" in EXP else ""}""")
    tag_wait(a, "f_m3", 14, sD, 2, FR, step=2048)
    a.label("f_m4")
    a(f"ds_write_b32 v{vF}, v{one}")
    a.label("f_h1")
    stamp(a, 6, "P"); stamp(a, 4); stamp(a, 3, "K")
    lds_wait(a, "f_h2", vF, t1, 1, sleep=1)
    lds_wait(a, "f_h2a", hPr, t1, 3 if "c1l" in EXP else 2, sleep=1)
    stamp(a, 1, "H"); stamp(a, 4, "K")
    due = {}
    def grp(src, dst, tag, TK=THR("tk", 3)):
        a(f"s_add_u32 m0, s{sB}, {dst}\ns_add_u32 s3, s{sA}, {src}")
        for k in range(4):
            if len(a.vm) >= TK:
                a(f"s_waitcnt vmcnt({TK-1})"); a.vm = a.vm[len(a.vm) - (TK-1):]
                for t in [t for t in due if t not in a.vm]: a(f"v_mov_b32 v{val}, {due.pop(t)}\nds_write_b32 v{hMk}, v{val}")
            a.vmem(f"buffer_load_dwordx4 v{hL16}, s[{sWS}:{sWS+3}], s3 offen offset:{1024*k} sc1 lds", tag)
    P2 = J1*TILE
    grp(16384, LW + 16384, "c1", THR("tc", 4)); due["c1"] = 2
    if "c1l" not in EXP: a(f"v_mov_b32 v{val}, {due.pop('c1')}\ns_waitcnt vmcnt(0)\nds_write_b32 v{hMk}, v{val}"); a.vm = []
    if "c1l" not in EXP: lds_wait(a, "f_h2b", hPr, t1, 3, sleep=1)
    grp(32768, LW + 32768, "c2"); grp(P2, 0, "p0"); due["p0"] = 3
    grp(P2 + 16384, 16384, "p1"); grp(P2 + 32768, 32768, "p2")
    assert not due
    due["p2"] = 4
    for i in (3, 4): grp(P2 + 16384*i, 16384*i, f"p{i}")
    sS2, sT = 71, 72
    a(f"""s_and_b32 s{sS2}, s{sJ}, 1
    s_lshl_b32 s{sS2}, s{sS2}, 5
    s_add_u32 s{sS2}, s{sS2}, s{sT1}
    s_mul_i32 s{sS2}, s{sS2}, {GP}
    s_add_u32 s{sS2}, s{sS2}, {GT}
    s_lshr_b32 s{sT}, s{sJ}, 1
    s_lshl_b32 s{sT}, s{sT}, 7
    s_sub_u32 s3, {GU + 448}, s{sT}
    s_cmp_lt_u32 s{sWave}, 2
    s_cselect_b32 s{sT}, s{sT}, s3
    s_add_u32 s{sT}, s{sT}, s{sS2}
    s_bitcmp1_b32 s{sWave}, 0
    s_cselect_b32 s3, {64*GP}, 0
    s_add_u32 s{sT}, s{sT}, s3""")
    if "nojob" not in EXP: lds_wait(a, "f_x3", hXc, t1, 1, sleep=2)
    for i in range(4): a(f"ds_read_b128 v[{32+4*i}:{35+4*i}], v{hGr} offset:{1024*i}")
    GOF = [48, 52, 56, 60]
    a(f"s_waitcnt lgkmcnt(0)\nds_write_b32 v{hMt}, v{one}")
    lds_wait(a, "f_x4", hTa, t1, 1, sleep=1)
    grp(P2 + 16384*5, 16384*5, "p5")
    a(f"s_cmp_ge_u32 s{sWave}, 3\ns_cbranch_scc1 f_h3")
    grp(P2 + 16384*6, 16384*6, "p6")
    a.label("f_h3")
    assert not due
    a(f"v_mov_b32 v{val}, 5\ns_waitcnt vmcnt(0)\nds_write_b32 v{hMk}, v{val}")
    a.vm = []
    stamp(a, 2, "H")
    for i in range(4):
        a(f"buffer_store_dwordx4 v[{32+4*i}:{35+4*i}], v{hGs}, s[{sWS}:{sWS+3}], s{sT} offen sc1")
        if i < 3: a(f"s_add_u32 s{sT}, s{sT}, {8*128*GP}")
    a(f"""s_cmp_lg_u32 s{sWave}, 0
    s_cbranch_scc1 f_h3b
    s_lshr_b32 s3, s{sJ}, 1
    s_cmp_lg_u32 s3, {THR("gj", 0)//2}
    s_cbranch_scc1 f_h3c
    v_lshlrev_b32 v{t3}, 2, v{vL}
    v_add_u32 v13, {F_G2}, v{t3}
    ds_read_b32 v13, v13
    s_lshl_b32 s{sF}, s{sRb}, 7
    s_add_u32 s{sF}, s{sF}, {GG}
    s_mov_b32 exec_hi, 0
    s_waitcnt lgkmcnt(0)
    buffer_store_dword v13, v{t3}, s[{sWS}:{sWS+3}], s{sF} offen sc1
    s_mov_b32 exec_hi, -1""")
    a.label("f_h3c")
    a(f"""v_and_b32 v{t1}, 31, v{vL}
    v_mul_u32_u24 v{t2}, {128*GP}, v{t1}
    s_cmp_ge_u32 s{sJ}, 4
    s_cbranch_scc1 f_h3a
    s_cmp_ge_u32 s{sJ}, 2
    s_cbranch_scc1 f_h3b
    v_lshlrev_b32 v{t1}, 2, v{t1}
    v_add_u32 v{t1}, {F_N}, v{t1}
    ds_read_b32 v{t1}, v{t1}
    s_add_u32 s3, s{sS2}, {64*GP}
    s_mov_b32 exec_hi, 0
    s_waitcnt lgkmcnt(0)
    buffer_store_short v{t1}, v{t2}, s[{sWS}:{sWS+3}], s{sS2} offen offset:{GU-2} sc1
    buffer_store_short_d16_hi v{t1}, v{t2}, s[{sWS}:{sWS+3}], s3 offen offset:{GU-2} sc1
    s_mov_b32 exec_hi, -1
    s_branch f_h3b""")
    a.label("f_h3a")
    a(f"""v_lshrrev_b32 v{t3}, 5, v{vL}
    v_lshlrev_b32 v{t3}, 4, v{t3}
    v_sub_u32 v{t1}, v{t2}, v{t3}
    v_add_u32 v{t2}, v{t2}, v{t3}
    v_add_u32 v{t1}, 16, v{t1}
    s_lshl_b32 s3, s{sGrp}, 5
    s_add_u32 s{sT}, s{sS2}, s3
    s_sub_u32 s{sT+1}, s{sS2}, s3
    s_add_u32 s{sT+1}, s{sT+1}, {GU + 560 - 16}""")
    for kind in range(4):
        if kind & 1: a(f"s_add_u32 s{sT + (kind >> 1)}, s{sT + (kind >> 1)}, {64*GP}")
        a(f"buffer_store_dwordx4 v[{GOF[kind]}:{GOF[kind]+3}], v{t1 if kind >> 1 else t2}, s[{sWS}:{sWS+3}], s{sT + (kind >> 1)} offen sc1")
    a.label("f_h3b")
    last_wave_signals(a, "f_h5", F_CNT2, 4, FL2, 8, t1, t2)
    stamp(a, 6)
    vG = 15
    ACC, W2, OB, AR = 16, 36, 52, 124
    sRb, sCol = 70, 71
    srd(a, sRA, 34, 576*1152); srd(a, sRB, 18, 2048*4096); srd(a, sRC, 20, 2048*4096); srd(a, sRD, 38, 2048*1152)
    a(f"""s_lshr_b32 s3, s2, 3
    s_lshl_b32 s3, s3, 2
    s_add_u32 s3, s3, s{sWave}
    s_mul_i32 s3, s3, {41*128}
    v_lshlrev_b32 v{t1}, 3, v{hL16}
    s_mov_b32 exec_hi, 0x1ff
    buffer_load_dword v14, v{t1}, s[{sRA}:{sRA+3}], s3 offen
    s_mov_b32 exec_hi, -1
    s_lshr_b32 s{sRb}, s{sWave}, 1
    s_lshl_b32 s{sRb}, s{sRb}, 5
    s_add_u32 s{sRb}, s{sRb}, s{sT1}
    s_mul_i32 s{sCol}, s{sJ}, 144
    s_lshl_b32 s{sC}, s{sWave}, 10
    s_lshl_b32 s{sA}, s{sRb}, 12""")
    for k in range(4):
        r = sRB if k < 2 else sRC
        a(f"buffer_load_dwordx4 v[{W2+4*k}:{W2+4*k+3}], v{hW2}, s[{r}:{r+3}], s{sA} offen offset:{64*(k&1)}")
    nds = [0]
    def dstep(dst, r, vS, sc=""):
        nds[0] += 1
        for i in range(3):
            if i == 2: a(f"s_cmp_lg_u32 s{sWave}, 0\ns_cbranch_scc1 f_ds{nds[0]}")
            a(f"s_add_u32 m0, s{sC}, {dst + 4096*i}\n" + (f"s_waitcnt vmcnt({THR('tt', 3) - 1})" if THR("tt", 3) else "s_nop 0"))
            a(f"buffer_load_dwordx4 v{vS+i}, s[{r}:{r+3}], s{sB} offen {sc} lds")
        a.label(f"f_ds{nds[0]}")
    def dsaddr(m): return LW + 9216*m if m < 5 else 9216*(m - 5)
    def wo_step(m):
        a(f"s_add_u32 s{sB}, s{sJ}, {m}\ns_and_b32 s{sB}, s{sB}, 7\ns_mul_i32 s{sB}, s{sB}, {72*1152}\ns_add_u32 s{sB}, s{sB}, s{sCol}")
        dstep(dsaddr(m), sRA, hSm)
    lds_wait(a, "f_t1", hPr, t1, 4, sleep=32)
    for m in range(5): wo_step(m)
    lds_wait(a, "f_t3", hPr, t1, 5, sleep=32)
    for m in range(5, 8): wo_step(m)
    a(f"""v_mov_b32 v{vF}, {F_S2}
    s_cmp_lg_u32 s{sWave}, 3
    s_cbranch_scc1 f_t6_x
    s_and_b32 s{sD}, s{sT1}, 7
    s_lshl_b32 s{sD}, s{sD}, 12
    s_add_u32 s{sD}, s{sD}, {FL2}""")
    tag_wait(a, "f_t6", hS2, sD, 4, OB, sleep=8)
    a(f"""v_and_b32 v{t1}, 31, v{vL}
    v_lshrrev_b32 v{t2}, 5, v{vL}
    v_lshlrev_b32 v{t1}, 2, v{t1}
    v_lshl_add_u32 v{t1}, v{t2}, 12, v{t1}
    s_lshl_b32 s3, s{sT1}, 7
    s_add_u32 s3, s3, {GG}
    buffer_load_dword v{t2}, v{t1}, s[{sWS}:{sWS+3}], s3 offen sc1
    v_lshrrev_b32 v{t1}, 2, v{hL16}
    v_add_u32 v{t1}, {F_G}, v{t1}
    s_waitcnt vmcnt(0)
    ds_write_b32 v{t1}, v{t2}
    ds_write_b32 v{vF}, v{one}
    s_cmp_lg_u32 s2, 0
    s_cbranch_scc1 f_t6_x
    v_mov_b32 v{t1}, {EP}
    v_mov_b32 v{t2}, s{sNon}
    v_mov_b32 v{t3}, s{sNon+1}
    s_mov_b64 exec, 1
    buffer_store_dwordx2 v[{t2}:{t3}], v{t1}, s[{sWS}:{sWS+3}], 0 offen
    s_mov_b64 exec, -1""")
    a.label("f_t6_x")
    stamp(a, 5, "H")
    lds_wait(a, "f_t7", hPr, t1, 6, sleep=THR("s7", 8))
    a(f"s_mov_b32 s{sB}, s{sCol}")
    dstep(dsaddr(8), sRA, hSx)
    a(f"""s_mul_i32 s{sB}, s{sT1}, {128*GP}
    s_add_u32 s{sB}, s{sB}, {GT}
    s_add_u32 s{sB}, s{sB}, s{sCol}
    s_cmp_ge_u32 s{sJ}, 4
    s_cselect_b32 s3, {GU - 2 - 576}, 0
    s_add_u32 s{sB}, s{sB}, s3""")
    lds_wait(a, "f_t8", vF, t1, 1, sleep=4)
    a(f"ds_read_b32 v{vG}, v{hGa}")
    dstep(dsaddr(9), sWS, hSg, "sc1")
    a(f"s_add_u32 s{sB}, s{sB}, {64*GP}")
    dstep(dsaddr(10), sWS, hSg, "sc1")
    a(f"""v_mov_b32 v{val}, 2
    v_mov_b32 v{vF}, {F_CNT3}
    s_lshl_b32 s{sD}, s{sWave}, 12
    s_lshl_b32 s3, s{sT1}, 7
    s_add_u32 s{sD}, s{sD}, s3
    s_add_u32 s{sD}, s{sD}, {FL3}
    s_lshl_b32 s{sA}, s{sT1}, 2
    s_add_u32 s{sA}, s{sA}, s{sWave}
    s_lshl_b32 s{sB}, s{sA}, 11
    s_and_b32 s{sB}, s{sB}, {0xfffff000}
    s_and_b32 s3, s{sWave}, 1
    s_mul_i32 s{sE}, s3, {16*73728}
    s_lshl_b32 s3, s3, 6
    s_add_u32 s{sB}, s{sB}, s3
    s_add_u32 s{sB}, s{sB}, {OX}
    s_lshl_b32 s{sA}, s{sA}, 14
    s_add_u32 s{sA}, s{sA}, {OF}
    s_mul_i32 s3, s{sRb}, 1152
    s_add_u32 s{sE}, s{sE}, s3
    s_add_u32 s{sE}, s{sE}, s{sCol}
    s_waitcnt vmcnt(0)
    ds_write_b32 v{hMt}, v{val}""")
    lds_wait(a, "f_t9", hTa, t1, 2, sleep=4)
    stamp(a, 6, "H")
    NR = 7
    def rd(f):
        ks, mu = divmod(f, 5)
        m = 9 + (ks >> 1) if ks < 4 else (ks - 4) >> 1
        v, o = (hTw, 9216*m) if m < 5 else (hTr, 9216*(m - 5))
        o += 4608*(ks & 1) + 32*mu
        r = AR + 4 * (f % 8)
        a(f"ds_read_b64_tr_b16 v[{r}:{r+1}], v{v} offset:{o}")
        a(f"ds_read_b64_tr_b16 v[{r+2}:{r+3}], v{v} offset:{o+144}")
    lds_wait(a, "f_t12", vF, t1, 4, sleep=THR("cs", 2))
    if "pe" in EXP: a(f"v_mov_b32 v12, 0\nv_mov_b32 v13, 0\ns_mov_b64 exec, 0xff\nbuffer_atomic_or_x2 v[12:13], v{hTg}, s[{sWS}:{sWS+3}], s{sD} offen sc0 sc1\ns_mov_b64 exec, -1")
    for f in range(NR): rd(f)
    for f in range(110):
        ks, mu = divmod(f, 5)
        if f == 20:
            a("s_nop 3")
            for r in range(20): a(f"v_mul_f32 v{ACC+r}, v{ACC+r}, v{vG}")
            stamp12(a, 1); stamp(a, 1, "T")
            tag_wait(a, "f_t10", hTg, sD, 1, 12, sleep=1, lanes=8, sent="pe" in EXP)
            stamp12(a, 2); stamp(a, 2, "T")
            for k in range(18):
                if k >= 16:
                    for j in range(4): a.vmem(f"buffer_load_dword v{OB+4*k+j}, v{hOx}, s[{sWS}:{sWS+3}], s{sB} offen offset:{2048*(k-16) + 128*j} sc1", f"o{k}")
                    continue
                if k & 1 == 0: a(f"s_add_u32 s3, s{sJ}, {k//2}\ns_and_b32 s3, s3, 7\ns_lshl_b32 s3, s3, 11\ns_add_u32 s3, s3, s{sA}")
                a.vmem(f"buffer_load_dwordx4 v[{OB+4*k}:{OB+4*k+3}], v{hL16}, s[{sWS}:{sWS+3}], s3 offen offset:{(k&1)*1024} sc1", f"o{k}")
        if ks >= 4 and mu == 0: a.vm_wait(f"o{ks-4}")
        if ks == 4 and mu == 0: stamp(a, 3, "T")
        if ks == 21 and mu == 0: stamp(a, 4, "T")
        if f & 1 == 0: a(f"s_waitcnt lgkmcnt({2*(min(110, f + NR) - f - 2)})")
        r = AR + 4 * (f % 8)
        B = W2 + 4*ks if ks < 4 else OB + 4*(ks-4)
        ac = ACC + 4*mu
        a(f"v_mfma_f32_16x16x32_bf16 v[{ac}:{ac+3}], v[{r}:{r+3}], v[{B}:{B+3}], " + ("0" if ks == 0 else f"v[{ac}:{ac+3}]"))
        if f + NR < 110: rd(f + NR)
    stamp12(a, 3); stamp(a, 5, "T")
    a("s_nop 3")
    for mu in range(5):
        ac = ACC + 4*mu
        if mu == 4: a("s_mov_b32 exec_hi, 0")
        a(f"v_cvt_pk_bf16_f32 v{W2+2*mu}, v{ac}, v{ac+1}\nv_cvt_pk_bf16_f32 v{W2+2*mu+1}, v{ac+2}, v{ac+3}")
        a(f"ds_write_b64 v{hOw}, v[{W2+2*mu}:{W2+2*mu+1}] offset:{32*mu}")
    a("s_mov_b32 exec_hi, -1")
    for it in range(3): a(f"ds_read_b128 v[{OB+4*it}:{OB+4*it+3}], v{hOr} offset:{1024*it}")
    for it in range(3):
        a(f"s_waitcnt lgkmcnt({2-it})")
        if it == 2: a("s_mov_b64 exec, 0xffff")
        a(f"buffer_store_dwordx4 v[{OB+4*it}:{OB+4*it+3}], v{hOo+it}, s[{sRD}:{sRD+3}], s{sE} offen")
    stamp(a, 6, "T")
    G0.stamp_end(a, 0, sWS, sWave)
    a("s_endpgm")

    a.label("f_att")
    a.vm = []
    Q1, Q2, vG, aK, ak, aV = [4, 112], [8, 110], [10, 14], 11, 12, 13
    vt0, vt1, vt2, vt3 = 2, 3, 14, 15
    O, S, K1, K2, V, PB = [136, 152], [32, 48, 64], [96, 100], [104, 106], [116, 80], [16, 20, 24, 28, 88, 92]
    def zero_o():
        for r in range(32): a(f"v_mov_b32 v{O[0]+r}, 0")
    aF, aP = 108, 109
    vW, vR0, vR1, vA0, vA1, vSt = 110, 111, 112, 113, 114, 115
    vOa, vOb, vN, vH = 128, 129, J_N, 131
    sW8, sKh, sHd, sHead, sGrp, sFb, sO = 70, 71, 72, 73, J_sG, 75, 76
    a("s_barrier")
    a(f"s_sub_u32 s{sW8}, s{sWave}, 4")
    a("s_getpc_b64 s[4:5]")
    a.label("f_pf")
    a(f"""s_sub_u32 s4, s4, f_pf-f_code
    s_subb_u32 s5, s5, 0
    s_lshr_b32 s3, s2, 3
    s_lshl_b32 s6, s{sW8}, 6
    s_add_u32 s3, s3, s6
    v_lshlrev_b32 v{vt0}, 5, v{vL}
    v_add_u32 v{vt0}, s3, v{vt0}
    v_lshlrev_b32 v{vt0}, 7, v{vt0}
    v_min_u32 v{vt0}, rf_end-f_code-4, v{vt0}
    s_mov_b64 exec, 3
    global_load_dword v{vN}, v{vt0}, s[4:5]
    s_mov_b64 exec, -1""")
    xread(a, vR0, vR1, vt0, vt1)
    a(f"""s_lshr_b32 s{sKh}, s{sW8}, 2
    s_and_b32 s{sHd}, s{sW8}, 3
    s_and_b32 s3, s{sJ}, 1
    s_mul_i32 s3, s3, 36864
    v_add_u32 v{vW}, s3, v{vR0}
    v_and_b32 v{aF}, 3, v{vL}
    v_min_u32 v{aF}, 2, v{aF}
    v_lshlrev_b32 v{aF}, 2, v{aF}
    v_add_u32 v{aF}, {F_LD}, v{aF}
    s_lshl_b32 s3, s{sW8}, 2
    s_add_u32 s3, s3, {F_PRG}
    v_mov_b32 v{aP}, s3
    v_and_b32 v{vt2}, 31, v{vL}
    v_lshrrev_b32 v{vt3}, 5, v{vL}
    v_lshlrev_b32 v{vOb}, 2, v{vt2}
    v_lshlrev_b32 v{vSt}, 4, v{vL}
    s_mul_i32 s6, s{sKh}, {TILE}
    s_add_u32 s6, s6, {LW}
    v_add_u32 v{aK}, s6, v{vSt}
    s_add_u32 s3, s6, 1024
    v_add_u32 v{ak}, s3, v{vOb}
    v_cmp_eq_u32 vcc, 22, v{vt2}
    v_mul_u32_u24 v{vt0}, 19, v{vt3}
    v_add_u32 v{vt1}, 38, v{vt3}
    v_cndmask_b32 v{aV}, v{vt2}, 18, vcc
    v_cmp_gt_u32 vcc, 19, v{aV}
    v_add_u32 v{aV}, v{aV}, v{vt0}
    s_add_u32 s3, s6, 1152
    v_cndmask_b32 v{aV}, v{vt1}, v{aV}, vcc
    v_lshlrev_b32 v{aV}, 4, v{aV}
    v_add_u32 v{aV}, s3, v{aV}
    s_lshl_b32 s3, s{sHd}, 1
    s_add_u32 s3, s3, s{sKh}
    s_mul_i32 s3, s3, 1536
    s_add_u32 s3, s3, {QHA}
    v_add_u32 v{vH}, s3, v{vSt}
""")
    a(f"""s_lshl_b32 s{sHead}, s{sJ}, 2
    s_add_u32 s{sHead}, s{sHead}, s{sHd}
    s_lshl_b32 s{sB}, s{sT1}, 13
    s_lshl_b32 s3, s{sHead}, 7
    s_add_u32 s{sB}, s{sB}, s3
    s_add_u32 s{sO+1}, s{sB}, {OX}
    s_lshl_b32 s{sA}, s{sT1}, 16
    s_lshl_b32 s3, s{sHead}, 9
    s_add_u32 s{sA}, s{sA}, s3
    s_add_u32 s{sO}, s{sA}, {OF}
    s_add_u32 s{sO+2}, s{sO}, 32768
    s_add_u32 s{sO+3}, s{sO+1}, 4096
    v_lshrrev_b32 v{vt3}, 5, v{vL}
    v_and_b32 v{vOa}, 15, v{vL}
    v_lshlrev_b32 v{vOa}, 4, v{vOa}
    v_bfe_u32 v{vt1}, v{vL}, 4, 1
    v_lshl_add_u32 v{vOa}, v{vt1}, 14, v{vOa}
    v_lshl_add_u32 v{vOa}, v{vt3}, 8, v{vOa}""")
    common_srd()
    a(f"""s_mul_i32 s3, s{sKh}, 36864
    v_add_u32 v{vR0}, s3, v{vR0}
    v_xor_b32 v{vR1}, 32, v{vR0}
    s_bitcmp1_b32 s{sHd}, 0
    s_mov_b32 s{sB}, 0x34343120
    s_mov_b32 s{sC}, {LW}
    s_cmov_b32 s{sB}, 0x44423120
    s_cmov_b32 s{sC}, {LW-4}
    s_mul_i32 s3, s{sHd}, 36
    s_add_u32 s{sC}, s{sC}, s3
    v_bfe_u32 v{vt0}, v{vL}, 4, 1
    v_and_b32 v{vt1}, 3, v{vL}
    v_lshl_add_u32 v{vt0}, v{vt0}, 2, v{vt1}
    v_lshlrev_b32 v{vt0}, 2, v{vt0}
    v_lshrrev_b32 v{vt0}, v{vt0}, s{sB}
    v_and_b32 v{vt0}, 15, v{vt0}
    v_bfe_u32 v{vt1}, v{vL}, 2, 2
    v_lshl_add_u32 v{vt1}, v{vt1}, 1, v{vt3}
    v_mul_u32_u24 v{vt1}, 288, v{vt1}
    v_lshl_add_u32 v{vA0}, v{vt0}, 3, v{vt1}
    v_add_u32 v{vA0}, s{sC}, v{vA0}
    v_subrev_u32 v{vA1}, {LW-LD}, v{vA0}
    s_cmp_lg_u32 s{sKh}, 0
    s_cbranch_scc1 f_b0
    s_lshr_b32 s3, s{sJ}, 1
    s_lshl_b32 s3, s3, 2
    s_add_u32 s3, s3, s{sHd}
    s_cmp_lg_u32 s3, 2
    s_cbranch_scc1 f_a0
    v_xor_b32 v4, 32, v{vW}
    v_lshlrev_b32 v5, 4, v{vt3}
    v_add_u32 v5, {LGATE}, v5
    v_add_u32 v6, {F_G2}, v{vOb}""")
    lds_wait(a, "f_g1", aF, vt0, 6, sleep=1)
    duty_chain("G", 16, vW, 4, 5)
    a(f"""s_nop 11
    v_mul_f32 v4, {f2u(-math.log2(math.e))}, v16
    v_exp_f32 v4, v4
    s_nop 0
    v_add_f32 v4, 1.0, v4
    v_rcp_f32 v4, v4
    s_nop 0
    ds_write_b32 v6, v4
    s_branch f_a0""")
    a.label("f_b0")
    a(f"""s_lshr_b32 s{sGrp}, s{sJ}, 1
    s_lshl_b32 s{sGrp}, s{sGrp}, 2
    s_add_u32 s{sGrp}, s{sGrp}, s{sHd}
    s_setprio 1""")
    fnet_job(a)
    if "j2l" not in EXP: fnet_job2(a)
    if "bq0" in EXP: a("s_setprio 0")
    a.label("f_a0")
    stamp(a, 1, "P")
    QA, QR = 32, 64
    lg = []
    def qwait(tag):
        if tag in lg:
            i = max(k for k, t in enumerate(lg) if t == tag)
            a(f"s_waitcnt lgkmcnt({len(lg) - 1 - i})"); del lg[:i + 1]
    def qrd(ks):
        c, b = ks >> 2, QR + 8*(ks % 5)
        v, o = (vA0, 9216*c) if c < 5 else (vA1, 9216*(c-5))
        o += 2304*(ks & 3)
        a(f"ds_read_b64_tr_b16 v[{b}:{b+1}], v{v} offset:{o}")
        a(f"ds_read_b64_tr_b16 v[{b+2}:{b+3}], v{v} offset:{o + 144}")
        a(f"ds_read_b128 v[{b+4}:{b+7}], v{vR1 if ks & 1 else vR0} offset:{2048*(ks>>1)}")
        lg.extend([ks]*3)
        assert len(lg) <= 15
    lds_wait(a, "f_q0", aF, vt0, QF)
    nonce()
    stamp(a, 2, "P"); stamp(a, 1)
    for ks in range(4): qrd(ks)
    for ks in range(36):
        c, b = ks >> 2, QR + 8*(ks % 5)
        qwait(ks)
        a(f"v_mfma_f32_32x32x16_bf16 v[{QA}:{QA+15}], v[{b}:{b+3}], v[{b+4}:{b+7}], " + ("0" if ks == 0 else f"v[{QA}:{QA+15}]"))
        if ks in (7, 19): a(f"v_mov_b32 v{vt1}, {1 if ks == 7 else 2}\nds_write_b32 v{aP}, v{vt1}"); lg.append("w")
        if ks == 7: stamp(a, 1, "K")
        if ks & 3 == 0 and c < 8:
            qwait("f")
            a(f"v_cmp_gt_i32 vcc, {QF + c + 1}, v{vt0}\ns_cbranch_vccz f_q{c+1}_ok")
            lds_wait(a, f"f_q{c+1}", aF, vt0, QF + c + 1)
            a.label(f"f_q{c+1}_ok")
            if c == 4: stamp(a, 3, "P")
        if ks & 3 == 2 and c < 7: a(f"ds_read_b32 v{vt0}, v{aF}"); lg.append("f")
        if ks == THR("zo", 21): a(f"s_cmp_lg_u32 s{sKh}, 0\ns_cbranch_scc1 f_z0"); zero_o(); a.label("f_z0")
        if ks == 31: a(f"v_and_b32 v{vt2}, 28, v{vOb}\nv_add_u32 v{vt2}, {F_PRG}, v{vt2}\nds_read_b32 v{vt3}, v{vt2}"); lg.append("g")
        if ks + 4 < 36: qrd(ks + 4)
    stamp(a, 4, "P")
    a(f"""s_mov_b32 s{sB}, {f2u(CQ)}
    s_lshl_b32 s3, s{sW8}, 2
    s_add_u32 s3, s3, {F_QH}
    v_mov_b32 v{vt0}, s3
    v_xor_b32 v{aF}, 16, v{vt0}
    v_mov_b32 v{vt1}, 1
    v_cmp_gt_i32 vcc, 2, v{vt3}
    s_cbranch_vccz f_q9_ok""")
    lds_wait(a, "f_q9", vt2, vt3, 2)
    a.label("f_q9_ok")
    T = 48
    a(f"s_nop 1\ns_bitcmp1_b32 s{sHd}, 0\ns_cbranch_scc1 f_qodd")
    def qmove(r0, rx):
        for r in range(8): a(f"v_mul_f32 v{T+r}, s{sB}, v{QA+r0+r}")
        for r in range(2): a(f"v_mul_f32 v{T+8+r}, s{sB}, v{QA+rx+r}")
    qmove(0, 8)
    a("s_branch f_qdone")
    a.label("f_qodd")
    qmove(2, 14)
    a.label("f_qdone")
    n0, n1 = T + 10, T + 11
    for r in range(2): a(f"v_cndmask_b32 v{T+8+r}, v{T+8+r}, 0, s[{sHi}:{sHi+1}]")
    a(f"v_mul_f32 v{n0}, v{T}, v{T}")
    for r in range(1, 10): a(f"v_fmac_f32 v{n0}, v{T+r}, v{T+r}")
    a(f"v_mov_b32 v{n1}, v{n0}")
    for k in range(4): a(f"v_cvt_pk_bf16_f32 v{Q1[0]+k}, v{T+2*k}, v{T+2*k+1}")
    a(f"""v_permlane32_swap_b32 v{n0}, v{n1}
    v_cvt_pk_bf16_f32 v{Q2[0]}, v{T+8}, v{T+9}
    v_add_f32 v{n0}, v{n0}, v{n1}
    v_sqrt_f32 v{n0}, v{n0}
    ds_write_b128 v{vH}, v[{Q1[0]}:{Q1[0]+3}]
    v_cvt_pk_bf16_f32 v{Q2[0]+1}, v{n0}, 1.0
    v_cndmask_b32 v{Q2[0]+1}, v{Q2[0]+1}, 0, s[{sHi}:{sHi+1}]
    s_mov_b32 exec_hi, 0
    ds_write_b64 v{vH}, v[{Q2[0]}:{Q2[0]+1}] offset:1024
    s_mov_b32 exec_hi, -1
    ds_write_b32 v{vt0}, v{vt1}
    s_mul_i32 s3, s{sKh}, -3072
    s_add_u32 s3, s3, 1536
    v_add_u32 v{vH}, s3, v{vH}
    v_mov_b32 v{Q2[1]}, 0
    v_mov_b32 v{Q2[1]+1}, 0""")
    lds_wait(a, "f_b1", aF, vt3, 1)
    a(f"""ds_read_b128 v[{Q1[1]}:{Q1[1]+3}], v{vH}
    s_mov_b32 exec_hi, 0
    ds_read_b64 v[{Q2[1]}:{Q2[1]+1}], v{vH} offset:1024
    s_mov_b32 exec_hi, -1
    v_mov_b32 v{vt1}, 3
    s_mul_i32 s3, s{sHd}, 6144
    s_add_u32 s3, s3, {OPA}
    v_lshlrev_b32 v{vH}, 4, v{vL}
    v_add_u32 v{vH}, s3, v{vH}
    s_waitcnt lgkmcnt(0)
    ds_write_b32 v{aP}, v{vt1}
    s_cmp_eq_u32 s{sKh}, 0
    s_cbranch_scc1 f_go
    s_setprio 3""")
    if "j2l" in EXP: fnet_job2(a)
    zero_o()
    GO = J_GO
    a(f"""v_lshrrev_b32 v{vt3}, 5, v{vL}
    s_lshl_b32 s3, s{sHd}, 1
    v_add_u32 v32, s3, v{vt3}
    v_xor_b32 v32, v32, v{vL}
    v_and_b32 v32, 7, v32
    v_lshlrev_b32 v32, 4, v32
    v_lshl_add_u32 v32, v{vOb}, 5, v32
    v_add_u32 v32, {GSC}, v32
    v_xor_b32 v33, 112, v32
    v_add_u32 v34, {F_N}, v{vOb}
    s_lshl_b32 s3, s{sHd}, 2
    s_add_u32 s6, s3, {F_XC}
    v_mov_b32 v35, s6""")
    lds_wait(a, "f_b2", vt2, vt3, 3, sleep=1)
    for kind in range(4): a(f"ds_write_b128 v{33 if kind >> 1 else 32}, v[{GO[kind]}:{GO[kind]+3}] offset:{4096*kind}")
    a(f"s_cmp_lg_u32 s{sHd}, 0\ns_cbranch_scc1 f_b3\ns_mov_b32 exec_hi, 0\nds_write_b32 v34, v{vN}\ns_mov_b32 exec_hi, -1")
    a.label("f_b3")
    a(f"v_mov_b32 v{vt1}, 1\nds_write_b32 v35, v{vt1}")
    a.label("f_go")
    a(f"""v_and_b32 v{aF}, 12, v{vOb}
    v_add_u32 v{aF}, {F_KV}, v{aF}
    v_mov_b32 v{vt2}, {F_KC}""")
    stamp(a, 6, "P"); stamp(a, 2, "K")
    lds_wait(a, "f_a6", aF, vt3, 1)
    stamp(a, 3, "K"); stamp(a, 3)
    a(f"s_setprio {PRIO[0]}")
    if G0.STAMP and "C" in EXP: a("s_memtime s[84:85]")
    base = {aK: LW, ak: LW, aV: LW}
    def off(v, i, extra=0):
        o = ltile(2*i) + extra - base[v]
        if not 0 <= o < 65536:
            nb = ltile(2*i)
            a(f"v_add_u32 v{v}, {(nb - base[v]) & 0xffffffff}, v{v}")
            base[v] = nb; o = extra
        return o
    rdK = lambda i: f"ds_read_b128 v[{K1[i&1]}:{K1[i&1]+3}], v{aK} offset:{off(aK, i)}"
    rdk = lambda i: f"ds_read_b32 v{K2[i&1]}, v{ak} offset:{off(ak, i)}"
    rdV = lambda i, u: f"ds_read_b128 v[{V[i&1]+4*u}:{V[i&1]+4*u+3}], v{aV} offset:{off(aV, i, VB) - VB*(1-u)}"
    vIx = 3
    def M1(st): i, t = st >> 1, st & 1; return f"v_mfma_f32_32x32x16_bf16 v[{S[st%3]}:{S[st%3]+15}], v[{K1[i&1]}:{K1[i&1]+3}], v[{Q1[t]}:{Q1[t]+3}], 0"
    def M2(st): i, t = st >> 1, st & 1; return f"v_mfma_f32_32x32x8_bf16 v[{S[st%3]}:{S[st%3]+15}], v[{K2[i&1]}:{K2[i&1]+1}], v[{Q2[t]}:{Q2[t]+1}], v[{S[st%3]}:{S[st%3]+15}]"
    def M3(st, u): i, t = st >> 1, st & 1; return f"v_smfmac_f32_32x32x32_bf16 v[{O[t]}:{O[t]+15}], v[{V[i&1]+4*u}:{V[i&1]+4*u+3}], v[{S[st%3]+8*u}:{S[st%3]+8*u+7}], v{vIx}"
    a(rdK(0)); a(rdk(0)); a(f"ds_read_b32 v{K2[0]+1}, v{vt2}"); a(f"ds_read_b32 v{K2[1]+1}, v{vt2}")
    a(f"v_mov_b32 v{vIx}, 0xdddd\ns_waitcnt lgkmcnt(0)")
    a(M1(0)); a(M2(0))
    a("s_nop 8")
    FCHK = {2: 2, 5: 3, 12: 4, 19: 5}
    PRG = {10: 4, 16: 5, 22: 6, 27: 7}
    for st in range(64):
        i, t = st >> 1, st & 1
        if t == 0:
            if i in PRIO and i: a(f"s_setprio {PRIO[i]}")
            if i == 16: stamp(a, 4)
            NS = {0: 1, 5: 2, 16: 3, 24: 4, 30: 5}
            if G0.STAMP and "N" in EXP and i in NS: a(f"s_memtime s[{82+2*NS[i]}:{83+2*NS[i]}]")
            if i in PRG: a(f"v_mov_b32 v{vt3}, {PRG[i]}\nds_write_b32 v{aP}, v{vt3}")
            if i in FCHK: lds_wait(a, f"f_w{i}", aF, vt0, FCHK[i])
            if i == 25:
                a(f"s_cmp_eq_u32 s{sKh}, 0\ns_cbranch_scc1 f_e0\nv_mov_b32 v{aF}, {F_S2}")
                lds_wait(a, "f_e1", aF, vt0, 1)
                a(f"s_lshl_b32 s3, s{sHd}, 2\ns_add_u32 s3, s3, {F_OH}\nv_mov_b32 v{aF}, s3\nv_add_u32 v{vt3}, {F_G}, v{vOb}")
                for tt in range(2): a(f"ds_read_b32 v{vG[tt]}, v{vt3} offset:{128*(1-tt)}")
                a.label("f_e0")
            if i == 26:
                for tt in range(2): a(f"v_sub_f32 v{vG[tt]}, 1.0, v{vG[tt]}")
            if i == 31: a(f"ds_read_b32 v{vt0}, v{aF}")
        if st == 63:
            a(f"s_cmp_eq_u32 s{sKh}, 0\ns_cbranch_scc1 f_e5\nv_cmp_gt_i32 vcc, 1, v{vt0}\ns_cbranch_vccz f_e2_ok")
            lds_wait(a, "f_e2", aF, vt0, 1)
            a.label("f_e2_ok")
            for q in range(6): a(f"ds_read_b128 v[{PB[q]}:{PB[q]+3}], v{vH} offset:{1024*q}")
            a.label("f_e5")
        s = S[st % 3]
        e = lambda k: [f"v_exp_f32 v{s+q}, v{s+q}" for q in range(4*k, 4*k + 4)]
        lk = [rdK(i+1), rdk(i+1)] if t == 0 and i < 31 else []
        lv = [rdV(i, 0), rdV(i, 1)] if t == 0 else []
        m1, m2 = ([M1(st+1)], [M2(st+1)]) if st < 63 else ([], [])
        p0, p1 = ([M3(st-1, 0)], [M3(st-1, 1)]) if st else ([], [])
        L = m1 + lk + e(0) + m2 + lv + e(1) + p0 + e(2) + p1 + e(3)
        if t == 0: L.append("s_waitcnt lgkmcnt(0)")
        for x in L: a(x)
    a("s_nop 1"); a(M3(63, 0)); a(M3(63, 1))
    stamp(a, 5); stamp(a, 5, "T")
    if G0.STAMP and "N" in EXP: a("s_memtime s[94:95]")
    if G0.STAMP and "C" in EXP: a("s_memtime s[86:87]")
    a(f"s_cmp_lg_u32 s{sKh}, 0\ns_cbranch_scc1 f_e3")
    a(f"""v_and_b32 v{vt2}, 28, v{vOb}
    v_add_u32 v{vt2}, {F_PRG}, v{vt2}
    s_lshl_b32 s3, s{sHd}, 2
    s_add_u32 s3, s3, {F_OH}
    v_mov_b32 v{aF}, s3
    v_mov_b32 v{vt1}, 1""")
    lds_wait(a, "f_e4", vt2, vt3, 7)
    a("s_nop 3")
    for q in range(6): a(f"ds_write_b128 v{vH}, v[{O[q//3]+4*(q%3)}:{O[q//3]+4*(q%3)+3}] offset:{1024*q}")
    a(f"ds_write_b32 v{aF}, v{vt1}")
    G0.stamp_end(a, 0, sWS, sWave)
    a("s_endpgm")
    a.label("f_e3")
    a("s_waitcnt lgkmcnt(0)\ns_nop 0")
    for r in range(11): a(f"v_add_f32 v{O[0]+r}, v{O[0]+r}, v{PB[3+(r>>2)]+(r&3)}")
    def norm(t):
        ON, PK, vr = S[1], S[2] + 8*t, S[1] + 10
        a(f"v_rcp_f32 v{vr}, v{O[t]+10}\ns_nop 0\nv_mul_f32 v{vr}, v{vr}, v{vG[t]}")
        for r in range(10): a(f"v_mul_f32 v{ON+r}, v{O[t]+r}, v{vr}")
        for k in range(5): a(f"v_cvt_pk_bf16_f32 v{PK+k}, v{ON+2*k}, v{ON+2*k+1}")
        a(f"""buffer_store_dwordx4 v[{PK}:{PK+3}], v{vOa}, s[{sWS}:{sWS+3}], s{sO+2*(1-t)} offen sc1
        s_mov_b32 exec_hi, 0
        buffer_store_dword v{PK+4}, v{vOb}, s[{sWS}:{sWS+3}], s{sO+1+2*(1-t)} offen sc1
        s_mov_b32 exec_hi, -1""")
    norm(0)
    for r in range(11): a(f"v_add_f32 v{O[1]+r}, v{O[1]+r}, v{PB[r>>2]+(r&3)}")
    norm(1)
    a(f"v_add_f32 v{vt0}, |v{O[0]}|, |v{O[1]}|")
    for r in range(1, 11):
        for t in range(2): a(f"v_add_f32 v{vt0}, |v{O[t]+r}|, v{vt0}")
    a(f"""v_min_f32 v{aF}, v{O[0]+10}, v{O[1]+10}
    v_mov_b32 v{vt3}, 0x7f800000
    v_cmp_le_f32 vcc, {f2u(LMIN)}, v{aF}
    v_cmp_lt_f32 s[6:7], v{vt0}, v{vt3}
    s_nop 0
    s_and_b64 vcc, vcc, s[6:7]
    s_cmp_eq_u64 vcc, exec
    s_cbranch_scc0 f_fallback""")
    a.label("f_n2")
    stamp(a, 1, "T")
    if "T" in EXP: a("s_waitcnt vmcnt(0)")
    stamp(a, 2, "T")
    last_wave_signals(a, "f_a9", F_CNT3, 4, FL3, 4, vt0, vt2, True)
    stamp(a, 3, "T")
    G0.stamp_end(a, 0, sWS, sWave)
    a("s_endpgm")
    a.label("f_fallback")
    s0 = S[0]
    a(f"""s_waitcnt vmcnt(0)
    v_subrev_u32 v{aK}, {base[aK] + TILE}, v{aK}
    v_subrev_u32 v{ak}, {base[ak] + TILE}, v{ak}
    v_subrev_u32 v{aV}, {base[aV] + TILE}, v{aV}""")
    for t in range(2):
        st = 3*t
        kb, vb = K1[(st >> 1) & 1], V[(st >> 1) & 1]
        k2 = K2[(st >> 1) & 1]
        a(f"v_mov_b32 v{k2+1}, 0\nv_mov_b32 v{vt0}, 0xff800000\ns_mov_b32 s{sA}, {KVG}")
        a.label(f"f_fb1{t}")
        a(f"""buffer_load_dwordx4 v[{kb}:{kb+3}], v{aK}, s[{sWS}:{sWS+3}], s{sA} offen sc1
        buffer_load_dword v{k2}, v{ak}, s[{sWS}:{sWS+3}], s{sA} offen sc1
        s_waitcnt vmcnt(0)""")
        a(M1(st)); a(M2(st)); a("s_nop 11")
        for r in range(0, 16, 2): a(f"v_max3_f32 v{vt0}, v{s0+r}, v{s0+r+1}, v{vt0}")
        a(f"""s_add_u32 s{sA}, s{sA}, {TILE}
        s_cmp_lt_u32 s{sA}, {KVG+64*TILE}
        s_cbranch_scc1 f_fb1{t}
        v_mov_b32 v{vt3}, v{vt0}
        s_nop 1
        v_permlane32_swap_b32 v{vt0}, v{vt3}
        v_max_f32 v{vt0}, v{vt0}, v{vt3}
        v_cvt_pk_bf16_f32 v{vt3}, v{vt0}, v{vt0}
        v_and_b32 v{vt3}, 0xffff0000, v{vt3}
        v_sub_f32 v{vt0}, v{vt0}, v{vt3}
        v_cvt_pk_bf16_f32 v{Q2[t]+1}, v{vt3}, v{vt0}
        v_cndmask_b32 v{Q2[t]+1}, v{Q2[t]+1}, 0, s[{sHi}:{sHi+1}]
        v_mov_b32 v{k2+1}, 0xbf80bf80
        s_mov_b32 s{sA}, {KVG}""")
        for r in range(16): a(f"v_mov_b32 v{O[t]+r}, 0")
        a.label(f"f_fb2{t}")
        a(f"""buffer_load_dwordx4 v[{kb}:{kb+3}], v{aK}, s[{sWS}:{sWS+3}], s{sA} offen sc1
        buffer_load_dword v{k2}, v{ak}, s[{sWS}:{sWS+3}], s{sA} offen sc1
        buffer_load_dwordx4 v[{vb}:{vb+3}], v{aV}, s[{sWS}:{sWS+3}], s{sA} offen sc1
        buffer_load_dwordx4 v[{vb+4}:{vb+7}], v{aV}, s[{sWS}:{sWS+3}], s{sA} offen offset:{VB} sc1
        s_waitcnt vmcnt(0)""")
        a(M1(st)); a(M2(st)); a("s_nop 11")
        for r in range(16): a(f"v_exp_f32 v{s0+r}, v{s0+r}")
        a("s_nop 1"); a(M3(st, 0)); a(M3(st, 1))
        a(f"""s_add_u32 s{sA}, s{sA}, {TILE}
        s_cmp_lt_u32 s{sA}, {KVG+64*TILE}
        s_cbranch_scc1 f_fb2{t}
        s_nop 11""")
        norm(t)
    a("s_branch f_n2")
    a.label("f_end")
    a("s_endpgm")
    return a

HEAD = """; Fused FNet + multi-query attention + gate.  One launch, 256 workgroups of 12 waves, one per CU.
"""
def build(a, vgpr=168):
    i0, i1 = a.lines.index("f_duty:"), a.lines.index("f_dS:")
    if "dplain" in EXP: a.lines[i0:i1] = [l.replace(" sc1", "") if "buffer_store" in l and "dwordx2" not in l else l for l in a.lines[i0:i1]]
    if "dnost" in EXP: a.lines[i0:i1] = [l for l in a.lines[i0:i1] if not ("buffer_store" in l and "dwordx2" not in l)]
    if "noprio" in EXP: a.lines = [l for l in a.lines if l != "s_setprio 3"]
    lab = G0.NAME + "_kernel"
    for p in check(a.lines): print(p, file=sys.stderr)
    out = [HEAD + f"; @launch grid=(256,1,1) block=(768,1,1) lds=163840", '.amdgcn_target "amdgcn-amd-amdhsa--gfx950"\n.text',
           f".globl {lab}\n.p2align 8\n.type {lab},@function\n{lab}:", a.text(), ".p2align 8\n.type rf_table,@object\nrf_table:"]
    w = rf_table()
    for i in range(0, len(w), 8): out.append(".long " + ",".join(f"0x{x:08x}" for x in w[i:i+8]))
    out += [".size rf_table, 4096", "rf_end:", '.section .rodata,"a"', kd(lab, vgpr)]
    return "\n".join(out) + "\n"

if __name__ == "__main__":
    if len(sys.argv) > 2 and sys.argv[2] == "stamp": G0.STAMP = True
    for x in sys.argv[3:]:
        if x.startswith("leak"):
            p = x.split(":"); G0.LEAK = (int(p[1]), int(p[2]), int(p[3]) if len(p) > 3 else None)
        else: EXP.add(x)
    open(sys.argv[1], "w").write(build(gen()))
```

```python
import math, sys
import gen as G0
from gen import Asm, check, srd, f2u, bf16, CQ, wave_max, load_rf, rf_table, kd
TILE, VB = 2432, 640
GP, GU = 1280, 704
EP = 0x0
FL0, FL1, FL2, FL3 = 0x8000, 0x10000, 0x20000, 0x30000
KMG = 0x44000
GG = 0x41000
KVG = 0x50000
OF = 0x100000
OX = 0x300000
GT = 0x340000
ST = 0x1200000
WS_SIZE = 0x1300000
G0.GT = GT; G0.ST = ST
OFFS, LMIN = 100.0, 2.0**-103
LX, LD, LW, LGATE, FLG = 0, 73728, 110592, 156672, 159744
F_KV, F_PRG, F_S1F, F_S1, F_CNT2, F_CNT3, F_TA, F_S2, F_S0, F_DUTY, F_KC, F_LD, F_XC, F_OH, F_MH, F_QH, F_G, F_N, F_G2, F_DUMP = FLG, FLG+16, FLG+48, FLG+52, FLG+56, FLG+60, FLG+64, FLG+80, FLG+84, FLG+88, FLG+92, FLG+96, FLG+112, FLG+128, FLG+144, FLG+160, FLG+256, FLG+512, FLG+640, FLG+1024
GSC = 81920
QHA = LW + 32768
OPA = 56320
J1 = 20
def ltile(j): return LW + TILE*j if j < J1 else TILE*(j - J1)
PRIO = {0: 2, 16: 1, 29: 0}
for _x in sys.argv:
    if _x.startswith("pr:"): PRIO = {int(k): int(v) for k, v in (p.split("=") for p in _x[3:].split(","))}
SPIN = 20000
THR = lambda k, d: next((int(x[len(k):]) for x in EXP if x.startswith(k) and x[len(k):].isdigit()), d)
QF = 7
EXP = set()
def stamp(a, s, g="A"):
    if s == 0 or g in EXP or (g == "A" and not EXP & {"P", "H", "R", "T", "J", "L", "M", "K", "D", "N"}): G0.stamp(a, s)

sWS, sRA, sRB, sRC, sRD = 8, 12, 40, 44, 48
sNon, sWave, sT1, sJ = 54, 56, 57, 58
sA, sB, sC, sD, sE, sF, sG, sH = 59, 60, 61, 62, 63, 64, 65, 66
sHi = 68
sRot = 67
vL = 1

_n = [0]
LABS = {}
def stamp12(a, slot):
    if not G0.STAMP or EXP & {'P', 'H', 'R', 'T', 'J', 'L', 'M', 'K', 'D', 'N'}: return
    _n[0] += 1
    a(f"s_sub_u32 s3, s{sWave}, 1\ns_cmp_ge_u32 s3, 2\ns_cbranch_scc1 f_st{_n[0]}")
    stamp(a, slot)
    a.label(f"f_st{_n[0]}")

def lds_wait(a, lab, vaddr, vt, val, sleep=0):
    if sleep:
        a(f"s_branch {lab}")
        a.label(lab + "_z")
        a(f"s_sleep {sleep}")
    a.label(lab)
    if G0.STAMP:
        _n[0] += 1
        a(f"s_add_u32 s83, s83, 1\ns_cmp_lt_u32 s83, 200000\ns_cbranch_scc1 {lab}_go\ns_mov_b32 s99, {0x77770000}\ns_mov_b32 s97, {_n[0]}\ns_branch {lab}_to")
        a.label(lab + "_go")
    a(f"ds_read_b32 v{vt}, v{vaddr}\ns_waitcnt lgkmcnt(0)\nv_cmp_gt_i32 vcc, {val}, v{vt}\ns_cbranch_vccnz {lab + ('_z' if sleep else '')}")
    if G0.STAMP: a.label(lab + "_to"); LABS[_n[0]] = lab

def tag_wait(a, lab, vaddr, soff, n, vt, step=1024, sleep=2, lanes=0, sent=False):
    a(f"s_mov_b32 s{sH}, 0")
    if lanes: a(f"s_mov_b64 exec, {(1 << lanes) - 1}")
    if sent: a(f"s_branch {lab}_s")
    a.label(lab)
    if lanes:
        a(f"v_mov_b32 v{vt}, 0\nv_mov_b32 v{vt+1}, 0\nbuffer_atomic_or_x2 v[{vt}:{vt+1}], v{vaddr}, s[{sWS}:{sWS+3}], s{soff} offen sc0 sc1")
    else:
        for i in range(n): a(f"buffer_load_dwordx2 v[{vt+2*i}:{vt+2*i+1}], v{vaddr}, s[{sWS}:{sWS+3}], s{soff} offen offset:{i*step} sc1")
    if sent: a.label(lab + "_s")
    a(f"s_add_u32 s{sH}, s{sH}, 1\ns_waitcnt vmcnt(0)" + ("" if sent else " lgkmcnt(0)"))
    for i in range(n):
        a(f"v_cmp_ne_u64 {'vcc' if i == 0 else 's[6:7]'}, s[{sNon}:{sNon+1}], v[{vt+2*i}:{vt+2*i+1}]")
        if i: a("s_nop 0\ns_or_b64 vcc, vcc, s[6:7]")
    a(f"s_cbranch_vccz {lab}_ok\ns_sleep {sleep}\ns_cmp_lt_u32 s{sH}, {SPIN}\ns_cbranch_scc1 {lab}")
    if G0.STAMP: a("s_mov_b32 s99, 0x77770000")
    a.label(lab + "_ok")
    if lanes: a("s_mov_b64 exec, -1")
    a.vm = []

def tag_signal(a, area, nrep, v0, v1, atomic=False):
    a(f"""s_lshl_b32 s{sG}, s{sT1}, 7
    s_lshl_b32 s{sH}, s{sJ}, 3
    s_add_u32 s{sG}, s{sG}, s{sH}
    s_add_u32 s{sG}, s{sG}, {area}
    v_lshlrev_b32 v{v0}, 12, v{vL}
    v_mov_b32 v{v1}, s{sNon}
    v_mov_b32 v{v1+1}, s{sNon+1}
    s_mov_b64 exec, {(1 << nrep) - 1}
    {"buffer_atomic_swap_x2" if atomic else "buffer_store_dwordx2"} v[{v1}:{v1+1}], v{v0}, s[{sWS}:{sWS+3}], s{sG} offen sc1
    s_mov_b64 exec, -1""")

def last_wave_signals(a, lab, cnt, total, area, nrep, v0, v1, atomic=False):
    a(f"""s_waitcnt vmcnt(0)
    v_mov_b32 v{v0}, {cnt}
    v_mov_b32 v{v1}, 1
    s_mov_b64 exec, 1
    ds_add_rtn_u32 v{v1}, v{v0}, v{v1}
    s_waitcnt lgkmcnt(0)
    v_readfirstlane_b32 s{sG}, v{v1}
    s_mov_b64 exec, -1
    s_cmp_lg_u32 s{sG}, {total-1}
    s_cbranch_scc1 {lab}""")
    tag_signal(a, area, nrep, v0, v1, atomic)
    a.label(lab)
    a.vm = []

def xsrc(a, dst, t0, t1):
    a(f"""v_lshrrev_b32 v{t0}, 4, v{vL}
    v_xor_b32 v{t0}, v{t0}, v{vL}
    v_and_b32 v{t0}, 3, v{t0}
    v_lshlrev_b32 v{t0}, 4, v{t0}
    v_lshrrev_b32 v{t1}, 2, v{vL}
    s_mov_b32 s3, 73728
    v_mad_u32_u24 v{dst}, v{t1}, s3, v{t0}""")
def xread(a, r0, r1, t0, t1, vL=vL):
    a(f"""v_lshrrev_b32 v{t0}, 5, v{vL}
    v_lshrrev_b32 v{t1}, 2, v{vL}
    v_xor_b32 v{t0}, v{t0}, v{t1}
    v_and_b32 v{t0}, 3, v{t0}
    v_and_b32 v{t1}, 31, v{vL}
    v_lshlrev_b32 v{t1}, 6, v{t1}
    v_lshl_add_u32 v{r0}, v{t0}, 4, v{t1}""")
def dense_pos(a, sph, pos, c16, t):
    a(f"""s_lshl_b32 s3, s{sph}, 6
    v_add_u32 v{c16}, s3, v{vL}
    v_mul_u32_u24 v{pos}, 7282, v{c16}
    v_lshrrev_b32 v{pos}, 16, v{pos}
    v_mul_u32_u24 v{t}, 9, v{pos}
    v_sub_u32 v{c16}, v{c16}, v{t}
    v_lshlrev_b32 v{c16}, 4, v{c16}""")

J_GO, J_N, J_vX, J_vF, J_sG, J_HB, J_R = [116, 120, 124, 132], 130, 110, 108, 74, 116, 132
def fnet_job(a, pre='f_j'):
    GO, vN, vX, vF, sGrp = J_GO, J_N, J_vX, J_vF, J_sG
    H1, H2, C = 16, 32, 16
    B = [72 + 4*i for i in range(9)] + [132 + 4*i for i in range(9)]
    free = [48 + 4*i for i in range(6)] + [116, 120, 124]
    e, p, co, x0, x1 = 4, 5, 6, 7, 8
    stamp(a, 1, "J")
    a(f"""v_and_b32 v{e}, 3, v{vL}
    v_bfe_u32 v{p}, v{vL}, 2, 1
    v_lshl_add_u32 v{e}, v{p}, 3, v{e}
    v_bfe_u32 v{p}, v{vL}, 3, 1
    v_lshl_add_u32 v{e}, v{p}, 2, v{e}
    s_lshl_b32 s3, s{sGrp}, 4
    v_add_u32 v{e}, s3, v{e}
    s_cmp_eq_u32 s{sGrp}, 0
    s_cselect_b32 s6, 0x10000, 0
    s_mov_b32 s7, s6
    v_mov_b32 v{p}, 288
    v_cndmask_b32 v{e}, v{e}, v{p}, s[6:7]
    s_or_b32 s6, s6, 0xffff
    s_mov_b32 s7, s6
    v_mov_b32 v{p}, 144
    v_cndmask_b32 v{p}, v{p}, 0, s[6:7]
    v_lshrrev_b32 v{co}, 5, v{vL}
    v_lshlrev_b32 v{co}, 3, v{co}
    s_lshl_b32 s3, s{sRot}, 6
    v_add_u32 v{co}, s3, v{co}
    v_mad_u32_u24 v{p}, v{e}, v{co}, v{p}
    s_mov_b32 s6, {(2**32 + 575)//576}
    s_mov_b32 s7, {f2u(1.0/576)}""")
    def cosv(dst, src):
        a(f"""v_mul_hi_u32 v{x1}, v{src}, s6
        v_mul_u32_u24 v{x1}, 576, v{x1}
        v_sub_u32 v{x1}, v{src}, v{x1}
        v_cvt_f32_u32 v{x1}, v{x1}
        v_mul_f32 v{x1}, s7, v{x1}
        v_cos_f32 v{dst}, v{x1}""")
    cosv(C, p); a(f"v_add_u32 v{p}, v{p}, v{e}"); cosv(C + 1, p)
    a(f"v_mul_u32_u24 v{co}, 15, v{e}\nv_add_u32 v{p}, v{p}, v{co}")
    cosv(C + 8, p); a(f"v_add_u32 v{p}, v{p}, v{e}"); cosv(C + 9, p)
    cosv(x0, e)
    a(f"v_lshlrev_b32 v{co}, 4, v{e}\nv_add_f32 v{x0}, v{x0}, v{x0}")
    cosv(co, co)
    for j in range(2, 8):
        for k in range(2): a(f"v_fma_f32 v{C+8*k+j}, v{x0}, v{C+8*k+j-1}, -v{C+8*k+j-2}")
    a(f"v_add_f32 v{co}, v{co}, v{co}\nv_lshlrev_b32 v{e}, 31, v{e}\nv_or_b32 v{e}, 1.0, v{e}\nv_xor_b32 v{x1}, 32, v{vX}")
    for k in range(18):
        c, o = C + 8*(k & 1), C + 8*(1 - (k & 1))
        for j in range(4): a(f"v_cvt_pk_bf16_f32 v{B[k]+j}, v{c+2*j}, v{c+2*j+1}")
        if k < 16:
            for j in range(8): a(f"v_fma_f32 v{c+j}, v{co}, v{o+j}, -v{c+j}")
    stamp(a, 3, "J")
    J1F = THR("jf", 3)
    lds_wait(a, pre + "1", vF, p, J1F, sleep=1)
    stamp(a, 4, "J")
    where, issued, lg = {}, 0, []
    for k in range(36):
        while issued < 36 and free and len(lg) < 14:
            if issued == 12 and J1F < 6: a(f"ds_read_b32 v{p}, v{vF}"); lg.append("f")
            if issued == 18 and J1F < 6:
                if k < 15: break
                if "f" in lg:
                    i = lg.index("f"); a(f"s_waitcnt lgkmcnt({len(lg) - 1 - i})"); del lg[:i + 1]
                a(f"v_cmp_gt_i32 vcc, 6, v{p}\ns_cbranch_vccz {pre}2_ok")
                lds_wait(a, pre + "2", vF, p, 6)
                a.label(pre + "2_ok")
            where[issued] = free.pop(0)
            a(f"ds_read_b128 v[{where[issued]}:{where[issued]+3}], v{x1 if issued & 1 else vX} offset:{2048*(issued>>1)}")
            lg.append(issued); issued += 1
        if k in lg:
            i = lg.index(k); a(f"s_waitcnt lgkmcnt({len(lg) - 1 - i})"); del lg[:i + 1]
        H, b = (H2 if k >= 18 else H1), B[k % 18]
        a(f"v_mfma_f32_32x32x16_bf16 v[{H}:{H+15}], v[{where[k]}:{where[k]+3}], v[{b}:{b+3}], " + ("0" if k % 18 == 0 else f"v[{H}:{H+15}]"))
        free.append(where[k])
        if 18 <= k < 27: free.append(b)
        if k == 30: load_rf(a, J_R, vL, p, pre + "rf")
    stamp(a, 5, "J")
    a("s_nop 11")
    for r in range(16): a(f"v_fmac_f32 v{H1+r}, v{e}, v{H2+r}")
    for k in range(8): a(f"v_cvt_pk_bf16_f32 v{J_HB+k}, v{H1+2*k}, v{H1+2*k+1}")

def fnet_job2(a, GO=J_GO):
    vN, sGrp = J_N, J_sG
    T1, T2, Hb, R, H1 = 32, 64, J_HB, J_R, 80
    a("s_waitcnt vmcnt(0)")
    a(f"v_mfma_f32_32x32x16_bf16 v[{T1}:{T1+15}], v[{Hb}:{Hb+3}], v[{R}:{R+3}], 0")
    a(f"v_mfma_f32_32x32x16_bf16 v[{T2}:{T2+15}], v[{Hb}:{Hb+3}], v[{R+8}:{R+11}], 0")
    a(f"v_mfma_f32_32x32x16_bf16 v[{T1}:{T1+15}], v[{Hb+4}:{Hb+7}], v[{R+4}:{R+7}], v[{T1}:{T1+15}]")
    a(f"v_mfma_f32_32x32x16_bf16 v[{T2}:{T2+15}], v[{Hb+4}:{Hb+7}], v[{R+12}:{R+15}], v[{T2}:{T2+15}]")
    a(f"""s_cmp_eq_u32 s{sGrp}, 0
    s_cselect_b32 s6, -1, 0
    s_mov_b32 s7, 0
    s_nop 8
    v_cvt_pk_bf16_f32 v{vN}, v{T1+8}, v{T2+8}
    v_cndmask_b32 v{T1+8}, v{T1+8}, 0, s[6:7]
    v_cndmask_b32 v{T2+8}, v{T2+8}, 0, s[6:7]""")
    for kind, (op, x, y, order) in enumerate((("v_add_f32", T1, T2+8, 1), ("v_sub_f32", T2, T1+8, 1), ("v_sub_f32", T1, T2+8, -1), ("v_add_f32", T2, T1+8, -1))):
        for r in range(8): a(f"{op} v{H1+r}, v{x+r}, v{y+r}")
        for k in range(4):
            i0, i1 = (2*k, 2*k+1) if order > 0 else (7-2*k, 6-2*k)
            a(f"v_cvt_pk_bf16_f32 v{GO[kind]+k}, v{H1+i0}, v{H1+i1}")

hSm, hSx, hSg, hGr, hGs, hW2, hGa, hPr, hXc, hTa, hMt, hMk, hS2 = 100, 103, 106, 109, 110, 111, 112, 113, 114, 115, 116, 117, 118
hL16, hTr, hTw, hOx, hTg, hOo, hOw, hOr = 156, 157, 158, 159, 160, 161, 164, 165
OUTB = 56*1024
def helper_setup(a, t0, t1, t2, t3):
    for i in range(3):
        a(f"s_add_u32 s6, s{sWave}, {4*i}")
        dense_pos(a, 6, t1, t0, t2)
        a(f"""v_and_b32 v{t2}, 1, v{t1}
        v_bfe_u32 v{t3}, v{t1}, 1, 2
        v_and_b32 v{t1}, 56, v{t1}
        v_lshl_add_u32 v{t1}, v{t2}, 2, v{t1}
        v_add_u32 v{t1}, v{t1}, v{t3}
        s_movk_i32 s3, {GP}
        v_mad_u32_u24 v{hSg+i}, v{t1}, s3, v{t0}
        s_movk_i32 s3, 1152
        v_lshrrev_b32 v{t2}, 4, v{t1}
        v_lshl_add_u32 v{t2}, v{t2}, 1, v{t1}
        v_mad_u32_u24 v{hSm+i}, v{t2}, s3, v{t0}
        v_lshrrev_b32 v{t2}, 1, v{t1}
        v_lshl_add_u32 v{t2}, v{t2}, 4, v{t1}
        v_add_u32 v{t2}, 16, v{t2}
        v_mad_u32_u24 v{hSx+i}, v{t2}, s3, v{t0}
        v_add_u32 v{t1}, {64*i}, v{vL}
        v_mul_u32_u24 v{t2}, 7282, v{t1}
        v_lshrrev_b32 v{t2}, 16, v{t2}
        v_lshlrev_b32 v{t1}, 4, v{t1}
        s_mov_b32 s3, {73728-144}
        v_mad_u32_u24 v{hOo+i}, v{t2}, s3, v{t1}""")
    a(f"""v_lshlrev_b32 v{hL16}, 4, v{vL}
    v_lshrrev_b32 v{t2}, 3, v{vL}
    v_xor_b32 v{t3}, v{t2}, v{vL}
    v_and_b32 v{t3}, 7, v{t3}
    v_lshlrev_b32 v{t3}, 4, v{t3}
    v_lshl_add_u32 v{t3}, v{t2}, 7, v{t3}
    s_lshl_b32 s3, s{sWave}, 12
    s_add_u32 s3, s3, {GSC}
    v_add_u32 v{hGr}, s3, v{t3}
    v_and_b32 v{t1}, 7, v{vL}
    v_lshlrev_b32 v{hTg}, 3, v{t1}
    v_lshl_add_u32 v{hS2}, v{t2}, 7, v{hTg}
    v_mul_u32_u24 v{t2}, {128*GP}, v{t2}
    v_lshl_add_u32 v{hGs}, v{t1}, 4, v{t2}
    v_lshlrev_b32 v{t1}, 2, v{t1}
    v_add_u32 v{hPr}, {F_PRG}, v{t1}
    v_and_b32 v{t1}, 12, v{t1}
    v_add_u32 v{hXc}, {F_XC}, v{t1}
    v_add_u32 v{hTa}, {F_TA}, v{t1}
    s_lshl_b32 s3, s{sWave}, 2
    s_add_u32 s6, s3, {F_TA}
    v_mov_b32 v{hMt}, s6
    s_add_u32 s6, s3, {F_KV}
    v_mov_b32 v{hMk}, s6
    v_and_b32 v{t0}, 15, v{vL}
    v_lshrrev_b32 v{t2}, 4, v{vL}
    v_lshlrev_b32 v{t1}, 2, v{t0}
    v_lshl_add_u32 v{hOx}, v{t2}, 9, v{t1}
    s_lshl_b32 s3, s{sWave}, 6
    s_add_u32 s3, s3, {F_G}
    v_add_u32 v{hGa}, s3, v{t1}
    s_and_b32 s3, s{sWave}, 1
    s_lshl_b32 s3, s3, 22
    v_lshlrev_b32 v{t1}, 18, v{t0}
    v_lshl_add_u32 v{t1}, v{t2}, 4, v{t1}
    v_add_u32 v{hW2}, s3, v{t1}
    s_mul_i32 s3, s{sWave}, 2304
    s_add_u32 s3, s3, {OUTB}
    v_mul_u32_u24 v{t1}, 144, v{t0}
    v_lshl_add_u32 v{t1}, v{t2}, 3, v{t1}
    v_add_u32 v{hOw}, s3, v{t1}
    v_add_u32 v{hOr}, s3, v{hL16}
    v_bfe_u32 v{t3}, v{vL}, 2, 2
    v_lshl_add_u32 v{t2}, v{t2}, 2, v{t3}
    v_mul_u32_u24 v{t2}, 288, v{t2}
    v_and_b32 v{t3}, 3, v{vL}
    v_lshl_add_u32 v{hTr}, v{t3}, 3, v{t2}
    v_add_u32 v{hTw}, {LW}, v{hTr}""")

def gen():
    a = Asm()
    a.label("f_code")
    a("s_cmp_ge_u32 s2, 256\ns_cbranch_scc1 f_end")
    stamp(a, 0)
    a("s_load_dwordx2 s[52:53], s[0:1], 104\ns_load_dwordx16 s[16:31], s[0:1], 0\ns_load_dwordx8 s[32:39], s[0:1], 64")
    a(f"""v_lshrrev_b32 v2, 6, v0
    v_and_b32 v{vL}, 63, v0
    v_readfirstlane_b32 s{sWave}, v2
    s_bfe_u32 s3, s2, 0x20003
    s_lshr_b32 s{sRot}, s2, 6
    s_add_u32 s{sRot}, s{sRot}, s3
    s_and_b32 s{sRot}, s{sRot}, 3
    s_lshl_b32 s{sRot}, s{sRot}, 1
    {"s_bfe_u32 s6, s2, 0x10005" if "rot8" in EXP else ""}
    {"s_add_u32 s%d, s%d, s6" % (sRot, sRot) if "rot8" in EXP else ""}
    {"s_mov_b32 s%d, 0" % sRot if "norot" in EXP else ""}
    s_and_b32 s{sT1}, s2, 7
    s_lshl_b32 s3, s3, 3
    s_add_u32 s{sT1}, s{sT1}, s3
    s_lshr_b32 s{sJ}, s2, 5
    s_mov_b32 s{sHi}, 0
    {"s_waitcnt lgkmcnt(0)" if G0.STAMP and 0 else ""}
    s_mov_b32 s{sHi+1}, -1
    s_cmp_ge_u32 s{sWave}, 4
    s_cbranch_scc1 f_att
    s_setprio 3
    s_cmp_eq_u32 s{sWave}, 0
    s_cbranch_scc1 f_duty""")
    def common_srd():
        a("s_waitcnt lgkmcnt(0)")
        a(f"s_load_dwordx2 s[{sNon}:{sNon+1}], s[52:53], {EP}")
        srd(a, sWS, 52, WS_SIZE)
    def nonce():
        a(f"s_add_u32 s{sNon}, s{sNon}, 1")
    t0, t1, t2, t3 = 8, 9, 10, 11
    vF = 4
    vXs, vDs, vW = 2, 3, 12
    sG_, sXo, sDa, sDb, sDs, sM, sXp = 70, 71, 72, 73, 74, 75, 76
    a(f"s_sub_u32 s{sG_}, s{sWave}, 1")
    xsrc(a, vXs, t0, t1)
    a(f"""v_and_b32 v{t2}, 3, v{vL}
    v_mul_u32_u24 v{t1}, 36, v{t1}
    v_lshl_add_u32 v{vDs}, v{t2}, 4, v{t1}
    s_and_b32 s{sA}, s{sJ}, 1
    s_mul_i32 s{sM}, s{sA}, 36864
    s_lshl_b32 s{sA}, s{sA}, 5
    s_add_u32 s{sA}, s{sA}, s{sT1}
    s_mul_i32 s{sXo}, s{sA}, 1152
    s_cmp_lt_u32 s{sJ}, 4
    s_cselect_b32 s{sRB+2}, {576*36}, 0
    s_cselect_b32 s{sDa}, -1, 0
    s_mov_b32 s{sDb}, {F_DUMP}
    s_cmov_b32 s{sDb}, {LD}
    s_mov_b32 s{sRA+2}, {2048*1152}
    s_mov_b32 s{sRA+3}, 0x20000
    s_mov_b32 s{sRB+3}, 0x20000
    s_mov_b32 s{sB}, s{sG_}
    s_barrier
    s_cmp_lt_u32 s{sJ}, 2
    s_waitcnt lgkmcnt(0)
    s_cselect_b64 s[{sRB}:{sRB+1}], s[30:31], s[32:33]
    s_mov_b64 s[{sRA}:{sRA+1}], s[16:17]""")
    stamp(a, 1, "P")
    TD, TW = THR("td", 0), THR("tw", 0)
    def lround(th=""):
        a(f"""s_lshl_b32 s{sC}, s{sRot}, 1
        s_add_u32 s{sC}, s{sC}, s{sB}
        s_cmp_ge_u32 s{sC}, 18
        s_cselect_b32 s3, 18, 0
        s_sub_u32 s{sC}, s{sC}, s3
        s_lshl_b32 s{sD}, s{sB}, 11
        s_add_u32 m0, s{sD}, s{sM}
        s_lshl_b32 s3, s{sC}, 6
        s_add_u32 s3, s3, s{sXo}
        {th}
        buffer_load_dwordx4 v{vXs}, s[{sRA}:{sRA+3}], s3 offen lds
        s_add_u32 m0, m0, 1024
        s_add_u32 s3, s3, 1179648
        {th}
        buffer_load_dwordx4 v{vXs}, s[{sRA}:{sRA+3}], s3 offen lds
        s_and_b32 s3, s{sD}, s{sDa}
        s_add_u32 m0, s3, s{sDb}
        s_mul_i32 s3, s{sC}, 1152
        {th}
        buffer_load_dwordx4 v{vDs}, s[{sRB}:{sRB+3}], s3 offen lds
        s_add_u32 m0, m0, 448
        {th or "s_nop 0"}
        buffer_load_dwordx4 v{vDs}, s[{sRB}:{sRB+3}], s3 offen offset:576 lds
        s_add_u32 s{sB}, s{sB}, 3""")
    a.label("f_lL")
    lround()
    NR0 = 3 if not TD else max(1, TD // 4)
    a(f"s_cmp_lt_u32 s{sB}, {3*NR0}\ns_cbranch_scc1 f_lL")
    stamp(a, 5, "P")
    a(f"s_load_dwordx2 s[{sNon}:{sNon+1}], s[52:53], {EP}")
    srd(a, sWS, 52, WS_SIZE); srd(a, sRD, 28, 576*1152)
    for i in range(3):
        a(f"s_mul_i32 s{sC}, s{sG_}, 3\ns_add_u32 s{sC}, s{sC}, {i}")
        dense_pos(a, sC, t1, t0, t2)
        a(f"""v_and_b32 v{t2}, 3, v{t1}
        v_bfe_u32 v{t3}, v{t1}, 2, 2
        v_and_b32 v{t1}, 48, v{t1}
        v_lshl_add_u32 v{t1}, v{t2}, 2, v{t1}
        v_add_u32 v{t1}, v{t1}, v{t3}
        s_movk_i32 s3, 1152
        v_mad_u32_u24 v{vW+i}, v{t1}, s3, v{t0}""")
    sM2 = 77
    a(f"""s_lshl_b32 s3, s{sG_}, 2
    s_add_u32 s3, s3, {F_LD}
    v_mov_b32 v{vF}, s3
    v_mov_b32 v6, 1
    v_mov_b32 v5, {F_DUTY}
    s_mul_i32 s{sE}, s{sJ}, 144
    s_mul_i32 s{sF}, s{sG_}, 3072
    s_and_b32 s{sA}, s{sJ}, 1
    s_xor_b32 s{sA}, s{sA}, 1
    s_mul_i32 s{sM2}, s{sA}, 36864
    s_lshl_b32 s3, s{sG_}, 10
    s_add_u32 s{sM2}, s{sM2}, s3
    s_lshl_b32 s{sA}, s{sA}, 5
    s_add_u32 s{sA}, s{sA}, s{sT1}
    s_mul_i32 s{sXp}, s{sA}, 1152
    s_mul_i32 s3, s{sG_}, 1179648
    s_add_u32 s{sXp}, s{sXp}, s3""")
    a(f"s_cmp_lg_u32 s{sWave}, 3\ns_cbranch_scc1 f_lM")
    srd(a, sRC, 36, 1152)
    for i in range(2):
        a(f"""s_lshl_b32 s3, s{sRot}, 7
        s_add_u32 s3, s3, {1024*i}
        v_lshlrev_b32 v{t1}, 4, v{vL}
        v_add_u32 v{t1}, s3, v{t1}
        v_subrev_u32 v{t2}, 1152, v{t1}
        v_min_u32 v{t1}, v{t1}, v{t2}
        s_mov_b32 m0, {LGATE + 1024*i}
        s_nop 0""")
        a(f"buffer_load_dwordx4 v{t1}, s[{sRC}:{sRC+3}], 0 offen lds")
    a.label("f_lM")
    if not TD:
        a(f"s_waitcnt vmcnt(8)\nds_write_b32 v{vF}, v6\nv_add_u32 v6, 1, v6")
        lround()
    else:
        lround(f"s_waitcnt vmcnt({TD-1})")
        a(f"s_waitcnt vmcnt({4*NR0})\nds_write_b32 v{vF}, v6\nv_add_u32 v6, 1, v6")
    a(f"s_cmp_lt_u32 s{sB}, 18\ns_cbranch_scc1 f_lM")
    for r in range(6 - NR0, 6): a.vm_note(f"d{r}", 4)
    stamp(a, 2, "P")
    def ldflag(tag, val):
        a(f"v_mov_b32 v{t1}, {val}")
        if tag in a.vm: a.vm_wait(tag)
        a(f"ds_write_b32 v{vF}, v{t1}")
        if val in (4, 5, 6, 7): stamp(a, val - 2, "D")
    def thr():
        if TW and len(a.vm) >= TW:
            a(f"s_waitcnt vmcnt({TW-1})"); a.vm = a.vm[len(a.vm) - (TW-1):]
            done = [t for t in pend if t not in a.vm]
            if done:
                ldflag(done[-1], val_of(done[-1]))
                for t in done: pend.remove(t)
    pend = []
    val_of = lambda t: int(t[1:]) + (1 if t[0] == "d" else QF)
    def chunk(c, withx):
        base = LW + 9216*c if c < 5 else LD + 9216*(c-5)
        a(f"""s_add_u32 s{sC}, s{sRot}, {c}
        s_cmp_ge_u32 s{sC}, 9
        s_cselect_b32 s3, 9, 0
        s_sub_u32 s{sC}, s{sC}, s3""")
        if withx and "nox" not in EXP:
            a(f"s_add_u32 m0, s{sM2}, {4096*c}\ns_lshl_b32 s3, s{sC}, 7\ns_add_u32 s3, s3, s{sXp}")
            thr()
            a.vmem(f"buffer_load_dwordx4 v{vXs}, s[{sRA}:{sRA+3}], s3 offen lds", f"c{c}")
            a("s_add_u32 m0, m0, 1984\ns_nop 0")
            thr()
            a.vmem(f"buffer_load_dwordx4 v{vXs}, s[{sRA}:{sRA+3}], s3 offen offset:64 lds", f"c{c}")
        a(f"s_add_u32 m0, s{sF}, {base}\ns_mul_i32 s3, s{sC}, 73728\ns_add_u32 s3, s3, s{sE}")
        for i in range(3):
            if i: a("s_add_u32 m0, m0, 1024\ns_nop 0")
            thr()
            a.vmem(f"buffer_load_dwordx4 v{vW+i}, s[{sRD}:{sRD+3}], s3 offen lds", f"c{c}")
    def chunks(withx, lab):
        if TW:
            pend[:] = [f"d{r}" for r in range(6 - NR0, 6)]
            for c in range(9):
                if c == 5: lds_wait(a, lab, 5, t1, 1)
                chunk(c, withx)
                pend.append(f"c{c}")
            stamp(a, 3, "P")
            for t in list(pend): ldflag(t, val_of(t))
            stamp(a, 4, "P")
            return
        if "d3" in a.vm: ldflag("d3", 4)
        if "pz" in EXP:
            ldflag("d4", 5); ldflag("d5", 6)
            lds_wait(a, lab + "z", 5, t1, THR("pz", 2) if False else (1 if "pz1" in EXP else 2), sleep=1)
        chunk(0, withx)
        if "pz" not in EXP: ldflag("d4", 5); ldflag("d5", 6)
        chunk(1, withx)
        D = 1 if "shallow" in EXP else 2
        if D == 1: ldflag("c0", QF)
        for c in range(2, 9):
            if c == 5 and not THR("pc", 0): lds_wait(a, lab, 5, t1, 1)
            if c == THR("pc", 0): lds_wait(a, lab, 5, t1, 2, sleep=1)
            chunk(c, withx)
            if c >= D: ldflag(f"c{c-D}", QF + c - D)
        stamp(a, 3, "P")
        for c in range(9 - D, 9): ldflag(f"c{c}", QF + c)
        stamp(a, 4, "P")
        if "only" in EXP:
            G0.stamp_end(a, 0, sWS, sWave); a("s_endpgm")
    vml = list(a.vm)
    a(f"s_cmp_eq_u32 s{sWave}, 3\ns_cbranch_scc1 f_l3")
    chunks(True, "f_l1w")
    a("s_branch f_l4")
    a.label("f_l3")
    a.vm = list(vml)
    chunks(False, "f_l3w")
    FR = 32
    a.label("f_l4")
    a(f"v_lshlrev_b32 v{hL16}, 4, v{vL}\ns_lshl_b32 s3, s{sWave}, 2\ns_add_u32 s3, s3, {F_KV}\nv_mov_b32 v{hMk}, s3")
    one, val = 6, 7
    def kv_first(lab):
        a.vm = []
        a(f"""v_and_b32 v{t1}, 15, v{vL}
        v_min_u32 v{t1}, 8, v{t1}
        v_lshlrev_b32 v{t1}, 2, v{t1}
        v_add_u32 v{t1}, {F_PRG}, v{t1}
        s_mul_i32 s{sA}, s{sT1}, {2*TILE}
        s_lshl_b32 s{sB}, s{sWave}, 12
        s_add_u32 m0, s{sB}, {LW}
        s_add_u32 s{sA}, s{sA}, s{sB}
        s_add_u32 s{sA}, s{sA}, {KVG}
        v_mov_b32 v{one}, 1
        v_mov_b32 v{vF}, {F_S1}""")
        stamp(a, 1, "K")
        lds_wait(a, lab, t1, t2, 1)
        stamp(a, 2, "K")
        for k in range(4): a(f"buffer_load_dwordx4 v{hL16}, s[{sWS}:{sWS+3}], s{sA} offen offset:{1024*k} {'' if 'k0plain' in EXP else 'sc1'} lds")
    kv_first("f_kv2")
    nonce()
    if "su0" not in EXP: helper_setup(a, t0, t1, t2, t3)
    a(f"s_waitcnt vmcnt(0)\nds_write_b32 v{hMk}, v{one}")
    if "su0" in EXP: helper_setup(a, t0, t1, t2, t3)
    a("s_branch f_h1")

    a.label("f_duty")
    a.vm = []
    vR0, vR1, vD0, vD1 = 2, 3, 6, 7
    ACC, R = 16, 80
    sRb, sGrp = 70, 76
    a(f"""v_lshlrev_b32 v{t0}, 2, v{vL}
    v_add_u32 v{t0}, {FLG}, v{t0}
    s_cmp_ge_u32 s{sJ}, 4
    s_cselect_b32 s6, {1 << ((F_DUTY - FLG)//4)}, 0
    s_mov_b32 s7, 0
    v_cndmask_b32 v{t1}, 0, 2, s[6:7]
    ds_write_b32 v{t0}, v{t1}""")
    xread(a, vR0, vR1, t2, t3)
    common_srd()
    a("s_barrier")
    a(f"""s_and_b32 s{sA}, s{sJ}, 1
    s_lshl_b32 s{sRb}, s{sA}, 5
    s_add_u32 s{sRb}, s{sRb}, s{sT1}
    s_mul_i32 s{sA}, s{sA}, 36864
    v_add_u32 v{vR0}, s{sA}, v{vR0}
    v_xor_b32 v{vR1}, 32, v{vR0}
    v_and_b32 v{vF}, 3, v{vL}
    v_min_u32 v{vF}, 2, v{vF}
    v_lshlrev_b32 v{vF}, 2, v{vF}
    v_add_u32 v{vF}, {F_LD}, v{vF}
    s_cmp_ge_u32 s{sJ}, 4
    s_cbranch_scc1 f_cF
    v_and_b32 v{t2}, 3, v{vL}
    v_and_b32 v{t0}, 1, v{vL}
    v_bfe_u32 v{t3}, v{vL}, 1, 1
    v_lshl_or_b32 v{t0}, v{t0}, 1, v{t3}
    v_bfe_u32 v{t3}, v{vL}, 4, 1
    v_cmp_eq_u32 vcc, 0, v{t3}
    v_bfe_u32 v{vD0}, v{vL}, 2, 2
    v_lshrrev_b32 v{vD1}, 5, v{vL}
    v_cndmask_b32 v{t0}, v{t2}, v{t0}, vcc
    v_lshl_add_u32 v{vD0}, v{vD1}, 3, v{vD0}
    v_lshlrev_b32 v{vD0}, 6, v{vD0}
    v_lshl_add_u32 v{vD0}, v{t3}, 5, v{vD0}
    v_lshl_add_u32 v{vD0}, v{t0}, 3, v{vD0}
    v_add_u32 v{vD0}, {LD}, v{vD0}
    s_cmp_ge_u32 s{sJ}, 2
    s_cbranch_scc1 f_cV""")
    def duty_chain(kind, ACC=ACC, vR0=vR0, vR1=vR1, vD0=vD0):
        lg = []
        def rd(txt, tag): a(txt); lg.append(tag)
        def wait(tag):
            i = max(k for k, t in enumerate(lg) if t == tag)
            a(f"s_waitcnt lgkmcnt({len(lg) - 1 - i})"); del lg[:i + 1]
        def reads(s):
            b = FR + 16*(s % 3)
            for p in range(2):
                rd(f"ds_read_b128 v[{b+8*p}:{b+8*p+3}], v{vR1 if p else vR0} offset:{2048*s}", (s, p))
                if kind == "F": rd(f"ds_read_b128 v[{b+8*p+4}:{b+8*p+7}], v{vD1 if p else vD0} offset:{2048*s}", (s, p))
                elif kind == "G": rd(f"ds_read_b128 v[{b+8*p+4}:{b+8*p+7}], v{vD0} offset:{64*s+32*p}", (s, p))
                else:
                    rd(f"ds_read_b64_tr_b16 v[{b+8*p+4}:{b+8*p+5}], v{vD0} offset:{2048*s+1024*p}", (s, p))
                    rd(f"ds_read_b64_tr_b16 v[{b+8*p+6}:{b+8*p+7}], v{vD0} offset:{2048*s+1024*p+256}", (s, p))
        if kind != "G":
            ST = {0: [1, 2, 3, 4, 5, 6], 2: [3, 3, 3, 6, 6, 6], 3: [2, 2, 4, 4, 6, 6], 1: [6]*6}[THR("ds", 3)]
            lds_wait(a, f"f_d{kind}0", vF, t0, ST[0])
            stamp(a, 1, "P"); stamp(a, 1, "D")
        reads(0)
        if kind != "G" and ST[1] > ST[0]: rd(f"ds_read_b32 v{t0}, v{vF}", "f")
        reads(1)
        for s in range(18):
            if kind != "G" and s % 3 == 1 and s < 15 and ST[s//3 + 1] > ST[s//3]:
                if "f" in lg: wait("f")
                a(f"v_cmp_gt_i32 vcc, {ST[s//3 + 1]}, v{t0}\ns_cbranch_vccz f_d{kind}{s}_ok")
                lds_wait(a, f"f_d{kind}{s}", vF, t0, ST[s//3 + 1])
                a.label(f"f_d{kind}{s}_ok")
                if s//3 in (0, 2, 3, 4): stamp(a, {0: 2, 2: 3, 3: 4, 4: 5}[s//3], "D")
            b = FR + 16*(s % 3)
            for p in range(2):
                if (s, p) in lg: wait((s, p))
                if p == 1:
                    if kind != "G" and s % 3 == 0 and 0 < s < 15 and ST[s//3 + 1] > ST[s//3]: rd(f"ds_read_b32 v{t0}, v{vF}", "f")
                    if s + 2 < 18: reads(s + 2)
                    assert len(lg) <= 15
                X, D = b + 8*p, b + 8*p + 4
                A, B = (D, X) if kind in "KG" else (X, D)
                a(f"v_mfma_f32_32x32x16_bf16 v[{ACC}:{ACC+15}], v[{A}:{A+3}], v[{B}:{B+3}], " + ("0" if s + p == 0 else f"v[{ACC}:{ACC+15}]"))
        if kind != "G":
            a(f"v_mov_b32 v{t0}, {F_DUTY}\nv_mov_b32 v{t1}, 1\nds_write_b32 v{t0}, v{t1}")
            nonce()
            stamp(a, 2); stamp(a, 2, "P"); stamp(a, 6, "D")
    def kv_off():
        a(f"""s_and_b32 s{sA}, s{sJ}, 1
        s_lshl_b32 s{sB}, s{sT1}, 1
        s_add_u32 s{sA}, s{sA}, s{sB}
        s_mul_i32 s{sF}, s{sA}, {TILE}
        s_add_u32 s{sF}, s{sF}, {KVG}
        s_add_u32 s{sE}, s{sF}, {64*TILE}""")
    kv_off()
    a(f"v_lshlrev_b32 v14, 4, v{vL}\nv_lshlrev_b32 v15, 2, v{vL}")
    duty_chain("K")
    a("s_nop 7")
    for k in range(5): a(f"v_cvt_pk_bf16_f32 v{FR+k}, v{ACC+2*k}, v{ACC+2*k+1}")
    for s in (sF, sE): a(f"buffer_store_dwordx4 v[{FR}:{FR+3}], v14, s[{sWS}:{sWS+3}], s{s} offen sc1")
    a("s_mov_b32 exec_hi, 0")
    for s in (sF, sE): a(f"buffer_store_dword v{FR+4}, v15, s[{sWS}:{sWS+3}], s{s} offen offset:1024 sc1")
    a("s_mov_b32 exec_hi, -1\ns_branch f_dP")
    a.label("f_cV")
    kv_off()
    a(f"""v_and_b32 v{t0}, 51, v{vL}
    v_bfe_u32 v{t1}, v{vL}, 2, 1
    v_lshl_add_u32 v{t0}, v{t1}, 3, v{t0}
    v_bfe_u32 v{t1}, v{vL}, 3, 1
    v_lshl_add_u32 v{t0}, v{t1}, 2, v{t0}""")
    xread(a, vR0, None, t2, t3, t0)
    a(f"s_and_b32 s3, s{sJ}, 1\ns_mul_i32 s3, s3, 36864\nv_add_u32 v{vR0}, s3, v{vR0}\nv_xor_b32 v{vR1}, 32, v{vR0}")
    a(f"""v_and_b32 v{t0}, 31, v{vL}
    v_lshrrev_b32 v{t2}, 5, v{vL}
    v_mul_u32_u24 v14, 19, v{t2}
    v_add_u32 v14, v14, v{t0}
    v_add_u32 v{t2}, 38, v{t2}
    v_cmp_eq_u32 vcc, 19, v{t0}
    v_mov_b32 v{t3}, 0x3f803f80
    s_nop 0
    v_cndmask_b32 v14, v14, v{t2}, vcc
    v_cmp_eq_u32 vcc, 19, v{vL}
    s_nop 1
    v_cndmask_b32 v80, v{t3}, 0, vcc
    v_lshlrev_b32 v14, 4, v14""")
    for k in range(1, 8): a(f"v_mov_b32 v{80+k}, v80")
    duty_chain("V")
    a("s_mov_b32 exec_lo, 0x3ffff\ns_mov_b32 exec_hi, 0x3ffff\ns_nop 5")
    for k in range(8): a(f"v_cvt_pk_bf16_f32 v{80+k}, v{ACC+2*k}, v{ACC+2*k+1}")
    a("s_mov_b32 exec_lo, 0xfffff\ns_mov_b32 exec_hi, 0xfffff")
    for s in (sF, sE):
        for u in range(2): a(f"buffer_store_dwordx4 v[{80+4*u}:{83+4*u}], v14, s[{sWS}:{sWS+3}], s{s} offen offset:{1152+VB*u} sc1")
    a("s_mov_b64 exec, -1")
    a.label("f_dP")
    stamp(a, 3, "P")
    a("s_waitcnt vmcnt(0)")
    tag_signal(a, FL1, 8, t0, t2, True)
    if "fl0" in EXP:
        a(f"s_add_u32 s{sG}, s{sG}, {(FL0 - FL1) & 0xffffffff}\ns_mov_b64 exec, 255\nbuffer_store_dwordx2 v[{t2}:{t2+1}], v{t0}, s[{sWS}:{sWS+3}], s{sG} offen sc1\ns_mov_b64 exec, -1")
    if THR("pc", 0) or "pz" in EXP: a(f"v_mov_b32 v{t0}, {F_DUTY}\nv_mov_b32 v{t1}, 2\nds_write_b32 v{t0}, v{t1}")
    stamp(a, 3); stamp(a, 4, "P")
    a("s_branch f_dS")
    a.label("f_cF")
    a(f"s_bfe_u32 s{sGrp}, s{sJ}, 0x10001\ns_add_u32 s{sGrp}, s{sGrp}, 16\ns_waitcnt lgkmcnt(0)")
    nonce()
    a(f"s_mov_b32 s{J_sG}, s{sGrp}\nv_mov_b32 v{J_vX}, v{vR0}\nv_mov_b32 v{J_vF}, v{vF}\ns_setprio {THR('wp', 2)}")
    fnet_job(a, "f_k")
    fnet_job2(a, [48, 52, 56, 60])
    a("s_setprio 3")
    a.label("f_dS")
    helper_setup(a, t0, t1, t2, t3)
    a(f"""v_bfe_u32 v{t1}, v{vL}, 2, 2
    v_add_u32 v{t1}, s{sT1}, v{t1}
    v_and_b32 v{t1}, 31, v{t1}
    v_lshlrev_b32 v{t1}, 7, v{t1}
    v_and_b32 v{t2}, 3, v{vL}
    v_lshl_add_u32 v{t1}, v{t2}, 3, v{t1}
    s_and_b32 s{sD}, s{sT1}, 7
    s_lshl_b32 s{sD}, s{sD}, 12
    s_add_u32 s{sD}, s{sD}, {FL1}""")
    tag_wait(a, "f_m2", t1, sD, 1, FR, sleep=1, lanes=16 if 'noat' not in EXP else 0)
    vKM = 40
    a(f"""v_mov_b32 v{t1}, {F_S1F}
    v_mov_b32 v{t2}, 1
    ds_write_b32 v{t1}, v{t2}
    v_lshrrev_b32 v14, 2, v{vL}
    v_lshlrev_b32 v14, 7, v14
    v_and_b32 v{t2}, 3, v{vL}
    v_lshl_add_u32 v14, v{t2}, 3, v14
""")
    if "fl0" in EXP: a(f"s_add_u32 s{sD}, s{sD}, {(FL0 - FL1) & 0xffffffff}")
    def look():
        a(f"""buffer_load_dwordx2 v[{FR}:{FR+1}], v14, s[{sWS}:{sWS+3}], s{sD} offen sc1
        buffer_load_dwordx2 v[{FR+2}:{FR+3}], v14, s[{sWS}:{sWS+3}], s{sD} offen offset:2048 sc1""")
    if "fl0" in EXP: look()
    stamp(a, 5, "P")
    kv_first("f_kv1")
    a(f"s_waitcnt vmcnt(0)\nds_write_b32 v{hMk}, v{one}")
    tag_wait(a, "f_m3", 14, sD, 2, FR, step=2048)
    a.label("f_m4")
    a(f"ds_write_b32 v{vF}, v{one}")
    a.label("f_h1")
    stamp(a, 6, "P"); stamp(a, 4); stamp(a, 3, "K")
    lds_wait(a, "f_h2", vF, t1, 1, sleep=1)
    lds_wait(a, "f_h2a", hPr, t1, 3 if "c1l" in EXP else 2, sleep=1)
    stamp(a, 1, "H"); stamp(a, 4, "K")
    due = {}
    def grp(src, dst, tag, TK=THR("tk", 3)):
        a(f"s_add_u32 m0, s{sB}, {dst}\ns_add_u32 s3, s{sA}, {src}")
        for k in range(4):
            if len(a.vm) >= TK:
                a(f"s_waitcnt vmcnt({TK-1})"); a.vm = a.vm[len(a.vm) - (TK-1):]
                for t in [t for t in due if t not in a.vm]: a(f"v_mov_b32 v{val}, {due.pop(t)}\nds_write_b32 v{hMk}, v{val}")
            a.vmem(f"buffer_load_dwordx4 v{hL16}, s[{sWS}:{sWS+3}], s3 offen offset:{1024*k} sc1 lds", tag)
    P2 = J1*TILE
    grp(16384, LW + 16384, "c1", THR("tc", 4)); due["c1"] = 2
    if "c1l" not in EXP: a(f"v_mov_b32 v{val}, {due.pop('c1')}\ns_waitcnt vmcnt(0)\nds_write_b32 v{hMk}, v{val}"); a.vm = []
    if "c1l" not in EXP: lds_wait(a, "f_h2b", hPr, t1, 3, sleep=1)
    grp(32768, LW + 32768, "c2"); grp(P2, 0, "p0"); due["p0"] = 3
    grp(P2 + 16384, 16384, "p1"); grp(P2 + 32768, 32768, "p2")
    assert not due
    due["p2"] = 4
    for i in (3, 4): grp(P2 + 16384*i, 16384*i, f"p{i}")
    sS2, sT = 71, 72
    a(f"""s_and_b32 s{sS2}, s{sJ}, 1
    s_lshl_b32 s{sS2}, s{sS2}, 5
    s_add_u32 s{sS2}, s{sS2}, s{sT1}
    s_mul_i32 s{sS2}, s{sS2}, {GP}
    s_add_u32 s{sS2}, s{sS2}, {GT}
    s_lshr_b32 s{sT}, s{sJ}, 1
    s_lshl_b32 s{sT}, s{sT}, 7
    s_sub_u32 s3, {GU + 448}, s{sT}
    s_cmp_lt_u32 s{sWave}, 2
    s_cselect_b32 s{sT}, s{sT}, s3
    s_add_u32 s{sT}, s{sT}, s{sS2}
    s_bitcmp1_b32 s{sWave}, 0
    s_cselect_b32 s3, {64*GP}, 0
    s_add_u32 s{sT}, s{sT}, s3""")
    if "nojob" not in EXP: lds_wait(a, "f_x3", hXc, t1, 1, sleep=2)
    for i in range(4): a(f"ds_read_b128 v[{32+4*i}:{35+4*i}], v{hGr} offset:{1024*i}")
    GOF = [48, 52, 56, 60]
    a(f"s_waitcnt lgkmcnt(0)\nds_write_b32 v{hMt}, v{one}")
    lds_wait(a, "f_x4", hTa, t1, 1, sleep=1)
    grp(P2 + 16384*5, 16384*5, "p5")
    a(f"s_cmp_ge_u32 s{sWave}, 3\ns_cbranch_scc1 f_h3")
    grp(P2 + 16384*6, 16384*6, "p6")
    a.label("f_h3")
    assert not due
    a(f"v_mov_b32 v{val}, 5\ns_waitcnt vmcnt(0)\nds_write_b32 v{hMk}, v{val}")
    a.vm = []
    stamp(a, 2, "H")
    for i in range(4):
        a(f"buffer_store_dwordx4 v[{32+4*i}:{35+4*i}], v{hGs}, s[{sWS}:{sWS+3}], s{sT} offen sc1")
        if i < 3: a(f"s_add_u32 s{sT}, s{sT}, {8*128*GP}")
    a(f"""s_cmp_lg_u32 s{sWave}, 0
    s_cbranch_scc1 f_h3b
    s_lshr_b32 s3, s{sJ}, 1
    s_cmp_lg_u32 s3, {THR("gj", 0)//2}
    s_cbranch_scc1 f_h3c
    v_lshlrev_b32 v{t3}, 2, v{vL}
    v_add_u32 v13, {F_G2}, v{t3}
    ds_read_b32 v13, v13
    s_lshl_b32 s{sF}, s{sRb}, 7
    s_add_u32 s{sF}, s{sF}, {GG}
    s_mov_b32 exec_hi, 0
    s_waitcnt lgkmcnt(0)
    buffer_store_dword v13, v{t3}, s[{sWS}:{sWS+3}], s{sF} offen sc1
    s_mov_b32 exec_hi, -1""")
    a.label("f_h3c")
    a(f"""v_and_b32 v{t1}, 31, v{vL}
    v_mul_u32_u24 v{t2}, {128*GP}, v{t1}
    s_cmp_ge_u32 s{sJ}, 4
    s_cbranch_scc1 f_h3a
    s_cmp_ge_u32 s{sJ}, 2
    s_cbranch_scc1 f_h3b
    v_lshlrev_b32 v{t1}, 2, v{t1}
    v_add_u32 v{t1}, {F_N}, v{t1}
    ds_read_b32 v{t1}, v{t1}
    s_add_u32 s3, s{sS2}, {64*GP}
    s_mov_b32 exec_hi, 0
    s_waitcnt lgkmcnt(0)
    buffer_store_short v{t1}, v{t2}, s[{sWS}:{sWS+3}], s{sS2} offen offset:{GU-2} sc1
    buffer_store_short_d16_hi v{t1}, v{t2}, s[{sWS}:{sWS+3}], s3 offen offset:{GU-2} sc1
    s_mov_b32 exec_hi, -1
    s_branch f_h3b""")
    a.label("f_h3a")
    a(f"""v_lshrrev_b32 v{t3}, 5, v{vL}
    v_lshlrev_b32 v{t3}, 4, v{t3}
    v_sub_u32 v{t1}, v{t2}, v{t3}
    v_add_u32 v{t2}, v{t2}, v{t3}
    v_add_u32 v{t1}, 16, v{t1}
    s_lshl_b32 s3, s{sGrp}, 5
    s_add_u32 s{sT}, s{sS2}, s3
    s_sub_u32 s{sT+1}, s{sS2}, s3
    s_add_u32 s{sT+1}, s{sT+1}, {GU + 560 - 16}""")
    for kind in range(4):
        if kind & 1: a(f"s_add_u32 s{sT + (kind >> 1)}, s{sT + (kind >> 1)}, {64*GP}")
        a(f"buffer_store_dwordx4 v[{GOF[kind]}:{GOF[kind]+3}], v{t1 if kind >> 1 else t2}, s[{sWS}:{sWS+3}], s{sT + (kind >> 1)} offen sc1")
    a.label("f_h3b")
    last_wave_signals(a, "f_h5", F_CNT2, 4, FL2, 8, t1, t2)
    stamp(a, 6)
    vG = 15
    ACC, W2, OB, AR = 16, 36, 52, 124
    sRb, sCol = 70, 71
    srd(a, sRA, 34, 576*1152); srd(a, sRB, 18, 2048*4096); srd(a, sRC, 20, 2048*4096); srd(a, sRD, 38, 2048*1152)
    a(f"""s_lshr_b32 s3, s2, 3
    s_lshl_b32 s3, s3, 2
    s_add_u32 s3, s3, s{sWave}
    s_mul_i32 s3, s3, {41*128}
    v_lshlrev_b32 v{t1}, 3, v{hL16}
    s_mov_b32 exec_hi, 0x1ff
    buffer_load_dword v14, v{t1}, s[{sRA}:{sRA+3}], s3 offen
    s_mov_b32 exec_hi, -1
    s_lshr_b32 s{sRb}, s{sWave}, 1
    s_lshl_b32 s{sRb}, s{sRb}, 5
    s_add_u32 s{sRb}, s{sRb}, s{sT1}
    s_mul_i32 s{sCol}, s{sJ}, 144
    s_lshl_b32 s{sC}, s{sWave}, 10
    s_lshl_b32 s{sA}, s{sRb}, 12""")
    for k in range(4):
        r = sRB if k < 2 else sRC
        a(f"buffer_load_dwordx4 v[{W2+4*k}:{W2+4*k+3}], v{hW2}, s[{r}:{r+3}], s{sA} offen offset:{64*(k&1)}")
    nds = [0]
    def dstep(dst, r, vS, sc=""):
        nds[0] += 1
        for i in range(3):
            if i == 2: a(f"s_cmp_lg_u32 s{sWave}, 0\ns_cbranch_scc1 f_ds{nds[0]}")
            a(f"s_add_u32 m0, s{sC}, {dst + 4096*i}\n" + (f"s_waitcnt vmcnt({THR('tt', 3) - 1})" if THR("tt", 3) else "s_nop 0"))
            a(f"buffer_load_dwordx4 v{vS+i}, s[{r}:{r+3}], s{sB} offen {sc} lds")
        a.label(f"f_ds{nds[0]}")
    def dsaddr(m): return LW + 9216*m if m < 5 else 9216*(m - 5)
    def wo_step(m):
        a(f"s_add_u32 s{sB}, s{sJ}, {m}\ns_and_b32 s{sB}, s{sB}, 7\ns_mul_i32 s{sB}, s{sB}, {72*1152}\ns_add_u32 s{sB}, s{sB}, s{sCol}")
        dstep(dsaddr(m), sRA, hSm)
    lds_wait(a, "f_t1", hPr, t1, 4, sleep=32)
    for m in range(5): wo_step(m)
    lds_wait(a, "f_t3", hPr, t1, 5, sleep=32)
    for m in range(5, 8): wo_step(m)
    a(f"""v_mov_b32 v{vF}, {F_S2}
    s_cmp_lg_u32 s{sWave}, 3
    s_cbranch_scc1 f_t6_x
    s_and_b32 s{sD}, s{sT1}, 7
    s_lshl_b32 s{sD}, s{sD}, 12
    s_add_u32 s{sD}, s{sD}, {FL2}""")
    tag_wait(a, "f_t6", hS2, sD, 4, OB, sleep=8)
    a(f"""v_and_b32 v{t1}, 31, v{vL}
    v_lshrrev_b32 v{t2}, 5, v{vL}
    v_lshlrev_b32 v{t1}, 2, v{t1}
    v_lshl_add_u32 v{t1}, v{t2}, 12, v{t1}
    s_lshl_b32 s3, s{sT1}, 7
    s_add_u32 s3, s3, {GG}
    buffer_load_dword v{t2}, v{t1}, s[{sWS}:{sWS+3}], s3 offen sc1
    v_lshrrev_b32 v{t1}, 2, v{hL16}
    v_add_u32 v{t1}, {F_G}, v{t1}
    s_waitcnt vmcnt(0)
    ds_write_b32 v{t1}, v{t2}
    ds_write_b32 v{vF}, v{one}
    s_cmp_lg_u32 s2, 0
    s_cbranch_scc1 f_t6_x
    v_mov_b32 v{t1}, {EP}
    v_mov_b32 v{t2}, s{sNon}
    v_mov_b32 v{t3}, s{sNon+1}
    s_mov_b64 exec, 1
    buffer_store_dwordx2 v[{t2}:{t3}], v{t1}, s[{sWS}:{sWS+3}], 0 offen
    s_mov_b64 exec, -1""")
    a.label("f_t6_x")
    stamp(a, 5, "H")
    lds_wait(a, "f_t7", hPr, t1, 6, sleep=THR("s7", 8))
    a(f"s_mov_b32 s{sB}, s{sCol}")
    dstep(dsaddr(8), sRA, hSx)
    a(f"""s_mul_i32 s{sB}, s{sT1}, {128*GP}
    s_add_u32 s{sB}, s{sB}, {GT}
    s_add_u32 s{sB}, s{sB}, s{sCol}
    s_cmp_ge_u32 s{sJ}, 4
    s_cselect_b32 s3, {GU - 2 - 576}, 0
    s_add_u32 s{sB}, s{sB}, s3""")
    lds_wait(a, "f_t8", vF, t1, 1, sleep=4)
    a(f"ds_read_b32 v{vG}, v{hGa}")
    dstep(dsaddr(9), sWS, hSg, "sc1")
    a(f"s_add_u32 s{sB}, s{sB}, {64*GP}")
    dstep(dsaddr(10), sWS, hSg, "sc1")
    a(f"""v_mov_b32 v{val}, 2
    v_mov_b32 v{vF}, {F_CNT3}
    s_lshl_b32 s{sD}, s{sWave}, 12
    s_lshl_b32 s3, s{sT1}, 7
    s_add_u32 s{sD}, s{sD}, s3
    s_add_u32 s{sD}, s{sD}, {FL3}
    s_lshl_b32 s{sA}, s{sT1}, 2
    s_add_u32 s{sA}, s{sA}, s{sWave}
    s_lshl_b32 s{sB}, s{sA}, 11
    s_and_b32 s{sB}, s{sB}, {0xfffff000}
    s_and_b32 s3, s{sWave}, 1
    s_mul_i32 s{sE}, s3, {16*73728}
    s_lshl_b32 s3, s3, 6
    s_add_u32 s{sB}, s{sB}, s3
    s_add_u32 s{sB}, s{sB}, {OX}
    s_lshl_b32 s{sA}, s{sA}, 14
    s_add_u32 s{sA}, s{sA}, {OF}
    s_mul_i32 s3, s{sRb}, 1152
    s_add_u32 s{sE}, s{sE}, s3
    s_add_u32 s{sE}, s{sE}, s{sCol}
    s_waitcnt vmcnt(0)
    ds_write_b32 v{hMt}, v{val}""")
    lds_wait(a, "f_t9", hTa, t1, 2, sleep=4)
    stamp(a, 6, "H")
    NR = 7
    def rd(f):
        ks, mu = divmod(f, 5)
        m = 9 + (ks >> 1) if ks < 4 else (ks - 4) >> 1
        v, o = (hTw, 9216*m) if m < 5 else (hTr, 9216*(m - 5))
        o += 4608*(ks & 1) + 32*mu
        r = AR + 4 * (f % 8)
        a(f"ds_read_b64_tr_b16 v[{r}:{r+1}], v{v} offset:{o}")
        a(f"ds_read_b64_tr_b16 v[{r+2}:{r+3}], v{v} offset:{o+144}")
    lds_wait(a, "f_t12", vF, t1, 4, sleep=THR("cs", 2))
    if "pe" in EXP: a(f"v_mov_b32 v12, 0\nv_mov_b32 v13, 0\ns_mov_b64 exec, 0xff\nbuffer_atomic_or_x2 v[12:13], v{hTg}, s[{sWS}:{sWS+3}], s{sD} offen sc0 sc1\ns_mov_b64 exec, -1")
    for f in range(NR): rd(f)
    for f in range(110):
        ks, mu = divmod(f, 5)
        if f == 20:
            a("s_nop 3")
            for r in range(20): a(f"v_mul_f32 v{ACC+r}, v{ACC+r}, v{vG}")
            stamp12(a, 1); stamp(a, 1, "T")
            tag_wait(a, "f_t10", hTg, sD, 1, 12, sleep=1, lanes=8, sent="pe" in EXP)
            stamp12(a, 2); stamp(a, 2, "T")
            for k in range(18):
                if k >= 16:
                    for j in range(4): a.vmem(f"buffer_load_dword v{OB+4*k+j}, v{hOx}, s[{sWS}:{sWS+3}], s{sB} offen offset:{2048*(k-16) + 128*j} sc1", f"o{k}")
                    continue
                if k & 1 == 0: a(f"s_add_u32 s3, s{sJ}, {k//2}\ns_and_b32 s3, s3, 7\ns_lshl_b32 s3, s3, 11\ns_add_u32 s3, s3, s{sA}")
                a.vmem(f"buffer_load_dwordx4 v[{OB+4*k}:{OB+4*k+3}], v{hL16}, s[{sWS}:{sWS+3}], s3 offen offset:{(k&1)*1024} sc1", f"o{k}")
        if ks >= 4 and mu == 0: a.vm_wait(f"o{ks-4}")
        if ks == 4 and mu == 0: stamp(a, 3, "T")
        if ks == 21 and mu == 0: stamp(a, 4, "T")
        if f & 1 == 0: a(f"s_waitcnt lgkmcnt({2*(min(110, f + NR) - f - 2)})")
        r = AR + 4 * (f % 8)
        B = W2 + 4*ks if ks < 4 else OB + 4*(ks-4)
        ac = ACC + 4*mu
        a(f"v_mfma_f32_16x16x32_bf16 v[{ac}:{ac+3}], v[{r}:{r+3}], v[{B}:{B+3}], " + ("0" if ks == 0 else f"v[{ac}:{ac+3}]"))
        if f + NR < 110: rd(f + NR)
    stamp12(a, 3); stamp(a, 5, "T")
    a("s_nop 3")
    for mu in range(5):
        ac = ACC + 4*mu
        if mu == 4: a("s_mov_b32 exec_hi, 0")
        a(f"v_cvt_pk_bf16_f32 v{W2+2*mu}, v{ac}, v{ac+1}\nv_cvt_pk_bf16_f32 v{W2+2*mu+1}, v{ac+2}, v{ac+3}")
        a(f"ds_write_b64 v{hOw}, v[{W2+2*mu}:{W2+2*mu+1}] offset:{32*mu}")
    a("s_mov_b32 exec_hi, -1")
    for it in range(3): a(f"ds_read_b128 v[{OB+4*it}:{OB+4*it+3}], v{hOr} offset:{1024*it}")
    for it in range(3):
        a(f"s_waitcnt lgkmcnt({2-it})")
        if it == 2: a("s_mov_b64 exec, 0xffff")
        a(f"buffer_store_dwordx4 v[{OB+4*it}:{OB+4*it+3}], v{hOo+it}, s[{sRD}:{sRD+3}], s{sE} offen")
    stamp(a, 6, "T")
    G0.stamp_end(a, 0, sWS, sWave)
    a("s_endpgm")

    a.label("f_att")
    a.vm = []
    Q1, Q2, vG, aK, ak, aV = [4, 112], [8, 110], [10, 14], 11, 12, 13
    vt0, vt1, vt2, vt3 = 2, 3, 14, 15
    O, S, K1, K2, V, PB = [136, 152], [32, 48, 64], [96, 100], [104, 106], [116, 80], [16, 20, 24, 28, 88, 92]
    def zero_o():
        for r in range(32): a(f"v_mov_b32 v{O[0]+r}, 0")
    aF, aP = 108, 109
    vW, vR0, vR1, vA0, vA1, vSt = 110, 111, 112, 113, 114, 115
    vOa, vOb, vN, vH = 128, 129, J_N, 131
    sW8, sKh, sHd, sHead, sGrp, sFb, sO = 70, 71, 72, 73, J_sG, 75, 76
    a("s_barrier")
    a(f"s_sub_u32 s{sW8}, s{sWave}, 4")
    a("s_getpc_b64 s[4:5]")
    a.label("f_pf")
    a(f"""s_sub_u32 s4, s4, f_pf-f_code
    s_subb_u32 s5, s5, 0
    s_lshr_b32 s3, s2, 3
    s_lshl_b32 s6, s{sW8}, 6
    s_add_u32 s3, s3, s6
    v_lshlrev_b32 v{vt0}, 5, v{vL}
    v_add_u32 v{vt0}, s3, v{vt0}
    v_lshlrev_b32 v{vt0}, 7, v{vt0}
    v_min_u32 v{vt0}, rf_end-f_code-4, v{vt0}
    s_mov_b64 exec, 3
    global_load_dword v{vN}, v{vt0}, s[4:5]
    s_mov_b64 exec, -1""")
    xread(a, vR0, vR1, vt0, vt1)
    a(f"""s_lshr_b32 s{sKh}, s{sW8}, 2
    s_and_b32 s{sHd}, s{sW8}, 3
    s_and_b32 s3, s{sJ}, 1
    s_mul_i32 s3, s3, 36864
    v_add_u32 v{vW}, s3, v{vR0}
    v_and_b32 v{aF}, 3, v{vL}
    v_min_u32 v{aF}, 2, v{aF}
    v_lshlrev_b32 v{aF}, 2, v{aF}
    v_add_u32 v{aF}, {F_LD}, v{aF}
    s_lshl_b32 s3, s{sW8}, 2
    s_add_u32 s3, s3, {F_PRG}
    v_mov_b32 v{aP}, s3
    v_and_b32 v{vt2}, 31, v{vL}
    v_lshrrev_b32 v{vt3}, 5, v{vL}
    v_lshlrev_b32 v{vOb}, 2, v{vt2}
    v_lshlrev_b32 v{vSt}, 4, v{vL}
    s_mul_i32 s6, s{sKh}, {TILE}
    s_add_u32 s6, s6, {LW}
    v_add_u32 v{aK}, s6, v{vSt}
    s_add_u32 s3, s6, 1024
    v_add_u32 v{ak}, s3, v{vOb}
    v_cmp_gt_u32 vcc, 19, v{vt2}
    v_mul_u32_u24 v{vt0}, 19, v{vt3}
    v_add_u32 v{aV}, v{vt2}, v{vt0}
    v_cndmask_b32 v{aV}, 38, v{aV}, vcc
    v_cmp_eq_u32 vcc, 22, v{vt2}
    {"s_mov_b32 s4, 0xf0080000" if "dup" in EXP else ""}
    {"s_mov_b32 s5, 0x0fb00000" if "dup" in EXP else ""}
    s_add_u32 s3, s6, 1152
    v_mad_u32_u24 v{vt1}, v{vt3}, 15, 4
    {"" if "one2" not in EXP else f"v_cndmask_b32 v{aV}, v{aV}, 39, vcc"}
    {f"v_cndmask_b32 v{aV}, v{aV}, v{vt1}, s[4:5]" if "dup" in EXP else ""}
    v_lshlrev_b32 v{aV}, 4, v{aV}
    v_add_u32 v{aV}, s3, v{aV}
    s_lshl_b32 s3, s{sHd}, 1
    s_add_u32 s3, s3, s{sKh}
    s_mul_i32 s3, s3, 1536
    s_add_u32 s3, s3, {QHA}
    v_add_u32 v{vH}, s3, v{vSt}
""")
    a(f"""s_lshl_b32 s{sHead}, s{sJ}, 2
    s_add_u32 s{sHead}, s{sHead}, s{sHd}
    s_lshl_b32 s{sB}, s{sT1}, 13
    s_lshl_b32 s3, s{sHead}, 7
    s_add_u32 s{sB}, s{sB}, s3
    s_add_u32 s{sO+1}, s{sB}, {OX}
    s_lshl_b32 s{sA}, s{sT1}, 16
    s_lshl_b32 s3, s{sHead}, 9
    s_add_u32 s{sA}, s{sA}, s3
    s_add_u32 s{sO}, s{sA}, {OF}
    s_add_u32 s{sO+2}, s{sO}, 32768
    s_add_u32 s{sO+3}, s{sO+1}, 4096
    v_lshrrev_b32 v{vt3}, 5, v{vL}
    v_and_b32 v{vOa}, 15, v{vL}
    v_lshlrev_b32 v{vOa}, 4, v{vOa}
    v_bfe_u32 v{vt1}, v{vL}, 4, 1
    v_lshl_add_u32 v{vOa}, v{vt1}, 14, v{vOa}
    v_lshl_add_u32 v{vOa}, v{vt3}, 8, v{vOa}""")
    common_srd()
    a(f"""s_mul_i32 s3, s{sKh}, 36864
    v_add_u32 v{vR0}, s3, v{vR0}
    v_xor_b32 v{vR1}, 32, v{vR0}
    s_bitcmp1_b32 s{sHd}, 0
    s_mov_b32 s{sB}, 0x34343120
    s_mov_b32 s{sC}, {LW}
    s_cmov_b32 s{sB}, 0x44423120
    s_cmov_b32 s{sC}, {LW-4}
    s_mul_i32 s3, s{sHd}, 36
    s_add_u32 s{sC}, s{sC}, s3
    v_bfe_u32 v{vt0}, v{vL}, 4, 1
    v_and_b32 v{vt1}, 3, v{vL}
    v_lshl_add_u32 v{vt0}, v{vt0}, 2, v{vt1}
    v_lshlrev_b32 v{vt0}, 2, v{vt0}
    v_lshrrev_b32 v{vt0}, v{vt0}, s{sB}
    v_and_b32 v{vt0}, 15, v{vt0}
    v_bfe_u32 v{vt1}, v{vL}, 2, 2
    v_lshl_add_u32 v{vt1}, v{vt1}, 1, v{vt3}
    v_mul_u32_u24 v{vt1}, 288, v{vt1}
    v_lshl_add_u32 v{vA0}, v{vt0}, 3, v{vt1}
    v_add_u32 v{vA0}, s{sC}, v{vA0}
    v_subrev_u32 v{vA1}, {LW-LD}, v{vA0}
    s_cmp_lg_u32 s{sKh}, 0
    s_cbranch_scc1 f_b0
    s_lshr_b32 s3, s{sJ}, 1
    s_lshl_b32 s3, s3, 2
    s_add_u32 s3, s3, s{sHd}
    s_cmp_lg_u32 s3, 2
    s_cbranch_scc1 f_a0
    v_xor_b32 v4, 32, v{vW}
    v_lshlrev_b32 v5, 4, v{vt3}
    v_add_u32 v5, {LGATE}, v5
    v_add_u32 v6, {F_G2}, v{vOb}""")
    lds_wait(a, "f_g1", aF, vt0, 6, sleep=1)
    duty_chain("G", 16, vW, 4, 5)
    a(f"""s_nop 11
    v_mul_f32 v4, {f2u(-math.log2(math.e))}, v16
    v_exp_f32 v4, v4
    s_nop 0
    v_add_f32 v4, 1.0, v4
    v_rcp_f32 v4, v4
    s_nop 0
    ds_write_b32 v6, v4
    s_branch f_a0""")
    a.label("f_b0")
    a(f"""s_lshr_b32 s{sGrp}, s{sJ}, 1
    s_lshl_b32 s{sGrp}, s{sGrp}, 2
    s_add_u32 s{sGrp}, s{sGrp}, s{sHd}
    s_setprio 1""")
    fnet_job(a)
    if "j2l" not in EXP: fnet_job2(a)
    if "bq0" in EXP: a("s_setprio 0")
    a.label("f_a0")
    stamp(a, 1, "P")
    QA, QR = 32, 64
    lg = []
    def qwait(tag):
        if tag in lg:
            i = max(k for k, t in enumerate(lg) if t == tag)
            a(f"s_waitcnt lgkmcnt({len(lg) - 1 - i})"); del lg[:i + 1]
    def qrd(ks):
        c, b = ks >> 2, QR + 8*(ks % 5)
        v, o = (vA0, 9216*c) if c < 5 else (vA1, 9216*(c-5))
        o += 2304*(ks & 3)
        a(f"ds_read_b64_tr_b16 v[{b}:{b+1}], v{v} offset:{o}")
        a(f"ds_read_b64_tr_b16 v[{b+2}:{b+3}], v{v} offset:{o + 144}")
        a(f"ds_read_b128 v[{b+4}:{b+7}], v{vR1 if ks & 1 else vR0} offset:{2048*(ks>>1)}")
        lg.extend([ks]*3)
        assert len(lg) <= 15
    lds_wait(a, "f_q0", aF, vt0, QF)
    nonce()
    stamp(a, 2, "P"); stamp(a, 1)
    for ks in range(4): qrd(ks)
    for ks in range(36):
        c, b = ks >> 2, QR + 8*(ks % 5)
        qwait(ks)
        a(f"v_mfma_f32_32x32x16_bf16 v[{QA}:{QA+15}], v[{b}:{b+3}], v[{b+4}:{b+7}], " + ("0" if ks == 0 else f"v[{QA}:{QA+15}]"))
        if ks in (7, 19): a(f"v_mov_b32 v{vt1}, {1 if ks == 7 else 2}\nds_write_b32 v{aP}, v{vt1}"); lg.append("w")
        if ks == 7: stamp(a, 1, "K")
        if ks & 3 == 0 and c < 8:
            qwait("f")
            a(f"v_cmp_gt_i32 vcc, {QF + c + 1}, v{vt0}\ns_cbranch_vccz f_q{c+1}_ok")
            lds_wait(a, f"f_q{c+1}", aF, vt0, QF + c + 1)
            a.label(f"f_q{c+1}_ok")
            if c == 4: stamp(a, 3, "P")
        if ks & 3 == 2 and c < 7: a(f"ds_read_b32 v{vt0}, v{aF}"); lg.append("f")
        if ks == THR("zo", 21): a(f"s_cmp_lg_u32 s{sKh}, 0\ns_cbranch_scc1 f_z0"); zero_o(); a.label("f_z0")
        if ks == 31: a(f"v_and_b32 v{vt2}, 28, v{vOb}\nv_add_u32 v{vt2}, {F_PRG}, v{vt2}\nds_read_b32 v{vt3}, v{vt2}"); lg.append("g")
        if ks + 4 < 36: qrd(ks + 4)
    stamp(a, 4, "P")
    a(f"""s_mov_b32 s{sB}, {f2u(CQ)}
    s_lshl_b32 s3, s{sW8}, 2
    s_add_u32 s3, s3, {F_QH}
    v_mov_b32 v{vt0}, s3
    v_xor_b32 v{aF}, 16, v{vt0}
    v_mov_b32 v{vt1}, 1
    v_cmp_gt_i32 vcc, 2, v{vt3}
    s_cbranch_vccz f_q9_ok""")
    lds_wait(a, "f_q9", vt2, vt3, 2)
    a.label("f_q9_ok")
    T = 48
    a(f"s_nop 1\ns_bitcmp1_b32 s{sHd}, 0\ns_cbranch_scc1 f_qodd")
    def qmove(r0, rx):
        for r in range(8): a(f"v_mul_f32 v{T+r}, s{sB}, v{QA+r0+r}")
        for r in range(2): a(f"v_mul_f32 v{T+8+r}, s{sB}, v{QA+rx+r}")
    qmove(0, 8)
    a("s_branch f_qdone")
    a.label("f_qodd")
    qmove(2, 14)
    a.label("f_qdone")
    for k in range(4): a(f"v_cvt_pk_bf16_f32 v{Q1[0]+k}, v{T+2*k}, v{T+2*k+1}")
    a(f"""v_cvt_pk_bf16_f32 v{Q2[0]}, v{T+8}, v{T+9}
    v_mov_b32 v{Q2[0]+1}, 0
    ds_write_b128 v{vH}, v[{Q1[0]}:{Q1[0]+3}]
    v_cndmask_b32 v{Q2[0]}, v{Q2[0]}, 0, s[{sHi}:{sHi+1}]
    s_mov_b32 exec_hi, 0
    ds_write_b64 v{vH}, v[{Q2[0]}:{Q2[0]+1}] offset:1024
    s_mov_b32 exec_hi, -1
    ds_write_b32 v{vt0}, v{vt1}
    s_mul_i32 s3, s{sKh}, -3072
    s_add_u32 s3, s3, 1536
    v_add_u32 v{vH}, s3, v{vH}
    v_mov_b32 v{Q2[1]}, 0
    v_mov_b32 v{Q2[1]+1}, 0""")
    lds_wait(a, "f_b1", aF, vt3, 1)
    a(f"""ds_read_b128 v[{Q1[1]}:{Q1[1]+3}], v{vH}
    s_mov_b32 exec_hi, 0
    ds_read_b64 v[{Q2[1]}:{Q2[1]+1}], v{vH} offset:1024
    s_mov_b32 exec_hi, -1
    v_mov_b32 v{vt1}, 3
    s_mul_i32 s3, s{sHd}, 6144
    s_add_u32 s3, s3, {OPA}
    v_lshlrev_b32 v{vH}, 4, v{vL}
    v_add_u32 v{vH}, s3, v{vH}
    s_waitcnt lgkmcnt(0)
    ds_write_b32 v{aP}, v{vt1}
    s_cmp_eq_u32 s{sKh}, 0
    s_cbranch_scc1 f_go
    s_setprio 3""")
    if "j2l" in EXP: fnet_job2(a)
    zero_o()
    GO = J_GO
    a(f"""v_lshrrev_b32 v{vt3}, 5, v{vL}
    s_lshl_b32 s3, s{sHd}, 1
    v_add_u32 v32, s3, v{vt3}
    v_xor_b32 v32, v32, v{vL}
    v_and_b32 v32, 7, v32
    v_lshlrev_b32 v32, 4, v32
    v_lshl_add_u32 v32, v{vOb}, 5, v32
    v_add_u32 v32, {GSC}, v32
    v_xor_b32 v33, 112, v32
    v_add_u32 v34, {F_N}, v{vOb}
    s_lshl_b32 s3, s{sHd}, 2
    s_add_u32 s6, s3, {F_XC}
    v_mov_b32 v35, s6""")
    lds_wait(a, "f_b2", vt2, vt3, 3, sleep=1)
    for kind in range(4): a(f"ds_write_b128 v{33 if kind >> 1 else 32}, v[{GO[kind]}:{GO[kind]+3}] offset:{4096*kind}")
    a(f"s_cmp_lg_u32 s{sHd}, 0\ns_cbranch_scc1 f_b3\ns_mov_b32 exec_hi, 0\nds_write_b32 v34, v{vN}\ns_mov_b32 exec_hi, -1")
    a.label("f_b3")
    a(f"v_mov_b32 v{vt1}, 1\nds_write_b32 v35, v{vt1}")
    a.label("f_go")
    a(f"""v_and_b32 v{aF}, 12, v{vOb}
    v_add_u32 v{aF}, {F_KV}, v{aF}
    s_lshl_b32 s3, s{sHd}, 8
    s_add_u32 s3, s3, {F_DUMP}
    v_add_u32 v{vt2}, s3, v{vOb}
    v_mov_b32 v{K2[0]+1}, 0xbf80
    v_mov_b32 v{K2[1]+1}, 0xbf80""")
    stamp(a, 6, "P"); stamp(a, 2, "K")
    lds_wait(a, "f_a6", aF, vt3, 1)
    stamp(a, 3, "K"); stamp(a, 3)
    a(f"s_setprio {PRIO[0]}")
    if G0.STAMP and "C" in EXP: a("s_memtime s[84:85]")
    base = {aK: LW, ak: LW, aV: LW}
    def off(v, i, extra=0):
        o = ltile(2*i) + extra - base[v]
        if not 0 <= o < 65536:
            nb = ltile(2*i)
            a(f"v_add_u32 v{v}, {(nb - base[v]) & 0xffffffff}, v{v}")
            base[v] = nb; o = extra
        return o
    rdK = lambda i: f"ds_read_b128 v[{K1[i&1]}:{K1[i&1]+3}], v{aK} offset:{off(aK, i)}"
    rdk = lambda i: f"ds_read_b32 v{K2[i&1]}, v{ak} offset:{off(ak, i)}"
    rdV = lambda i, u: f"ds_read_b128 v[{V[i&1]+4*u}:{V[i&1]+4*u+3}], v{aV} offset:{off(aV, i, VB) - VB*(1-u)}"
    vIx = 3
    def M1(st): i, t = st >> 1, st & 1; return f"v_mfma_f32_32x32x16_bf16 v[{S[st%3]}:{S[st%3]+15}], v[{K1[i&1]}:{K1[i&1]+3}], v[{Q1[t]}:{Q1[t]+3}], 0"
    def M2(st): i, t = st >> 1, st & 1; return f"v_mfma_f32_32x32x8_bf16 v[{S[st%3]}:{S[st%3]+15}], v[{K2[i&1]}:{K2[i&1]+1}], v[{Q2[t]}:{Q2[t]+1}], v[{S[st%3]}:{S[st%3]+15}]"
    def M3(st, u): i, t = st >> 1, st & 1; return f"v_smfmac_f32_32x32x32_bf16 v[{O[t]}:{O[t]+15}], v[{V[i&1]+4*u}:{V[i&1]+4*u+3}], v[{S[st%3]+8*u}:{S[st%3]+8*u+7}], v{vIx}"
    a(rdK(0)); a(rdk(0))
    a(f"""s_lshl_b32 s3, s{sHd}, 2
    s_add_u32 s3, s3, {F_MH}
    v_mov_b32 v{vt0}, s3
    s_cmp_lg_u32 s{sKh}, 0
    s_cbranch_scc1 f_m0
    s_waitcnt lgkmcnt(0)""")
    for st in range(2): a(M1(st)); a(M2(st))
    a(f"v_mov_b32 v{vIx}, 1\ns_nop 8")
    for t in range(2):
        m, n = S[2] + 2*t, S[2] + 2*t + 1
        a(f"v_max3_f32 v{m}, v{S[t]}, v{S[t]+1}, v{S[t]+2}")
        for r in range(3, 15, 2): a(f"v_max3_f32 v{m}, v{S[t]+r}, v{S[t]+r+1}, v{m}")
        a(f"v_max_f32 v{m}, v{S[t]+15}, v{m}\nv_mov_b32 v{n}, v{m}")
    a("s_nop 0")
    for t in range(2):
        m, n = S[2] + 2*t, S[2] + 2*t + 1
        a(f"""v_permlane32_swap_b32 v{m}, v{n}
        v_max_f32 v{m}, v{m}, v{n}
        v_add_f32 v{m}, {f2u(OFFS)}, v{m}
        v_cvt_pk_bf16_f32 v{m}, v{m}, 0
        v_cndmask_b32 v{Q2[t]+1}, v{m}, 0, s[{sHi}:{sHi+1}]
        ds_write_b32 v{vt2}, v{m} offset:{128*t}""")
    a(f"ds_write_b32 v{vt0}, v{vIx}\ns_branch f_m1")
    a.label("f_m0")
    lds_wait(a, "f_m2w", vt0, vt3, 1)
    a("s_mov_b32 exec_hi, 0")
    for t in range(2): a(f"ds_read_b32 v{Q2[t]+1}, v{vt2} offset:{128*(1-t)}")
    a("s_mov_b32 exec_hi, -1\ns_waitcnt lgkmcnt(0)")
    a.label("f_m1")
    a(f"v_mov_b32 v{vIx}, 0xdddd")
    a(M1(0)); a(M2(0))
    a("s_nop 8")
    FCHK = {2: 2, 5: 3, 12: 4, 19: 5}
    PRG = {10: 4, 16: 5, 22: 6, 27: 7}
    for st in range(64):
        i, t = st >> 1, st & 1
        if t == 0:
            if i in PRIO and i: a(f"s_setprio {PRIO[i]}")
            if i == 16: stamp(a, 4)
            NS = {0: 1, 5: 2, 16: 3, 24: 4, 30: 5}
            if G0.STAMP and "N" in EXP and i in NS: a(f"s_memtime s[{82+2*NS[i]}:{83+2*NS[i]}]")
            if i in PRG: a(f"v_mov_b32 v{vt3}, {PRG[i]}\nds_write_b32 v{aP}, v{vt3}")
            if i in FCHK: lds_wait(a, f"f_w{i}", aF, vt0, FCHK[i])
            if i == 25:
                a(f"s_cmp_eq_u32 s{sKh}, 0\ns_cbranch_scc1 f_e0\nv_mov_b32 v{aF}, {F_S2}")
                lds_wait(a, "f_e1", aF, vt0, 1)
                a(f"s_lshl_b32 s3, s{sHd}, 2\ns_add_u32 s3, s3, {F_OH}\nv_mov_b32 v{aF}, s3\nv_add_u32 v{vt3}, {F_G}, v{vOb}")
                for tt in range(2): a(f"ds_read_b32 v{vG[tt]}, v{vt3} offset:{128*(1-tt)}")
                a.label("f_e0")
            if i == 26:
                for tt in range(2): a(f"v_sub_f32 v{vG[tt]}, 1.0, v{vG[tt]}")
            if i == 31: a(f"ds_read_b32 v{vt0}, v{aF}")
        if st == 63:
            a(f"s_cmp_eq_u32 s{sKh}, 0\ns_cbranch_scc1 f_e5\nv_cmp_gt_i32 vcc, 1, v{vt0}\ns_cbranch_vccz f_e2_ok")
            lds_wait(a, "f_e2", aF, vt0, 1)
            a.label("f_e2_ok")
            for q in range(6): a(f"ds_read_b128 v[{PB[q]}:{PB[q]+3}], v{vH} offset:{1024*q}")
            a.label("f_e5")
        s = S[st % 3]
        e = lambda k: [f"v_exp_f32 v{s+q}, v{s+q}" for q in range(4*k, 4*k + 4)]
        lk = [rdK(i+1), rdk(i+1)] if t == 0 and i < 31 else []
        lv = [rdV(i, 0), rdV(i, 1)] if t == 0 else []
        m1, m2 = ([M1(st+1)], [M2(st+1)]) if st < 63 else ([], [])
        p0, p1 = ([M3(st-1, 0)], [M3(st-1, 1)]) if st else ([], [])
        L = m1 + lk + e(0) + m2 + lv + e(1) + p0 + e(2) + p1 + e(3)
        if t == 0: L.append("s_waitcnt lgkmcnt(0)")
        for x in L: a(x)
    a("s_nop 1"); a(M3(63, 0)); a(M3(63, 1))
    stamp(a, 5); stamp(a, 5, "T")
    if G0.STAMP and "N" in EXP: a("s_memtime s[94:95]")
    if G0.STAMP and "C" in EXP: a("s_memtime s[86:87]")
    a(f"s_cmp_lg_u32 s{sKh}, 0\ns_cbranch_scc1 f_e3")
    a(f"""v_and_b32 v{vt2}, 28, v{vOb}
    v_add_u32 v{vt2}, {F_PRG}, v{vt2}
    s_lshl_b32 s3, s{sHd}, 2
    s_add_u32 s3, s3, {F_OH}
    v_mov_b32 v{aF}, s3
    v_mov_b32 v{vt1}, 1""")
    lds_wait(a, "f_e4", vt2, vt3, 7)
    a("s_nop 3")
    for q in range(6): a(f"ds_write_b128 v{vH}, v[{O[q//3]+4*(q%3)}:{O[q//3]+4*(q%3)+3}] offset:{1024*q}")
    a(f"ds_write_b32 v{aF}, v{vt1}")
    G0.stamp_end(a, 0, sWS, sWave)
    a("s_endpgm")
    a.label("f_e3")
    a("s_waitcnt lgkmcnt(0)\ns_nop 0")
    for r in range(11): a(f"v_add_f32 v{O[0]+r}, v{O[0]+r}, v{PB[3+(r>>2)]+(r&3)}")
    def norm(t):
        ON, PK, vr = S[1], S[2] + 8*t, S[1] + 10
        if "one2" not in EXP:
            a(f"v_mov_b32 v{vr}, v{O[t]+10}\ns_nop 1\nv_permlane32_swap_b32 v{O[t]+10}, v{vr}")
        a(f"v_rcp_f32 v{vr}, v{O[t]+10}\ns_nop 0\nv_mul_f32 v{vr}, v{vr}, v{vG[t]}")
        for r in range(10): a(f"v_mul_f32 v{ON+r}, v{O[t]+r}, v{vr}")
        for k in range(5): a(f"v_cvt_pk_bf16_f32 v{PK+k}, v{ON+2*k}, v{ON+2*k+1}")
        a(f"""buffer_store_dwordx4 v[{PK}:{PK+3}], v{vOa}, s[{sWS}:{sWS+3}], s{sO+2*(1-t)} offen sc1
        s_mov_b32 exec_hi, 0
        buffer_store_dword v{PK+4}, v{vOb}, s[{sWS}:{sWS+3}], s{sO+1+2*(1-t)} offen sc1
        s_mov_b32 exec_hi, -1""")
    norm(0)
    for r in range(11): a(f"v_add_f32 v{O[1]+r}, v{O[1]+r}, v{PB[r>>2]+(r&3)}")
    norm(1)
    a(f"v_add_f32 v{vt0}, |v{O[0]}|, |v{O[1]}|")
    for r in range(1, 11):
        for t in range(2): a(f"v_add_f32 v{vt0}, |v{O[t]+r}|, v{vt0}")
    a(f"""v_min_f32 v{aF}, v{O[0]+10}, v{O[1]+10}
    v_mov_b32 v{vt3}, 0x7f800000
    v_cmp_le_f32 vcc, {f2u(LMIN)}, v{aF}
    v_cmp_lt_f32 s[6:7], v{vt0}, v{vt3}
    s_nop 0
    s_and_b64 vcc, vcc, s[6:7]
    s_cmp_eq_u64 vcc, exec
    s_cbranch_scc0 f_fallback""")
    a.label("f_n2")
    stamp(a, 1, "T")
    if "T" in EXP: a("s_waitcnt vmcnt(0)")
    stamp(a, 2, "T")
    last_wave_signals(a, "f_a9", F_CNT3, 4, FL3, 4, vt0, vt2, True)
    stamp(a, 3, "T")
    G0.stamp_end(a, 0, sWS, sWave)
    a("s_endpgm")
    a.label("f_fallback")
    s0 = S[0]
    a(f"""s_waitcnt vmcnt(0)
    v_subrev_u32 v{aK}, {base[aK] + TILE}, v{aK}
    v_subrev_u32 v{ak}, {base[ak] + TILE}, v{ak}
    v_subrev_u32 v{aV}, {base[aV] + TILE}, v{aV}""")
    for t in range(2):
        st = 3*t
        kb, vb = K1[(st >> 1) & 1], V[(st >> 1) & 1]
        k2 = K2[(st >> 1) & 1]
        a(f"v_mov_b32 v{k2+1}, 0\nv_mov_b32 v{vt0}, 0xff800000\ns_mov_b32 s{sA}, {KVG}")
        a.label(f"f_fb1{t}")
        a(f"""buffer_load_dwordx4 v[{kb}:{kb+3}], v{aK}, s[{sWS}:{sWS+3}], s{sA} offen sc1
        buffer_load_dword v{k2}, v{ak}, s[{sWS}:{sWS+3}], s{sA} offen sc1
        s_waitcnt vmcnt(0)""")
        a(M1(st)); a(M2(st)); a("s_nop 11")
        for r in range(0, 16, 2): a(f"v_max3_f32 v{vt0}, v{s0+r}, v{s0+r+1}, v{vt0}")
        a(f"""s_add_u32 s{sA}, s{sA}, {TILE}
        s_cmp_lt_u32 s{sA}, {KVG+64*TILE}
        s_cbranch_scc1 f_fb1{t}
        v_mov_b32 v{vt3}, v{vt0}
        s_nop 1
        v_permlane32_swap_b32 v{vt0}, v{vt3}
        v_max_f32 v{vt0}, v{vt0}, v{vt3}
        v_cvt_pk_bf16_f32 v{vt3}, v{vt0}, v{vt0}
        v_and_b32 v{vt3}, 0xffff0000, v{vt3}
        v_sub_f32 v{vt0}, v{vt0}, v{vt3}
        v_cvt_pk_bf16_f32 v{Q2[t]+1}, v{vt3}, v{vt0}
        v_cndmask_b32 v{Q2[t]+1}, v{Q2[t]+1}, 0, s[{sHi}:{sHi+1}]
        v_mov_b32 v{k2+1}, 0xbf80bf80
        s_mov_b32 s{sA}, {KVG}""")
        for r in range(16): a(f"v_mov_b32 v{O[t]+r}, 0")
        a.label(f"f_fb2{t}")
        a(f"""buffer_load_dwordx4 v[{kb}:{kb+3}], v{aK}, s[{sWS}:{sWS+3}], s{sA} offen sc1
        buffer_load_dword v{k2}, v{ak}, s[{sWS}:{sWS+3}], s{sA} offen sc1
        buffer_load_dwordx4 v[{vb}:{vb+3}], v{aV}, s[{sWS}:{sWS+3}], s{sA} offen sc1
        buffer_load_dwordx4 v[{vb+4}:{vb+7}], v{aV}, s[{sWS}:{sWS+3}], s{sA} offen offset:{VB} sc1
        s_waitcnt vmcnt(0)""")
        a(M1(st)); a(M2(st)); a("s_nop 11")
        for r in range(16): a(f"v_exp_f32 v{s0+r}, v{s0+r}")
        a("s_nop 1"); a(M3(st, 0)); a(M3(st, 1))
        a(f"""s_add_u32 s{sA}, s{sA}, {TILE}
        s_cmp_lt_u32 s{sA}, {KVG+64*TILE}
        s_cbranch_scc1 f_fb2{t}
        s_nop 11""")
        norm(t)
    a("s_branch f_n2")
    a.label("f_end")
    a("s_endpgm")
    return a

HEAD = """; Fused FNet + multi-query attention + gate.  One launch, 256 workgroups of 12 waves, one per CU.
"""
def build(a, vgpr=168):
    i0, i1 = a.lines.index("f_duty:"), a.lines.index("f_dS:")
    if "dplain" in EXP: a.lines[i0:i1] = [l.replace(" sc1", "") if "buffer_store" in l and "dwordx2" not in l else l for l in a.lines[i0:i1]]
    if "dnost" in EXP: a.lines[i0:i1] = [l for l in a.lines[i0:i1] if not ("buffer_store" in l and "dwordx2" not in l)]
    if "noprio" in EXP: a.lines = [l for l in a.lines if l != "s_setprio 3"]
    lab = G0.NAME + "_kernel"
    for p in check(a.lines): print(p, file=sys.stderr)
    out = [HEAD + f"; @launch grid=(256,1,1) block=(768,1,1) lds=163840", '.amdgcn_target "amdgcn-amd-amdhsa--gfx950"\n.text',
           f".globl {lab}\n.p2align 8\n.type {lab},@function\n{lab}:", a.text(), ".p2align 8\n.type rf_table,@object\nrf_table:"]
    w = rf_table()
    for i in range(0, len(w), 8): out.append(".long " + ",".join(f"0x{x:08x}" for x in w[i:i+8]))
    out += [".size rf_table, 4096", "rf_end:", '.section .rodata,"a"', kd(lab, vgpr)]
    return "\n".join(out) + "\n"

if __name__ == "__main__":
    if len(sys.argv) > 2 and sys.argv[2] == "stamp": G0.STAMP = True
    for x in sys.argv[3:]:
        if x.startswith("leak"):
            p = x.split(":"); G0.LEAK = (int(p[1]), int(p[2]), int(p[3]) if len(p) > 3 else None)
        else: EXP.add(x)
    open(sys.argv[1], "w").write(build(gen()))
```

```python
import math, sys
import gen as G0
from gen import Asm, check, srd, f2u, bf16, CQ, wave_max, load_rf, rf_table, kd
TILE, VB = 2432, 640
GP, GU = 1280, 704
EP = 0x0
FL0, FL1, FL2, FL3 = 0x8000, 0x10000, 0x20000, 0x30000
KMG = 0x44000
GG = 0x41000
KVG = 0x50000
OF = 0x100000
OX = 0x300000
GT = 0x340000
ST = 0x1200000
WS_SIZE = 0x1300000
G0.GT = GT; G0.ST = ST
OFFS, LMIN = 100.0, 2.0**-103
LX, LD, LW, LGATE, FLG = 0, 73728, 110592, 156672, 159744
F_KV, F_PRG, F_S1F, F_S1, F_CNT2, F_CNT3, F_TA, F_S2, F_S0, F_DUTY, F_KC, F_LD, F_XC, F_OH, F_MH, F_QH, F_G, F_N, F_G2, F_DUMP = FLG, FLG+16, FLG+48, FLG+52, FLG+56, FLG+60, FLG+64, FLG+80, FLG+84, FLG+88, FLG+92, FLG+96, FLG+112, FLG+128, FLG+144, FLG+160, FLG+256, FLG+512, FLG+640, FLG+1024
GSC = 81920
QHA = LW + 32768
OPA = 56320
J1 = 20
def ltile(j): return LW + TILE*j if j < J1 else TILE*(j - J1)
PRIO = {0: 2, 16: 1, 29: 0}
for _x in sys.argv:
    if _x.startswith("pr:"): PRIO = {int(k): int(v) for k, v in (p.split("=") for p in _x[3:].split(","))}
SPIN = 20000
THR = lambda k, d: next((int(x[len(k):]) for x in EXP if x.startswith(k) and x[len(k):].isdigit()), d)
QF = 7
EXP = set()
WIDE = set()
def stamp(a, s, g="A"):
    if s == 0 or g in EXP or (g == "A" and not EXP & {"P", "H", "R", "T", "J", "L", "M", "K", "D", "N"}): G0.stamp(a, s)

sWS, sRA, sRB, sRC, sRD = 8, 12, 40, 44, 48
sNon, sWave, sT1, sJ = 54, 56, 57, 58
sA, sB, sC, sD, sE, sF, sG, sH = 59, 60, 61, 62, 63, 64, 65, 66
sHi = 68
sRot = 67
vL = 1

_n = [0]
LABS = {}
def stamp12(a, slot):
    if not G0.STAMP or EXP & {'P', 'H', 'R', 'T', 'J', 'L', 'M', 'K', 'D', 'N'}: return
    _n[0] += 1
    a(f"s_sub_u32 s3, s{sWave}, 1\ns_cmp_ge_u32 s3, 2\ns_cbranch_scc1 f_st{_n[0]}")
    stamp(a, slot)
    a.label(f"f_st{_n[0]}")

def lds_wait(a, lab, vaddr, vt, val, sleep=0):
    if sleep:
        a(f"s_branch {lab}")
        a.label(lab + "_z")
        a(f"s_sleep {sleep}")
    a.label(lab)
    if G0.STAMP:
        _n[0] += 1
        a(f"s_add_u32 s80, s80, 1\ns_cmp_lt_u32 s80, 200000\ns_cbranch_scc1 {lab}_go\ns_mov_b32 s81, {0x77770000}\ns_branch {lab}_to")
        a.label(lab + "_go")
    a(f"ds_read_b32 v{vt}, v{vaddr}\ns_waitcnt lgkmcnt(0)\nv_cmp_gt_i32 vcc, {val}, v{vt}\ns_cbranch_vccnz {lab + ('_z' if sleep else '')}")
    if G0.STAMP: a.label(lab + "_to"); LABS[_n[0]] = lab

def tag_wait(a, lab, vaddr, soff, n, vt, step=1024, sleep=2, lanes=0, sent=False):
    a(f"s_mov_b32 s{sH}, 0")
    if lanes: a(f"s_mov_b64 exec, {(1 << lanes) - 1}")
    if sent: a(f"s_branch {lab}_s")
    a.label(lab)
    if lanes:
        a(f"v_mov_b32 v{vt}, 0\nv_mov_b32 v{vt+1}, 0\nbuffer_atomic_or_x2 v[{vt}:{vt+1}], v{vaddr}, s[{sWS}:{sWS+3}], s{soff} offen sc0 sc1")
    else:
        for i in range(n): a(f"buffer_load_dwordx2 v[{vt+2*i}:{vt+2*i+1}], v{vaddr}, s[{sWS}:{sWS+3}], s{soff} offen offset:{i*step} sc1")
    if sent: a.label(lab + "_s")
    a(f"s_add_u32 s{sH}, s{sH}, 1\ns_waitcnt vmcnt(0)" + ("" if sent else " lgkmcnt(0)"))
    for i in range(n):
        a(f"v_cmp_ne_u64 {'vcc' if i == 0 else 's[6:7]'}, s[{sNon}:{sNon+1}], v[{vt+2*i}:{vt+2*i+1}]")
        if i: a("s_nop 0\ns_or_b64 vcc, vcc, s[6:7]")
    a(f"s_cbranch_vccz {lab}_ok\ns_sleep {sleep}\ns_cmp_lt_u32 s{sH}, {SPIN}\ns_cbranch_scc1 {lab}")
    if G0.STAMP: a("s_mov_b32 s81, 0x77770000")
    a.label(lab + "_ok")
    if lanes: a("s_mov_b64 exec, -1")
    a.vm = []

def tag_signal(a, area, nrep, v0, v1, atomic=False):
    a(f"""s_lshl_b32 s{sG}, s{sT1}, 7
    s_lshl_b32 s{sH}, s{sJ}, 3
    s_add_u32 s{sG}, s{sG}, s{sH}
    s_add_u32 s{sG}, s{sG}, {area}
    v_lshlrev_b32 v{v0}, 12, v{vL}
    v_mov_b32 v{v1}, s{sNon}
    v_mov_b32 v{v1+1}, s{sNon+1}
    s_mov_b64 exec, {(1 << nrep) - 1}
    {"buffer_atomic_swap_x2" if atomic else "buffer_store_dwordx2"} v[{v1}:{v1+1}], v{v0}, s[{sWS}:{sWS+3}], s{sG} offen sc1
    s_mov_b64 exec, -1""")

def last_wave_signals(a, lab, cnt, total, area, nrep, v0, v1, atomic=False):
    a(f"""s_waitcnt vmcnt(0)
    v_mov_b32 v{v0}, {cnt}
    v_mov_b32 v{v1}, 1
    s_mov_b64 exec, 1
    ds_add_rtn_u32 v{v1}, v{v0}, v{v1}
    s_waitcnt lgkmcnt(0)
    v_readfirstlane_b32 s{sG}, v{v1}
    s_mov_b64 exec, -1
    s_cmp_lg_u32 s{sG}, {total-1}
    s_cbranch_scc1 {lab}""")
    tag_signal(a, area, nrep, v0, v1, atomic)
    a.label(lab)
    a.vm = []

def xsrc(a, dst, t0, t1):
    a(f"""v_lshrrev_b32 v{t0}, 4, v{vL}
    v_xor_b32 v{t0}, v{t0}, v{vL}
    v_and_b32 v{t0}, 3, v{t0}
    v_lshlrev_b32 v{t0}, 4, v{t0}
    v_lshrrev_b32 v{t1}, 2, v{vL}
    s_mov_b32 s3, 73728
    v_mad_u32_u24 v{dst}, v{t1}, s3, v{t0}""")
def xread(a, r0, r1, t0, t1, vL=vL):
    a(f"""v_lshrrev_b32 v{t0}, 5, v{vL}
    v_lshrrev_b32 v{t1}, 2, v{vL}
    v_xor_b32 v{t0}, v{t0}, v{t1}
    v_and_b32 v{t0}, 3, v{t0}
    v_and_b32 v{t1}, 31, v{vL}
    v_lshlrev_b32 v{t1}, 6, v{t1}
    v_lshl_add_u32 v{r0}, v{t0}, 4, v{t1}""")
def dense_pos(a, sph, pos, c16, t):
    a(f"""s_lshl_b32 s3, s{sph}, 6
    v_add_u32 v{c16}, s3, v{vL}
    v_mul_u32_u24 v{pos}, 7282, v{c16}
    v_lshrrev_b32 v{pos}, 16, v{pos}
    v_mul_u32_u24 v{t}, 9, v{pos}
    v_sub_u32 v{c16}, v{c16}, v{t}
    v_lshlrev_b32 v{c16}, 4, v{c16}""")

J_GO, J_N, J_vX, J_vF, J_sG, J_HB, J_R = [116, 120, 124, 132], 130, 110, 108, 74, 116, 132
def fnet_job(a, pre='f_j'):
    GO, vN, vX, vF, sGrp = J_GO, J_N, J_vX, J_vF, J_sG
    H1, H2, C = 16, 32, 16
    B = [72 + 4*i for i in range(9)] + [132 + 4*i for i in range(9)]
    free = [48 + 4*i for i in range(6)] + [116, 120, 124]
    e, p, co, x0, x1 = 4, 5, 6, 7, 8
    stamp(a, 1, "J")
    a(f"""v_and_b32 v{e}, 3, v{vL}
    v_bfe_u32 v{p}, v{vL}, 2, 1
    v_lshl_add_u32 v{e}, v{p}, 3, v{e}
    v_bfe_u32 v{p}, v{vL}, 3, 1
    v_lshl_add_u32 v{e}, v{p}, 2, v{e}
    s_lshl_b32 s3, s{sGrp}, 4
    v_add_u32 v{e}, s3, v{e}
    s_cmp_eq_u32 s{sGrp}, 0
    s_cselect_b32 s6, 0x10000, 0
    s_mov_b32 s7, s6
    v_mov_b32 v{p}, 288
    v_cndmask_b32 v{e}, v{e}, v{p}, s[6:7]
    s_or_b32 s6, s6, 0xffff
    s_mov_b32 s7, s6
    v_mov_b32 v{p}, 144
    v_cndmask_b32 v{p}, v{p}, 0, s[6:7]
    v_lshrrev_b32 v{co}, 5, v{vL}
    v_lshlrev_b32 v{co}, 3, v{co}
    s_lshl_b32 s3, s{sRot}, 6
    v_add_u32 v{co}, s3, v{co}
    v_mad_u32_u24 v{p}, v{e}, v{co}, v{p}
    s_mov_b32 s6, {(2**32 + 575)//576}
    s_mov_b32 s7, {f2u(1.0/576)}""")
    def cosv(dst, src):
        a(f"""v_mul_hi_u32 v{x1}, v{src}, s6
        v_mul_u32_u24 v{x1}, 576, v{x1}
        v_sub_u32 v{x1}, v{src}, v{x1}
        v_cvt_f32_u32 v{x1}, v{x1}
        v_mul_f32 v{x1}, s7, v{x1}
        v_cos_f32 v{dst}, v{x1}""")
    cosv(C, p); a(f"v_add_u32 v{p}, v{p}, v{e}"); cosv(C + 1, p)
    a(f"v_mul_u32_u24 v{co}, 15, v{e}\nv_add_u32 v{p}, v{p}, v{co}")
    cosv(C + 8, p); a(f"v_add_u32 v{p}, v{p}, v{e}"); cosv(C + 9, p)
    cosv(x0, e)
    a(f"v_lshlrev_b32 v{co}, 4, v{e}\nv_add_f32 v{x0}, v{x0}, v{x0}")
    cosv(co, co)
    for j in range(2, 8):
        for k in range(2): a(f"v_fma_f32 v{C+8*k+j}, v{x0}, v{C+8*k+j-1}, -v{C+8*k+j-2}")
    a(f"v_add_f32 v{co}, v{co}, v{co}\nv_lshlrev_b32 v{e}, 31, v{e}\nv_or_b32 v{e}, 1.0, v{e}\nv_xor_b32 v{x1}, 32, v{vX}")
    for k in range(18):
        c, o = C + 8*(k & 1), C + 8*(1 - (k & 1))
        for j in range(4): a(f"v_cvt_pk_bf16_f32 v{B[k]+j}, v{c+2*j}, v{c+2*j+1}")
        if k < 16:
            for j in range(8): a(f"v_fma_f32 v{c+j}, v{co}, v{o+j}, -v{c+j}")
    stamp(a, 3, "J")
    J1F = THR("jf", 3)
    lds_wait(a, pre + "1", vF, p, J1F, sleep=1)
    stamp(a, 4, "J")
    where, issued, lg = {}, 0, []
    for k in range(36):
        while issued < 36 and free and len(lg) < 14:
            if issued == 12 and J1F < 6: a(f"ds_read_b32 v{p}, v{vF}"); lg.append("f")
            if issued == 18 and J1F < 6:
                if k < 15: break
                if "f" in lg:
                    i = lg.index("f"); a(f"s_waitcnt lgkmcnt({len(lg) - 1 - i})"); del lg[:i + 1]
                a(f"v_cmp_gt_i32 vcc, 6, v{p}\ns_cbranch_vccz {pre}2_ok")
                lds_wait(a, pre + "2", vF, p, 6)
                a.label(pre + "2_ok")
            where[issued] = free.pop(0)
            a(f"ds_read_b128 v[{where[issued]}:{where[issued]+3}], v{x1 if issued & 1 else vX} offset:{2048*(issued>>1)}")
            lg.append(issued); issued += 1
        if k in lg:
            i = lg.index(k); a(f"s_waitcnt lgkmcnt({len(lg) - 1 - i})"); del lg[:i + 1]
        H, b = (H2 if k >= 18 else H1), B[k % 18]
        a(f"v_mfma_f32_32x32x16_bf16 v[{H}:{H+15}], v[{where[k]}:{where[k]+3}], v[{b}:{b+3}], " + ("0" if k % 18 == 0 else f"v[{H}:{H+15}]"))
        free.append(where[k])
        if 18 <= k < 27: free.append(b)
        if k == 30: load_rf(a, J_R, vL, p, pre + "rf")
    stamp(a, 5, "J")
    a("s_nop 11")
    for r in range(16): a(f"v_fmac_f32 v{H1+r}, v{e}, v{H2+r}")
    for k in range(8): a(f"v_cvt_pk_bf16_f32 v{J_HB+k}, v{H1+2*k}, v{H1+2*k+1}")

def fnet_job2(a, GO=J_GO, regs=(32, 64, 80)):
    vN, sGrp = J_N, J_sG
    (T1, T2, H1), Hb, R = regs, J_HB, J_R
    a("s_waitcnt vmcnt(0)")
    a(f"v_mfma_f32_32x32x16_bf16 v[{T1}:{T1+15}], v[{Hb}:{Hb+3}], v[{R}:{R+3}], 0")
    a(f"v_mfma_f32_32x32x16_bf16 v[{T2}:{T2+15}], v[{Hb}:{Hb+3}], v[{R+8}:{R+11}], 0")
    a(f"v_mfma_f32_32x32x16_bf16 v[{T1}:{T1+15}], v[{Hb+4}:{Hb+7}], v[{R+4}:{R+7}], v[{T1}:{T1+15}]")
    a(f"v_mfma_f32_32x32x16_bf16 v[{T2}:{T2+15}], v[{Hb+4}:{Hb+7}], v[{R+12}:{R+15}], v[{T2}:{T2+15}]")
    a(f"""s_cmp_eq_u32 s{sGrp}, 0
    s_cselect_b32 s6, -1, 0
    s_mov_b32 s7, 0
    s_nop 8
    v_cvt_pk_bf16_f32 v{vN}, v{T1+8}, v{T2+8}
    v_cndmask_b32 v{T1+8}, v{T1+8}, 0, s[6:7]
    v_cndmask_b32 v{T2+8}, v{T2+8}, 0, s[6:7]""")
    for kind, (op, x, y, order) in enumerate((("v_add_f32", T1, T2+8, 1), ("v_sub_f32", T2, T1+8, 1), ("v_sub_f32", T1, T2+8, -1), ("v_add_f32", T2, T1+8, -1))):
        for r in range(8): a(f"{op} v{H1+r}, v{x+r}, v{y+r}")
        for k in range(4):
            i0, i1 = (2*k, 2*k+1) if order > 0 else (7-2*k, 6-2*k)
            a(f"v_cvt_pk_bf16_f32 v{GO[kind]+k}, v{H1+i0}, v{H1+i1}")

hSm, hSx, hSg, hGr, hGs, hW2, hGa, hPr, hXc, hTa, hMt, hMk, hS2 = 100, 103, 106, 109, 110, 111, 112, 113, 114, 115, 116, 117, 118
hL16, hTr, hTw, hOx, hTg, hOo, hOw, hOr = 156, 157, 158, 159, 160, 161, 164, 165
OUTB = 56*1024
def helper_setup(a, t0, t1, t2, t3):
    for i in range(3):
        a(f"s_add_u32 s6, s{sWave}, {4*i}")
        dense_pos(a, 6, t1, t0, t2)
        a(f"""v_and_b32 v{t2}, 1, v{t1}
        v_bfe_u32 v{t3}, v{t1}, 1, 2
        v_and_b32 v{t1}, 56, v{t1}
        v_lshl_add_u32 v{t1}, v{t2}, 2, v{t1}
        v_add_u32 v{t1}, v{t1}, v{t3}
        s_movk_i32 s3, {GP}
        v_mad_u32_u24 v{hSg+i}, v{t1}, s3, v{t0}
        s_movk_i32 s3, 1152
        v_lshrrev_b32 v{t2}, 4, v{t1}
        v_lshl_add_u32 v{t2}, v{t2}, 1, v{t1}
        v_mad_u32_u24 v{hSm+i}, v{t2}, s3, v{t0}
        v_lshrrev_b32 v{t2}, 1, v{t1}
        v_lshl_add_u32 v{t2}, v{t2}, 4, v{t1}
        v_add_u32 v{t2}, 16, v{t2}
        v_mad_u32_u24 v{hSx+i}, v{t2}, s3, v{t0}
        v_add_u32 v{t1}, {64*i}, v{vL}
        v_mul_u32_u24 v{t2}, 7282, v{t1}
        v_lshrrev_b32 v{t2}, 16, v{t2}
        v_lshlrev_b32 v{t1}, 4, v{t1}
        s_mov_b32 s3, {73728-144}
        v_mad_u32_u24 v{hOo+i}, v{t2}, s3, v{t1}""")
    a(f"""v_lshlrev_b32 v{hL16}, 4, v{vL}
    v_lshrrev_b32 v{t2}, 3, v{vL}
    v_xor_b32 v{t3}, v{t2}, v{vL}
    v_and_b32 v{t3}, 7, v{t3}
    v_lshlrev_b32 v{t3}, 4, v{t3}
    v_lshl_add_u32 v{t3}, v{t2}, 7, v{t3}
    s_lshl_b32 s3, s{sWave}, 12
    s_add_u32 s3, s3, {GSC}
    v_add_u32 v{hGr}, s3, v{t3}
    v_and_b32 v{t1}, 7, v{vL}
    v_lshlrev_b32 v{hTg}, 3, v{t1}
    v_lshl_add_u32 v{hS2}, v{t2}, 7, v{hTg}
    v_mul_u32_u24 v{t2}, {128*GP}, v{t2}
    v_lshl_add_u32 v{hGs}, v{t1}, 4, v{t2}
    v_lshlrev_b32 v{t1}, 2, v{t1}
    v_add_u32 v{hPr}, {F_PRG}, v{t1}
    v_and_b32 v{t1}, 12, v{t1}
    v_add_u32 v{hXc}, {F_XC}, v{t1}
    v_add_u32 v{hTa}, {F_TA}, v{t1}
    s_lshl_b32 s3, s{sWave}, 2
    s_add_u32 s6, s3, {F_TA}
    v_mov_b32 v{hMt}, s6
    s_add_u32 s6, s3, {F_KV}
    v_mov_b32 v{hMk}, s6
    v_and_b32 v{t0}, 15, v{vL}
    v_lshrrev_b32 v{t2}, 4, v{vL}
    v_lshlrev_b32 v{t1}, 2, v{t0}
    v_lshl_add_u32 v{hOx}, v{t2}, 9, v{t1}
    s_lshl_b32 s3, s{sWave}, 6
    s_add_u32 s3, s3, {F_G}
    v_add_u32 v{hGa}, s3, v{t1}
    s_and_b32 s3, s{sWave}, 1
    s_lshl_b32 s3, s3, 22
    v_lshlrev_b32 v{t1}, 18, v{t0}
    v_lshl_add_u32 v{t1}, v{t2}, 4, v{t1}
    v_add_u32 v{hW2}, s3, v{t1}
    s_mul_i32 s3, s{sWave}, 2304
    s_add_u32 s3, s3, {OUTB}
    v_mul_u32_u24 v{t1}, 144, v{t0}
    v_lshl_add_u32 v{t1}, v{t2}, 3, v{t1}
    v_add_u32 v{hOw}, s3, v{t1}
    v_add_u32 v{hOr}, s3, v{hL16}
    v_bfe_u32 v{t3}, v{vL}, 2, 2
    v_lshl_add_u32 v{t2}, v{t2}, 2, v{t3}
    v_mul_u32_u24 v{t2}, 288, v{t2}
    v_and_b32 v{t3}, 3, v{vL}
    v_lshl_add_u32 v{hTr}, v{t3}, 3, v{t2}
    v_add_u32 v{hTw}, {LW}, v{hTr}""")

def gen():
    a = Asm()
    a.label("f_code")
    a("s_cmp_ge_u32 s2, 256\ns_cbranch_scc1 f_end")
    stamp(a, 0)
    a("s_load_dwordx2 s[52:53], s[0:1], 104\ns_load_dwordx16 s[16:31], s[0:1], 0\ns_load_dwordx8 s[32:39], s[0:1], 64")
    a(f"""v_lshrrev_b32 v2, 6, v0
    v_and_b32 v{vL}, 63, v0
    v_readfirstlane_b32 s{sWave}, v2
    s_bfe_u32 s3, s2, 0x20003
    s_lshr_b32 s{sRot}, s2, 6
    s_add_u32 s{sRot}, s{sRot}, s3
    s_and_b32 s{sRot}, s{sRot}, 3
    s_lshl_b32 s{sRot}, s{sRot}, 1
    {"s_bfe_u32 s6, s2, 0x10005" if "rot8" in EXP else ""}
    {"s_add_u32 s%d, s%d, s6" % (sRot, sRot) if "rot8" in EXP else ""}
    {"s_mov_b32 s%d, 0" % sRot if "norot" in EXP else ""}
    s_and_b32 s{sT1}, s2, 7
    s_lshl_b32 s3, s3, 3
    s_add_u32 s{sT1}, s{sT1}, s3
    s_lshr_b32 s{sJ}, s2, 5
    s_mov_b32 s{sHi}, 0
    {"s_waitcnt lgkmcnt(0)" if G0.STAMP and 0 else ""}
    s_mov_b32 s{sHi+1}, -1
    s_cmp_ge_u32 s{sWave}, 4
    s_cbranch_scc1 f_att
    s_setprio 3
    s_cmp_eq_u32 s{sWave}, 0
    s_cbranch_scc1 f_duty""")
    def common_srd():
        a("s_waitcnt lgkmcnt(0)")
        a(f"s_load_dwordx2 s[{sNon}:{sNon+1}], s[52:53], {EP}")
        srd(a, sWS, 52, WS_SIZE)
    def nonce():
        a(f"s_add_u32 s{sNon}, s{sNon}, 1")
    t0, t1, t2, t3 = 8, 9, 10, 11
    vF = 4
    vXs, vDs, vW = 2, 3, 12
    sG_, sXo, sDa, sDb, sDs, sM, sXp = 70, 71, 72, 73, 74, 75, 76
    a(f"s_sub_u32 s{sG_}, s{sWave}, 1")
    xsrc(a, vXs, t0, t1)
    a(f"""v_and_b32 v{t2}, 3, v{vL}
    v_mul_u32_u24 v{t1}, 36, v{t1}
    v_lshl_add_u32 v{vDs}, v{t2}, 4, v{t1}
    s_and_b32 s{sA}, s{sJ}, 1
    s_mul_i32 s{sM}, s{sA}, 36864
    s_lshl_b32 s{sA}, s{sA}, 5
    s_add_u32 s{sA}, s{sA}, s{sT1}
    s_mul_i32 s{sXo}, s{sA}, 1152
    s_cmp_lt_u32 s{sJ}, 4
    s_cselect_b32 s{sRB+2}, {576*36}, 0
    s_cselect_b32 s{sDa}, -1, 0
    s_mov_b32 s{sDb}, {F_DUMP}
    s_cmov_b32 s{sDb}, {LD}
    s_mov_b32 s{sRA+2}, {2048*1152}
    s_mov_b32 s{sRA+3}, 0x20000
    s_mov_b32 s{sRB+3}, 0x20000
    s_mov_b32 s{sB}, s{sG_}
    s_barrier
    s_cmp_lt_u32 s{sJ}, 2
    s_waitcnt lgkmcnt(0)
    s_cselect_b64 s[{sRB}:{sRB+1}], s[30:31], s[32:33]
    s_mov_b64 s[{sRA}:{sRA+1}], s[16:17]""")
    stamp(a, 1, "P")
    TD, TW = THR("td", 0), THR("tw", 0)
    def lround(th=""):
        a(f"""s_lshl_b32 s{sC}, s{sRot}, 1
        s_add_u32 s{sC}, s{sC}, s{sB}
        s_cmp_ge_u32 s{sC}, 18
        s_cselect_b32 s3, 18, 0
        s_sub_u32 s{sC}, s{sC}, s3
        s_lshl_b32 s{sD}, s{sB}, 11
        s_add_u32 m0, s{sD}, s{sM}
        s_lshl_b32 s3, s{sC}, 6
        s_add_u32 s3, s3, s{sXo}
        {th}
        buffer_load_dwordx4 v{vXs}, s[{sRA}:{sRA+3}], s3 offen lds
        s_add_u32 m0, m0, 1024
        s_add_u32 s3, s3, 1179648
        {th}
        buffer_load_dwordx4 v{vXs}, s[{sRA}:{sRA+3}], s3 offen lds
        s_and_b32 s3, s{sD}, s{sDa}
        s_add_u32 m0, s3, s{sDb}
        s_mul_i32 s3, s{sC}, 1152
        {th}
        buffer_load_dwordx4 v{vDs}, s[{sRB}:{sRB+3}], s3 offen lds
        s_add_u32 m0, m0, 448
        {th or "s_nop 0"}
        buffer_load_dwordx4 v{vDs}, s[{sRB}:{sRB+3}], s3 offen offset:576 lds
        s_add_u32 s{sB}, s{sB}, 3""")
    a.label("f_lL")
    lround()
    NR0 = 3 if not TD else max(1, TD // 4)
    a(f"s_cmp_lt_u32 s{sB}, {3*NR0}\ns_cbranch_scc1 f_lL")
    stamp(a, 5, "P")
    a(f"s_load_dwordx2 s[{sNon}:{sNon+1}], s[52:53], {EP}")
    srd(a, sWS, 52, WS_SIZE); srd(a, sRD, 28, 576*1152)
    for i in range(3):
        a(f"s_mul_i32 s{sC}, s{sG_}, 3\ns_add_u32 s{sC}, s{sC}, {i}")
        dense_pos(a, sC, t1, t0, t2)
        a(f"""v_and_b32 v{t2}, 3, v{t1}
        v_bfe_u32 v{t3}, v{t1}, 2, 2
        v_and_b32 v{t1}, 48, v{t1}
        v_lshl_add_u32 v{t1}, v{t2}, 2, v{t1}
        v_add_u32 v{t1}, v{t1}, v{t3}
        s_movk_i32 s3, 1152
        v_mad_u32_u24 v{vW+i}, v{t1}, s3, v{t0}""")
    sM2 = 77
    a(f"""s_lshl_b32 s3, s{sG_}, 2
    s_add_u32 s3, s3, {F_LD}
    v_mov_b32 v{vF}, s3
    v_mov_b32 v6, 1
    v_mov_b32 v5, {F_DUTY}
    s_mul_i32 s{sE}, s{sJ}, 144
    s_mul_i32 s{sF}, s{sG_}, 3072
    s_and_b32 s{sA}, s{sJ}, 1
    s_xor_b32 s{sA}, s{sA}, 1
    s_mul_i32 s{sM2}, s{sA}, 36864
    s_lshl_b32 s3, s{sG_}, 10
    s_add_u32 s{sM2}, s{sM2}, s3
    s_lshl_b32 s{sA}, s{sA}, 5
    s_add_u32 s{sA}, s{sA}, s{sT1}
    s_mul_i32 s{sXp}, s{sA}, 1152
    s_mul_i32 s3, s{sG_}, 1179648
    s_add_u32 s{sXp}, s{sXp}, s3""")
    a(f"s_cmp_lg_u32 s{sWave}, 3\ns_cbranch_scc1 f_lM")
    srd(a, sRC, 36, 1152)
    for i in range(2):
        a(f"""s_lshl_b32 s3, s{sRot}, 7
        s_add_u32 s3, s3, {1024*i}
        v_lshlrev_b32 v{t1}, 4, v{vL}
        v_add_u32 v{t1}, s3, v{t1}
        v_subrev_u32 v{t2}, 1152, v{t1}
        v_min_u32 v{t1}, v{t1}, v{t2}
        s_mov_b32 m0, {LGATE + 1024*i}
        s_nop 0""")
        a(f"buffer_load_dwordx4 v{t1}, s[{sRC}:{sRC+3}], 0 offen lds")
    a.label("f_lM")
    if not TD:
        a(f"s_waitcnt vmcnt(8)\nds_write_b32 v{vF}, v6\nv_add_u32 v6, 1, v6")
        lround()
    else:
        lround(f"s_waitcnt vmcnt({TD-1})")
        a(f"s_waitcnt vmcnt({4*NR0})\nds_write_b32 v{vF}, v6\nv_add_u32 v6, 1, v6")
    a(f"s_cmp_lt_u32 s{sB}, 18\ns_cbranch_scc1 f_lM")
    for r in range(6 - NR0, 6): a.vm_note(f"d{r}", 4)
    stamp(a, 2, "P")
    def ldflag(tag, val):
        a(f"v_mov_b32 v{t1}, {val}")
        if tag in a.vm: a.vm_wait(tag)
        a(f"ds_write_b32 v{vF}, v{t1}")
        if val in (4, 5, 6, 7): stamp(a, val - 2, "D")
    def thr():
        if TW and len(a.vm) >= TW:
            a(f"s_waitcnt vmcnt({TW-1})"); a.vm = a.vm[len(a.vm) - (TW-1):]
            done = [t for t in pend if t not in a.vm]
            if done:
                ldflag(done[-1], val_of(done[-1]))
                for t in done: pend.remove(t)
    pend = []
    val_of = lambda t: int(t[1:]) + (1 if t[0] == "d" else QF)
    def chunk(c, withx):
        base = LW + 9216*c if c < 5 else LD + 9216*(c-5)
        a(f"""s_add_u32 s{sC}, s{sRot}, {c}
        s_cmp_ge_u32 s{sC}, 9
        s_cselect_b32 s3, 9, 0
        s_sub_u32 s{sC}, s{sC}, s3""")
        if withx and "nox" not in EXP:
            a(f"s_add_u32 m0, s{sM2}, {4096*c}\ns_lshl_b32 s3, s{sC}, 7\ns_add_u32 s3, s3, s{sXp}")
            thr()
            a.vmem(f"buffer_load_dwordx4 v{vXs}, s[{sRA}:{sRA+3}], s3 offen lds", f"c{c}")
            a("s_add_u32 m0, m0, 1984\ns_nop 0")
            thr()
            a.vmem(f"buffer_load_dwordx4 v{vXs}, s[{sRA}:{sRA+3}], s3 offen offset:64 lds", f"c{c}")
        a(f"s_add_u32 m0, s{sF}, {base}\ns_mul_i32 s3, s{sC}, 73728\ns_add_u32 s3, s3, s{sE}")
        for i in range(3):
            if i: a("s_add_u32 m0, m0, 1024\ns_nop 0")
            thr()
            a.vmem(f"buffer_load_dwordx4 v{vW+i}, s[{sRD}:{sRD+3}], s3 offen lds", f"c{c}")
    def chunks(withx, lab):
        if TW:
            pend[:] = [f"d{r}" for r in range(6 - NR0, 6)]
            for c in range(9):
                if c == 5: lds_wait(a, lab, 5, t1, 1)
                chunk(c, withx)
                pend.append(f"c{c}")
            stamp(a, 3, "P")
            for t in list(pend): ldflag(t, val_of(t))
            stamp(a, 4, "P")
            return
        if "d3" in a.vm: ldflag("d3", 4)
        if "pz" in EXP:
            ldflag("d4", 5); ldflag("d5", 6)
            lds_wait(a, lab + "z", 5, t1, THR("pz", 2) if False else (1 if "pz1" in EXP else 2), sleep=1)
        chunk(0, withx)
        if "pz" not in EXP: ldflag("d4", 5); ldflag("d5", 6)
        chunk(1, withx)
        D = 1 if "shallow" in EXP else 2
        if D == 1: ldflag("c0", QF)
        for c in range(2, 9):
            if c == 5 and not THR("pc", 0): lds_wait(a, lab, 5, t1, 1)
            if c == THR("pc", 0): lds_wait(a, lab, 5, t1, 2, sleep=1)
            chunk(c, withx)
            if c >= D: ldflag(f"c{c-D}", QF + c - D)
        stamp(a, 3, "P")
        for c in range(9 - D, 9): ldflag(f"c{c}", QF + c)
        stamp(a, 4, "P")
        if "only" in EXP:
            G0.stamp_end(a, 0, sWS, sWave); a("s_endpgm")
    vml = list(a.vm)
    a(f"s_cmp_eq_u32 s{sWave}, 3\ns_cbranch_scc1 f_l3")
    chunks(True, "f_l1w")
    a("s_branch f_l4")
    a.label("f_l3")
    a.vm = list(vml)
    chunks(False, "f_l3w")
    FR = 32
    a.label("f_l4")
    a(f"v_lshlrev_b32 v{hL16}, 4, v{vL}\ns_lshl_b32 s3, s{sWave}, 2\ns_add_u32 s3, s3, {F_KV}\nv_mov_b32 v{hMk}, s3")
    one, val = 6, 7
    def kv_first(lab):
        a.vm = []
        a(f"""v_and_b32 v{t1}, 15, v{vL}
        v_min_u32 v{t1}, 8, v{t1}
        v_lshlrev_b32 v{t1}, 2, v{t1}
        v_add_u32 v{t1}, {F_PRG}, v{t1}
        s_mul_i32 s{sA}, s{sT1}, {2*TILE}
        s_lshl_b32 s{sB}, s{sWave}, 12
        s_add_u32 m0, s{sB}, {LW}
        s_add_u32 s{sA}, s{sA}, s{sB}
        s_add_u32 s{sA}, s{sA}, {KVG}
        v_mov_b32 v{one}, 1
        v_mov_b32 v{vF}, {F_S1}""")
        stamp(a, 1, "K")
        lds_wait(a, lab, t1, t2, 1, sleep=THR("sk", 0))
        stamp(a, 2, "K")
        for k in range(4): a(f"buffer_load_dwordx4 v{hL16}, s[{sWS}:{sWS+3}], s{sA} offen offset:{1024*k} {'' if 'k0plain' in EXP else 'sc1'} lds")
    kv_first("f_kv2")
    nonce()
    if "su0" not in EXP: helper_setup(a, t0, t1, t2, t3)
    a(f"s_waitcnt vmcnt(0)\nds_write_b32 v{hMk}, v{one}")
    if "su0" in EXP: helper_setup(a, t0, t1, t2, t3)
    a("s_branch f_h1")

    a.label("f_duty")
    a.vm = []
    vR0, vR1, vD0, vD1 = 2, 3, 6, 7
    ACC, R = 16, 80
    sRb, sGrp = 70, 76
    a(f"""v_lshlrev_b32 v{t0}, 2, v{vL}
    v_add_u32 v{t0}, {FLG}, v{t0}
    s_cmp_ge_u32 s{sJ}, 4
    s_cselect_b32 s6, {1 << ((F_DUTY - FLG)//4)}, 0
    s_mov_b32 s7, 0
    v_cndmask_b32 v{t1}, 0, 2, s[6:7]
    ds_write_b32 v{t0}, v{t1}""")
    xread(a, vR0, vR1, t2, t3)
    common_srd()
    a("s_barrier")
    a(f"""s_and_b32 s{sA}, s{sJ}, 1
    s_lshl_b32 s{sRb}, s{sA}, 5
    s_add_u32 s{sRb}, s{sRb}, s{sT1}
    s_mul_i32 s{sA}, s{sA}, 36864
    v_add_u32 v{vR0}, s{sA}, v{vR0}
    v_xor_b32 v{vR1}, 32, v{vR0}
    v_and_b32 v{vF}, 3, v{vL}
    v_min_u32 v{vF}, 2, v{vF}
    v_lshlrev_b32 v{vF}, 2, v{vF}
    v_add_u32 v{vF}, {F_LD}, v{vF}
    s_cmp_ge_u32 s{sJ}, 4
    s_cbranch_scc1 f_cF
    v_and_b32 v{t2}, 3, v{vL}
    v_and_b32 v{t0}, 1, v{vL}
    v_bfe_u32 v{t3}, v{vL}, 1, 1
    v_lshl_or_b32 v{t0}, v{t0}, 1, v{t3}
    v_bfe_u32 v{t3}, v{vL}, 4, 1
    v_cmp_eq_u32 vcc, 0, v{t3}
    v_bfe_u32 v{vD0}, v{vL}, 2, 2
    v_lshrrev_b32 v{vD1}, 5, v{vL}
    v_cndmask_b32 v{t0}, v{t2}, v{t0}, vcc
    v_lshl_add_u32 v{vD0}, v{vD1}, 3, v{vD0}
    v_lshlrev_b32 v{vD0}, 6, v{vD0}
    v_lshl_add_u32 v{vD0}, v{t3}, 5, v{vD0}
    v_lshl_add_u32 v{vD0}, v{t0}, 3, v{vD0}
    v_add_u32 v{vD0}, {LD}, v{vD0}
    s_cmp_ge_u32 s{sJ}, 2
    s_cbranch_scc1 f_cV""")
    def duty_chain(kind, ACC=ACC, vR0=vR0, vR1=vR1, vD0=vD0):
        lg = []
        def rd(txt, tag): a(txt); lg.append(tag)
        def wait(tag):
            i = max(k for k, t in enumerate(lg) if t == tag)
            a(f"s_waitcnt lgkmcnt({len(lg) - 1 - i})"); del lg[:i + 1]
        def reads(s):
            b = FR + 16*(s % 3)
            for p in range(2):
                rd(f"ds_read_b128 v[{b+8*p}:{b+8*p+3}], v{vR1 if p else vR0} offset:{2048*s}", (s, p))
                if kind == "F": rd(f"ds_read_b128 v[{b+8*p+4}:{b+8*p+7}], v{vD1 if p else vD0} offset:{2048*s}", (s, p))
                elif kind == "G": rd(f"ds_read_b128 v[{b+8*p+4}:{b+8*p+7}], v{vD0} offset:{64*s+32*p}", (s, p))
                else:
                    rd(f"ds_read_b64_tr_b16 v[{b+8*p+4}:{b+8*p+5}], v{vD0} offset:{2048*s+1024*p}", (s, p))
                    rd(f"ds_read_b64_tr_b16 v[{b+8*p+6}:{b+8*p+7}], v{vD0} offset:{2048*s+1024*p+256}", (s, p))
        if kind != "G":
            ST = {0: [1, 2, 3, 4, 5, 6], 2: [3, 3, 3, 6, 6, 6], 3: [2, 2, 4, 4, 6, 6], 1: [6]*6}[THR("ds", 3)]
            lds_wait(a, f"f_d{kind}0", vF, t0, ST[0], sleep=THR("sd", 0))
            stamp(a, 1, "P"); stamp(a, 1, "D")
        reads(0)
        if kind != "G" and ST[1] > ST[0]: rd(f"ds_read_b32 v{t0}, v{vF}", "f")
        reads(1)
        for s in range(18):
            if kind != "G" and s % 3 == 1 and s < 15 and ST[s//3 + 1] > ST[s//3]:
                if "f" in lg: wait("f")
                a(f"v_cmp_gt_i32 vcc, {ST[s//3 + 1]}, v{t0}\ns_cbranch_vccz f_d{kind}{s}_ok")
                lds_wait(a, f"f_d{kind}{s}", vF, t0, ST[s//3 + 1])
                a.label(f"f_d{kind}{s}_ok")
                if s//3 in (0, 2, 3, 4): stamp(a, {0: 2, 2: 3, 3: 4, 4: 5}[s//3], "D")
            b = FR + 16*(s % 3)
            for p in range(2):
                if (s, p) in lg: wait((s, p))
                if p == 1:
                    if kind != "G" and s % 3 == 0 and 0 < s < 15 and ST[s//3 + 1] > ST[s//3]: rd(f"ds_read_b32 v{t0}, v{vF}", "f")
                    if s + 2 < 18: reads(s + 2)
                    assert len(lg) <= 15
                X, D = b + 8*p, b + 8*p + 4
                A, B = (D, X) if kind in "KG" else (X, D)
                a(f"v_mfma_f32_32x32x16_bf16 v[{ACC}:{ACC+15}], v[{A}:{A+3}], v[{B}:{B+3}], " + ("0" if s + p == 0 else f"v[{ACC}:{ACC+15}]"))
        if kind != "G":
            a(f"v_mov_b32 v{t0}, {F_DUTY}\nv_mov_b32 v{t1}, 1\nds_write_b32 v{t0}, v{t1}")
            nonce()
            stamp(a, 2); stamp(a, 2, "P"); stamp(a, 6, "D")
    def kv_off():
        a(f"""s_and_b32 s{sA}, s{sJ}, 1
        s_lshl_b32 s{sB}, s{sT1}, 1
        s_add_u32 s{sA}, s{sA}, s{sB}
        s_mul_i32 s{sF}, s{sA}, {TILE}
        s_add_u32 s{sF}, s{sF}, {KVG}
        s_add_u32 s{sE}, s{sF}, {64*TILE}""")
    kv_off()
    a(f"v_lshlrev_b32 v14, 4, v{vL}\nv_lshlrev_b32 v15, 2, v{vL}")
    duty_chain("K")
    a("s_nop 7")
    for k in range(5): a(f"v_cvt_pk_bf16_f32 v{FR+k}, v{ACC+2*k}, v{ACC+2*k+1}")
    for s in (sF, sE): a(f"buffer_store_dwordx4 v[{FR}:{FR+3}], v14, s[{sWS}:{sWS+3}], s{s} offen sc1")
    a("s_mov_b32 exec_hi, 0")
    for s in (sF, sE): a(f"buffer_store_dword v{FR+4}, v15, s[{sWS}:{sWS+3}], s{s} offen offset:1024 sc1")
    a("s_mov_b32 exec_hi, -1\ns_branch f_dP")
    a.label("f_cV")
    kv_off()
    a(f"""v_and_b32 v{t0}, 51, v{vL}
    v_bfe_u32 v{t1}, v{vL}, 2, 1
    v_lshl_add_u32 v{t0}, v{t1}, 3, v{t0}
    v_bfe_u32 v{t1}, v{vL}, 3, 1
    v_lshl_add_u32 v{t0}, v{t1}, 2, v{t0}""")
    xread(a, vR0, None, t2, t3, t0)
    a(f"s_and_b32 s3, s{sJ}, 1\ns_mul_i32 s3, s3, 36864\nv_add_u32 v{vR0}, s3, v{vR0}\nv_xor_b32 v{vR1}, 32, v{vR0}")
    a(f"""v_and_b32 v{t0}, 31, v{vL}
    v_lshrrev_b32 v{t2}, 5, v{vL}
    v_mul_u32_u24 v14, 19, v{t2}
    v_add_u32 v14, v14, v{t0}
    v_add_u32 v{t2}, 38, v{t2}
    v_cmp_eq_u32 vcc, 19, v{t0}
    v_mov_b32 v{t3}, 0x3f803f80
    s_nop 0
    v_cndmask_b32 v14, v14, v{t2}, vcc
    v_cmp_eq_u32 vcc, 19, v{vL}
    s_nop 1
    v_cndmask_b32 v80, v{t3}, 0, vcc
    v_lshlrev_b32 v14, 4, v14""")
    for k in range(1, 8): a(f"v_mov_b32 v{80+k}, v80")
    duty_chain("V")
    a("s_mov_b32 exec_lo, 0x3ffff\ns_mov_b32 exec_hi, 0x3ffff\ns_nop 5")
    for k in range(8): a(f"v_cvt_pk_bf16_f32 v{80+k}, v{ACC+2*k}, v{ACC+2*k+1}")
    a("s_mov_b32 exec_lo, 0xfffff\ns_mov_b32 exec_hi, 0xfffff")
    for s in (sF, sE):
        for u in range(2): a(f"buffer_store_dwordx4 v[{80+4*u}:{83+4*u}], v14, s[{sWS}:{sWS+3}], s{s} offen offset:{1152+VB*u} sc1")
    a("s_mov_b64 exec, -1")
    a.label("f_dP")
    stamp(a, 3, "P")
    a("s_waitcnt vmcnt(0)")
    tag_signal(a, FL1, 8, t0, t2, True)
    if "fl0" in EXP:
        a(f"s_add_u32 s{sG}, s{sG}, {(FL0 - FL1) & 0xffffffff}\ns_mov_b64 exec, 255\nbuffer_store_dwordx2 v[{t2}:{t2+1}], v{t0}, s[{sWS}:{sWS+3}], s{sG} offen sc1\ns_mov_b64 exec, -1")
    if THR("pc", 0) or "pz" in EXP: a(f"v_mov_b32 v{t0}, {F_DUTY}\nv_mov_b32 v{t1}, 2\nds_write_b32 v{t0}, v{t1}")
    stamp(a, 3); stamp(a, 4, "P")
    a("s_branch f_dS")
    a.label("f_cF")
    a(f"s_bfe_u32 s{sGrp}, s{sJ}, 0x10001\ns_add_u32 s{sGrp}, s{sGrp}, 16\ns_waitcnt lgkmcnt(0)")
    nonce()
    a(f"s_mov_b32 s{J_sG}, s{sGrp}\nv_mov_b32 v{J_vX}, v{vR0}\nv_mov_b32 v{J_vF}, v{vF}\ns_setprio {THR('wp', 2)}")
    fnet_job(a, "f_k")
    fnet_job2(a, [48, 52, 56, 60])
    a("s_setprio 3")
    a.label("f_dS")
    helper_setup(a, t0, t1, t2, t3)
    a(f"""v_bfe_u32 v{t1}, v{vL}, 2, 2
    v_add_u32 v{t1}, s{sT1}, v{t1}
    v_and_b32 v{t1}, 31, v{t1}
    v_lshlrev_b32 v{t1}, 7, v{t1}
    v_and_b32 v{t2}, 3, v{vL}
    v_lshl_add_u32 v{t1}, v{t2}, 3, v{t1}
    s_and_b32 s{sD}, s{sT1}, 7
    s_lshl_b32 s{sD}, s{sD}, 12
    s_add_u32 s{sD}, s{sD}, {FL1}""")
    tag_wait(a, "f_m2", t1, sD, 1, FR, sleep=THR("p1s", 1), lanes=16 if 'noat' not in EXP else 0)
    vKM = 40
    a(f"""v_mov_b32 v{t1}, {F_S1F}
    v_mov_b32 v{t2}, 1
    ds_write_b32 v{t1}, v{t2}
    v_lshrrev_b32 v14, 2, v{vL}
    v_lshlrev_b32 v14, 7, v14
    v_and_b32 v{t2}, 3, v{vL}
    v_lshl_add_u32 v14, v{t2}, 3, v14
""")
    if "fl0" in EXP: a(f"s_add_u32 s{sD}, s{sD}, {(FL0 - FL1) & 0xffffffff}")
    def look():
        a(f"""buffer_load_dwordx2 v[{FR}:{FR+1}], v14, s[{sWS}:{sWS+3}], s{sD} offen sc1
        buffer_load_dwordx2 v[{FR+2}:{FR+3}], v14, s[{sWS}:{sWS+3}], s{sD} offen offset:2048 sc1""")
    if "fl0" in EXP: look()
    stamp(a, 5, "P")
    kv_first("f_kv1")
    a(f"s_waitcnt vmcnt(0)\nds_write_b32 v{hMk}, v{one}")
    tag_wait(a, "f_m3", 14, sD, 2, FR, step=2048)
    a.label("f_m4")
    a(f"ds_write_b32 v{vF}, v{one}")
    a.label("f_h1")
    stamp(a, 6, "P"); stamp(a, 4); stamp(a, 3, "K")
    lds_wait(a, "f_h2", vF, t1, 1, sleep=1)
    lds_wait(a, "f_h2a", hPr, t1, 3 if "c1l" in EXP else 2, sleep=1)
    stamp(a, 1, "H"); stamp(a, 4, "K")
    due = {}
    def grp(src, dst, tag, TK=THR("tk", 3)):
        a(f"s_add_u32 m0, s{sB}, {dst}\ns_add_u32 s3, s{sA}, {src}")
        for k in range(4):
            if len(a.vm) >= TK:
                a(f"s_waitcnt vmcnt({TK-1})"); a.vm = a.vm[len(a.vm) - (TK-1):]
                for t in [t for t in due if t not in a.vm]: a(f"v_mov_b32 v{val}, {due.pop(t)}\nds_write_b32 v{hMk}, v{val}")
            a.vmem(f"buffer_load_dwordx4 v{hL16}, s[{sWS}:{sWS+3}], s3 offen offset:{1024*k} sc1 lds", tag)
    P2 = J1*TILE
    grp(16384, LW + 16384, "c1", THR("tc", 4)); due["c1"] = 2
    if "c1l" not in EXP: a(f"v_mov_b32 v{val}, {due.pop('c1')}\ns_waitcnt vmcnt(0)\nds_write_b32 v{hMk}, v{val}"); a.vm = []
    if "c1l" not in EXP: lds_wait(a, "f_h2b", hPr, t1, 3, sleep=1)
    grp(32768, LW + 32768, "c2"); grp(P2, 0, "p0"); due["p0"] = 3
    grp(P2 + 16384, 16384, "p1"); grp(P2 + 32768, 32768, "p2")
    assert not due
    due["p2"] = 4
    for i in (3, 4): grp(P2 + 16384*i, 16384*i, f"p{i}")
    sS2, sT = 71, 72
    a(f"""s_and_b32 s{sS2}, s{sJ}, 1
    s_lshl_b32 s{sS2}, s{sS2}, 5
    s_add_u32 s{sS2}, s{sS2}, s{sT1}
    s_mul_i32 s{sS2}, s{sS2}, {GP}
    s_add_u32 s{sS2}, s{sS2}, {GT}
    s_lshr_b32 s{sT}, s{sJ}, 1
    s_lshl_b32 s{sT}, s{sT}, 7
    s_sub_u32 s3, {GU + 448}, s{sT}
    s_cmp_lt_u32 s{sWave}, 2
    s_cselect_b32 s{sT}, s{sT}, s3
    s_add_u32 s{sT}, s{sT}, s{sS2}
    s_bitcmp1_b32 s{sWave}, 0
    s_cselect_b32 s3, {64*GP}, 0
    s_add_u32 s{sT}, s{sT}, s3""")
    if "nojob" not in EXP: lds_wait(a, "f_x3", hXc, t1, 1, sleep=2)
    for i in range(4): a(f"ds_read_b128 v[{32+4*i}:{35+4*i}], v{hGr} offset:{1024*i}")
    GOF = [48, 52, 56, 60]
    a(f"s_waitcnt lgkmcnt(0)\nds_write_b32 v{hMt}, v{one}")
    lds_wait(a, "f_x4", hTa, t1, 1, sleep=1)
    grp(P2 + 16384*5, 16384*5, "p5")
    a(f"s_cmp_ge_u32 s{sWave}, 3\ns_cbranch_scc1 f_h3")
    grp(P2 + 16384*6, 16384*6, "p6")
    a.label("f_h3")
    assert not due
    a(f"v_mov_b32 v{val}, 5\ns_waitcnt vmcnt(0)\nds_write_b32 v{hMk}, v{val}")
    a.vm = []
    stamp(a, 2, "H")
    for i in range(4):
        a(f"buffer_store_dwordx4 v[{32+4*i}:{35+4*i}], v{hGs}, s[{sWS}:{sWS+3}], s{sT} offen sc1")
        if i < 3: a(f"s_add_u32 s{sT}, s{sT}, {8*128*GP}")
    a(f"""s_cmp_lg_u32 s{sWave}, 0
    s_cbranch_scc1 f_h3b
    s_lshr_b32 s3, s{sJ}, 1
    s_cmp_lg_u32 s3, {THR("gj", 0)//2}
    s_cbranch_scc1 f_h3c
    v_lshlrev_b32 v{t3}, 2, v{vL}
    v_add_u32 v13, {F_G2}, v{t3}
    ds_read_b32 v13, v13
    s_lshl_b32 s{sF}, s{sRb}, 7
    s_add_u32 s{sF}, s{sF}, {GG}
    s_mov_b32 exec_hi, 0
    s_waitcnt lgkmcnt(0)
    buffer_store_dword v13, v{t3}, s[{sWS}:{sWS+3}], s{sF} offen sc1
    s_mov_b32 exec_hi, -1""")
    a.label("f_h3c")
    a(f"""v_and_b32 v{t1}, 31, v{vL}
    v_mul_u32_u24 v{t2}, {128*GP}, v{t1}
    s_cmp_ge_u32 s{sJ}, 4
    s_cbranch_scc1 f_h3a
    s_cmp_ge_u32 s{sJ}, 2
    s_cbranch_scc1 f_h3b
    v_lshlrev_b32 v{t1}, 2, v{t1}
    v_add_u32 v{t1}, {F_N}, v{t1}
    ds_read_b32 v{t1}, v{t1}
    s_add_u32 s3, s{sS2}, {64*GP}
    s_mov_b32 exec_hi, 0
    s_waitcnt lgkmcnt(0)
    buffer_store_short v{t1}, v{t2}, s[{sWS}:{sWS+3}], s{sS2} offen offset:{GU-2} sc1
    buffer_store_short_d16_hi v{t1}, v{t2}, s[{sWS}:{sWS+3}], s3 offen offset:{GU-2} sc1
    s_mov_b32 exec_hi, -1
    s_branch f_h3b""")
    a.label("f_h3a")
    a(f"""v_lshrrev_b32 v{t3}, 5, v{vL}
    v_lshlrev_b32 v{t3}, 4, v{t3}
    v_sub_u32 v{t1}, v{t2}, v{t3}
    v_add_u32 v{t2}, v{t2}, v{t3}
    v_add_u32 v{t1}, 16, v{t1}
    s_lshl_b32 s3, s{sGrp}, 5
    s_add_u32 s{sT}, s{sS2}, s3
    s_sub_u32 s{sT+1}, s{sS2}, s3
    s_add_u32 s{sT+1}, s{sT+1}, {GU + 560 - 16}""")
    for kind in range(4):
        if kind & 1: a(f"s_add_u32 s{sT + (kind >> 1)}, s{sT + (kind >> 1)}, {64*GP}")
        a(f"buffer_store_dwordx4 v[{GOF[kind]}:{GOF[kind]+3}], v{t1 if kind >> 1 else t2}, s[{sWS}:{sWS+3}], s{sT + (kind >> 1)} offen sc1")
    a.label("f_h3b")
    last_wave_signals(a, "f_h5", F_CNT2, 4, FL2, 8, t1, t2)
    stamp(a, 6)
    vG = 15
    ACC, W2, OB, AR = 16, 36, 52, 124
    sRb, sCol = 70, 71
    srd(a, sRA, 34, 576*1152); srd(a, sRB, 18, 2048*4096); srd(a, sRC, 20, 2048*4096); srd(a, sRD, 38, 2048*1152)
    a(f"""s_lshr_b32 s3, s2, 3
    s_lshl_b32 s3, s3, 2
    s_add_u32 s3, s3, s{sWave}
    s_mul_i32 s3, s3, {41*128}
    v_lshlrev_b32 v{t1}, 3, v{hL16}
    s_mov_b32 exec_hi, 0x1ff
    buffer_load_dword v14, v{t1}, s[{sRA}:{sRA+3}], s3 offen
    s_mov_b32 exec_hi, -1
    s_lshr_b32 s{sRb}, s{sWave}, 1
    s_lshl_b32 s{sRb}, s{sRb}, 5
    s_add_u32 s{sRb}, s{sRb}, s{sT1}
    s_mul_i32 s{sCol}, s{sJ}, 144
    s_lshl_b32 s{sC}, s{sWave}, 10
    s_lshl_b32 s{sA}, s{sRb}, 12""")
    for k in range(4):
        r = sRB if k < 2 else sRC
        a(f"buffer_load_dwordx4 v[{W2+4*k}:{W2+4*k+3}], v{hW2}, s[{r}:{r+3}], s{sA} offen offset:{64*(k&1)}")
    nds = [0]
    def dstep(dst, r, vS, sc=""):
        nds[0] += 1
        for i in range(3):
            if i == 2: a(f"s_cmp_lg_u32 s{sWave}, 0\ns_cbranch_scc1 f_ds{nds[0]}")
            a(f"s_add_u32 m0, s{sC}, {dst + 4096*i}\n" + (f"s_waitcnt vmcnt({THR('tt', 3) - 1})" if THR("tt", 3) else "s_nop 0"))
            a(f"buffer_load_dwordx4 v{vS+i}, s[{r}:{r+3}], s{sB} offen {sc} lds")
        a.label(f"f_ds{nds[0]}")
    def dsaddr(m): return LW + 9216*m if m < 5 else 9216*(m - 5)
    def wo_step(m):
        a(f"s_add_u32 s{sB}, s{sJ}, {m}\ns_and_b32 s{sB}, s{sB}, 7\ns_mul_i32 s{sB}, s{sB}, {72*1152}\ns_add_u32 s{sB}, s{sB}, s{sCol}")
        dstep(dsaddr(m), sRA, hSm)
    lds_wait(a, "f_t1", hPr, t1, 4, sleep=32)
    for m in range(5): wo_step(m)
    lds_wait(a, "f_t3", hPr, t1, 5, sleep=32)
    for m in range(5, 8): wo_step(m)
    a(f"""v_mov_b32 v{vF}, {F_S2}
    s_cmp_lg_u32 s{sWave}, 3
    s_cbranch_scc1 f_t6_x
    s_and_b32 s{sD}, s{sT1}, 7
    s_lshl_b32 s{sD}, s{sD}, 12
    s_add_u32 s{sD}, s{sD}, {FL2}""")
    tag_wait(a, "f_t6", hS2, sD, 4, OB, sleep=8)
    a(f"""v_and_b32 v{t1}, 31, v{vL}
    v_lshrrev_b32 v{t2}, 5, v{vL}
    v_lshlrev_b32 v{t1}, 2, v{t1}
    v_lshl_add_u32 v{t1}, v{t2}, 12, v{t1}
    s_lshl_b32 s3, s{sT1}, 7
    s_add_u32 s3, s3, {GG}
    buffer_load_dword v{t2}, v{t1}, s[{sWS}:{sWS+3}], s3 offen sc1
    v_lshrrev_b32 v{t1}, 2, v{hL16}
    v_add_u32 v{t1}, {F_G}, v{t1}
    s_waitcnt vmcnt(0)
    ds_write_b32 v{t1}, v{t2}
    ds_write_b32 v{vF}, v{one}
    s_cmp_lg_u32 s2, 0
    s_cbranch_scc1 f_t6_x
    v_mov_b32 v{t1}, {EP}
    v_mov_b32 v{t2}, s{sNon}
    v_mov_b32 v{t3}, s{sNon+1}
    s_mov_b64 exec, 1
    buffer_store_dwordx2 v[{t2}:{t3}], v{t1}, s[{sWS}:{sWS+3}], 0 offen
    s_mov_b64 exec, -1""")
    a.label("f_t6_x")
    stamp(a, 5, "H")
    lds_wait(a, "f_t7", hPr, t1, 6, sleep=THR("s7", 8))
    a(f"s_mov_b32 s{sB}, s{sCol}")
    dstep(dsaddr(8), sRA, hSx)
    a(f"""s_mul_i32 s{sB}, s{sT1}, {128*GP}
    s_add_u32 s{sB}, s{sB}, {GT}
    s_add_u32 s{sB}, s{sB}, s{sCol}
    s_cmp_ge_u32 s{sJ}, 4
    s_cselect_b32 s3, {GU - 2 - 576}, 0
    s_add_u32 s{sB}, s{sB}, s3""")
    lds_wait(a, "f_t8", vF, t1, 1, sleep=4)
    a(f"ds_read_b32 v{vG}, v{hGa}")
    dstep(dsaddr(9), sWS, hSg, "sc1")
    a(f"s_add_u32 s{sB}, s{sB}, {64*GP}")
    dstep(dsaddr(10), sWS, hSg, "sc1")
    a(f"""v_mov_b32 v{val}, 2
    v_mov_b32 v{vF}, {F_CNT3}
    s_lshl_b32 s{sD}, s{sWave}, 12
    s_lshl_b32 s3, s{sT1}, 7
    s_add_u32 s{sD}, s{sD}, s3
    s_add_u32 s{sD}, s{sD}, {FL3}
    s_lshl_b32 s{sA}, s{sT1}, 2
    s_add_u32 s{sA}, s{sA}, s{sWave}
    s_lshl_b32 s{sB}, s{sA}, 11
    s_and_b32 s{sB}, s{sB}, {0xfffff000}
    s_and_b32 s3, s{sWave}, 1
    s_mul_i32 s{sE}, s3, {16*73728}
    s_lshl_b32 s3, s3, 6
    s_add_u32 s{sB}, s{sB}, s3
    s_add_u32 s{sB}, s{sB}, {OX}
    s_lshl_b32 s{sA}, s{sA}, 14
    s_add_u32 s{sA}, s{sA}, {OF}
    s_mul_i32 s3, s{sRb}, 1152
    s_add_u32 s{sE}, s{sE}, s3
    s_add_u32 s{sE}, s{sE}, s{sCol}
    s_waitcnt vmcnt(0)
    ds_write_b32 v{hMt}, v{val}""")
    lds_wait(a, "f_t9", hTa, t1, 2, sleep=4)
    stamp(a, 6, "H")
    NR = 7
    def rd(f):
        ks, mu = divmod(f, 5)
        m = 9 + (ks >> 1) if ks < 4 else (ks - 4) >> 1
        v, o = (hTw, 9216*m) if m < 5 else (hTr, 9216*(m - 5))
        o += 4608*(ks & 1) + 32*mu
        r = AR + 4 * (f % 8)
        a(f"ds_read_b64_tr_b16 v[{r}:{r+1}], v{v} offset:{o}")
        a(f"ds_read_b64_tr_b16 v[{r+2}:{r+3}], v{v} offset:{o+144}")
    lds_wait(a, "f_t12", vF, t1, 4, sleep=THR("cs", 4))
    if "pe" in EXP: a(f"v_mov_b32 v12, 0\nv_mov_b32 v13, 0\ns_mov_b64 exec, 0xff\nbuffer_atomic_or_x2 v[12:13], v{hTg}, s[{sWS}:{sWS+3}], s{sD} offen sc0 sc1\ns_mov_b64 exec, -1")
    def s3():
        stamp12(a, 1); stamp(a, 1, "T")
        tag_wait(a, "f_t10", hTg, sD, 1, 12, sleep=THR("ps", 1), lanes=8, sent="pe" in EXP)
        stamp12(a, 2); stamp(a, 2, "T")
        for k in range(18):
            if k >= 16:
                for j in range(4): a.vmem(f"buffer_load_dword v{OB+4*k+j}, v{hOx}, s[{sWS}:{sWS+3}], s{sB} offen offset:{2048*(k-16) + 128*j} sc1", f"o{k}")
                continue
            if k & 1 == 0: a(f"s_add_u32 s3, s{sJ}, {k//2}\ns_and_b32 s3, s3, 7\ns_lshl_b32 s3, s3, 11\ns_add_u32 s3, s3, s{sA}")
            a.vmem(f"buffer_load_dwordx4 v[{OB+4*k}:{OB+4*k+3}], v{hL16}, s[{sWS}:{sWS+3}], s3 offen offset:{(k&1)*1024} sc1", f"o{k}")
    for f in range(NR): rd(f)
    if "fa" in EXP: s3()
    for f in range(110):
        ks, mu = divmod(f, 5)
        if f == 20:
            a("s_nop 3")
            for r in range(20): a(f"v_mul_f32 v{ACC+r}, v{ACC+r}, v{vG}")
            if "fa" not in EXP: s3()
        if ks >= 4 and mu == 0: a.vm_wait(f"o{ks-4}")
        if ks == 4 and mu == 0: stamp(a, 3, "T")
        if ks == 21 and mu == 0: stamp(a, 4, "T")
        if f & 1 == 0: a(f"s_waitcnt lgkmcnt({2*(min(110, f + NR) - f - 2)})")
        r = AR + 4 * (f % 8)
        B = W2 + 4*ks if ks < 4 else OB + 4*(ks-4)
        ac = ACC + 4*mu
        a(f"v_mfma_f32_16x16x32_bf16 v[{ac}:{ac+3}], v[{r}:{r+3}], v[{B}:{B+3}], " + ("0" if ks == 0 else f"v[{ac}:{ac+3}]"))
        if f + NR < 110: rd(f + NR)
    stamp12(a, 3); stamp(a, 5, "T")
    a("s_nop 3")
    for mu in range(5):
        ac = ACC + 4*mu
        if mu == 4: a("s_mov_b32 exec_hi, 0")
        a(f"v_cvt_pk_bf16_f32 v{W2+2*mu}, v{ac}, v{ac+1}\nv_cvt_pk_bf16_f32 v{W2+2*mu+1}, v{ac+2}, v{ac+3}")
        a(f"ds_write_b64 v{hOw}, v[{W2+2*mu}:{W2+2*mu+1}] offset:{32*mu}")
    a("s_mov_b32 exec_hi, -1")
    for it in range(3): a(f"ds_read_b128 v[{OB+4*it}:{OB+4*it+3}], v{hOr} offset:{1024*it}")
    for it in range(3):
        a(f"s_waitcnt lgkmcnt({2-it})")
        if it == 2: a("s_mov_b64 exec, 0xffff")
        a(f"buffer_store_dwordx4 v[{OB+4*it}:{OB+4*it+3}], v{hOo+it}, s[{sRD}:{sRD+3}], s{sE} offen")
    stamp(a, 6, "T")
    G0.stamp_end(a, 0, sWS, sWave)
    a("s_endpgm")

    a.label("f_att")
    a.vm = []
    Q1, Q2, vG, aK, ak, aV = [4, 112], [8, 110], [10, 14], 11, 12, 13
    vt0, vt1, vt2, vt3 = 2, 3, 14, 15
    O, S, K1, K2, V, PB = [136, 152], [32, 48, 64], [96, 100], [104, 106], [116, 80], [16, 20, 24, 28, 88, 92]
    def zero_o():
        for r in range(32): a(f"v_mov_b32 v{O[0]+r}, 0")
    aF, aP = 108, 109
    vW, vR0, vR1, vA0, vA1, vSt = 110, 111, 112, 113, 114, 115
    vOa, vOb, vN, vH = 128, 129, J_N, 131
    sW8, sKh, sHd, sHead, sGrp, sFb, sO = 70, 71, 72, 73, J_sG, 75, 76
    a("s_barrier")
    a(f"s_sub_u32 s{sW8}, s{sWave}, 4")
    a("s_getpc_b64 s[4:5]")
    a.label("f_pf")
    a(f"""s_sub_u32 s4, s4, f_pf-f_code
    s_subb_u32 s5, s5, 0
    s_lshr_b32 s3, s2, 3
    s_lshl_b32 s6, s{sW8}, 6
    s_add_u32 s3, s3, s6
    v_lshlrev_b32 v{vt0}, 5, v{vL}
    v_add_u32 v{vt0}, s3, v{vt0}
    v_lshlrev_b32 v{vt0}, 7, v{vt0}
    v_min_u32 v{vt0}, rf_end-f_code-4, v{vt0}
    s_mov_b64 exec, 3
    global_load_dword v{vN}, v{vt0}, s[4:5]
    s_mov_b64 exec, -1""")
    xread(a, vR0, vR1, vt0, vt1)
    a(f"""s_lshr_b32 s{sKh}, s{sW8}, 2
    s_and_b32 s{sHd}, s{sW8}, 3
    s_and_b32 s3, s{sJ}, 1
    s_mul_i32 s3, s3, 36864
    v_add_u32 v{vW}, s3, v{vR0}
    v_and_b32 v{aF}, 3, v{vL}
    v_min_u32 v{aF}, 2, v{aF}
    v_lshlrev_b32 v{aF}, 2, v{aF}
    v_add_u32 v{aF}, {F_LD}, v{aF}
    s_lshl_b32 s3, s{sW8}, 2
    s_add_u32 s3, s3, {F_PRG}
    v_mov_b32 v{aP}, s3
    v_and_b32 v{vt2}, 31, v{vL}
    v_lshrrev_b32 v{vt3}, 5, v{vL}
    v_lshlrev_b32 v{vOb}, 2, v{vt2}
    v_lshlrev_b32 v{vSt}, 4, v{vL}
    s_mul_i32 s6, s{sKh}, {TILE}
    s_add_u32 s6, s6, {LW}
    v_add_u32 v{aK}, s6, v{vSt}
    s_add_u32 s3, s6, 1024
    v_add_u32 v{ak}, s3, v{vOb}
    v_cmp_gt_u32 vcc, 19, v{vt2}
    v_mul_u32_u24 v{vt0}, 19, v{vt3}
    v_add_u32 v{aV}, v{vt2}, v{vt0}
    v_cndmask_b32 v{aV}, 38, v{aV}, vcc
    v_cmp_eq_u32 vcc, 22, v{vt2}
    {"s_mov_b32 s4, 0xf0080000" if "dup" in EXP else ""}
    {"s_mov_b32 s5, 0x0fb00000" if "dup" in EXP else ""}
    s_add_u32 s3, s6, 1152
    v_mad_u32_u24 v{vt1}, v{vt3}, 15, 4
    {"" if "one2" not in EXP else f"v_cndmask_b32 v{aV}, v{aV}, 39, vcc"}
    {f"v_cndmask_b32 v{aV}, v{aV}, v{vt1}, s[4:5]" if "dup" in EXP else ""}
    v_lshlrev_b32 v{aV}, 4, v{aV}
    v_add_u32 v{aV}, s3, v{aV}
    s_lshl_b32 s3, s{sHd}, 1
    s_add_u32 s3, s3, s{sKh}
    s_mul_i32 s3, s3, 1536
    s_add_u32 s3, s3, {QHA}
    v_add_u32 v{vH}, s3, v{vSt}
""")
    a(f"""s_lshl_b32 s{sHead}, s{sJ}, 2
    s_add_u32 s{sHead}, s{sHead}, s{sHd}
    s_lshl_b32 s{sB}, s{sT1}, 13
    s_lshl_b32 s3, s{sHead}, 7
    s_add_u32 s{sB}, s{sB}, s3
    s_add_u32 s{sO+1}, s{sB}, {OX}
    s_lshl_b32 s{sA}, s{sT1}, 16
    s_lshl_b32 s3, s{sHead}, 9
    s_add_u32 s{sA}, s{sA}, s3
    s_add_u32 s{sO}, s{sA}, {OF}
    s_add_u32 s{sO+2}, s{sO}, 32768
    s_add_u32 s{sO+3}, s{sO+1}, 4096
    v_lshrrev_b32 v{vt3}, 5, v{vL}
    v_and_b32 v{vOa}, 15, v{vL}
    v_lshlrev_b32 v{vOa}, 4, v{vOa}
    v_bfe_u32 v{vt1}, v{vL}, 4, 1
    v_lshl_add_u32 v{vOa}, v{vt1}, 14, v{vOa}
    v_lshl_add_u32 v{vOa}, v{vt3}, 8, v{vOa}""")
    common_srd()
    a(f"""s_mul_i32 s3, s{sKh}, 36864
    v_add_u32 v{vR0}, s3, v{vR0}
    v_xor_b32 v{vR1}, 32, v{vR0}
    s_bitcmp1_b32 s{sHd}, 0
    s_mov_b32 s{sB}, 0x34343120
    s_mov_b32 s{sC}, {LW}
    s_cmov_b32 s{sB}, 0x44423120
    s_cmov_b32 s{sC}, {LW-4}
    s_mul_i32 s3, s{sHd}, 36
    s_add_u32 s{sC}, s{sC}, s3
    v_bfe_u32 v{vt0}, v{vL}, 4, 1
    v_and_b32 v{vt1}, 3, v{vL}
    v_lshl_add_u32 v{vt0}, v{vt0}, 2, v{vt1}
    v_lshlrev_b32 v{vt0}, 2, v{vt0}
    v_lshrrev_b32 v{vt0}, v{vt0}, s{sB}
    v_and_b32 v{vt0}, 15, v{vt0}
    v_bfe_u32 v{vt1}, v{vL}, 2, 2
    v_lshl_add_u32 v{vt1}, v{vt1}, 1, v{vt3}
    v_mul_u32_u24 v{vt1}, 288, v{vt1}
    v_lshl_add_u32 v{vA0}, v{vt0}, 3, v{vt1}
    v_add_u32 v{vA0}, s{sC}, v{vA0}
    v_subrev_u32 v{vA1}, {LW-LD}, v{vA0}
    s_cmp_lg_u32 s{sKh}, 0
    s_cbranch_scc1 f_b0
    s_lshr_b32 s3, s{sJ}, 1
    s_lshl_b32 s3, s3, 2
    s_add_u32 s3, s3, s{sHd}
    s_cmp_lg_u32 s3, 2
    s_cbranch_scc1 f_a0
    v_xor_b32 v4, 32, v{vW}
    v_lshlrev_b32 v5, 4, v{vt3}
    v_add_u32 v5, {LGATE}, v5
    v_add_u32 v6, {F_G2}, v{vOb}""")
    lds_wait(a, "f_g1", aF, vt0, 6, sleep=1)
    duty_chain("G", 16, vW, 4, 5)
    a(f"""s_nop 11
    v_mul_f32 v4, {f2u(-math.log2(math.e))}, v16
    v_exp_f32 v4, v4
    s_nop 0
    v_add_f32 v4, 1.0, v4
    v_rcp_f32 v4, v4
    s_nop 0
    ds_write_b32 v6, v4
    s_branch f_a0""")
    a.label("f_b0")
    a(f"""s_lshr_b32 s{sGrp}, s{sJ}, 1
    s_lshl_b32 s{sGrp}, s{sGrp}, 2
    s_add_u32 s{sGrp}, s{sGrp}, s{sHd}
    s_setprio 1""")
    fnet_job(a)
    if "j2l" not in EXP and not THR("jm", 0): fnet_job2(a)
    if "bq0" in EXP: a("s_setprio 0")
    a.label("f_a0")
    stamp(a, 1, "P")
    QA, QR = 32, 64
    lg = []
    def qwait(tag):
        if tag in lg:
            i = max(k for k, t in enumerate(lg) if t == tag)
            a(f"s_waitcnt lgkmcnt({len(lg) - 1 - i})"); del lg[:i + 1]
    def qrd(ks):
        c, b = ks >> 2, QR + 8*(ks % 5)
        v, o = (vA0, 9216*c) if c < 5 else (vA1, 9216*(c-5))
        o += 2304*(ks & 3)
        a(f"ds_read_b64_tr_b16 v[{b}:{b+1}], v{v} offset:{o}")
        a(f"ds_read_b64_tr_b16 v[{b+2}:{b+3}], v{v} offset:{o + 144}")
        a(f"ds_read_b128 v[{b+4}:{b+7}], v{vR1 if ks & 1 else vR0} offset:{2048*(ks>>1)}")
        lg.extend([ks]*3)
        assert len(lg) <= 15
    lds_wait(a, "f_q0", aF, vt0, QF, sleep=THR("sq", 0))
    nonce()
    stamp(a, 2, "P"); stamp(a, 1)
    for ks in range(4): qrd(ks)
    for ks in range(36):
        c, b = ks >> 2, QR + 8*(ks % 5)
        qwait(ks)
        a(f"v_mfma_f32_32x32x16_bf16 v[{QA}:{QA+15}], v[{b}:{b+3}], v[{b+4}:{b+7}], " + ("0" if ks == 0 else f"v[{QA}:{QA+15}]"))
        if ks in (7, 19): a(f"v_mov_b32 v{vt1}, {1 if ks == 7 else 2}\nds_write_b32 v{aP}, v{vt1}"); lg.append("w")
        if ks == 7: stamp(a, 1, "K")
        if ks & 3 == 0 and c < 8:
            qwait("f")
            a(f"v_cmp_gt_i32 vcc, {QF + c + 1}, v{vt0}\ns_cbranch_vccz f_q{c+1}_ok")
            lds_wait(a, f"f_q{c+1}", aF, vt0, QF + c + 1, sleep=THR("sq", 0))
            a.label(f"f_q{c+1}_ok")
            if c == 4: stamp(a, 3, "P")
        if ks & 3 == 2 and c < 7: a(f"ds_read_b32 v{vt0}, v{aF}"); lg.append("f")
        if ks == THR("zo", 21): a(f"s_cmp_lg_u32 s{sKh}, 0\ns_cbranch_scc1 f_z0"); zero_o(); a.label("f_z0")
        if ks == 31: a(f"v_and_b32 v{vt2}, 28, v{vOb}\nv_add_u32 v{vt2}, {F_PRG}, v{vt2}\nds_read_b32 v{vt3}, v{vt2}"); lg.append("g")
        if ks + 4 < 36: qrd(ks + 4)
        if ks == THR("jm", 0) and ks:
            a(f"s_cmp_eq_u32 s{sKh}, 0\ns_cbranch_scc1 f_jm")
            fnet_job2(a, regs=(16, 48, 148))
            a.label("f_jm")
        if ks == THR("bp", 99): a("s_setprio 0")
    stamp(a, 4, "P")
    a(f"""s_mov_b32 s{sB}, {f2u(CQ)}
    s_lshl_b32 s3, s{sW8}, 2
    s_add_u32 s3, s3, {F_QH}
    v_mov_b32 v{vt0}, s3
    v_xor_b32 v{aF}, 16, v{vt0}
    v_mov_b32 v{vt1}, 1
    v_cmp_gt_i32 vcc, 2, v{vt3}
    s_cbranch_vccz f_q9_ok""")
    lds_wait(a, "f_q9", vt2, vt3, 2)
    a.label("f_q9_ok")
    T = 48
    a(f"s_nop 1\ns_bitcmp1_b32 s{sHd}, 0\ns_cbranch_scc1 f_qodd")
    def qmove(r0, rx):
        for r in range(8): a(f"v_mul_f32 v{T+r}, s{sB}, v{QA+r0+r}")
        for r in range(2): a(f"v_mul_f32 v{T+8+r}, s{sB}, v{QA+rx+r}")
    qmove(0, 8)
    a("s_branch f_qdone")
    a.label("f_qodd")
    qmove(2, 14)
    a.label("f_qdone")
    for k in range(4): a(f"v_cvt_pk_bf16_f32 v{Q1[0]+k}, v{T+2*k}, v{T+2*k+1}")
    a(f"""v_cvt_pk_bf16_f32 v{Q2[0]}, v{T+8}, v{T+9}
    v_mov_b32 v{Q2[0]+1}, 0
    ds_write_b128 v{vH}, v[{Q1[0]}:{Q1[0]+3}]
    v_cndmask_b32 v{Q2[0]}, v{Q2[0]}, 0, s[{sHi}:{sHi+1}]
    s_mov_b32 exec_hi, 0
    ds_write_b64 v{vH}, v[{Q2[0]}:{Q2[0]+1}] offset:1024
    s_mov_b32 exec_hi, -1
    ds_write_b32 v{vt0}, v{vt1}
    s_mul_i32 s3, s{sKh}, -3072
    s_add_u32 s3, s3, 1536
    v_add_u32 v{vH}, s3, v{vH}
    v_mov_b32 v{Q2[1]}, 0
    v_mov_b32 v{Q2[1]+1}, 0""")
    stamp(a, 5, "P")
    lds_wait(a, "f_b1", aF, vt3, 1, sleep=THR("sb", 0))
    a(f"""ds_read_b128 v[{Q1[1]}:{Q1[1]+3}], v{vH}
    s_mov_b32 exec_hi, 0
    ds_read_b64 v[{Q2[1]}:{Q2[1]+1}], v{vH} offset:1024
    s_mov_b32 exec_hi, -1
    v_mov_b32 v{vt1}, 3
    s_mul_i32 s3, s{sHd}, 6144
    s_add_u32 s3, s3, {OPA}
    v_lshlrev_b32 v{vH}, 4, v{vL}
    v_add_u32 v{vH}, s3, v{vH}
    s_waitcnt lgkmcnt(0)
    ds_write_b32 v{aP}, v{vt1}
    s_cmp_eq_u32 s{sKh}, 0
    s_cbranch_scc1 f_go
    s_setprio 3""")
    if "j2l" in EXP: fnet_job2(a)
    zero_o()
    GO = J_GO
    a(f"""v_lshrrev_b32 v{vt3}, 5, v{vL}
    s_lshl_b32 s3, s{sHd}, 1
    v_add_u32 v32, s3, v{vt3}
    v_xor_b32 v32, v32, v{vL}
    v_and_b32 v32, 7, v32
    v_lshlrev_b32 v32, 4, v32
    v_lshl_add_u32 v32, v{vOb}, 5, v32
    v_add_u32 v32, {GSC}, v32
    v_xor_b32 v33, 112, v32
    v_add_u32 v34, {F_N}, v{vOb}
    s_lshl_b32 s3, s{sHd}, 2
    s_add_u32 s6, s3, {F_XC}
    v_mov_b32 v35, s6""")
    lds_wait(a, "f_b2", vt2, vt3, 3, sleep=1)
    for kind in range(4): a(f"ds_write_b128 v{33 if kind >> 1 else 32}, v[{GO[kind]}:{GO[kind]+3}] offset:{4096*kind}")
    a(f"s_cmp_lg_u32 s{sHd}, 0\ns_cbranch_scc1 f_b3\ns_mov_b32 exec_hi, 0\nds_write_b32 v34, v{vN}\ns_mov_b32 exec_hi, -1")
    a.label("f_b3")
    a(f"v_mov_b32 v{vt1}, 1\nds_write_b32 v35, v{vt1}")
    a.label("f_go")
    a(f"""v_and_b32 v{aF}, 12, v{vOb}
    v_add_u32 v{aF}, {F_KV}, v{aF}
    s_lshl_b32 s3, s{sHd}, 8
    s_add_u32 s3, s3, {F_DUMP}
    v_add_u32 v{vt2}, s3, v{vOb}
    v_mov_b32 v{K2[0]+1}, 0xbf80
    v_mov_b32 v{K2[1]+1}, 0xbf80""")
    stamp(a, 6, "P"); stamp(a, 2, "K")
    lds_wait(a, "f_a6", aF, vt3, 1, sleep=THR("sb", 0))
    stamp(a, 3, "K"); stamp(a, 3)
    a(f"s_setprio {PRIO[0]}")
    if G0.STAMP and "C" in EXP: a("s_memtime s[84:85]")
    base = {aK: LW, ak: LW, aV: LW}
    def off(v, i, extra=0):
        o = ltile(2*i) + extra - base[v]
        if not 0 <= o < 65536:
            nb = ltile(2*i)
            a(f"v_add_u32 v{v}, {(nb - base[v]) & 0xffffffff}, v{v}")
            base[v] = nb; o = extra
        return o
    rdK = lambda i: f"ds_read_b128 v[{K1[i&1]}:{K1[i&1]+3}], v{aK} offset:{off(aK, i)}"
    rdk = lambda i: f"ds_read_b32 v{K2[i&1]}, v{ak} offset:{off(ak, i)}"
    rdV = lambda i, u: f"ds_read_b128 v[{V[i&1]+4*u}:{V[i&1]+4*u+3}], v{aV} offset:{off(aV, i, VB) - VB*(1-u)}"
    vIx = 3
    def M1(st): i, t = st >> 1, st & 1; return f"v_mfma_f32_32x32x16_bf16 v[{S[st%3]}:{S[st%3]+15}], v[{K1[i&1]}:{K1[i&1]+3}], v[{Q1[t]}:{Q1[t]+3}], 0"
    def M2(st): i, t = st >> 1, st & 1; return f"v_mfma_f32_32x32x8_bf16 v[{S[st%3]}:{S[st%3]+15}], v[{K2[i&1]}:{K2[i&1]+1}], v[{Q2[t]}:{Q2[t]+1}], v[{S[st%3]}:{S[st%3]+15}]"
    def M3(st, u): i, t = st >> 1, st & 1; return f"v_smfmac_f32_32x32x32_bf16 v[{O[t]}:{O[t]+15}], v[{V[i&1]+4*u}:{V[i&1]+4*u+3}], v[{S[st%3]+8*u}:{S[st%3]+8*u+7}], v{vIx}"
    a(rdK(0)); a(rdk(0))
    a(f"""s_lshl_b32 s3, s{sHd}, 2
    s_add_u32 s3, s3, {F_MH}
    v_mov_b32 v{vt0}, s3
    s_cmp_lg_u32 s{sKh}, 0
    s_cbranch_scc1 f_m0
    s_waitcnt lgkmcnt(0)""")
    for st in range(2): a(M1(st)); a(M2(st))
    a(f"v_mov_b32 v{vIx}, 1\ns_nop 8")
    for t in range(2):
        m, n = S[2] + 2*t, S[2] + 2*t + 1
        a(f"v_max3_f32 v{m}, v{S[t]}, v{S[t]+1}, v{S[t]+2}")
        for r in range(3, 15, 2): a(f"v_max3_f32 v{m}, v{S[t]+r}, v{S[t]+r+1}, v{m}")
        a(f"v_max_f32 v{m}, v{S[t]+15}, v{m}\nv_mov_b32 v{n}, v{m}")
    a("s_nop 0")
    for t in range(2):
        m, n = S[2] + 2*t, S[2] + 2*t + 1
        a(f"""v_permlane32_swap_b32 v{m}, v{n}
        v_max_f32 v{m}, v{m}, v{n}
        v_add_f32 v{m}, {f2u(OFFS)}, v{m}
        v_cvt_pk_bf16_f32 v{m}, v{m}, 0
        v_cndmask_b32 v{Q2[t]+1}, v{m}, 0, s[{sHi}:{sHi+1}]
        ds_write_b32 v{vt2}, v{m} offset:{128*t}""")
    a(f"ds_write_b32 v{vt0}, v{vIx}\ns_branch f_m1")
    a.label("f_m0")
    lds_wait(a, "f_m2w", vt0, vt3, 1, sleep=THR("sb", 0))
    a("s_mov_b32 exec_hi, 0")
    for t in range(2): a(f"ds_read_b32 v{Q2[t]+1}, v{vt2} offset:{128*(1-t)}")
    a("s_mov_b32 exec_hi, -1\ns_waitcnt lgkmcnt(0)")
    a.label("f_m1")
    stamp(a, 4, "K")
    a(f"v_mov_b32 v{vIx}, 0xdddd")
    a(M1(0)); a(M2(0))
    a("s_nop 8")
    if 0 in WIDE: a("s_nop 0")
    FCHK = {2: 2, 5: 3, 12: 4, 19: 5}
    PRG = {10: 4, 16: 5, 22: 6, 27: 7}
    for st in range(64):
        i, t = st >> 1, st & 1
        if t == 0:
            if i in PRIO and i: a(f"s_setprio {PRIO[i]}")
            if i == 16: stamp(a, 4)
            NS = {0: 1, 5: 2, 16: 3, 24: 4, 30: 5}
            if G0.STAMP and "N" in EXP and i in NS: a(f"s_memtime s[{82+2*NS[i]}:{83+2*NS[i]}]")
            if i in PRG: a(f"v_mov_b32 v{vt3}, {PRG[i]}\nds_write_b32 v{aP}, v{vt3}")
            if i in FCHK: lds_wait(a, f"f_w{i}", aF, vt0, FCHK[i], sleep=THR("sf", 0))
            if i == 25:
                a(f"s_cmp_eq_u32 s{sKh}, 0\ns_cbranch_scc1 f_e0\nv_mov_b32 v{aF}, {F_S2}")
                lds_wait(a, "f_e1", aF, vt0, 1)
                a(f"s_lshl_b32 s3, s{sHd}, 2\ns_add_u32 s3, s3, {F_OH}\nv_mov_b32 v{aF}, s3\nv_add_u32 v{vt3}, {F_G}, v{vOb}")
                for tt in range(2): a(f"ds_read_b32 v{vG[tt]}, v{vt3} offset:{128*(1-tt)}")
                a.label("f_e0")
            if i == 26:
                for tt in range(2): a(f"v_sub_f32 v{vG[tt]}, 1.0, v{vG[tt]}")
            if i == 31: a(f"ds_read_b32 v{vt0}, v{aF}")
        if st == 63:
            a(f"s_cmp_eq_u32 s{sKh}, 0\ns_cbranch_scc1 f_e5\nv_cmp_gt_i32 vcc, 1, v{vt0}\ns_cbranch_vccz f_e2_ok")
            lds_wait(a, "f_e2", aF, vt0, 1)
            a.label("f_e2_ok")
            for q in range(6): a(f"ds_read_b128 v[{PB[q]}:{PB[q]+3}], v{vH} offset:{1024*q}")
            a.label("f_e5")
        s = S[st % 3]
        e = lambda k: [f"v_exp_f32 v{s+q}, v{s+q}" for q in range(4*k, 4*k + 4)]
        lk = [rdK(i+1), rdk(i+1)] if t == 0 and i < 31 else []
        lv = [rdV(i, 0), rdV(i, 1)] if t == 0 else []
        m1, m2 = ([M1(st+1)], [M2(st+1)]) if st < 63 else ([], [])
        p0, p1 = ([M3(st-1, 0)], [M3(st-1, 1)]) if st else ([], [])
        L = m1 + lk + e(0) + m2 + lv + e(1) + p0 + e(2) + p1 + e(3)
        if t == 0: L.append("s_waitcnt lgkmcnt(0)")
        a.label(f"f_s{st}")
        if st + 1 in WIDE:
            k = max(q for q, x in enumerate(L) if x.startswith("v_exp_f32 "))
            L[k] = L[k].replace("v_exp_f32 ", "v_exp_f32_e64 ")
        for x in L: a(x)
    a("s_nop 1"); a(M3(63, 0)); a(M3(63, 1))
    stamp(a, 5); stamp(a, 5, "T")
    if G0.STAMP and "N" in EXP: a("s_memtime s[94:95]")
    if G0.STAMP and "C" in EXP: a("s_memtime s[86:87]")
    a(f"s_cmp_lg_u32 s{sKh}, 0\ns_cbranch_scc1 f_e3")
    a(f"""v_and_b32 v{vt2}, 28, v{vOb}
    v_add_u32 v{vt2}, {F_PRG}, v{vt2}
    s_lshl_b32 s3, s{sHd}, 2
    s_add_u32 s3, s3, {F_OH}
    v_mov_b32 v{aF}, s3
    v_mov_b32 v{vt1}, 1""")
    lds_wait(a, "f_e4", vt2, vt3, 7)
    a("s_nop 3")
    for q in range(6): a(f"ds_write_b128 v{vH}, v[{O[q//3]+4*(q%3)}:{O[q//3]+4*(q%3)+3}] offset:{1024*q}")
    a(f"ds_write_b32 v{aF}, v{vt1}")
    G0.stamp_end(a, 0, sWS, sWave)
    a("s_endpgm")
    a.label("f_e3")
    a("s_waitcnt lgkmcnt(0)\ns_nop 0")
    for r in range(11): a(f"v_add_f32 v{O[0]+r}, v{O[0]+r}, v{PB[3+(r>>2)]+(r&3)}")
    def norm(t):
        ON, PK, vr = S[1], S[2] + 8*t, S[1] + 10
        if "one2" not in EXP:
            a(f"v_mov_b32 v{vr}, v{O[t]+10}\ns_nop 1\nv_permlane32_swap_b32 v{O[t]+10}, v{vr}")
        a(f"v_rcp_f32 v{vr}, v{O[t]+10}\ns_nop 0\nv_mul_f32 v{vr}, v{vr}, v{vG[t]}")
        for r in range(10): a(f"v_mul_f32 v{ON+r}, v{O[t]+r}, v{vr}")
        for k in range(5): a(f"v_cvt_pk_bf16_f32 v{PK+k}, v{ON+2*k}, v{ON+2*k+1}")
        a(f"""buffer_store_dwordx4 v[{PK}:{PK+3}], v{vOa}, s[{sWS}:{sWS+3}], s{sO+2*(1-t)} offen sc1
        s_mov_b32 exec_hi, 0
        buffer_store_dword v{PK+4}, v{vOb}, s[{sWS}:{sWS+3}], s{sO+1+2*(1-t)} offen sc1
        s_mov_b32 exec_hi, -1""")
    norm(0)
    for r in range(11): a(f"v_add_f32 v{O[1]+r}, v{O[1]+r}, v{PB[r>>2]+(r&3)}")
    norm(1)
    a(f"v_add_f32 v{vt0}, |v{O[0]}|, |v{O[1]}|")
    for r in range(1, 11):
        for t in range(2): a(f"v_add_f32 v{vt0}, |v{O[t]+r}|, v{vt0}")
    a(f"""v_min_f32 v{aF}, v{O[0]+10}, v{O[1]+10}
    v_mov_b32 v{vt3}, 0x7f800000
    v_cmp_le_f32 vcc, {f2u(LMIN)}, v{aF}
    v_cmp_lt_f32 s[6:7], v{vt0}, v{vt3}
    s_nop 0
    s_and_b64 vcc, vcc, s[6:7]
    s_cmp_eq_u64 vcc, exec
    s_cbranch_scc0 f_fallback""")
    a.label("f_n2")
    stamp(a, 1, "T")
    if "T" in EXP: a("s_waitcnt vmcnt(0)")
    stamp(a, 2, "T")
    last_wave_signals(a, "f_a9", F_CNT3, 4, FL3, 4, vt0, vt2, True)
    stamp(a, 3, "T")
    G0.stamp_end(a, 0, sWS, sWave)
    a("s_endpgm")
    a.label("f_fallback")
    s0 = S[0]
    a(f"""s_waitcnt vmcnt(0)
    v_subrev_u32 v{aK}, {base[aK] + TILE}, v{aK}
    v_subrev_u32 v{ak}, {base[ak] + TILE}, v{ak}
    v_subrev_u32 v{aV}, {base[aV] + TILE}, v{aV}""")
    for t in range(2):
        st = 3*t
        kb, vb = K1[(st >> 1) & 1], V[(st >> 1) & 1]
        k2 = K2[(st >> 1) & 1]
        a(f"v_mov_b32 v{k2+1}, 0\nv_mov_b32 v{vt0}, 0xff800000\ns_mov_b32 s{sA}, {KVG}")
        a.label(f"f_fb1{t}")
        a(f"""buffer_load_dwordx4 v[{kb}:{kb+3}], v{aK}, s[{sWS}:{sWS+3}], s{sA} offen sc1
        buffer_load_dword v{k2}, v{ak}, s[{sWS}:{sWS+3}], s{sA} offen sc1
        s_waitcnt vmcnt(0)""")
        a(M1(st)); a(M2(st)); a("s_nop 11")
        for r in range(0, 16, 2): a(f"v_max3_f32 v{vt0}, v{s0+r}, v{s0+r+1}, v{vt0}")
        a(f"""s_add_u32 s{sA}, s{sA}, {TILE}
        s_cmp_lt_u32 s{sA}, {KVG+64*TILE}
        s_cbranch_scc1 f_fb1{t}
        v_mov_b32 v{vt3}, v{vt0}
        s_nop 1
        v_permlane32_swap_b32 v{vt0}, v{vt3}
        v_max_f32 v{vt0}, v{vt0}, v{vt3}
        v_cvt_pk_bf16_f32 v{vt3}, v{vt0}, v{vt0}
        v_and_b32 v{vt3}, 0xffff0000, v{vt3}
        v_sub_f32 v{vt0}, v{vt0}, v{vt3}
        v_cvt_pk_bf16_f32 v{Q2[t]+1}, v{vt3}, v{vt0}
        v_cndmask_b32 v{Q2[t]+1}, v{Q2[t]+1}, 0, s[{sHi}:{sHi+1}]
        v_mov_b32 v{k2+1}, 0xbf80bf80
        s_mov_b32 s{sA}, {KVG}""")
        for r in range(16): a(f"v_mov_b32 v{O[t]+r}, 0")
        a.label(f"f_fb2{t}")
        a(f"""buffer_load_dwordx4 v[{kb}:{kb+3}], v{aK}, s[{sWS}:{sWS+3}], s{sA} offen sc1
        buffer_load_dword v{k2}, v{ak}, s[{sWS}:{sWS+3}], s{sA} offen sc1
        buffer_load_dwordx4 v[{vb}:{vb+3}], v{aV}, s[{sWS}:{sWS+3}], s{sA} offen sc1
        buffer_load_dwordx4 v[{vb+4}:{vb+7}], v{aV}, s[{sWS}:{sWS+3}], s{sA} offen offset:{VB} sc1
        s_waitcnt vmcnt(0)""")
        a(M1(st)); a(M2(st)); a("s_nop 11")
        for r in range(16): a(f"v_exp_f32 v{s0+r}, v{s0+r}")
        a("s_nop 1"); a(M3(st, 0)); a(M3(st, 1))
        a(f"""s_add_u32 s{sA}, s{sA}, {TILE}
        s_cmp_lt_u32 s{sA}, {KVG+64*TILE}
        s_cbranch_scc1 f_fb2{t}
        s_nop 11""")
        norm(t)
    a("s_branch f_n2")
    a.label("f_end")
    a("s_endpgm")
    return a

HEAD = """; gated_mix: out = g * FNet(x) + (1 - g) * MQA(x), x [2048 x 576] bf16, 32 heads of 18, g = sigmoid(x . gate_w).
; One launch: 256 workgroups of 12 waves, one per CU (all resident: 160 KiB of LDS each).  Written out by a generator script.
;
;          After the loop every row is checked (sum >= 2^-103, nothing infinite or NaN); if a check fails the wave
;          redoes its rows with the true maximum (f_fallback).
;
; Hand-offs between workgroups: write-through (sc1) stores, drained, then a tag; consumers wait for the tag and load with sc1.
"""
def build(a, vgpr=168):
    i0, i1 = a.lines.index("f_duty:"), a.lines.index("f_dS:")
    if "dplain" in EXP: a.lines[i0:i1] = [l.replace(" sc1", "") if "buffer_store" in l and "dwordx2" not in l else l for l in a.lines[i0:i1]]
    if "dnost" in EXP: a.lines[i0:i1] = [l for l in a.lines[i0:i1] if not ("buffer_store" in l and "dwordx2" not in l)]
    if "noprio" in EXP: a.lines = [l for l in a.lines if l != "s_setprio 3"]
    lab = G0.NAME + "_kernel"
    for p in check(a.lines): print(p, file=sys.stderr)
    out = [HEAD + f"; @launch grid=(256,1,1) block=(768,1,1) lds=163840", '.amdgcn_target "amdgcn-amd-amdhsa--gfx950"\n.text',
           f".globl {lab}\n.p2align 8\n.type {lab},@function\n{lab}:", a.text(), ".p2align 8\n.type rf_table,@object\nrf_table:"]
    w = rf_table()
    for i in range(0, len(w), 8): out.append(".long " + ",".join(f"0x{x:08x}" for x in w[i:i+8]))
    out += [".size rf_table, 4096", "rf_end:", '.section .rodata,"a"', kd(lab, vgpr)]
    return "\n".join(out) + "\n"

if __name__ == "__main__":
    if len(sys.argv) > 2 and sys.argv[2] == "stamp": G0.STAMP = True
    for x in sys.argv[3:]:
        if x.startswith("leak"):
            p = x.split(":"); G0.LEAK = (int(p[1]), int(p[2]), int(p[3]) if len(p) > 3 else None)
        else: EXP.add(x)
    open(sys.argv[1], "w").write(build(gen()))
    if "nophase" not in EXP:
        import subprocess, re
        subprocess.run(["clang", "-x", "assembler", "-target", "amdgcn-amd-amdhsa", "-mcpu=gfx950", "-c", sys.argv[1], "-o", "phase.o"], check=True)
        sym = subprocess.run(["llvm-readelf", "-s", "phase.o"], capture_output=True, text=True).stdout
        ad = {int(m.group(2)): int(m.group(1), 16) for m in re.finditer(r"([0-9a-f]{16})\s+\d+\s+\w+\s+\w+\s+\w+\s+\d+\s+f_s(\d+)$", sym, re.M)}
        sh = 0
        for st in range(64):
            if (ad[st] + sh) % 8 != THR("ph", 0): WIDE.add(st); sh += 4
        _n[0] = 0; G0._lk[0] = 0
        open(sys.argv[1], "w").write(build(gen()))
```
